```python
import torch

def _softmax(x, axis=-1):
    return torch.softmax(x, dim=axis)
def _gelu(x):
    return torch.nn.functional.gelu(x, approximate="tanh")
def _silu(x):
    return torch.nn.functional.silu(x)
def _sigmoid(x):
    return torch.sigmoid(x)
def _layernorm(x, axis=-1, eps=1e-5):
    m = x.mean(dim=axis, keepdim=True)
    v = x.var(dim=axis, keepdim=True, unbiased=False)
    return (x - m) / torch.sqrt(v + eps)
def _scatter_add(tgt, idx, src, axis=0):
    return tgt.clone().index_add_(axis, idx, src)
def _segment_sum(src, seg, n):
    out = torch.zeros((n,) + src.shape[1:], dtype=src.dtype)
    return out.index_add_(0, seg, src)
def _pad(x, pw):
    flat = tuple(v for pair in reversed(pw) for v in pair)
    return torch.nn.functional.pad(x, flat)

kernel_name = 'gated_mix__spectral_gfnet__grouped_kv_mqa__prompt'

def setup_inputs():

    _w = (lambda a: (lambda t: t.to(torch.bfloat16) if t.is_floating_point() else t)(torch.as_tensor(a)))
    def _A_setup():
        B, S, D = 1, 2048, 576
        Df = D // 2 + 1
        return {
            "x": _w((lambda *s: torch.randn(*s, dtype=torch.bfloat16) * 0.05)(B, S, D)),
            "w_r": _w((lambda *s: torch.randn(*s, dtype=torch.bfloat16) * 0.8)(S, Df) * 0.02),
            "w_i": _w((lambda *s: torch.randn(*s, dtype=torch.bfloat16) * 0.8)(S, Df) * 0.02),
        }
    _A_in = _A_setup()

    def _B_setup():
        B, S, D, H = 1, 2048, 576, 32
        Dh = D // H
        return {
            "x": _w((lambda *s: torch.randn(*s, dtype=torch.bfloat16) * 0.05)(B, S, D)),
            "wq": _w((lambda *s: torch.randn(*s, dtype=torch.bfloat16) * 0.8)(D, H * Dh)),
            "wk": _w((lambda *s: torch.randn(*s, dtype=torch.bfloat16) * 0.8)(D, Dh)),
            "wv": _w((lambda *s: torch.randn(*s, dtype=torch.bfloat16) * 0.05)(D, Dh)),
            "wo": _w((lambda *s: torch.randn(*s, dtype=torch.bfloat16) * 0.05)(H * Dh, D)),
        }
    _B_in = _B_setup()

    return {
        "A_x": _A_in["x"],
        "A_w_r": _A_in["w_r"],
        "A_w_i": _A_in["w_i"],
        "B_x": _B_in["x"],
        "B_wq": _B_in["wq"],
        "B_wk": _B_in["wk"],
        "B_wv": _B_in["wv"],
        "B_wo": _B_in["wo"],
        "gate_w": _w((lambda *s: torch.randn(*s, dtype=torch.bfloat16) * 0.05)(576) * 16.0),
    }

def reference(A_x, A_w_r, A_w_i, B_x, B_wq, B_wk, B_wv, B_wo, gate_w):
    def _A_ref(x, w_r, w_i):
        B, S, D = x.shape
        X = (lambda x, axes=(-2,-1): torch.fft.rfft2(x.float(), dim=axes))(x, axes=(-2, -1))
        W = w_r + 1j * w_i
        X = X * W
        y = (lambda x, s, axes=(-2,-1): torch.fft.irfft2(x, s=s, dim=axes).to(torch.bfloat16))(X, (S, D), axes=(-2, -1))
        return y

    def _B_ref(x, wq, wk, wv, wo):
        B, S, D = x.shape
        H = 32
        Dh = D // H
        q = (lambda x, *d: x.permute(*d))((x @ wq).reshape(B, S, H, Dh), 0, 2, 1, 3)
        k = x @ wk
        v = x @ wv
        scores = torch.einsum("bhqd,bkd->bhqk", q, k) * (Dh ** -0.5)
        p = _softmax(scores, axis=-1)
        o = torch.einsum("bhqk,bkd->bhqd", p, v)
        return (lambda x, *d: x.permute(*d))(o, 0, 2, 1, 3).reshape(B, S, H * Dh) @ wo

    x = A_x
    g = _sigmoid((x * gate_w).sum(-1, keepdims=True))
    a = _A_ref(x, A_w_r, A_w_i)
    b = _B_ref(x, B_wq, B_wk, B_wv, B_wo)
    return g * a + (1 - g) * b
```

```python
import re

TRANS = ("v_exp_f32", "v_log_f32", "v_rcp_f32", "v_rsq_f32", "v_sqrt_f32", "v_sin_f32", "v_cos_f32", "v_rcp_iflag_f32")
MFMA_PASSES = {
    "v_mfma_f32_32x32x16_bf16": 8, "v_mfma_f32_32x32x8_bf16": 8, "v_mfma_f32_16x16x32_bf16": 4,
    "v_mfma_f32_32x32x4_2b_bf16": 16,
}
REG_RE = re.compile(r"^(-|abs\()?([vsa])(?:(\d+)|\[(\d+):(\d+)\])\)?$")

def regs_of(tok):
    tok = tok.strip()
    if tok in ("vcc", "vcc_lo", "vcc_hi"):
        return {("s", "vcc")}
    if tok in ("exec", "exec_lo", "exec_hi"):
        return {("s", "exec")}
    if tok == "m0":
        return {("s", "m0")}
    m = REG_RE.match(tok)
    if not m:
        return set()
    k = m.group(2)
    if m.group(3) is not None:
        return {(k, int(m.group(3)))}
    return {(k, i) for i in range(int(m.group(4)), int(m.group(5)) + 1)}

class Ins:
    def __init__(self, text):
        self.text = text
        t = text.split(";")[0].strip()
        self.label = t[:-1] if t.endswith(":") else None
        self.directive = t.startswith(".")
        self.op = ""
        self.dst = set(); self.src = set(); self.srcc = set(); self.ab = set(); self.data = set()
        self.cls = "none"; self.target = None; self.passes = 0; self.nop = 0; self.lds = False
        if self.label or self.directive or not t:
            return
        parts = t.split(None, 1)
        op = self.op = re.sub(r"_(e32|e64|sdwa|dpp)$", "", parts[0])
        rest = parts[1] if len(parts) > 1 else ""
        ops = [o.strip() for o in rest.split(",")] if rest else []
        if ops:
            ops[-1] = ops[-1].split()[0] if ops[-1] else ops[-1]
        mods = rest
        R = regs_of
        if op.startswith("v_mfma"):
            self.cls = "mfma"; self.passes = MFMA_PASSES[op]
            self.dst = R(ops[0]); self.ab = R(ops[1]) | R(ops[2]); self.srcc = R(ops[3]); self.src = self.ab | self.srcc
        elif op.startswith("v_"):
            self.cls = "valu"
            if op.startswith("v_cmp"):
                self.dst = R(ops[0]); self.src = set().union(*[R(o) for o in ops[1:]])
            elif op in ("v_add_co_u32", "v_sub_co_u32", "v_addc_co_u32", "v_subb_co_u32"):
                self.dst = R(ops[0]) | R(ops[1]); self.src = set().union(*[R(o) for o in ops[2:]])
            elif op.startswith("v_permlane") and "swap" in op:
                self.dst = R(ops[0]) | R(ops[1]); self.src = set(self.dst)
            else:
                self.dst = R(ops[0]); self.src = set().union(*[R(o) for o in ops[1:]]) if len(ops) > 1 else set()
                if op in ("v_fmac_f32", "v_writelane_b32", "v_pk_fmac_f16"):
                    self.src |= self.dst
            self.dpp = ("row_" in mods or "quad_perm" in mods or "wave_" in mods or op.startswith("v_permlane"))
        elif op.startswith("ds_"):
            self.cls = "ds"
            if op.startswith("ds_read") or "rtn" in op or op.startswith("ds_bpermute") or op.startswith("ds_swizzle"):
                self.dst = R(ops[0]); self.src = set().union(*[R(o) for o in ops[1:]])
            else:
                self.src = set().union(*[R(o) for o in ops])
        elif op.startswith("buffer_") or op.startswith("global_"):
            self.cls = "vmem"
            self.lds = bool(re.search(r"\blds\b", mods))
            toks = [R(o) for o in ops]
            if "store" in op or "atomic" in op:
                self.src = set().union(*toks)
                if op.startswith("buffer_"):
                    self.data = toks[0]
                else:
                    self.data = toks[1]
                self.wide = op.endswith("x4") or op.endswith("x3")
            elif self.lds:
                self.src = set().union(*toks) | {("s", "m0")}
            else:
                self.dst = toks[0]; self.src = set().union(*toks[1:])
        elif op.startswith("s_"):
            self.cls = "salu"
            if op == "s_nop":
                self.nop = int(ops[0], 0)
            elif op in ("s_branch",) or op.startswith("s_cbranch"):
                self.target = ops[0]
            elif op == "s_call_b64":
                self.target = ops[1]
            elif op.startswith("s_cmp") or op in ("s_waitcnt", "s_barrier", "s_endpgm", "s_sleep", "s_setprio"):
                self.src = set().union(*[R(o) for o in ops]) if ops else set()
            else:
                self.dst = R(ops[0]) if ops else set()
                self.src = set().union(*[R(o) for o in ops[1:]]) if len(ops) > 1 else set()
                if "saveexec" in op:
                    self.dst |= {("s", "exec")}
    @property
    def real(self):
        return bool(self.op)
    @property
    def states(self):
        return self.nop + 1 if self.op == "s_nop" else 1

def need(p, c):
    n = 0
    vd = {r for r in p.dst if r[0] in "va"}
    sd = {r for r in p.dst if r[0] == "s"}
    if p.cls == "valu":
        if c.cls == "mfma" and vd & c.src: n = max(n, 2)
        if p.op in TRANS and c.cls == "valu" and c.op not in TRANS and vd & c.src: n = max(n, 1)
        if c.op in ("v_readfirstlane_b32", "v_readlane_b32") and vd & c.src: n = max(n, 1)
        if c.cls == "valu" and getattr(c, "dpp", False) and vd & c.src: n = max(n, 2)
        if sd:
            if c.cls == "valu" and sd & c.src: n = max(n, 4 if c.op in ("v_readlane_b32", "v_writelane_b32") else 2)
            if c.cls == "vmem" and sd & c.src: n = max(n, 5)
    if p.cls == "mfma":
        big = {2: 5, 4: 8, 8: 12, 16: 20}[p.passes]
        if c.cls == "valu" and vd & (c.src | c.dst): n = max(n, big)
        if c.cls in ("ds", "vmem") and vd & (c.src | c.dst): n = max(n, big)
        if c.cls == "mfma":
            if vd & c.ab: n = max(n, big)
            if vd & c.srcc and not (vd == c.srcc and p.passes == c.passes):
                n = max(n, {2: 4, 4: 6, 8: 10, 16: 18}[p.passes])
            if vd & c.dst and not (vd & c.srcc) and p.passes > c.passes:
                n = max(n, big)
        if c.cls == "valu" and p.srcc & c.dst: n = max(n, {2: 1, 4: 3, 8: 7, 16: 15}[p.passes])
    if p.cls == "salu" and ("s", "m0") in p.dst and c.lds: n = max(n, 1)
    if p.cls == "vmem" and p.data and getattr(p, "wide", False) and p.data & c.dst:
        n = max(n, 2 if c.cls in ("valu", "mfma") else 1)
    return n

class Asm:
    def __init__(self):
        self.lines = []
        self.nlab = 0
    def __call__(self, text):
        for l in text.split("\n"):
            if l.strip():
                self.lines.append(l.strip())
    def label(self, base="L"):
        self.nlab += 1
        return f"{base}_{self.nlab}"
    def finish(self):
        ins = [Ins(l) for l in self.lines]
        added = 0
        while True:
            lab = {x.label: i for i, x in enumerate(ins) if x.label}
            fix = None
            for i, p in enumerate(ins):
                if not p.real or not (p.dst or p.data or p.srcc):
                    continue
                if p.cls not in ("valu", "mfma", "salu", "vmem"):
                    continue
                if p.cls == "salu" and ("s", "m0") not in p.dst: continue
                if p.cls == "vmem" and not p.data: continue
                lim = 20 if p.cls == "mfma" else 5
                stack = [(i + 1, 0)]; seen = set()
                while stack and fix is None:
                    k, dist = stack.pop()
                    while k < len(ins) and dist < lim:
                        if (k, dist) in seen: break
                        seen.add((k, dist))
                        c = ins[k]
                        if c.real:
                            nd = need(p, c)
                            if nd > dist:
                                fix = (k, nd - dist); break
                            dist += c.states
                            if c.op in ("s_endpgm", "s_setpc_b64"): break
                            if c.target is not None:
                                stack.append((lab[c.target], dist))
                                if c.op == "s_branch": break
                        k += 1
                if fix: break
            if not fix: break
            k, n = fix
            while n > 0:
                m = min(n, 16)
                ins.insert(k, Ins(f"s_nop {m-1}")); n -= m; added += m
        self.added_nops = added
        out = []
        for x in ins:
            out.append(x.text if (x.label or x.directive) else "    " + x.text)
        return "\n".join(out)
```

```python
import numpy as np

S, D, H, DH = 2048, 576, 32, 18
LOG2E = 1.4426950408889634
QSCALE = LOG2E / np.sqrt(18.0)

def bf(x):
    u = np.ascontiguousarray(x, np.float32).view(np.uint32)
    return ((u + 0x7fff + ((u >> 16) & 1)) >> 16).astype(np.uint16)
def unbf(u):
    return (np.asarray(u).astype(np.uint32) << 16).view(np.float32)
def rb(x):
    return unbf(bf(x))

def rows_of(p, n):
    return 64 * np.arange(32) + 2 * p + n

def F_matrix():
    d = np.arange(D)[:, None]
    col = np.arange(D)
    cc = col // 2; ri = col % 2
    cc = np.where(col == 1, 288, cc); ri = np.where(col == 1, 0, ri)
    return np.cos(2 * np.pi * ((d * cc[None, :] + 144 * ri[None, :]) % 576) / 576)

def G_matrix():
    N = 1.0 / (S * D)
    F = F_matrix()
    sc = np.full(D, 2 * N); sc[0] = N; sc[1] = N
    return (F * sc[None, :]).T

def crow(r, h):
    return 8 * (r // 4) + 4 * h + r % 4

def model(x, w_r, w_i, wq, wk, wv, wo, gw, exact=False):
    R = (lambda a: np.asarray(a, np.float32)) if exact else rb
    x = x.astype(np.float32)
    o = {}
    q = R(x @ wq); k = R((x @ wk) * QSCALE); v = R(x @ wv)
    o["q"], o["k"], o["v"] = q, k, v
    g = 1 / (1 + np.exp(-(x @ gw)))
    o["g"] = g
    Xd = R(x @ R(F_matrix()))
    o["Xd"] = Xd
    W = w_r.astype(np.float64) + 1j * w_i.astype(np.float64)
    Y = np.zeros((S, D), np.float32)
    a_ = np.arange(32); b_ = np.arange(64)
    F32 = np.exp(-2j * np.pi * np.outer(a_, a_) / 32); F64 = np.exp(-2j * np.pi * np.outer(b_, b_) / 64)
    rc = lambda z: R(z.real) + 1j * R(z.imag)
    F32, F64 = rc(F32), rc(F64)
    TW = np.exp(-2j * np.pi * np.outer(b_, a_) / 2048)
    Z = np.zeros((S, 289), np.complex128)
    Z[:, 1:288] = Xd[:, 2:576:2] + 1j * Xd[:, 3:576:2]
    Z[:, 0] = Xd[:, 0]; Z[:, 288] = Xd[:, 1]
    z = Z.reshape(32, 64, 289)
    T = np.einsum("abx,ac->bcx", z, F32) * TW[:, :, None]
    T = rc(T)
    Zf = np.einsum("db,bcx->dcx", F64, T)
    Yh = rc(Zf * W.reshape(64, 32, 289))
    U = np.einsum("dcx,db->cbx", Yh, F64.conj()) * TW.conj().T[:, :, None]
    U = rc(U)
    y = np.einsum("ac,cbx->abx", F32.conj(), U).reshape(S, 289)
    Y[:, 2:576:2] = y[:, 1:288].real; Y[:, 3:576:2] = y[:, 1:288].imag
    Y[:, 0] = y[:, 0].real; Y[:, 1] = y[:, 288].real
    Y = R(Y)
    o["Y"] = Y
    a = Y @ R(G_matrix())
    o["a"] = a
    O = np.zeros((S, D), np.float32)
    for h in range(H):
        s = q[:, 18 * h:18 * h + 18] @ k.T
        pm = R(np.exp2(s))
        O[:, 18 * h:18 * h + 18] = (pm @ v) / pm.sum(1, keepdims=True)
    O = R(O * (1 - g)[:, None])
    o["O"] = O
    o["out"] = R(g[:, None] * a + O @ wo)
    return o
```

```python
import sys
import numpy as np
from asmlib import Asm
import model as M

NAME = "gated_mix__spectral_gfnet__grouped_kv_mqa__prompt"

WS_EPOCH = 0
WS_FKV = 0x1000
WS_FT = 0x2000
WS_FW = 0x3000
WS_FY = 0x4000
WS_FO = 0x5000
WS_STAMP = 0x8000
WS_K16 = 0x10000
WS_KX = 0x20000
WS_VF = 0x30000
WS_DBG = 0x80000
WS_G = 0x100000
WS_T = 0x200000
WS_Y = 0x500000
WS_OF = 0x800000
WS_WT = 0xB00000
WS_QDUMP = 0x1100000
WS_SIZE = 0x2000000
OOB = 0x40000000

XP = 1040
L_X = 0
L_X2 = 64 * XP
L_WQ0 = 74752
L_WQ1 = 111616
P2SZ = 9728
L_P2Q = 148480
L_P2KV = L_P2Q - P2SZ
L_MISC = 162816
L_C0A, L_C0B, L_C0C, L_C1, L_C2, L_C3, L_C4, L_C5, L_CX, L_CI, L_CK, L_CE, L_CV = (L_MISC + 4 * i for i in range(13))
L_G = L_MISC + 256
L_QS = L_WQ0
L_WO0 = 0
L_WO1 = 36864
L_OACC = L_QS + 12288
OPITCH = 5184
YSL = 6
L_WOX = L_OACC + 8 * OPITCH
L_YR = L_WOX + 9216
LDS_BYTES = 163840
assert L_YR + 4 * 1024 * YSL <= L_MISC and L_P2Q + P2SZ <= L_MISC and L_P2KV >= L_WQ1 + 416 * 64
VPITCH = 640

SX, SWQ, SKV, SG, SWS, SWO, SOUT, SWR, SWI, STB = (f"s[{a}:{a+3}]" for a in range(28, 68, 4))
sW, sP, sJ, sTAG = "s68", "s69", "s70", "s71"
sSPIN = "s72"
STAMP0 = 76
SPIN_MAX = 40000

QSCALE_BITS = int(np.float32(M.QSCALE).view(np.uint32))
LOG2E_BITS = int(np.float32(M.LOG2E).view(np.uint32))
f32bits = lambda v: int(np.float32(v).view(np.uint32))


def vr(a, n=1):
    return f"v{a}" if n == 1 else f"v[{a}:{a+n-1}]"


class Gen:
    def __init__(self, stamps=False, stop=None, dumpq=False, cyc=False):
        self.clk = 's_memtime' if cyc else 's_memrealtime'
        self.a = Asm()
        self.stamps = stamps
        self.stop = stop
        self.dumpq = dumpq
        self.wq_wait = True
        self.npoll = 0
        self.tables = []
        self.tab_off = {}

    def stamp(self, i):
        if self.stamps:
            self.a(f"{self.clk} s[74:75]\ns_waitcnt lgkmcnt(0)\ns_mov_b32 s{STAMP0+i}, s74")

    def srd(self, srd, lo, size):
        b = int(srd[2:].split(":")[0])
        self.a(f"s_mov_b32 s{b}, s{lo}\ns_mov_b32 s{b+1}, s{lo+1}\ns_mov_b32 s{b+2}, {size}\ns_mov_b32 s{b+3}, 0x20000")

    def lds_add1(self, addr, vt=2):
        a = self.a
        a(f"v_mov_b32 v{vt}, {addr}\nv_mov_b32 v{vt+1}, 1\ns_mov_b64 exec, 1\nds_add_u32 v{vt}, v{vt+1}\ns_mov_b64 exec, -1")

    def lds_wait(self, addr, target, vt=2, st="s73", sleep=1):
        a = self.a
        l = a.label("LW"); d = a.label("LWD")
        slp = f"s_sleep {sleep}" if sleep else ""
        a(f"v_mov_b32 v{vt}, {addr}\ns_mov_b32 {sSPIN}, {SPIN_MAX}")
        a(f"{l}:\nds_read_b32 v{vt+1}, v{vt}\ns_waitcnt lgkmcnt(0)\nv_readfirstlane_b32 {st}, v{vt+1}")
        a(f"s_cmp_ge_u32 {st}, {target}\ns_cbranch_scc1 {d}\n{slp}\ns_sub_u32 {sSPIN}, {sSPIN}, 1\ns_cmp_lg_u32 {sSPIN}, 0")
        a(f"s_cbranch_scc1 {l}")
        self.bail(addr)
        a(f"{d}:")

    def bail(self, ident):
        if self.stamps:
            self.a(f"s_mov_b32 s{STAMP0+11}, {0xdead0000 + (ident & 0xffff)}\ns_mov_b32 s{STAMP0+8}, vcc_lo\ns_mov_b32 s{STAMP0+9}, vcc_hi\ns_branch L_dumpregs")
        else:
            self.a("s_branch L_end")

    def poll(self, loads, regs):
        a = self.a
        l = a.label("PL"); d = a.label("PD")
        a(f"s_mov_b32 {sSPIN}, {SPIN_MAX}\n{l}:")
        a(loads)
        a("s_waitcnt vmcnt(0)")
        a(f"v_cmp_ne_u32 vcc, {sTAG}, v{regs[0]}")
        for r in regs[1:]:
            a(f"v_cmp_ne_u32 s[74:75], {sTAG}, v{r}\ns_or_b64 vcc, vcc, s[74:75]")
        a(f"s_cmp_eq_u64 vcc, 0\ns_cbranch_scc1 {d}\ns_sleep 2\ns_sub_u32 {sSPIN}, {sSPIN}, 1\ns_cmp_lg_u32 {sSPIN}, 0")
        a(f"s_cbranch_scc1 {l}")
        self.bail(len(regs) + 16 * regs[0] + 1000 * self.npoll)
        self.npoll += 1
        a(f"{d}:")

    def set_flag(self, soff, vt=2):
        self.a(f"v_mov_b32 v{vt}, 0\nv_mov_b32 v{vt+1}, {sTAG}\ns_mov_b64 exec, 1\n"
               f"buffer_store_dword v{vt+1}, v{vt}, {SWS}, {soff} offen sc1\ns_mov_b64 exec, -1")

    def prologue(self):
        a = self.a
        a(f"""
s_cmp_ge_u32 s2, 256
s_cbranch_scc1 L_end
s_load_dwordx16 s[4:19], s[0:1], 0
s_load_dwordx8 s[20:27], s[0:1], 64
v_lshrrev_b32 v1, 6, v0
v_and_b32 v0, 63, v0
v_readfirstlane_b32 {sW}, v1
s_and_b32 {sP}, s2, 31
s_lshr_b32 {sJ}, s2, 5
""")
        if self.stamps:
            a(f"{self.clk} s[74:75]")
        a(f"""
v_lshl_add_u32 v4, v1, 6, v0
v_mov_b32 v2, {L_MISC}
v_lshl_add_u32 v2, v0, 2, v2
v_mov_b32 v3, 0
ds_write_b32 v2, v3
v_lshlrev_b32 v7, 4, v0
s_mul_i32 s94, {sP}, 2304
s_mul_i32 s95, {sJ}, 144
s_lshl_b32 s91, {sJ}, 3
s_add_u32 s91, s91, {sW}
s_mov_b32 s88, 16
s_mov_b32 s30, 2359296
s_mov_b32 s31, 0x20000
s_waitcnt lgkmcnt(0)
s_mov_b32 s28, s4
s_mov_b32 s29, s5
s_barrier
""")
        if self.stamps:
            a(f"s_mov_b32 s{STAMP0}, s74")
        a(f"s_load_dword {sTAG}, s[26:27], {WS_EPOCH}")

    def tag(self):
        self.a(f"s_mul_i32 {sTAG}, {sTAG}, 0x9E3779B1\ns_add_u32 {sTAG}, {sTAG}, 0x7F4A7C15")

    def e_front(self):
        a = self.a
        a("s_setprio 3")
        lp = a.label("XL")
        a(f"""
{lp}:
s_and_b32 s91, s91, 63
s_and_b32 s90, s91, 31
s_mul_i32 s90, s90, 73728
s_lshr_b32 s73, s91, 5
s_mul_i32 s73, s73, 1152
s_add_u32 s90, s90, s94
s_mul_i32 m0, s91, {XP}
s_add_u32 s90, s90, s73
s_add_u32 s91, s91, 4
buffer_load_dwordx4 v7, {SX}, s90 offen lds
s_sub_u32 s88, s88, 1
s_cmp_lg_u32 s88, 0
s_cbranch_scc1 {lp}
""")
        a(f"""
v_lshrrev_b32 v20, 3, v0
s_mov_b32 s73, 73728
v_mul_lo_u32 v21, v20, s73
v_lshrrev_b32 v22, 4, v0
v_xor_b32 v22, v22, v0
v_and_b32 v22, 7, v22
v_lshl_add_u32 v21, v22, 4, v21
s_and_b32 s90, {sW}, 1
s_mul_i32 s90, s90, {16*73728}
s_lshr_b32 s73, {sW}, 1
s_mul_i32 s73, s73, 1152
s_add_u32 s90, s90, s73
s_add_u32 s90, s90, s94
s_add_u32 s90, s90, 1024
s_lshl_b32 s91, {sW}, 11
s_add_u32 m0, s91, {L_X2}
v_xor_b32 v22, 64, v21
buffer_load_dwordx4 v21, {SX}, s90 offen lds
s_add_u32 m0, s91, {L_X2 + 1024}
s_add_u32 s90, s90, {8*73728}
buffer_load_dwordx4 v22, {SX}, s90 offen lds
s_cmp_lt_u32 {sJ}, 4
s_cselect_b32 s36, s14, s16
s_cselect_b32 s37, s15, s17
s_mov_b32 s38, 20736
s_mov_b32 s39, 0x20000
v_mul_u32_u24 v5, 36, v4
v_lshlrev_b32 v6, 1, v4
s_and_b32 s73, {sJ}, 3
s_lshl_b32 s92, s73, 3
""")
        self.srd(SG, 20, 1152)
        s = a.label("KV3")
        a(f"""
buffer_load_dwordx3 v[24:26], v5, {SKV}, s92 offen
buffer_load_ushort v27, v6, {SG}, 0 offen
v_add_u32 v5, {256*36}, v5
buffer_load_dwordx3 v[28:30], v5, {SKV}, s92 offen
buffer_load_ushort v31, v6, {SG}, 0 offen offset:512
s_cmp_gt_u32 {sW}, 0
s_cbranch_scc1 {s}
v_add_u32 v5, {256*36}, v5
buffer_load_dwordx3 v[32:34], v5, {SKV}, s92 offen
buffer_load_ushort v35, v6, {SG}, 0 offen offset:1024
{s}:
""")
        self.lds_add1(L_CI)
        self.stamp(6)
        self.srd(SWS, 26, WS_SIZE)
        a(f"""
v_lshrrev_b32 v7, 7, v4
v_lshlrev_b32 v7, 7, v7
v_lshl_add_u32 v7, v4, 4, v7
v_add_u32 v7, {L_P2KV}, v7
v_and_b32 v14, 15, v0
v_lshrrev_b32 v15, 4, v0
v_and_b32 v17, 31, v0
v_lshrrev_b32 v18, 5, v0
v_bfe_u32 v22, v0, 2, 2
v_lshlrev_b32 v22, 4, v22
v_and_b32 v23, 1, v0
v_lshl_add_u32 v22, v23, 3, v22
v_mul_u32_u24 v16, 2176, v15
v_add3_u32 v16, v16, v22, 0
v_lshl_add_u32 v12, v15, 7, v22
v_add_u32 v12, {512*16 + 512}, v12
v_add_u32 v19, {L_P2KV}, v16
v_add_u32 v10, {L_P2KV}, v12
v_add_u32 v16, {L_P2Q}, v16
v_add_u32 v12, {L_P2Q}, v12
s_lshl_b32 s73, {sW}, 4
v_add_u32 v21, s73, v14
v_mul_u32_u24 v20, {XP}, v21
v_lshl_add_u32 v20, v15, 8, v20
v_lshrrev_b32 v22, 1, v21
v_xor_b32 v22, v22, v15
v_and_b32 v22, 7, v22
v_lshlrev_b32 v22, 4, v22
v_lshl_add_u32 v11, v21, 7, v22
v_add_u32 v11, {L_X2}, v11
v_xor_b32 v9, 64, v11
""")
        s = a.label("KW")
        a(f"s_waitcnt vmcnt(0)\nds_write_b128 v7, v[24:27]\nds_write_b128 v7, v[28:31] offset:{4096+256}\ns_cmp_gt_u32 {sW}, 0\ns_cbranch_scc1 {s}\nds_write_b128 v7, v[32:35] offset:{8192+512}\n{s}:")
        a("s_waitcnt lgkmcnt(0)")
        self.stamp(1)
        self.lds_add1(L_CX)
        self.tag()
        self.lds_wait(L_CX, 4, sleep=0)
        self.stamp(2)
        RG = 40
        XF = 104
        def wrd(b1, b2, T, dst):
            base, off = (b1, T * 128) if T < 16 else (b2, (T - 16) * 512)
            a(f"ds_read_b64_tr_b16 {vr(dst,2)}, {base} offset:{off}\nds_read_b64_tr_b16 {vr(dst+2,2)}, {base} offset:{off+64}")
        def kv_gemm(swap, acc):
            def rd(T):
                wrd("v19", "v10", T, RG + 4 * (T % 5))
                if T < 16:
                    a(f"ds_read_b128 {vr(XF+4*T,4)}, v20 offset:{T*16}")
                else:
                    a(f"ds_read_b128 {vr(XF+4*T,4)}, {'v11' if T == 16 else 'v9'}")
            for T in range(4):
                rd(T)
            for T in range(18):
                if T + 4 < 18:
                    rd(T + 4)
                a(f"s_waitcnt lgkmcnt({3 * (min(T + 5, 18) - T - 1)})")
                W, X = vr(RG + 4 * (T % 5), 4), vr(XF + 4 * T, 4)
                A, B = (X, W) if swap else (W, X)
                a(f"v_mfma_f32_16x16x32_bf16 {acc}, {A}, {B}, {'0' if T == 0 else acc}")
        kpath = a.label("EK"); done = a.label("EKD")
        a(f"""
s_lshl_b32 s90, {sP}, 1
s_lshr_b32 s73, {sW}, 1
s_add_u32 s90, s90, s73
s_and_b32 s91, {sW}, 1
s_mov_b32 s92, {(LOG2E_BITS | 0x80000000):#x}
s_cmp_lt_u32 {sJ}, 4
s_cbranch_scc1 {kpath}
""")
        a(f"""
s_lshl_b32 s90, s90, 1
s_add_u32 s90, s90, s91
s_mul_i32 s90, s90, {VPITCH}
s_add_u32 s90, s90, {WS_VF}
s_sub_u32 s73, {sJ}, 4
s_lshl_b32 s73, s73, 2
v_add_u32 v24, s73, v14
v_cmp_eq_u32 vcc, 7, v14
v_lshrrev_b32 v25, 1, v15
v_cndmask_b32 v24, v24, 18, vcc
v_lshlrev_b32 v24, 5, v24
v_lshl_add_u32 v24, v25, 3, v24
v_and_b32 v25, 1, v15
v_lshl_add_u32 v24, v25, 4, v24
v_mov_b32 v25, 0x3f803f80
s_mov_b32 s73, 0x000f000f
s_cmp_eq_u32 {sJ}, 7
s_cmov_b32 s73, 0x00bf00bf
""")
        kv_gemm(True, "v[80:83]")
        self.lds_add1(L_CK)
        a(f"""
v_cvt_pk_bf16_f32 v22, v80, v81
v_cvt_pk_bf16_f32 v23, v82, v83
v_cndmask_b32 v22, v22, v25, vcc
v_cndmask_b32 v23, v23, v25, vcc
s_mov_b32 exec_lo, s73
s_mov_b32 exec_hi, s73
buffer_store_dwordx2 v[22:23], v24, {SWS}, s90 offen sc1
s_mov_b64 exec, -1
""")
        for r in range(4):
            a(f"v_mul_f32 v{80+r}, s92, v{80+r}\nv_exp_f32 v{80+r}, v{80+r}")
        for r in range(4):
            a(f"v_add_f32 v{80+r}, 1.0, v{80+r}\nv_rcp_f32 v{80+r}, v{80+r}")
        a(f"""
s_lshl_b32 s73, {sW}, 6
s_add_u32 s73, s73, {L_G}
v_lshl_add_u32 v24, v15, 4, s73
s_mov_b32 exec_lo, 0x00400040
s_mov_b32 exec_hi, 0x00400040
ds_write_b128 v24, v[80:83]
s_branch {done}
{kpath}:
s_lshl_b32 s91, s91, 4
v_add_u32 v25, s91, v14
v_lshlrev_b32 v24, 5, v25
v_lshlrev_b32 v25, 2, v25
s_lshl_b32 s88, s90, 10
s_lshl_b32 s73, {sJ}, 3
s_add_u32 s88, s88, s73
s_add_u32 s88, s88, {WS_K16}
s_lshl_b32 s90, s90, 7
s_add_u32 s90, s90, {WS_KX}
s_cmp_lg_u32 {sJ}, 3
s_cmov_b32 s90, {OOB}
s_mov_b32 s91, {QSCALE_BITS:#x}
""")
        kv_gemm(False, "v[80:83]")
        self.lds_add1(L_CK)
        a(f"""
v_mul_f32 v26, s92, v82
v_mul_f32 v80, s91, v80
v_mul_f32 v81, s91, v81
v_mul_f32 v82, s91, v82
v_mul_f32 v83, s91, v83
v_cvt_pk_bf16_f32 v22, v80, v81
v_cvt_pk_bf16_f32 v23, v82, v83
s_mov_b64 exec, 0xffff
buffer_store_dwordx2 v[22:23], v24, {SWS}, s88 offen sc1
s_mov_b32 exec_lo, 0xffff0000
buffer_store_dword v22, v25, {SWS}, s90 offen sc1
v_exp_f32 v26, v26
s_lshl_b32 s73, {sW}, 6
s_add_u32 s73, s73, {L_G}
v_add_f32 v26, 1.0, v26
v_rcp_f32 v26, v26
v_lshl_add_u32 v24, v14, 2, s73
ds_write_b32 v24, v26
{done}:
s_mov_b64 exec, -1
""")
        self.stamp(7)
        a(f"""
s_lshl_b32 s73, {sP}, 3
s_add_u32 s73, s73, {sJ}
s_lshl_b32 s73, s73, 2
s_add_u32 s73, s73, {sW}
s_lshl_b32 s73, s73, 2
s_add_u32 s91, s73, {WS_FKV}
v_bfe_u32 v22, v0, 2, 2
v_lshl_add_u32 v19, v18, 3, v22
v_lshlrev_b32 v19, 6, v19
v_bfe_u32 v22, v0, 4, 1
v_lshl_add_u32 v19, v22, 5, v19
v_and_b32 v22, 3, v0
v_lshl_add_u32 v19, v22, 3, v19
s_and_b32 s73, {sW}, 1
s_mul_i32 s73, s73, {L_WQ1 - L_WQ0}
s_add_u32 s73, s73, {L_WQ0}
v_add_u32 v19, s73, v19
s_lshr_b32 s73, {sW}, 1
s_lshl_b32 s73, s73, 5
v_add_u32 v21, s73, v17
v_mul_u32_u24 v13, {XP}, v21
v_lshl_add_u32 v13, v18, 4, v13
v_lshrrev_b32 v22, 1, v21
v_xor_b32 v22, v22, v18
v_and_b32 v22, 7, v22
v_lshlrev_b32 v22, 4, v22
v_lshl_add_u32 v5, v21, 7, v22
v_add_u32 v5, {L_X2}, v5
v_xor_b32 v6, 32, v5
v_xor_b32 v7, 64, v5
v_xor_b32 v8, 0x60, v5
s_waitcnt vmcnt(0)
""")
        self.set_flag("s91")
        self.stamp(3)
        a(f"""
v_mul_u32_u24 v22, 48, v21
v_add_u32 v22, {L_QS}, v22
v_lshl_add_u32 v23, v18, 3, v22
v_mul_u32_u24 v24, 3044, v18
v_add_u32 v24, v24, v22
s_lshl_b32 s73, {sW}, 4
v_add_u32 v25, s73, v14
v_mul_u32_u24 v25, 48, v25
v_lshl_add_u32 v25, v15, 3, v25
v_add_u32 v25, {L_QS + 3*3072 + 20}, v25
v_mul_u32_u24 v26, 48, v4
v_add_u32 v26, {L_QS + 36}, v26
v_mov_b32 v27, 0
""")
        RX = 28
        def rdm(t):
            b = RG + 8 * (t % 5)
            a(f"ds_read_b64_tr_b16 {vr(b,2)}, v19 offset:{t*1024}\nds_read_b64_tr_b16 {vr(b+2,2)}, v19 offset:{t*1024+256}")
            a(f"ds_read_b128 {vr(b+4,4)}, v13 offset:{t*32}" if t < 32 else f"ds_read_b128 {vr(b+4,4)}, v{5+t-32}")
        def mm(t):
            b = RG + 8 * (t % 5)
            a(f"v_mfma_f32_32x32x16_bf16 v[88:103], {vr(b,4)}, {vr(b+4,4)}, {'0' if t == 0 else 'v[88:103]'}")
        def stage(t0, t1):
            for t in range(t0, min(t0 + 4, t1)):
                rdm(t)
            for t in range(t0, t1):
                if t + 4 < t1:
                    rdm(t + 4)
                a(f"s_waitcnt lgkmcnt({3 * (min(t + 5, t1) - t - 1)})")
                mm(t)
        self.lds_wait(L_C0A, 2, sleep=0)
        self.stamp(4)
        stage(0, 12)
        self.lds_add1(L_CE)
        self.lds_wait(L_C0B, 2, sleep=0)
        stage(12, 26)
        self.lds_wait(L_C0C, 2, sleep=0)
        self.stamp(9)
        seq = []
        xs = list(range(18))
        for t in range(26, 36):
            seq.append(("m", t))
            for _ in range(2 if t < 34 else 1):
                seq.append(("x", xs.pop(0)))
        assert not xs
        cost = lambda it: 3 if it[0] == "m" else 2
        def issue(it):
            if it[0] == "m": rdm(it[1])
            else: wrd("v16", "v12", it[1], RX + 4 * (it[1] % 3))
        AH = 3
        for it in seq[:AH]:
            issue(it)
        for i, it in enumerate(seq):
            a(f"s_waitcnt lgkmcnt({sum(cost(x) for x in seq[i+1:i+AH])})")
            if it[0] == "m":
                mm(it[1])
            else:
                T = it[1]
                a(f"v_mfma_f32_16x16x32_bf16 v[84:87], {vr(RX+4*(T%3),4)}, {vr(XF+4*T,4)}, {'0' if T == 0 else 'v[84:87]'}")
            if i + AH < len(seq):
                issue(seq[i + AH])
        self.stamp(8)
        self.lds_wait(L_CE, 4, sleep=0)
        a("v_cvt_pk_bf16_f32 v84, v84, v85\nv_cvt_pk_bf16_f32 v85, v86, v87")
        a("ds_write_b32 v26, v27\ns_mov_b32 exec_hi, 0\nds_write2_b32 v25, v84, v85 offset0:0 offset1:1\ns_mov_b64 exec, -1")
        for k in range(8):
            a(f"v_cvt_pk_bf16_f32 v{88+k}, v{88+2*k}, v{89+2*k}")
        m1 = a.label("QM1"); md = a.label("QMD")
        a(f"s_bitcmp1_b32 {sW}, 0\ns_cbranch_scc1 {m1}")
        off = lambda c: (c // 18) * 3072 + (c % 18) * 2
        for m in range(2):
            if m == 1:
                a(f"s_branch {md}\n{m1}:")
            for k in range(8):
                c0 = 32 * m + 8 * (k // 2) + 2 * (k % 2)
                d = off(c0 + 4) - off(c0)
                assert d in (8, 3044)
                a(f"ds_write_b32 {'v23' if d == 8 else 'v24'}, v{88+k} offset:{off(c0)}")
        a(f"{md}:")
        self.lds_add1(L_C1)
        self.lds_wait(L_C1, 4, sleep=0)
        self.stamp(5)
        if self.dumpq:
            a(f"s_mul_i32 s73, s2, 16384\ns_add_u32 s73, s73, {WS_QDUMP}\ns_mul_i32 s90, {sW}, 3072\ns_add_u32 s73, s73, s90")
            a(f"s_add_u32 s90, s90, {L_QS}\nv_lshl_add_u32 v22, v0, 4, s90\nv_lshlrev_b32 v23, 4, v0")
            for i in range(3):
                a(f"ds_read_b128 v[24:27], v22 offset:{1024*i}\ns_waitcnt lgkmcnt(0)\nbuffer_store_dwordx4 v[24:27], v23, {SWS}, s73 offen offset:{1024*i}\ns_waitcnt vmcnt(0)")
            a(f"v_lshlrev_b32 v23, 2, v0\nv_add_u32 v22, {L_G}, v23\nds_read_b32 v24, v22\ns_waitcnt lgkmcnt(0)")
            a(f"s_mul_i32 s73, s2, 16384\ns_add_u32 s73, s73, {WS_QDUMP + 12288}\nbuffer_store_dword v24, v23, {SWS}, s73 offen\ns_waitcnt vmcnt(0)")
        a("s_setprio 1")

    def panel_loads(self, srd, l0, l1, lx, padded, plan):
        a = self.a
        a(f"""
v_lshrrev_b32 v22, 2, v0
v_mul_u32_u24 v22, 1152, v22
v_and_b32 v23, 3, v0
v_lshl_add_u32 v22, v23, 4, v22
v_mul_u32_u24 v23, 1152, v0
s_and_b32 s73, {sW}, 1
s_mul_i32 s90, s73, {16*1152}
s_add_u32 s90, s90, s95
s_lshl_b32 s91, s73, 10
""")
        for n, hook in plan:
            lp = a.label("PNL")
            a(f"""
s_mov_b32 s88, {n}
{lp}:
s_add_u32 m0, s91, {l0}
s_add_u32 s93, s90, 128
buffer_load_dwordx4 v22, {srd}, s90 offen lds
s_add_u32 m0, s91, {l1 - 64}
s_lshr_b32 s92, s91, 2
buffer_load_dwordx4 v22, {srd}, s90 offen offset:64 lds
""")
            if padded:
                a("s_lshr_b32 s73, s91, 13\ns_lshl_b32 s73, s73, 7\ns_add_u32 s92, s92, s73")
            a(f"""
s_add_u32 m0, s92, {lx}
s_mov_b64 exec, 0xffff
buffer_load_dwordx4 v23, {srd}, s93 offen lds
s_mov_b64 exec, -1
s_add_u32 s91, s91, 2048
s_add_u32 s90, s90, {32*1152}
s_sub_u32 s88, s88, 1
s_cmp_lg_u32 s88, 0
s_cbranch_scc1 {lp}
""")
            if hook:
                hook()

    def l_front(self):
        a = self.a
        a(f"s_sub_u32 s99, {sW}, 4")
        a(f"""
v_and_b32 v18, 31, v0
v_lshrrev_b32 v19, 5, v0
s_lshl_b32 s89, s99, 3
s_add_u32 s89, s89, {sJ}
s_cmp_ge_u32 s89, 18
s_cselect_b32 s89, 99, s89
v_bfe_u32 v20, v0, 2, 1
v_lshlrev_b32 v20, 4, v20
v_bfe_u32 v21, v0, 3, 2
v_lshl_add_u32 v20, v21, 2, v20
v_and_b32 v21, 3, v0
v_add_u32 v20, v20, v21
""")
        self.srd(SWS, 26, WS_SIZE)
        wqd = a.label("WQD")
        a(f"s_cmp_lt_u32 {sW}, 6\ns_cbranch_scc1 {wqd}")
        self.srd(SWQ, 12, 663552)
        if self.wq_wait:
            self.lds_wait(L_CI, 4, sleep=0)
        def sig_a():
            a("s_waitcnt vmcnt(12)")
            self.lds_add1(L_C0A)
        def gate():
            self.lds_wait(L_CK, 4, sleep=0)
        self.panel_loads(SWQ, L_WQ0, L_WQ1, L_P2Q, True, [(10, sig_a), (3, gate), (5, None)])
        self.stamp(6)
        a("s_waitcnt vmcnt(15)")
        self.lds_add1(L_C0B)
        a("s_waitcnt vmcnt(0)")
        self.lds_add1(L_C0C)
        self.stamp(1)
        a(f"{wqd}:")
        nof = a.label("NOF")
        a(f"s_cmp_eq_u32 s89, 99\ns_cbranch_scc1 {nof}")
        a(f"""
s_lshl_b32 s73, s89, 5
v_add_u32 v44, s73, v18
v_lshrrev_b32 v45, 1, v44
v_and_b32 v46, 1, v44
v_cmp_eq_u32 vcc, 1, v44
v_mov_b32 v47, 288
v_cndmask_b32 v45, v45, v47, vcc
v_cndmask_b32 v46, v46, 0, vcc
v_and_b32 v47, 1, v45
v_lshlrev_b32 v47, 31, v47
v_or_b32 v17, 1.0, v47
v_cvt_f32_u32 v45, v45
v_cvt_f32_u32 v46, v46
v_mul_f32 v45, {f32bits(1/576):#x}, v45
v_mul_f32 v46, 0x3e800000, v46
v_lshlrev_b32 v47, 3, v19
v_cvt_f32_u32 v47, v47
v_fma_f32 v46, v47, v45, v46
v_mul_f32 v55, 0x41800000, v45
""")
        for jj in range(8):
            a(f"s_mov_b32 s73, {f32bits(jj):#x}\nv_fma_f32 v{56+jj}, s73, v45, v46")
        for t in range(18):
            if t:
                a(f"s_mov_b32 s73, {f32bits(t):#x}")
            for jj in range(8):
                if t:
                    a(f"v_fma_f32 v{64+jj}, s73, v55, v{56+jj}\nv_cos_f32 v{64+jj}, v{64+jj}")
                else:
                    a(f"v_cos_f32 v{64+jj}, v{56+jj}")
            for k in range(4):
                a(f"v_cvt_pk_bf16_f32 v{104+4*t+k}, v{64+2*k}, v{65+2*k}")
        a(f"{nof}:")
        self.stamp(9)
        a("s_waitcnt lgkmcnt(0)")
        self.tag()
        self.g_gen()
        a(f"""
v_mul_u32_u24 v25, {XP}, v20
v_lshl_add_u32 v25, v19, 4, v25
v_lshrrev_b32 v22, 1, v20
v_xor_b32 v22, v22, v19
v_and_b32 v22, 7, v22
v_lshlrev_b32 v22, 4, v22
v_lshl_add_u32 v5, v20, 7, v22
v_add_u32 v5, {L_X2}, v5
v_xor_b32 v6, 32, v5
v_xor_b32 v7, 64, v5
v_xor_b32 v8, 0x60, v5
s_mul_i32 s73, s99, {2*OPITCH}
s_add_u32 s73, s73, {L_OACC}
v_lshl_add_u32 v22, v0, 4, s73
v_mov_b32 v28, 0
v_mov_b32 v29, 0
v_mov_b32 v30, 0
v_mov_b32 v31, 0
""")
        self.stamp(2)
        a("s_setprio 2")
        self.lds_wait(L_C1, 4)
        for i in range(10):
            a(f"ds_write_b128 v22, v[28:31] offset:{1024*i}")
        a(f"s_mov_b64 exec, 0xff\nds_write_b128 v22, v[28:31] offset:10240\ns_mov_b64 exec, -1")
        self.lds_add1(L_C2)
        self.stamp(3)
        nod = a.label("NOD")
        a(f"s_cmp_eq_u32 s89, 99\ns_cbranch_scc1 {nod}")
        RG = 44
        def frag(t, n, q):
            return vr(RG + 16 * (t % 3) + 8 * n + 4 * q, 4)
        def rd(t):
            for n in range(2):
                for q in range(2):
                    ks = t + 18 * q
                    if ks < 32:
                        a(f"ds_read_b128 {frag(t,n,q)}, v25 offset:{n*32*XP + ks*32}")
                    else:
                        a(f"ds_read_b128 {frag(t,n,q)}, v{5+ks-32} offset:{n*4096}")
        a("s_waitcnt lgkmcnt(0)")
        rd(0); rd(1)
        for t in range(18):
            if t + 2 < 18:
                rd(t + 2)
            a(f"s_waitcnt lgkmcnt({4 * (min(t+3, 18) - t - 1)})")
            for n in range(2):
                for q in range(2):
                    acc = vr(176 + 32 * n + 16 * q, 16)
                    a(f"v_mfma_f32_32x32x16_bf16 {acc}, {frag(t,n,q)}, {vr(104+4*t,4)}, {'0' if t == 0 else acc}")
        self.lds_add1(L_C3)
        self.stamp(8)
        self.lds_wait(L_CV, 4)
        a(f"v_lshlrev_b32 v23, 4, v0\nbuffer_store_dwordx4 v[32:35], v23, {SWS}, s98 offen sc1")
        a(f"""
v_lshlrev_b32 v22, 12, v18
v_lshl_add_u32 v22, v19, 5, v22
s_lshl_b32 s90, s89, 17
s_lshl_b32 s73, {sP}, 7
s_add_u32 s90, s90, s73
s_add_u32 s90, s90, {WS_T}
""")
        for n in range(2):
            b = 176 + 32 * n
            for r in range(16):
                a(f"v_fma_f32 v{b+r}, v17, v{b+16+r}, v{b+r}")
            for k in range(8):
                a(f"v_cvt_pk_bf16_f32 v{b+k}, v{b+2*k}, v{b+2*k+1}")
            a(f"buffer_store_dwordx4 {vr(b,4)}, v22, {SWS}, s90 offen offset:{64*n} sc1")
            a(f"buffer_store_dwordx4 {vr(b+4,4)}, v22, {SWS}, s90 offen offset:{64*n+16} sc1")
        a(f"s_lshl_b32 s91, s89, 7\ns_lshl_b32 s73, {sP}, 2\ns_add_u32 s91, s91, s73\ns_add_u32 s91, s91, {WS_FT}\ns_waitcnt vmcnt(0)")
        self.set_flag("s91")
        self.lds_add1(L_C5)
        dd = a.label("DD"); n7 = a.label("N7")
        a(f"s_branch {dd}\n{nod}:")
        self.lds_add1(L_C3)
        self.lds_wait(L_CV, 4)
        a(f"s_cmp_lg_u32 {sW}, 7\ns_cbranch_scc1 {n7}")
        self.wt_loads()
        a(f"{n7}:\nv_lshlrev_b32 v23, 4, v0\nbuffer_store_dwordx4 v[32:35], v23, {SWS}, s98 offen sc1\ns_waitcnt vmcnt(0)")
        self.lds_add1(L_C5)
        a(f"{dd}:")
        self.stamp(4)

    def g_gen(self):
        a = self.a
        N = 1.0 / (M.S * M.D)
        skip = a.label("GS"); nx = a.label("GNX"); nk = a.label("GNK")
        a(f"""
s_mov_b32 s98, {OOB}
s_lshl_b32 s90, s2, 2
s_add_u32 s90, s90, s99
s_cmp_ge_u32 s90, 864
s_cbranch_scc1 {skip}
s_mul_i32 s91, s90, 1821
s_lshr_b32 s91, s91, 16
s_mul_i32 s73, s91, 36
s_sub_u32 s92, s90, s73
s_mul_i32 s93, s91, 21846
s_lshr_b32 s93, s93, 16
s_mul_i32 s73, s93, 3
s_sub_u32 s91, s91, s73
s_mul_i32 s93, s93, 72
s_lshl_b32 s73, s91, 5
s_add_u32 s93, s93, s73
v_mov_b32 v44, v20
s_cmp_lg_u32 s91, 2
s_cbranch_scc1 {nx}
v_mov_b32 v44, v18
{nx}:
v_add_u32 v44, s93, v44
s_lshl_b32 s73, s92, 3
v_lshl_add_u32 v45, v19, 2, s73
v_mul_u32_u24 v45, v45, v44
s_mov_b32 s73, {f32bits(1/576):#x}
s_mov_b32 s93, {f32bits(2*N):#x}
""")
        for f in range(864):
            assert (f * 1821) >> 16 == f // 36
        for f in range(12):
            assert (f * 21846) >> 16 == f // 3
        for cq in range(4):
            a(f"v_cvt_f32_u32 v46, v45\nv_mul_f32 v46, s73, v46\nv_fract_f32 v46, v46")
            a(f"v_cos_f32 v{48+2*cq}, v46\nv_sin_f32 v{49+2*cq}, v46")
            if cq < 3:
                a("v_add_u32 v45, v45, v44")
        for cq in range(4):
            a(f"v_mul_f32 v{48+2*cq}, s93, v{48+2*cq}\nv_mul_f32 v{49+2*cq}, s93, -v{49+2*cq}")
        a(f"""
s_cmp_lg_u32 s92, 0
s_cbranch_scc1 {nk}
s_mov_b32 exec_hi, 0
v_mov_b32 v48, {f32bits(N):#x}
v_lshlrev_b32 v49, 31, v44
v_or_b32 v49, v48, v49
s_mov_b64 exec, -1
{nk}:
""")
        for k in range(4):
            a(f"v_cvt_pk_bf16_f32 v{32+k}, v{48+2*k}, v{49+2*k}")
        a(f"""
s_lshl_b32 s90, s90, 10
s_add_u32 s98, s90, {WS_G}
{skip}:
""")

    def wt_loads(self):
        a = self.a
        self.srd(SWR, 6, 2048 * 578)
        self.srd(SWI, 8, 2048 * 578)
        a(f"""
v_and_b32 v20, 7, v0
v_lshrrev_b32 v21, 3, v0
v_mul_u32_u24 v22, 578, v20
v_mad_u32_u24 v22, v21, 18, v22
s_lshr_b32 s93, s2, 6
s_bfe_u32 s92, s2, 0x20004
s_and_b32 s88, s2, 15
s_lshl_b32 s90, s88, 7
s_lshl_b32 s73, s92, 3
s_add_u32 s90, s90, s73
s_mul_i32 s90, s90, 578
s_mul_i32 s73, s93, 144
s_add_u32 s90, s90, s73
""")
        for jr in range(4):
            for ri, srd in enumerate((SWR, SWI)):
                b = 44 + 24 * ri + 6 * jr
                a(f"buffer_load_dwordx4 {vr(b,4)}, v22, {srd}, s90 offen\nbuffer_load_dword v{b+4}, v22, {srd}, s90 offen offset:16")
            if jr < 3:
                a(f"s_add_u32 s90, s90, {32*578}")

    def wt_job(self):
        a = self.a
        a(f"""
s_lshr_b32 s93, s2, 6
s_bfe_u32 s92, s2, 0x20004
s_and_b32 s88, s2, 15
s_mul_i32 s90, s93, {72*16384}
s_lshl_b32 s73, s88, 9
s_add_u32 s90, s90, s73
s_lshl_b32 s73, s92, 7
s_add_u32 s90, s90, s73
s_add_u32 s90, s90, {WS_WT}
s_mov_b32 s73, {9*16384}
v_mul_lo_u32 v23, v21, s73
v_lshl_add_u32 v23, v20, 4, v23
s_waitcnt vmcnt(0)
""")
        last = a.label("WL")
        cnt = 0
        for x in range(10):
            if x == 9:
                a(f"s_cmp_lg_u32 s93, 3\ns_cbranch_scc1 {last}\ns_mov_b32 exec_lo, 0\ns_mov_b32 exec_hi, 0xff000000")
            for ri in range(2):
                t = 92 + 4 * (cnt % 3); cnt += 1
                for jr in range(4):
                    src = 44 + 24 * ri + 6 * jr + x // 2
                    a(f"v_and_b32 v{t+jr}, 0xffff0000, v{src}" if x % 2 else f"v_lshlrev_b32 v{t+jr}, 16, v{src}")
                a(f"buffer_store_dwordx4 {vr(t,4)}, v23, {SWS}, s90 offen sc1\ns_add_u32 s90, s90, 8192")
        a(f"s_mov_b64 exec, -1\n{last}:")
        self.lds_wait(L_C5, 4)
        a(f"s_lshl_b32 s91, s2, 2\ns_add_u32 s91, s91, {WS_FW}\ns_waitcnt vmcnt(0)")
        self.set_flag("s91")
        self.stamp(5)


    AK, AKX, AV, AS, AO, AQ, AQX = 104, 136, 144, 208, 240, 28, 32

    def attention(self):
        a = self.a
        K0, KX0, V0, S0, O0, Q0, QX0 = self.AK, self.AKX, self.AV, self.AS, self.AO, self.AQ, self.AQX
        a(f"""
v_and_b32 v17, 31, v0
v_lshrrev_b32 v18, 5, v0
v_lshlrev_b32 v5, 3, v0
s_lshl_b32 s90, {sW}, 9
s_add_u32 s90, s90, {WS_FKV}
v_lshlrev_b32 v6, 5, v17
v_lshl_add_u32 v6, v18, 4, v6
v_mov_b32 v9, {OOB}
v_lshlrev_b32 v7, 2, v17
v_cmp_lt_u32 vcc, 31, v0
v_subrev_u32 v8, 64, v6
v_cndmask_b32 v7, v7, v9, vcc
v_cmp_eq_u32 vcc, 20, v17
v_mul_u32_u24 v36, 48, v17
v_cndmask_b32 v8, v9, v8, vcc
v_cmp_gt_u32 vcc, 18, v17
v_add_u32 v36, {L_QS}, v36
v_cndmask_b32 v8, v8, v6, vcc
v_lshl_add_u32 v37, v18, 2, v36
v_add_u32 v37, 32, v37
v_lshl_add_u32 v36, v18, 4, v36
v_lshlrev_b32 v38, 3, v0
v_add_u32 v38, {L_OACC}, v38
v_mov_b32 v39, 1
v_mov_b32 v{QX0+1}, 0
v_mov_b32 v{QX0+2}, 0
s_lshl_b32 s91, {sW}, 13
s_add_u32 s91, s91, {WS_K16}
s_lshl_b32 s92, {sW}, 10
s_add_u32 s92, s92, {WS_KX}
s_mul_i32 s93, {sW}, {16*VPITCH}
s_add_u32 s93, s93, {WS_VF}
""")
        self.poll(f"buffer_load_dwordx2 v[10:11], v5, {SWS}, s90 offen sc1", [10, 11])
        self.stamp(10)
        for t in range(8):
            a(f"buffer_load_dwordx4 {vr(K0+4*t,4)}, v6, {SWS}, s91 offen offset:{1024*(t%4)} sc1")
            a(f"buffer_load_dword v{KX0+t}, v7, {SWS}, s92 offen offset:{128*t} sc1")
            a(f"buffer_load_dwordx4 {vr(V0+8*t,4)}, v8, {SWS}, s93 offen offset:{2*VPITCH*(t%2)} sc1")
            a(f"buffer_load_dwordx4 {vr(V0+8*t+4,4)}, v8, {SWS}, s93 offen offset:{2*VPITCH*(t%2)+VPITCH} sc1")
            if t == 3:
                a("s_add_u32 s91, s91, 4096")
            if t % 2 == 1 and t < 7:
                a(f"s_add_u32 s93, s93, {4*VPITCH}")
        self.lds_add1(L_CV)
        def qmain(): return f"ds_read_b128 {vr(Q0,4)}, v36"
        def qx(): return f"ds_read_b32 v{QX0}, v37\nds_read_b32 v{QX0+3}, v37"
        a(qmain()); a(qx())
        a("v_add_u32 v36, 1536, v36\nv_add_u32 v37, 1536, v37")
        self.lds_wait(L_C2, 4, sleep=0)
        def qk16(t):
            s = S0 + 16 * (t % 2)
            return f"v_mfma_f32_32x32x16_bf16 {vr(s,16)}, {vr(K0+4*(t%8),4)}, {vr(Q0,4)}, 0"
        def qkx(t):
            s = S0 + 16 * (t % 2)
            return f"v_mfma_f32_32x32x8_bf16 {vr(s,16)}, {vr(KX0+2*((t%8)//2),2)}, {vr(QX0+2*(t%2),2)}, {vr(s,16)}"
        def pv(t, u):
            s = S0 + 16 * (t % 2)
            c = "0" if (t == 0 and u == 0) else vr(O0, 16)
            return f"v_mfma_f32_32x32x16_bf16 {vr(O0,16)}, {vr(V0+8*(t%8)+4*u,4)}, {vr(s+4*u,4)}, {c}"
        adds = [f"v_cvt_f64_f32 {vr(40+2*r,2)}, v{O0+r}\nds_add_f64 v38, {vr(40+2*r,2)} offset:{512*r}" for r in range(10)]
        adds.append("s_mov_b64 exec, 1\nds_add_u32 v38, v39 offset:5120\ns_mov_b64 exec, -1")
        def one_pass(first):
            for t in range(8):
                s = S0 + 16 * (t % 2)
                e = lambda i: f"v_exp_f32 v{s+i}, v{s+i}"
                c = lambda k: f"v_cvt_pk_bf16_f32 v{s+k}, v{s+2*k}, v{s+2*k+1}"
                head = [e(0), e(1), pv(t - 1, 1), e(2), e(3), c(0), e(4), c(1), qk16(t + 1), e(5), e(6), e(7), c(2), e(8), c(3), qkx(t + 1)]
                tail = [e(9), e(10), e(11), c(4), e(12), c(5), pv(t, 0), e(13), e(14), e(15), c(6), c(7)]
                if first and t == 0:
                    head.pop(2)
                if first and t < 7:
                    i = head.index(qk16(t + 1))
                    nt = min(t + 1 + (1 - (t + 1) % 2), 7)
                    head.insert(i, f"s_waitcnt vmcnt({32 - 4*nt - 2})")
                if first and t == 7:
                    tail.insert(tail.index(pv(t, 0)), "s_waitcnt vmcnt(0)")
                if t == 6:
                    head.insert(head.index(qk16(7)) + 1, qmain())
                    head.append(qx())
                    tail.append("v_add_u32 v36, 1536, v36\nv_add_u32 v37, 1536, v37")
                if t == 7:
                    head.insert(head.index(qk16(8)), "s_waitcnt lgkmcnt(0)")
                if t == 0 and not first:
                    tail.remove(pv(0, 0))
                    nt_ = []
                    for x, y in zip(tail, adds):
                        nt_ += [x, y]
                    tail = nt_ + [f"v_add_u32 v38, {OPITCH}, v38", pv(0, 0)]
                for x in head + tail:
                    a(x)
        a("s_waitcnt vmcnt(26)")
        a(qk16(0)); a(qkx(0))
        one_pass(True)
        self.lds_add1(L_C4)
        self.stamp(11)
        lp = a.label("AL")
        a(f"s_mov_b32 s88, 7\n.p2align 3\n{lp}:")
        one_pass(False)
        a(f"s_sub_u32 s88, s88, 1\ns_cmp_lg_u32 s88, 0\ns_cbranch_scc1 {lp}")
        a(pv(7, 1))
        for x in adds:
            a(x)

    def make_tables(self):
        m = np.arange(32); h = np.arange(2); jj = np.arange(8)
        L_m = np.tile(m, 2); L_h = np.repeat(h, 32)
        slot = lambda u: 16 * u + 8 * (jj[None, :] >> 2) + 4 * L_h[:, None] + (jj[None, :] & 3)
        perm = 16 * ((L_m >> 2) & 1) + 4 * (L_m >> 3) + (L_m & 3)
        def pk(v):
            b = M.bf(v.astype(np.float32)).astype(np.uint32)
            return (b[:, 0::2] | (b[:, 1::2] << 16)).astype(np.uint32)
        parts = lambda z: (z.real, z.imag, -z.imag)
        out = []
        w64 = lambda r, c: np.exp(-2j * np.pi * ((r * c) % 64) / 64)
        w32 = lambda r, c: np.exp(-2j * np.pi * ((r * c) % 32) / 32)
        for k in range(3):
            for mt in range(2):
                for ks in range(4):
                    out.append(pk(parts(w64((32 * mt + L_m)[:, None], slot(ks)))[k]))
        for k in range(3):
            for t in range(2):
                out.append(pk(parts(w32(16 * t + 8 * L_h[:, None] + jj[None, :], L_m[:, None]))[k]))
        for k in range(3):
            for u in range(2):
                out.append(pk(parts(w32(perm[:, None], slot(u)))[k]))
        jr = np.arange(4)[None, :]
        for mt in range(2):
            for part in range(2):
                for i in range(4):
                    z = np.exp(-2j * np.pi * ((32 * mt + 8 * i + 4 * L_h[:, None] + jr) * L_m[:, None]) / 2048)
                    out.append((z.real if part == 0 else z.imag).astype(np.float32).view(np.uint32))
        for nt in range(2):
            for part in range(2):
                for i in range(4):
                    z = np.exp(2j * np.pi * ((8 * i + 4 * L_h[:, None] + jr) * (32 * nt + L_m)[:, None]) / 2048)
                    out.append((z.real if part == 0 else z.imag).astype(np.float32).view(np.uint32))
        return np.concatenate([o.reshape(-1) for o in out])

    def stage2(self):
        a = self.a
        T64, T32A, T32B, TW1, TW2 = 0, 24, 30, 36, 52
        A, B, C, D = 16, 112, 176, 240
        a(f"""
s_getpc_b64 s[64:65]
s_add_u32 s64, s64, spectral_tables@rel32@lo+4
s_addc_u32 s65, s65, spectral_tables@rel32@hi+12
s_mov_b32 s66, {68*1024}
s_mov_b32 s67, 0x20000
v_lshlrev_b32 v5, 4, v0
""")
        def tload(frag, dst):
            a(f"s_mov_b32 s73, {(frag // 4) * 4096}\nbuffer_load_dwordx4 {vr(dst,4)}, v5, {STB}, s73 offen offset:{(frag % 4) * 1024}")
        for f in range(6):
            tload(T32A + f, C + 32 + 4 * f)
        for f in range(24):
            tload(T64 + f, A + 4 * f)
        a(f"""
v_and_b32 v12, 31, v0
v_lshrrev_b32 v13, 5, v0
v_lshlrev_b32 v6, 6, v12
v_lshl_add_u32 v7, v13, 5, v6
v_lshl_add_u32 v6, v13, 4, v6
v_lshlrev_b32 v8, 2, v12
v_lshlrev_b32 v9, 2, v0
s_lshl_b32 s90, s89, 13
s_add_u32 s91, s90, 4096
s_cmp_eq_u32 s89, 288
s_cmov_b32 s90, 4096
s_cmov_b32 s91, {OOB}
s_cmp_eq_u32 s89, 0
s_cmov_b32 s91, {OOB}
s_lshr_b32 s92, s90, 17
s_lshl_b32 s92, s92, 7
s_add_u32 s92, s92, {WS_FT}
s_mul_i32 s93, s89, 911
s_lshr_b32 s93, s93, 16
s_min_u32 s93, s93, 3
s_lshl_b32 s93, s93, 8
s_add_u32 s93, s93, {WS_FW}
""")
        for c in range(289):
            assert (c * 911) >> 16 == c // 72
        self.poll(f"buffer_load_dword v10, v8, {SWS}, s92 offen sc1\nbuffer_load_dword v11, v9, {SWS}, s93 offen sc1", [10, 11])
        self.stamp(7)
        a(f"s_add_u32 s92, s90, {WS_T}\ns_add_u32 s93, s91, {WS_T}")
        z = lambda ri, mt, t: C + 16 * ri + 8 * mt + 4 * t
        for mt in range(2):
            for ri in range(2):
                for t in range(2):
                    a(f"buffer_load_dwordx4 {vr(z(ri,mt,t),4)}, v6, {SWS}, {'s93' if ri else 's92'} offen offset:{2048*mt+32*t} sc1")
        mf = lambda acc, x, y, first: a(f"v_mfma_f32_32x32x16_bf16 {vr(acc,16)}, {vr(x,4)}, {vr(y,4)}, {'0' if first else vr(acc,16)}")
        blk = lambda base, ri, k: base + 32 * ri + 16 * k
        t32 = lambda base, k, t: base + 8 * k + 4 * t
        for mt in range(2):
            a(f"s_waitcnt vmcnt({4 - 4*mt})")
            for t in range(2):
                mf(blk(B, 0, mt), z(0, mt, t), t32(C + 32, 0, t), t == 0)
                mf(blk(B, 1, mt), z(0, mt, t), t32(C + 32, 1, t), t == 0)
            for t in range(2):
                mf(blk(B, 0, mt), z(1, mt, t), t32(C + 32, 2, t), False)
                mf(blk(B, 1, mt), z(1, mt, t), t32(C + 32, 0, t), False)
        for f in range(16):
            tload(TW1 + f, C + 4 * f)
        def cmul(xr, xi, cr, ci):
            for k in range(8):
                t0, t1 = D + 4 * (k % 2), D + 4 * (k % 2) + 2
                r = cr(k // 2) + 2 * (k % 2); i = ci(k // 2) + 2 * (k % 2)
                a(f"v_pk_mul_f32 {vr(t0,2)}, {vr(xr+2*k,2)}, {vr(r,2)}")
                a(f"v_pk_mul_f32 {vr(t1,2)}, {vr(xr+2*k,2)}, {vr(i,2)}")
                a(f"v_pk_fma_f32 {vr(t0,2)}, {vr(xi+2*k,2)}, {vr(i,2)}, {vr(t0,2)} neg_lo:[1,0,0] neg_hi:[1,0,0]")
                a(f"v_pk_fma_f32 {vr(t1,2)}, {vr(xi+2*k,2)}, {vr(r,2)}, {vr(t1,2)}")
                a(f"v_cvt_pk_bf16_f32 v{xr+k}, v{t0}, v{t0+1}")
                a(f"v_cvt_pk_bf16_f32 v{xi+k}, v{t1}, v{t1+1}")
        for mt in range(2):
            a(f"s_waitcnt vmcnt({8 - 8*mt})")
            cmul(blk(B, 0, mt), blk(B, 1, mt), lambda i: C + 32 * mt + 4 * i, lambda i: C + 32 * mt + 16 + 4 * i)
        half = lambda base, hi, q: base + 16 * (q // 2) + 8 * hi + 4 * (q % 2)
        a(f"s_lshl_b32 s92, s89, 14\ns_add_u32 s92, s92, {WS_WT}")
        def wload(mt):
            for ri in range(2):
                a(f"s_add_u32 s73, s92, {8192*ri + 4096*mt}")
                for i in range(4):
                    a(f"buffer_load_dwordx4 {vr(half(B, 1-mt, 4*ri+i),4)}, v5, {SWS}, s73 offen offset:{1024*i} sc1")
        wload(0)
        t64 = lambda k, mt, ks: A + 32 * k + 16 * mt + 4 * ks
        pkd = lambda base, ri, ks: blk(base, ri, ks // 2) + 4 * (ks % 2)
        for mt in range(2):
            for ks in range(4):
                mf(blk(C, 0, mt), t64(0, mt, ks), pkd(B, 0, ks), ks == 0)
                mf(blk(C, 1, mt), t64(1, mt, ks), pkd(B, 0, ks), ks == 0)
            for ks in range(4):
                mf(blk(C, 0, mt), t64(2, mt, ks), pkd(B, 1, ks), False)
                mf(blk(C, 1, mt), t64(0, mt, ks), pkd(B, 1, ks), False)
        wload(1)
        for mt in range(2):
            a(f"s_waitcnt vmcnt({8 - 8*mt})")
            cmul(blk(C, 0, mt), blk(C, 1, mt), lambda i: half(B, 1 - mt, i), lambda i: half(B, 1 - mt, 4 + i))
        for f in range(8):
            tload(TW2 + f, half(C, 1, f))
        for nt in range(2):
            for ks in range(4):
                mf(blk(B, 0, nt), pkd(C, 0, ks), t64(0, nt, ks), ks == 0)
                mf(blk(B, 1, nt), pkd(C, 1, ks), t64(0, nt, ks), ks == 0)
            for ks in range(4):
                mf(blk(B, 0, nt), pkd(C, 1, ks), t64(1, nt, ks), False)
                mf(blk(B, 1, nt), pkd(C, 0, ks), t64(2, nt, ks), False)
        for f in range(8):
            tload(TW2 + 8 + f, half(C, 0, f))
        for f in range(6):
            tload(T32B + f, A + 4 * f)
        for nt in range(2):
            a(f"s_waitcnt vmcnt({14 - 8*nt})")
            cmul(blk(B, 0, nt), blk(B, 1, nt), lambda i: half(C, 1 - nt, i), lambda i: half(C, 1 - nt, 4 + i))
        a("s_waitcnt vmcnt(0)")
        for nt in range(2):
            for u in range(2):
                mf(blk(C, 0, nt), t32(A, 0, u), blk(B, 0, nt) + 4 * u, u == 0)
                mf(blk(C, 1, nt), t32(A, 0, u), blk(B, 1, nt) + 4 * u, u == 0)
            for u in range(2):
                mf(blk(C, 0, nt), t32(A, 1, u), blk(B, 1, nt) + 4 * u, False)
                mf(blk(C, 1, nt), t32(A, 2, u), blk(B, 0, nt) + 4 * u, False)
        a(f"s_add_u32 s92, s90, {WS_Y}\ns_add_u32 s93, s91, {WS_Y}")
        for nt in range(2):
            for ri in range(2):
                b = blk(C, ri, nt)
                for k in range(8):
                    a(f"v_cvt_pk_bf16_f32 v{b+k}, v{b+2*k}, v{b+2*k+1}")
                for u in range(2):
                    a(f"buffer_store_dwordx4 {vr(b+4*u,4)}, v7, {SWS}, {'s93' if ri else 's92'} offen offset:{2048*nt+16*u} sc1")
        a(f"s_lshl_b32 s91, s89, 2\ns_add_u32 s91, s91, {WS_FY}\ns_waitcnt vmcnt(0)")
        self.set_flag("s91")
        self.stamp(9)

    def l_mid(self):
        a = self.a
        nw = a.label("NW"); go = a.label("S2"); no = a.label("NS2")
        a(f"s_cmp_lt_u32 {sW}, 6\ns_cbranch_scc1 {no}\ns_cmp_lg_u32 {sW}, 7\ns_cbranch_scc1 {nw}")
        self.wt_job()
        a(f"{nw}:")
        self.srd(SWO, 18, 663552)
        self.lds_wait(L_C3, 4)
        self.panel_loads(SWO, L_WO0, L_WO1, L_WOX, False, [(18, None)])
        a("s_waitcnt vmcnt(30)")
        a(f"""
s_mov_b32 s89, s2
s_cmp_eq_u32 {sW}, 7
s_cbranch_scc1 {go}
s_add_u32 s89, s2, 192
s_cmp_lt_u32 s2, 64
s_cbranch_scc1 {no}
s_cmp_gt_u32 s2, 96
s_cbranch_scc1 {no}
{go}:
""")
        self.stage2()
        a(f"{no}:\ns_setprio 0")


    def tail(self, mm, n):
        a = self.a
        ACC, ACX = 16, 32
        GM, GX = 48, 84
        BF = 120
        OB = 128
        AF = 164
        NT = 192
        ext = mm == 0
        a(f"""
s_setprio 3
v_lshlrev_b32 v5, 4, v0
v_lshrrev_b32 v6, 2, v0
v_lshlrev_b32 v6, 12, v6
v_and_b32 v9, 3, v0
v_lshl_add_u32 v6, v9, 4, v6
v_lshrrev_b32 v13, 5, v0
v_and_b32 v12, 31, v0
v_bfe_u32 v10, v0, 2, 2
v_bfe_u32 v11, v0, 4, 1
v_lshl_add_u32 v7, v13, 3, v10
v_lshlrev_b32 v7, 6, v7
v_lshl_add_u32 v7, v11, 5, v7
v_lshl_add_u32 v7, v9, 3, v7
v_add_u32 v7, {L_YR + 1024 * YSL * (2*mm + n)}, v7
v_cmp_gt_u32 vcc, 8, v12
v_mov_b32 v8, {OOB}
v_lshlrev_b32 v14, 4, v0
v_cndmask_b32 v8, v8, v5, vcc
v_min_u32 v14, {288*4 - 12}, v14
v_lshlrev_b32 v15, 2, v0
v_add_u32 v15, 1024, v15
v_min_u32 v15, {288*4}, v15
s_mov_b32 s90, {WS_FY}
""")
        self.poll(f"buffer_load_dwordx4 v[{NT}:{NT+3}], v14, {SWS}, s90 offen sc1\nbuffer_load_dword v{NT+4}, v15, {SWS}, s90 offen sc1",
                  [NT, NT + 1, NT + 2, NT + 3, NT + 4])
        if mm == 0 and n == 0:
            self.epoch_update()
        self.stamp(1)
        a(f"""
s_lshl_b32 s90, {sP}, 7
s_add_u32 s90, s90, {WS_Y + 64 * n}
s_mul_i32 s91, {sJ}, {3*36*1024}
s_add_u32 s92, s91, {WS_G + 2*36*1024}
s_add_u32 s91, s91, {WS_G + mm*36*1024}
""")
        per = 3 if ext else 2
        def issue(slot):
            a(f"s_mov_b32 m0, {L_YR + 1024 * YSL * (2*mm + n) + 1024 * slot}")
            a(f"buffer_load_dwordx4 {vr(GM+4*slot,4)}, v5, {SWS}, s91 offen sc1")
            a(f"buffer_load_dwordx4 v6, {SWS}, s90 offen sc1 lds")
            if ext:
                a(f"buffer_load_dwordx4 {vr(GX+4*slot,4)}, v8, {SWS}, s92 offen sc1\ns_add_u32 s92, s92, 1024")
            a("s_add_u32 s90, s90, 65536\ns_add_u32 s91, s91, 1024")
        for i in range(16):
            a(f"v_mov_b32 v{ACC+i}, 0" + (f"\nv_mov_b32 v{ACX+i}, 0" if ext else ""))
        for k in range(YSL):
            issue(k)
        def step(k, wait, refill):
            b = BF + 4 * (k % 2)
            a(f"s_waitcnt vmcnt({wait})")
            a(f"ds_read_b64_tr_b16 {vr(b,2)}, v7 offset:{1024*k}\nds_read_b64_tr_b16 {vr(b+2,2)}, v7 offset:{1024*k+256}\ns_waitcnt lgkmcnt(0)")
            a(f"v_mfma_f32_32x32x16_bf16 {vr(ACC,16)}, {vr(GM+4*k,4)}, {vr(b,4)}, {vr(ACC,16)}")
            if ext:
                a(f"v_mfma_f32_32x32x16_bf16 {vr(ACX,16)}, {vr(GX+4*k,4)}, {vr(b,4)}, {vr(ACX,16)}")
            if refill:
                issue(k)
        lp = a.label("S3")
        a(f"s_mov_b32 s88, {36 // YSL - 1}\n{lp}:")
        for k in range(YSL):
            step(k, (YSL - 1) * per, True)
        a(f"s_sub_u32 s88, s88, 1\ns_cmp_lg_u32 s88, 0\ns_cbranch_scc1 {lp}")
        for k in range(YSL):
            step(k, (YSL - 1 - k) * per, False)
        self.stamp(2)
        a(f"""
v_lshlrev_b32 v14, 2, v12
v_add_u32 v15, {L_G + 128 * n}, v14
ds_read_b32 v{NT}, v15
v_and_b32 v15, 1, v9
v_lshlrev_b32 v15, 2, v15
v_lshl_add_u32 v15, v11, 1, v15
v_lshrrev_b32 v6, 1, v9
v_add_u32 v15, v15, v6
v_lshlrev_b32 v15, 3, v15
v_lshl_add_u32 v6, v13, 2, v10
v_lshrrev_b32 v7, 1, v10
v_mul_u32_u24 v7, 72, v7
v_and_b32 v8, 1, v10
v_add3_u32 v7, v7, v8, 16
v_mul_u32_u24 v8, 288, v13
v_add_u32 v7, v7, v8
v_and_b32 v9, 1, v9
v_lshlrev_b32 v9, 3, v9
v_lshl_add_u32 v10, v6, 4, v9
v_lshl_add_u32 v11, v7, 4, v9
v_add_u32 v10, {L_WOX}, v10
v_add_u32 v11, {L_WOX}, v11
v_lshl_add_u32 v6, v6, 6, v15
v_lshl_add_u32 v7, v7, 6, v15
v_add_u32 v6, {L_WO1 if mm else L_WO0}, v6
v_add_u32 v7, {L_WO1 if mm else L_WO0}, v7
v_lshlrev_b32 v8, 3, v0
v_add_u32 v8, {L_OACC}, v8
v_lshlrev_b32 v9, 1, v14
v_add_u32 v9, {L_OACC + 8*512 + 256}, v9
v_add_u32 v14, {L_G + 128 * (1 - n)}, v14
v_and_b32 v15, 7, v0
v_lshlrev_b32 v15, 2, v15
s_waitcnt lgkmcnt(0)
""")
        for i in range(16):
            a(f"v_mul_f32 v{ACC+i}, v{NT}, v{ACC+i}")
        if ext:
            for i in range(4):
                a(f"v_mul_f32 v{ACX+i}, v{NT}, v{ACX+i}")
        a(f"ds_read_b32 v4, v14\ns_mul_i32 s94, {sP}, {8*9216}\ns_add_u32 s94, s94, {WS_OF}\ns_lshl_b32 s95, {sP}, 8\ns_add_u32 s95, s95, {WS_FO}")
        a(f"s_waitcnt lgkmcnt(0)\nv_sub_f32 v4, 1.0, v4")

        def normalize(i):
            self.lds_wait(L_OACC + i * OPITCH + 5120, 8, sleep=1)
            for r in range(10):
                a(f"ds_read_b64 {vr(NT+20+2*r,2)}, v8 offset:{i*OPITCH + 512*r}")
            a(f"ds_read_b64 {vr(NT+40,2)}, v9 offset:{i*OPITCH}")
            a(f"""
s_lshl_b32 s90, {sJ}, 10
s_add_u32 s90, s90, s94
s_add_u32 s90, s90, {i*9216}
s_lshr_b32 s91, {sJ}, 2
s_lshl_b32 s91, s91, 9
s_and_b32 s73, {sJ}, 3
s_lshl_b32 s73, s73, 2
s_add_u32 s91, s91, s73
s_add_u32 s91, s91, s94
s_add_u32 s91, s91, {i*9216 + 8192}
s_lshl_b32 s92, {sJ}, 2
s_add_u32 s92, s92, s95
s_add_u32 s92, s92, {i*32}
s_waitcnt lgkmcnt(0)
""")
            for r in range(11):
                a(f"v_cvt_f32_f64 v{NT+r}, {vr(NT+20+2*r,2)}")
            self.safety(i, NT)
            a(f"v_rcp_f32 v{NT+10}, v{NT+10}\ns_nop 0\nv_mul_f32 v{NT+10}, v4, v{NT+10}")
            for r in range(10):
                a(f"v_mul_f32 v{NT+r}, v{NT+10}, v{NT+r}")
            for k in range(5):
                a(f"v_cvt_pk_bf16_f32 v{NT+12+k}, v{NT+2*k}, v{NT+2*k+1}")
            a(f"buffer_store_dwordx4 {vr(NT+12,4)}, v5, {SWS}, s90 offen sc1\ns_mov_b32 exec_hi, 0")
            a(f"buffer_store_dword v{NT+16}, v5, {SWS}, s91 offen sc1\ns_mov_b64 exec, -1\ns_waitcnt vmcnt(0)")
            self.set_flag("s92")

        def consume(i):
            hh = i >> 1
            a(f"s_add_u32 s90, s95, {i*32}")
            self.poll(f"buffer_load_dword v{NT}, v15, {SWS}, s90 offen sc1", [NT])
            a(f"s_add_u32 s90, s94, {i*9216}")
            for ks in range(9):
                if ks in (4, 8):
                    a("s_add_u32 s90, s90, 4096")
                a(f"buffer_load_dwordx4 {vr(OB+4*ks,4)}, v5, {SWS}, s90 offen offset:{1024*(ks%4)} sc1")
            if i < 2:
                self.lds_wait(L_C4, 8)
            def rd(ks):
                b = AF + 8 * (ks % 3)
                for u in range(2):
                    row = (72 * ks + 18 * hh + 8 * u) if ks < 8 else (144 * u + 18 * hh)
                    a(f"ds_read_b64_tr_b16 {vr(b+2*u,2)}, {'v6' if ks < 8 else 'v7'} offset:{row*64}")
                    if ext:
                        a(f"ds_read_b64_tr_b16 {vr(b+4+2*u,2)}, {'v10' if ks < 8 else 'v11'} offset:{row*16}")
            nr = 4 if ext else 2
            rd(0); rd(1)
            for ks in range(9):
                if ks + 2 < 9:
                    rd(ks + 2)
                a(f"s_waitcnt vmcnt({8-ks}) lgkmcnt({nr * (min(ks+3, 9) - ks - 1)})")
                b = AF + 8 * (ks % 3)
                a(f"v_mfma_f32_32x32x16_bf16 {vr(ACC,16)}, {vr(b,4)}, {vr(OB+4*ks,4)}, {vr(ACC,16)}")
                if ext:
                    a(f"v_mfma_f32_32x32x16_bf16 {vr(ACX,16)}, {vr(b+4,4)}, {vr(OB+4*ks,4)}, {vr(ACX,16)}")

        order = ["N0", "N1", "N2", "C0", "N3", "C1", "N4", "C2", "N5", "C3", "N6", "C4", "N7", "C5", "C6", "C7"]
        for it in order:
            i = int(it[1])
            if it[0] == "N" and (i & 1) != n and ((i >> 1) & 1) == mm:
                normalize(i)
                if i >= 6: self.stamp(3)
            if it[0] == "C" and (i & 1) == n:
                if i >= 6: self.stamp(4)
                consume(i)
        self.stamp(6)
        self.srd(SOUT, 22, 2359296)
        a(f"""
s_mov_b32 s73, 73728
v_mul_lo_u32 v14, v12, s73
v_lshl_add_u32 v15, v13, 3, v14
v_lshl_add_u32 v14, v13, 5, v14
s_mul_i32 s90, {sP}, 2304
s_mul_i32 s73, {sJ}, 144
s_add_u32 s90, s90, s73
s_add_u32 s90, s90, {1152 * n}
""")
        for k in range(8):
            a(f"v_cvt_pk_bf16_f32 v{ACC+k}, v{ACC+2*k}, v{ACC+2*k+1}")
        a(f"buffer_store_dwordx4 {vr(ACC,4)}, v14, {SOUT}, s90 offen offset:{64*mm}")
        a(f"buffer_store_dwordx4 {vr(ACC+4,4)}, v14, {SOUT}, s90 offen offset:{64*mm+16}")
        if ext:
            a(f"v_cvt_pk_bf16_f32 v{ACX}, v{ACX}, v{ACX+1}\nv_cvt_pk_bf16_f32 v{ACX+1}, v{ACX+2}, v{ACX+3}")
            a(f"buffer_store_dwordx2 {vr(ACX,2)}, v15, {SOUT}, s90 offen offset:128")
        self.stamp(7)

    def safety(self, i, NT):
        pass

    def dump_oacc(self):
        a = self.a
        a(f"s_barrier\ns_mul_i32 s73, s2, 32768\ns_add_u32 s73, s73, {WS_QDUMP + 0x400000}\ns_mul_i32 s90, {sW}, {OPITCH}\ns_add_u32 s73, s73, s90")
        a(f"s_add_u32 s90, s90, {L_OACC}\nv_lshl_add_u32 v22, v0, 2, s90\nv_lshlrev_b32 v23, 2, v0")
        for i in range(11):
            a(f"ds_read_b32 v24, v22 offset:{256*i}\ns_waitcnt lgkmcnt(0)\nbuffer_store_dword v24, v23, {SWS}, s73 offen offset:{256*i}\ns_waitcnt vmcnt(0)")

    def finish_stamps(self):
        a = self.a
        if self.stamps:
            a("v_mov_b32 v2, 0")
            for i in range(12):
                a(f"v_writelane_b32 v2, s{STAMP0+i}, {i}")
            a(f"s_lshl_b32 s73, s2, 3\ns_add_u32 s73, s73, {sW}\ns_lshl_b32 s73, s73, 7\ns_add_u32 s73, s73, {WS_DBG}")
            a(f"v_lshlrev_b32 v3, 2, v0\ns_mov_b32 exec_hi, 0\nbuffer_store_dword v2, v3, {SWS}, s73 offen\ns_mov_b64 exec, -1")

    def epoch_update(self):
        a = self.a
        s = a.label("EU")
        a(f"s_cmp_lg_u32 s2, 0\ns_cbranch_scc1 {s}")
        self.set_flag(str(WS_EPOCH))
        a(f"{s}:")

    def build(self):
        a = self.a
        if self.stamps:
            for i in range(12):
                a(f"s_mov_b32 s{STAMP0+i}, 0")
        self.prologue()
        a(f"s_cmp_ge_u32 {sW}, 4\ns_cbranch_scc1 L_lwave")
        self.e_front()
        a("s_branch L_attn")
        a("L_lwave:")
        self.l_front()
        self.l_mid()
        a("L_attn:")
        self.attention()
        self.stamp(8)
        a(f"s_cmp_ge_u32 {sW}, 4\ns_cbranch_scc1 L_fin")
        labs = [a.label("TL") for _ in range(4)]
        for w in range(1, 4):
            a(f"s_cmp_eq_u32 {sW}, {w}\ns_cbranch_scc1 {labs[w]}")
        for w in range(4):
            a(f"{labs[w]}:")
            self.tail(w >> 1, w & 1)
            if w < 3:
                a("s_branch L_fin")
        if self.stamps:
            a("s_branch L_fin\nL_dumpregs:")
            a(f"v_mbcnt_lo_u32_b32 v250, -1, 0\nv_mbcnt_hi_u32_b32 v250, -1, v250\nv_lshlrev_b32 v250, 2, v250")
            a(f"s_lshl_b32 s73, s2, 13\ns_add_u32 s73, s73, {WS_QDUMP + 0xC00000}")
            for i in range(16):
                a(f"buffer_store_dword v{i}, v250, {SWS}, s73 offen offset:{256*i}")
            a(f"s_add_u32 s73, s73, 4096\nv_mov_b32 v251, s92\nv_writelane_b32 v251, s93, 1\nv_writelane_b32 v251, s71, 2\nv_writelane_b32 v251, s89, 3\nv_writelane_b32 v251, exec_lo, 4\nv_writelane_b32 v251, exec_hi, 5")
            a(f"buffer_store_dword v251, v250, {SWS}, s73 offen\ns_waitcnt vmcnt(0)")
        a("L_fin:")
        self.finish_stamps()
        a("L_end:\ns_endpgm")
        body = a.finish()
        tw = self.make_tables()
        assert tw.size == 68 * 256
        tab = "\n".join(".long " + ",".join(f"{x:#x}" for x in tw[i:i+16]) for i in range(0, tw.size, 16))
        hdr = open("cdna_kernels/" + NAME + ".s.ref").read().split("; Override launch")[0]
        return f"""{hdr}; @launch grid=(256,1,1) block=(512,1,1) lds={LDS_BYTES}
.amdgcn_target "amdgcn-amd-amdhsa--gfx950"
.text
.globl {NAME}_kernel
.p2align 8
.type {NAME}_kernel,@function
{NAME}_kernel:
{body}
.section .rodata,"a"
.p2align 8
.type spectral_tables,@object
spectral_tables:
{tab}
.size spectral_tables, {68*1024}
.p2align 6
.amdhsa_kernel {NAME}_kernel
  .amdhsa_next_free_vgpr 256
  .amdhsa_next_free_sgpr 102
  .amdhsa_accum_offset 256
  .amdhsa_group_segment_fixed_size 0
  .amdhsa_kernarg_size 96
  .amdhsa_user_sgpr_count 2
  .amdhsa_user_sgpr_kernarg_segment_ptr 1
  .amdhsa_system_sgpr_workgroup_id_x 1
.end_amdhsa_kernel
"""


if __name__ == "__main__":
    opts = sys.argv[2:]
    g = Gen(stamps="stamps" in opts, dumpq="dumpq" in opts, cyc="cyc" in opts)
    src = g.build()
    open(sys.argv[1], "w").write(src)
    print("nops added:", g.a.added_nops, "lines:", len(src.splitlines()))
```

```python
import sys
import numpy as np
from asmlib import Asm
import model as M

NAME = "gated_mix__spectral_gfnet__grouped_kv_mqa__prompt"

WS_EPOCH = 0
WS_FKV = 0x50000
WS_FS = 0x58000
WS_FY = 0x60000
WS_GOS = 0x68000
WS_GOY = 0x69000
WS_GOP = 0x6A000
WS_FP = 0x70000
WS_K16 = 0x10000
WS_KX = 0x20000
WS_VF = 0x30000
WS_DBG = 0x80000
WS_G = 0x100000
WS_T = 0x200000
WS_Y = 0x500000
WS_OF = 0x800000
WS_WT = 0xB00000
WS_QDUMP = 0x1100000
WS_SIZE = 0x2000000
OOB = 0x40000000
VPITCH = 640

XP = 1040
L_X = 0
L_X2 = 64 * XP
L_WQ0 = 74752
L_WQ1 = 111616
P2SZ = 9728
L_P2Q = 148480
L_P2KV = L_P2Q - P2SZ
L_MISC = 162816
(C0A, C0B, C0C, C1, CX, CK, CE, CV, CY, S1, S2, S3, CN, CW, CF, CD, CG, S4, C0D, SA, XA, XB, YA, YB, CL) = (4 * i for i in range(25))
CT = 128
L_G = L_MISC + 256
L_QS = L_WQ0
L_WO0 = 0
L_WO1 = 36864
L_Y = 0
L_EX = L_QS + 12288
L_WOX = L_EX + 16 * 2560
L_XCH = L_WOX + 9216
LDS_BYTES = 163840
assert L_XCH + 8192 <= L_MISC and L_P2Q + P2SZ <= L_MISC and L_P2KV >= L_WQ1 + 416 * 64

SX, SWQ, SKV, SG, SWS, SWO, SOUT, SWR, SWI, STB = (f"s[{a}:{a+3}]" for a in range(28, 68, 4))
sW, sP, sJ, sTAG, sSPIN = "s68", "s69", "s70", "s71", "s72"
STAMPS = [76, 77, 78, 79, 80, 81, 100, 101, 3, 10, 11, 24]
SPIN_MAX = 400000

f32bits = lambda v: int(np.float32(v).view(np.uint32))
QSCALE_BITS = f32bits(M.QSCALE)
LOG2E_BITS = f32bits(M.LOG2E)


def vr(a, n=1):
    return f"v{a}" if n == 1 else f"v[{a}:{a+n-1}]"


class Gen:
    AQ, AQX, AO, AK, AKX, AV, AS = 24, 28, 32, 88, 120, 128, 192
    vQ, vQX, vEX, vEX2, vK, vKX, vV, vCT = 78, 79, 80, 81, 82, 83, 4, 5

    def __init__(self, stamps=0, cyc=False, opts=()):
        self.a = Asm()
        self.stamps = stamps
        self.clk = "s_memtime" if cyc else "s_memrealtime"
        self.opts = set(opts)

    def opt(self, name, default):
        for o in self.opts:
            if o.startswith(name + "="):
                return int(o.split("=")[1])
        return default

    def _st(self, i):
        self.a(f"{self.clk} s[74:75]\ns_waitcnt lgkmcnt(0)\ns_mov_b32 s{STAMPS[i]}, s74")

    def stamp(self, i, level=1):
        if self.stamps == level:
            self._st(i)

    def srd(self, srd, lo, size):
        b = int(srd[2:].split(":")[0])
        self.a(f"s_mov_b32 s{b}, s{lo}\ns_mov_b32 s{b+1}, s{lo+1}\ns_mov_b32 s{b+2}, {size}\ns_mov_b32 s{b+3}, 0x20000")

    def add1(self, off, base="v2"):
        self.a(f"s_mov_b64 exec, 1\nds_add_u32 {base}, v3 offset:{off}\ns_mov_b64 exec, -1")

    def wait(self, off, target, sleep=1, base="v2", idle=False):
        a = self.a
        l = a.label("LW"); d = a.label("LWD")
        if idle and "noidle" not in self.opts:
            a("s_setprio 0")
        a(f"{l}:\nds_read_b32 v1, {base} offset:{off}\ns_waitcnt lgkmcnt(0)\nv_readfirstlane_b32 s73, v1")
        a(f"s_cmp_ge_u32 s73, {target}\ns_cbranch_scc1 {d}")
        if sleep:
            a(f"s_sleep {sleep}")
        a(f"s_sub_u32 {sSPIN}, {sSPIN}, 1\ns_cbranch_scc0 {l}\ns_branch L_bail\n{d}:")
        if idle and "noidle" not in self.opts:
            a("s_setprio 3")

    def cmp_regs(self, regs, val, op="ne"):
        a = self.a
        a(f"v_cmp_{op}_u32 vcc, {val}, v{regs[0]}")
        for r in regs[1:]:
            a(f"v_cmp_{op}_u32 s[74:75], {val}, v{r}\ns_or_b64 vcc, vcc, s[74:75]")
        a("s_cmp_eq_u64 vcc, 0")

    def poll(self, loads, regs, sleep=2):
        a = self.a
        l = a.label("PL"); d = a.label("PD")
        a(f"{l}:")
        a(loads)
        a("s_waitcnt vmcnt(0)")
        self.cmp_regs(regs, sTAG)
        a(f"s_cbranch_scc1 {d}\ns_sleep {sleep}\ns_sub_u32 {sSPIN}, {sSPIN}, 1\ns_cbranch_scc0 {l}\ns_branch L_bail\n{d}:")

    def set_flag(self, soff):
        self.a(f"v_mov_b32 v1, {sTAG}\ns_mov_b64 exec, 1\nbuffer_store_dword v1, off, {SWS}, {soff} sc1\ns_mov_b64 exec, -1")

    def flag4(self, dst, idx, base):
        self.a(f"s_lshr_b32 {dst}, {idx}, 2\ns_lshl_b32 {dst}, {dst}, 7\ns_and_b32 s73, {idx}, 3\ns_lshl_b32 s73, s73, 2\n"
               f"s_add_u32 {dst}, {dst}, s73\ns_add_u32 {dst}, {dst}, {base}")

    def go_wait(self, base, vt, sleep):
        self.a(f"s_and_b32 s92, s2, 7\ns_lshl_b32 s92, s92, 7\ns_add_u32 s92, s92, {base}")
        self.poll(f"s_mov_b64 exec, 1\nbuffer_load_dword v{vt}, off, {SWS}, s92 sc1\ns_waitcnt vmcnt(0)\nv_readfirstlane_b32 s73, v{vt}\ns_mov_b64 exec, -1\nv_mov_b32 v{vt}, s73", [vt], sleep=sleep)

    def tag(self):
        self.a(f"s_mul_i32 {sTAG}, {sTAG}, 0x9E3779B1\ns_add_u32 {sTAG}, {sTAG}, 0x7F4A7C15")

    def prologue(self):
        a = self.a
        a(f"""
s_cmp_ge_u32 s2, 256
s_cbranch_scc1 L_end
s_load_dwordx16 s[4:19], s[0:1], 0
s_load_dwordx8 s[20:27], s[0:1], 64
v_lshrrev_b32 v1, 6, v0
v_and_b32 v0, 63, v0
v_readfirstlane_b32 {sW}, v1
s_and_b32 {sP}, s2, 31
s_lshr_b32 {sJ}, s2, 5
""")
        if self.stamps:
            a(f"{self.clk} s[74:75]")
        a(f"""
v_lshl_add_u32 v4, v1, 6, v0
v_mov_b32 v2, {L_MISC}
v_mov_b32 v3, 1
v_lshlrev_b32 v7, 4, v0
s_mul_i32 s94, {sP}, 2304
s_mul_i32 s95, {sJ}, 144
s_lshl_b32 s91, {sJ}, 2
s_add_u32 s91, s91, {sW}
s_mov_b32 s30, 2359296
s_mov_b32 s31, 0x20000
s_mov_b32 {sSPIN}, {SPIN_MAX}
s_cmp_ge_u32 {sW}, 4
s_waitcnt lgkmcnt(0)
""")
        if self.stamps:
            a(f"s_mov_b32 s{STAMPS[0]}, s74")
            for r in STAMPS[1:]:
                a(f"s_mov_b32 s{r}, 0")
        a("s_cbranch_scc1 L_lwave")

    def kv_addr(self):
        a = self.a
        a(f"""
v_and_b32 v84, 31, v0
v_lshrrev_b32 v85, 5, v0
v_lshlrev_b32 v{self.vK}, 5, v84
v_lshl_add_u32 v{self.vK}, v85, 4, v{self.vK}
v_mov_b32 v86, {OOB}
v_lshlrev_b32 v{self.vKX}, 2, v84
v_cmp_lt_u32 vcc, 31, v0
v_subrev_u32 v87, 64, v{self.vK}
v_cndmask_b32 v{self.vKX}, v{self.vKX}, v86, vcc
v_cmp_eq_u32 vcc, 20, v84
s_and_b32 s73, {sW}, 3
v_cndmask_b32 v87, v86, v87, vcc
v_cmp_gt_u32 vcc, 18, v84
s_lshl_b32 s96, s73, 14
v_cndmask_b32 v{self.vV}, v87, v{self.vK}, vcc
s_add_u32 s96, s96, {WS_K16}
s_lshl_b32 s97, s73, 11
s_add_u32 s97, s97, {WS_KX}
s_mul_i32 s98, s73, {32*VPITCH}
s_add_u32 s98, s98, {WS_VF}
""")

    def ld_k(self, t, slot):
        adv = "\ns_add_u32 s96, s96, 4096" if t % 4 == 3 else ""
        return (f"buffer_load_dwordx4 {vr(self.AK+4*slot,4)}, v{self.vK}, {SWS}, s96 offen offset:{1024*(t%4)} sc1" + adv,
                f"buffer_load_dword v{self.AKX+slot}, v{self.vKX}, {SWS}, s97 offen offset:{128*t} sc1")

    def ld_v(self, t, slot):
        adv = f"\ns_add_u32 s98, s98, {4*VPITCH}" if t % 2 == 1 else ""
        o = 2 * VPITCH * (t % 2)
        return (f"buffer_load_dwordx4 {vr(self.AV+8*slot,4)}, v{self.vV}, {SWS}, s98 offen offset:{o} sc1",
                f"buffer_load_dwordx4 {vr(self.AV+8*slot+4,4)}, v{self.vV}, {SWS}, s98 offen offset:{o+VPITCH} sc1" + adv)

    NFIRST = 4

    def kv_loads(self):
        for t in range(self.NFIRST):
            for x in self.ld_k(t, t) + self.ld_v(t, t):
                self.a(x)

    def e_front(self):
        a = self.a
        a("s_setprio 3\ns_mov_b32 s28, s4\ns_mov_b32 s29, s5")
        for k in range(8):
            a(f"""
s_and_b32 s91, s91, 31
s_mul_i32 s90, s91, 73728
s_mul_i32 m0, s91, {XP}
s_add_u32 s90, s90, s94
s_add_u32 s91, s91, 4
buffer_load_dwordx4 v7, {SX}, s90 offen lds
s_add_u32 m0, m0, {32*XP - 1152}
s_nop 0
buffer_load_dwordx4 v7, {SX}, s90 offen offset:1152 lds
""")
        a(f"""
s_load_dword {sTAG}, s[26:27], {WS_EPOCH}
v_lshrrev_b32 v20, 3, v0
s_mov_b32 s73, 73728
v_mul_lo_u32 v21, v20, s73
v_lshrrev_b32 v22, 4, v0
v_xor_b32 v22, v22, v0
v_and_b32 v22, 7, v22
v_lshl_add_u32 v21, v22, 4, v21
s_and_b32 s90, {sW}, 1
s_mul_i32 s90, s90, {16*73728}
s_lshr_b32 s73, {sW}, 1
s_mul_i32 s73, s73, 1152
s_add_u32 s90, s90, s73
s_add_u32 s90, s90, s94
s_add_u32 s90, s90, 1024
s_lshl_b32 s91, {sW}, 11
s_add_u32 m0, s91, {L_X2}
v_xor_b32 v22, 64, v21
buffer_load_dwordx4 v21, {SX}, s90 offen lds
s_add_u32 m0, s91, {L_X2 + 1024}
s_add_u32 s90, s90, {8*73728}
buffer_load_dwordx4 v22, {SX}, s90 offen lds
s_cmp_lt_u32 {sJ}, 4
s_cselect_b32 s36, s14, s16
s_cselect_b32 s37, s15, s17
s_mov_b32 s38, 20736
s_mov_b32 s39, 0x20000
v_mul_u32_u24 v5, 36, v4
v_lshlrev_b32 v6, 1, v4
s_and_b32 s73, {sJ}, 3
s_lshl_b32 s92, s73, 3
""")
        self.srd(SG, 20, 1152)
        s = a.label("KV3")
        a(f"""
buffer_load_dwordx3 v[24:26], v5, {SKV}, s92 offen
buffer_load_ushort v27, v6, {SG}, 0 offen
v_add_u32 v5, {256*36}, v5
buffer_load_dwordx3 v[28:30], v5, {SKV}, s92 offen
buffer_load_ushort v31, v6, {SG}, 0 offen offset:512
s_cmp_gt_u32 {sW}, 0
s_cbranch_scc1 {s}
v_add_u32 v5, {256*36}, v5
buffer_load_dwordx3 v[40:42], v5, {SKV}, s92 offen
buffer_load_ushort v43, v6, {SG}, 0 offen offset:1024
{s}:
s_barrier
""")
        self.stamp(6, 3)
        self.srd(SWS, 26, WS_SIZE)
        a(f"""
v_lshrrev_b32 v7, 7, v4
v_lshlrev_b32 v7, 7, v7
v_lshl_add_u32 v7, v4, 4, v7
v_add_u32 v7, {L_P2KV}, v7
v_and_b32 v14, 15, v0
v_lshrrev_b32 v15, 4, v0
v_and_b32 v17, 31, v0
v_lshrrev_b32 v18, 5, v0
v_bfe_u32 v22, v0, 2, 2
v_lshlrev_b32 v22, 4, v22
v_and_b32 v23, 1, v0
v_lshl_add_u32 v22, v23, 3, v22
v_mul_u32_u24 v16, 2176, v15
v_add_u32 v16, v16, v22
v_lshl_add_u32 v12, v15, 7, v22
v_add_u32 v12, {512*16 + 512}, v12
v_add_u32 v19, {L_P2KV}, v16
v_add_u32 v10, {L_P2KV}, v12
v_add_u32 v16, {L_P2Q}, v16
v_add_u32 v12, {L_P2Q}, v12
s_lshl_b32 s73, {sW}, 4
v_add_u32 v21, s73, v14
v_mul_u32_u24 v20, {XP}, v21
v_lshl_add_u32 v20, v15, 8, v20
v_lshrrev_b32 v22, 1, v21
v_xor_b32 v22, v22, v15
v_and_b32 v22, 7, v22
v_lshlrev_b32 v22, 4, v22
v_lshl_add_u32 v11, v21, 7, v22
v_add_u32 v11, {L_X2}, v11
v_xor_b32 v9, 64, v11
s_lshl_b32 s90, {sP}, 1
s_lshr_b32 s73, {sW}, 1
s_add_u32 s90, s90, s73
s_and_b32 s91, {sW}, 1
s_mov_b32 s92, {(LOG2E_BITS | 0x80000000):#x}
s_lshl_b32 s99, {sW}, 6
s_add_u32 s99, s99, {L_G}
""")
        RG, XF, AK_ = 32, 160, 252
        def wrd(b1, b2, T, dst):
            base, off = (b1, T * 128) if T < 16 else (b2, (T - 16) * 512)
            a(f"ds_read_b64_tr_b16 {vr(dst,2)}, {base} offset:{off}\nds_read_b64_tr_b16 {vr(dst+2,2)}, {base} offset:{off+64}")
        def land():
            s = a.label("KW")
            a(f"s_waitcnt vmcnt(0)\nds_write_b128 v7, v[24:27]\nds_write_b128 v7, v[28:31] offset:{4096+256}")
            a(f"s_cmp_gt_u32 {sW}, 0\ns_cbranch_scc1 {s}\nds_write_b128 v7, v[40:43] offset:{8192+512}\n{s}:")
            self.stamp(1, 3)
            self.add1(CX)
            self.wait(CX, 4, sleep=0)
            self.tag()
            self.stamp(2, 3)
        def kv_gemm(swap):
            acc = vr(AK_, 4)
            def rd(T):
                wrd("v19", "v10", T, 44 + 4 * (T % 5))
                if T < 16:
                    a(f"ds_read_b128 {vr(XF+4*T,4)}, v20 offset:{T*16}")
                else:
                    a(f"ds_read_b128 {vr(XF+4*T,4)}, {'v11' if T == 16 else 'v9'}")
            for T in range(4):
                rd(T)
            for T in range(18):
                if T + 4 < 18:
                    rd(T + 4)
                a(f"s_waitcnt lgkmcnt({3 * (min(T + 5, 18) - T - 1)})")
                W, X = vr(44 + 4 * (T % 5), 4), vr(XF + 4 * T, 4)
                A, B = (X, W) if swap else (W, X)
                a(f"v_mfma_f32_16x16x32_bf16 {acc}, {A}, {B}, {'0' if T == 0 else acc}")
            self.add1(CK)
        kpath = a.label("EK"); done = a.label("EKD")
        a(f"s_cmp_lt_u32 {sJ}, 4\ns_cbranch_scc1 {kpath}")
        a(f"""
s_lshl_b32 s90, s90, 1
s_add_u32 s90, s90, s91
s_mul_i32 s90, s90, {VPITCH}
s_add_u32 s90, s90, {WS_VF}
s_sub_u32 s73, {sJ}, 4
s_lshl_b32 s73, s73, 2
v_add_u32 v36, s73, v14
v_cmp_eq_u32 vcc, 7, v14
v_lshrrev_b32 v37, 1, v15
v_cndmask_b32 v36, v36, 18, vcc
v_lshlrev_b32 v36, 5, v36
v_lshl_add_u32 v36, v37, 3, v36
v_and_b32 v37, 1, v15
v_lshl_add_u32 v36, v37, 4, v36
v_mov_b32 v37, 0x3f803f80
v_lshl_add_u32 v38, v15, 4, s99
s_mov_b32 s88, 0x000f000f
s_cmp_eq_u32 {sJ}, 7
s_cmov_b32 s88, 0x00bf00bf
""")
        land()
        kv_gemm(True)
        a(f"""
v_cvt_pk_bf16_f32 v22, v{AK_}, v{AK_+1}
v_cvt_pk_bf16_f32 v23, v{AK_+2}, v{AK_+3}
v_cndmask_b32 v22, v22, v37, vcc
v_cndmask_b32 v23, v23, v37, vcc
s_mov_b32 exec_lo, s88
s_mov_b32 exec_hi, s88
buffer_store_dwordx2 v[22:23], v36, {SWS}, s90 offen sc1
s_mov_b64 exec, -1
""")
        for r in range(4):
            a(f"v_mul_f32 v{AK_+r}, s92, v{AK_+r}\nv_exp_f32 v{AK_+r}, v{AK_+r}")
        for r in range(4):
            a(f"v_add_f32 v{AK_+r}, 1.0, v{AK_+r}\nv_rcp_f32 v{AK_+r}, v{AK_+r}")
        a(f"""
s_mov_b32 exec_lo, 0x00400040
s_mov_b32 exec_hi, 0x00400040
ds_write_b128 v38, {vr(AK_,4)}
s_branch {done}
{kpath}:
s_lshl_b32 s91, s91, 4
v_add_u32 v37, s91, v14
v_lshlrev_b32 v36, 5, v37
v_lshlrev_b32 v37, 2, v37
v_lshl_add_u32 v38, v14, 2, s99
s_lshl_b32 s88, s90, 10
s_lshl_b32 s73, {sJ}, 3
s_add_u32 s88, s88, s73
s_add_u32 s88, s88, {WS_K16}
s_lshl_b32 s90, s90, 7
s_add_u32 s90, s90, {WS_KX}
s_cmp_lg_u32 {sJ}, 3
s_cmov_b32 s90, {OOB}
s_mov_b32 s91, {QSCALE_BITS:#x}
""")
        land()
        kv_gemm(False)
        a(f"""
v_mul_f32 v39, s92, v{AK_+2}
v_mul_f32 v{AK_}, s91, v{AK_}
v_mul_f32 v{AK_+1}, s91, v{AK_+1}
v_mul_f32 v{AK_+2}, s91, v{AK_+2}
v_mul_f32 v{AK_+3}, s91, v{AK_+3}
v_cvt_pk_bf16_f32 v22, v{AK_}, v{AK_+1}
v_cvt_pk_bf16_f32 v23, v{AK_+2}, v{AK_+3}
s_mov_b64 exec, 0xffff
buffer_store_dwordx2 v[22:23], v36, {SWS}, s88 offen sc1
s_mov_b32 exec_lo, 0xffff0000
buffer_store_dword v22, v37, {SWS}, s90 offen sc1
v_exp_f32 v39, v39
s_nop 0
v_add_f32 v39, 1.0, v39
v_rcp_f32 v39, v39
s_nop 0
ds_write_b32 v38, v39
{done}:
s_mov_b64 exec, -1
""")
        self.stamp(7, 3)
        a(f"""
s_lshl_b32 s73, {sP}, 3
s_add_u32 s73, s73, {sJ}
s_lshl_b32 s73, s73, 4
s_add_u32 s91, s73, {WS_FKV}
v_bfe_u32 v22, v0, 2, 2
v_lshl_add_u32 v19, v18, 3, v22
v_lshlrev_b32 v19, 6, v19
v_bfe_u32 v22, v0, 4, 1
v_lshl_add_u32 v19, v22, 5, v19
v_and_b32 v22, 3, v0
v_lshl_add_u32 v19, v22, 3, v19
s_and_b32 s73, {sW}, 1
s_mul_i32 s73, s73, {L_WQ1 - L_WQ0}
s_add_u32 s73, s73, {L_WQ0}
v_add_u32 v19, s73, v19
s_lshr_b32 s73, {sW}, 1
s_lshl_b32 s73, s73, 5
v_add_u32 v21, s73, v17
v_mul_u32_u24 v13, {XP}, v21
v_lshl_add_u32 v13, v18, 4, v13
v_mul_u32_u24 v26, 48, v4
v_add_u32 v26, {L_QS + 36}, v26
v_lshrrev_b32 v22, 1, v21
v_xor_b32 v22, v22, v18
v_and_b32 v22, 7, v22
v_lshlrev_b32 v22, 4, v22
v_lshl_add_u32 v6, v21, 7, v22
v_add_u32 v6, {L_X2}, v6
v_xor_b32 v7, 32, v6
v_xor_b32 v8, 64, v6
v_xor_b32 v9, 0x60, v6
v_mul_u32_u24 v22, 48, v21
v_add_u32 v22, {L_QS}, v22
v_lshl_add_u32 v23, v18, 3, v22
v_mul_u32_u24 v24, 3044, v18
v_add_u32 v24, v24, v22
s_lshl_b32 s73, {sW}, 4
v_add_u32 v25, s73, v14
v_mul_u32_u24 v25, 48, v25
v_lshl_add_u32 v25, v15, 3, v25
v_add_u32 v25, {L_QS + 3*3072 + 20}, v25
v_mov_b32 v27, 0
v_lshlrev_b32 v28, 4, v0
s_lshl_b32 s93, {sW}, 10
s_add_u32 s93, s93, {WS_FKV}
""")
        self.kv_addr()
        nf = a.label("NF")
        a(f"s_waitcnt vmcnt(0)\ns_mov_b64 exec, 1\nds_add_rtn_u32 v1, v2, v3 offset:{CF}\ns_mov_b64 exec, -1\ns_waitcnt lgkmcnt(0)")
        a(f"v_readfirstlane_b32 s73, v1\ns_cmp_lg_u32 s73, 3\ns_cbranch_scc1 {nf}")
        self.set_flag("s91")
        a(f"{nf}:")
        self.stamp(3, 3)
        RX, AM, AXQ = 64, 232, 248
        def rdm(t):
            b = RG + 8 * (t % 4)
            a(f"ds_read_b64_tr_b16 {vr(b,2)}, v19 offset:{t*1024}\nds_read_b64_tr_b16 {vr(b+2,2)}, v19 offset:{t*1024+256}")
            a(f"ds_read_b128 {vr(b+4,4)}, v13 offset:{t*32}" if t < 32 else f"ds_read_b128 {vr(b+4,4)}, v{6+t-32}")
        def mm(t):
            b = RG + 8 * (t % 4)
            a(f"v_mfma_f32_32x32x16_bf16 {vr(AM,16)}, {vr(b,4)}, {vr(b+4,4)}, {'0' if t == 0 else vr(AM,16)}")
        def stage(t0, t1):
            for t in range(t0, min(t0 + 3, t1)):
                rdm(t)
            for t in range(t0, t1):
                if t + 3 < t1:
                    rdm(t + 3)
                a(f"s_waitcnt lgkmcnt({3 * (min(t + 4, t1) - t - 1)})")
                mm(t)
        self.wait(C0A, 2, sleep=0)
        self.stamp(4, 3)
        stage(0, 12)
        self.add1(CE)
        self.wait(C0B, 2, sleep=0)
        flags = f"buffer_load_dword v84, v28, {SWS}, s93 offen sc1"
        stage(12, 20)
        self.wait(C0D, 2, sleep=0)
        stage(20, 28)
        self.wait(C0C, 2, sleep=0)
        self.stamp(9, 3)
        a(flags)
        seq = []
        xs = list(range(18))
        for t in range(28, 36):
            seq.append(("m", t))
            for _ in range(3 if t < 30 else 2):
                seq.append(("x", xs.pop(0)))
        assert not xs
        cost = lambda it: 3 if it[0] == "m" else 2
        def issue(it):
            if it[0] == "m": rdm(it[1])
            else: wrd("v16", "v12", it[1], RX + 4 * (it[1] % 3))
        AH = 3
        for it in seq[:AH]:
            issue(it)
        a(f"ds_read_b32 v31, v2 offset:{CE}")
        for i, it in enumerate(seq):
            ahead = sum(cost(x) for x in seq[i + 1:i + AH]) + (1 if i < AH else 0)
            a(f"s_waitcnt lgkmcnt({ahead})")
            if it[0] == "m":
                mm(it[1])
            else:
                T = it[1]
                a(f"v_mfma_f32_16x16x32_bf16 {vr(AXQ,4)}, {vr(RX+4*(T%3),4)}, {vr(XF+4*T,4)}, {'0' if T == 0 else vr(AXQ,4)}")
            if i + AH < len(seq):
                issue(seq[i + AH])
        self.stamp(8, 3)
        miss = a.label("KM")
        a("s_waitcnt vmcnt(0)")
        self.cmp_regs([84], sTAG)
        a(f"s_cselect_b32 s89, 1, 0\ns_cbranch_scc0 {miss}")
        self.kv_loads()
        a(f"{miss}:")
        self.stamp(11, 3)
        ok = a.label("CEOK")
        a(f"v_readfirstlane_b32 s73, v31\ns_cmp_ge_u32 s73, 4\ns_cbranch_scc1 {ok}")
        self.wait(CE, 4, sleep=0)
        a(f"{ok}:")
        a(f"ds_write_b32 v26, v27\nv_cvt_pk_bf16_f32 v{AXQ}, v{AXQ}, v{AXQ+1}\nv_cvt_pk_bf16_f32 v{AXQ+1}, v{AXQ+2}, v{AXQ+3}")
        a(f"s_mov_b32 exec_hi, 0\nds_write2_b32 v25, v{AXQ}, v{AXQ+1} offset0:0 offset1:1\ns_mov_b64 exec, -1")
        m1 = a.label("QM1"); md = a.label("QMD")
        a(f"s_bitcmp1_b32 {sW}, 0\ns_cbranch_scc1 {m1}")
        off = lambda c: (c // 18) * 3072 + (c % 18) * 2
        for m in range(2):
            if m == 1:
                a(f"s_branch {md}\n{m1}:")
            for k in range(8):
                c0 = 32 * m + 8 * (k // 2) + 2 * (k % 2)
                d = off(c0 + 4) - off(c0)
                assert d in (8, 3044)
                a(f"v_cvt_pk_bf16_f32 v{AM+k}, v{AM+2*k}, v{AM+2*k+1}")
                a(f"ds_write_b32 {'v23' if d == 8 else 'v24'}, v{AM+k} offset:{off(c0)}")
        a(f"{md}:")
        self.add1(C1)
        have = a.label("KH")
        a(f"s_cmp_eq_u32 s89, 1\ns_cbranch_scc1 {have}")
        self.poll(flags, [84], sleep=12)
        self.kv_loads()
        a(f"{have}:")
        self.stamp(10, 3); self.stamp(10)
        a("s_setprio 2")

    def panel_setup(self, nw, va=14):
        self.a(f"""
v_lshrrev_b32 v{va}, 2, v0
v_mul_u32_u24 v{va}, 1152, v{va}
v_and_b32 v{va+1}, 3, v0
v_lshl_add_u32 v{va}, v{va+1}, 4, v{va}
v_mul_u32_u24 v{va+1}, 1152, v0
s_and_b32 s73, {sW}, {nw-1}
s_mul_i32 s84, s73, {16*1152}
s_add_u32 s84, s84, s95
s_lshl_b32 s85, s73, 10
""")

    def panel_loads(self, srd, l0, l1, lx, padded, end, nw, va=14):
        a = self.a
        lp = a.label("PNL")
        a(f"""
{lp}:
s_add_u32 m0, s85, {l0}
s_add_u32 s83, s84, 128
buffer_load_dwordx4 v{va}, {srd}, s84 offen lds
s_add_u32 m0, s85, {l1 - 64}
s_lshr_b32 s82, s85, 2
buffer_load_dwordx4 v{va}, {srd}, s84 offen offset:64 lds
""")
        if padded:
            a("s_lshr_b32 s73, s85, 13\ns_lshl_b32 s73, s73, 7\ns_add_u32 s82, s82, s73")
        a(f"""
s_add_u32 m0, s82, {lx}
s_mov_b64 exec, 0xffff
buffer_load_dwordx4 v{va+1}, {srd}, s83 offen lds
s_mov_b64 exec, -1
s_add_u32 s85, s85, {1024*nw}
s_add_u32 s84, s84, {16*nw*1152}
s_cmp_lt_u32 s85, {1024*end}
s_cbranch_scc1 {lp}
""")

    def l_front(self):
        a = self.a
        a(f"""
s_load_dword {sTAG}, s[26:27], {WS_EPOCH}
v_lshl_add_u32 v5, v0, 2, v2
v_mov_b32 v6, 0
ds_write_b32 v5, v6
s_sub_u32 s99, {sW}, 4
v_and_b32 v18, 31, v0
v_lshrrev_b32 v19, 5, v0
s_lshl_b32 s89, s99, 3
s_add_u32 s89, s89, {sJ}
s_cmp_ge_u32 s89, 18
s_cselect_b32 s89, 99, s89
v_bfe_u32 v20, v0, 2, 1
v_lshlrev_b32 v20, 4, v20
v_bfe_u32 v21, v0, 3, 2
v_lshl_add_u32 v20, v21, 2, v20
v_and_b32 v21, 3, v0
v_add_u32 v20, v20, v21
""")
        self.srd(SWS, 26, WS_SIZE)
        self.srd(SWQ, 12, 663552)
        FPRE = self.opt("fpre", 8)
        def fsetup():
            a(f"""
s_lshl_b32 s73, s89, 5
v_add_u32 v44, s73, v18
v_lshrrev_b32 v45, 1, v44
v_and_b32 v46, 1, v44
v_cmp_eq_u32 vcc, 1, v44
v_mov_b32 v47, 288
v_cndmask_b32 v45, v45, v47, vcc
v_cndmask_b32 v46, v46, 0, vcc
v_and_b32 v47, 1, v45
v_lshlrev_b32 v47, 31, v47
v_or_b32 v17, 1.0, v47
v_cvt_f32_u32 v45, v45
v_cvt_f32_u32 v46, v46
v_mul_f32 v45, {f32bits(1/576):#x}, v45
v_mul_f32 v46, 0x3e800000, v46
v_lshlrev_b32 v47, 3, v19
v_cvt_f32_u32 v47, v47
v_fma_f32 v46, v47, v45, v46
v_mul_f32 v55, 0x41800000, v45
""")
            for jj in range(8):
                a(f"s_mov_b32 s73, {f32bits(jj):#x}\nv_fma_f32 v{56+jj}, s73, v45, v46")
        def fgen(t):
            if t:
                a(f"s_mov_b32 s73, {f32bits(t):#x}")
            for jj in range(8):
                if t:
                    a(f"v_fma_f32 v{64+jj}, s73, v55, v{56+jj}\nv_cos_f32 v{64+jj}, v{64+jj}")
                else:
                    a(f"v_cos_f32 v{64+jj}, v{56+jj}")
            for k in range(4):
                a(f"v_cvt_pk_bf16_f32 v{104+4*t+k}, v{64+2*k}, v{65+2*k}")
        npre = a.label("NPRE"); n7 = a.label("NW7")
        if "wearly" in self.opts:
            a(f"v_mov_b32 v23, 0\ns_mov_b32 s98, {OOB}\ns_cmp_lg_u32 {sW}, 7\ns_cbranch_scc1 {n7}")
            self.wt_loads()
        a(f"{n7}:\ns_cmp_eq_u32 s89, 99\ns_cbranch_scc1 {npre}")
        fsetup()
        for t in range(FPRE):
            fgen(t)
        a(f"{npre}:\ns_waitcnt lgkmcnt(0)")
        self.tag()
        a("s_barrier")
        wqd = a.label("WQD")
        a(f"s_cmp_lt_u32 {sW}, 6\ns_cbranch_scc1 {wqd}")
        self.panel_setup(2)
        self.panel_loads(SWQ, L_WQ0, L_WQ1, L_P2Q, True, 20, 2)
        a("s_waitcnt vmcnt(12)")
        self.add1(C0A)
        self.panel_loads(SWQ, L_WQ0, L_WQ1, L_P2Q, True, 26, 2)
        self.wait(CK, 4, sleep=0)
        self.panel_loads(SWQ, L_WQ0, L_WQ1, L_P2Q, True, 36, 2)
        self.stamp(6, 3)
        a("s_waitcnt vmcnt(24)")
        self.add1(C0B)
        a("s_waitcnt vmcnt(12)")
        self.add1(C0D)
        a("s_waitcnt vmcnt(0)")
        self.add1(C0C)
        self.stamp(1, 3)
        a(f"{wqd}:")
        nod = a.label("NOD")
        a(f"s_cmp_eq_u32 s89, 99\ns_cbranch_scc1 {nod}")
        for t in range(FPRE, 18):
            fgen(t)
        self.stamp(9, 3)
        a(f"""
v_mul_u32_u24 v25, {XP}, v20
v_lshl_add_u32 v25, v19, 4, v25
v_lshrrev_b32 v22, 1, v20
v_xor_b32 v22, v22, v19
v_and_b32 v22, 7, v22
v_lshlrev_b32 v22, 4, v22
v_lshl_add_u32 v6, v20, 7, v22
v_add_u32 v6, {L_X2}, v6
v_xor_b32 v7, 32, v6
v_xor_b32 v8, 64, v6
v_xor_b32 v9, 0x60, v6
v_lshlrev_b32 v22, 12, v18
v_lshl_add_u32 v22, v19, 5, v22
s_lshl_b32 s90, s89, 17
s_lshl_b32 s73, {sP}, 7
s_add_u32 s90, s90, s73
s_add_u32 s90, s90, {WS_T}
""")
        RG = 44
        def frag(t, n, q):
            return vr(RG + 16 * (t % 3) + 8 * n + 4 * q, 4)
        def rd(t):
            for n in range(2):
                for q in range(2):
                    ks = t + 18 * q
                    if ks < 32:
                        a(f"ds_read_b128 {frag(t,n,q)}, v25 offset:{n*32*XP + ks*32}")
                    else:
                        a(f"ds_read_b128 {frag(t,n,q)}, v{6+ks-32} offset:{n*4096}")
        def dft(t0, t1):
            for t in range(t0, min(t0 + 2, t1)):
                rd(t)
            for t in range(t0, t1):
                if t + 2 < t1:
                    rd(t + 2)
                a(f"s_waitcnt lgkmcnt({4 * (min(t+3, t1) - t - 1)})")
                for n in range(2):
                    for q in range(2):
                        acc = vr(176 + 32 * n + 16 * q, 16)
                        a(f"v_mfma_f32_32x32x16_bf16 {acc}, {frag(t,n,q)}, {vr(104+4*t,4)}, {'0' if t == 0 else acc}")
        DPRE = self.opt("dpre", 10)
        if DPRE:
            self.wait(CK, 4)
            dft(0, DPRE)
        a("s_setprio 3")
        self.wait(C1, 4)
        self.stamp(3, 3)
        dft(DPRE, 18)
        self.stamp(8, 3)
        self.wait(CV, 4)
        for n in range(2):
            b = 176 + 32 * n
            for r in range(16):
                a(f"v_fma_f32 v{b+r}, v17, v{b+16+r}, v{b+r}")
            for k in range(8):
                a(f"v_cvt_pk_bf16_f32 v{b+k}, v{b+2*k}, v{b+2*k+1}")
            a(f"buffer_store_dwordx4 {vr(b,4)}, v22, {SWS}, s90 offen offset:{64*n} sc1")
            a(f"buffer_store_dwordx4 {vr(b+4,4)}, v22, {SWS}, s90 offen offset:{64*n+16} sc1")
        a("s_waitcnt vmcnt(0)")
        self.add1(CD)
        self.stamp(4, 3); self.stamp(4)
        a(f"{nod}:")

    def g_gen(self):
        a = self.a
        N = 1.0 / (M.S * M.D)
        skip = a.label("GS"); nx = a.label("GNX"); nk = a.label("GNK")
        assert all((f * 1821) >> 16 == f // 36 for f in range(864))
        assert all((f * 21846) >> 16 == f // 3 for f in range(24))
        a(f"""
s_mov_b32 s99, {OOB}
s_cmp_ge_u32 s2, 216
s_cbranch_scc1 {skip}
s_lshl_b32 s90, s2, 2
s_lshl_b32 s99, s2, 12
s_add_u32 s99, s99, {WS_G}
s_mul_i32 s91, s90, 1821
s_lshr_b32 s91, s91, 16
s_mul_i32 s73, s91, 36
s_sub_u32 s92, s90, s73
s_mul_i32 s93, s91, 21846
s_lshr_b32 s93, s93, 16
s_mul_i32 s73, s93, 3
s_sub_u32 s91, s91, s73
s_mul_i32 s93, s93, 72
s_lshl_b32 s73, s91, 5
s_add_u32 s93, s93, s73
v_mov_b32 v44, v20
s_cmp_lg_u32 s91, 2
s_cbranch_scc1 {nx}
v_mov_b32 v44, v18
{nx}:
v_add_u32 v44, s93, v44
s_lshl_b32 s73, s92, 3
v_lshl_add_u32 v45, v19, 2, s73
v_mul_u32_u24 v45, v45, v44
v_mul_u32_u24 v47, 5, v44
s_mov_b32 s73, {f32bits(1/576):#x}
s_mov_b32 s93, {f32bits(2*N):#x}
""")
        for fr in range(4):
            for cq in range(4):
                a(f"v_cvt_f32_u32 v46, v45\nv_mul_f32 v46, s73, v46\nv_fract_f32 v46, v46")
                a(f"v_cos_f32 v{48+2*cq}, v46\nv_sin_f32 v{49+2*cq}, v46")
                a("v_add_u32 v45, v45, v44" if cq < 3 else "v_add_u32 v45, v45, v47")
            for cq in range(4):
                a(f"v_mul_f32 v{48+2*cq}, s93, v{48+2*cq}\nv_mul_f32 v{49+2*cq}, s93, -v{49+2*cq}")
            if fr == 0:
                a(f"""
s_cmp_lg_u32 s92, 0
s_cbranch_scc1 {nk}
s_mov_b32 exec_hi, 0
v_mov_b32 v48, {f32bits(N):#x}
v_lshlrev_b32 v49, 31, v44
v_or_b32 v49, v48, v49
s_mov_b64 exec, -1
{nk}:
""")
            for k in range(4):
                a(f"v_cvt_pk_bf16_f32 v{240+4*fr+k}, v{48+2*k}, v{49+2*k}")
        a(f"{skip}:")

    WB = 112

    def poison(self):
        a = self.a
        a(f"v_lshlrev_b32 v24, 4, v0\nv_mov_b32 v28, -1\nv_mov_b32 v29, -1\nv_mov_b32 v30, -1\nv_mov_b32 v31, -1")
        a(f"s_mul_i32 s90, {sP}, {8*9216}\ns_add_u32 s90, s90, {WS_OF}\ns_mul_i32 s91, {sJ}, 9216\ns_add_u32 s91, s91, s90\ns_add_u32 s91, s91, 8192")
        a(f"buffer_store_dwordx4 v[28:31], v24, {SWS}, s91 offen sc1\ns_lshl_b32 s73, {sJ}, 10\ns_add_u32 s90, s90, s73")
        for i in range(8):
            a(f"buffer_store_dwordx4 v[28:31], v24, {SWS}, s90 offen sc1\ns_add_u32 s90, s90, 9216")

    def wt_loads(self):
        a = self.a
        self.srd(SWR, 6, 2048 * 578)
        self.srd(SWI, 8, 2048 * 578)
        a(f"""
v_and_b32 v26, 7, v0
v_lshrrev_b32 v27, 3, v0
v_mul_u32_u24 v22, 578, v26
v_mad_u32_u24 v22, v27, 18, v22
s_lshr_b32 s93, s2, 6
s_bfe_u32 s92, s2, 0x20004
s_and_b32 s88, s2, 15
s_lshl_b32 s90, s88, 7
s_lshl_b32 s73, s92, 3
s_add_u32 s90, s90, s73
s_mul_i32 s90, s90, 578
s_mul_i32 s73, s93, 144
s_add_u32 s90, s90, s73
""")
        for jr in range(4):
            for ri, srd in enumerate((SWR, SWI)):
                b = self.WB + 24 * ri + 6 * jr
                a(f"buffer_load_dwordx4 {vr(b,4)}, v22, {srd}, s90 offen\nbuffer_load_dword v{b+4}, v22, {srd}, s90 offen offset:16")
            if jr < 3:
                a(f"s_add_u32 s90, s90, {32*578}")
        a(f"""
s_mov_b32 s73, {9*8192}
v_mul_lo_u32 v23, v27, s73
v_lshl_add_u32 v23, v26, 4, v23
s_mul_i32 s98, s93, {72*8192}
s_lshl_b32 s73, s88, 8
s_add_u32 s98, s98, s73
s_and_b32 s73, s92, 1
s_lshl_b32 s73, s73, 7
s_add_u32 s98, s98, s73
s_lshr_b32 s73, s92, 1
s_lshl_b32 s73, s73, 12
s_add_u32 s98, s98, s73
s_add_u32 s98, s98, {WS_WT}
""")

    def wt_stores(self):
        a = self.a
        last = a.label("WL")
        a("s_mov_b32 s92, 0x05040100\ns_mov_b32 s93, 0x07060302")
        for x in range(10):
            if x == 9:
                a(f"s_cmp_lt_u32 s2, 192\ns_cbranch_scc1 {last}\ns_mov_b32 exec_lo, 0\ns_mov_b32 exec_hi, 0xff000000")
            t = self.WB + 48 + 4 * (x % 3)
            for ri in range(2):
                for pr in range(2):
                    lo = self.WB + 24 * ri + 12 * pr + x // 2
                    a(f"v_perm_b32 v{t+2*ri+pr}, v{lo+6}, v{lo}, {'s93' if x % 2 else 's92'}")
            a(f"buffer_store_dwordx4 {vr(t,4)}, v23, {SWS}, s98 offen sc1\ns_add_u32 s98, s98, 8192")
        a(f"s_mov_b64 exec, -1\n{last}:")

    def s_flag(self):
        a = self.a
        self.g_gen()
        a("s_setprio 3\nv_lshlrev_b32 v24, 4, v0")
        self.wait(CV, 4)
        self.stamp(3, 3)
        if "wearly" not in self.opts:
            self.wt_loads()
            a("s_waitcnt vmcnt(0)")
        self.wt_stores()
        for fr in range(4):
            a(f"buffer_store_dwordx4 {vr(240+4*fr,4)}, v24, {SWS}, s99 offen offset:{1024*fr} sc1")
        self.stamp(10, 3)
        self.flag4("s91", "s2", WS_FS)
        a("s_waitcnt vmcnt(0)")
        self.stamp(11, 3)
        a(f"s_cmp_lt_u32 {sJ}, 2\ns_cselect_b32 s90, 3, 2")
        self.wait(CD, "s90", sleep=2)
        self.set_flag("s91")
        self.add1(CW)
        self.stamp(6); self.stamp(2, 3)
        self.stage2_tables()

    def attention(self):
        a = self.a
        K0, KX0, V0, S0, O0, Q0, QX0 = self.AK, self.AKX, self.AV, self.AS, self.AO, self.AQ, self.AQX
        a(f"""
v_and_b32 v84, 31, v0
v_lshrrev_b32 v85, 5, v0
s_lshr_b32 s88, {sW}, 2
s_mul_i32 s73, s88, 6144
s_add_u32 s73, s73, {L_QS}
v_mul_u32_u24 v{self.vQ}, 48, v84
v_add_u32 v{self.vQ}, s73, v{self.vQ}
v_lshl_add_u32 v{self.vQX}, v85, 2, v{self.vQ}
v_add_u32 v{self.vQX}, 32, v{self.vQX}
v_lshl_add_u32 v{self.vQ}, v85, 4, v{self.vQ}
s_and_b32 s73, {sW}, 3
s_mul_i32 s73, s73, 2560
s_add_u32 s73, s73, {L_EX}
v_lshl_add_u32 v{self.vEX}, v0, 4, s73
s_add_u32 s73, s73, 2048
v_lshl_add_u32 v{self.vEX2}, v0, 3, s73
s_lshl_b32 s73, s88, 4
v_add_u32 v{self.vCT}, s73, v2
s_mul_i32 s73, s88, {CN - C1}
v_add_u32 v86, s73, v2
v_mov_b32 v{QX0+1}, 0
v_mov_b32 v{QX0+2}, 0
""")
        self.wait(C1, 4, sleep=0)
        self.stamp(5); self.stamp(5, 3)
        qmain = lambda q: f"ds_read_b128 {vr(Q0,4)}, v{self.vQ} offset:{1536*(q%4)}"
        qx = lambda q: f"ds_read_b32 v{QX0}, v{self.vQX} offset:{1536*(q%4)}\nds_read_b32 v{QX0+3}, v{self.vQX} offset:{1536*(q%4)}"
        a(qmain(0)); a(qx(0))
        issued = []
        for t in range(self.NFIRST):
            issued += [("K", t), ("X", t), ("V0", t), ("V1", t)]
        state = {"done": 0}
        def need(*keys):
            idx = max(issued.index(k) for k in keys) + 1
            if idx > state["done"]:
                state["done"] = idx
                return [f"s_waitcnt vmcnt({len(issued) - idx})"]
            return []
        def reload(kind, t):
            ins = self.ld_k(8 + t, t) if kind == "K" else self.ld_v(8 + t, t)
            issued.extend([("K", 8 + t), ("X", 8 + t)] if kind == "K" else [("V0", 8 + t), ("V1", 8 + t)])
            return list(ins)
        sreg = lambda g: S0 + 16 * (g % 2)
        oreg = lambda ps: O0 + 10 * (ps % 4)
        def qk16(g):
            return f"v_mfma_f32_32x32x16_bf16 {vr(sreg(g),16)}, {vr(K0+4*(g%8),4)}, {vr(Q0,4)}, 0"
        def qkx(g):
            return f"v_mfma_f32_32x32x8_bf16 {vr(sreg(g),16)}, {vr(KX0+2*((g%8)//2),2)}, {vr(QX0+2*(g%2),2)}, {vr(sreg(g),16)}"
        def pv(g, u):
            o = vr(oreg(g // 8), 16)
            c = "0" if (g // 8 < 4 and g % 8 == 0 and u == 0) else o
            return f"v_mfma_f32_32x32x16_bf16 {o}, {vr(V0+8*(g%8)+4*u,4)}, {vr(sreg(g)+4*u,4)}, {c}"
        kt = lambda g: (g % 8) + (8 if g >= 32 else 0)
        def kneed(g):
            t = kt(g)
            return need(("K", t), ("X", t), ("X", t ^ 1)) if ("X", t ^ 1) in issued else need(("K", t), ("X", t))
        def export(q):
            o = O0 + 10 * q
            return [f"ds_write_b128 v{self.vEX}, {vr(o,4)} offset:{10240*q}", f"ds_write_b128 v{self.vEX}, {vr(o+4,4)} offset:{10240*q+1024}",
                    f"ds_write_b64 v{self.vEX2}, {vr(o+8,2)} offset:{10240*q}",
                    f"s_mov_b64 exec, 1\nds_add_u32 v{self.vCT}, v3 offset:{CT+4*q}\ns_mov_b64 exec, -1"]
        for x in kneed(0) + ["s_waitcnt lgkmcnt(0)", qk16(0), qkx(0)]:
            a(x)
        for g in range(64):
            ps, t = divmod(g, 8)
            s = sreg(g)
            e = lambda i: f"v_exp_f32 v{s+i}, v{s+i}"
            c = lambda k: f"v_cvt_pk_bf16_f32 v{s+k}, v{s+2*k}, v{s+2*k+1}"
            seq = [e(0), e(1)]
            if g > 0:
                seq += need(("V1", kt(g - 1))) + [pv(g - 1, 1)]
                if g - 1 in range(24, 32):
                    seq += reload("V", (g - 1) % 8)
            seq += [e(2), e(3), c(0), e(4), c(1)]
            last = g == 63
            if not last:
                seq += kneed(g + 1) + (["s_waitcnt lgkmcnt(0)"] if t == 7 else []) + [qk16(g + 1)]
                if t == 6 and ps < 7:
                    seq.append(qmain(ps + 1))
            seq += [e(5), e(6), e(7), c(2), e(8), c(3)]
            if not last:
                seq.append(qkx(g + 1))
                if t == 6 and ps < 7:
                    seq.append(qx(ps + 1))
                if g + 1 in range(24, 32):
                    seq += reload("K", (g + 1) % 8)
            if g + self.NFIRST < 8:
                issued.extend([(k, g + self.NFIRST) for k in ("K", "X", "V0", "V1")])
            tail = [e(9), e(10), e(11), c(4), e(12), c(5)] + need(("V0", kt(g))) + [pv(g, 0), e(13), e(14), e(15), c(6), c(7)]
            if g + self.NFIRST < 8:
                tn = g + self.NFIRST
                ins = list(self.ld_k(tn, tn) + self.ld_v(tn, tn))
                for k, i in enumerate((9, 10, 11, 12)):
                    tail.insert(tail.index(e(i)) + 1, ins[k])
                if tn == 7:
                    tail.append(f"s_mov_b64 exec, 1\nds_add_u32 v2, v3 offset:{CV}\ns_mov_b64 exec, -1")
            if ps >= 5 and t == 0:
                ex = export(ps - 5)
                for k, i in enumerate((9, 10, 11, 12)):
                    tail.insert(tail.index(e(i)) + 1, ex[k])
            if g == 36:
                tail.append(f"ds_read_b32 v87, v86 offset:{C1}")
            if g == 38:
                ok = a.label("CNOK")
                tail.append(f"s_waitcnt lgkmcnt(0)\nv_readfirstlane_b32 s73, v87\ns_cmp_ge_u32 s73, 4\ns_cbranch_scc1 {ok}")
                tail.append(("wait", ok))
            for x in seq + tail:
                if isinstance(x, tuple):
                    self.wait(C1, 4, sleep=2, base="v86")
                    a(f"{x[1]}:")
                else:
                    a(x)
            if g == 7:
                self.stamp(11)
        a(pv(63, 1))
        for x in export(3):
            a(x)

    T64, T32A, TW1, TW2, T32B, NTAB = 0, 24, 27, 35, 43, 49
    NPRE = 35

    def make_tables(self):
        L = np.arange(64); Lm = (L & 15)[:, None]; Lg = (L >> 4)[:, None]
        jj = np.arange(8)[None, :]; r = np.arange(4)[None, :]
        def pk(v):
            b = M.bf(v.astype(np.float32)).astype(np.uint32)
            return (b[:, 0::2] | (b[:, 1::2] << 16)).astype(np.uint32)
        parts = lambda z: (z.real, z.imag, -z.imag)
        w = lambda n, x, y: np.exp(-2j * np.pi * ((x * y) % n) / n)
        f32 = lambda v: v.astype(np.float32).view(np.uint32)
        out = []
        for H in range(2):
            for k in range(3):
                for t in range(4):
                    for ks in range(2):
                        out.append(pk(parts(w(64, 16 * (t ^ (2 * H)) + Lm, 32 * (ks ^ H) + 16 * (jj >> 2) + 4 * Lg + (jj & 3)))[k]))
            for k in range(3):
                out.append(pk(parts(w(32, 8 * Lg + jj, 16 * H + Lm))[k]))
            for t in range(4):
                z = w(2048, 16 * (t ^ (2 * H)) + 4 * Lg + r, 16 * H + Lm)
                out += [f32(z.real), f32(z.imag)]
            for t in range(4):
                z = np.conj(w(2048, 16 * (t ^ (2 * H)) + Lm, 16 * H + 4 * Lg + r))
                out += [f32(z.real), f32(z.imag)]
            for k in range(3):
                for at in range(2):
                    out.append(pk(parts(w(32, 8 * (Lm >> 2) + 4 * at + (Lm & 3), 16 * (H ^ (jj >> 2)) + 4 * Lg + (jj & 3)))[k]))
        return np.concatenate([o.reshape(-1) for o in out])

    def tload(self, frag, dst):
        if self.tgroup != frag // 4:
            self.tgroup = frag // 4
            self.a(f"s_add_u32 s88, s87, {(frag // 4) * 4096}")
        self.a(f"buffer_load_dwordx4 {vr(dst,4)}, v5, {STB}, s88 offen offset:{(frag % 4) * 1024}")

    def stage2_tables(self):
        a = self.a
        a(f"""
s_getpc_b64 s[64:65]
s_add_u32 s64, s64, spectral_tables@rel32@lo+4
s_addc_u32 s65, s65, spectral_tables@rel32@hi+12
s_mov_b32 s66, {2*self.NTAB*1024}
s_mov_b32 s67, 0x20000
v_lshlrev_b32 v5, 4, v0
s_and_b32 s86, {sW}, 1
s_mul_i32 s87, s86, {self.NTAB*1024}
""")
        self.tgroup = None
        for f in range(24):
            self.tload(self.T64 + f, 16 + 4 * f)
        for f in range(3):
            self.tload(self.T32A + f, 240 + 4 * f)
        for f in range(8):
            self.tload(self.TW1 + f, 176 + 4 * f)

    def stage2(self):
        a = self.a
        A, P, Q, TW, WW, PK, TMP = 16, 112, 144, 176, 208, 240, 8
        self.tgroup = None
        a(f"""
v_and_b32 v6, 15, v0
v_lshlrev_b32 v6, 6, v6
v_lshrrev_b32 v7, 4, v0
v_lshl_add_u32 v6, v7, 4, v6
s_lshl_b32 s90, s89, 13
s_add_u32 s91, s90, 4096
s_cmp_eq_u32 s89, 288
s_cmov_b32 s90, 4096
s_cmov_b32 s91, {OOB}
s_cmp_eq_u32 s89, 0
s_cmov_b32 s91, {OOB}
s_lshl_b32 s73, s86, 11
s_add_u32 s90, s90, s73
s_add_u32 s91, s91, s73
s_lshl_b32 s85, s86, 12
s_sub_u32 s85, 2048, s85
s_lshr_b32 s73, {sW}, 1
s_and_b32 s73, s73, 1
s_xor_b32 s73, s73, 1
s_lshl_b32 s84, s73, 2
v_add_u32 v4, s84, v2
s_lshl_b32 s73, s73, 12
s_lshl_b32 s84, s86, 11
s_add_u32 s73, s73, s84
s_add_u32 s73, s73, {L_XCH}
v_add_u32 v7, s73, v5
s_sub_u32 s73, s73, s84
s_xor_b32 s84, s84, 0x800
s_add_u32 s84, s84, s73
s_sleep {self.opt('d2', 16)}
""")
        self.go_wait(WS_GOS, 252, 6)
        cg = a.label("CG")
        a(f"s_cmp_lg_u32 {sW}, 7\ns_cbranch_scc1 {cg}")
        self.add1(CG)
        a(f"{cg}:")
        self.stamp(7)
        self.stamp(1, 2)
        a(f"s_add_u32 s92, s90, {WS_T}\ns_add_u32 s93, s91, {WS_T}\ns_add_u32 s82, s92, s85\ns_add_u32 s83, s93, s85")
        for t in range(4):
            for ri in range(2):
                so = (("s92", "s93"), ("s82", "s83"))[t >> 1][ri]
                a(f"buffer_load_dwordx4 {vr(WW+8*t+4*ri,4)}, v6, {SWS}, {so} offen offset:{1024*(t&1)} sc1")
        mf = lambda acc, x, y, first: a(f"v_mfma_f32_16x16x32_bf16 {vr(acc,4)}, {vr(x,4)}, {vr(y,4)}, {'0' if first else vr(acc,4)}")
        re = lambda base, t: base + 8 * t
        im = lambda base, t: base + 8 * t + 4
        for t in range(4):
            a(f"s_waitcnt vmcnt({6 - 2*t})")
            if t == 0: self.stamp(2, 2)
            mf(re(P, t), re(WW, t), PK, True); mf(im(P, t), re(WW, t), PK + 4, True)
            mf(re(P, t), im(WW, t), PK + 8, False); mf(im(P, t), im(WW, t), PK, False)
        a(f"s_lshl_b32 s92, s89, 13\ns_lshl_b32 s73, s86, 12\ns_add_u32 s92, s92, s73\ns_lshl_b32 s73, s86, 11\ns_add_u32 s92, s92, s73\ns_add_u32 s92, s92, {WS_WT}")
        a("s_add_u32 s82, s92, s85")
        for t in range(4):
            a(f"buffer_load_dwordx4 {vr(WW+8*t+4,4)}, v5, {SWS}, {('s92', 's82')[t >> 1]} offen offset:{1024*(t&1)} sc1")
        def cmul(x, c, dst):
            for t in range(4):
                ops = []
                for h in range(2):
                    t0, t1 = TMP + 4 * h, TMP + 4 * h + 2
                    xr, xi, cr, ci = re(x, t) + 2 * h, im(x, t) + 2 * h, re(c, t) + 2 * h, im(c, t) + 2 * h
                    ops.append([f"v_pk_mul_f32 {vr(t0,2)}, {vr(xr,2)}, {vr(cr,2)}",
                                f"v_pk_mul_f32 {vr(t1,2)}, {vr(xr,2)}, {vr(ci,2)}",
                                f"v_pk_fma_f32 {vr(t0,2)}, {vr(xi,2)}, {vr(ci,2)}, {vr(t0,2)} neg_lo:[1,0,0] neg_hi:[1,0,0]",
                                f"v_pk_fma_f32 {vr(t1,2)}, {vr(xi,2)}, {vr(cr,2)}, {vr(t1,2)}",
                                f"v_cvt_pk_bf16_f32 v{dst(t,0)+h}, v{t0}, v{t0+1}",
                                f"v_cvt_pk_bf16_f32 v{dst(t,1)+h}, v{t1}, v{t1+1}"])
                for j in range(0, 6, 2):
                    for o in ops:
                        a(o[j]); a(o[j + 1])
        pkd = lambda t, part: PK + 8 * part + 2 * t
        ks_ = lambda part, ks: PK + 8 * part + 4 * ks
        t64 = lambda k, t, ks: A + 32 * k + 8 * t + 4 * ks
        self.stamp(3, 2)
        cmul(P, TW, pkd)
        self.stamp(4, 2)
        for f in range(8):
            self.tload(self.TW2 + f, TW + 4 * f)
        for t in range(4):
            for ks in range(2):
                mf(re(Q, t), t64(0, t, ks), ks_(0, ks), ks == 0); mf(im(Q, t), t64(1, t, ks), ks_(0, ks), ks == 0)
            for ks in range(2):
                mf(re(Q, t), t64(2, t, ks), ks_(1, ks), False); mf(im(Q, t), t64(0, t, ks), ks_(1, ks), False)
        self.stamp(5, 2)
        a("s_waitcnt vmcnt(8)")
        for t in range(4):
            b = WW + 8 * t
            for k in range(4):
                a(f"v_lshlrev_b32 v{b+2*k}, 16, v{b+4+k}\nv_and_b32 v{b+2*k+1}, 0xffff0000, v{b+4+k}" if k < 2 else "")
            a(f"v_and_b32 v{b+5}, 0xffff0000, v{b+6}\nv_lshlrev_b32 v{b+4}, 16, v{b+6}\nv_lshlrev_b32 v{b+6}, 16, v{b+7}\nv_and_b32 v{b+7}, 0xffff0000, v{b+7}")
        cmul(Q, WW, pkd)
        self.stamp(6, 2)
        for f in range(6):
            self.tload(self.T32B + f, WW + 4 * f)
        for t in (2, 3, 0, 1):
            for ks in range(2):
                mf(re(P, t), ks_(0, ks), t64(0, t, ks), ks == 0); mf(im(P, t), ks_(1, ks), t64(0, t, ks), ks == 0)
            for ks in range(2):
                mf(re(P, t), ks_(1, ks), t64(1, t, ks), False); mf(im(P, t), ks_(0, ks), t64(2, t, ks), False)
        self.stamp(7, 2)
        a("s_waitcnt vmcnt(6)")
        cmul(P, TW, lambda t, part: (PK + 8 * t + 4 * part) if t < 2 else (Q + 4 * (t - 2) + 2 * part))
        a(f"ds_write_b128 v7, {vr(Q,4)}\nds_write_b128 v7, {vr(Q+4,4)} offset:1024")
        self.add1(XA, base="v4")
        a("v_add_u32 v7, s84, v5")
        self.wait(XA, 2, sleep=0, base="v4")
        for t in range(2):
            for part in range(2):
                a(f"ds_read_b64 {vr(PK+8*t+4*part+2,2)}, v7 offset:{1024*t+8*part}")
        self.stamp(8, 2)
        a("s_waitcnt vmcnt(0) lgkmcnt(0)")
        t32 = lambda k, at: WW + 8 * k + 4 * at
        out = lambda t, part, at: Q + 16 * t + 8 * part + 4 * at
        for t in range(2):
            for at in range(2):
                mf(out(t, 0, at), t32(0, at), PK + 8 * t, True); mf(out(t, 1, at), t32(0, at), PK + 8 * t + 4, True)
            for at in range(2):
                mf(out(t, 0, at), t32(1, at), PK + 8 * t + 4, False); mf(out(t, 1, at), t32(2, at), PK + 8 * t, False)
        a(f"s_add_u32 s92, s90, {WS_Y}\ns_add_u32 s93, s91, {WS_Y}")
        for t in range(2):
            for part in range(2):
                b = out(t, part, 0); d = 40 + 8 * t + 4 * part
                for k in range(4):
                    a(f"v_cvt_pk_bf16_f32 v{d+k}, v{b+2*k}, v{b+2*k+1}")
                a(f"buffer_store_dwordx4 {vr(d,4)}, v6, {SWS}, {'s93' if part else 's92'} offen offset:{1024*t} sc1")
        self.stamp(9, 2)
        self.flag4("s99", "s89", WS_FY)
        a("v_mov_b32 v6, v4")

    def l_mid(self):
        a = self.a
        go = a.label("S2"); no = a.label("NS2"); n7 = a.label("N7"); kv = a.label("LKV"); tb = a.label("TB"); nw = a.label("NW")
        a(f"s_mov_b32 s89, s2\ns_cmp_lg_u32 {sW}, 7\ns_cbranch_scc1 {n7}")
        self.s_flag()
        a(f"s_mov_b32 s89, s2\ns_branch {go}\n{n7}:")
        self.wait(CW, 1, sleep=4, idle=True)
        n5 = a.label("N5")
        a(f"s_cmp_lg_u32 {sW}, 5\ns_cbranch_scc1 {n5}")
        self.poison()
        self.flag4("s91", "s2", WS_FP)
        a("s_waitcnt vmcnt(0)")
        self.set_flag("s91")
        a(f"""
{n5}:
s_setprio 3
s_cmp_eq_u32 {sW}, 6
s_cbranch_scc1 {tb}
s_add_u32 s89, s2, 192
s_cmp_lt_u32 s2, 64
s_cbranch_scc1 {nw}
s_cmp_gt_u32 s2, 96
s_cbranch_scc1 {nw}
{tb}:
""")
        self.stage2_tables()
        a(f"{go}:")
        self.stage2()
        a(f"s_branch {kv}\n{nw}:")
        a(f"s_cmp_lg_u32 {sW}, 4\ns_cbranch_scc1 {no}\ns_lshr_b32 s73, s2, 3\ns_cmp_lg_u32 s73, 16\ns_cbranch_scc1 {no}")
        a(f"v_lshlrev_b32 v9, 7, v0\ns_mov_b32 s92, {WS_FS}")
        self.poll(f"buffer_load_dwordx4 v[12:15], v9, {SWS}, s92 offen sc1", [12, 13, 14, 15], sleep=4)
        a(f"s_and_b32 s92, s2, 7\ns_lshl_b32 s92, s92, 7\ns_add_u32 s93, s92, {WS_GOP}\ns_add_u32 s92, s92, {WS_GOS}")
        self.set_flag("s92")
        a(f"s_mov_b32 s92, {WS_FP}\ns_sleep 48")
        self.poll(f"buffer_load_dwordx4 v[12:15], v9, {SWS}, s92 offen sc1", [12, 13, 14, 15], sleep=24)
        self.set_flag("s93")
        self.wait(YA, 2, sleep=8)
        a(f"v_min_u32 v10, {7*128}, v9\ns_mov_b32 s92, {WS_FY}\ns_mov_b32 s90, {WS_FY + 8192}\ns_mov_b32 s91, {WS_FY + 72*128}\ns_sleep {self.opt('dy', 8)}")
        self.poll(f"buffer_load_dwordx4 v[12:15], v9, {SWS}, s92 offen sc1\nbuffer_load_dwordx4 v[16:19], v10, {SWS}, s90 offen sc1\n"
                  f"buffer_load_dword v20, off, {SWS}, s91 sc1", list(range(12, 21)), sleep=4)
        a(f"s_add_u32 s93, s93, {WS_GOY - WS_GOP}")
        self.set_flag("s93")
        ne = a.label("NE")
        a(f"s_cmp_lg_u32 s2, 128\ns_cbranch_scc1 {ne}")
        self.set_flag(str(WS_EPOCH))
        a(f"{ne}:")
        a(f"{no}:\ns_mov_b32 s99, {OOB}\nv_add_u32 v6, 16, v2\n{kv}:")
        self.kv_addr()
        self.kv_loads()
        nf = a.label("NYF")
        a(f"s_waitcnt vmcnt({4 * self.NFIRST})\ns_mov_b64 exec, 1\nds_add_rtn_u32 v1, v6, v3 offset:{YA}\ns_mov_b64 exec, -1\ns_waitcnt lgkmcnt(0)")
        a(f"v_readfirstlane_b32 s73, v1\ns_cmp_lg_u32 s73, 1\ns_cbranch_scc1 {nf}")
        self.set_flag("s99")
        a(f"{nf}:")
        self.add1(CL)
        self.stamp(9)
        a("s_setprio 1")

    NT = 192

    def tail(self, mm, n):
        a = self.a
        ACC, ACX = 16, 32
        GM, GX, GD, GE = 48, 120, 18, 9
        BF, BX = 156, 168
        OB, OX, AF, AX = 48, 84, 104, 116
        NT = self.NT
        w = 2 * mm + n
        a(f"""
s_setprio 3
v_lshlrev_b32 v5, 4, v0
v_and_b32 v12, 31, v0
v_lshrrev_b32 v13, 5, v0
v_add_u32 v8, {L_EX}, v5
v_lshlrev_b32 v9, 3, v0
v_add_u32 v9, {L_EX + 2048}, v9
v_lshlrev_b32 v10, 3, v12
v_add_u32 v10, {L_EX + 2048 + 256}, v10
v_lshl_add_u32 v14, v12, 2, v2
ds_read_b32 v4, v14 offset:{256 + 128 * (1 - n)}
ds_read_b32 v11, v14 offset:{256 + 128 * n}
v_and_b32 v37, 15, v0
v_lshrrev_b32 v38, 4, v0
v_lshl_add_u32 v14, v37, 2, v2
ds_read_b32 v36, v14 offset:{256 + 128 * n + 64 * mm}
s_mul_i32 s94, {sP}, {8*9216}
s_add_u32 s94, s94, {WS_OF}
s_lshl_b32 s96, {sJ}, 10
s_add_u32 s96, s96, s94
s_lshr_b32 s97, {sJ}, 2
s_lshl_b32 s97, s97, 9
s_and_b32 s73, {sJ}, 3
s_lshl_b32 s73, s73, 2
s_add_u32 s97, s97, s73
s_add_u32 s97, s97, s94
s_add_u32 s97, s97, 8192
s_waitcnt lgkmcnt(0)
v_sub_f32 v4, 1.0, v4
""")

        def normalize(i, publish=True):
            q = i % 4
            self.wait(CT + 4 * i, 4, sleep=1 if i >= 6 else 4, idle=i < 7)
            for s in range(4):
                b = NT + 12 * s; o = 10240 * q + 2560 * s
                a(f"ds_read_b128 {vr(b,4)}, v8 offset:{o}\nds_read_b128 {vr(b+4,4)}, v8 offset:{o+1024}\nds_read_b64 {vr(b+8,2)}, v9 offset:{o}")
                if s == 3:
                    a("s_waitcnt lgkmcnt(9)")
                a(f"ds_read_b32 v{b+10}, v10 offset:{o}")
            a(f"s_add_u32 s90, s96, {i*9216}\ns_add_u32 s91, s97, {i*9216}\ns_movk_i32 s89, {i}")
            a("s_waitcnt lgkmcnt(8)")
            for s in range(1, 4):
                if s > 1:
                    a(f"s_waitcnt lgkmcnt({4 * (3 - s)})")
                for k in range(5):
                    a(f"v_pk_add_f32 {vr(NT+2*k,2)}, {vr(NT+2*k,2)}, {vr(NT+12*s+2*k,2)}")
                a(f"v_add_f32 v{NT+10}, v{NT+10}, v{NT+12*s+10}")
            if i < 4:
                self.add1(CN)
            self.safety()
            a(f"v_rcp_f32 v{NT+10}, v{NT+10}\ns_nop 0\nv_mul_f32 v{NT+10}, v4, v{NT+10}")
            for k in range(5):
                a(f"v_pk_mul_f32 {vr(NT+2*k,2)}, {vr(NT+2*k,2)}, {vr(NT+10,2)} op_sel_hi:[1,0]")
            for k in range(5):
                a(f"v_cvt_pk_bf16_f32 v{NT+12+k}, v{NT+2*k}, v{NT+2*k+1}")
            a(f"v_min_u32 v{NT+12}, -2, v{NT+12}\nv_min_u32 v{NT+16}, -2, v{NT+16}")
            if publish:
                store()

        def store():
            a(f"buffer_store_dwordx4 {vr(NT+12,4)}, v5, {SWS}, s90 offen sc1\ns_mov_b32 exec_hi, 0")
            a(f"buffer_store_dword v{NT+16}, v5, {SWS}, s91 offen sc1\ns_mov_b64 exec, -1")

        normalize(2 * mm + (1 - n), publish=False)
        a(f"""
v_lshrrev_b32 v6, 3, v0
v_lshlrev_b32 v6, 12, v6
v_bfe_u32 v7, v0, 4, 1
v_lshlrev_b32 v7, 2, v7
v_xor_b32 v7, v7, v0
v_and_b32 v7, 7, v7
v_lshl_add_u32 v6, v7, 4, v6
v_bfe_u32 v43, v0, 2, 2
v_and_b32 v44, 3, v0
v_bfe_u32 v45, v0, 3, 1
v_xor_b32 v45, {n}, v45
v_lshlrev_b32 v45, 6, v45
v_lshl_add_u32 v45, v44, 3, v45
v_lshl_add_u32 v45, v43, 7, v45
v_lshl_add_u32 v7, v13, 10, v45
v_bfe_u32 v46, v0, 4, 1
v_lshl_add_u32 v7, v46, 5, v7
v_add_u32 v15, 36864, v7
v_lshl_add_u32 v39, v38, 10, v45
v_add_u32 v39, {32 * mm}, v39
v_add_u32 v40, 36864, v39
v_lshlrev_b32 v41, 4, v37
v_lshl_add_u32 v41, v46, 9, v41
v_lshl_add_u32 v14, v13, 10, v41
v_cmp_gt_u32 vcc, 8, v37
v_mov_b32 v47, {OOB}
v_add_u32 v41, {256 * mm}, v14
v_cndmask_b32 v14, v47, v14, vcc
v_cmp_gt_u32 vcc, 32, v0
s_mul_i32 s92, {sJ}, {3*36*1024}
v_cndmask_b32 v42, v47, v41, vcc
s_add_u32 s98, s92, {WS_G + 2*36*1024}
s_add_u32 s92, s92, {WS_G + mm*36*1024}
s_mul_i32 s95, {sJ}, 144
""")
        for i in range(20):
            a(f"v_mov_b32 v{ACC+i}, 0")
        self.srd(SWO, 18, 663552)
        self.panel_setup(4, va=46)
        vm = []
        def gm(ks):
            a(f"buffer_load_dwordx4 {vr(GM+4*(ks%GD),4)}, v5, {SWS}, s92 offen offset:{1024*(ks%4)} sc1")
            if ks % 4 == 3: a("s_add_u32 s92, s92, 4096")
            vm.append(("m", ks))
        def gx(T):
            a(f"buffer_load_dwordx4 {vr(GX+4*(T%GE),4)}, v14, {SWS}, s98 offen offset:{2048*(T%2)} sc1")
            if T % 2 == 1: a("s_add_u32 s98, s98, 4096")
            vm.append(("x", T))
        self.wait(CL, 4, sleep=4, idle=True)
        for ks in range(GD):
            gm(ks)
            if ks % 2 == 1: gx(ks // 2)
        if w == 2:
            a("s_mov_b32 s93, s92")
            self.go_wait(WS_GOY, NT, 8)
            a("s_mov_b32 s92, s93")
            self.add1(CY)
        else:
            self.wait(CY, 1, sleep=4, idle=True)
        self.stamp(1); self.stamp(1, 4)
        a(f"s_lshl_b32 s99, {sP}, 7\ns_add_u32 s99, s99, {WS_Y + w * 32768}")
        lp = a.label("YL")
        a(f"s_mov_b32 s88, 2\ns_mov_b32 s93, {L_Y + w * 1024}\n{lp}:")
        for k in range(6):
            a(f"s_mov_b32 m0, s93\ns_add_u32 s93, s93, 4096\nbuffer_load_dwordx4 v6, {SWS}, s99 offen sc1 lds\ns_add_u32 s99, s99, {4*32768}")
        a(f"s_sub_u32 s88, s88, 1\ns_cbranch_scc0 {lp}")
        self.stamp(2, 4)
        a("s_waitcnt vmcnt(9)")
        self.add1(S1)
        a("s_waitcnt vmcnt(0)")
        self.add1(S4)
        self.stamp(3, 4)
        vm.clear()
        def yrd(it):
            kind, k = it
            if kind == "m":
                b = BF + 4 * (k % 3); base, off = ("v7", 2048 * k) if k < 18 else ("v15", 2048 * (k - 18))
            else:
                b = BX + 4 * (k % 3); base, off = ("v39", 4096 * k) if k < 9 else ("v40", 4096 * (k - 9))
            a(f"ds_read_b64_tr_b16 {vr(b,2)}, {base} offset:{off}\nds_read_b64_tr_b16 {vr(b+2,2)}, {base} offset:{off+512}")
        def half(k0):
            seq = []
            for ks in range(k0, k0 + 18):
                seq.append(("m", ks))
                if ks % 2 == 1: seq.append(("x", ks // 2))
            for it in seq[:3]:
                yrd(it)
            for i, it in enumerate(seq):
                wv = f"vmcnt({len(vm) - 1 - vm.index(it)}) " if it in vm else ""
                a(f"s_waitcnt {wv}lgkmcnt({2 * (min(i + 3, len(seq)) - i - 1)})")
                kind, k = it
                if kind == "m":
                    a(f"v_mfma_f32_32x32x16_bf16 {vr(ACC,16)}, {vr(GM+4*(k%GD),4)}, {vr(BF+4*(k%3),4)}, {vr(ACC,16)}")
                    if k + GD < 36: gm(k + GD)
                else:
                    a(f"v_mfma_f32_16x16x32_bf16 {vr(ACX,4)}, {vr(GX+4*(k%GE),4)}, {vr(BX+4*(k%3),4)}, {vr(ACX,4)}")
                    if k + GE < 18: gx(k + GE)
                if i + 3 < len(seq):
                    yrd(seq[i + 3])
        self.wait(S1, 4, sleep=1)
        self.stamp(4, 4)
        half(0)
        self.add1(S2)
        store()
        vm.extend([("st", 0), ("st", 1)])
        self.wait(S4, 4, sleep=1)
        self.wait(S2, 4, sleep=1)
        self.panel_loads(SWO, 0, 18432, L_WOX, False, 18, 4, va=46)
        vm.extend([("wo", k) for k in range(12)])
        half(18)
        self.stamp(5, 4)
        self.add1(S2)
        a(f"""
v_and_b32 v39, 1, v44
v_lshlrev_b32 v15, 2, v39
v_bfe_u32 v40, v0, 4, 1
v_lshl_add_u32 v15, v40, 1, v15
v_lshrrev_b32 v14, 1, v44
v_add_u32 v45, v15, v14
v_lshlrev_b32 v45, 3, v45
v_add_u32 v45, {18432 * mm}, v45
v_lshl_add_u32 v6, v13, 2, v43
v_lshl_add_u32 v6, v6, 6, v45
v_lshrrev_b32 v7, 1, v43
v_mul_u32_u24 v7, 72, v7
v_and_b32 v14, 1, v43
v_add3_u32 v43, v7, v14, 16
v_lshl_add_u32 v7, v43, 6, v45
v_mul_u32_u24 v14, 36864, v13
v_add_u32 v7, v7, v14
v_lshlrev_b32 v39, 3, v39
v_add_u32 v39, {L_WOX}, v39
v_mul_u32_u24 v15, 288, v40
v_add_u32 v15, v15, v43
v_lshl_add_u32 v15, v15, 4, v39
v_mul_u32_u24 v14, 72, v13
v_lshl_add_u32 v14, v40, 2, v14
v_bfe_u32 v43, v0, 2, 2
v_add_u32 v14, v14, v43
v_lshl_add_u32 v14, v14, 4, v39
""")
        self.wait(S2, 8, sleep=1)
        self.stamp(6, 4)
        self.panel_loads(SWO, 18432, 36864, L_WOX, False, 36, 4, va=46)
        self.stamp(2); self.stamp(7, 4)
        for i in range(8):
            a(f"v_pk_mul_f32 {vr(ACC+2*i,2)}, {vr(ACC+2*i,2)}, v[10:11] op_sel:[0,1] op_sel_hi:[1,1]")
        for i in range(2):
            a(f"v_pk_mul_f32 {vr(ACX+2*i,2)}, {vr(ACX+2*i,2)}, v[36:37] op_sel_hi:[1,0]")
        a("s_waitcnt vmcnt(0)")
        self.add1(S3)
        self.srd(SOUT, 22, 2359296)
        self.wait(S3, 4, sleep=1)
        self.stamp(8, 4)

        def consume(i, gate):
            hh = i >> 1
            if gate is not None:
                self.wait(CT + 4 * gate, 4, sleep=2 if gate == 7 else 4, idle=True)
            if i == 7:
                a(f"s_sleep {self.opt('d7', 10)}")
            seq = []
            for ks in range(9):
                seq.append(("m", ks))
                if ks % 2 == 1 or ks == 8: seq.append(("x", ks // 2))
            def rd(it):
                kind, k = it
                for u in range(2):
                    if kind == "m":
                        row = (72 * k + 18 * hh + 8 * u) if k < 8 else (144 * u + 18 * hh)
                        off = row * 64 + (18432 if row >= 288 else 0)
                        a(f"ds_read_b64_tr_b16 {vr(AF+4*(k%3)+2*u,2)}, {'v6' if k < 8 else 'v7'} offset:{off}")
                    else:
                        row = (144 * k + 18 * hh + 8 * u) if k < 4 else (144 * u + 18 * hh)
                        a(f"ds_read_b64_tr_b16 {vr(AX+4*(k%3)+2*u,2)}, {'v14' if k < 4 else 'v15'} offset:{row*16}")
            for it in seq[:3]:
                rd(it)
            l = a.label("CL"); d = a.label("CD")
            a(f"{l}:\ns_add_u32 s90, s94, {i*9216}")
            chk = []
            for ks in range(9):
                if ks in (4, 8):
                    a("s_add_u32 s90, s90, 4096")
                a(f"buffer_load_dwordx4 {vr(OB+4*ks,4)}, v5, {SWS}, s90 offen offset:{1024*(ks%4)} sc1")
                chk.append([OB + 4 * ks] if ks < 8 else [OB + 32 + r for r in range(4)])
                if ks % 2 == 1 or ks == 8:
                    k = ks // 2
                    a(f"buffer_load_dwordx4 {vr(OX+4*k,4)}, {'v41' if k < 4 else 'v42'}, {SWS}, s90 offen offset:{2048*(k%2)} sc1")
                    chk.append([OX + 4 * k] if k < 4 else [OX + 16 + r for r in range(4)])
            flat = [(j, r) for j, rs in enumerate(chk) for r in rs]
            a(f"s_waitcnt vmcnt({len(chk) - 2})\nv_max_u32 v1, v{flat[0][1]}, v{flat[1][1]}")
            for p in range(2, len(flat), 2):
                a(f"s_waitcnt vmcnt({len(chk) - 1 - flat[p+1][0]})\nv_max3_u32 v1, v1, v{flat[p][1]}, v{flat[p+1][1]}")
            a(f"v_cmp_eq_u32 vcc, -1, v1\ns_cmp_eq_u64 vcc, 0\ns_cbranch_scc1 {d}")
            a(f"s_sleep 2\ns_sub_u32 {sSPIN}, {sSPIN}, 1\ns_cbranch_scc0 {l}\ns_branch L_bail\n{d}:")
            for j, it in enumerate(seq):
                a(f"s_waitcnt lgkmcnt({2 * (min(j + 3, len(seq)) - j - 1)})")
                kind, k = it
                if kind == "m":
                    a(f"v_mfma_f32_32x32x16_bf16 {vr(ACC,16)}, {vr(AF+4*(k%3),4)}, {vr(OB+4*k,4)}, {vr(ACC,16)}")
                else:
                    a(f"v_mfma_f32_16x16x32_bf16 {vr(ACX,4)}, {vr(AX+4*(k%3),4)}, {vr(OX+4*k,4)}, {vr(ACX,4)}")
                if j + 3 < len(seq):
                    rd(seq[j + 3])

        prog = {0: ["C0", "C2", "N5", "C4", "C6"], 1: ["C1", "C3", "N4", "C5", "C7"],
                2: ["C0", "C2", "C4", "N7", "C6"], 3: ["C1", "C3", "N6", "C5", "C7"]}[w]
        gates = {4: 5, 5: 6, 6: 7, 7: 7}
        a(f"""
s_mov_b32 s73, 73728
v_mul_lo_u32 v39, v12, s73
v_lshl_add_u32 v39, v13, 5, v39
v_mul_lo_u32 v40, v37, s73
v_lshl_add_u32 v40, v38, 3, v40
s_mul_i32 s93, {sP}, 2304
s_add_u32 s93, s93, s95
s_add_u32 s93, s93, {1152 * n}
s_add_u32 s92, s93, {16 * mm * 73728}
""")
        for it in prog:
            i = int(it[1])
            if it[0] == "N":
                normalize(i)
                self.stamp(3)
            else:
                if i >= 6: self.stamp(4)
                consume(i, gates.get(i))
                if i < 4: self.stamp(9 + i // 2, 4)
        self.stamp(6)
        fl = " sc1" if "outsc1" in self.opts else ""
        a(f"v_cvt_pk_bf16_f32 v{ACX}, v{ACX}, v{ACX+1}\nv_cvt_pk_bf16_f32 v{ACX+1}, v{ACX+2}, v{ACX+3}")
        for k in range(8):
            a(f"v_cvt_pk_bf16_f32 v{ACC+k}, v{ACC+2*k}, v{ACC+2*k+1}")
        a(f"buffer_store_dwordx4 {vr(ACC,4)}, v39, {SOUT}, s93 offen offset:{64*mm}{fl}")
        a(f"buffer_store_dwordx4 {vr(ACC+4,4)}, v39, {SOUT}, s93 offen offset:{64*mm+16}{fl}")
        a(f"s_mov_b32 exec_hi, 0\nbuffer_store_dwordx2 {vr(ACX,2)}, v40, {SOUT}, s92 offen offset:128{fl}\ns_mov_b64 exec, -1")
        self.stamp(7)

    def safety(self):
        a = self.a
        NT = self.NT
        ok = a.label("SOK")
        t = NT + 12
        a(f"v_mov_b32 v{t}, 0\nv_mov_b32 v{t+1}, 0\nv_mov_b32 v{t+2}, 0\nv_mov_b32 v{t+3}, 0")
        for k in range(5):
            a(f"v_pk_fma_f32 {vr(t,2)}, {vr(NT+2*k,2)}, {vr(t+2,2)}, {vr(t,2)}")
        lo, hi = (127 - 60) << 23, (127 + 64) << 23
        if "forcefb" in self.opts:
            lo, hi = (127 + 60) << 23, (127 + 64) << 23
        a(f"v_add_f32 v{t}, v{t}, v{t+1}\nv_subrev_u32 v{t+1}, {lo:#x}, v{NT+10}\nv_cmp_u_f32 vcc, v{t}, v{t}")
        a(f"s_mov_b32 s73, {hi - lo:#x}\nv_cmp_lt_u32 s[74:75], s73, v{t+1}\ns_or_b64 vcc, vcc, s[74:75]\ns_cmp_eq_u64 vcc, 0\ns_cbranch_scc1 {ok}")
        a(f"s_call_b64 s[86:87], L_fallback\n{ok}:")

    def fallback(self):
        a = self.a
        NT = self.NT
        Q, QX, K, KX, V, S, O, MX = 128, 132, 136, 140, 144, 152, 168, 184
        vK, vKX, vV, T0 = 185, 186, 187, 188
        l1 = a.label("FB1"); l2 = a.label("FB2")
        qk = f"""
buffer_load_dwordx4 {vr(K,4)}, v{vK}, {SWS}, s[84] offen sc1
buffer_load_dword v{KX}, v{vKX}, {SWS}, s[85] offen sc1
""".replace("s[84]", "s84").replace("s[85]", "s85")
        mm = f"""
v_mfma_f32_32x32x16_bf16 {vr(S,16)}, {vr(K,4)}, {vr(Q,4)}, 0
v_mfma_f32_32x32x8_bf16 {vr(S,16)}, {vr(KX,2)}, {vr(QX,2)}, {vr(S,16)}
s_add_u32 s84, s84, 1024
s_add_u32 s85, s85, 128
"""
        a(f"""
L_fallback:
s_nop 4
v_lshlrev_b32 v{vK}, 5, v12
v_lshl_add_u32 v{vK}, v13, 4, v{vK}
v_mov_b32 v{T0}, {OOB}
v_lshlrev_b32 v{vKX}, 2, v12
v_cmp_lt_u32 vcc, 31, v0
v_subrev_u32 v{T0+1}, 64, v{vK}
v_cndmask_b32 v{vKX}, v{vKX}, v{T0}, vcc
v_cmp_eq_u32 vcc, 20, v12
s_mul_i32 s73, s89, 1536
v_cndmask_b32 v{T0+1}, v{T0}, v{T0+1}, vcc
v_cmp_gt_u32 vcc, 18, v12
s_add_u32 s73, s73, {L_QS}
v_cndmask_b32 v{vV}, v{T0+1}, v{vK}, vcc
v_mul_u32_u24 v{T0}, 48, v12
v_add_u32 v{T0}, s73, v{T0}
v_lshl_add_u32 v{T0+1}, v13, 2, v{T0}
v_lshl_add_u32 v{T0}, v13, 4, v{T0}
ds_read_b128 {vr(Q,4)}, v{T0}
ds_read_b32 v{QX}, v{T0+1} offset:32
v_mov_b32 v{QX+1}, 0
v_mov_b32 v{KX+1}, 0
v_mov_b32 v{MX}, 0xff800000
s_mov_b32 s84, {WS_K16}
s_mov_b32 s85, {WS_KX}
s_mov_b32 s88, 63
{l1}:
{qk}
s_waitcnt vmcnt(0) lgkmcnt(0)
{mm}
""")
        for k in range(8):
            a(f"v_max3_f32 v{MX}, v{MX}, v{S+2*k}, v{S+2*k+1}")
        a(f"""
s_sub_u32 s88, s88, 1
s_cbranch_scc0 {l1}
v_mov_b32 v{T0}, v{MX}
v_permlane32_swap_b32 v{MX}, v{T0}
v_max_f32 v{MX}, v{MX}, v{T0}
s_mov_b32 s84, {WS_K16}
s_mov_b32 s85, {WS_KX}
s_mov_b32 s83, {WS_VF}
s_mov_b32 s88, 63
""")
        for r in range(16):
            a(f"v_mov_b32 v{O+r}, 0")
        a(f"""
{l2}:
{qk}
buffer_load_dwordx4 {vr(V,4)}, v{vV}, {SWS}, s83 offen sc1
buffer_load_dwordx4 {vr(V+4,4)}, v{vV}, {SWS}, s83 offen offset:{VPITCH} sc1
s_waitcnt vmcnt(0)
{mm}
s_add_u32 s83, s83, {2*VPITCH}
""")
        for r in range(16):
            a(f"v_sub_f32 v{S+r}, v{S+r}, v{MX}")
        for r in range(16):
            a(f"v_exp_f32 v{S+r}, v{S+r}")
        for k in range(8):
            a(f"v_cvt_pk_bf16_f32 v{S+k}, v{S+2*k}, v{S+2*k+1}")
        a(f"""
v_mfma_f32_32x32x16_bf16 {vr(O,16)}, {vr(V,4)}, {vr(S,4)}, {vr(O,16)}
v_mfma_f32_32x32x16_bf16 {vr(O,16)}, {vr(V+4,4)}, {vr(S+4,4)}, {vr(O,16)}
s_nop 15
s_sub_u32 s88, s88, 1
s_cbranch_scc0 {l2}
""")
        for r in range(10):
            a(f"v_mov_b32 v{NT+r}, v{O+r}")
        a(f"v_mov_b32 v{T0}, v{O+8}\nv_mov_b32 v{NT+10}, v{O+8}\nv_permlane32_swap_b32 v{T0}, v{NT+10}\ns_nop 4\ns_setpc_b64 s[86:87]")

    def finish_stamps(self):
        a = self.a
        if self.stamps:
            a("v_mov_b32 v2, 0")
            for i in range(12):
                a(f"v_writelane_b32 v2, s{STAMPS[i]}, {i}")
            a(f"s_lshl_b32 s73, s2, 3\ns_add_u32 s73, s73, {sW}\ns_lshl_b32 s73, s73, 7\ns_add_u32 s73, s73, {WS_DBG}")
            a(f"v_lshlrev_b32 v3, 2, v0\ns_mov_b32 exec_hi, 0\nbuffer_store_dword v2, v3, {SWS}, s73 offen\ns_mov_b64 exec, -1")

    def build(self):
        a = self.a
        self.prologue()
        self.e_front()
        a("L_attn:")
        self.attention()
        self.stamp(8)
        a(f"s_cmp_ge_u32 {sW}, 4\ns_cbranch_scc1 L_fin")
        labs = [a.label("TL") for _ in range(4)]
        for w in range(1, 4):
            a(f"s_cmp_eq_u32 {sW}, {w}\ns_cbranch_scc1 {labs[w]}")
        for w in range(4):
            a(f"{labs[w]}:")
            self.tail(w >> 1, w & 1)
            a("s_branch L_fin")
        a("L_lwave:")
        self.l_front()
        self.l_mid()
        a("s_branch L_attn")
        self.fallback()
        a("L_bail:")
        if self.stamps:
            a(f"s_mov_b32 s{STAMPS[11]}, 0xdead0000")
        a("L_fin:")
        self.finish_stamps()
        a("L_end:\ns_endpgm")
        body = a.finish()
        tw = self.make_tables()
        assert tw.size == 2 * self.NTAB * 256
        tab = "\n".join(".long " + ",".join(f"{x:#x}" for x in tw[i:i+16]) for i in range(0, tw.size, 16))
        hdr = open("cdna_kernels/" + NAME + ".s.ref").read().split("; Override launch")[0]
        return f"""{hdr}; @launch grid=(256,1,1) block=(512,1,1) lds={LDS_BYTES}
.amdgcn_target "amdgcn-amd-amdhsa--gfx950"
.text
.globl {NAME}_kernel
.p2align 8
.type {NAME}_kernel,@function
{NAME}_kernel:
{body}
.section .rodata,"a"
.p2align 8
.type spectral_tables,@object
spectral_tables:
{tab}
.size spectral_tables, {2*self.NTAB*1024}
.p2align 6
.amdhsa_kernel {NAME}_kernel
  .amdhsa_next_free_vgpr 256
  .amdhsa_next_free_sgpr 102
  .amdhsa_accum_offset 256
  .amdhsa_group_segment_fixed_size 0
  .amdhsa_kernarg_size 96
  .amdhsa_user_sgpr_count 2
  .amdhsa_user_sgpr_kernarg_segment_ptr 1
  .amdhsa_system_sgpr_workgroup_id_x 1
.end_amdhsa_kernel
"""


if __name__ == "__main__":
    opts = sys.argv[2:]
    g = Gen(stamps=2 if "st2" in opts else 3 if "st3" in opts else 4 if "st4" in opts else int("stamps" in opts), cyc="cyc" in opts, opts=opts)
    src = g.build()
    open(sys.argv[1], "w").write(src)
    print("nops added:", g.a.added_nops, "lines:", len(src.splitlines()))
```

```python
import sys
import numpy as np
from asmlib import Asm
import model as M

NAME = "gated_mix__spectral_gfnet__grouped_kv_mqa__prompt"

WS_EPOCH = 0
WS_FKV = 0x50000
WS_FS = 0x58000
WS_FY = 0x60000
WS_GOS = 0x68000
WS_GOY = 0x69000
WS_GOP = 0x6A000
WS_FP = 0x70000
WS_K16 = 0x10000
WS_KX = 0x20000
WS_VF = 0x30000
WS_DBG = 0x80000
WS_G = 0x100000
WS_T = 0x200000
WS_Y = 0x500000
WS_OF = 0x800000
WS_WT = 0xB00000
WS_QDUMP = 0x1100000
WS_SIZE = 0x2000000
OOB = 0x40000000
VPITCH = 640

XP = 1040
L_X = 0
L_X2 = 64 * XP
L_WQ0 = 74752
L_WQ1 = 111616
P2SZ = 9728
L_P2Q = 148480
L_P2KV = L_P2Q - P2SZ
L_MISC = 162816
(C0A, C0B, C0C, C1, CX, CK, CE, CV, CY, S1, S2, S3, CN, CW, CF, CD, CG, S4, C0D, SA, XA, XB, YA, YB, CL) = (4 * i for i in range(25))
CT = 128
L_G = L_MISC + 256
L_QS = L_WQ0
L_WO0 = 0
L_WO1 = 36864
L_Y = 0
L_EX = L_QS + 12288
L_WOX = L_EX + 16 * 2560
L_XCH = L_WOX + 9216
LDS_BYTES = 163840
assert L_XCH + 8192 <= L_MISC and L_P2Q + P2SZ <= L_MISC and L_P2KV >= L_WQ1 + 416 * 64

SX, SWQ, SKV, SG, SWS, SWO, SOUT, SWR, SWI, STB = (f"s[{a}:{a+3}]" for a in range(28, 68, 4))
sW, sP, sJ, sTAG, sSPIN = "s68", "s69", "s70", "s71", "s72"
STAMPS = [76, 77, 78, 79, 80, 81, 100, 101, 3, 10, 11, 24]
SPIN_MAX = 400000

f32bits = lambda v: int(np.float32(v).view(np.uint32))
QSCALE_BITS = f32bits(M.QSCALE)
LOG2E_BITS = f32bits(M.LOG2E)


def vr(a, n=1):
    return f"v{a}" if n == 1 else f"v[{a}:{a+n-1}]"


class Gen:
    AQ, AQX, AO, AK, AKX, AV, AS = 24, 28, 32, 88, 120, 128, 192
    vQ, vQX, vEX, vEX2, vK, vKX, vV, vCT = 78, 79, 80, 81, 82, 83, 4, 5

    def __init__(self, stamps=0, cyc=False, opts=()):
        self.a = Asm()
        self.stamps = stamps
        self.clk = "s_memtime" if cyc else "s_memrealtime"
        self.opts = set(opts)

    def opt(self, name, default):
        for o in self.opts:
            if o.startswith(name + "="):
                return int(o.split("=")[1])
        return default

    def _st(self, i):
        self.a(f"{self.clk} s[74:75]\ns_waitcnt lgkmcnt(0)\ns_mov_b32 s{STAMPS[i]}, s74")

    def stamp(self, i, level=1):
        if self.stamps == level:
            self._st(i)

    def srd(self, srd, lo, size):
        b = int(srd[2:].split(":")[0])
        self.a(f"s_mov_b32 s{b}, s{lo}\ns_mov_b32 s{b+1}, s{lo+1}\ns_mov_b32 s{b+2}, {size}\ns_mov_b32 s{b+3}, 0x20000")

    def add1(self, off, base="v2"):
        self.a(f"s_mov_b64 exec, 1\nds_add_u32 {base}, v3 offset:{off}\ns_mov_b64 exec, -1")

    def wait(self, off, target, sleep=1, base="v2", idle=False):
        a = self.a
        l = a.label("LW"); d = a.label("LWD")
        if idle and "noidle" not in self.opts:
            a("s_setprio 0")
        a(f"{l}:\nds_read_b32 v1, {base} offset:{off}\ns_waitcnt lgkmcnt(0)\nv_readfirstlane_b32 s73, v1")
        a(f"s_cmp_ge_u32 s73, {target}\ns_cbranch_scc1 {d}")
        if sleep:
            a(f"s_sleep {sleep}")
        a(f"s_sub_u32 {sSPIN}, {sSPIN}, 1\ns_cbranch_scc0 {l}\ns_branch L_bail\n{d}:")
        if idle and "noidle" not in self.opts:
            a("s_setprio 3")

    def cmp_regs(self, regs, val, op="ne"):
        a = self.a
        a(f"v_cmp_{op}_u32 vcc, {val}, v{regs[0]}")
        for r in regs[1:]:
            a(f"v_cmp_{op}_u32 s[74:75], {val}, v{r}\ns_or_b64 vcc, vcc, s[74:75]")
        a("s_cmp_eq_u64 vcc, 0")

    def poll(self, loads, regs, sleep=2):
        a = self.a
        l = a.label("PL"); d = a.label("PD")
        a(f"{l}:")
        a(loads)
        a("s_waitcnt vmcnt(0)")
        self.cmp_regs(regs, sTAG)
        a(f"s_cbranch_scc1 {d}\ns_sleep {sleep}\ns_sub_u32 {sSPIN}, {sSPIN}, 1\ns_cbranch_scc0 {l}\ns_branch L_bail\n{d}:")

    def set_flag(self, soff):
        self.a(f"v_mov_b32 v1, {sTAG}\ns_mov_b64 exec, 1\nbuffer_store_dword v1, off, {SWS}, {soff} sc1\ns_mov_b64 exec, -1")

    def flag4(self, dst, idx, base):
        self.a(f"s_lshr_b32 {dst}, {idx}, 2\ns_lshl_b32 {dst}, {dst}, 7\ns_and_b32 s73, {idx}, 3\ns_lshl_b32 s73, s73, 2\n"
               f"s_add_u32 {dst}, {dst}, s73\ns_add_u32 {dst}, {dst}, {base}")

    def go_wait(self, base, vt, sleep):
        self.a(f"s_and_b32 s92, s2, 7\ns_lshl_b32 s92, s92, 7\ns_add_u32 s92, s92, {base}")
        self.poll(f"s_mov_b64 exec, 1\nbuffer_load_dword v{vt}, off, {SWS}, s92 sc1\ns_waitcnt vmcnt(0)\nv_readfirstlane_b32 s73, v{vt}\ns_mov_b64 exec, -1\nv_mov_b32 v{vt}, s73", [vt], sleep=sleep)

    def tag(self):
        self.a(f"s_mul_i32 {sTAG}, {sTAG}, 0x9E3779B1\ns_add_u32 {sTAG}, {sTAG}, 0x7F4A7C15")

    def prologue(self):
        a = self.a
        a(f"""
s_cmp_ge_u32 s2, 256
s_cbranch_scc1 L_end
s_load_dwordx16 s[4:19], s[0:1], 0
s_load_dwordx8 s[20:27], s[0:1], 64
v_lshrrev_b32 v1, 6, v0
v_and_b32 v0, 63, v0
v_readfirstlane_b32 {sW}, v1
s_and_b32 {sP}, s2, 31
s_lshr_b32 {sJ}, s2, 5
""")
        if self.stamps:
            a(f"{self.clk} s[74:75]")
        if self.opt("padto", 0):
            a("s_memrealtime s[76:77]")
        a(f"""
v_lshl_add_u32 v4, v1, 6, v0
v_mov_b32 v2, {L_MISC}
v_mov_b32 v3, 1
v_lshlrev_b32 v7, 4, v0
s_mul_i32 s94, {sP}, 2304
s_mul_i32 s95, {sJ}, 144
s_lshl_b32 s91, {sJ}, 2
s_add_u32 s91, s91, {sW}
s_mov_b32 s30, 2359296
s_mov_b32 s31, 0x20000
s_mov_b32 {sSPIN}, {SPIN_MAX}
s_cmp_ge_u32 {sW}, 4
s_waitcnt lgkmcnt(0)
""")
        if self.stamps:
            a(f"s_mov_b32 s{STAMPS[0]}, s74")
            for r in STAMPS[1:]:
                a(f"s_mov_b32 s{r}, 0")
        a("s_cbranch_scc1 L_lwave")

    def kv_addr(self):
        a = self.a
        a(f"""
v_and_b32 v84, 31, v0
v_lshrrev_b32 v85, 5, v0
v_lshlrev_b32 v{self.vK}, 5, v84
v_lshl_add_u32 v{self.vK}, v85, 4, v{self.vK}
v_mov_b32 v86, {OOB}
v_lshlrev_b32 v{self.vKX}, 2, v84
v_cmp_lt_u32 vcc, 31, v0
v_subrev_u32 v87, 64, v{self.vK}
v_cndmask_b32 v{self.vKX}, v{self.vKX}, v86, vcc
v_cmp_eq_u32 vcc, 20, v84
s_and_b32 s73, {sW}, 3
v_cndmask_b32 v87, v86, v87, vcc
v_cmp_gt_u32 vcc, 18, v84
s_lshl_b32 s96, s73, 14
v_cndmask_b32 v{self.vV}, v87, v{self.vK}, vcc
s_add_u32 s96, s96, {WS_K16}
s_lshl_b32 s97, s73, 11
s_add_u32 s97, s97, {WS_KX}
s_mul_i32 s98, s73, {32*VPITCH}
s_add_u32 s98, s98, {WS_VF}
""")

    def ld_k(self, t, slot):
        adv = "\ns_add_u32 s96, s96, 4096" if t % 4 == 3 else ""
        return (f"buffer_load_dwordx4 {vr(self.AK+4*slot,4)}, v{self.vK}, {SWS}, s96 offen offset:{1024*(t%4)} sc1" + adv,
                f"buffer_load_dword v{self.AKX+slot}, v{self.vKX}, {SWS}, s97 offen offset:{128*t} sc1")

    def ld_v(self, t, slot):
        adv = f"\ns_add_u32 s98, s98, {4*VPITCH}" if t % 2 == 1 else ""
        o = 2 * VPITCH * (t % 2)
        return (f"buffer_load_dwordx4 {vr(self.AV+8*slot,4)}, v{self.vV}, {SWS}, s98 offen offset:{o} sc1",
                f"buffer_load_dwordx4 {vr(self.AV+8*slot+4,4)}, v{self.vV}, {SWS}, s98 offen offset:{o+VPITCH} sc1" + adv)

    NFIRST = 4

    def kv_loads(self):
        for t in range(self.NFIRST):
            for x in self.ld_k(t, t) + self.ld_v(t, t):
                self.a(x)

    def e_front(self):
        a = self.a
        a("s_setprio 3\ns_mov_b32 s28, s4\ns_mov_b32 s29, s5")
        for k in range(8):
            a(f"""
s_and_b32 s91, s91, 31
s_mul_i32 s90, s91, 73728
s_mul_i32 m0, s91, {XP}
s_add_u32 s90, s90, s94
s_add_u32 s91, s91, 4
buffer_load_dwordx4 v7, {SX}, s90 offen lds
s_add_u32 m0, m0, {32*XP - 1152}
s_nop 0
buffer_load_dwordx4 v7, {SX}, s90 offen offset:1152 lds
""")
        a(f"""
s_load_dword {sTAG}, s[26:27], {WS_EPOCH}
v_lshrrev_b32 v20, 3, v0
s_mov_b32 s73, 73728
v_mul_lo_u32 v21, v20, s73
v_lshrrev_b32 v22, 4, v0
v_xor_b32 v22, v22, v0
v_and_b32 v22, 7, v22
v_lshl_add_u32 v21, v22, 4, v21
s_and_b32 s90, {sW}, 1
s_mul_i32 s90, s90, {16*73728}
s_lshr_b32 s73, {sW}, 1
s_mul_i32 s73, s73, 1152
s_add_u32 s90, s90, s73
s_add_u32 s90, s90, s94
s_add_u32 s90, s90, 1024
s_lshl_b32 s91, {sW}, 11
s_add_u32 m0, s91, {L_X2}
v_xor_b32 v22, 64, v21
buffer_load_dwordx4 v21, {SX}, s90 offen lds
s_add_u32 m0, s91, {L_X2 + 1024}
s_add_u32 s90, s90, {8*73728}
buffer_load_dwordx4 v22, {SX}, s90 offen lds
s_cmp_lt_u32 {sJ}, 4
s_cselect_b32 s36, s14, s16
s_cselect_b32 s37, s15, s17
s_mov_b32 s38, 20736
s_mov_b32 s39, 0x20000
v_mul_u32_u24 v5, 36, v4
v_lshlrev_b32 v6, 1, v4
s_and_b32 s73, {sJ}, 3
s_lshl_b32 s92, s73, 3
""")
        self.srd(SG, 20, 1152)
        s = a.label("KV3")
        a(f"""
buffer_load_dwordx3 v[24:26], v5, {SKV}, s92 offen
buffer_load_ushort v27, v6, {SG}, 0 offen
v_add_u32 v5, {256*36}, v5
buffer_load_dwordx3 v[28:30], v5, {SKV}, s92 offen
buffer_load_ushort v31, v6, {SG}, 0 offen offset:512
s_cmp_gt_u32 {sW}, 0
s_cbranch_scc1 {s}
v_add_u32 v5, {256*36}, v5
buffer_load_dwordx3 v[40:42], v5, {SKV}, s92 offen
buffer_load_ushort v43, v6, {SG}, 0 offen offset:1024
{s}:
s_barrier
""")
        self.stamp(6, 3)
        self.srd(SWS, 26, WS_SIZE)
        a(f"""
v_lshrrev_b32 v7, 7, v4
v_lshlrev_b32 v7, 7, v7
v_lshl_add_u32 v7, v4, 4, v7
v_add_u32 v7, {L_P2KV}, v7
v_and_b32 v14, 15, v0
v_lshrrev_b32 v15, 4, v0
v_and_b32 v17, 31, v0
v_lshrrev_b32 v18, 5, v0
v_bfe_u32 v22, v0, 2, 2
v_lshlrev_b32 v22, 4, v22
v_and_b32 v23, 1, v0
v_lshl_add_u32 v22, v23, 3, v22
v_mul_u32_u24 v16, 2176, v15
v_add_u32 v16, v16, v22
v_lshl_add_u32 v12, v15, 7, v22
v_add_u32 v12, {512*16 + 512}, v12
v_add_u32 v19, {L_P2KV}, v16
v_add_u32 v10, {L_P2KV}, v12
v_add_u32 v16, {L_P2Q}, v16
v_add_u32 v12, {L_P2Q}, v12
s_lshl_b32 s73, {sW}, 4
v_add_u32 v21, s73, v14
v_mul_u32_u24 v20, {XP}, v21
v_lshl_add_u32 v20, v15, 8, v20
v_lshrrev_b32 v22, 1, v21
v_xor_b32 v22, v22, v15
v_and_b32 v22, 7, v22
v_lshlrev_b32 v22, 4, v22
v_lshl_add_u32 v11, v21, 7, v22
v_add_u32 v11, {L_X2}, v11
v_xor_b32 v9, 64, v11
s_lshl_b32 s90, {sP}, 1
s_lshr_b32 s73, {sW}, 1
s_add_u32 s90, s90, s73
s_and_b32 s91, {sW}, 1
s_mov_b32 s92, {(LOG2E_BITS | 0x80000000):#x}
s_lshl_b32 s99, {sW}, 6
s_add_u32 s99, s99, {L_G}
""")
        RG, XF, AK_ = 32, 160, 252
        def wrd(b1, b2, T, dst):
            base, off = (b1, T * 128) if T < 16 else (b2, (T - 16) * 512)
            a(f"ds_read_b64_tr_b16 {vr(dst,2)}, {base} offset:{off}\nds_read_b64_tr_b16 {vr(dst+2,2)}, {base} offset:{off+64}")
        def land():
            s = a.label("KW")
            a(f"s_waitcnt vmcnt(0)\nds_write_b128 v7, v[24:27]\nds_write_b128 v7, v[28:31] offset:{4096+256}")
            a(f"s_cmp_gt_u32 {sW}, 0\ns_cbranch_scc1 {s}\nds_write_b128 v7, v[40:43] offset:{8192+512}\n{s}:")
            self.stamp(1, 3)
            self.add1(CX)
            self.wait(CX, 4, sleep=0)
            self.tag()
            self.stamp(2, 3)
        def kv_gemm(swap):
            acc = vr(AK_, 4)
            def rd(T):
                wrd("v19", "v10", T, 44 + 4 * (T % 5))
                if T < 16:
                    a(f"ds_read_b128 {vr(XF+4*T,4)}, v20 offset:{T*16}")
                else:
                    a(f"ds_read_b128 {vr(XF+4*T,4)}, {'v11' if T == 16 else 'v9'}")
            for T in range(4):
                rd(T)
            for T in range(18):
                if T + 4 < 18:
                    rd(T + 4)
                a(f"s_waitcnt lgkmcnt({3 * (min(T + 5, 18) - T - 1)})")
                W, X = vr(44 + 4 * (T % 5), 4), vr(XF + 4 * T, 4)
                A, B = (X, W) if swap else (W, X)
                a(f"v_mfma_f32_16x16x32_bf16 {acc}, {A}, {B}, {'0' if T == 0 else acc}")
            self.add1(CK)
        kpath = a.label("EK"); done = a.label("EKD")
        a(f"s_cmp_lt_u32 {sJ}, 4\ns_cbranch_scc1 {kpath}")
        a(f"""
s_lshl_b32 s90, s90, 1
s_add_u32 s90, s90, s91
s_mul_i32 s90, s90, {VPITCH}
s_add_u32 s90, s90, {WS_VF}
s_sub_u32 s73, {sJ}, 4
s_lshl_b32 s73, s73, 2
v_add_u32 v36, s73, v14
v_cmp_eq_u32 vcc, 7, v14
v_lshrrev_b32 v37, 1, v15
v_cndmask_b32 v36, v36, 18, vcc
v_lshlrev_b32 v36, 5, v36
v_lshl_add_u32 v36, v37, 3, v36
v_and_b32 v37, 1, v15
v_lshl_add_u32 v36, v37, 4, v36
v_mov_b32 v37, 0x3f803f80
v_lshl_add_u32 v38, v15, 4, s99
s_mov_b32 s88, 0x000f000f
s_cmp_eq_u32 {sJ}, 7
s_cmov_b32 s88, 0x00bf00bf
""")
        land()
        kv_gemm(True)
        a(f"""
v_cvt_pk_bf16_f32 v22, v{AK_}, v{AK_+1}
v_cvt_pk_bf16_f32 v23, v{AK_+2}, v{AK_+3}
v_cndmask_b32 v22, v22, v37, vcc
v_cndmask_b32 v23, v23, v37, vcc
s_mov_b32 exec_lo, s88
s_mov_b32 exec_hi, s88
buffer_store_dwordx2 v[22:23], v36, {SWS}, s90 offen sc1
s_mov_b64 exec, -1
""")
        for r in range(4):
            a(f"v_mul_f32 v{AK_+r}, s92, v{AK_+r}\nv_exp_f32 v{AK_+r}, v{AK_+r}")
        for r in range(4):
            a(f"v_add_f32 v{AK_+r}, 1.0, v{AK_+r}\nv_rcp_f32 v{AK_+r}, v{AK_+r}")
        a(f"""
s_mov_b32 exec_lo, 0x00400040
s_mov_b32 exec_hi, 0x00400040
ds_write_b128 v38, {vr(AK_,4)}
s_branch {done}
{kpath}:
s_lshl_b32 s91, s91, 4
v_add_u32 v37, s91, v14
v_lshlrev_b32 v36, 5, v37
v_lshlrev_b32 v37, 2, v37
v_lshl_add_u32 v38, v14, 2, s99
s_lshl_b32 s88, s90, 10
s_lshl_b32 s73, {sJ}, 3
s_add_u32 s88, s88, s73
s_add_u32 s88, s88, {WS_K16}
s_lshl_b32 s90, s90, 7
s_add_u32 s90, s90, {WS_KX}
s_cmp_lg_u32 {sJ}, 3
s_cmov_b32 s90, {OOB}
s_mov_b32 s91, {QSCALE_BITS:#x}
""")
        land()
        kv_gemm(False)
        a(f"""
v_mul_f32 v39, s92, v{AK_+2}
v_mul_f32 v{AK_}, s91, v{AK_}
v_mul_f32 v{AK_+1}, s91, v{AK_+1}
v_mul_f32 v{AK_+2}, s91, v{AK_+2}
v_mul_f32 v{AK_+3}, s91, v{AK_+3}
v_cvt_pk_bf16_f32 v22, v{AK_}, v{AK_+1}
v_cvt_pk_bf16_f32 v23, v{AK_+2}, v{AK_+3}
s_mov_b64 exec, 0xffff
buffer_store_dwordx2 v[22:23], v36, {SWS}, s88 offen sc1
s_mov_b32 exec_lo, 0xffff0000
buffer_store_dword v22, v37, {SWS}, s90 offen sc1
v_exp_f32 v39, v39
s_nop 0
v_add_f32 v39, 1.0, v39
v_rcp_f32 v39, v39
s_nop 0
ds_write_b32 v38, v39
{done}:
s_mov_b64 exec, -1
""")
        self.stamp(7, 3)
        a(f"""
s_lshl_b32 s73, {sP}, 3
s_add_u32 s73, s73, {sJ}
s_lshl_b32 s73, s73, 4
s_add_u32 s91, s73, {WS_FKV}
v_bfe_u32 v22, v0, 2, 2
v_lshl_add_u32 v19, v18, 3, v22
v_lshlrev_b32 v19, 6, v19
v_bfe_u32 v22, v0, 4, 1
v_lshl_add_u32 v19, v22, 5, v19
v_and_b32 v22, 3, v0
v_lshl_add_u32 v19, v22, 3, v19
s_and_b32 s73, {sW}, 1
s_mul_i32 s73, s73, {L_WQ1 - L_WQ0}
s_add_u32 s73, s73, {L_WQ0}
v_add_u32 v19, s73, v19
s_lshr_b32 s73, {sW}, 1
s_lshl_b32 s73, s73, 5
v_add_u32 v21, s73, v17
v_mul_u32_u24 v13, {XP}, v21
v_lshl_add_u32 v13, v18, 4, v13
v_mul_u32_u24 v26, 48, v4
v_add_u32 v26, {L_QS + 36}, v26
v_lshrrev_b32 v22, 1, v21
v_xor_b32 v22, v22, v18
v_and_b32 v22, 7, v22
v_lshlrev_b32 v22, 4, v22
v_lshl_add_u32 v6, v21, 7, v22
v_add_u32 v6, {L_X2}, v6
v_xor_b32 v7, 32, v6
v_xor_b32 v8, 64, v6
v_xor_b32 v9, 0x60, v6
v_mul_u32_u24 v22, 48, v21
v_add_u32 v22, {L_QS}, v22
v_lshl_add_u32 v23, v18, 3, v22
v_mul_u32_u24 v24, 3044, v18
v_add_u32 v24, v24, v22
s_lshl_b32 s73, {sW}, 4
v_add_u32 v25, s73, v14
v_mul_u32_u24 v25, 48, v25
v_lshl_add_u32 v25, v15, 3, v25
v_add_u32 v25, {L_QS + 3*3072 + 20}, v25
v_mov_b32 v27, 0
v_lshlrev_b32 v28, 4, v0
s_lshl_b32 s93, {sW}, 10
s_add_u32 s93, s93, {WS_FKV}
""")
        self.kv_addr()
        nf = a.label("NF")
        a(f"s_waitcnt vmcnt(0)\ns_mov_b64 exec, 1\nds_add_rtn_u32 v1, v2, v3 offset:{CF}\ns_mov_b64 exec, -1\ns_waitcnt lgkmcnt(0)")
        a(f"v_readfirstlane_b32 s73, v1\ns_cmp_lg_u32 s73, 3\ns_cbranch_scc1 {nf}")
        self.set_flag("s91")
        a(f"{nf}:")
        self.stamp(3, 3)
        RX, AM, AXQ = 64, 232, 248
        def rdm(t):
            b = RG + 8 * (t % 4)
            a(f"ds_read_b64_tr_b16 {vr(b,2)}, v19 offset:{t*1024}\nds_read_b64_tr_b16 {vr(b+2,2)}, v19 offset:{t*1024+256}")
            a(f"ds_read_b128 {vr(b+4,4)}, v13 offset:{t*32}" if t < 32 else f"ds_read_b128 {vr(b+4,4)}, v{6+t-32}")
        def mm(t):
            b = RG + 8 * (t % 4)
            a(f"v_mfma_f32_32x32x16_bf16 {vr(AM,16)}, {vr(b,4)}, {vr(b+4,4)}, {'0' if t == 0 else vr(AM,16)}")
        def stage(t0, t1):
            for t in range(t0, min(t0 + 3, t1)):
                rdm(t)
            for t in range(t0, t1):
                if t + 3 < t1:
                    rdm(t + 3)
                a(f"s_waitcnt lgkmcnt({3 * (min(t + 4, t1) - t - 1)})")
                mm(t)
        self.wait(C0A, 2, sleep=0)
        self.stamp(4, 3)
        stage(0, 12)
        self.add1(CE)
        self.wait(C0B, 2, sleep=0)
        flags = f"buffer_load_dword v84, v28, {SWS}, s93 offen sc1"
        stage(12, 20)
        self.wait(C0D, 2, sleep=0)
        stage(20, 28)
        self.wait(C0C, 2, sleep=0)
        self.stamp(9, 3)
        a(flags)
        seq = []
        xs = list(range(18))
        for t in range(28, 36):
            seq.append(("m", t))
            for _ in range(3 if t < 30 else 2):
                seq.append(("x", xs.pop(0)))
        assert not xs
        cost = lambda it: 3 if it[0] == "m" else 2
        def issue(it):
            if it[0] == "m": rdm(it[1])
            else: wrd("v16", "v12", it[1], RX + 4 * (it[1] % 3))
        AH = 3
        for it in seq[:AH]:
            issue(it)
        a(f"ds_read_b32 v31, v2 offset:{CE}")
        for i, it in enumerate(seq):
            ahead = sum(cost(x) for x in seq[i + 1:i + AH]) + (1 if i < AH else 0)
            a(f"s_waitcnt lgkmcnt({ahead})")
            if it[0] == "m":
                mm(it[1])
            else:
                T = it[1]
                a(f"v_mfma_f32_16x16x32_bf16 {vr(AXQ,4)}, {vr(RX+4*(T%3),4)}, {vr(XF+4*T,4)}, {'0' if T == 0 else vr(AXQ,4)}")
            if i + AH < len(seq):
                issue(seq[i + AH])
        self.stamp(8, 3)
        miss = a.label("KM")
        a("s_waitcnt vmcnt(0)")
        self.cmp_regs([84], sTAG)
        a(f"s_cselect_b32 s89, 1, 0\ns_cbranch_scc0 {miss}")
        self.kv_loads()
        a(f"{miss}:")
        self.stamp(11, 3)
        ok = a.label("CEOK")
        a(f"v_readfirstlane_b32 s73, v31\ns_cmp_ge_u32 s73, 4\ns_cbranch_scc1 {ok}")
        self.wait(CE, 4, sleep=0)
        a(f"{ok}:")
        a(f"ds_write_b32 v26, v27\nv_cvt_pk_bf16_f32 v{AXQ}, v{AXQ}, v{AXQ+1}\nv_cvt_pk_bf16_f32 v{AXQ+1}, v{AXQ+2}, v{AXQ+3}")
        a(f"s_mov_b32 exec_hi, 0\nds_write2_b32 v25, v{AXQ}, v{AXQ+1} offset0:0 offset1:1\ns_mov_b64 exec, -1")
        m1 = a.label("QM1"); md = a.label("QMD")
        a(f"s_bitcmp1_b32 {sW}, 0\ns_cbranch_scc1 {m1}")
        off = lambda c: (c // 18) * 3072 + (c % 18) * 2
        for m in range(2):
            if m == 1:
                a(f"s_branch {md}\n{m1}:")
            for k in range(8):
                c0 = 32 * m + 8 * (k // 2) + 2 * (k % 2)
                d = off(c0 + 4) - off(c0)
                assert d in (8, 3044)
                a(f"v_cvt_pk_bf16_f32 v{AM+k}, v{AM+2*k}, v{AM+2*k+1}")
                a(f"ds_write_b32 {'v23' if d == 8 else 'v24'}, v{AM+k} offset:{off(c0)}")
        a(f"{md}:")
        self.add1(C1)
        have = a.label("KH")
        a(f"s_cmp_eq_u32 s89, 1\ns_cbranch_scc1 {have}")
        self.poll(flags, [84], sleep=12)
        self.kv_loads()
        a(f"{have}:")
        self.stamp(10, 3); self.stamp(10)
        a("s_setprio 2")

    def panel_setup(self, nw, va=14):
        self.a(f"""
v_lshrrev_b32 v{va}, 2, v0
v_mul_u32_u24 v{va}, 1152, v{va}
v_and_b32 v{va+1}, 3, v0
v_lshl_add_u32 v{va}, v{va+1}, 4, v{va}
v_mul_u32_u24 v{va+1}, 1152, v0
s_and_b32 s73, {sW}, {nw-1}
s_mul_i32 s84, s73, {16*1152}
s_add_u32 s84, s84, s95
s_lshl_b32 s85, s73, 10
""")

    def panel_loads(self, srd, l0, l1, lx, padded, end, nw, va=14):
        a = self.a
        lp = a.label("PNL")
        a(f"""
{lp}:
s_add_u32 m0, s85, {l0}
s_add_u32 s83, s84, 128
buffer_load_dwordx4 v{va}, {srd}, s84 offen lds
s_add_u32 m0, s85, {l1 - 64}
s_lshr_b32 s82, s85, 2
buffer_load_dwordx4 v{va}, {srd}, s84 offen offset:64 lds
""")
        if padded:
            a("s_lshr_b32 s73, s85, 13\ns_lshl_b32 s73, s73, 7\ns_add_u32 s82, s82, s73")
        a(f"""
s_add_u32 m0, s82, {lx}
s_mov_b64 exec, 0xffff
buffer_load_dwordx4 v{va+1}, {srd}, s83 offen lds
s_mov_b64 exec, -1
s_add_u32 s85, s85, {1024*nw}
s_add_u32 s84, s84, {16*nw*1152}
s_cmp_lt_u32 s85, {1024*end}
s_cbranch_scc1 {lp}
""")

    def l_front(self):
        a = self.a
        a(f"""
s_load_dword {sTAG}, s[26:27], {WS_EPOCH}
v_lshl_add_u32 v5, v0, 2, v2
v_mov_b32 v6, 0
ds_write_b32 v5, v6
s_sub_u32 s99, {sW}, 4
v_and_b32 v18, 31, v0
v_lshrrev_b32 v19, 5, v0
s_lshl_b32 s89, s99, 3
s_add_u32 s89, s89, {sJ}
s_cmp_ge_u32 s89, 18
s_cselect_b32 s89, 99, s89
v_bfe_u32 v20, v0, 2, 1
v_lshlrev_b32 v20, 4, v20
v_bfe_u32 v21, v0, 3, 2
v_lshl_add_u32 v20, v21, 2, v20
v_and_b32 v21, 3, v0
v_add_u32 v20, v20, v21
""")
        self.srd(SWS, 26, WS_SIZE)
        self.srd(SWQ, 12, 663552)
        FPRE = self.opt("fpre", 8)
        def fsetup():
            a(f"""
s_lshl_b32 s73, s89, 5
v_add_u32 v44, s73, v18
v_lshrrev_b32 v45, 1, v44
v_and_b32 v46, 1, v44
v_cmp_eq_u32 vcc, 1, v44
v_mov_b32 v47, 288
v_cndmask_b32 v45, v45, v47, vcc
v_cndmask_b32 v46, v46, 0, vcc
v_and_b32 v47, 1, v45
v_lshlrev_b32 v47, 31, v47
v_or_b32 v17, 1.0, v47
v_cvt_f32_u32 v45, v45
v_cvt_f32_u32 v46, v46
v_mul_f32 v45, {f32bits(1/576):#x}, v45
v_mul_f32 v46, 0x3e800000, v46
v_lshlrev_b32 v47, 3, v19
v_cvt_f32_u32 v47, v47
v_fma_f32 v46, v47, v45, v46
v_mul_f32 v55, 0x41800000, v45
""")
            for jj in range(8):
                a(f"s_mov_b32 s73, {f32bits(jj):#x}\nv_fma_f32 v{56+jj}, s73, v45, v46")
        def fgen(t):
            if t:
                a(f"s_mov_b32 s73, {f32bits(t):#x}")
            for jj in range(8):
                if t:
                    a(f"v_fma_f32 v{64+jj}, s73, v55, v{56+jj}\nv_cos_f32 v{64+jj}, v{64+jj}")
                else:
                    a(f"v_cos_f32 v{64+jj}, v{56+jj}")
            for k in range(4):
                a(f"v_cvt_pk_bf16_f32 v{104+4*t+k}, v{64+2*k}, v{65+2*k}")
        npre = a.label("NPRE"); n7 = a.label("NW7")
        if "wearly" in self.opts:
            a(f"v_mov_b32 v23, 0\ns_mov_b32 s98, {OOB}\ns_cmp_lg_u32 {sW}, 7\ns_cbranch_scc1 {n7}")
            self.wt_loads()
        a(f"{n7}:\ns_cmp_eq_u32 s89, 99\ns_cbranch_scc1 {npre}")
        fsetup()
        for t in range(FPRE):
            fgen(t)
        a(f"{npre}:\ns_waitcnt lgkmcnt(0)")
        self.tag()
        a("s_barrier")
        wqd = a.label("WQD")
        a(f"s_cmp_lt_u32 {sW}, 6\ns_cbranch_scc1 {wqd}")
        self.panel_setup(2)
        self.panel_loads(SWQ, L_WQ0, L_WQ1, L_P2Q, True, 20, 2)
        a("s_waitcnt vmcnt(12)")
        self.add1(C0A)
        self.panel_loads(SWQ, L_WQ0, L_WQ1, L_P2Q, True, 26, 2)
        self.wait(CK, 4, sleep=0)
        self.panel_loads(SWQ, L_WQ0, L_WQ1, L_P2Q, True, 36, 2)
        self.stamp(6, 3)
        a("s_waitcnt vmcnt(24)")
        self.add1(C0B)
        a("s_waitcnt vmcnt(12)")
        self.add1(C0D)
        a("s_waitcnt vmcnt(0)")
        self.add1(C0C)
        self.stamp(1, 3)
        a(f"{wqd}:")
        nod = a.label("NOD")
        a(f"s_cmp_eq_u32 s89, 99\ns_cbranch_scc1 {nod}")
        for t in range(FPRE, 18):
            fgen(t)
        self.stamp(9, 3)
        a(f"""
v_mul_u32_u24 v25, {XP}, v20
v_lshl_add_u32 v25, v19, 4, v25
v_lshrrev_b32 v22, 1, v20
v_xor_b32 v22, v22, v19
v_and_b32 v22, 7, v22
v_lshlrev_b32 v22, 4, v22
v_lshl_add_u32 v6, v20, 7, v22
v_add_u32 v6, {L_X2}, v6
v_xor_b32 v7, 32, v6
v_xor_b32 v8, 64, v6
v_xor_b32 v9, 0x60, v6
v_lshlrev_b32 v22, 12, v18
v_lshl_add_u32 v22, v19, 5, v22
s_lshl_b32 s90, s89, 17
s_lshl_b32 s73, {sP}, 7
s_add_u32 s90, s90, s73
s_add_u32 s90, s90, {WS_T}
""")
        RG = 44
        def frag(t, n, q):
            return vr(RG + 16 * (t % 3) + 8 * n + 4 * q, 4)
        def rd(t):
            for n in range(2):
                for q in range(2):
                    ks = t + 18 * q
                    if ks < 32:
                        a(f"ds_read_b128 {frag(t,n,q)}, v25 offset:{n*32*XP + ks*32}")
                    else:
                        a(f"ds_read_b128 {frag(t,n,q)}, v{6+ks-32} offset:{n*4096}")
        def dft(t0, t1):
            for t in range(t0, min(t0 + 2, t1)):
                rd(t)
            for t in range(t0, t1):
                if t + 2 < t1:
                    rd(t + 2)
                a(f"s_waitcnt lgkmcnt({4 * (min(t+3, t1) - t - 1)})")
                for n in range(2):
                    for q in range(2):
                        acc = vr(176 + 32 * n + 16 * q, 16)
                        a(f"v_mfma_f32_32x32x16_bf16 {acc}, {frag(t,n,q)}, {vr(104+4*t,4)}, {'0' if t == 0 else acc}")
        DPRE = self.opt("dpre", 10)
        if DPRE:
            self.wait(CK, 4)
            dft(0, DPRE)
        a("s_setprio 3")
        self.wait(C1, 4)
        self.stamp(3, 3)
        dft(DPRE, 18)
        self.stamp(8, 3)
        self.wait(CV, 4)
        for n in range(2):
            b = 176 + 32 * n
            for r in range(16):
                a(f"v_fma_f32 v{b+r}, v17, v{b+16+r}, v{b+r}")
            for k in range(8):
                a(f"v_cvt_pk_bf16_f32 v{b+k}, v{b+2*k}, v{b+2*k+1}")
            a(f"buffer_store_dwordx4 {vr(b,4)}, v22, {SWS}, s90 offen offset:{64*n} sc1")
            a(f"buffer_store_dwordx4 {vr(b+4,4)}, v22, {SWS}, s90 offen offset:{64*n+16} sc1")
        a("s_waitcnt vmcnt(0)")
        self.add1(CD)
        self.stamp(4, 3); self.stamp(4)
        a(f"{nod}:")

    def g_gen(self):
        a = self.a
        N = 1.0 / (M.S * M.D)
        skip = a.label("GS"); nx = a.label("GNX"); nk = a.label("GNK")
        assert all((f * 1821) >> 16 == f // 36 for f in range(864))
        assert all((f * 21846) >> 16 == f // 3 for f in range(24))
        a(f"""
s_mov_b32 s99, {OOB}
s_cmp_ge_u32 s2, 216
s_cbranch_scc1 {skip}
s_lshl_b32 s90, s2, 2
s_lshl_b32 s99, s2, 12
s_add_u32 s99, s99, {WS_G}
s_mul_i32 s91, s90, 1821
s_lshr_b32 s91, s91, 16
s_mul_i32 s73, s91, 36
s_sub_u32 s92, s90, s73
s_mul_i32 s93, s91, 21846
s_lshr_b32 s93, s93, 16
s_mul_i32 s73, s93, 3
s_sub_u32 s91, s91, s73
s_mul_i32 s93, s93, 72
s_lshl_b32 s73, s91, 5
s_add_u32 s93, s93, s73
v_mov_b32 v44, v20
s_cmp_lg_u32 s91, 2
s_cbranch_scc1 {nx}
v_mov_b32 v44, v18
{nx}:
v_add_u32 v44, s93, v44
s_lshl_b32 s73, s92, 3
v_lshl_add_u32 v45, v19, 2, s73
v_mul_u32_u24 v45, v45, v44
v_mul_u32_u24 v47, 5, v44
s_mov_b32 s73, {f32bits(1/576):#x}
s_mov_b32 s93, {f32bits(2*N):#x}
""")
        for fr in range(4):
            for cq in range(4):
                a(f"v_cvt_f32_u32 v46, v45\nv_mul_f32 v46, s73, v46\nv_fract_f32 v46, v46")
                a(f"v_cos_f32 v{48+2*cq}, v46\nv_sin_f32 v{49+2*cq}, v46")
                a("v_add_u32 v45, v45, v44" if cq < 3 else "v_add_u32 v45, v45, v47")
            for cq in range(4):
                a(f"v_mul_f32 v{48+2*cq}, s93, v{48+2*cq}\nv_mul_f32 v{49+2*cq}, s93, -v{49+2*cq}")
            if fr == 0:
                a(f"""
s_cmp_lg_u32 s92, 0
s_cbranch_scc1 {nk}
s_mov_b32 exec_hi, 0
v_mov_b32 v48, {f32bits(N):#x}
v_lshlrev_b32 v49, 31, v44
v_or_b32 v49, v48, v49
s_mov_b64 exec, -1
{nk}:
""")
            for k in range(4):
                a(f"v_cvt_pk_bf16_f32 v{240+4*fr+k}, v{48+2*k}, v{49+2*k}")
        a(f"{skip}:")

    WB = 112

    def poison(self):
        a = self.a
        a(f"v_lshlrev_b32 v24, 4, v0\nv_mov_b32 v28, -1\nv_mov_b32 v29, -1\nv_mov_b32 v30, -1\nv_mov_b32 v31, -1")
        a(f"s_mul_i32 s90, {sP}, {8*9216}\ns_add_u32 s90, s90, {WS_OF}\ns_mul_i32 s91, {sJ}, 9216\ns_add_u32 s91, s91, s90\ns_add_u32 s91, s91, 8192")
        a(f"buffer_store_dwordx4 v[28:31], v24, {SWS}, s91 offen sc1\ns_lshl_b32 s73, {sJ}, 10\ns_add_u32 s90, s90, s73")
        for i in range(8):
            a(f"buffer_store_dwordx4 v[28:31], v24, {SWS}, s90 offen sc1\ns_add_u32 s90, s90, 9216")

    def wt_loads(self):
        a = self.a
        self.srd(SWR, 6, 2048 * 578)
        self.srd(SWI, 8, 2048 * 578)
        a(f"""
v_and_b32 v26, 7, v0
v_lshrrev_b32 v27, 3, v0
v_mul_u32_u24 v22, 578, v26
v_mad_u32_u24 v22, v27, 18, v22
s_lshr_b32 s93, s2, 6
s_bfe_u32 s92, s2, 0x20004
s_and_b32 s88, s2, 15
s_lshl_b32 s90, s88, 7
s_lshl_b32 s73, s92, 3
s_add_u32 s90, s90, s73
s_mul_i32 s90, s90, 578
s_mul_i32 s73, s93, 144
s_add_u32 s90, s90, s73
""")
        for jr in range(4):
            for ri, srd in enumerate((SWR, SWI)):
                b = self.WB + 24 * ri + 6 * jr
                a(f"buffer_load_dwordx4 {vr(b,4)}, v22, {srd}, s90 offen\nbuffer_load_dword v{b+4}, v22, {srd}, s90 offen offset:16")
            if jr < 3:
                a(f"s_add_u32 s90, s90, {32*578}")
        a(f"""
s_mov_b32 s73, {9*8192}
v_mul_lo_u32 v23, v27, s73
v_lshl_add_u32 v23, v26, 4, v23
s_mul_i32 s98, s93, {72*8192}
s_lshl_b32 s73, s88, 8
s_add_u32 s98, s98, s73
s_and_b32 s73, s92, 1
s_lshl_b32 s73, s73, 7
s_add_u32 s98, s98, s73
s_lshr_b32 s73, s92, 1
s_lshl_b32 s73, s73, 12
s_add_u32 s98, s98, s73
s_add_u32 s98, s98, {WS_WT}
""")

    def wt_stores(self):
        a = self.a
        last = a.label("WL")
        a("s_mov_b32 s92, 0x05040100\ns_mov_b32 s93, 0x07060302")
        for x in range(10):
            if x == 9:
                a(f"s_cmp_lt_u32 s2, 192\ns_cbranch_scc1 {last}\ns_mov_b32 exec_lo, 0\ns_mov_b32 exec_hi, 0xff000000")
            t = self.WB + 48 + 4 * (x % 3)
            for ri in range(2):
                for pr in range(2):
                    lo = self.WB + 24 * ri + 12 * pr + x // 2
                    a(f"v_perm_b32 v{t+2*ri+pr}, v{lo+6}, v{lo}, {'s93' if x % 2 else 's92'}")
            a(f"buffer_store_dwordx4 {vr(t,4)}, v23, {SWS}, s98 offen sc1\ns_add_u32 s98, s98, 8192")
        a(f"s_mov_b64 exec, -1\n{last}:")

    def s_flag(self):
        a = self.a
        self.g_gen()
        a("s_setprio 3\nv_lshlrev_b32 v24, 4, v0")
        self.wait(CV, 4)
        self.stamp(3, 3)
        if "wearly" not in self.opts:
            self.wt_loads()
            a("s_waitcnt vmcnt(0)")
        self.wt_stores()
        for fr in range(4):
            a(f"buffer_store_dwordx4 {vr(240+4*fr,4)}, v24, {SWS}, s99 offen offset:{1024*fr} sc1")
        self.stamp(10, 3)
        self.flag4("s91", "s2", WS_FS)
        a("s_waitcnt vmcnt(0)")
        self.stamp(11, 3)
        a(f"s_cmp_lt_u32 {sJ}, 2\ns_cselect_b32 s90, 3, 2")
        self.wait(CD, "s90", sleep=2)
        self.set_flag("s91")
        self.add1(CW)
        self.stamp(6); self.stamp(2, 3)
        self.stage2_tables()

    def attention(self):
        a = self.a
        K0, KX0, V0, S0, O0, Q0, QX0 = self.AK, self.AKX, self.AV, self.AS, self.AO, self.AQ, self.AQX
        a(f"""
v_and_b32 v84, 31, v0
v_lshrrev_b32 v85, 5, v0
s_lshr_b32 s88, {sW}, 2
s_mul_i32 s73, s88, 6144
s_add_u32 s73, s73, {L_QS}
v_mul_u32_u24 v{self.vQ}, 48, v84
v_add_u32 v{self.vQ}, s73, v{self.vQ}
v_lshl_add_u32 v{self.vQX}, v85, 2, v{self.vQ}
v_add_u32 v{self.vQX}, 32, v{self.vQX}
v_lshl_add_u32 v{self.vQ}, v85, 4, v{self.vQ}
s_and_b32 s73, {sW}, 3
s_mul_i32 s73, s73, 2560
s_add_u32 s73, s73, {L_EX}
v_lshl_add_u32 v{self.vEX}, v0, 4, s73
s_add_u32 s73, s73, 2048
v_lshl_add_u32 v{self.vEX2}, v0, 3, s73
s_lshl_b32 s73, s88, 4
v_add_u32 v{self.vCT}, s73, v2
s_mul_i32 s73, s88, {CN - C1}
v_add_u32 v86, s73, v2
v_mov_b32 v{QX0+1}, 0
v_mov_b32 v{QX0+2}, 0
""")
        self.wait(C1, 4, sleep=0)
        self.stamp(5); self.stamp(5, 3)
        qmain = lambda q: f"ds_read_b128 {vr(Q0,4)}, v{self.vQ} offset:{1536*(q%4)}"
        qx = lambda q: f"ds_read_b32 v{QX0}, v{self.vQX} offset:{1536*(q%4)}\nds_read_b32 v{QX0+3}, v{self.vQX} offset:{1536*(q%4)}"
        a(qmain(0)); a(qx(0))
        issued = []
        for t in range(self.NFIRST):
            issued += [("K", t), ("X", t), ("V0", t), ("V1", t)]
        state = {"done": 0}
        def need(*keys):
            idx = max(issued.index(k) for k in keys) + 1
            if idx > state["done"]:
                state["done"] = idx
                return [f"s_waitcnt vmcnt({len(issued) - idx})"]
            return []
        def reload(kind, t):
            ins = self.ld_k(8 + t, t) if kind == "K" else self.ld_v(8 + t, t)
            issued.extend([("K", 8 + t), ("X", 8 + t)] if kind == "K" else [("V0", 8 + t), ("V1", 8 + t)])
            return list(ins)
        sreg = lambda g: S0 + 16 * (g % 2)
        oreg = lambda ps: O0 + 10 * (ps % 4)
        def qk16(g):
            return f"v_mfma_f32_32x32x16_bf16 {vr(sreg(g),16)}, {vr(K0+4*(g%8),4)}, {vr(Q0,4)}, 0"
        def qkx(g):
            return f"v_mfma_f32_32x32x8_bf16 {vr(sreg(g),16)}, {vr(KX0+2*((g%8)//2),2)}, {vr(QX0+2*(g%2),2)}, {vr(sreg(g),16)}"
        def pv(g, u):
            o = vr(oreg(g // 8), 16)
            c = "0" if (g // 8 < 4 and g % 8 == 0 and u == 0) else o
            return f"v_mfma_f32_32x32x16_bf16 {o}, {vr(V0+8*(g%8)+4*u,4)}, {vr(sreg(g)+4*u,4)}, {c}"
        kt = lambda g: (g % 8) + (8 if g >= 32 else 0)
        def kneed(g):
            t = kt(g)
            return need(("K", t), ("X", t), ("X", t ^ 1)) if ("X", t ^ 1) in issued else need(("K", t), ("X", t))
        def export(q):
            o = O0 + 10 * q
            return [f"ds_write_b128 v{self.vEX}, {vr(o,4)} offset:{10240*q}", f"ds_write_b128 v{self.vEX}, {vr(o+4,4)} offset:{10240*q+1024}",
                    f"ds_write_b64 v{self.vEX2}, {vr(o+8,2)} offset:{10240*q}",
                    f"s_mov_b64 exec, 1\nds_add_u32 v{self.vCT}, v3 offset:{CT+4*q}\ns_mov_b64 exec, -1"]
        for x in kneed(0) + ["s_waitcnt lgkmcnt(0)", qk16(0), qkx(0)]:
            a(x)
        for g in range(64):
            ps, t = divmod(g, 8)
            s = sreg(g)
            e = lambda i: f"v_exp_f32 v{s+i}, v{s+i}"
            c = lambda k: f"v_cvt_pk_bf16_f32 v{s+k}, v{s+2*k}, v{s+2*k+1}"
            seq = [e(0), e(1)]
            if g > 0:
                seq += need(("V1", kt(g - 1))) + [pv(g - 1, 1)]
                if g - 1 in range(24, 32):
                    seq += reload("V", (g - 1) % 8)
            seq += [e(2), e(3), c(0), e(4), c(1)]
            last = g == 63
            if not last:
                seq += kneed(g + 1) + (["s_waitcnt lgkmcnt(0)"] if t == 7 else []) + [qk16(g + 1)]
                if t == 6 and ps < 7:
                    seq.append(qmain(ps + 1))
            seq += [e(5), e(6), e(7), c(2), e(8), c(3)]
            if not last:
                seq.append(qkx(g + 1))
                if t == 6 and ps < 7:
                    seq.append(qx(ps + 1))
                if g + 1 in range(24, 32):
                    seq += reload("K", (g + 1) % 8)
            if g + self.NFIRST < 8:
                issued.extend([(k, g + self.NFIRST) for k in ("K", "X", "V0", "V1")])
            tail = [e(9), e(10), e(11), c(4), e(12), c(5)] + need(("V0", kt(g))) + [pv(g, 0), e(13), e(14), e(15), c(6), c(7)]
            if g + self.NFIRST < 8:
                tn = g + self.NFIRST
                ins = list(self.ld_k(tn, tn) + self.ld_v(tn, tn))
                for k, i in enumerate((9, 10, 11, 12)):
                    tail.insert(tail.index(e(i)) + 1, ins[k])
                if tn == 7:
                    tail.append(f"s_mov_b64 exec, 1\nds_add_u32 v2, v3 offset:{CV}\ns_mov_b64 exec, -1")
            if ps >= 5 and t == 0:
                ex = export(ps - 5)
                for k, i in enumerate((9, 10, 11, 12)):
                    tail.insert(tail.index(e(i)) + 1, ex[k])
            if g == 36:
                tail.append(f"ds_read_b32 v87, v86 offset:{C1}")
            if g == 38:
                ok = a.label("CNOK")
                tail.append(f"s_waitcnt lgkmcnt(0)\nv_readfirstlane_b32 s73, v87\ns_cmp_ge_u32 s73, 4\ns_cbranch_scc1 {ok}")
                tail.append(("wait", ok))
            for x in seq + tail:
                if isinstance(x, tuple):
                    self.wait(C1, 4, sleep=2, base="v86")
                    a(f"{x[1]}:")
                else:
                    a(x)
            if g == 7:
                self.stamp(11)
        a(pv(63, 1))
        for x in export(3):
            a(x)

    T64, T32A, TW1, TW2, T32B, NTAB = 0, 24, 27, 35, 43, 49
    NPRE = 35

    def make_tables(self):
        L = np.arange(64); Lm = (L & 15)[:, None]; Lg = (L >> 4)[:, None]
        jj = np.arange(8)[None, :]; r = np.arange(4)[None, :]
        def pk(v):
            b = M.bf(v.astype(np.float32)).astype(np.uint32)
            return (b[:, 0::2] | (b[:, 1::2] << 16)).astype(np.uint32)
        parts = lambda z: (z.real, z.imag, -z.imag)
        w = lambda n, x, y: np.exp(-2j * np.pi * ((x * y) % n) / n)
        f32 = lambda v: v.astype(np.float32).view(np.uint32)
        out = []
        for H in range(2):
            for k in range(3):
                for t in range(4):
                    for ks in range(2):
                        out.append(pk(parts(w(64, 16 * (t ^ (2 * H)) + Lm, 32 * (ks ^ H) + 16 * (jj >> 2) + 4 * Lg + (jj & 3)))[k]))
            for k in range(3):
                out.append(pk(parts(w(32, 8 * Lg + jj, 16 * H + Lm))[k]))
            for t in range(4):
                z = w(2048, 16 * (t ^ (2 * H)) + 4 * Lg + r, 16 * H + Lm)
                out += [f32(z.real), f32(z.imag)]
            for t in range(4):
                z = np.conj(w(2048, 16 * (t ^ (2 * H)) + Lm, 16 * H + 4 * Lg + r))
                out += [f32(z.real), f32(z.imag)]
            for k in range(3):
                for at in range(2):
                    out.append(pk(parts(w(32, 8 * (Lm >> 2) + 4 * at + (Lm & 3), 16 * (H ^ (jj >> 2)) + 4 * Lg + (jj & 3)))[k]))
        return np.concatenate([o.reshape(-1) for o in out])

    def tload(self, frag, dst):
        if self.tgroup != frag // 4:
            self.tgroup = frag // 4
            self.a(f"s_add_u32 s88, s87, {(frag // 4) * 4096}")
        self.a(f"buffer_load_dwordx4 {vr(dst,4)}, v5, {STB}, s88 offen offset:{(frag % 4) * 1024}")

    def stage2_tables(self):
        a = self.a
        a(f"""
s_getpc_b64 s[64:65]
s_add_u32 s64, s64, spectral_tables@rel32@lo+4
s_addc_u32 s65, s65, spectral_tables@rel32@hi+12
s_mov_b32 s66, {2*self.NTAB*1024}
s_mov_b32 s67, 0x20000
v_lshlrev_b32 v5, 4, v0
s_and_b32 s86, {sW}, 1
s_mul_i32 s87, s86, {self.NTAB*1024}
""")
        self.tgroup = None
        for f in range(24):
            self.tload(self.T64 + f, 16 + 4 * f)
        for f in range(3):
            self.tload(self.T32A + f, 240 + 4 * f)
        for f in range(8):
            self.tload(self.TW1 + f, 176 + 4 * f)

    def stage2(self):
        a = self.a
        A, P, Q, TW, WW, PK, TMP = 16, 112, 144, 176, 208, 240, 8
        self.tgroup = None
        a(f"""
v_and_b32 v6, 15, v0
v_lshlrev_b32 v6, 6, v6
v_lshrrev_b32 v7, 4, v0
v_lshl_add_u32 v6, v7, 4, v6
s_lshl_b32 s90, s89, 13
s_add_u32 s91, s90, 4096
s_cmp_eq_u32 s89, 288
s_cmov_b32 s90, 4096
s_cmov_b32 s91, {OOB}
s_cmp_eq_u32 s89, 0
s_cmov_b32 s91, {OOB}
s_lshl_b32 s73, s86, 11
s_add_u32 s90, s90, s73
s_add_u32 s91, s91, s73
s_lshl_b32 s85, s86, 12
s_sub_u32 s85, 2048, s85
s_lshr_b32 s73, {sW}, 1
s_and_b32 s73, s73, 1
s_xor_b32 s73, s73, 1
s_lshl_b32 s84, s73, 2
v_add_u32 v4, s84, v2
s_lshl_b32 s73, s73, 12
s_lshl_b32 s84, s86, 11
s_add_u32 s73, s73, s84
s_add_u32 s73, s73, {L_XCH}
v_add_u32 v7, s73, v5
s_sub_u32 s73, s73, s84
s_xor_b32 s84, s84, 0x800
s_add_u32 s84, s84, s73
s_sleep {self.opt('d2', 16)}
""")
        self.go_wait(WS_GOS, 252, 6)
        cg = a.label("CG")
        a(f"s_cmp_lg_u32 {sW}, 7\ns_cbranch_scc1 {cg}")
        self.add1(CG)
        a(f"{cg}:")
        self.stamp(7)
        self.stamp(1, 2)
        a(f"s_add_u32 s92, s90, {WS_T}\ns_add_u32 s93, s91, {WS_T}\ns_add_u32 s82, s92, s85\ns_add_u32 s83, s93, s85")
        for t in range(4):
            for ri in range(2):
                so = (("s92", "s93"), ("s82", "s83"))[t >> 1][ri]
                a(f"buffer_load_dwordx4 {vr(WW+8*t+4*ri,4)}, v6, {SWS}, {so} offen offset:{1024*(t&1)} sc1")
        mf = lambda acc, x, y, first: a(f"v_mfma_f32_16x16x32_bf16 {vr(acc,4)}, {vr(x,4)}, {vr(y,4)}, {'0' if first else vr(acc,4)}")
        re = lambda base, t: base + 8 * t
        im = lambda base, t: base + 8 * t + 4
        for t in range(4):
            a(f"s_waitcnt vmcnt({6 - 2*t})")
            if t == 0: self.stamp(2, 2)
            mf(re(P, t), re(WW, t), PK, True); mf(im(P, t), re(WW, t), PK + 4, True)
            mf(re(P, t), im(WW, t), PK + 8, False); mf(im(P, t), im(WW, t), PK, False)
        a(f"s_lshl_b32 s92, s89, 13\ns_lshl_b32 s73, s86, 12\ns_add_u32 s92, s92, s73\ns_lshl_b32 s73, s86, 11\ns_add_u32 s92, s92, s73\ns_add_u32 s92, s92, {WS_WT}")
        a("s_add_u32 s82, s92, s85")
        for t in range(4):
            a(f"buffer_load_dwordx4 {vr(WW+8*t+4,4)}, v5, {SWS}, {('s92', 's82')[t >> 1]} offen offset:{1024*(t&1)} sc1")
        def cmul(x, c, dst):
            for t in range(4):
                ops = []
                for h in range(2):
                    t0, t1 = TMP + 4 * h, TMP + 4 * h + 2
                    xr, xi, cr, ci = re(x, t) + 2 * h, im(x, t) + 2 * h, re(c, t) + 2 * h, im(c, t) + 2 * h
                    ops.append([f"v_pk_mul_f32 {vr(t0,2)}, {vr(xr,2)}, {vr(cr,2)}",
                                f"v_pk_mul_f32 {vr(t1,2)}, {vr(xr,2)}, {vr(ci,2)}",
                                f"v_pk_fma_f32 {vr(t0,2)}, {vr(xi,2)}, {vr(ci,2)}, {vr(t0,2)} neg_lo:[1,0,0] neg_hi:[1,0,0]",
                                f"v_pk_fma_f32 {vr(t1,2)}, {vr(xi,2)}, {vr(cr,2)}, {vr(t1,2)}",
                                f"v_cvt_pk_bf16_f32 v{dst(t,0)+h}, v{t0}, v{t0+1}",
                                f"v_cvt_pk_bf16_f32 v{dst(t,1)+h}, v{t1}, v{t1+1}"])
                for j in range(0, 6, 2):
                    for o in ops:
                        a(o[j]); a(o[j + 1])
        pkd = lambda t, part: PK + 8 * part + 2 * t
        ks_ = lambda part, ks: PK + 8 * part + 4 * ks
        t64 = lambda k, t, ks: A + 32 * k + 8 * t + 4 * ks
        self.stamp(3, 2)
        cmul(P, TW, pkd)
        self.stamp(4, 2)
        for f in range(8):
            self.tload(self.TW2 + f, TW + 4 * f)
        for t in range(4):
            for ks in range(2):
                mf(re(Q, t), t64(0, t, ks), ks_(0, ks), ks == 0); mf(im(Q, t), t64(1, t, ks), ks_(0, ks), ks == 0)
            for ks in range(2):
                mf(re(Q, t), t64(2, t, ks), ks_(1, ks), False); mf(im(Q, t), t64(0, t, ks), ks_(1, ks), False)
        self.stamp(5, 2)
        a("s_waitcnt vmcnt(8)")
        for t in range(4):
            b = WW + 8 * t
            for k in range(4):
                a(f"v_lshlrev_b32 v{b+2*k}, 16, v{b+4+k}\nv_and_b32 v{b+2*k+1}, 0xffff0000, v{b+4+k}" if k < 2 else "")
            a(f"v_and_b32 v{b+5}, 0xffff0000, v{b+6}\nv_lshlrev_b32 v{b+4}, 16, v{b+6}\nv_lshlrev_b32 v{b+6}, 16, v{b+7}\nv_and_b32 v{b+7}, 0xffff0000, v{b+7}")
        cmul(Q, WW, pkd)
        self.stamp(6, 2)
        for f in range(6):
            self.tload(self.T32B + f, WW + 4 * f)
        for t in (2, 3, 0, 1):
            for ks in range(2):
                mf(re(P, t), ks_(0, ks), t64(0, t, ks), ks == 0); mf(im(P, t), ks_(1, ks), t64(0, t, ks), ks == 0)
            for ks in range(2):
                mf(re(P, t), ks_(1, ks), t64(1, t, ks), False); mf(im(P, t), ks_(0, ks), t64(2, t, ks), False)
        self.stamp(7, 2)
        a("s_waitcnt vmcnt(6)")
        cmul(P, TW, lambda t, part: (PK + 8 * t + 4 * part) if t < 2 else (Q + 4 * (t - 2) + 2 * part))
        a(f"ds_write_b128 v7, {vr(Q,4)}\nds_write_b128 v7, {vr(Q+4,4)} offset:1024")
        self.add1(XA, base="v4")
        a("v_add_u32 v7, s84, v5")
        self.wait(XA, 2, sleep=0, base="v4")
        for t in range(2):
            for part in range(2):
                a(f"ds_read_b64 {vr(PK+8*t+4*part+2,2)}, v7 offset:{1024*t+8*part}")
        self.stamp(8, 2)
        a("s_waitcnt vmcnt(0) lgkmcnt(0)")
        t32 = lambda k, at: WW + 8 * k + 4 * at
        out = lambda t, part, at: Q + 16 * t + 8 * part + 4 * at
        for t in range(2):
            for at in range(2):
                mf(out(t, 0, at), t32(0, at), PK + 8 * t, True); mf(out(t, 1, at), t32(0, at), PK + 8 * t + 4, True)
            for at in range(2):
                mf(out(t, 0, at), t32(1, at), PK + 8 * t + 4, False); mf(out(t, 1, at), t32(2, at), PK + 8 * t, False)
        a(f"s_add_u32 s92, s90, {WS_Y}\ns_add_u32 s93, s91, {WS_Y}")
        for t in range(2):
            for part in range(2):
                b = out(t, part, 0); d = 40 + 8 * t + 4 * part
                for k in range(4):
                    a(f"v_cvt_pk_bf16_f32 v{d+k}, v{b+2*k}, v{b+2*k+1}")
                a(f"buffer_store_dwordx4 {vr(d,4)}, v6, {SWS}, {'s93' if part else 's92'} offen offset:{1024*t} sc1")
        self.stamp(9, 2)
        self.flag4("s99", "s89", WS_FY)
        a("v_mov_b32 v6, v4")

    def l_mid(self):
        a = self.a
        go = a.label("S2"); no = a.label("NS2"); n7 = a.label("N7"); kv = a.label("LKV"); tb = a.label("TB"); nw = a.label("NW")
        a(f"s_mov_b32 s89, s2\ns_cmp_lg_u32 {sW}, 7\ns_cbranch_scc1 {n7}")
        self.s_flag()
        a(f"s_mov_b32 s89, s2\ns_branch {go}\n{n7}:")
        self.wait(CW, 1, sleep=4, idle=True)
        n5 = a.label("N5")
        a(f"s_cmp_lg_u32 {sW}, 5\ns_cbranch_scc1 {n5}")
        self.poison()
        self.flag4("s91", "s2", WS_FP)
        a("s_waitcnt vmcnt(0)")
        self.set_flag("s91")
        a(f"""
{n5}:
s_setprio 3
s_cmp_eq_u32 {sW}, 6
s_cbranch_scc1 {tb}
s_add_u32 s89, s2, 192
s_cmp_lt_u32 s2, 64
s_cbranch_scc1 {nw}
s_cmp_gt_u32 s2, 96
s_cbranch_scc1 {nw}
{tb}:
""")
        self.stage2_tables()
        a(f"{go}:")
        self.stage2()
        a(f"s_branch {kv}\n{nw}:")
        a(f"s_cmp_lg_u32 {sW}, 4\ns_cbranch_scc1 {no}\ns_lshr_b32 s73, s2, 3\ns_cmp_lg_u32 s73, 16\ns_cbranch_scc1 {no}")
        a(f"v_lshlrev_b32 v9, 7, v0\ns_mov_b32 s92, {WS_FS}")
        self.poll(f"buffer_load_dwordx4 v[12:15], v9, {SWS}, s92 offen sc1", [12, 13, 14, 15], sleep=4)
        a(f"s_and_b32 s92, s2, 7\ns_lshl_b32 s92, s92, 7\ns_add_u32 s93, s92, {WS_GOP}\ns_add_u32 s92, s92, {WS_GOS}")
        self.set_flag("s92")
        a(f"s_mov_b32 s92, {WS_FP}\ns_sleep 48")
        self.poll(f"buffer_load_dwordx4 v[12:15], v9, {SWS}, s92 offen sc1", [12, 13, 14, 15], sleep=24)
        self.set_flag("s93")
        self.wait(YA, 2, sleep=8)
        a(f"v_min_u32 v10, {7*128}, v9\ns_mov_b32 s92, {WS_FY}\ns_mov_b32 s90, {WS_FY + 8192}\ns_mov_b32 s91, {WS_FY + 72*128}\ns_sleep {self.opt('dy', 8)}")
        self.poll(f"buffer_load_dwordx4 v[12:15], v9, {SWS}, s92 offen sc1\nbuffer_load_dwordx4 v[16:19], v10, {SWS}, s90 offen sc1\n"
                  f"buffer_load_dword v20, off, {SWS}, s91 sc1", list(range(12, 21)), sleep=4)
        a(f"s_add_u32 s93, s93, {WS_GOY - WS_GOP}")
        self.set_flag("s93")
        ne = a.label("NE")
        a(f"s_cmp_lg_u32 s2, 128\ns_cbranch_scc1 {ne}")
        self.set_flag(str(WS_EPOCH))
        a(f"{ne}:")
        a(f"{no}:\ns_mov_b32 s99, {OOB}\nv_add_u32 v6, 16, v2\n{kv}:")
        self.kv_addr()
        self.kv_loads()
        nf = a.label("NYF")
        a(f"s_waitcnt vmcnt({4 * self.NFIRST})\ns_mov_b64 exec, 1\nds_add_rtn_u32 v1, v6, v3 offset:{YA}\ns_mov_b64 exec, -1\ns_waitcnt lgkmcnt(0)")
        a(f"v_readfirstlane_b32 s73, v1\ns_cmp_lg_u32 s73, 1\ns_cbranch_scc1 {nf}")
        self.set_flag("s99")
        a(f"{nf}:")
        self.add1(CL)
        self.stamp(9)
        a("s_setprio 1")

    NT = 192

    def tail(self, mm, n):
        a = self.a
        ACC, ACX = 16, 32
        GM, GX, GD, GE = 48, 120, 18, 9
        BF, BX = 156, 168
        OB, OX, AF, AX = 48, 84, 104, 116
        NT = self.NT
        w = 2 * mm + n
        a(f"""
s_setprio 3
v_lshlrev_b32 v5, 4, v0
v_and_b32 v12, 31, v0
v_lshrrev_b32 v13, 5, v0
v_add_u32 v8, {L_EX}, v5
v_lshlrev_b32 v9, 3, v0
v_add_u32 v9, {L_EX + 2048}, v9
v_lshlrev_b32 v10, 3, v12
v_add_u32 v10, {L_EX + 2048 + 256}, v10
v_lshl_add_u32 v14, v12, 2, v2
ds_read_b32 v4, v14 offset:{256 + 128 * (1 - n)}
ds_read_b32 v11, v14 offset:{256 + 128 * n}
v_and_b32 v37, 15, v0
v_lshrrev_b32 v38, 4, v0
v_lshl_add_u32 v14, v37, 2, v2
ds_read_b32 v36, v14 offset:{256 + 128 * n + 64 * mm}
s_mul_i32 s94, {sP}, {8*9216}
s_add_u32 s94, s94, {WS_OF}
s_lshl_b32 s96, {sJ}, 10
s_add_u32 s96, s96, s94
s_lshr_b32 s97, {sJ}, 2
s_lshl_b32 s97, s97, 9
s_and_b32 s73, {sJ}, 3
s_lshl_b32 s73, s73, 2
s_add_u32 s97, s97, s73
s_add_u32 s97, s97, s94
s_add_u32 s97, s97, 8192
s_waitcnt lgkmcnt(0)
v_sub_f32 v4, 1.0, v4
""")

        def normalize(i, publish=True):
            q = i % 4
            self.wait(CT + 4 * i, 4, sleep=1 if i >= 6 else 4, idle=i < 7)
            for s in range(4):
                b = NT + 12 * s; o = 10240 * q + 2560 * s
                a(f"ds_read_b128 {vr(b,4)}, v8 offset:{o}\nds_read_b128 {vr(b+4,4)}, v8 offset:{o+1024}\nds_read_b64 {vr(b+8,2)}, v9 offset:{o}")
                if s == 3:
                    a("s_waitcnt lgkmcnt(9)")
                a(f"ds_read_b32 v{b+10}, v10 offset:{o}")
            a(f"s_add_u32 s90, s96, {i*9216}\ns_add_u32 s91, s97, {i*9216}\ns_movk_i32 s89, {i}")
            a("s_waitcnt lgkmcnt(8)")
            for s in range(1, 4):
                if s > 1:
                    a(f"s_waitcnt lgkmcnt({4 * (3 - s)})")
                for k in range(5):
                    a(f"v_pk_add_f32 {vr(NT+2*k,2)}, {vr(NT+2*k,2)}, {vr(NT+12*s+2*k,2)}")
                a(f"v_add_f32 v{NT+10}, v{NT+10}, v{NT+12*s+10}")
            if i < 4:
                self.add1(CN)
            self.safety()
            a(f"v_rcp_f32 v{NT+10}, v{NT+10}\ns_nop 0\nv_mul_f32 v{NT+10}, v4, v{NT+10}")
            for k in range(5):
                a(f"v_pk_mul_f32 {vr(NT+2*k,2)}, {vr(NT+2*k,2)}, {vr(NT+10,2)} op_sel_hi:[1,0]")
            for k in range(5):
                a(f"v_cvt_pk_bf16_f32 v{NT+12+k}, v{NT+2*k}, v{NT+2*k+1}")
            a(f"v_min_u32 v{NT+12}, -2, v{NT+12}\nv_min_u32 v{NT+16}, -2, v{NT+16}")
            if publish:
                store()

        def store():
            a(f"buffer_store_dwordx4 {vr(NT+12,4)}, v5, {SWS}, s90 offen sc1\ns_mov_b32 exec_hi, 0")
            a(f"buffer_store_dword v{NT+16}, v5, {SWS}, s91 offen sc1\ns_mov_b64 exec, -1")

        normalize(2 * mm + (1 - n), publish=False)
        a(f"""
v_lshrrev_b32 v6, 3, v0
v_lshlrev_b32 v6, 12, v6
v_bfe_u32 v7, v0, 4, 1
v_lshlrev_b32 v7, 2, v7
v_xor_b32 v7, v7, v0
v_and_b32 v7, 7, v7
v_lshl_add_u32 v6, v7, 4, v6
v_bfe_u32 v43, v0, 2, 2
v_and_b32 v44, 3, v0
v_bfe_u32 v45, v0, 3, 1
v_xor_b32 v45, {n}, v45
v_lshlrev_b32 v45, 6, v45
v_lshl_add_u32 v45, v44, 3, v45
v_lshl_add_u32 v45, v43, 7, v45
v_lshl_add_u32 v7, v13, 10, v45
v_bfe_u32 v46, v0, 4, 1
v_lshl_add_u32 v7, v46, 5, v7
v_add_u32 v15, 36864, v7
v_lshl_add_u32 v39, v38, 10, v45
v_add_u32 v39, {32 * mm}, v39
v_add_u32 v40, 36864, v39
v_lshlrev_b32 v41, 4, v37
v_lshl_add_u32 v41, v46, 9, v41
v_lshl_add_u32 v14, v13, 10, v41
v_cmp_gt_u32 vcc, 8, v37
v_mov_b32 v47, {OOB}
v_add_u32 v41, {256 * mm}, v14
v_cndmask_b32 v14, v47, v14, vcc
v_cmp_gt_u32 vcc, 32, v0
s_mul_i32 s92, {sJ}, {3*36*1024}
v_cndmask_b32 v42, v47, v41, vcc
s_add_u32 s98, s92, {WS_G + 2*36*1024}
s_add_u32 s92, s92, {WS_G + mm*36*1024}
s_mul_i32 s95, {sJ}, 144
""")
        for i in range(20):
            a(f"v_mov_b32 v{ACC+i}, 0")
        self.srd(SWO, 18, 663552)
        self.panel_setup(4, va=46)
        vm = []
        def gm(ks):
            a(f"buffer_load_dwordx4 {vr(GM+4*(ks%GD),4)}, v5, {SWS}, s92 offen offset:{1024*(ks%4)} sc1")
            if ks % 4 == 3: a("s_add_u32 s92, s92, 4096")
            vm.append(("m", ks))
        def gx(T):
            a(f"buffer_load_dwordx4 {vr(GX+4*(T%GE),4)}, v14, {SWS}, s98 offen offset:{2048*(T%2)} sc1")
            if T % 2 == 1: a("s_add_u32 s98, s98, 4096")
            vm.append(("x", T))
        self.wait(CL, 4, sleep=4, idle=True)
        for ks in range(GD):
            gm(ks)
            if ks % 2 == 1: gx(ks // 2)
        if w == 2:
            a("s_mov_b32 s93, s92")
            self.go_wait(WS_GOY, NT, 8)
            a("s_mov_b32 s92, s93")
            self.add1(CY)
        else:
            self.wait(CY, 1, sleep=4, idle=True)
        self.stamp(1); self.stamp(1, 4)
        a(f"s_lshl_b32 s99, {sP}, 7\ns_add_u32 s99, s99, {WS_Y + w * 32768}")
        lp = a.label("YL")
        a(f"s_mov_b32 s88, 2\ns_mov_b32 s93, {L_Y + w * 1024}\n{lp}:")
        for k in range(6):
            a(f"s_mov_b32 m0, s93\ns_add_u32 s93, s93, 4096\nbuffer_load_dwordx4 v6, {SWS}, s99 offen sc1 lds\ns_add_u32 s99, s99, {4*32768}")
        a(f"s_sub_u32 s88, s88, 1\ns_cbranch_scc0 {lp}")
        self.stamp(2, 4)
        a("s_waitcnt vmcnt(9)")
        self.add1(S1)
        a("s_waitcnt vmcnt(0)")
        self.add1(S4)
        self.stamp(3, 4)
        vm.clear()
        def yrd(it):
            kind, k = it
            if kind == "m":
                b = BF + 4 * (k % 3); base, off = ("v7", 2048 * k) if k < 18 else ("v15", 2048 * (k - 18))
            else:
                b = BX + 4 * (k % 3); base, off = ("v39", 4096 * k) if k < 9 else ("v40", 4096 * (k - 9))
            a(f"ds_read_b64_tr_b16 {vr(b,2)}, {base} offset:{off}\nds_read_b64_tr_b16 {vr(b+2,2)}, {base} offset:{off+512}")
        def half(k0):
            seq = []
            for ks in range(k0, k0 + 18):
                seq.append(("m", ks))
                if ks % 2 == 1: seq.append(("x", ks // 2))
            for it in seq[:3]:
                yrd(it)
            for i, it in enumerate(seq):
                wv = f"vmcnt({len(vm) - 1 - vm.index(it)}) " if it in vm else ""
                a(f"s_waitcnt {wv}lgkmcnt({2 * (min(i + 3, len(seq)) - i - 1)})")
                kind, k = it
                if kind == "m":
                    a(f"v_mfma_f32_32x32x16_bf16 {vr(ACC,16)}, {vr(GM+4*(k%GD),4)}, {vr(BF+4*(k%3),4)}, {vr(ACC,16)}")
                    if k + GD < 36: gm(k + GD)
                else:
                    a(f"v_mfma_f32_16x16x32_bf16 {vr(ACX,4)}, {vr(GX+4*(k%GE),4)}, {vr(BX+4*(k%3),4)}, {vr(ACX,4)}")
                    if k + GE < 18: gx(k + GE)
                if i + 3 < len(seq):
                    yrd(seq[i + 3])
        self.wait(S1, 4, sleep=1)
        self.stamp(4, 4)
        half(0)
        self.add1(S2)
        store()
        vm.extend([("st", 0), ("st", 1)])
        self.wait(S4, 4, sleep=1)
        self.wait(S2, 4, sleep=1)
        self.panel_loads(SWO, 0, 18432, L_WOX, False, 18, 4, va=46)
        vm.extend([("wo", k) for k in range(12)])
        half(18)
        self.stamp(5, 4)
        self.add1(S2)
        a(f"""
v_and_b32 v39, 1, v44
v_lshlrev_b32 v15, 2, v39
v_bfe_u32 v40, v0, 4, 1
v_lshl_add_u32 v15, v40, 1, v15
v_lshrrev_b32 v14, 1, v44
v_add_u32 v45, v15, v14
v_lshlrev_b32 v45, 3, v45
v_add_u32 v45, {18432 * mm}, v45
v_lshl_add_u32 v6, v13, 2, v43
v_lshl_add_u32 v6, v6, 6, v45
v_lshrrev_b32 v7, 1, v43
v_mul_u32_u24 v7, 72, v7
v_and_b32 v14, 1, v43
v_add3_u32 v43, v7, v14, 16
v_lshl_add_u32 v7, v43, 6, v45
v_mul_u32_u24 v14, 36864, v13
v_add_u32 v7, v7, v14
v_lshlrev_b32 v39, 3, v39
v_add_u32 v39, {L_WOX}, v39
v_mul_u32_u24 v15, 288, v40
v_add_u32 v15, v15, v43
v_lshl_add_u32 v15, v15, 4, v39
v_mul_u32_u24 v14, 72, v13
v_lshl_add_u32 v14, v40, 2, v14
v_bfe_u32 v43, v0, 2, 2
v_add_u32 v14, v14, v43
v_lshl_add_u32 v14, v14, 4, v39
""")
        self.wait(S2, 8, sleep=1)
        self.stamp(6, 4)
        self.panel_loads(SWO, 18432, 36864, L_WOX, False, 36, 4, va=46)
        self.stamp(2); self.stamp(7, 4)
        for i in range(8):
            a(f"v_pk_mul_f32 {vr(ACC+2*i,2)}, {vr(ACC+2*i,2)}, v[10:11] op_sel:[0,1] op_sel_hi:[1,1]")
        for i in range(2):
            a(f"v_pk_mul_f32 {vr(ACX+2*i,2)}, {vr(ACX+2*i,2)}, v[36:37] op_sel_hi:[1,0]")
        a("s_waitcnt vmcnt(0)")
        self.add1(S3)
        self.srd(SOUT, 22, 2359296)
        self.wait(S3, 4, sleep=1)
        self.stamp(8, 4)

        def consume(i, gate):
            hh = i >> 1
            if gate is not None:
                self.wait(CT + 4 * gate, 4, sleep=2 if gate == 7 else 4, idle=True)
            if i == 7:
                a(f"s_sleep {self.opt('d7', 10)}")
            seq = []
            for ks in range(9):
                seq.append(("m", ks))
                if ks % 2 == 1 or ks == 8: seq.append(("x", ks // 2))
            def rd(it):
                kind, k = it
                for u in range(2):
                    if kind == "m":
                        row = (72 * k + 18 * hh + 8 * u) if k < 8 else (144 * u + 18 * hh)
                        off = row * 64 + (18432 if row >= 288 else 0)
                        a(f"ds_read_b64_tr_b16 {vr(AF+4*(k%3)+2*u,2)}, {'v6' if k < 8 else 'v7'} offset:{off}")
                    else:
                        row = (144 * k + 18 * hh + 8 * u) if k < 4 else (144 * u + 18 * hh)
                        a(f"ds_read_b64_tr_b16 {vr(AX+4*(k%3)+2*u,2)}, {'v14' if k < 4 else 'v15'} offset:{row*16}")
            for it in seq[:3]:
                rd(it)
            l = a.label("CL"); d = a.label("CD")
            a(f"{l}:\ns_add_u32 s90, s94, {i*9216}")
            chk = []
            for ks in range(9):
                if ks in (4, 8):
                    a("s_add_u32 s90, s90, 4096")
                a(f"buffer_load_dwordx4 {vr(OB+4*ks,4)}, v5, {SWS}, s90 offen offset:{1024*(ks%4)} sc1")
                chk.append([OB + 4 * ks] if ks < 8 else [OB + 32 + r for r in range(4)])
                if ks % 2 == 1 or ks == 8:
                    k = ks // 2
                    a(f"buffer_load_dwordx4 {vr(OX+4*k,4)}, {'v41' if k < 4 else 'v42'}, {SWS}, s90 offen offset:{2048*(k%2)} sc1")
                    chk.append([OX + 4 * k] if k < 4 else [OX + 16 + r for r in range(4)])
            flat = [(j, r) for j, rs in enumerate(chk) for r in rs]
            a(f"s_waitcnt vmcnt({len(chk) - 2})\nv_max_u32 v1, v{flat[0][1]}, v{flat[1][1]}")
            for p in range(2, len(flat), 2):
                a(f"s_waitcnt vmcnt({len(chk) - 1 - flat[p+1][0]})\nv_max3_u32 v1, v1, v{flat[p][1]}, v{flat[p+1][1]}")
            a(f"v_cmp_eq_u32 vcc, -1, v1\ns_cmp_eq_u64 vcc, 0\ns_cbranch_scc1 {d}")
            a(f"s_sleep 2\ns_sub_u32 {sSPIN}, {sSPIN}, 1\ns_cbranch_scc0 {l}\ns_branch L_bail\n{d}:")
            for j, it in enumerate(seq):
                a(f"s_waitcnt lgkmcnt({2 * (min(j + 3, len(seq)) - j - 1)})")
                kind, k = it
                if kind == "m":
                    a(f"v_mfma_f32_32x32x16_bf16 {vr(ACC,16)}, {vr(AF+4*(k%3),4)}, {vr(OB+4*k,4)}, {vr(ACC,16)}")
                else:
                    a(f"v_mfma_f32_16x16x32_bf16 {vr(ACX,4)}, {vr(AX+4*(k%3),4)}, {vr(OX+4*k,4)}, {vr(ACX,4)}")
                if j + 3 < len(seq):
                    rd(seq[j + 3])

        prog = {0: ["C0", "C2", "N5", "C4", "C6"], 1: ["C1", "C3", "N4", "C5", "C7"],
                2: ["C0", "C2", "C4", "N7", "C6"], 3: ["C1", "C3", "N6", "C5", "C7"]}[w]
        gates = {4: 5, 5: 6, 6: 7, 7: 7}
        a(f"""
s_mov_b32 s73, 73728
v_mul_lo_u32 v39, v12, s73
v_lshl_add_u32 v39, v13, 5, v39
v_mul_lo_u32 v40, v37, s73
v_lshl_add_u32 v40, v38, 3, v40
s_mul_i32 s93, {sP}, 2304
s_add_u32 s93, s93, s95
s_add_u32 s93, s93, {1152 * n}
s_add_u32 s92, s93, {16 * mm * 73728}
""")
        for it in prog:
            i = int(it[1])
            if it[0] == "N":
                normalize(i)
                self.stamp(3)
            else:
                if i >= 6: self.stamp(4)
                consume(i, gates.get(i))
                if i < 4: self.stamp(9 + i // 2, 4)
        self.stamp(6)
        fl = " sc1" if "outsc1" in self.opts else ""
        a(f"v_cvt_pk_bf16_f32 v{ACX}, v{ACX}, v{ACX+1}\nv_cvt_pk_bf16_f32 v{ACX+1}, v{ACX+2}, v{ACX+3}")
        for k in range(8):
            a(f"v_cvt_pk_bf16_f32 v{ACC+k}, v{ACC+2*k}, v{ACC+2*k+1}")
        a(f"buffer_store_dwordx4 {vr(ACC,4)}, v39, {SOUT}, s93 offen offset:{64*mm}{fl}")
        a(f"buffer_store_dwordx4 {vr(ACC+4,4)}, v39, {SOUT}, s93 offen offset:{64*mm+16}{fl}")
        a(f"s_mov_b32 exec_hi, 0\nbuffer_store_dwordx2 {vr(ACX,2)}, v40, {SOUT}, s92 offen offset:128{fl}\ns_mov_b64 exec, -1")
        self.stamp(7)

    def safety(self):
        a = self.a
        NT = self.NT
        ok = a.label("SOK")
        t = NT + 12
        a(f"v_mov_b32 v{t}, 0\nv_mov_b32 v{t+1}, 0\nv_mov_b32 v{t+2}, 0\nv_mov_b32 v{t+3}, 0")
        for k in range(5):
            a(f"v_pk_fma_f32 {vr(t,2)}, {vr(NT+2*k,2)}, {vr(t+2,2)}, {vr(t,2)}")
        lo, hi = (127 - 60) << 23, (127 + 64) << 23
        if "forcefb" in self.opts:
            lo, hi = (127 + 60) << 23, (127 + 64) << 23
        a(f"v_add_f32 v{t}, v{t}, v{t+1}\nv_subrev_u32 v{t+1}, {lo:#x}, v{NT+10}\nv_cmp_u_f32 vcc, v{t}, v{t}")
        a(f"s_mov_b32 s73, {hi - lo:#x}\nv_cmp_lt_u32 s[74:75], s73, v{t+1}\ns_or_b64 vcc, vcc, s[74:75]\ns_cmp_eq_u64 vcc, 0\ns_cbranch_scc1 {ok}")
        a(f"s_call_b64 s[86:87], L_fallback\n{ok}:")

    def fallback(self):
        a = self.a
        NT = self.NT
        Q, QX, K, KX, V, S, O, MX = 128, 132, 136, 140, 144, 152, 168, 184
        vK, vKX, vV, T0 = 185, 186, 187, 188
        l1 = a.label("FB1"); l2 = a.label("FB2")
        qk = f"""
buffer_load_dwordx4 {vr(K,4)}, v{vK}, {SWS}, s[84] offen sc1
buffer_load_dword v{KX}, v{vKX}, {SWS}, s[85] offen sc1
""".replace("s[84]", "s84").replace("s[85]", "s85")
        mm = f"""
v_mfma_f32_32x32x16_bf16 {vr(S,16)}, {vr(K,4)}, {vr(Q,4)}, 0
v_mfma_f32_32x32x8_bf16 {vr(S,16)}, {vr(KX,2)}, {vr(QX,2)}, {vr(S,16)}
s_add_u32 s84, s84, 1024
s_add_u32 s85, s85, 128
"""
        a(f"""
L_fallback:
s_nop 4
v_lshlrev_b32 v{vK}, 5, v12
v_lshl_add_u32 v{vK}, v13, 4, v{vK}
v_mov_b32 v{T0}, {OOB}
v_lshlrev_b32 v{vKX}, 2, v12
v_cmp_lt_u32 vcc, 31, v0
v_subrev_u32 v{T0+1}, 64, v{vK}
v_cndmask_b32 v{vKX}, v{vKX}, v{T0}, vcc
v_cmp_eq_u32 vcc, 20, v12
s_mul_i32 s73, s89, 1536
v_cndmask_b32 v{T0+1}, v{T0}, v{T0+1}, vcc
v_cmp_gt_u32 vcc, 18, v12
s_add_u32 s73, s73, {L_QS}
v_cndmask_b32 v{vV}, v{T0+1}, v{vK}, vcc
v_mul_u32_u24 v{T0}, 48, v12
v_add_u32 v{T0}, s73, v{T0}
v_lshl_add_u32 v{T0+1}, v13, 2, v{T0}
v_lshl_add_u32 v{T0}, v13, 4, v{T0}
ds_read_b128 {vr(Q,4)}, v{T0}
ds_read_b32 v{QX}, v{T0+1} offset:32
v_mov_b32 v{QX+1}, 0
v_mov_b32 v{KX+1}, 0
v_mov_b32 v{MX}, 0xff800000
s_mov_b32 s84, {WS_K16}
s_mov_b32 s85, {WS_KX}
s_mov_b32 s88, 63
{l1}:
{qk}
s_waitcnt vmcnt(0) lgkmcnt(0)
{mm}
""")
        for k in range(8):
            a(f"v_max3_f32 v{MX}, v{MX}, v{S+2*k}, v{S+2*k+1}")
        a(f"""
s_sub_u32 s88, s88, 1
s_cbranch_scc0 {l1}
v_mov_b32 v{T0}, v{MX}
v_permlane32_swap_b32 v{MX}, v{T0}
v_max_f32 v{MX}, v{MX}, v{T0}
s_mov_b32 s84, {WS_K16}
s_mov_b32 s85, {WS_KX}
s_mov_b32 s83, {WS_VF}
s_mov_b32 s88, 63
""")
        for r in range(16):
            a(f"v_mov_b32 v{O+r}, 0")
        a(f"""
{l2}:
{qk}
buffer_load_dwordx4 {vr(V,4)}, v{vV}, {SWS}, s83 offen sc1
buffer_load_dwordx4 {vr(V+4,4)}, v{vV}, {SWS}, s83 offen offset:{VPITCH} sc1
s_waitcnt vmcnt(0)
{mm}
s_add_u32 s83, s83, {2*VPITCH}
""")
        for r in range(16):
            a(f"v_sub_f32 v{S+r}, v{S+r}, v{MX}")
        for r in range(16):
            a(f"v_exp_f32 v{S+r}, v{S+r}")
        for k in range(8):
            a(f"v_cvt_pk_bf16_f32 v{S+k}, v{S+2*k}, v{S+2*k+1}")
        a(f"""
v_mfma_f32_32x32x16_bf16 {vr(O,16)}, {vr(V,4)}, {vr(S,4)}, {vr(O,16)}
v_mfma_f32_32x32x16_bf16 {vr(O,16)}, {vr(V+4,4)}, {vr(S+4,4)}, {vr(O,16)}
s_nop 15
s_sub_u32 s88, s88, 1
s_cbranch_scc0 {l2}
""")
        for r in range(10):
            a(f"v_mov_b32 v{NT+r}, v{O+r}")
        a(f"v_mov_b32 v{T0}, v{O+8}\nv_mov_b32 v{NT+10}, v{O+8}\nv_permlane32_swap_b32 v{T0}, v{NT+10}\ns_nop 4\ns_setpc_b64 s[86:87]")

    def finish_stamps(self):
        a = self.a
        if self.stamps:
            a("v_mov_b32 v2, 0")
            for i in range(12):
                a(f"v_writelane_b32 v2, s{STAMPS[i]}, {i}")
            a(f"s_lshl_b32 s73, s2, 3\ns_add_u32 s73, s73, {sW}\ns_lshl_b32 s73, s73, 7\ns_add_u32 s73, s73, {WS_DBG}")
            a(f"v_lshlrev_b32 v3, 2, v0\ns_mov_b32 exec_hi, 0\nbuffer_store_dword v2, v3, {SWS}, s73 offen\ns_mov_b64 exec, -1")

    def build(self):
        a = self.a
        self.prologue()
        self.e_front()
        a("L_attn:")
        self.attention()
        self.stamp(8)
        a(f"s_cmp_ge_u32 {sW}, 4\ns_cbranch_scc1 L_fin")
        labs = [a.label("TL") for _ in range(4)]
        for w in range(1, 4):
            a(f"s_cmp_eq_u32 {sW}, {w}\ns_cbranch_scc1 {labs[w]}")
        for w in range(4):
            a(f"{labs[w]}:")
            self.tail(w >> 1, w & 1)
            a("s_branch L_fin")
        a("L_lwave:")
        self.l_front()
        self.l_mid()
        a("s_branch L_attn")
        self.fallback()
        a("L_bail:")
        if self.stamps:
            a(f"s_mov_b32 s{STAMPS[11]}, 0xdead0000")
        a("L_fin:")
        if self.opt("padto", 0):
            a(f"L_pad:\ns_sleep 2\ns_memrealtime s[78:79]\ns_waitcnt lgkmcnt(0)\ns_sub_u32 s78, s78, s76\ns_cmp_lt_u32 s78, {self.opt('padto', 0)}\ns_cbranch_scc1 L_pad")
        self.finish_stamps()
        a("L_end:\ns_endpgm")
        body = a.finish()
        tw = self.make_tables()
        assert tw.size == 2 * self.NTAB * 256
        tab = "\n".join(".long " + ",".join(f"{x:#x}" for x in tw[i:i+16]) for i in range(0, tw.size, 16))
        hdr = open("cdna_kernels/" + NAME + ".s.ref").read().split("; Override launch")[0]
        return f"""{hdr}; @launch grid=(256,1,1) block=(512,1,1) lds={LDS_BYTES}
.amdgcn_target "amdgcn-amd-amdhsa--gfx950"
.text
.globl {NAME}_kernel
.p2align 8
.type {NAME}_kernel,@function
{NAME}_kernel:
{body}
.section .rodata,"a"
.p2align 8
.type spectral_tables,@object
spectral_tables:
{tab}
.size spectral_tables, {2*self.NTAB*1024}
.p2align 6
.amdhsa_kernel {NAME}_kernel
  .amdhsa_next_free_vgpr 256
  .amdhsa_next_free_sgpr 102
  .amdhsa_accum_offset 256
  .amdhsa_group_segment_fixed_size 0
  .amdhsa_kernarg_size 96
  .amdhsa_user_sgpr_count 2
  .amdhsa_user_sgpr_kernarg_segment_ptr 1
  .amdhsa_system_sgpr_workgroup_id_x 1
.end_amdhsa_kernel
"""


if __name__ == "__main__":
    opts = sys.argv[2:]
    g = Gen(stamps=2 if "st2" in opts else 3 if "st3" in opts else 4 if "st4" in opts else int("stamps" in opts), cyc="cyc" in opts, opts=opts)
    src = g.build()
    open(sys.argv[1], "w").write(src)
    print("nops added:", g.a.added_nops, "lines:", len(src.splitlines()))
```

```python
import sys
import numpy as np
from asmlib import Asm
import model as M

NAME = "gated_mix__spectral_gfnet__grouped_kv_mqa__prompt"

WS_EPOCH = 0
WS_FKV = 0x50000
WS_FS = 0x58000
WS_FY = 0x60000
WS_GOS = 0x68000
WS_GOY = 0x69000
WS_FP = 0x70000
WS_K16 = 0x10000
WS_KX = 0x20000
WS_VF = 0x30000
WS_DBG = 0x80000
WS_G = 0x100000
WS_T = 0x200000
WS_Y = 0x500000
WS_OF = 0x800000
WS_WT = 0xB00000
WS_QDUMP = 0x1100000
WS_SIZE = 0x2000000
OOB = 0x40000000
VPITCH = 640

XP = 1040
L_X = 0
L_X2 = 64 * XP
L_WQ0 = 74752
L_WQ1 = 111616
P2SZ = 9728
L_P2Q = 148480
L_P2KV = L_P2Q - P2SZ
L_MISC = 162816
(C0A, C0B, C0C, C1, CX, CK, CE, CV, CY, S1, S2, S3, CN, CW, CF, CD, CG, S4, C0D, SA, XA, XB, YA, YB, CL) = (4 * i for i in range(25))
CT = 128
L_G = L_MISC + 256
L_QS = L_WQ0
L_WO0 = 0
L_WO1 = 36864
L_Y = 0
L_EX = L_QS + 12288
L_WOX = L_EX + 16 * 2560
L_XCH = L_WOX + 9216
LDS_BYTES = 163840
assert L_XCH + 8192 <= L_MISC and L_P2Q + P2SZ <= L_MISC and L_P2KV >= L_WQ1 + 416 * 64

SX, SWQ, SKV, SG, SWS, SWO, SOUT, SWR, SWI, STB = (f"s[{a}:{a+3}]" for a in range(28, 68, 4))
sW, sP, sJ, sTAG, sSPIN = "s68", "s69", "s70", "s71", "s72"
STAMPS = [76, 77, 78, 79, 80, 81, 100, 101, 3, 10, 11, 24]
SPIN_MAX = 400000

f32bits = lambda v: int(np.float32(v).view(np.uint32))
QSCALE_BITS = f32bits(M.QSCALE)
LOG2E_BITS = f32bits(M.LOG2E)


def vr(a, n=1):
    return f"v{a}" if n == 1 else f"v[{a}:{a+n-1}]"


class Gen:
    AQ, AQX, AO, AK, AKX, AV, AS = 24, 28, 32, 88, 120, 128, 192
    vQ, vQX, vEX, vEX2, vK, vKX, vV, vCT = 78, 79, 80, 81, 82, 83, 4, 84
    vCT2 = vCT

    def __init__(self, stamps=0, cyc=False, opts=()):
        self.a = Asm()
        self.stamps = stamps
        self.clk = "s_memtime" if cyc else "s_memrealtime"
        self.opts = set(opts)

    def opt(self, name, default):
        for o in self.opts:
            if o.startswith(name + "="):
                return int(o.split("=")[1])
        return default

    def _st(self, i):
        self.a(f"{self.clk} s[74:75]\ns_waitcnt lgkmcnt(0)\ns_mov_b32 s{STAMPS[i]}, s74")

    def stamp(self, i, level=1):
        if self.stamps == level:
            self._st(i)

    def srd(self, srd, lo, size):
        b = int(srd[2:].split(":")[0])
        self.a(f"s_mov_b32 s{b}, s{lo}\ns_mov_b32 s{b+1}, s{lo+1}\ns_mov_b32 s{b+2}, {size}\ns_mov_b32 s{b+3}, 0x20000")

    def add1(self, off, base="v2"):
        self.a(f"s_mov_b64 exec, 1\nds_add_u32 {base}, v3 offset:{off}\ns_mov_b64 exec, -1")

    def wait(self, off, target, sleep=1, base="v2", idle=False):
        a = self.a
        l = a.label("LW"); d = a.label("LWD")
        if idle and "noidle" not in self.opts:
            a("s_setprio 0")
        a(f"{l}:\nds_read_b32 v1, {base} offset:{off}\ns_waitcnt lgkmcnt(0)\nv_readfirstlane_b32 s73, v1")
        a(f"s_cmp_ge_u32 s73, {target}\ns_cbranch_scc1 {d}")
        if sleep:
            a(f"s_sleep {sleep}")
        a(f"s_sub_u32 {sSPIN}, {sSPIN}, 1\ns_cbranch_scc0 {l}\ns_branch L_bail\n{d}:")
        if idle and "noidle" not in self.opts:
            a("s_setprio 3")

    def cmp_regs(self, regs, val, op="ne"):
        a = self.a
        a(f"v_cmp_{op}_u32 vcc, {val}, v{regs[0]}")
        for r in regs[1:]:
            a(f"v_cmp_{op}_u32 s[74:75], {val}, v{r}\ns_or_b64 vcc, vcc, s[74:75]")
        a("s_cmp_eq_u64 vcc, 0")

    def poll(self, loads, regs, sleep=2):
        a = self.a
        l = a.label("PL"); d = a.label("PD")
        a(f"{l}:")
        a(loads)
        a("s_waitcnt vmcnt(0)")
        self.cmp_regs(regs, sTAG)
        a(f"s_cbranch_scc1 {d}\ns_sleep {sleep}\ns_sub_u32 {sSPIN}, {sSPIN}, 1\ns_cbranch_scc0 {l}\ns_branch L_bail\n{d}:")

    def set_flag(self, soff):
        self.a(f"v_mov_b32 v1, {sTAG}\ns_mov_b64 exec, 1\nbuffer_store_dword v1, off, {SWS}, {soff} sc1\ns_mov_b64 exec, -1")

    def flag4(self, dst, idx, base):
        self.a(f"s_lshr_b32 {dst}, {idx}, 2\ns_lshl_b32 {dst}, {dst}, 7\ns_and_b32 s73, {idx}, 3\ns_lshl_b32 s73, s73, 2\n"
               f"s_add_u32 {dst}, {dst}, s73\ns_add_u32 {dst}, {dst}, {base}")

    def go_wait(self, base, vt, sleep):
        self.a(f"s_and_b32 s92, s2, 7\ns_lshl_b32 s92, s92, 7\ns_add_u32 s92, s92, {base}")
        self.poll(f"s_mov_b64 exec, 1\nbuffer_load_dword v{vt}, off, {SWS}, s92 sc1\ns_waitcnt vmcnt(0)\nv_readfirstlane_b32 s73, v{vt}\ns_mov_b64 exec, -1\nv_mov_b32 v{vt}, s73", [vt], sleep=sleep)

    def tag(self):
        self.a(f"s_mul_i32 {sTAG}, {sTAG}, 0x9E3779B1\ns_add_u32 {sTAG}, {sTAG}, 0x7F4A7C15")

    def prologue(self):
        a = self.a
        a(f"""
s_cmp_ge_u32 s2, 256
s_cbranch_scc1 L_end
s_load_dwordx16 s[4:19], s[0:1], 0
s_load_dwordx8 s[20:27], s[0:1], 64
v_lshrrev_b32 v1, 6, v0
v_and_b32 v0, 63, v0
v_readfirstlane_b32 {sW}, v1
s_and_b32 {sP}, s2, 31
s_lshr_b32 {sJ}, s2, 5
""")
        if self.stamps:
            a(f"{self.clk} s[74:75]")
        if self.opt("padto", 0):
            a("s_memrealtime s[76:77]")
        a(f"""
v_lshl_add_u32 v4, v1, 6, v0
v_mov_b32 v2, {L_MISC}
v_mov_b32 v3, 1
v_lshlrev_b32 v7, 4, v0
s_mul_i32 s94, {sP}, 2304
s_mul_i32 s95, {sJ}, 144
s_lshl_b32 s91, {sJ}, 2
s_add_u32 s91, s91, {sW}
s_mov_b32 s30, 2359296
s_mov_b32 s31, 0x20000
s_mov_b32 {sSPIN}, {SPIN_MAX}
s_cmp_ge_u32 {sW}, 4
s_waitcnt lgkmcnt(0)
""")
        if self.stamps:
            a(f"s_mov_b32 s{STAMPS[0]}, s74")
            for r in STAMPS[1:]:
                a(f"s_mov_b32 s{r}, 0")
        a("s_cbranch_scc1 L_lwave")

    def kv_addr(self):
        a = self.a
        a(f"""
v_and_b32 v84, 31, v0
v_lshrrev_b32 v85, 5, v0
v_lshlrev_b32 v{self.vK}, 5, v84
v_lshl_add_u32 v{self.vK}, v85, 4, v{self.vK}
v_mov_b32 v86, {OOB}
v_lshlrev_b32 v{self.vKX}, 2, v84
v_cmp_lt_u32 vcc, 31, v0
v_subrev_u32 v87, 64, v{self.vK}
v_cndmask_b32 v{self.vKX}, v{self.vKX}, v86, vcc
v_cmp_eq_u32 vcc, 20, v84
s_and_b32 s73, {sW}, 3
v_cndmask_b32 v87, v86, v87, vcc
v_cmp_gt_u32 vcc, 18, v84
s_lshl_b32 s96, s73, 14
v_cndmask_b32 v{self.vV}, v87, v{self.vK}, vcc
s_add_u32 s96, s96, {WS_K16}
s_lshl_b32 s97, s73, 11
s_add_u32 s97, s97, {WS_KX}
s_mul_i32 s98, s73, {32*VPITCH}
s_add_u32 s98, s98, {WS_VF}
""")

    def ld_k(self, t, slot):
        adv = "\ns_add_u32 s96, s96, 4096" if t % 4 == 3 else ""
        return (f"buffer_load_dwordx4 {vr(self.AK+4*slot,4)}, v{self.vK}, {SWS}, s96 offen offset:{1024*(t%4)} sc1" + adv,
                f"buffer_load_dword v{self.AKX+slot}, v{self.vKX}, {SWS}, s97 offen offset:{128*t} sc1")

    def ld_v(self, t, slot):
        adv = f"\ns_add_u32 s98, s98, {4*VPITCH}" if t % 2 == 1 else ""
        o = 2 * VPITCH * (t % 2)
        return (f"buffer_load_dwordx4 {vr(self.AV+8*slot,4)}, v{self.vV}, {SWS}, s98 offen offset:{o} sc1",
                f"buffer_load_dwordx4 {vr(self.AV+8*slot+4,4)}, v{self.vV}, {SWS}, s98 offen offset:{o+VPITCH} sc1" + adv)

    NFIRST = 4

    def kv_loads(self):
        for t in range(self.NFIRST):
            for x in self.ld_k(t, t) + self.ld_v(t, t):
                self.a(x)

    def e_front(self):
        a = self.a
        a("s_setprio 3\ns_mov_b32 s28, s4\ns_mov_b32 s29, s5")
        for k in range(8):
            a(f"""
s_and_b32 s91, s91, 31
s_mul_i32 s90, s91, 73728
s_mul_i32 m0, s91, {XP}
s_add_u32 s90, s90, s94
s_add_u32 s91, s91, 4
buffer_load_dwordx4 v7, {SX}, s90 offen lds
s_add_u32 m0, m0, {32*XP - 1152}
s_nop 0
buffer_load_dwordx4 v7, {SX}, s90 offen offset:1152 lds
""")
        a(f"""
s_load_dword {sTAG}, s[26:27], {WS_EPOCH}
v_lshrrev_b32 v20, 3, v0
s_mov_b32 s73, 73728
v_mul_lo_u32 v21, v20, s73
v_lshrrev_b32 v22, 4, v0
v_xor_b32 v22, v22, v0
v_and_b32 v22, 7, v22
v_lshl_add_u32 v21, v22, 4, v21
s_and_b32 s90, {sW}, 1
s_mul_i32 s90, s90, {16*73728}
s_lshr_b32 s73, {sW}, 1
s_mul_i32 s73, s73, 1152
s_add_u32 s90, s90, s73
s_add_u32 s90, s90, s94
s_add_u32 s90, s90, 1024
s_lshl_b32 s91, {sW}, 11
s_add_u32 m0, s91, {L_X2}
v_xor_b32 v22, 64, v21
buffer_load_dwordx4 v21, {SX}, s90 offen lds
s_add_u32 m0, s91, {L_X2 + 1024}
s_add_u32 s90, s90, {8*73728}
buffer_load_dwordx4 v22, {SX}, s90 offen lds
s_cmp_lt_u32 {sJ}, 4
s_cselect_b32 s36, s14, s16
s_cselect_b32 s37, s15, s17
s_mov_b32 s38, 20736
s_mov_b32 s39, 0x20000
v_mul_u32_u24 v5, 36, v4
v_lshlrev_b32 v6, 1, v4
s_and_b32 s73, {sJ}, 3
s_lshl_b32 s92, s73, 3
""")
        self.srd(SG, 20, 1152)
        s = a.label("KV3")
        a(f"""
buffer_load_dwordx3 v[24:26], v5, {SKV}, s92 offen
buffer_load_ushort v27, v6, {SG}, 0 offen
v_add_u32 v5, {256*36}, v5
buffer_load_dwordx3 v[28:30], v5, {SKV}, s92 offen
buffer_load_ushort v31, v6, {SG}, 0 offen offset:512
s_cmp_gt_u32 {sW}, 0
s_cbranch_scc1 {s}
v_add_u32 v5, {256*36}, v5
buffer_load_dwordx3 v[40:42], v5, {SKV}, s92 offen
buffer_load_ushort v43, v6, {SG}, 0 offen offset:1024
{s}:
s_barrier
""")
        self.stamp(6, 3)
        self.srd(SWS, 26, WS_SIZE)
        a(f"""
v_lshrrev_b32 v7, 7, v4
v_lshlrev_b32 v7, 7, v7
v_lshl_add_u32 v7, v4, 4, v7
v_add_u32 v7, {L_P2KV}, v7
v_and_b32 v14, 15, v0
v_lshrrev_b32 v15, 4, v0
v_and_b32 v17, 31, v0
v_lshrrev_b32 v18, 5, v0
v_bfe_u32 v22, v0, 2, 2
v_lshlrev_b32 v22, 4, v22
v_and_b32 v23, 1, v0
v_lshl_add_u32 v22, v23, 3, v22
v_mul_u32_u24 v16, 2176, v15
v_add_u32 v16, v16, v22
v_lshl_add_u32 v12, v15, 7, v22
v_add_u32 v12, {512*16 + 512}, v12
v_add_u32 v19, {L_P2KV}, v16
v_add_u32 v10, {L_P2KV}, v12
v_add_u32 v16, {L_P2Q}, v16
v_add_u32 v12, {L_P2Q}, v12
s_lshl_b32 s73, {sW}, 4
v_add_u32 v21, s73, v14
v_mul_u32_u24 v20, {XP}, v21
v_lshl_add_u32 v20, v15, 8, v20
v_lshrrev_b32 v22, 1, v21
v_xor_b32 v22, v22, v15
v_and_b32 v22, 7, v22
v_lshlrev_b32 v22, 4, v22
v_lshl_add_u32 v11, v21, 7, v22
v_add_u32 v11, {L_X2}, v11
v_xor_b32 v9, 64, v11
s_lshl_b32 s90, {sP}, 1
s_lshr_b32 s73, {sW}, 1
s_add_u32 s90, s90, s73
s_and_b32 s91, {sW}, 1
s_mov_b32 s92, {(LOG2E_BITS | 0x80000000):#x}
s_lshl_b32 s99, {sW}, 6
s_add_u32 s99, s99, {L_G}
""")
        RG, XF, AK_ = 32, 160, 252
        def wrd(b1, b2, T, dst):
            base, off = (b1, T * 128) if T < 16 else (b2, (T - 16) * 512)
            a(f"ds_read_b64_tr_b16 {vr(dst,2)}, {base} offset:{off}\nds_read_b64_tr_b16 {vr(dst+2,2)}, {base} offset:{off+64}")
        def land():
            s = a.label("KW")
            a(f"s_waitcnt vmcnt(0)\nds_write_b128 v7, v[24:27]\nds_write_b128 v7, v[28:31] offset:{4096+256}")
            a(f"s_cmp_gt_u32 {sW}, 0\ns_cbranch_scc1 {s}\nds_write_b128 v7, v[40:43] offset:{8192+512}\n{s}:")
            self.stamp(1, 3)
            self.add1(CX)
            self.wait(CX, 4, sleep=0)
            self.tag()
            self.stamp(2, 3)
        def kv_gemm(swap):
            acc = vr(AK_, 4)
            def rd(T):
                wrd("v19", "v10", T, 44 + 4 * (T % 5))
                if T < 16:
                    a(f"ds_read_b128 {vr(XF+4*T,4)}, v20 offset:{T*16}")
                else:
                    a(f"ds_read_b128 {vr(XF+4*T,4)}, {'v11' if T == 16 else 'v9'}")
            for T in range(4):
                rd(T)
            for T in range(18):
                if T + 4 < 18:
                    rd(T + 4)
                a(f"s_waitcnt lgkmcnt({3 * (min(T + 5, 18) - T - 1)})")
                W, X = vr(44 + 4 * (T % 5), 4), vr(XF + 4 * T, 4)
                A, B = (X, W) if swap else (W, X)
                a(f"v_mfma_f32_16x16x32_bf16 {acc}, {A}, {B}, {'0' if T == 0 else acc}")
            self.add1(CK)
        kpath = a.label("EK"); done = a.label("EKD")
        a(f"s_cmp_lt_u32 {sJ}, 4\ns_cbranch_scc1 {kpath}")
        a(f"""
s_lshl_b32 s90, s90, 1
s_add_u32 s90, s90, s91
s_mul_i32 s90, s90, {VPITCH}
s_add_u32 s90, s90, {WS_VF}
s_sub_u32 s73, {sJ}, 4
s_lshl_b32 s73, s73, 2
v_add_u32 v36, s73, v14
v_cmp_eq_u32 vcc, 7, v14
v_lshrrev_b32 v37, 1, v15
v_cndmask_b32 v36, v36, 18, vcc
v_lshlrev_b32 v36, 5, v36
v_lshl_add_u32 v36, v37, 3, v36
v_and_b32 v37, 1, v15
v_lshl_add_u32 v36, v37, 4, v36
v_mov_b32 v37, 0x3f803f80
v_lshl_add_u32 v38, v15, 4, s99
s_mov_b32 s88, 0x000f000f
s_cmp_eq_u32 {sJ}, 7
s_cmov_b32 s88, 0x00bf00bf
""")
        land()
        kv_gemm(True)
        a(f"""
v_cvt_pk_bf16_f32 v22, v{AK_}, v{AK_+1}
v_cvt_pk_bf16_f32 v23, v{AK_+2}, v{AK_+3}
v_cndmask_b32 v22, v22, v37, vcc
v_cndmask_b32 v23, v23, v37, vcc
s_mov_b32 exec_lo, s88
s_mov_b32 exec_hi, s88
buffer_store_dwordx2 v[22:23], v36, {SWS}, s90 offen sc1
s_mov_b64 exec, -1
""")
        for r in range(4):
            a(f"v_mul_f32 v{AK_+r}, s92, v{AK_+r}\nv_exp_f32 v{AK_+r}, v{AK_+r}")
        for r in range(4):
            a(f"v_add_f32 v{AK_+r}, 1.0, v{AK_+r}\nv_rcp_f32 v{AK_+r}, v{AK_+r}")
        a(f"""
s_mov_b32 exec_lo, 0x00400040
s_mov_b32 exec_hi, 0x00400040
ds_write_b128 v38, {vr(AK_,4)}
s_branch {done}
{kpath}:
s_lshl_b32 s91, s91, 4
v_add_u32 v37, s91, v14
v_lshlrev_b32 v36, 5, v37
v_lshlrev_b32 v37, 2, v37
v_lshl_add_u32 v38, v14, 2, s99
s_lshl_b32 s88, s90, 10
s_lshl_b32 s73, {sJ}, 3
s_add_u32 s88, s88, s73
s_add_u32 s88, s88, {WS_K16}
s_lshl_b32 s90, s90, 7
s_add_u32 s90, s90, {WS_KX}
s_cmp_lg_u32 {sJ}, 3
s_cmov_b32 s90, {OOB}
s_mov_b32 s91, {QSCALE_BITS:#x}
""")
        land()
        kv_gemm(False)
        a(f"""
v_mul_f32 v39, s92, v{AK_+2}
v_mul_f32 v{AK_}, s91, v{AK_}
v_mul_f32 v{AK_+1}, s91, v{AK_+1}
v_mul_f32 v{AK_+2}, s91, v{AK_+2}
v_mul_f32 v{AK_+3}, s91, v{AK_+3}
v_cvt_pk_bf16_f32 v22, v{AK_}, v{AK_+1}
v_cvt_pk_bf16_f32 v23, v{AK_+2}, v{AK_+3}
s_mov_b64 exec, 0xffff
buffer_store_dwordx2 v[22:23], v36, {SWS}, s88 offen sc1
s_mov_b32 exec_lo, 0xffff0000
buffer_store_dword v22, v37, {SWS}, s90 offen sc1
v_exp_f32 v39, v39
s_nop 0
v_add_f32 v39, 1.0, v39
v_rcp_f32 v39, v39
s_nop 0
ds_write_b32 v38, v39
{done}:
s_mov_b64 exec, -1
""")
        self.stamp(7, 3)
        a(f"""
s_lshl_b32 s73, {sP}, 3
s_add_u32 s73, s73, {sJ}
s_lshl_b32 s73, s73, 4
s_add_u32 s91, s73, {WS_FKV}
v_bfe_u32 v22, v0, 2, 2
v_lshl_add_u32 v19, v18, 3, v22
v_lshlrev_b32 v19, 6, v19
v_bfe_u32 v22, v0, 4, 1
v_lshl_add_u32 v19, v22, 5, v19
v_and_b32 v22, 3, v0
v_lshl_add_u32 v19, v22, 3, v19
s_and_b32 s73, {sW}, 1
s_mul_i32 s73, s73, {L_WQ1 - L_WQ0}
s_add_u32 s73, s73, {L_WQ0}
v_add_u32 v19, s73, v19
s_lshr_b32 s73, {sW}, 1
s_lshl_b32 s73, s73, 5
v_add_u32 v21, s73, v17
v_mul_u32_u24 v13, {XP}, v21
v_lshl_add_u32 v13, v18, 4, v13
v_mul_u32_u24 v26, 48, v4
v_add_u32 v26, {L_QS + 36}, v26
v_lshrrev_b32 v22, 1, v21
v_xor_b32 v22, v22, v18
v_and_b32 v22, 7, v22
v_lshlrev_b32 v22, 4, v22
v_lshl_add_u32 v6, v21, 7, v22
v_add_u32 v6, {L_X2}, v6
v_xor_b32 v7, 32, v6
v_xor_b32 v8, 64, v6
v_xor_b32 v9, 0x60, v6
v_mul_u32_u24 v22, 48, v21
v_add_u32 v22, {L_QS}, v22
v_lshl_add_u32 v23, v18, 3, v22
v_mul_u32_u24 v24, 3044, v18
v_add_u32 v24, v24, v22
s_lshl_b32 s73, {sW}, 4
v_add_u32 v25, s73, v14
v_mul_u32_u24 v25, 48, v25
v_lshl_add_u32 v25, v15, 3, v25
v_add_u32 v25, {L_QS + 3*3072 + 20}, v25
v_mov_b32 v27, 0
v_lshlrev_b32 v28, 4, v0
s_lshl_b32 s93, {sW}, 10
s_add_u32 s93, s93, {WS_FKV}
""")
        self.kv_addr()
        nf = a.label("NF")
        a(f"s_waitcnt vmcnt(0)\ns_mov_b64 exec, 1\nds_add_rtn_u32 v1, v2, v3 offset:{CF}\ns_mov_b64 exec, -1\ns_waitcnt lgkmcnt(0)")
        a(f"v_readfirstlane_b32 s73, v1\ns_cmp_lg_u32 s73, 3\ns_cbranch_scc1 {nf}")
        self.set_flag("s91")
        a(f"{nf}:")
        self.stamp(3, 3)
        RX, AM, AXQ = 64, 232, 248
        def rdm(t):
            b = RG + 8 * (t % 4)
            a(f"ds_read_b64_tr_b16 {vr(b,2)}, v19 offset:{t*1024}\nds_read_b64_tr_b16 {vr(b+2,2)}, v19 offset:{t*1024+256}")
            a(f"ds_read_b128 {vr(b+4,4)}, v13 offset:{t*32}" if t < 32 else f"ds_read_b128 {vr(b+4,4)}, v{6+t-32}")
        def mm(t):
            b = RG + 8 * (t % 4)
            a(f"v_mfma_f32_32x32x16_bf16 {vr(AM,16)}, {vr(b,4)}, {vr(b+4,4)}, {'0' if t == 0 else vr(AM,16)}")
        def stage(t0, t1):
            for t in range(t0, min(t0 + 3, t1)):
                rdm(t)
            for t in range(t0, t1):
                if t + 3 < t1:
                    rdm(t + 3)
                a(f"s_waitcnt lgkmcnt({3 * (min(t + 4, t1) - t - 1)})")
                mm(t)
        self.wait(C0A, 2, sleep=0)
        self.stamp(4, 3)
        stage(0, 12)
        self.add1(CE)
        self.wait(C0B, 2, sleep=0)
        flags = f"buffer_load_dword v84, v28, {SWS}, s93 offen sc1"
        stage(12, 20)
        self.wait(C0D, 2, sleep=0)
        stage(20, 28)
        self.wait(C0C, 2, sleep=0)
        self.stamp(9, 3)
        a(flags)
        seq = []
        xs = list(range(18))
        for t in range(28, 36):
            seq.append(("m", t))
            for _ in range(3 if t < 30 else 2):
                seq.append(("x", xs.pop(0)))
        assert not xs
        cost = lambda it: 3 if it[0] == "m" else 2
        def issue(it):
            if it[0] == "m": rdm(it[1])
            else: wrd("v16", "v12", it[1], RX + 4 * (it[1] % 3))
        AH = 3
        for it in seq[:AH]:
            issue(it)
        a(f"ds_read_b32 v31, v2 offset:{CE}")
        for i, it in enumerate(seq):
            ahead = sum(cost(x) for x in seq[i + 1:i + AH]) + (1 if i < AH else 0)
            a(f"s_waitcnt lgkmcnt({ahead})")
            if it[0] == "m":
                mm(it[1])
            else:
                T = it[1]
                a(f"v_mfma_f32_16x16x32_bf16 {vr(AXQ,4)}, {vr(RX+4*(T%3),4)}, {vr(XF+4*T,4)}, {'0' if T == 0 else vr(AXQ,4)}")
            if i + AH < len(seq):
                issue(seq[i + AH])
        self.stamp(8, 3)
        miss = a.label("KM")
        a("s_waitcnt vmcnt(0)")
        self.cmp_regs([84], sTAG)
        a(f"s_cselect_b32 s89, 1, 0\ns_cbranch_scc0 {miss}")
        self.kv_loads()
        a(f"{miss}:")
        self.stamp(11, 3)
        ok = a.label("CEOK")
        a(f"v_readfirstlane_b32 s73, v31\ns_cmp_ge_u32 s73, 4\ns_cbranch_scc1 {ok}")
        self.wait(CE, 4, sleep=0)
        a(f"{ok}:")
        a(f"ds_write_b32 v26, v27\nv_cvt_pk_bf16_f32 v{AXQ}, v{AXQ}, v{AXQ+1}\nv_cvt_pk_bf16_f32 v{AXQ+1}, v{AXQ+2}, v{AXQ+3}")
        a(f"s_mov_b32 exec_hi, 0\nds_write2_b32 v25, v{AXQ}, v{AXQ+1} offset0:0 offset1:1\ns_mov_b64 exec, -1")
        m1 = a.label("QM1"); md = a.label("QMD")
        a(f"s_bitcmp1_b32 {sW}, 0\ns_cbranch_scc1 {m1}")
        off = lambda c: (c // 18) * 3072 + (c % 18) * 2
        for m in range(2):
            if m == 1:
                a(f"s_branch {md}\n{m1}:")
            for k in range(8):
                c0 = 32 * m + 8 * (k // 2) + 2 * (k % 2)
                d = off(c0 + 4) - off(c0)
                assert d in (8, 3044)
                a(f"v_cvt_pk_bf16_f32 v{AM+k}, v{AM+2*k}, v{AM+2*k+1}")
                a(f"ds_write_b32 {'v23' if d == 8 else 'v24'}, v{AM+k} offset:{off(c0)}")
        a(f"{md}:")
        self.add1(C1)
        have = a.label("KH")
        a(f"s_cmp_eq_u32 s89, 1\ns_cbranch_scc1 {have}")
        self.poll(flags, [84], sleep=12)
        self.kv_loads()
        a(f"{have}:")
        self.stamp(10, 3); self.stamp(10)
        a(f"s_setprio 2\ns_mov_b32 s99, {OOB}\nv_mov_b32 v232, v2")

    def panel_setup(self, nw, va=14):
        self.a(f"""
v_lshrrev_b32 v{va}, 2, v0
v_mul_u32_u24 v{va}, 1152, v{va}
v_and_b32 v{va+1}, 3, v0
v_lshl_add_u32 v{va}, v{va+1}, 4, v{va}
v_mul_u32_u24 v{va+1}, 1152, v0
s_and_b32 s73, {sW}, {nw-1}
s_mul_i32 s84, s73, {16*1152}
s_add_u32 s84, s84, s95
s_lshl_b32 s85, s73, 10
""")

    def panel_loads(self, srd, l0, l1, lx, padded, end, nw, va=14):
        a = self.a
        lp = a.label("PNL")
        a(f"""
{lp}:
s_add_u32 m0, s85, {l0}
s_add_u32 s83, s84, 128
buffer_load_dwordx4 v{va}, {srd}, s84 offen lds
s_add_u32 m0, s85, {l1 - 64}
s_lshr_b32 s82, s85, 2
buffer_load_dwordx4 v{va}, {srd}, s84 offen offset:64 lds
""")
        if padded:
            a("s_lshr_b32 s73, s85, 13\ns_lshl_b32 s73, s73, 7\ns_add_u32 s82, s82, s73")
        a(f"""
s_add_u32 m0, s82, {lx}
s_mov_b64 exec, 0xffff
buffer_load_dwordx4 v{va+1}, {srd}, s83 offen lds
s_mov_b64 exec, -1
s_add_u32 s85, s85, {1024*nw}
s_add_u32 s84, s84, {16*nw*1152}
s_cmp_lt_u32 s85, {1024*end}
s_cbranch_scc1 {lp}
""")

    def l_front(self):
        a = self.a
        a(f"""
s_load_dword {sTAG}, s[26:27], {WS_EPOCH}
v_lshl_add_u32 v5, v0, 2, v2
v_mov_b32 v6, 0
ds_write_b32 v5, v6
s_sub_u32 s99, {sW}, 4
v_and_b32 v18, 31, v0
v_lshrrev_b32 v19, 5, v0
s_lshl_b32 s89, s99, 3
s_add_u32 s89, s89, {sJ}
s_cmp_ge_u32 s89, 18
s_cselect_b32 s89, 99, s89
v_bfe_u32 v20, v0, 2, 1
v_lshlrev_b32 v20, 4, v20
v_bfe_u32 v21, v0, 3, 2
v_lshl_add_u32 v20, v21, 2, v20
v_and_b32 v21, 3, v0
v_add_u32 v20, v20, v21
""")
        self.srd(SWS, 26, WS_SIZE)
        self.srd(SWQ, 12, 663552)
        FPRE = self.opt("fpre", 8)
        def fsetup():
            a(f"""
s_lshl_b32 s73, s89, 5
v_add_u32 v44, s73, v18
v_lshrrev_b32 v45, 1, v44
v_and_b32 v46, 1, v44
v_cmp_eq_u32 vcc, 1, v44
v_mov_b32 v47, 288
v_cndmask_b32 v45, v45, v47, vcc
v_cndmask_b32 v46, v46, 0, vcc
v_and_b32 v47, 1, v45
v_lshlrev_b32 v47, 31, v47
v_or_b32 v17, 1.0, v47
v_cvt_f32_u32 v45, v45
v_cvt_f32_u32 v46, v46
v_mul_f32 v45, {f32bits(1/576):#x}, v45
v_mul_f32 v46, 0x3e800000, v46
v_lshlrev_b32 v47, 3, v19
v_cvt_f32_u32 v47, v47
v_fma_f32 v46, v47, v45, v46
v_mul_f32 v55, 0x41800000, v45
""")
            for jj in range(8):
                a(f"s_mov_b32 s73, {f32bits(jj):#x}\nv_fma_f32 v{56+jj}, s73, v45, v46")
        def fgen(t):
            if t:
                a(f"s_mov_b32 s73, {f32bits(t):#x}")
            for jj in range(8):
                if t:
                    a(f"v_fma_f32 v{64+jj}, s73, v55, v{56+jj}\nv_cos_f32 v{64+jj}, v{64+jj}")
                else:
                    a(f"v_cos_f32 v{64+jj}, v{56+jj}")
            for k in range(4):
                a(f"v_cvt_pk_bf16_f32 v{104+4*t+k}, v{64+2*k}, v{65+2*k}")
        npre = a.label("NPRE"); n7 = a.label("NW7")
        if "wearly" in self.opts:
            a(f"v_mov_b32 v23, 0\ns_mov_b32 s98, {OOB}\ns_cmp_lg_u32 {sW}, 7\ns_cbranch_scc1 {n7}")
            self.wt_loads()
        a(f"{n7}:\ns_cmp_eq_u32 s89, 99\ns_cbranch_scc1 {npre}")
        fsetup()
        for t in range(FPRE):
            fgen(t)
        a(f"{npre}:\ns_waitcnt lgkmcnt(0)")
        self.tag()
        a("s_barrier")
        wqd = a.label("WQD")
        a(f"s_cmp_lt_u32 {sW}, 6\ns_cbranch_scc1 {wqd}")
        self.panel_setup(2)
        self.panel_loads(SWQ, L_WQ0, L_WQ1, L_P2Q, True, 20, 2)
        a("s_waitcnt vmcnt(12)")
        self.add1(C0A)
        self.panel_loads(SWQ, L_WQ0, L_WQ1, L_P2Q, True, 26, 2)
        self.wait(CK, 4, sleep=0)
        self.panel_loads(SWQ, L_WQ0, L_WQ1, L_P2Q, True, 36, 2)
        self.stamp(6, 3)
        a("s_waitcnt vmcnt(24)")
        self.add1(C0B)
        a("s_waitcnt vmcnt(12)")
        self.add1(C0D)
        a("s_waitcnt vmcnt(0)")
        self.add1(C0C)
        self.stamp(1, 3)
        a(f"{wqd}:")
        nod = a.label("NOD")
        a(f"s_cmp_eq_u32 s89, 99\ns_cbranch_scc1 {nod}")
        for t in range(FPRE, 18):
            fgen(t)
        self.stamp(9, 3)
        a(f"""
v_mul_u32_u24 v25, {XP}, v20
v_lshl_add_u32 v25, v19, 4, v25
v_lshrrev_b32 v22, 1, v20
v_xor_b32 v22, v22, v19
v_and_b32 v22, 7, v22
v_lshlrev_b32 v22, 4, v22
v_lshl_add_u32 v6, v20, 7, v22
v_add_u32 v6, {L_X2}, v6
v_xor_b32 v7, 32, v6
v_xor_b32 v8, 64, v6
v_xor_b32 v9, 0x60, v6
v_lshlrev_b32 v22, 12, v18
v_lshl_add_u32 v22, v19, 5, v22
s_lshl_b32 s90, s89, 17
s_lshl_b32 s73, {sP}, 7
s_add_u32 s90, s90, s73
s_add_u32 s90, s90, {WS_T}
""")
        RG = 44
        def frag(t, n, q):
            return vr(RG + 16 * (t % 3) + 8 * n + 4 * q, 4)
        def rd(t):
            for n in range(2):
                for q in range(2):
                    ks = t + 18 * q
                    if ks < 32:
                        a(f"ds_read_b128 {frag(t,n,q)}, v25 offset:{n*32*XP + ks*32}")
                    else:
                        a(f"ds_read_b128 {frag(t,n,q)}, v{6+ks-32} offset:{n*4096}")
        def dft(t0, t1):
            for t in range(t0, min(t0 + 2, t1)):
                rd(t)
            for t in range(t0, t1):
                if t + 2 < t1:
                    rd(t + 2)
                a(f"s_waitcnt lgkmcnt({4 * (min(t+3, t1) - t - 1)})")
                for n in range(2):
                    for q in range(2):
                        acc = vr(176 + 32 * n + 16 * q, 16)
                        a(f"v_mfma_f32_32x32x16_bf16 {acc}, {frag(t,n,q)}, {vr(104+4*t,4)}, {'0' if t == 0 else acc}")
        DPRE = self.opt("dpre", 10)
        if DPRE:
            self.wait(CK, 4)
            dft(0, DPRE)
        a("s_setprio 3")
        self.wait(C1, 4)
        self.stamp(3, 3)
        dft(DPRE, 18)
        self.stamp(8, 3)
        self.wait(CV, 4)
        for n in range(2):
            b = 176 + 32 * n
            for r in range(16):
                a(f"v_fma_f32 v{b+r}, v17, v{b+16+r}, v{b+r}")
            for k in range(8):
                a(f"v_cvt_pk_bf16_f32 v{b+k}, v{b+2*k}, v{b+2*k+1}")
            a(f"buffer_store_dwordx4 {vr(b,4)}, v22, {SWS}, s90 offen offset:{64*n} sc1")
            a(f"buffer_store_dwordx4 {vr(b+4,4)}, v22, {SWS}, s90 offen offset:{64*n+16} sc1")
        a("s_waitcnt vmcnt(0)")
        self.add1(CD)
        self.stamp(4, 3); self.stamp(4)
        a(f"{nod}:")

    def g_gen(self):
        a = self.a
        N = 1.0 / (M.S * M.D)
        skip = a.label("GS"); nx = a.label("GNX"); nk = a.label("GNK")
        assert all((f * 1821) >> 16 == f // 36 for f in range(864))
        assert all((f * 21846) >> 16 == f // 3 for f in range(24))
        a(f"""
s_mov_b32 s99, {OOB}
s_cmp_ge_u32 s2, 216
s_cbranch_scc1 {skip}
s_lshl_b32 s90, s2, 2
s_lshl_b32 s99, s2, 12
s_add_u32 s99, s99, {WS_G}
s_mul_i32 s91, s90, 1821
s_lshr_b32 s91, s91, 16
s_mul_i32 s73, s91, 36
s_sub_u32 s92, s90, s73
s_mul_i32 s93, s91, 21846
s_lshr_b32 s93, s93, 16
s_mul_i32 s73, s93, 3
s_sub_u32 s91, s91, s73
s_mul_i32 s93, s93, 72
s_lshl_b32 s73, s91, 5
s_add_u32 s93, s93, s73
v_mov_b32 v44, v20
s_cmp_lg_u32 s91, 2
s_cbranch_scc1 {nx}
v_mov_b32 v44, v18
{nx}:
v_add_u32 v44, s93, v44
s_lshl_b32 s73, s92, 3
v_lshl_add_u32 v45, v19, 2, s73
v_mul_u32_u24 v45, v45, v44
v_mul_u32_u24 v47, 5, v44
s_mov_b32 s73, {f32bits(1/576):#x}
s_mov_b32 s93, {f32bits(2*N):#x}
""")
        for fr in range(4):
            for cq in range(4):
                a(f"v_cvt_f32_u32 v46, v45\nv_mul_f32 v46, s73, v46\nv_fract_f32 v46, v46")
                a(f"v_cos_f32 v{48+2*cq}, v46\nv_sin_f32 v{49+2*cq}, v46")
                a("v_add_u32 v45, v45, v44" if cq < 3 else "v_add_u32 v45, v45, v47")
            for cq in range(4):
                a(f"v_mul_f32 v{48+2*cq}, s93, v{48+2*cq}\nv_mul_f32 v{49+2*cq}, s93, -v{49+2*cq}")
            if fr == 0:
                a(f"""
s_cmp_lg_u32 s92, 0
s_cbranch_scc1 {nk}
s_mov_b32 exec_hi, 0
v_mov_b32 v48, {f32bits(N):#x}
v_lshlrev_b32 v49, 31, v44
v_or_b32 v49, v48, v49
s_mov_b64 exec, -1
{nk}:
""")
            for k in range(4):
                a(f"v_cvt_pk_bf16_f32 v{240+4*fr+k}, v{48+2*k}, v{49+2*k}")
        a(f"{skip}:")

    WB = 112

    def poison(self):
        a = self.a
        a(f"v_lshlrev_b32 v24, 4, v0\nv_mov_b32 v28, -1\nv_mov_b32 v29, -1\nv_mov_b32 v30, -1\nv_mov_b32 v31, -1")
        a(f"s_mul_i32 s90, {sP}, {8*9216}\ns_add_u32 s90, s90, {WS_OF}\ns_mul_i32 s91, {sJ}, 9216\ns_add_u32 s91, s91, s90\ns_add_u32 s91, s91, 8192")
        a(f"buffer_store_dwordx4 v[28:31], v24, {SWS}, s91 offen sc1\ns_lshl_b32 s73, {sJ}, 10\ns_add_u32 s90, s90, s73")
        for i in range(8):
            a(f"buffer_store_dwordx4 v[28:31], v24, {SWS}, s90 offen sc1\ns_add_u32 s90, s90, 9216")

    def wt_loads(self):
        a = self.a
        self.srd(SWR, 6, 2048 * 578)
        self.srd(SWI, 8, 2048 * 578)
        a(f"""
v_and_b32 v26, 7, v0
v_lshrrev_b32 v27, 3, v0
v_mul_u32_u24 v22, 578, v26
v_mad_u32_u24 v22, v27, 18, v22
s_lshr_b32 s93, s2, 6
s_bfe_u32 s92, s2, 0x20004
s_and_b32 s88, s2, 15
s_lshl_b32 s90, s88, 7
s_lshl_b32 s73, s92, 3
s_add_u32 s90, s90, s73
s_mul_i32 s90, s90, 578
s_mul_i32 s73, s93, 144
s_add_u32 s90, s90, s73
""")
        for jr in range(4):
            for ri, srd in enumerate((SWR, SWI)):
                b = self.WB + 24 * ri + 6 * jr
                a(f"buffer_load_dwordx4 {vr(b,4)}, v22, {srd}, s90 offen\nbuffer_load_dword v{b+4}, v22, {srd}, s90 offen offset:16")
            if jr < 3:
                a(f"s_add_u32 s90, s90, {32*578}")
        a(f"""
s_mov_b32 s73, {9*8192}
v_mul_lo_u32 v23, v27, s73
v_lshl_add_u32 v23, v26, 4, v23
s_mul_i32 s98, s93, {72*8192}
s_lshl_b32 s73, s88, 8
s_add_u32 s98, s98, s73
s_and_b32 s73, s92, 1
s_lshl_b32 s73, s73, 7
s_add_u32 s98, s98, s73
s_lshr_b32 s73, s92, 1
s_lshl_b32 s73, s73, 12
s_add_u32 s98, s98, s73
s_add_u32 s98, s98, {WS_WT}
""")

    def wt_stores(self):
        a = self.a
        last = a.label("WL")
        a("s_mov_b32 s92, 0x05040100\ns_mov_b32 s93, 0x07060302")
        for x in range(10):
            if x == 9:
                a(f"s_cmp_lt_u32 s2, 192\ns_cbranch_scc1 {last}\ns_mov_b32 exec_lo, 0\ns_mov_b32 exec_hi, 0xff000000")
            t = self.WB + 48 + 4 * (x % 3)
            for ri in range(2):
                for pr in range(2):
                    lo = self.WB + 24 * ri + 12 * pr + x // 2
                    a(f"v_perm_b32 v{t+2*ri+pr}, v{lo+6}, v{lo}, {'s93' if x % 2 else 's92'}")
            a(f"buffer_store_dwordx4 {vr(t,4)}, v23, {SWS}, s98 offen sc1\ns_add_u32 s98, s98, 8192")
        a(f"s_mov_b64 exec, -1\n{last}:")

    def s_flag(self):
        a = self.a
        self.g_gen()
        a("s_setprio 3\nv_lshlrev_b32 v24, 4, v0")
        self.wait(CV, 4)
        self.stamp(3, 3)
        if "wearly" not in self.opts:
            self.wt_loads()
            a("s_waitcnt vmcnt(0)")
        self.wt_stores()
        for fr in range(4):
            a(f"buffer_store_dwordx4 {vr(240+4*fr,4)}, v24, {SWS}, s99 offen offset:{1024*fr} sc1")
        self.stamp(10, 3)
        self.flag4("s91", "s2", WS_FS)
        a("s_waitcnt vmcnt(0)")
        self.stamp(11, 3)
        a(f"s_cmp_lt_u32 {sJ}, 2\ns_cselect_b32 s90, 3, 2")
        self.wait(CD, "s90", sleep=2)
        self.set_flag("s91")
        self.add1(CW)
        self.stamp(6); self.stamp(2, 3)
        self.stage2_tables()

    def attention(self):
        a = self.a
        K0, KX0, V0, S0, O0, Q0, QX0 = self.AK, self.AKX, self.AV, self.AS, self.AO, self.AQ, self.AQX
        a(f"""
v_and_b32 v84, 31, v0
v_lshrrev_b32 v85, 5, v0
s_lshr_b32 s88, {sW}, 2
s_mul_i32 s73, s88, 6144
s_add_u32 s73, s73, {L_QS}
v_mul_u32_u24 v{self.vQ}, 48, v84
v_add_u32 v{self.vQ}, s73, v{self.vQ}
v_lshl_add_u32 v{self.vQX}, v85, 2, v{self.vQ}
v_add_u32 v{self.vQX}, 32, v{self.vQX}
v_lshl_add_u32 v{self.vQ}, v85, 4, v{self.vQ}
s_and_b32 s73, {sW}, 3
s_mul_i32 s73, s73, 2560
s_add_u32 s73, s73, {L_EX}
v_lshl_add_u32 v{self.vEX}, v0, 4, s73
s_add_u32 s73, s73, 2048
v_lshl_add_u32 v{self.vEX2}, v0, 3, s73
s_lshl_b32 s73, s88, 4
v_add_u32 v{self.vCT}, s73, v2
s_mul_i32 s73, s88, {CN - C1}
v_add_u32 v86, s73, v2
v_mov_b32 v{QX0+1}, 0
v_mov_b32 v{QX0+2}, 0
""")
        self.wait(C1, 4, sleep=0)
        self.stamp(5); self.stamp(5, 3)
        qmain = lambda q: f"ds_read_b128 {vr(Q0,4)}, v{self.vQ} offset:{1536*(q%4)}"
        qx = lambda q: f"ds_read_b32 v{QX0}, v{self.vQX} offset:{1536*(q%4)}\nds_read_b32 v{QX0+3}, v{self.vQX} offset:{1536*(q%4)}"
        a(qmain(0)); a(qx(0))
        issued = []
        for t in range(self.NFIRST):
            issued += [("K", t), ("X", t), ("V0", t), ("V1", t)]
        state = {"done": 0}
        def need(*keys):
            idx = max(issued.index(k) for k in keys) + 1
            if idx > state["done"]:
                state["done"] = idx
                return [f"s_waitcnt vmcnt({len(issued) - idx})"]
            return []
        def reload(kind, t):
            ins = self.ld_k(8 + t, t) if kind == "K" else self.ld_v(8 + t, t)
            issued.extend([("K", 8 + t), ("X", 8 + t)] if kind == "K" else [("V0", 8 + t), ("V1", 8 + t)])
            return list(ins)
        sreg = lambda g: S0 + 16 * (g % 2)
        oreg = lambda ps: O0 + 10 * (ps % 4)
        def qk16(g):
            return f"v_mfma_f32_32x32x16_bf16 {vr(sreg(g),16)}, {vr(K0+4*(g%8),4)}, {vr(Q0,4)}, 0"
        def qkx(g):
            return f"v_mfma_f32_32x32x8_bf16 {vr(sreg(g),16)}, {vr(KX0+2*((g%8)//2),2)}, {vr(QX0+2*(g%2),2)}, {vr(sreg(g),16)}"
        def pv(g, u):
            o = vr(oreg(g // 8), 16)
            c = "0" if (g // 8 < 4 and g % 8 == 0 and u == 0) else o
            return f"v_mfma_f32_32x32x16_bf16 {o}, {vr(V0+8*(g%8)+4*u,4)}, {vr(sreg(g)+4*u,4)}, {c}"
        kt = lambda g: (g % 8) + (8 if g >= 32 else 0)
        def kneed(g):
            t = kt(g)
            return need(("K", t), ("X", t), ("X", t ^ 1)) if ("X", t ^ 1) in issued else need(("K", t), ("X", t))
        def export(q):
            o = O0 + 10 * q
            return [f"ds_write_b128 v{self.vEX}, {vr(o,4)} offset:{10240*q}", f"ds_write_b128 v{self.vEX}, {vr(o+4,4)} offset:{10240*q+1024}",
                    f"ds_write_b64 v{self.vEX2}, {vr(o+8,2)} offset:{10240*q}",
                    f"s_mov_b64 exec, 1\nds_add_u32 v{self.vCT}, v3 offset:{CT+4*q}\ns_mov_b64 exec, -1"]
        for x in kneed(0) + ["s_waitcnt lgkmcnt(0)", qk16(0), qkx(0)]:
            a(x)
        for g in range(64):
            ps, t = divmod(g, 8)
            s = sreg(g)
            e = lambda i: f"v_exp_f32 v{s+i}, v{s+i}"
            c = lambda k: f"v_cvt_pk_bf16_f32 v{s+k}, v{s+2*k}, v{s+2*k+1}"
            seq = [e(0), e(1)]
            if g > 0:
                seq += need(("V1", kt(g - 1))) + [pv(g - 1, 1)]
                if g - 1 in range(24, 32):
                    seq += reload("V", (g - 1) % 8)
            seq += [e(2), e(3), c(0), e(4), c(1)]
            last = g == 63
            if not last:
                seq += kneed(g + 1) + (["s_waitcnt lgkmcnt(0)"] if t == 7 else []) + [qk16(g + 1)]
                if t == 6 and ps < 7:
                    seq.append(qmain(ps + 1))
            seq += [e(5), e(6), e(7), c(2), e(8), c(3)]
            if not last:
                seq.append(qkx(g + 1))
                if t == 6 and ps < 7:
                    seq.append(qx(ps + 1))
                if g + 1 in range(24, 32):
                    seq += reload("K", (g + 1) % 8)
            if g + self.NFIRST < 8:
                issued.extend([(k, g + self.NFIRST) for k in ("K", "X", "V0", "V1")])
            tail = [e(9), e(10), e(11), c(4), e(12), c(5)] + need(("V0", kt(g))) + [pv(g, 0), e(13), e(14), e(15), c(6), c(7)]
            if g + self.NFIRST < 8:
                tn = g + self.NFIRST
                ins = list(self.ld_k(tn, tn) + self.ld_v(tn, tn))
                for k, i in enumerate((9, 10, 11, 12)):
                    tail.insert(tail.index(e(i)) + 1, ins[k])
                if tn == 7:
                    tail.append(f"s_mov_b64 exec, 1\nds_add_u32 v2, v3 offset:{CV}\ns_mov_b64 exec, -1")
            if ps >= 5 and t == 0:
                ex = export(ps - 5)
                for k, i in enumerate((9, 10, 11, 12)):
                    tail.insert(tail.index(e(i)) + 1, ex[k])
            if g == 4:
                nf = a.label("NYF")
                tail.append(f"s_cmp_eq_u32 s99, {OOB}\ns_cbranch_scc1 {nf}\ns_mov_b64 exec, 1\nds_add_rtn_u32 v233, v232, v3 offset:{YA}\n"
                            f"v_mov_b32 v1, {sTAG}\ns_waitcnt lgkmcnt(0)\nv_readfirstlane_b32 s73, v233\ns_cmp_lg_u32 s73, 1\ns_cmov_b32 s99, {OOB}\n"
                            f"buffer_store_dword v1, off, {SWS}, s99 sc1\ns_mov_b64 exec, -1\ns_setprio 1\n{nf}:")
            if g == 36:
                tail.append(f"ds_read_b32 v87, v86 offset:{C1}")
            if g == 38:
                ok = a.label("CNOK")
                tail.append(f"s_waitcnt lgkmcnt(0)\nv_readfirstlane_b32 s73, v87\ns_cmp_ge_u32 s73, 4\ns_cbranch_scc1 {ok}")
                tail.append(("wait", ok))
            for x in seq + tail:
                if isinstance(x, tuple):
                    self.wait(C1, 4, sleep=2, base="v86")
                    a(f"{x[1]}:")
                else:
                    a(x)
            if g == 7:
                self.stamp(11)
        a(pv(63, 1))
        self.norm_setup(1)
        ex = export(3)
        for x in ex[:3]:
            a(x)
        a(f"s_mov_b64 exec, 1\nds_add_rtn_u32 v1, v{self.vCT2}, v3 offset:{CT+12}\ns_mov_b64 exec, -1")

    T64, T32A, TW1, TW2, T32B, NTAB = 0, 24, 27, 35, 43, 49
    NPRE = 35

    def make_tables(self):
        L = np.arange(64); Lm = (L & 15)[:, None]; Lg = (L >> 4)[:, None]
        jj = np.arange(8)[None, :]; r = np.arange(4)[None, :]
        def pk(v):
            b = M.bf(v.astype(np.float32)).astype(np.uint32)
            return (b[:, 0::2] | (b[:, 1::2] << 16)).astype(np.uint32)
        parts = lambda z: (z.real, z.imag, -z.imag)
        w = lambda n, x, y: np.exp(-2j * np.pi * ((x * y) % n) / n)
        f32 = lambda v: v.astype(np.float32).view(np.uint32)
        out = []
        for H in range(2):
            for k in range(3):
                for t in range(4):
                    for ks in range(2):
                        out.append(pk(parts(w(64, 16 * (t ^ (2 * H)) + Lm, 32 * (ks ^ H) + 16 * (jj >> 2) + 4 * Lg + (jj & 3)))[k]))
            for k in range(3):
                out.append(pk(parts(w(32, 8 * Lg + jj, 16 * H + Lm))[k]))
            for t in range(4):
                z = w(2048, 16 * (t ^ (2 * H)) + 4 * Lg + r, 16 * H + Lm)
                out += [f32(z.real), f32(z.imag)]
            for t in range(4):
                z = np.conj(w(2048, 16 * (t ^ (2 * H)) + Lm, 16 * H + 4 * Lg + r))
                out += [f32(z.real), f32(z.imag)]
            for k in range(3):
                for at in range(2):
                    out.append(pk(parts(w(32, 8 * (Lm >> 2) + 4 * at + (Lm & 3), 16 * (H ^ (jj >> 2)) + 4 * Lg + (jj & 3)))[k]))
        return np.concatenate([o.reshape(-1) for o in out])

    def tload(self, frag, dst):
        if self.tgroup != frag // 4:
            self.tgroup = frag // 4
            self.a(f"s_add_u32 s88, s87, {(frag // 4) * 4096}")
        self.a(f"buffer_load_dwordx4 {vr(dst,4)}, v5, {STB}, s88 offen offset:{(frag % 4) * 1024}")

    def stage2_tables(self):
        a = self.a
        a(f"""
s_getpc_b64 s[64:65]
s_add_u32 s64, s64, spectral_tables@rel32@lo+4
s_addc_u32 s65, s65, spectral_tables@rel32@hi+12
s_mov_b32 s66, {2*self.NTAB*1024}
s_mov_b32 s67, 0x20000
v_lshlrev_b32 v5, 4, v0
s_and_b32 s86, {sW}, 1
s_mul_i32 s87, s86, {self.NTAB*1024}
""")
        self.tgroup = None
        for f in range(24):
            self.tload(self.T64 + f, 80 + 4 * f)
        for f in range(3):
            self.tload(self.T32A + f, 240 + 4 * f)
        for f in range(8):
            self.tload(self.TW1 + f, 16 + 4 * f)

    def stage2(self):
        a = self.a
        A, P, Q, TW, WW, PK, TMP = 80, 48, 176, 16, 208, 240, 8
        self.tgroup = None
        a(f"""
v_and_b32 v6, 15, v0
v_lshlrev_b32 v6, 6, v6
v_lshrrev_b32 v7, 4, v0
v_lshl_add_u32 v6, v7, 4, v6
s_lshl_b32 s90, s89, 13
s_add_u32 s91, s90, 4096
s_cmp_eq_u32 s89, 288
s_cmov_b32 s90, 4096
s_cmov_b32 s91, {OOB}
s_cmp_eq_u32 s89, 0
s_cmov_b32 s91, {OOB}
s_lshl_b32 s73, s86, 11
s_add_u32 s90, s90, s73
s_add_u32 s91, s91, s73
s_lshl_b32 s85, s86, 12
s_sub_u32 s85, 2048, s85
s_lshr_b32 s73, {sW}, 1
s_and_b32 s73, s73, 1
s_xor_b32 s73, s73, 1
s_lshl_b32 s99, s73, 2
s_lshl_b32 s73, s73, 12
s_lshl_b32 s84, s86, 11
s_add_u32 s73, s73, s84
s_add_u32 s73, s73, {L_XCH}
v_add_u32 v7, s73, v5
s_sub_u32 s73, s73, s84
s_xor_b32 s84, s84, 0x800
s_add_u32 s84, s84, s73
s_sleep {self.opt('d2', 16)}
""")
        self.go_wait(WS_GOS, 252, 6)
        cg = a.label("CG")
        a(f"s_cmp_lg_u32 {sW}, 7\ns_cbranch_scc1 {cg}")
        self.add1(CG)
        a(f"{cg}:")
        self.stamp(7)
        self.stamp(1, 2)
        a(f"s_add_u32 s92, s90, {WS_T}\ns_add_u32 s93, s91, {WS_T}\ns_add_u32 s82, s92, s85\ns_add_u32 s83, s93, s85")
        for t in range(4):
            for ri in range(2):
                so = (("s92", "s93"), ("s82", "s83"))[t >> 1][ri]
                a(f"buffer_load_dwordx4 {vr(WW+8*t+4*ri,4)}, v6, {SWS}, {so} offen offset:{1024*(t&1)} sc1")
        mf = lambda acc, x, y, first: a(f"v_mfma_f32_16x16x32_bf16 {vr(acc,4)}, {vr(x,4)}, {vr(y,4)}, {'0' if first else vr(acc,4)}")
        re = lambda base, t: base + 8 * t
        im = lambda base, t: base + 8 * t + 4
        for t in range(4):
            a(f"s_waitcnt vmcnt({6 - 2*t})")
            if t == 0: self.stamp(2, 2)
            mf(re(P, t), re(WW, t), PK, True); mf(im(P, t), re(WW, t), PK + 4, True)
            mf(re(P, t), im(WW, t), PK + 8, False); mf(im(P, t), im(WW, t), PK, False)
        a(f"s_lshl_b32 s92, s89, 13\ns_lshl_b32 s73, s86, 12\ns_add_u32 s92, s92, s73\ns_lshl_b32 s73, s86, 11\ns_add_u32 s92, s92, s73\ns_add_u32 s92, s92, {WS_WT}")
        a("s_add_u32 s82, s92, s85")
        for t in range(4):
            a(f"buffer_load_dwordx4 {vr(WW+8*t+4,4)}, v5, {SWS}, {('s92', 's82')[t >> 1]} offen offset:{1024*(t&1)} sc1")
        def cmul(x, c, dst):
            for t in range(4):
                ops = []
                for h in range(2):
                    t0, t1 = TMP + 4 * h, TMP + 4 * h + 2
                    xr, xi, cr, ci = re(x, t) + 2 * h, im(x, t) + 2 * h, re(c, t) + 2 * h, im(c, t) + 2 * h
                    ops.append([f"v_pk_mul_f32 {vr(t0,2)}, {vr(xr,2)}, {vr(cr,2)}",
                                f"v_pk_mul_f32 {vr(t1,2)}, {vr(xr,2)}, {vr(ci,2)}",
                                f"v_pk_fma_f32 {vr(t0,2)}, {vr(xi,2)}, {vr(ci,2)}, {vr(t0,2)} neg_lo:[1,0,0] neg_hi:[1,0,0]",
                                f"v_pk_fma_f32 {vr(t1,2)}, {vr(xi,2)}, {vr(cr,2)}, {vr(t1,2)}",
                                f"v_cvt_pk_bf16_f32 v{dst(t,0)+h}, v{t0}, v{t0+1}",
                                f"v_cvt_pk_bf16_f32 v{dst(t,1)+h}, v{t1}, v{t1+1}"])
                for j in range(0, 6, 2):
                    for o in ops:
                        a(o[j]); a(o[j + 1])
        pkd = lambda t, part: PK + 8 * part + 2 * t
        ks_ = lambda part, ks: PK + 8 * part + 4 * ks
        t64 = lambda k, t, ks: A + 32 * k + 8 * t + 4 * ks
        self.stamp(3, 2)
        cmul(P, TW, pkd)
        self.stamp(4, 2)
        for f in range(8):
            self.tload(self.TW2 + f, TW + 4 * f)
        for t in range(4):
            for ks in range(2):
                mf(re(Q, t), t64(0, t, ks), ks_(0, ks), ks == 0); mf(im(Q, t), t64(1, t, ks), ks_(0, ks), ks == 0)
            for ks in range(2):
                mf(re(Q, t), t64(2, t, ks), ks_(1, ks), False); mf(im(Q, t), t64(0, t, ks), ks_(1, ks), False)
        self.stamp(5, 2)
        a("s_waitcnt vmcnt(8)")
        for t in range(4):
            b = WW + 8 * t
            for k in range(4):
                a(f"v_lshlrev_b32 v{b+2*k}, 16, v{b+4+k}\nv_and_b32 v{b+2*k+1}, 0xffff0000, v{b+4+k}" if k < 2 else "")
            a(f"v_and_b32 v{b+5}, 0xffff0000, v{b+6}\nv_lshlrev_b32 v{b+4}, 16, v{b+6}\nv_lshlrev_b32 v{b+6}, 16, v{b+7}\nv_and_b32 v{b+7}, 0xffff0000, v{b+7}")
        cmul(Q, WW, pkd)
        self.stamp(6, 2)
        for f in range(6):
            self.tload(self.T32B + f, WW + 4 * f)
        for t in (2, 3, 0, 1):
            for ks in range(2):
                mf(re(P, t), ks_(0, ks), t64(0, t, ks), ks == 0); mf(im(P, t), ks_(1, ks), t64(0, t, ks), ks == 0)
            for ks in range(2):
                mf(re(P, t), ks_(1, ks), t64(1, t, ks), False); mf(im(P, t), ks_(0, ks), t64(2, t, ks), False)
        self.stamp(7, 2)
        a("v_add_u32 v232, s99, v2")
        self.kv_addr()
        self.kv_loads()
        a(f"s_waitcnt vmcnt({6 + 4 * self.NFIRST})")
        cmul(P, TW, lambda t, part: (PK + 8 * t + 4 * part) if t < 2 else (Q + 4 * (t - 2) + 2 * part))
        a(f"ds_write_b128 v7, {vr(Q,4)}\nds_write_b128 v7, {vr(Q+4,4)} offset:1024")
        self.add1(XA, base="v232")
        a("v_add_u32 v7, s84, v5")
        self.wait(XA, 2, sleep=0, base="v232")
        for t in range(2):
            for part in range(2):
                a(f"ds_read_b64 {vr(PK+8*t+4*part+2,2)}, v7 offset:{1024*t+8*part}")
        self.stamp(8, 2)
        a(f"s_waitcnt vmcnt({4 * self.NFIRST}) lgkmcnt(0)")
        t32 = lambda k, at: WW + 8 * k + 4 * at
        out = lambda t, part, at: Q + 16 * t + 8 * part + 4 * at
        for t in range(2):
            for at in range(2):
                mf(out(t, 0, at), t32(0, at), PK + 8 * t, True); mf(out(t, 1, at), t32(0, at), PK + 8 * t + 4, True)
            for at in range(2):
                mf(out(t, 0, at), t32(1, at), PK + 8 * t + 4, False); mf(out(t, 1, at), t32(2, at), PK + 8 * t, False)
        a(f"s_add_u32 s92, s90, {WS_Y}\ns_add_u32 s93, s91, {WS_Y}")
        for t in range(2):
            for part in range(2):
                b = out(t, part, 0); d = 48 + 8 * t + 4 * part
                for k in range(4):
                    a(f"v_cvt_pk_bf16_f32 v{d+k}, v{b+2*k}, v{b+2*k+1}")
                a(f"buffer_store_dwordx4 {vr(d,4)}, v6, {SWS}, {'s93' if part else 's92'} offen offset:{1024*t} sc1")
        self.stamp(9, 2)
        self.flag4("s99", "s89", WS_FY)

    def l_mid(self):
        a = self.a
        go = a.label("S2"); no = a.label("NS2"); n7 = a.label("N7"); kv = a.label("LKV"); tb = a.label("TB"); nw = a.label("NW")
        a(f"s_mov_b32 s89, s2\ns_cmp_lg_u32 {sW}, 7\ns_cbranch_scc1 {n7}")
        self.s_flag()
        a(f"s_mov_b32 s89, s2\ns_branch {go}\n{n7}:")
        self.wait(CW, 1, sleep=4, idle=True)
        n5 = a.label("N5")
        a(f"s_cmp_lg_u32 {sW}, 5\ns_cbranch_scc1 {n5}")
        self.poison()
        a(f"s_lshl_b32 s91, s2, 2\ns_add_u32 s91, s91, {WS_FP}")
        a("s_waitcnt vmcnt(0)")
        self.set_flag("s91")
        a(f"{n5}:\ns_setprio 3\ns_cmp_eq_u32 {sW}, 6\ns_cbranch_scc1 {tb}")
        a(f"""
s_add_u32 s89, s2, 192
s_sub_u32 s73, s2, 64
s_cmp_gt_u32 s73, 32
s_cbranch_scc1 {nw}
{tb}:
""")
        self.stage2_tables()
        a(f"{go}:")
        self.stage2()
        a(f"s_branch {kv}\n{nw}:")
        wo = a.label("WOD")
        a(f"s_cmp_lg_u32 {sW}, 4\ns_cbranch_scc1 {wo}\ns_lshr_b32 s73, s2, 3\ns_cmp_lg_u32 s73, 16\ns_cbranch_scc1 {wo}")
        a(f"v_lshlrev_b32 v9, 7, v0\ns_mov_b32 s92, {WS_FS}")
        self.poll(f"buffer_load_dwordx4 v[12:15], v9, {SWS}, s92 offen sc1", [12, 13, 14, 15], sleep=4)
        a(f"s_and_b32 s92, s2, 7\ns_lshl_b32 s92, s92, 7\ns_add_u32 s92, s92, {WS_GOS}")
        self.set_flag("s92")
        a(f"{wo}:")
        self.srd(SWO, 18, 663552)
        self.panel_setup(2)
        self.panel_loads(SWO, L_WO0, L_WO1, L_WOX, False, 36, 2)
        a("s_waitcnt vmcnt(0)")
        self.add1(S3)
        self.add1(S3)
        a(f"{no}:\ns_mov_b32 s99, {OOB}")
        self.kv_addr()
        self.kv_loads()
        a(f"s_setprio 1\n{kv}:")
        self.stamp(9)

    NT = 192

    def tail(self, mm, n):
        a = self.a
        ACC, ACX = 16, 32
        WF = 48
        NT = self.NT
        w = 2 * mm + n
        a("s_setprio 3")
        self.norm_setup(1 - n)
        a(f"""
ds_read_b32 v11, v14 offset:{256 + 128 * n}
v_and_b32 v37, 15, v0
v_lshrrev_b32 v38, 4, v0
v_lshl_add_u32 v14, v37, 2, v2
ds_read_b32 v36, v14 offset:{256 + 128 * n + 64 * mm}
v_bfe_u32 v43, v0, 2, 2
v_and_b32 v44, 3, v0
v_bfe_u32 v46, v0, 4, 1
v_and_b32 v39, 1, v44
v_lshlrev_b32 v15, 2, v39
v_lshl_add_u32 v15, v46, 1, v15
v_lshrrev_b32 v14, 1, v44
v_add_u32 v45, v15, v14
v_lshlrev_b32 v45, 3, v45
v_add_u32 v45, {L_WO1 if mm else L_WO0}, v45
v_lshl_add_u32 v6, v13, 2, v43
v_lshl_add_u32 v6, v6, 6, v45
v_lshrrev_b32 v7, 1, v43
v_mul_u32_u24 v7, 72, v7
v_and_b32 v14, 1, v43
v_add3_u32 v40, v7, v14, 16
v_lshl_add_u32 v7, v40, 6, v45
v_mul_u32_u24 v14, 18432, v13
v_add_u32 v7, v7, v14
v_lshlrev_b32 v39, 3, v39
v_add_u32 v39, {L_WOX}, v39
v_mul_u32_u24 v15, 288, v46
v_add_u32 v15, v15, v40
v_lshl_add_u32 v15, v15, 4, v39
v_mul_u32_u24 v14, 72, v13
v_lshl_add_u32 v14, v46, 2, v14
v_add_u32 v14, v14, v43
v_lshl_add_u32 v14, v14, 4, v39
v_lshlrev_b32 v41, 4, v37
v_lshl_add_u32 v41, v46, 9, v41
v_lshl_add_u32 v47, v13, 10, v41
v_cmp_gt_u32 vcc, 32, v0
v_mov_b32 v40, {OOB}
v_add_u32 v41, {256 * mm}, v47
v_cndmask_b32 v42, v40, v41, vcc
v_cmp_gt_u32 vcc, 8, v37
s_nop 0
v_cndmask_b32 v47, v40, v47, vcc
s_waitcnt lgkmcnt(0)
v_sub_f32 v4, 1.0, v4
""")

        normalize = self.normalize

        def wrow(kind, k, hh, u):
            if kind == "m":
                return ("v6", (72 * k + 18 * hh + 8 * u) * 64) if k < 8 else ("v7", (144 * u + 18 * hh) * 64)
            return ("v14", (144 * k + 18 * hh + 8 * u) * 16) if k < 4 else ("v15", (144 * u + 18 * hh) * 16)

        def consume(i, probe):
            OB, AX = 192, 248
            hh = i >> 1
            seq = []
            for ks in range(9):
                seq.append(("m", ks))
                if ks % 2 == 1 or ks == 8: seq.append(("x", ks // 2))
            def rd(k):
                for u in range(2):
                    base, off = wrow("x", k, hh, u)
                    a(f"ds_read_b64_tr_b16 {vr(AX+4*(k%2)+2*u,2)}, {base} offset:{off}")
            rd(0); rd(1)
            if probe:
                l = a.label("CP"); d = a.label("CQ")
                a(f"{l}:\ns_add_u32 s90, s94, {i*9216 + 8192}\nbuffer_load_dwordx4 {vr(OB,4)}, v5, {SWS}, s90 offen sc1")
                a(f"s_waitcnt vmcnt(0)\nv_max_u32 v1, v{OB}, v{OB+1}\nv_max3_u32 v1, v1, v{OB+2}, v{OB+3}")
                a(f"v_cmp_eq_u32 vcc, -1, v1\ns_cmp_eq_u64 vcc, 0\ns_cbranch_scc1 {d}")
                a(f"s_sleep 8\ns_sub_u32 {sSPIN}, {sSPIN}, 1\ns_cbranch_scc0 {l}\ns_branch L_bail\n{d}:")
            l = a.label("CL"); d = a.label("CD")
            a(f"{l}:")
            chk = []
            oreg = lambda it: OB + (4 * it[1] if it[0] == "m" else 36 + 4 * it[1])
            for it in seq:
                kind, k = it
                if kind == "m" and k % 4 == 0:
                    a(f"s_add_u32 s90, s94, {i*9216 + 1024*k}")
                voff, last = ("v5", k == 8) if kind == "m" else ("v41" if k < 4 else "v42", k == 4)
                imm = 1024 * (k % 4) if kind == "m" else 2048 * (k % 2)
                a(f"buffer_load_dwordx4 {vr(oreg(it),4)}, {voff}, {SWS}, s90 offen offset:{imm} sc1")
                chk.append([oreg(it) + r for r in range(4 if last else 1)])
            flat = [(j, r) for j, rs in enumerate(chk) for r in rs]
            a(f"s_waitcnt vmcnt({len(chk) - 2})\nv_max_u32 v1, v{flat[0][1]}, v{flat[1][1]}")
            for p in range(2, len(flat), 2):
                a(f"s_waitcnt vmcnt({len(chk) - 1 - flat[p+1][0]})\nv_max3_u32 v1, v1, v{flat[p][1]}, v{flat[p+1][1]}")
            a(f"v_cmp_eq_u32 vcc, -1, v1\ns_cmp_eq_u64 vcc, 0\ns_cbranch_scc1 {d}")
            a(f"s_sleep {2 if i >= 6 else 8}\ns_sub_u32 {sSPIN}, {sSPIN}, 1\ns_cbranch_scc0 {l}\ns_branch L_bail\n{d}:")
            for kind, k in seq:
                if kind == "m":
                    a(f"v_mfma_f32_32x32x16_bf16 {vr(ACC,16)}, {vr(WF+36*hh+4*k,4)}, {vr(oreg((kind,k)),4)}, {vr(ACC,16)}")
                else:
                    a(f"s_waitcnt lgkmcnt({2 if k < 4 else 0})")
                    a(f"v_mfma_f32_16x16x32_bf16 {vr(ACX,4)}, {vr(AX+4*(k%2),4)}, {vr(oreg((kind,k)),4)}, {vr(ACX,4)}")
                    if k + 2 < 5:
                        rd(k + 2)

        if w == 2:
            a(f"s_mov_b32 s92, {WS_FP}")
            self.poll(f"buffer_load_dwordx4 {vr(NT,4)}, v5, {SWS}, s92 offen sc1", [NT, NT + 1, NT + 2, NT + 3], sleep=16)
            self.add1(SA)
        normalize(2 * mm + (1 - n))
        self.stamp(2, 4)
        nw = a.label("NWO")
        a(f"s_sub_u32 s73, s2, 64\ns_cmp_gt_u32 s73, 32\ns_cbranch_scc1 {nw}")
        self.srd(SWO, 18, 663552)
        self.panel_setup(4, va=48)
        self.wait(CV, 8, sleep=4, idle=True)
        self.panel_loads(SWO, L_WO0, L_WO1, L_WOX, False, 36, 4, va=48)
        a("s_waitcnt vmcnt(0)")
        self.add1(S3)
        a(f"{nw}:")
        self.wait(S3, 4, sleep=2)
        self.stamp(3, 4)
        for hh in range(4):
            for k in range(9):
                for u in range(2):
                    base, off = wrow("m", k, hh, u)
                    a(f"ds_read_b64_tr_b16 {vr(WF+36*hh+4*k+2*u,2)}, {base} offset:{off}")
                if k % 3 == 2:
                    a("s_waitcnt lgkmcnt(6)")
        self.stamp(4, 4)
        GM, GX, GD, GE = 192, 224, 8, 3
        AC2, BF, BX = ACC, 236, 248
        a(f"""
v_lshrrev_b32 v39, 3, v0
v_lshlrev_b32 v39, 12, v39
v_lshlrev_b32 v40, 2, v46
v_xor_b32 v40, v40, v0
v_and_b32 v40, 7, v40
v_lshl_add_u32 v39, v40, 4, v39
v_bfe_u32 v40, v0, 3, 1
v_xor_b32 v40, {n}, v40
v_lshlrev_b32 v40, 6, v40
v_lshl_add_u32 v40, v44, 3, v40
v_lshl_add_u32 v40, v43, 7, v40
v_lshl_add_u32 v43, v13, 10, v40
v_lshl_add_u32 v43, v46, 5, v43
v_add_u32 v44, 36864, v43
v_lshl_add_u32 v45, v38, 10, v40
v_add_u32 v45, {32 * mm}, v45
v_add_u32 v46, 36864, v45
s_mul_i32 s93, {sJ}, {3*36*1024}
s_add_u32 s98, s93, {WS_G + 2*36*1024}
s_add_u32 s93, s93, {WS_G + mm*36*1024}
s_waitcnt lgkmcnt(0)
""")
        self.add1(S2)
        vm = []
        def gm(ks):
            a(f"buffer_load_dwordx4 {vr(GM+4*(ks%GD),4)}, v5, {SWS}, s93 offen offset:{1024*(ks%4)} sc1")
            if ks % 4 == 3: a("s_add_u32 s93, s93, 4096")
            vm.append(("m", ks))
        def gx(T):
            a(f"buffer_load_dwordx4 {vr(GX+4*(T%GE),4)}, v47, {SWS}, s98 offen offset:{2048*(T%2)} sc1")
            if T % 2 == 1: a("s_add_u32 s98, s98, 4096")
            vm.append(("x", T))
        self.wait(CV, 7, sleep=4, idle=True)
        for ks in range(GD):
            gm(ks)
            if ks % 2 == 1 and ks // 2 < GE: gx(ks // 2)
        if w == 2:
            cl = a.label("YC"); yd = a.label("YD")
            a(f"s_lshr_b32 s73, s2, 3\ns_cmp_lg_u32 s73, 16\ns_cbranch_scc1 {cl}")
            a(f"v_lshlrev_b32 v{BF}, 7, v0\nv_min_u32 v{BF+1}, {7*128}, v{BF}\ns_mov_b32 s99, {WS_FY}\ns_mov_b32 s92, {WS_FY + 8192}\ns_mov_b32 s88, {WS_FY + 72*128}")
            self.poll(f"buffer_load_dwordx4 {vr(BF+2,4)}, v{BF}, {SWS}, s99 offen sc1\nbuffer_load_dwordx4 {vr(BF+6,4)}, v{BF+1}, {SWS}, s92 offen sc1\n"
                      f"buffer_load_dword v{BF+10}, off, {SWS}, s88 sc1", [BF + 2 + k for k in range(9)], sleep=4)
            a(f"s_and_b32 s92, s2, 7\ns_lshl_b32 s92, s92, 7\ns_add_u32 s92, s92, {WS_GOY}")
            self.set_flag("s92")
            a(f"s_branch {yd}\n{cl}:")
            self.go_wait(WS_GOY, BF, 6)
            a(f"{yd}:")
            self.add1(CY)
            ne = a.label("NE")
            a(f"s_cmp_lg_u32 s2, 0\ns_cbranch_scc1 {ne}")
            self.set_flag(str(WS_EPOCH))
            a(f"{ne}:")
        else:
            self.wait(CY, 1, sleep=4, idle=True)
        self.wait(S2, 4, sleep=2)
        self.stamp(1); self.stamp(5, 4)
        a(f"s_lshl_b32 s99, {sP}, 7\ns_add_u32 s99, s99, {WS_Y + w * 32768}\ns_mov_b32 s92, {L_Y + w * 1024}")
        def ydma():
            lp = a.label("YL")
            a(f"s_mov_b32 s88, 2\n{lp}:")
            for k in range(3):
                a(f"s_mov_b32 m0, s92\ns_add_u32 s92, s92, 4096\nbuffer_load_dwordx4 v39, {SWS}, s99 offen sc1 lds\ns_add_u32 s99, s99, {4*32768}")
            a(f"s_sub_u32 s88, s88, 1\ns_cbranch_scc0 {lp}")
        ydma()
        ydma()
        vm.extend([("y", k) for k in range(18)])
        a("s_waitcnt vmcnt(9)")
        self.add1(S1)
        self.stamp(6, 4)
        def yrd(it):
            kind, k = it
            if kind == "m":
                b = BF + 4 * (k % 3); base, off = ("v43", 2048 * k) if k < 18 else ("v44", 2048 * (k - 18))
            else:
                b = BX + 4 * (k % 2); base, off = ("v45", 4096 * k) if k < 9 else ("v46", 4096 * (k - 9))
            a(f"ds_read_b64_tr_b16 {vr(b,2)}, {base} offset:{off}\nds_read_b64_tr_b16 {vr(b+2,2)}, {base} offset:{off+512}")
        done = {"vm": len(vm) - 9}
        def half(k0):
            seq = []
            for ks in range(k0, k0 + 18):
                seq.append(("m", ks))
                if ks % 2 == 1: seq.append(("x", ks // 2))
            for it in seq[:3]:
                yrd(it)
            for i, it in enumerate(seq):
                wv = ""
                if vm.index(it) + 1 > done["vm"]:
                    done["vm"] = vm.index(it) + 1
                    wv = f"vmcnt({len(vm) - done['vm']}) "
                a(f"s_waitcnt {wv}lgkmcnt({2 * (min(i + 3, len(seq)) - i - 1)})")
                kind, k = it
                if kind == "m":
                    a(f"v_mfma_f32_32x32x16_bf16 {vr(AC2,16)}, {vr(GM+4*(k%GD),4)}, {vr(BF+4*(k%3),4)}, {'0' if k == 0 else vr(AC2,16)}")
                    if k + GD < 36: gm(k + GD)
                else:
                    a(f"v_mfma_f32_16x16x32_bf16 {vr(AC2+16,4)}, {vr(GX+4*(k%GE),4)}, {vr(BX+4*(k%2),4)}, {'0' if k == 0 else vr(AC2+16,4)}")
                    if k + GE < 18: gx(k + GE)
                if i + 3 < len(seq):
                    yrd(seq[i + 3])
                if it == ("m", GD):
                    self.add1(S4)
        self.wait(S1, 4, sleep=1)
        self.stamp(7, 4)
        half(0)
        self.wait(S4, 4, sleep=1)
        half(18)
        self.stamp(2); self.stamp(8, 4)
        self.srd(SOUT, 22, 2359296)
        a(f"""
s_mov_b32 s73, 73728
v_mul_lo_u32 v39, v12, s73
v_lshl_add_u32 v39, v13, 5, v39
v_mul_lo_u32 v40, v37, s73
v_lshl_add_u32 v40, v38, 3, v40
s_mul_i32 s93, {sP}, 2304
s_add_u32 s93, s93, s95
s_add_u32 s93, s93, {1152 * n}
s_add_u32 s92, s93, {16 * mm * 73728}
""")
        for i in range(8):
            a(f"v_pk_mul_f32 {vr(ACC+2*i,2)}, {vr(ACC+2*i,2)}, v[10:11] op_sel:[0,1] op_sel_hi:[1,1]")
        for i in range(2):
            a(f"v_pk_mul_f32 {vr(ACX+2*i,2)}, {vr(ACX+2*i,2)}, v[36:37] op_sel_hi:[1,0]")
        consume(n, False)
        consume(2 + n, False)
        self.stamp(9, 4)
        prog = {0: ["N5", "C4", "C6"], 1: ["N4", "C5", "C7"], 2: ["C4", "C6"], 3: ["N6", "C5", "C7"]}[w]
        gates = {4: 5, 5: 6, 6: 7, 7: 7}
        for it in prog:
            i = int(it[1])
            if it[0] == "N":
                normalize(i)
                self.stamp(3)
            else:
                self.wait(CT + 4 * gates[i], 4, sleep=2 if gates[i] == 7 else 4, idle=True)
                if i == 7:
                    a(f"s_sleep {self.opt('d7', 10)}")
                if i >= 6: self.stamp(4)
                consume(i, i < 6)
        self.stamp(6)
        fl = " sc1" if "outsc1" in self.opts else ""
        a(f"v_cvt_pk_bf16_f32 v{ACX}, v{ACX}, v{ACX+1}\nv_cvt_pk_bf16_f32 v{ACX+1}, v{ACX+2}, v{ACX+3}")
        for k in range(8):
            a(f"v_cvt_pk_bf16_f32 v{ACC+k}, v{ACC+2*k}, v{ACC+2*k+1}")
        a(f"buffer_store_dwordx4 {vr(ACC,4)}, v39, {SOUT}, s93 offen offset:{64*mm}{fl}")
        a(f"buffer_store_dwordx4 {vr(ACC+4,4)}, v39, {SOUT}, s93 offen offset:{64*mm+16}{fl}")
        a(f"s_mov_b32 exec_hi, 0\nbuffer_store_dwordx2 {vr(ACX,2)}, v40, {SOUT}, s92 offen offset:128{fl}\ns_mov_b64 exec, -1")
        self.stamp(7)

    def norm_setup(self, rows):
        self.a(f"""
v_lshlrev_b32 v5, 4, v0
v_and_b32 v12, 31, v0
v_lshrrev_b32 v13, 5, v0
v_add_u32 v8, {L_EX}, v5
v_lshlrev_b32 v9, 3, v0
v_add_u32 v9, {L_EX + 2048}, v9
v_lshlrev_b32 v10, 3, v12
v_add_u32 v10, {L_EX + 2048 + 256}, v10
v_lshl_add_u32 v14, v12, 2, v2
ds_read_b32 v4, v14 offset:{256 + 128 * rows}
s_mul_i32 s94, {sP}, {8*9216}
s_add_u32 s94, s94, {WS_OF}
s_lshl_b32 s96, {sJ}, 10
s_add_u32 s96, s96, s94
s_lshr_b32 s97, {sJ}, 2
s_lshl_b32 s97, s97, 9
s_and_b32 s73, {sJ}, 3
s_lshl_b32 s73, s73, 2
s_add_u32 s97, s97, s73
s_add_u32 s97, s97, s94
s_add_u32 s97, s97, 8192
""")

    def normalize(self, i, wait=True):
        a = self.a
        NT = self.NT
        q = i % 4
        if wait:
            self.wait(CT + 4 * i, 4, sleep=1 if i >= 6 else 4, idle=True)
        for s in range(4):
            b = NT + 12 * s; o = 10240 * q + 2560 * s
            a(f"ds_read_b128 {vr(b,4)}, v8 offset:{o}\nds_read_b128 {vr(b+4,4)}, v8 offset:{o+1024}\nds_read_b64 {vr(b+8,2)}, v9 offset:{o}")
            if s == 3:
                a("s_waitcnt lgkmcnt(9)")
            a(f"ds_read_b32 v{b+10}, v10 offset:{o}")
        a(f"s_add_u32 s90, s96, {i*9216}\ns_add_u32 s91, s97, {i*9216}\ns_movk_i32 s89, {i}")
        a("s_waitcnt lgkmcnt(8)")
        for s in range(1, 4):
            if s > 1:
                a(f"s_waitcnt lgkmcnt({4 * (3 - s)})")
            for k in range(5):
                a(f"v_pk_add_f32 {vr(NT+2*k,2)}, {vr(NT+2*k,2)}, {vr(NT+12*s+2*k,2)}")
            a(f"v_add_f32 v{NT+10}, v{NT+10}, v{NT+12*s+10}")
        if i < 4:
            self.wait(SA, 1, sleep=2)
            self.add1(CN)
        self.safety()
        a(f"v_rcp_f32 v{NT+10}, v{NT+10}\ns_nop 0\nv_mul_f32 v{NT+10}, v4, v{NT+10}")
        for k in range(5):
            a(f"v_pk_mul_f32 {vr(NT+2*k,2)}, {vr(NT+2*k,2)}, {vr(NT+10,2)} op_sel_hi:[1,0]")
        for k in range(5):
            a(f"v_cvt_pk_bf16_f32 v{NT+12+k}, v{NT+2*k}, v{NT+2*k+1}")
        a(f"v_min_u32 v{NT+12}, -2, v{NT+12}\nv_min_u32 v{NT+16}, -2, v{NT+16}")
        a(f"buffer_store_dwordx4 {vr(NT+12,4)}, v5, {SWS}, s90 offen sc1\ns_mov_b32 exec_hi, 0")
        a(f"buffer_store_dword v{NT+16}, v5, {SWS}, s91 offen sc1\ns_mov_b64 exec, -1")

    def safety(self):
        a = self.a
        NT = self.NT
        ok = a.label("SOK")
        t = NT + 12
        a(f"v_mov_b32 v{t}, 0\nv_mov_b32 v{t+1}, 0\nv_mov_b32 v{t+2}, 0\nv_mov_b32 v{t+3}, 0")
        for k in range(5):
            a(f"v_pk_fma_f32 {vr(t,2)}, {vr(NT+2*k,2)}, {vr(t+2,2)}, {vr(t,2)}")
        lo, hi = (127 - 60) << 23, (127 + 64) << 23
        if "forcefb" in self.opts:
            lo, hi = (127 + 60) << 23, (127 + 64) << 23
        a(f"v_add_f32 v{t}, v{t}, v{t+1}\nv_subrev_u32 v{t+1}, {lo:#x}, v{NT+10}\nv_cmp_u_f32 vcc, v{t}, v{t}")
        a(f"s_mov_b32 s73, {hi - lo:#x}\nv_cmp_lt_u32 s[74:75], s73, v{t+1}\ns_or_b64 vcc, vcc, s[74:75]\ns_cmp_eq_u64 vcc, 0\ns_cbranch_scc1 {ok}")
        a(f"s_call_b64 s[86:87], L_fallback\n{ok}:")

    def fallback(self):
        a = self.a
        NT = self.NT
        Q, QX, K, KX, V, S, O, MX = 48, 52, 56, 60, 64, 72, 88, 104
        vK, vKX, vV, T0 = 105, 106, 107, 108
        l1 = a.label("FB1"); l2 = a.label("FB2")
        qk = f"""
buffer_load_dwordx4 {vr(K,4)}, v{vK}, {SWS}, s[84] offen sc1
buffer_load_dword v{KX}, v{vKX}, {SWS}, s[85] offen sc1
""".replace("s[84]", "s84").replace("s[85]", "s85")
        mm = f"""
v_mfma_f32_32x32x16_bf16 {vr(S,16)}, {vr(K,4)}, {vr(Q,4)}, 0
v_mfma_f32_32x32x8_bf16 {vr(S,16)}, {vr(KX,2)}, {vr(QX,2)}, {vr(S,16)}
s_add_u32 s84, s84, 1024
s_add_u32 s85, s85, 128
"""
        a(f"""
L_fallback:
s_nop 4
v_lshlrev_b32 v{vK}, 5, v12
v_lshl_add_u32 v{vK}, v13, 4, v{vK}
v_mov_b32 v{T0}, {OOB}
v_lshlrev_b32 v{vKX}, 2, v12
v_cmp_lt_u32 vcc, 31, v0
v_subrev_u32 v{T0+1}, 64, v{vK}
v_cndmask_b32 v{vKX}, v{vKX}, v{T0}, vcc
v_cmp_eq_u32 vcc, 20, v12
s_mul_i32 s73, s89, 1536
v_cndmask_b32 v{T0+1}, v{T0}, v{T0+1}, vcc
v_cmp_gt_u32 vcc, 18, v12
s_add_u32 s73, s73, {L_QS}
v_cndmask_b32 v{vV}, v{T0+1}, v{vK}, vcc
v_mul_u32_u24 v{T0}, 48, v12
v_add_u32 v{T0}, s73, v{T0}
v_lshl_add_u32 v{T0+1}, v13, 2, v{T0}
v_lshl_add_u32 v{T0}, v13, 4, v{T0}
ds_read_b128 {vr(Q,4)}, v{T0}
ds_read_b32 v{QX}, v{T0+1} offset:32
v_mov_b32 v{QX+1}, 0
v_mov_b32 v{KX+1}, 0
v_mov_b32 v{MX}, 0xff800000
s_mov_b32 s84, {WS_K16}
s_mov_b32 s85, {WS_KX}
s_mov_b32 s88, 63
{l1}:
{qk}
s_waitcnt vmcnt(0) lgkmcnt(0)
{mm}
""")
        for k in range(8):
            a(f"v_max3_f32 v{MX}, v{MX}, v{S+2*k}, v{S+2*k+1}")
        a(f"""
s_sub_u32 s88, s88, 1
s_cbranch_scc0 {l1}
v_mov_b32 v{T0}, v{MX}
v_permlane32_swap_b32 v{MX}, v{T0}
v_max_f32 v{MX}, v{MX}, v{T0}
s_mov_b32 s84, {WS_K16}
s_mov_b32 s85, {WS_KX}
s_mov_b32 s83, {WS_VF}
s_mov_b32 s88, 63
""")
        for r in range(16):
            a(f"v_mov_b32 v{O+r}, 0")
        a(f"""
{l2}:
{qk}
buffer_load_dwordx4 {vr(V,4)}, v{vV}, {SWS}, s83 offen sc1
buffer_load_dwordx4 {vr(V+4,4)}, v{vV}, {SWS}, s83 offen offset:{VPITCH} sc1
s_waitcnt vmcnt(0)
{mm}
s_add_u32 s83, s83, {2*VPITCH}
""")
        for r in range(16):
            a(f"v_sub_f32 v{S+r}, v{S+r}, v{MX}")
        for r in range(16):
            a(f"v_exp_f32 v{S+r}, v{S+r}")
        for k in range(8):
            a(f"v_cvt_pk_bf16_f32 v{S+k}, v{S+2*k}, v{S+2*k+1}")
        a(f"""
v_mfma_f32_32x32x16_bf16 {vr(O,16)}, {vr(V,4)}, {vr(S,4)}, {vr(O,16)}
v_mfma_f32_32x32x16_bf16 {vr(O,16)}, {vr(V+4,4)}, {vr(S+4,4)}, {vr(O,16)}
s_nop 15
s_sub_u32 s88, s88, 1
s_cbranch_scc0 {l2}
""")
        for r in range(10):
            a(f"v_mov_b32 v{NT+r}, v{O+r}")
        a(f"v_mov_b32 v{T0}, v{O+8}\nv_mov_b32 v{NT+10}, v{O+8}\nv_permlane32_swap_b32 v{T0}, v{NT+10}\ns_nop 4\ns_setpc_b64 s[86:87]")

    def finish_stamps(self):
        a = self.a
        if self.stamps:
            a("v_mov_b32 v2, 0")
            for i in range(12):
                a(f"v_writelane_b32 v2, s{STAMPS[i]}, {i}")
            a(f"s_lshl_b32 s73, s2, 3\ns_add_u32 s73, s73, {sW}\ns_lshl_b32 s73, s73, 7\ns_add_u32 s73, s73, {WS_DBG}")
            a(f"v_lshlrev_b32 v3, 2, v0\ns_mov_b32 exec_hi, 0\nbuffer_store_dword v2, v3, {SWS}, s73 offen\ns_mov_b64 exec, -1")

    def build(self):
        a = self.a
        self.prologue()
        self.e_front()
        a("L_attn:")
        self.attention()
        self.stamp(8)
        a(f"s_cmp_ge_u32 {sW}, 4\ns_cbranch_scc1 L_last")
        labs = [a.label("TL") for _ in range(4)]
        for w in range(1, 4):
            a(f"s_cmp_eq_u32 {sW}, {w}\ns_cbranch_scc1 {labs[w]}")
        for w in range(4):
            a(f"{labs[w]}:")
            self.tail(w >> 1, w & 1)
            a("s_branch L_fin")
        a(f"L_last:\ns_waitcnt lgkmcnt(0)\nv_readfirstlane_b32 s73, v1\nv_sub_f32 v4, 1.0, v4\ns_cmp_lg_u32 s73, 3\ns_cbranch_scc1 L_fin\ns_setprio 3")
        self.normalize(7, wait=False)
        self.stamp(3)
        a("s_branch L_fin")
        a("L_lwave:")
        self.l_front()
        self.l_mid()
        a("s_branch L_attn")
        self.fallback()
        a("L_bail:")
        if self.stamps:
            a(f"s_mov_b32 s{STAMPS[11]}, 0xdead0000")
        a("L_fin:")
        if self.opt("padto", 0):
            a(f"L_pad:\ns_sleep 2\ns_memrealtime s[78:79]\ns_waitcnt lgkmcnt(0)\ns_sub_u32 s78, s78, s76\ns_cmp_lt_u32 s78, {self.opt('padto', 0)}\ns_cbranch_scc1 L_pad")
        self.finish_stamps()
        a("L_end:\ns_endpgm")
        body = a.finish()
        tw = self.make_tables()
        assert tw.size == 2 * self.NTAB * 256
        tab = "\n".join(".long " + ",".join(f"{x:#x}" for x in tw[i:i+16]) for i in range(0, tw.size, 16))
        hdr = open("cdna_kernels/" + NAME + ".s.ref").read().split("; Override launch")[0]
        return f"""{hdr}; @launch grid=(256,1,1) block=(512,1,1) lds={LDS_BYTES}
.amdgcn_target "amdgcn-amd-amdhsa--gfx950"
.text
.globl {NAME}_kernel
.p2align 8
.type {NAME}_kernel,@function
{NAME}_kernel:
{body}
.section .rodata,"a"
.p2align 8
.type spectral_tables,@object
spectral_tables:
{tab}
.size spectral_tables, {2*self.NTAB*1024}
.p2align 6
.amdhsa_kernel {NAME}_kernel
  .amdhsa_next_free_vgpr 256
  .amdhsa_next_free_sgpr 102
  .amdhsa_accum_offset 256
  .amdhsa_group_segment_fixed_size 0
  .amdhsa_kernarg_size 96
  .amdhsa_user_sgpr_count 2
  .amdhsa_user_sgpr_kernarg_segment_ptr 1
  .amdhsa_system_sgpr_workgroup_id_x 1
.end_amdhsa_kernel
"""


if __name__ == "__main__":
    opts = sys.argv[2:]
    g = Gen(stamps=2 if "st2" in opts else 3 if "st3" in opts else 4 if "st4" in opts else int("stamps" in opts), cyc="cyc" in opts, opts=opts)
    src = g.build()
    open(sys.argv[1], "w").write(src)
    print("nops added:", g.a.added_nops, "lines:", len(src.splitlines()))
```

```python
import sys
import numpy as np
from asmlib import Asm
import model as M

NAME = "gated_mix__spectral_gfnet__grouped_kv_mqa__prompt"

WS_EPOCH = 0
WS_FKV = 0x50000
WS_FS = 0x58000
WS_FY = 0x60000
WS_GOS = 0x68000
WS_GOY = 0x69000
WS_FP = 0x70000
WS_K16 = 0x10000
WS_KX = 0x20000
WS_VF = 0x30000
WS_DBG = 0x80000
WS_G = 0x100000
WS_T = 0x200000
WS_Y = 0x500000
WS_OF = 0x800000
WS_WT = 0xB00000
WS_QDUMP = 0x1100000
WS_SIZE = 0x2000000
OOB = 0x40000000
VPITCH = 640

XP = 1040
L_X = 0
L_X2 = 64 * XP
L_WQ0 = 74752
L_WQ1 = 111616
P2SZ = 9728
L_P2Q = 148480
L_P2KV = L_P2Q - P2SZ
L_MISC = 162816
(C0A, C0B, C0C, C1, CX, CK, CE, CV, CY, S1, S2, S3, CN, CW, CF, CD, CG, S4, C0D, SA, XA, XB, YA, YB, CL) = (4 * i for i in range(25))
CT = 128
L_G = L_MISC + 256
L_QS = L_WQ0
L_WO0 = 0
L_WO1 = 36864
L_Y = 0
L_EX = L_QS + 12288
L_WOX = L_EX + 16 * 2560
L_XCH = L_WOX + 9216
LDS_BYTES = 163840
assert L_XCH + 8192 <= L_MISC and L_P2Q + P2SZ <= L_MISC and L_P2KV >= L_WQ1 + 416 * 64

SX, SWQ, SKV, SG, SWS, SWO, SOUT, SWR, SWI, STB = (f"s[{a}:{a+3}]" for a in range(28, 68, 4))
sW, sP, sJ, sTAG, sSPIN = "s68", "s69", "s70", "s71", "s72"
STAMPS = [76, 77, 78, 79, 80, 81, 100, 101, 3, 10, 11, 24]
SPIN_MAX = 400000

f32bits = lambda v: int(np.float32(v).view(np.uint32))
QSCALE_BITS = f32bits(M.QSCALE)
LOG2E_BITS = f32bits(M.LOG2E)


def vr(a, n=1):
    return f"v{a}" if n == 1 else f"v[{a}:{a+n-1}]"


class Gen:
    AQ, AQX, AO, AK, AKX, AV, AS = 24, 28, 32, 88, 120, 128, 192
    vQ, vQX, vEX, vEX2, vK, vKX, vV, vCT = 78, 79, 80, 81, 82, 83, 4, 84
    vCT2 = vCT

    def __init__(self, stamps=0, cyc=False, opts=()):
        self.a = Asm()
        self.stamps = stamps
        self.clk = "s_memtime" if cyc else "s_memrealtime"
        self.opts = set(opts)

    def opt(self, name, default):
        for o in self.opts:
            if o.startswith(name + "="):
                return int(o.split("=")[1])
        return default

    def _st(self, i):
        self.a(f"{self.clk} s[74:75]\ns_waitcnt lgkmcnt(0)\ns_mov_b32 s{STAMPS[i]}, s74")

    def stamp(self, i, level=1):
        if self.stamps == level:
            self._st(i)
        if self.opt("pid", -1) == i and self.opt("plev", 1) == level:
            l = self.a.label("PB")
            self.a(f"s_cmp_lg_u32 {sW}, {self.opt('pw', 0)}\ns_cbranch_scc1 {l}\ns_memrealtime s[78:79]\ns_waitcnt lgkmcnt(0)\n"
                   f"s_sub_u32 s80, s78, s76\ns_add_u32 s80, s80, {self.opt('padto', 0)}\n{l}:")

    def srd(self, srd, lo, size):
        b = int(srd[2:].split(":")[0])
        self.a(f"s_mov_b32 s{b}, s{lo}\ns_mov_b32 s{b+1}, s{lo+1}\ns_mov_b32 s{b+2}, {size}\ns_mov_b32 s{b+3}, 0x20000")

    def add1(self, off, base="v2"):
        self.a(f"s_mov_b64 exec, 1\nds_add_u32 {base}, v3 offset:{off}\ns_mov_b64 exec, -1")

    def wait(self, off, target, sleep=1, base="v2", idle=False):
        a = self.a
        l = a.label("LW"); d = a.label("LWD")
        if idle and "noidle" not in self.opts:
            a("s_setprio 0")
        a(f"{l}:\nds_read_b32 v1, {base} offset:{off}\ns_waitcnt lgkmcnt(0)\nv_readfirstlane_b32 s73, v1")
        a(f"s_cmp_ge_u32 s73, {target}\ns_cbranch_scc1 {d}")
        if sleep:
            a(f"s_sleep {sleep}")
        a(f"s_sub_u32 {sSPIN}, {sSPIN}, 1\ns_cbranch_scc0 {l}\ns_branch L_bail\n{d}:")
        if idle and "noidle" not in self.opts:
            a("s_setprio 3")

    def cmp_regs(self, regs, val, op="ne"):
        a = self.a
        a(f"v_cmp_{op}_u32 vcc, {val}, v{regs[0]}")
        for r in regs[1:]:
            a(f"v_cmp_{op}_u32 s[74:75], {val}, v{r}\ns_or_b64 vcc, vcc, s[74:75]")
        a("s_cmp_eq_u64 vcc, 0")

    def poll(self, loads, regs, sleep=2):
        a = self.a
        l = a.label("PL"); d = a.label("PD")
        a(f"{l}:")
        a(loads)
        a("s_waitcnt vmcnt(0)")
        self.cmp_regs(regs, sTAG)
        a(f"s_cbranch_scc1 {d}\ns_sleep {sleep}\ns_sub_u32 {sSPIN}, {sSPIN}, 1\ns_cbranch_scc0 {l}\ns_branch L_bail\n{d}:")

    def set_flag(self, soff):
        self.a(f"v_mov_b32 v1, {sTAG}\ns_mov_b64 exec, 1\nbuffer_store_dword v1, off, {SWS}, {soff} sc1\ns_mov_b64 exec, -1")

    def flag4(self, dst, idx, base):
        self.a(f"s_lshr_b32 {dst}, {idx}, 2\ns_lshl_b32 {dst}, {dst}, 7\ns_and_b32 s73, {idx}, 3\ns_lshl_b32 s73, s73, 2\n"
               f"s_add_u32 {dst}, {dst}, s73\ns_add_u32 {dst}, {dst}, {base}")

    def go_wait(self, base, vt, sleep):
        self.a(f"s_and_b32 s92, s2, 7\ns_lshl_b32 s92, s92, 7\ns_add_u32 s92, s92, {base}")
        self.poll(f"s_mov_b64 exec, 1\nbuffer_load_dword v{vt}, off, {SWS}, s92 sc1\ns_waitcnt vmcnt(0)\nv_readfirstlane_b32 s73, v{vt}\ns_mov_b64 exec, -1\nv_mov_b32 v{vt}, s73", [vt], sleep=sleep)

    def tag(self):
        self.a(f"s_mul_i32 {sTAG}, {sTAG}, 0x9E3779B1\ns_add_u32 {sTAG}, {sTAG}, 0x7F4A7C15")

    def prologue(self):
        a = self.a
        a(f"""
s_cmp_ge_u32 s2, 256
s_cbranch_scc1 L_end
s_load_dwordx16 s[4:19], s[0:1], 0
s_load_dwordx8 s[20:27], s[0:1], 64
v_lshrrev_b32 v1, 6, v0
v_and_b32 v0, 63, v0
v_readfirstlane_b32 {sW}, v1
s_and_b32 {sP}, s2, 31
s_lshr_b32 {sJ}, s2, 5
""")
        if self.stamps:
            a(f"{self.clk} s[74:75]")
        if self.opt("padto", 0):
            a(f"s_memrealtime s[76:77]\ns_mov_b32 s80, {self.opt('padto', 0)}")
        a(f"""
v_lshl_add_u32 v4, v1, 6, v0
v_mov_b32 v2, {L_MISC}
v_mov_b32 v3, 1
v_lshlrev_b32 v7, 4, v0
s_mul_i32 s94, {sP}, 2304
s_mul_i32 s95, {sJ}, 144
s_lshl_b32 s91, {sJ}, 2
s_add_u32 s91, s91, {sW}
s_mov_b32 s30, 2359296
s_mov_b32 s31, 0x20000
s_mov_b32 {sSPIN}, {SPIN_MAX}
s_cmp_ge_u32 {sW}, 4
s_waitcnt lgkmcnt(0)
""")
        if self.stamps:
            a(f"s_mov_b32 s{STAMPS[0]}, s74")
            for r in STAMPS[1:]:
                a(f"s_mov_b32 s{r}, 0")
        a("s_cbranch_scc1 L_lwave")

    def kv_addr(self):
        a = self.a
        a(f"""
v_and_b32 v84, 31, v0
v_lshrrev_b32 v85, 5, v0
v_lshlrev_b32 v{self.vK}, 5, v84
v_lshl_add_u32 v{self.vK}, v85, 4, v{self.vK}
v_mov_b32 v86, {OOB}
v_lshlrev_b32 v{self.vKX}, 2, v84
v_cmp_lt_u32 vcc, 31, v0
v_subrev_u32 v87, 64, v{self.vK}
v_cndmask_b32 v{self.vKX}, v{self.vKX}, v86, vcc
v_cmp_eq_u32 vcc, 20, v84
s_and_b32 s73, {sW}, 3
v_cndmask_b32 v87, v86, v87, vcc
v_cmp_gt_u32 vcc, 18, v84
s_lshl_b32 s96, s73, 14
v_cndmask_b32 v{self.vV}, v87, v{self.vK}, vcc
s_add_u32 s96, s96, {WS_K16}
s_lshl_b32 s97, s73, 11
s_add_u32 s97, s97, {WS_KX}
s_mul_i32 s98, s73, {32*VPITCH}
s_add_u32 s98, s98, {WS_VF}
""")

    def ld_k(self, t, slot):
        adv = "\ns_add_u32 s96, s96, 4096" if t % 4 == 3 else ""
        return (f"buffer_load_dwordx4 {vr(self.AK+4*slot,4)}, v{self.vK}, {SWS}, s96 offen offset:{1024*(t%4)} sc1" + adv,
                f"buffer_load_dword v{self.AKX+slot}, v{self.vKX}, {SWS}, s97 offen offset:{128*t} sc1")

    def ld_v(self, t, slot):
        adv = f"\ns_add_u32 s98, s98, {4*VPITCH}" if t % 2 == 1 else ""
        o = 2 * VPITCH * (t % 2)
        return (f"buffer_load_dwordx4 {vr(self.AV+8*slot,4)}, v{self.vV}, {SWS}, s98 offen offset:{o} sc1",
                f"buffer_load_dwordx4 {vr(self.AV+8*slot+4,4)}, v{self.vV}, {SWS}, s98 offen offset:{o+VPITCH} sc1" + adv)

    NFIRST = 4

    def kv_loads(self):
        for t in range(self.NFIRST):
            for x in self.ld_k(t, t) + self.ld_v(t, t):
                self.a(x)

    def e_front(self):
        a = self.a
        a("s_setprio 3\ns_mov_b32 s28, s4\ns_mov_b32 s29, s5")
        for k in range(8):
            a(f"""
s_and_b32 s91, s91, 31
s_mul_i32 s90, s91, 73728
s_mul_i32 m0, s91, {XP}
s_add_u32 s90, s90, s94
s_add_u32 s91, s91, 4
buffer_load_dwordx4 v7, {SX}, s90 offen lds
s_add_u32 m0, m0, {32*XP - 1152}
s_nop 0
buffer_load_dwordx4 v7, {SX}, s90 offen offset:1152 lds
""")
        a(f"""
s_load_dword {sTAG}, s[26:27], {WS_EPOCH}
v_lshrrev_b32 v20, 3, v0
s_mov_b32 s73, 73728
v_mul_lo_u32 v21, v20, s73
v_lshrrev_b32 v22, 4, v0
v_xor_b32 v22, v22, v0
v_and_b32 v22, 7, v22
v_lshl_add_u32 v21, v22, 4, v21
s_and_b32 s90, {sW}, 1
s_mul_i32 s90, s90, {16*73728}
s_lshr_b32 s73, {sW}, 1
s_mul_i32 s73, s73, 1152
s_add_u32 s90, s90, s73
s_add_u32 s90, s90, s94
s_add_u32 s90, s90, 1024
s_lshl_b32 s91, {sW}, 11
s_add_u32 m0, s91, {L_X2}
v_xor_b32 v22, 64, v21
buffer_load_dwordx4 v21, {SX}, s90 offen lds
s_add_u32 m0, s91, {L_X2 + 1024}
s_add_u32 s90, s90, {8*73728}
buffer_load_dwordx4 v22, {SX}, s90 offen lds
s_cmp_lt_u32 {sJ}, 4
s_cselect_b32 s36, s14, s16
s_cselect_b32 s37, s15, s17
s_mov_b32 s38, 20736
s_mov_b32 s39, 0x20000
v_mul_u32_u24 v5, 36, v4
v_lshlrev_b32 v6, 1, v4
s_and_b32 s73, {sJ}, 3
s_lshl_b32 s92, s73, 3
""")
        self.srd(SG, 20, 1152)
        s = a.label("KV3")
        a(f"""
buffer_load_dwordx3 v[24:26], v5, {SKV}, s92 offen
buffer_load_ushort v27, v6, {SG}, 0 offen
v_add_u32 v5, {256*36}, v5
buffer_load_dwordx3 v[28:30], v5, {SKV}, s92 offen
buffer_load_ushort v31, v6, {SG}, 0 offen offset:512
s_cmp_gt_u32 {sW}, 0
s_cbranch_scc1 {s}
v_add_u32 v5, {256*36}, v5
buffer_load_dwordx3 v[40:42], v5, {SKV}, s92 offen
buffer_load_ushort v43, v6, {SG}, 0 offen offset:1024
{s}:
s_barrier
""")
        self.stamp(6, 3)
        self.srd(SWS, 26, WS_SIZE)
        a(f"""
v_lshrrev_b32 v7, 7, v4
v_lshlrev_b32 v7, 7, v7
v_lshl_add_u32 v7, v4, 4, v7
v_add_u32 v7, {L_P2KV}, v7
v_and_b32 v14, 15, v0
v_lshrrev_b32 v15, 4, v0
v_and_b32 v17, 31, v0
v_lshrrev_b32 v18, 5, v0
v_bfe_u32 v22, v0, 2, 2
v_lshlrev_b32 v22, 4, v22
v_and_b32 v23, 1, v0
v_lshl_add_u32 v22, v23, 3, v22
v_mul_u32_u24 v16, 2176, v15
v_add_u32 v16, v16, v22
v_lshl_add_u32 v12, v15, 7, v22
v_add_u32 v12, {512*16 + 512}, v12
v_add_u32 v19, {L_P2KV}, v16
v_add_u32 v10, {L_P2KV}, v12
v_add_u32 v16, {L_P2Q}, v16
v_add_u32 v12, {L_P2Q}, v12
s_lshl_b32 s73, {sW}, 4
v_add_u32 v21, s73, v14
v_mul_u32_u24 v20, {XP}, v21
v_lshl_add_u32 v20, v15, 8, v20
v_lshrrev_b32 v22, 1, v21
v_xor_b32 v22, v22, v15
v_and_b32 v22, 7, v22
v_lshlrev_b32 v22, 4, v22
v_lshl_add_u32 v11, v21, 7, v22
v_add_u32 v11, {L_X2}, v11
v_xor_b32 v9, 64, v11
s_lshl_b32 s90, {sP}, 1
s_lshr_b32 s73, {sW}, 1
s_add_u32 s90, s90, s73
s_and_b32 s91, {sW}, 1
s_mov_b32 s92, {(LOG2E_BITS | 0x80000000):#x}
s_lshl_b32 s99, {sW}, 6
s_add_u32 s99, s99, {L_G}
""")
        RG, XF, AK_ = 32, 160, 252
        def wrd(b1, b2, T, dst):
            base, off = (b1, T * 128) if T < 16 else (b2, (T - 16) * 512)
            a(f"ds_read_b64_tr_b16 {vr(dst,2)}, {base} offset:{off}\nds_read_b64_tr_b16 {vr(dst+2,2)}, {base} offset:{off+64}")
        def land():
            s = a.label("KW")
            a(f"s_waitcnt vmcnt(0)\nds_write_b128 v7, v[24:27]\nds_write_b128 v7, v[28:31] offset:{4096+256}")
            a(f"s_cmp_gt_u32 {sW}, 0\ns_cbranch_scc1 {s}\nds_write_b128 v7, v[40:43] offset:{8192+512}\n{s}:")
            self.stamp(1, 3)
            self.add1(CX)
            self.wait(CX, 4, sleep=0)
            self.tag()
            self.stamp(2, 3)
        def kv_gemm(swap):
            acc = vr(AK_, 4)
            def rd(T):
                wrd("v19", "v10", T, 44 + 4 * (T % 5))
                if T < 16:
                    a(f"ds_read_b128 {vr(XF+4*T,4)}, v20 offset:{T*16}")
                else:
                    a(f"ds_read_b128 {vr(XF+4*T,4)}, {'v11' if T == 16 else 'v9'}")
            for T in range(4):
                rd(T)
            for T in range(18):
                if T + 4 < 18:
                    rd(T + 4)
                a(f"s_waitcnt lgkmcnt({3 * (min(T + 5, 18) - T - 1)})")
                W, X = vr(44 + 4 * (T % 5), 4), vr(XF + 4 * T, 4)
                A, B = (X, W) if swap else (W, X)
                a(f"v_mfma_f32_16x16x32_bf16 {acc}, {A}, {B}, {'0' if T == 0 else acc}")
            self.add1(CK)
        kpath = a.label("EK"); done = a.label("EKD")
        a(f"s_cmp_lt_u32 {sJ}, 4\ns_cbranch_scc1 {kpath}")
        a(f"""
s_lshl_b32 s90, s90, 1
s_add_u32 s90, s90, s91
s_mul_i32 s90, s90, {VPITCH}
s_add_u32 s90, s90, {WS_VF}
s_sub_u32 s73, {sJ}, 4
s_lshl_b32 s73, s73, 2
v_add_u32 v36, s73, v14
v_cmp_eq_u32 vcc, 7, v14
v_lshrrev_b32 v37, 1, v15
v_cndmask_b32 v36, v36, 18, vcc
v_lshlrev_b32 v36, 5, v36
v_lshl_add_u32 v36, v37, 3, v36
v_and_b32 v37, 1, v15
v_lshl_add_u32 v36, v37, 4, v36
v_mov_b32 v37, 0x3f803f80
v_lshl_add_u32 v38, v15, 4, s99
s_mov_b32 s88, 0x000f000f
s_cmp_eq_u32 {sJ}, 7
s_cmov_b32 s88, 0x00bf00bf
""")
        land()
        kv_gemm(True)
        a(f"""
v_cvt_pk_bf16_f32 v22, v{AK_}, v{AK_+1}
v_cvt_pk_bf16_f32 v23, v{AK_+2}, v{AK_+3}
v_cndmask_b32 v22, v22, v37, vcc
v_cndmask_b32 v23, v23, v37, vcc
s_mov_b32 exec_lo, s88
s_mov_b32 exec_hi, s88
buffer_store_dwordx2 v[22:23], v36, {SWS}, s90 offen sc1
s_mov_b64 exec, -1
""")
        for r in range(4):
            a(f"v_mul_f32 v{AK_+r}, s92, v{AK_+r}\nv_exp_f32 v{AK_+r}, v{AK_+r}")
        for r in range(4):
            a(f"v_add_f32 v{AK_+r}, 1.0, v{AK_+r}\nv_rcp_f32 v{AK_+r}, v{AK_+r}")
        a(f"""
s_mov_b32 exec_lo, 0x00400040
s_mov_b32 exec_hi, 0x00400040
ds_write_b128 v38, {vr(AK_,4)}
s_branch {done}
{kpath}:
s_lshl_b32 s91, s91, 4
v_add_u32 v37, s91, v14
v_lshlrev_b32 v36, 5, v37
v_lshlrev_b32 v37, 2, v37
v_lshl_add_u32 v38, v14, 2, s99
s_lshl_b32 s88, s90, 10
s_lshl_b32 s73, {sJ}, 3
s_add_u32 s88, s88, s73
s_add_u32 s88, s88, {WS_K16}
s_lshl_b32 s90, s90, 7
s_add_u32 s90, s90, {WS_KX}
s_cmp_lg_u32 {sJ}, 3
s_cmov_b32 s90, {OOB}
s_mov_b32 s91, {QSCALE_BITS:#x}
""")
        land()
        kv_gemm(False)
        a(f"""
v_mul_f32 v39, s92, v{AK_+2}
v_mul_f32 v{AK_}, s91, v{AK_}
v_mul_f32 v{AK_+1}, s91, v{AK_+1}
v_mul_f32 v{AK_+2}, s91, v{AK_+2}
v_mul_f32 v{AK_+3}, s91, v{AK_+3}
v_cvt_pk_bf16_f32 v22, v{AK_}, v{AK_+1}
v_cvt_pk_bf16_f32 v23, v{AK_+2}, v{AK_+3}
s_mov_b64 exec, 0xffff
buffer_store_dwordx2 v[22:23], v36, {SWS}, s88 offen sc1
s_mov_b32 exec_lo, 0xffff0000
buffer_store_dword v22, v37, {SWS}, s90 offen sc1
v_exp_f32 v39, v39
s_nop 0
v_add_f32 v39, 1.0, v39
v_rcp_f32 v39, v39
s_nop 0
ds_write_b32 v38, v39
{done}:
s_mov_b64 exec, -1
""")
        self.stamp(7, 3)
        a(f"""
s_lshl_b32 s73, {sP}, 3
s_add_u32 s73, s73, {sJ}
s_lshl_b32 s73, s73, 4
s_add_u32 s91, s73, {WS_FKV}
v_bfe_u32 v22, v0, 2, 2
v_lshl_add_u32 v19, v18, 3, v22
v_lshlrev_b32 v19, 6, v19
v_bfe_u32 v22, v0, 4, 1
v_lshl_add_u32 v19, v22, 5, v19
v_and_b32 v22, 3, v0
v_lshl_add_u32 v19, v22, 3, v19
s_and_b32 s73, {sW}, 1
s_mul_i32 s73, s73, {L_WQ1 - L_WQ0}
s_add_u32 s73, s73, {L_WQ0}
v_add_u32 v19, s73, v19
s_lshr_b32 s73, {sW}, 1
s_lshl_b32 s73, s73, 5
v_add_u32 v21, s73, v17
v_mul_u32_u24 v13, {XP}, v21
v_lshl_add_u32 v13, v18, 4, v13
v_mul_u32_u24 v26, 48, v4
v_add_u32 v26, {L_QS + 36}, v26
v_lshrrev_b32 v22, 1, v21
v_xor_b32 v22, v22, v18
v_and_b32 v22, 7, v22
v_lshlrev_b32 v22, 4, v22
v_lshl_add_u32 v6, v21, 7, v22
v_add_u32 v6, {L_X2}, v6
v_xor_b32 v7, 32, v6
v_xor_b32 v8, 64, v6
v_xor_b32 v9, 0x60, v6
v_mul_u32_u24 v22, 48, v21
v_add_u32 v22, {L_QS}, v22
v_lshl_add_u32 v23, v18, 3, v22
v_mul_u32_u24 v24, 3044, v18
v_add_u32 v24, v24, v22
s_lshl_b32 s73, {sW}, 4
v_add_u32 v25, s73, v14
v_mul_u32_u24 v25, 48, v25
v_lshl_add_u32 v25, v15, 3, v25
v_add_u32 v25, {L_QS + 3*3072 + 20}, v25
v_mov_b32 v27, 0
v_lshlrev_b32 v28, 4, v0
s_lshl_b32 s93, {sW}, 10
s_add_u32 s93, s93, {WS_FKV}
""")
        self.kv_addr()
        nf = a.label("NF")
        a(f"s_waitcnt vmcnt(0)\ns_mov_b64 exec, 1\nds_add_rtn_u32 v1, v2, v3 offset:{CF}\ns_mov_b64 exec, -1\ns_waitcnt lgkmcnt(0)")
        a(f"v_readfirstlane_b32 s73, v1\ns_cmp_lg_u32 s73, 3\ns_cbranch_scc1 {nf}")
        self.set_flag("s91")
        a(f"{nf}:")
        self.stamp(3, 3)
        RX, AM, AXQ = 64, 232, 248
        def rdm(t):
            b = RG + 8 * (t % 4)
            a(f"ds_read_b64_tr_b16 {vr(b,2)}, v19 offset:{t*1024}\nds_read_b64_tr_b16 {vr(b+2,2)}, v19 offset:{t*1024+256}")
            a(f"ds_read_b128 {vr(b+4,4)}, v13 offset:{t*32}" if t < 32 else f"ds_read_b128 {vr(b+4,4)}, v{6+t-32}")
        def mm(t):
            b = RG + 8 * (t % 4)
            a(f"v_mfma_f32_32x32x16_bf16 {vr(AM,16)}, {vr(b,4)}, {vr(b+4,4)}, {'0' if t == 0 else vr(AM,16)}")
        def stage(t0, t1):
            for t in range(t0, min(t0 + 3, t1)):
                rdm(t)
            for t in range(t0, t1):
                if t + 3 < t1:
                    rdm(t + 3)
                a(f"s_waitcnt lgkmcnt({3 * (min(t + 4, t1) - t - 1)})")
                mm(t)
        self.wait(C0A, 2, sleep=0)
        self.stamp(4, 3)
        stage(0, 12)
        self.add1(CE)
        self.wait(C0B, 2, sleep=0)
        flags = f"buffer_load_dword v84, v28, {SWS}, s93 offen sc1"
        stage(12, 20)
        self.wait(C0D, 2, sleep=0)
        stage(20, 28)
        self.wait(C0C, 2, sleep=0)
        self.stamp(9, 3)
        a(flags)
        seq = []
        xs = list(range(18))
        for t in range(28, 36):
            seq.append(("m", t))
            for _ in range(3 if t < 30 else 2):
                seq.append(("x", xs.pop(0)))
        assert not xs
        cost = lambda it: 3 if it[0] == "m" else 2
        def issue(it):
            if it[0] == "m": rdm(it[1])
            else: wrd("v16", "v12", it[1], RX + 4 * (it[1] % 3))
        AH = 3
        for it in seq[:AH]:
            issue(it)
        a(f"ds_read_b32 v31, v2 offset:{CE}")
        for i, it in enumerate(seq):
            ahead = sum(cost(x) for x in seq[i + 1:i + AH]) + (1 if i < AH else 0)
            a(f"s_waitcnt lgkmcnt({ahead})")
            if it[0] == "m":
                mm(it[1])
            else:
                T = it[1]
                a(f"v_mfma_f32_16x16x32_bf16 {vr(AXQ,4)}, {vr(RX+4*(T%3),4)}, {vr(XF+4*T,4)}, {'0' if T == 0 else vr(AXQ,4)}")
            if i + AH < len(seq):
                issue(seq[i + AH])
        self.stamp(8, 3)
        miss = a.label("KM")
        a("s_waitcnt vmcnt(0)")
        self.cmp_regs([84], sTAG)
        a(f"s_cselect_b32 s89, 1, 0\ns_cbranch_scc0 {miss}")
        self.kv_loads()
        a(f"{miss}:")
        self.stamp(11, 3)
        ok = a.label("CEOK")
        a(f"v_readfirstlane_b32 s73, v31\ns_cmp_ge_u32 s73, 4\ns_cbranch_scc1 {ok}")
        self.wait(CE, 4, sleep=0)
        a(f"{ok}:")
        a(f"ds_write_b32 v26, v27\nv_cvt_pk_bf16_f32 v{AXQ}, v{AXQ}, v{AXQ+1}\nv_cvt_pk_bf16_f32 v{AXQ+1}, v{AXQ+2}, v{AXQ+3}")
        a(f"s_mov_b32 exec_hi, 0\nds_write2_b32 v25, v{AXQ}, v{AXQ+1} offset0:0 offset1:1\ns_mov_b64 exec, -1")
        m1 = a.label("QM1"); md = a.label("QMD")
        a(f"s_bitcmp1_b32 {sW}, 0\ns_cbranch_scc1 {m1}")
        off = lambda c: (c // 18) * 3072 + (c % 18) * 2
        for m in range(2):
            if m == 1:
                a(f"s_branch {md}\n{m1}:")
            for k in range(8):
                c0 = 32 * m + 8 * (k // 2) + 2 * (k % 2)
                d = off(c0 + 4) - off(c0)
                assert d in (8, 3044)
                a(f"v_cvt_pk_bf16_f32 v{AM+k}, v{AM+2*k}, v{AM+2*k+1}")
                a(f"ds_write_b32 {'v23' if d == 8 else 'v24'}, v{AM+k} offset:{off(c0)}")
        a(f"{md}:")
        self.add1(C1)
        have = a.label("KH")
        a(f"s_cmp_eq_u32 s89, 1\ns_cbranch_scc1 {have}")
        self.poll(flags, [84], sleep=12)
        self.kv_loads()
        a(f"{have}:")
        self.stamp(10, 3); self.stamp(10)
        a(f"s_setprio 2\ns_mov_b32 s99, {OOB}\nv_mov_b32 v232, v2")

    def panel_setup(self, nw, va=14):
        self.a(f"""
v_lshrrev_b32 v{va}, 2, v0
v_mul_u32_u24 v{va}, 1152, v{va}
v_and_b32 v{va+1}, 3, v0
v_lshl_add_u32 v{va}, v{va+1}, 4, v{va}
v_mul_u32_u24 v{va+1}, 1152, v0
s_and_b32 s73, {sW}, {nw-1}
s_mul_i32 s84, s73, {16*1152}
s_add_u32 s84, s84, s95
s_lshl_b32 s85, s73, 10
""")

    def panel_loads(self, srd, l0, l1, lx, padded, end, nw, va=14):
        a = self.a
        lp = a.label("PNL")
        a(f"""
{lp}:
s_add_u32 m0, s85, {l0}
s_add_u32 s83, s84, 128
buffer_load_dwordx4 v{va}, {srd}, s84 offen lds
s_add_u32 m0, s85, {l1 - 64}
s_lshr_b32 s82, s85, 2
buffer_load_dwordx4 v{va}, {srd}, s84 offen offset:64 lds
""")
        if padded:
            a("s_lshr_b32 s73, s85, 13\ns_lshl_b32 s73, s73, 7\ns_add_u32 s82, s82, s73")
        a(f"""
s_add_u32 m0, s82, {lx}
s_mov_b64 exec, 0xffff
buffer_load_dwordx4 v{va+1}, {srd}, s83 offen lds
s_mov_b64 exec, -1
s_add_u32 s85, s85, {1024*nw}
s_add_u32 s84, s84, {16*nw*1152}
s_cmp_lt_u32 s85, {1024*end}
s_cbranch_scc1 {lp}
""")

    def l_front(self):
        a = self.a
        a(f"""
s_load_dword {sTAG}, s[26:27], {WS_EPOCH}
v_lshl_add_u32 v5, v0, 2, v2
v_mov_b32 v6, 0
ds_write_b32 v5, v6
s_sub_u32 s99, {sW}, 4
v_and_b32 v18, 31, v0
v_lshrrev_b32 v19, 5, v0
s_lshl_b32 s89, s99, 3
s_add_u32 s89, s89, {sJ}
s_cmp_ge_u32 s89, 18
s_cselect_b32 s89, 99, s89
v_bfe_u32 v20, v0, 2, 1
v_lshlrev_b32 v20, 4, v20
v_bfe_u32 v21, v0, 3, 2
v_lshl_add_u32 v20, v21, 2, v20
v_and_b32 v21, 3, v0
v_add_u32 v20, v20, v21
""")
        self.srd(SWS, 26, WS_SIZE)
        self.srd(SWQ, 12, 663552)
        FPRE = self.opt("fpre", 8)
        def fsetup():
            a(f"""
s_lshl_b32 s73, s89, 5
v_add_u32 v44, s73, v18
v_lshrrev_b32 v45, 1, v44
v_and_b32 v46, 1, v44
v_cmp_eq_u32 vcc, 1, v44
v_mov_b32 v47, 288
v_cndmask_b32 v45, v45, v47, vcc
v_cndmask_b32 v46, v46, 0, vcc
v_and_b32 v47, 1, v45
v_lshlrev_b32 v47, 31, v47
v_or_b32 v17, 1.0, v47
v_cvt_f32_u32 v45, v45
v_cvt_f32_u32 v46, v46
v_mul_f32 v45, {f32bits(1/576):#x}, v45
v_mul_f32 v46, 0x3e800000, v46
v_lshlrev_b32 v47, 3, v19
v_cvt_f32_u32 v47, v47
v_fma_f32 v46, v47, v45, v46
v_mul_f32 v55, 0x41800000, v45
""")
            for jj in range(8):
                a(f"s_mov_b32 s73, {f32bits(jj):#x}\nv_fma_f32 v{56+jj}, s73, v45, v46")
        def fgen(t):
            if t:
                a(f"s_mov_b32 s73, {f32bits(t):#x}")
            for jj in range(8):
                if t:
                    a(f"v_fma_f32 v{64+jj}, s73, v55, v{56+jj}\nv_cos_f32 v{64+jj}, v{64+jj}")
                else:
                    a(f"v_cos_f32 v{64+jj}, v{56+jj}")
            for k in range(4):
                a(f"v_cvt_pk_bf16_f32 v{104+4*t+k}, v{64+2*k}, v{65+2*k}")
        npre = a.label("NPRE"); n7 = a.label("NW7")
        if "wearly" in self.opts:
            a(f"v_mov_b32 v23, 0\ns_mov_b32 s98, {OOB}\ns_cmp_lg_u32 {sW}, 7\ns_cbranch_scc1 {n7}")
            self.wt_loads()
        a(f"{n7}:\ns_cmp_eq_u32 s89, 99\ns_cbranch_scc1 {npre}")
        fsetup()
        for t in range(FPRE):
            fgen(t)
        a(f"{npre}:\ns_waitcnt lgkmcnt(0)")
        self.tag()
        a("s_barrier")
        wqd = a.label("WQD")
        a(f"s_cmp_lt_u32 {sW}, 6\ns_cbranch_scc1 {wqd}")
        self.panel_setup(2)
        self.panel_loads(SWQ, L_WQ0, L_WQ1, L_P2Q, True, 20, 2)
        a("s_waitcnt vmcnt(12)")
        self.add1(C0A)
        self.panel_loads(SWQ, L_WQ0, L_WQ1, L_P2Q, True, 26, 2)
        self.wait(CK, 4, sleep=0)
        self.panel_loads(SWQ, L_WQ0, L_WQ1, L_P2Q, True, 36, 2)
        self.stamp(6, 3)
        a("s_waitcnt vmcnt(24)")
        self.add1(C0B)
        a("s_waitcnt vmcnt(12)")
        self.add1(C0D)
        a("s_waitcnt vmcnt(0)")
        self.add1(C0C)
        self.stamp(1, 3)
        a(f"{wqd}:")
        nod = a.label("NOD")
        a(f"s_cmp_eq_u32 s89, 99\ns_cbranch_scc1 {nod}")
        for t in range(FPRE, 18):
            fgen(t)
        self.stamp(9, 3)
        a(f"""
v_mul_u32_u24 v25, {XP}, v20
v_lshl_add_u32 v25, v19, 4, v25
v_lshrrev_b32 v22, 1, v20
v_xor_b32 v22, v22, v19
v_and_b32 v22, 7, v22
v_lshlrev_b32 v22, 4, v22
v_lshl_add_u32 v6, v20, 7, v22
v_add_u32 v6, {L_X2}, v6
v_xor_b32 v7, 32, v6
v_xor_b32 v8, 64, v6
v_xor_b32 v9, 0x60, v6
v_lshlrev_b32 v22, 12, v18
v_lshl_add_u32 v22, v19, 5, v22
s_lshl_b32 s90, s89, 17
s_lshl_b32 s73, {sP}, 7
s_add_u32 s90, s90, s73
s_add_u32 s90, s90, {WS_T}
""")
        RG = 44
        def frag(t, n, q):
            return vr(RG + 16 * (t % 3) + 8 * n + 4 * q, 4)
        def rd(t):
            for n in range(2):
                for q in range(2):
                    ks = t + 18 * q
                    if ks < 32:
                        a(f"ds_read_b128 {frag(t,n,q)}, v25 offset:{n*32*XP + ks*32}")
                    else:
                        a(f"ds_read_b128 {frag(t,n,q)}, v{6+ks-32} offset:{n*4096}")
        def dft(t0, t1):
            for t in range(t0, min(t0 + 2, t1)):
                rd(t)
            for t in range(t0, t1):
                if t + 2 < t1:
                    rd(t + 2)
                a(f"s_waitcnt lgkmcnt({4 * (min(t+3, t1) - t - 1)})")
                for n in range(2):
                    for q in range(2):
                        acc = vr(176 + 32 * n + 16 * q, 16)
                        a(f"v_mfma_f32_32x32x16_bf16 {acc}, {frag(t,n,q)}, {vr(104+4*t,4)}, {'0' if t == 0 else acc}")
        DPRE = self.opt("dpre", 10)
        if DPRE:
            self.wait(CK, 4)
            dft(0, DPRE)
        a("s_setprio 3")
        self.wait(C1, 4)
        self.stamp(3, 3)
        dft(DPRE, 18)
        self.stamp(8, 3)
        self.wait(CV, 4)
        for n in range(2):
            b = 176 + 32 * n
            for r in range(16):
                a(f"v_fma_f32 v{b+r}, v17, v{b+16+r}, v{b+r}")
            for k in range(8):
                a(f"v_cvt_pk_bf16_f32 v{b+k}, v{b+2*k}, v{b+2*k+1}")
            a(f"buffer_store_dwordx4 {vr(b,4)}, v22, {SWS}, s90 offen offset:{64*n} sc1")
            a(f"buffer_store_dwordx4 {vr(b+4,4)}, v22, {SWS}, s90 offen offset:{64*n+16} sc1")
        a("s_waitcnt vmcnt(0)")
        self.add1(CD)
        self.stamp(4, 3); self.stamp(4)
        a(f"{nod}:")

    def g_gen(self):
        a = self.a
        N = 1.0 / (M.S * M.D)
        skip = a.label("GS"); nx = a.label("GNX"); nk = a.label("GNK")
        assert all((f * 1821) >> 16 == f // 36 for f in range(864))
        assert all((f * 21846) >> 16 == f // 3 for f in range(24))
        a(f"""
s_mov_b32 s99, {OOB}
s_cmp_ge_u32 s2, 216
s_cbranch_scc1 {skip}
s_lshl_b32 s90, s2, 2
s_lshl_b32 s99, s2, 12
s_add_u32 s99, s99, {WS_G}
s_mul_i32 s91, s90, 1821
s_lshr_b32 s91, s91, 16
s_mul_i32 s73, s91, 36
s_sub_u32 s92, s90, s73
s_mul_i32 s93, s91, 21846
s_lshr_b32 s93, s93, 16
s_mul_i32 s73, s93, 3
s_sub_u32 s91, s91, s73
s_mul_i32 s93, s93, 72
s_lshl_b32 s73, s91, 5
s_add_u32 s93, s93, s73
v_mov_b32 v44, v20
s_cmp_lg_u32 s91, 2
s_cbranch_scc1 {nx}
v_mov_b32 v44, v18
{nx}:
v_add_u32 v44, s93, v44
s_lshl_b32 s73, s92, 3
v_lshl_add_u32 v45, v19, 2, s73
v_mul_u32_u24 v45, v45, v44
v_mul_u32_u24 v47, 5, v44
s_mov_b32 s73, {f32bits(1/576):#x}
s_mov_b32 s93, {f32bits(2*N):#x}
""")
        for fr in range(4):
            for cq in range(4):
                a(f"v_cvt_f32_u32 v46, v45\nv_mul_f32 v46, s73, v46\nv_fract_f32 v46, v46")
                a(f"v_cos_f32 v{48+2*cq}, v46\nv_sin_f32 v{49+2*cq}, v46")
                a("v_add_u32 v45, v45, v44" if cq < 3 else "v_add_u32 v45, v45, v47")
            for cq in range(4):
                a(f"v_mul_f32 v{48+2*cq}, s93, v{48+2*cq}\nv_mul_f32 v{49+2*cq}, s93, -v{49+2*cq}")
            if fr == 0:
                a(f"""
s_cmp_lg_u32 s92, 0
s_cbranch_scc1 {nk}
s_mov_b32 exec_hi, 0
v_mov_b32 v48, {f32bits(N):#x}
v_lshlrev_b32 v49, 31, v44
v_or_b32 v49, v48, v49
s_mov_b64 exec, -1
{nk}:
""")
            for k in range(4):
                a(f"v_cvt_pk_bf16_f32 v{240+4*fr+k}, v{48+2*k}, v{49+2*k}")
        a(f"{skip}:")

    WB = 112

    def poison(self):
        a = self.a
        a(f"v_lshlrev_b32 v24, 4, v0\nv_mov_b32 v28, -1\nv_mov_b32 v29, -1\nv_mov_b32 v30, -1\nv_mov_b32 v31, -1")
        a(f"s_mul_i32 s90, {sP}, {8*9216}\ns_add_u32 s90, s90, {WS_OF}\ns_mul_i32 s91, {sJ}, 9216\ns_add_u32 s91, s91, s90\ns_add_u32 s91, s91, 8192")
        a(f"buffer_store_dwordx4 v[28:31], v24, {SWS}, s91 offen sc1\ns_lshl_b32 s73, {sJ}, 10\ns_add_u32 s90, s90, s73")
        for i in range(8):
            a(f"buffer_store_dwordx4 v[28:31], v24, {SWS}, s90 offen sc1\ns_add_u32 s90, s90, 9216")

    def wt_loads(self):
        a = self.a
        self.srd(SWR, 6, 2048 * 578)
        self.srd(SWI, 8, 2048 * 578)
        a(f"""
v_and_b32 v26, 7, v0
v_lshrrev_b32 v27, 3, v0
v_mul_u32_u24 v22, 578, v26
v_mad_u32_u24 v22, v27, 18, v22
s_lshr_b32 s93, s2, 6
s_bfe_u32 s92, s2, 0x20004
s_and_b32 s88, s2, 15
s_lshl_b32 s90, s88, 7
s_lshl_b32 s73, s92, 3
s_add_u32 s90, s90, s73
s_mul_i32 s90, s90, 578
s_mul_i32 s73, s93, 144
s_add_u32 s90, s90, s73
""")
        for jr in range(4):
            for ri, srd in enumerate((SWR, SWI)):
                b = self.WB + 24 * ri + 6 * jr
                a(f"buffer_load_dwordx4 {vr(b,4)}, v22, {srd}, s90 offen\nbuffer_load_dword v{b+4}, v22, {srd}, s90 offen offset:16")
            if jr < 3:
                a(f"s_add_u32 s90, s90, {32*578}")
        a(f"""
s_mov_b32 s73, {9*8192}
v_mul_lo_u32 v23, v27, s73
v_lshl_add_u32 v23, v26, 4, v23
s_mul_i32 s98, s93, {72*8192}
s_lshl_b32 s73, s88, 8
s_add_u32 s98, s98, s73
s_and_b32 s73, s92, 1
s_lshl_b32 s73, s73, 7
s_add_u32 s98, s98, s73
s_lshr_b32 s73, s92, 1
s_lshl_b32 s73, s73, 12
s_add_u32 s98, s98, s73
s_add_u32 s98, s98, {WS_WT}
""")

    def wt_stores(self):
        a = self.a
        last = a.label("WL")
        a("s_mov_b32 s92, 0x05040100\ns_mov_b32 s93, 0x07060302")
        for x in range(10):
            if x == 9:
                a(f"s_cmp_lt_u32 s2, 192\ns_cbranch_scc1 {last}\ns_mov_b32 exec_lo, 0\ns_mov_b32 exec_hi, 0xff000000")
            t = self.WB + 48 + 4 * (x % 3)
            for ri in range(2):
                for pr in range(2):
                    lo = self.WB + 24 * ri + 12 * pr + x // 2
                    a(f"v_perm_b32 v{t+2*ri+pr}, v{lo+6}, v{lo}, {'s93' if x % 2 else 's92'}")
            a(f"buffer_store_dwordx4 {vr(t,4)}, v23, {SWS}, s98 offen sc1\ns_add_u32 s98, s98, 8192")
        a(f"s_mov_b64 exec, -1\n{last}:")

    def s_flag(self):
        a = self.a
        self.g_gen()
        a("s_setprio 3\nv_lshlrev_b32 v24, 4, v0")
        self.wait(CV, 4)
        self.stamp(3, 3)
        if "wearly" not in self.opts:
            self.wt_loads()
            a("s_waitcnt vmcnt(0)")
        self.wt_stores()
        for fr in range(4):
            a(f"buffer_store_dwordx4 {vr(240+4*fr,4)}, v24, {SWS}, s99 offen offset:{1024*fr} sc1")
        self.stamp(10, 3)
        self.flag4("s91", "s2", WS_FS)
        a("s_waitcnt vmcnt(0)")
        self.stamp(11, 3)
        a(f"s_cmp_lt_u32 {sJ}, 2\ns_cselect_b32 s90, 3, 2")
        self.wait(CD, "s90", sleep=2)
        self.set_flag("s91")
        self.add1(CW)
        self.stamp(6); self.stamp(2, 3)
        self.stage2_tables()

    def attention(self):
        a = self.a
        K0, KX0, V0, S0, O0, Q0, QX0 = self.AK, self.AKX, self.AV, self.AS, self.AO, self.AQ, self.AQX
        a(f"""
v_and_b32 v84, 31, v0
v_lshrrev_b32 v85, 5, v0
s_lshr_b32 s88, {sW}, 2
s_mul_i32 s73, s88, 6144
s_add_u32 s73, s73, {L_QS}
v_mul_u32_u24 v{self.vQ}, 48, v84
v_add_u32 v{self.vQ}, s73, v{self.vQ}
v_lshl_add_u32 v{self.vQX}, v85, 2, v{self.vQ}
v_add_u32 v{self.vQX}, 32, v{self.vQX}
v_lshl_add_u32 v{self.vQ}, v85, 4, v{self.vQ}
s_and_b32 s73, {sW}, 3
s_mul_i32 s73, s73, 2560
s_add_u32 s73, s73, {L_EX}
v_lshl_add_u32 v{self.vEX}, v0, 4, s73
s_add_u32 s73, s73, 2048
v_lshl_add_u32 v{self.vEX2}, v0, 3, s73
s_lshl_b32 s73, s88, 4
v_add_u32 v{self.vCT}, s73, v2
s_mul_i32 s73, s88, {CN - C1}
v_add_u32 v86, s73, v2
v_mov_b32 v{QX0+1}, 0
v_mov_b32 v{QX0+2}, 0
""")
        self.wait(C1, 4, sleep=0)
        self.stamp(5); self.stamp(5, 3)
        qmain = lambda q: f"ds_read_b128 {vr(Q0,4)}, v{self.vQ} offset:{1536*(q%4)}"
        qx = lambda q: f"ds_read_b32 v{QX0}, v{self.vQX} offset:{1536*(q%4)}\nds_read_b32 v{QX0+3}, v{self.vQX} offset:{1536*(q%4)}"
        a(qmain(0)); a(qx(0))
        issued = []
        for t in range(self.NFIRST):
            issued += [("K", t), ("X", t), ("V0", t), ("V1", t)]
        state = {"done": 0}
        def need(*keys):
            idx = max(issued.index(k) for k in keys) + 1
            if idx > state["done"]:
                state["done"] = idx
                return [f"s_waitcnt vmcnt({len(issued) - idx})"]
            return []
        def reload(kind, t):
            ins = self.ld_k(8 + t, t) if kind == "K" else self.ld_v(8 + t, t)
            issued.extend([("K", 8 + t), ("X", 8 + t)] if kind == "K" else [("V0", 8 + t), ("V1", 8 + t)])
            return list(ins)
        sreg = lambda g: S0 + 16 * (g % 2)
        oreg = lambda ps: O0 + 10 * (ps % 4)
        def qk16(g):
            return f"v_mfma_f32_32x32x16_bf16 {vr(sreg(g),16)}, {vr(K0+4*(g%8),4)}, {vr(Q0,4)}, 0"
        def qkx(g):
            return f"v_mfma_f32_32x32x8_bf16 {vr(sreg(g),16)}, {vr(KX0+2*((g%8)//2),2)}, {vr(QX0+2*(g%2),2)}, {vr(sreg(g),16)}"
        def pv(g, u):
            o = vr(oreg(g // 8), 16)
            c = "0" if (g // 8 < 4 and g % 8 == 0 and u == 0) else o
            return f"v_mfma_f32_32x32x16_bf16 {o}, {vr(V0+8*(g%8)+4*u,4)}, {vr(sreg(g)+4*u,4)}, {c}"
        kt = lambda g: (g % 8) + (8 if g >= 32 else 0)
        def kneed(g):
            t = kt(g)
            return need(("K", t), ("X", t), ("X", t ^ 1)) if ("X", t ^ 1) in issued else need(("K", t), ("X", t))
        def export(q):
            o = O0 + 10 * q
            return [f"ds_write_b128 v{self.vEX}, {vr(o,4)} offset:{10240*q}", f"ds_write_b128 v{self.vEX}, {vr(o+4,4)} offset:{10240*q+1024}",
                    f"ds_write_b64 v{self.vEX2}, {vr(o+8,2)} offset:{10240*q}",
                    f"s_mov_b64 exec, 1\nds_add_u32 v{self.vCT}, v3 offset:{CT+4*q}\ns_mov_b64 exec, -1"]
        for x in kneed(0) + ["s_waitcnt lgkmcnt(0)", qk16(0), qkx(0)]:
            a(x)
        for g in range(64):
            ps, t = divmod(g, 8)
            s = sreg(g)
            e = lambda i: f"v_exp_f32 v{s+i}, v{s+i}"
            c = lambda k: f"v_cvt_pk_bf16_f32 v{s+k}, v{s+2*k}, v{s+2*k+1}"
            seq = [e(0), e(1)]
            if g > 0:
                seq += need(("V1", kt(g - 1))) + [pv(g - 1, 1)]
                if g - 1 in range(24, 32):
                    seq += reload("V", (g - 1) % 8)
            seq += [e(2), e(3), c(0), e(4), c(1)]
            last = g == 63
            if not last:
                seq += kneed(g + 1) + (["s_waitcnt lgkmcnt(0)"] if t == 7 else []) + [qk16(g + 1)]
                if t == 6 and ps < 7:
                    seq.append(qmain(ps + 1))
            seq += [e(5), e(6), e(7), c(2), e(8), c(3)]
            if not last:
                seq.append(qkx(g + 1))
                if t == 6 and ps < 7:
                    seq.append(qx(ps + 1))
                if g + 1 in range(24, 32):
                    seq += reload("K", (g + 1) % 8)
            if g + self.NFIRST < 8:
                issued.extend([(k, g + self.NFIRST) for k in ("K", "X", "V0", "V1")])
            tail = [e(9), e(10), e(11), c(4), e(12), c(5)] + need(("V0", kt(g))) + [pv(g, 0), e(13), e(14), e(15), c(6), c(7)]
            if g + self.NFIRST < 8:
                tn = g + self.NFIRST
                ins = list(self.ld_k(tn, tn) + self.ld_v(tn, tn))
                for k, i in enumerate((9, 10, 11, 12)):
                    tail.insert(tail.index(e(i)) + 1, ins[k])
                if tn == 7:
                    tail.append(f"s_mov_b64 exec, 1\nds_add_u32 v2, v3 offset:{CV}\ns_mov_b64 exec, -1")
            if ps >= 5 and t == 0:
                ex = export(ps - 5)
                for k, i in enumerate((9, 10, 11, 12)):
                    tail.insert(tail.index(e(i)) + 1, ex[k])
            if g == 4:
                nf = a.label("NYF")
                tail.append(f"s_cmp_eq_u32 s99, {OOB}\ns_cbranch_scc1 {nf}\ns_mov_b64 exec, 1\nds_add_rtn_u32 v233, v232, v3 offset:{YA}\n"
                            f"v_mov_b32 v1, {sTAG}\ns_waitcnt lgkmcnt(0)\nv_readfirstlane_b32 s73, v233\ns_cmp_lg_u32 s73, 1\ns_cmov_b32 s99, {OOB}\n"
                            f"buffer_store_dword v1, off, {SWS}, s99 sc1\ns_mov_b64 exec, -1\ns_setprio 1\n{nf}:")
            if g == 36:
                tail.append(f"ds_read_b32 v87, v86 offset:{C1}")
            if g == 38:
                ok = a.label("CNOK")
                tail.append(f"s_waitcnt lgkmcnt(0)\nv_readfirstlane_b32 s73, v87\ns_cmp_ge_u32 s73, 4\ns_cbranch_scc1 {ok}")
                tail.append(("wait", ok))
            for x in seq + tail:
                if isinstance(x, tuple):
                    self.wait(C1, 4, sleep=2, base="v86")
                    a(f"{x[1]}:")
                else:
                    a(x)
            if g == 7:
                self.stamp(11)
        a(pv(63, 1))
        self.norm_setup(1)
        ex = export(3)
        for x in ex[:3]:
            a(x)
        a(f"s_mov_b64 exec, 1\nds_add_rtn_u32 v1, v{self.vCT2}, v3 offset:{CT+12}\ns_mov_b64 exec, -1")

    T64, T32A, TW1, TW2, T32B, NTAB = 0, 24, 27, 35, 43, 49
    NPRE = 35

    def make_tables(self):
        L = np.arange(64); Lm = (L & 15)[:, None]; Lg = (L >> 4)[:, None]
        jj = np.arange(8)[None, :]; r = np.arange(4)[None, :]
        def pk(v):
            b = M.bf(v.astype(np.float32)).astype(np.uint32)
            return (b[:, 0::2] | (b[:, 1::2] << 16)).astype(np.uint32)
        parts = lambda z: (z.real, z.imag, -z.imag)
        w = lambda n, x, y: np.exp(-2j * np.pi * ((x * y) % n) / n)
        f32 = lambda v: v.astype(np.float32).view(np.uint32)
        out = []
        for H in range(2):
            for k in range(3):
                for t in range(4):
                    for ks in range(2):
                        out.append(pk(parts(w(64, 16 * (t ^ (2 * H)) + Lm, 32 * (ks ^ H) + 16 * (jj >> 2) + 4 * Lg + (jj & 3)))[k]))
            for k in range(3):
                out.append(pk(parts(w(32, 8 * Lg + jj, 16 * H + Lm))[k]))
            for t in range(4):
                z = w(2048, 16 * (t ^ (2 * H)) + 4 * Lg + r, 16 * H + Lm)
                out += [f32(z.real), f32(z.imag)]
            for t in range(4):
                z = np.conj(w(2048, 16 * (t ^ (2 * H)) + Lm, 16 * H + 4 * Lg + r))
                out += [f32(z.real), f32(z.imag)]
            for k in range(3):
                for at in range(2):
                    out.append(pk(parts(w(32, 8 * (Lm >> 2) + 4 * at + (Lm & 3), 16 * (H ^ (jj >> 2)) + 4 * Lg + (jj & 3)))[k]))
        return np.concatenate([o.reshape(-1) for o in out])

    def tload(self, frag, dst):
        if self.tgroup != frag // 4:
            self.tgroup = frag // 4
            self.a(f"s_add_u32 s88, s87, {(frag // 4) * 4096}")
        self.a(f"buffer_load_dwordx4 {vr(dst,4)}, v5, {STB}, s88 offen offset:{(frag % 4) * 1024}")

    def stage2_tables(self):
        a = self.a
        a(f"""
s_getpc_b64 s[64:65]
s_add_u32 s64, s64, spectral_tables@rel32@lo+4
s_addc_u32 s65, s65, spectral_tables@rel32@hi+12
s_mov_b32 s66, {2*self.NTAB*1024}
s_mov_b32 s67, 0x20000
v_lshlrev_b32 v5, 4, v0
s_and_b32 s86, {sW}, 1
s_mul_i32 s87, s86, {self.NTAB*1024}
""")
        self.tgroup = None
        for f in range(24):
            self.tload(self.T64 + f, 80 + 4 * f)
        for f in range(3):
            self.tload(self.T32A + f, 240 + 4 * f)
        for f in range(8):
            self.tload(self.TW1 + f, 16 + 4 * f)

    def stage2(self):
        a = self.a
        A, P, Q, TW, WW, PK, TMP = 80, 48, 176, 16, 208, 240, 8
        self.tgroup = None
        a(f"""
v_and_b32 v6, 15, v0
v_lshlrev_b32 v6, 6, v6
v_lshrrev_b32 v7, 4, v0
v_lshl_add_u32 v6, v7, 4, v6
s_lshl_b32 s90, s89, 13
s_add_u32 s91, s90, 4096
s_cmp_eq_u32 s89, 288
s_cmov_b32 s90, 4096
s_cmov_b32 s91, {OOB}
s_cmp_eq_u32 s89, 0
s_cmov_b32 s91, {OOB}
s_lshl_b32 s73, s86, 11
s_add_u32 s90, s90, s73
s_add_u32 s91, s91, s73
s_lshl_b32 s85, s86, 12
s_sub_u32 s85, 2048, s85
s_lshr_b32 s73, {sW}, 1
s_and_b32 s73, s73, 1
s_xor_b32 s73, s73, 1
s_lshl_b32 s99, s73, 2
s_lshl_b32 s73, s73, 12
s_lshl_b32 s84, s86, 11
s_add_u32 s73, s73, s84
s_add_u32 s73, s73, {L_XCH}
v_add_u32 v7, s73, v5
s_sub_u32 s73, s73, s84
s_xor_b32 s84, s84, 0x800
s_add_u32 s84, s84, s73
s_sleep {self.opt('d2', 16)}
""")
        self.go_wait(WS_GOS, 252, 6)
        cg = a.label("CG")
        a(f"s_cmp_lg_u32 {sW}, 7\ns_cbranch_scc1 {cg}")
        self.add1(CG)
        a(f"{cg}:")
        self.stamp(7)
        self.stamp(1, 2)
        a(f"s_add_u32 s92, s90, {WS_T}\ns_add_u32 s93, s91, {WS_T}\ns_add_u32 s82, s92, s85\ns_add_u32 s83, s93, s85")
        for t in range(4):
            for ri in range(2):
                so = (("s92", "s93"), ("s82", "s83"))[t >> 1][ri]
                a(f"buffer_load_dwordx4 {vr(WW+8*t+4*ri,4)}, v6, {SWS}, {so} offen offset:{1024*(t&1)} sc1")
        mf = lambda acc, x, y, first: a(f"v_mfma_f32_16x16x32_bf16 {vr(acc,4)}, {vr(x,4)}, {vr(y,4)}, {'0' if first else vr(acc,4)}")
        re = lambda base, t: base + 8 * t
        im = lambda base, t: base + 8 * t + 4
        for t in range(4):
            a(f"s_waitcnt vmcnt({6 - 2*t})")
            if t == 0: self.stamp(2, 2)
            mf(re(P, t), re(WW, t), PK, True); mf(im(P, t), re(WW, t), PK + 4, True)
            mf(re(P, t), im(WW, t), PK + 8, False); mf(im(P, t), im(WW, t), PK, False)
        a(f"s_lshl_b32 s92, s89, 13\ns_lshl_b32 s73, s86, 12\ns_add_u32 s92, s92, s73\ns_lshl_b32 s73, s86, 11\ns_add_u32 s92, s92, s73\ns_add_u32 s92, s92, {WS_WT}")
        a("s_add_u32 s82, s92, s85")
        for t in range(4):
            a(f"buffer_load_dwordx4 {vr(WW+8*t+4,4)}, v5, {SWS}, {('s92', 's82')[t >> 1]} offen offset:{1024*(t&1)} sc1")
        def cmul(x, c, dst):
            for t in range(4):
                ops = []
                for h in range(2):
                    t0, t1 = TMP + 4 * h, TMP + 4 * h + 2
                    xr, xi, cr, ci = re(x, t) + 2 * h, im(x, t) + 2 * h, re(c, t) + 2 * h, im(c, t) + 2 * h
                    ops.append([f"v_pk_mul_f32 {vr(t0,2)}, {vr(xr,2)}, {vr(cr,2)}",
                                f"v_pk_mul_f32 {vr(t1,2)}, {vr(xr,2)}, {vr(ci,2)}",
                                f"v_pk_fma_f32 {vr(t0,2)}, {vr(xi,2)}, {vr(ci,2)}, {vr(t0,2)} neg_lo:[1,0,0] neg_hi:[1,0,0]",
                                f"v_pk_fma_f32 {vr(t1,2)}, {vr(xi,2)}, {vr(cr,2)}, {vr(t1,2)}",
                                f"v_cvt_pk_bf16_f32 v{dst(t,0)+h}, v{t0}, v{t0+1}",
                                f"v_cvt_pk_bf16_f32 v{dst(t,1)+h}, v{t1}, v{t1+1}"])
                for j in range(0, 6, 2):
                    for o in ops:
                        a(o[j]); a(o[j + 1])
        pkd = lambda t, part: PK + 8 * part + 2 * t
        ks_ = lambda part, ks: PK + 8 * part + 4 * ks
        t64 = lambda k, t, ks: A + 32 * k + 8 * t + 4 * ks
        self.stamp(3, 2)
        cmul(P, TW, pkd)
        self.stamp(4, 2)
        for f in range(8):
            self.tload(self.TW2 + f, TW + 4 * f)
        for t in range(4):
            for ks in range(2):
                mf(re(Q, t), t64(0, t, ks), ks_(0, ks), ks == 0); mf(im(Q, t), t64(1, t, ks), ks_(0, ks), ks == 0)
            for ks in range(2):
                mf(re(Q, t), t64(2, t, ks), ks_(1, ks), False); mf(im(Q, t), t64(0, t, ks), ks_(1, ks), False)
        self.stamp(5, 2)
        a("s_waitcnt vmcnt(8)")
        for t in range(4):
            b = WW + 8 * t
            for k in range(4):
                a(f"v_lshlrev_b32 v{b+2*k}, 16, v{b+4+k}\nv_and_b32 v{b+2*k+1}, 0xffff0000, v{b+4+k}" if k < 2 else "")
            a(f"v_and_b32 v{b+5}, 0xffff0000, v{b+6}\nv_lshlrev_b32 v{b+4}, 16, v{b+6}\nv_lshlrev_b32 v{b+6}, 16, v{b+7}\nv_and_b32 v{b+7}, 0xffff0000, v{b+7}")
        cmul(Q, WW, pkd)
        self.stamp(6, 2)
        for f in range(6):
            self.tload(self.T32B + f, WW + 4 * f)
        for t in (2, 3, 0, 1):
            for ks in range(2):
                mf(re(P, t), ks_(0, ks), t64(0, t, ks), ks == 0); mf(im(P, t), ks_(1, ks), t64(0, t, ks), ks == 0)
            for ks in range(2):
                mf(re(P, t), ks_(1, ks), t64(1, t, ks), False); mf(im(P, t), ks_(0, ks), t64(2, t, ks), False)
        self.stamp(7, 2)
        a("v_add_u32 v232, s99, v2")
        self.kv_addr()
        self.kv_loads()
        a(f"s_waitcnt vmcnt({6 + 4 * self.NFIRST})")
        cmul(P, TW, lambda t, part: (PK + 8 * t + 4 * part) if t < 2 else (Q + 4 * (t - 2) + 2 * part))
        a(f"ds_write_b128 v7, {vr(Q,4)}\nds_write_b128 v7, {vr(Q+4,4)} offset:1024")
        self.add1(XA, base="v232")
        a("v_add_u32 v7, s84, v5")
        self.wait(XA, 2, sleep=0, base="v232")
        for t in range(2):
            for part in range(2):
                a(f"ds_read_b64 {vr(PK+8*t+4*part+2,2)}, v7 offset:{1024*t+8*part}")
        self.stamp(8, 2)
        a(f"s_waitcnt vmcnt({4 * self.NFIRST}) lgkmcnt(0)")
        t32 = lambda k, at: WW + 8 * k + 4 * at
        out = lambda t, part, at: Q + 16 * t + 8 * part + 4 * at
        for t in range(2):
            for at in range(2):
                mf(out(t, 0, at), t32(0, at), PK + 8 * t, True); mf(out(t, 1, at), t32(0, at), PK + 8 * t + 4, True)
            for at in range(2):
                mf(out(t, 0, at), t32(1, at), PK + 8 * t + 4, False); mf(out(t, 1, at), t32(2, at), PK + 8 * t, False)
        a(f"s_add_u32 s92, s90, {WS_Y}\ns_add_u32 s93, s91, {WS_Y}")
        for t in range(2):
            for part in range(2):
                b = out(t, part, 0); d = 48 + 8 * t + 4 * part
                for k in range(4):
                    a(f"v_cvt_pk_bf16_f32 v{d+k}, v{b+2*k}, v{b+2*k+1}")
                a(f"buffer_store_dwordx4 {vr(d,4)}, v6, {SWS}, {'s93' if part else 's92'} offen offset:{1024*t} sc1")
        self.stamp(9, 2)
        self.flag4("s99", "s89", WS_FY)

    def l_mid(self):
        a = self.a
        go = a.label("S2"); no = a.label("NS2"); n7 = a.label("N7"); kv = a.label("LKV"); tb = a.label("TB"); nw = a.label("NW")
        a(f"s_mov_b32 s89, s2\ns_cmp_lg_u32 {sW}, 7\ns_cbranch_scc1 {n7}")
        self.s_flag()
        a(f"s_mov_b32 s89, s2\ns_branch {go}\n{n7}:")
        self.wait(CW, 1, sleep=4, idle=True)
        n5 = a.label("N5")
        a(f"s_cmp_lg_u32 {sW}, 5\ns_cbranch_scc1 {n5}")
        self.poison()
        a(f"s_lshl_b32 s91, s2, 2\ns_add_u32 s91, s91, {WS_FP}")
        a("s_waitcnt vmcnt(0)")
        self.set_flag("s91")
        a(f"{n5}:\ns_setprio 3\ns_cmp_eq_u32 {sW}, 6\ns_cbranch_scc1 {tb}")
        a(f"""
s_add_u32 s89, s2, 192
s_sub_u32 s73, s2, 64
s_cmp_gt_u32 s73, 32
s_cbranch_scc1 {nw}
{tb}:
""")
        self.stage2_tables()
        a(f"{go}:")
        self.stage2()
        a(f"s_branch {kv}\n{nw}:")
        wo = a.label("WOD")
        a(f"s_cmp_lg_u32 {sW}, 4\ns_cbranch_scc1 {wo}\ns_lshr_b32 s73, s2, 3\ns_cmp_lg_u32 s73, 16\ns_cbranch_scc1 {wo}")
        a(f"v_lshlrev_b32 v9, 7, v0\ns_mov_b32 s92, {WS_FS}")
        self.poll(f"buffer_load_dwordx4 v[12:15], v9, {SWS}, s92 offen sc1", [12, 13, 14, 15], sleep=4)
        a(f"s_and_b32 s92, s2, 7\ns_lshl_b32 s92, s92, 7\ns_add_u32 s92, s92, {WS_GOS}")
        self.set_flag("s92")
        a(f"{wo}:")
        self.srd(SWO, 18, 663552)
        self.panel_setup(2)
        self.panel_loads(SWO, L_WO0, L_WO1, L_WOX, False, 36, 2)
        a("s_waitcnt vmcnt(0)")
        self.add1(S3)
        self.add1(S3)
        a(f"{no}:\ns_mov_b32 s99, {OOB}")
        self.kv_addr()
        self.kv_loads()
        a(f"s_setprio 1\n{kv}:")
        self.stamp(9)

    NT = 192

    def tail(self, mm, n):
        a = self.a
        ACC, ACX = 16, 32
        WF = 48
        NT = self.NT
        w = 2 * mm + n
        a("s_setprio 3")
        self.norm_setup(1 - n)
        a(f"""
ds_read_b32 v11, v14 offset:{256 + 128 * n}
v_and_b32 v37, 15, v0
v_lshrrev_b32 v38, 4, v0
v_lshl_add_u32 v14, v37, 2, v2
ds_read_b32 v36, v14 offset:{256 + 128 * n + 64 * mm}
v_bfe_u32 v43, v0, 2, 2
v_and_b32 v44, 3, v0
v_bfe_u32 v46, v0, 4, 1
v_and_b32 v39, 1, v44
v_lshlrev_b32 v15, 2, v39
v_lshl_add_u32 v15, v46, 1, v15
v_lshrrev_b32 v14, 1, v44
v_add_u32 v45, v15, v14
v_lshlrev_b32 v45, 3, v45
v_add_u32 v45, {L_WO1 if mm else L_WO0}, v45
v_lshl_add_u32 v6, v13, 2, v43
v_lshl_add_u32 v6, v6, 6, v45
v_lshrrev_b32 v7, 1, v43
v_mul_u32_u24 v7, 72, v7
v_and_b32 v14, 1, v43
v_add3_u32 v40, v7, v14, 16
v_lshl_add_u32 v7, v40, 6, v45
v_mul_u32_u24 v14, 18432, v13
v_add_u32 v7, v7, v14
v_lshlrev_b32 v39, 3, v39
v_add_u32 v39, {L_WOX}, v39
v_mul_u32_u24 v15, 288, v46
v_add_u32 v15, v15, v40
v_lshl_add_u32 v15, v15, 4, v39
v_mul_u32_u24 v14, 72, v13
v_lshl_add_u32 v14, v46, 2, v14
v_add_u32 v14, v14, v43
v_lshl_add_u32 v14, v14, 4, v39
v_lshlrev_b32 v41, 4, v37
v_lshl_add_u32 v41, v46, 9, v41
v_lshl_add_u32 v47, v13, 10, v41
v_cmp_gt_u32 vcc, 32, v0
v_mov_b32 v40, {OOB}
v_add_u32 v41, {256 * mm}, v47
v_cndmask_b32 v42, v40, v41, vcc
v_cmp_gt_u32 vcc, 8, v37
s_nop 0
v_cndmask_b32 v47, v40, v47, vcc
s_waitcnt lgkmcnt(0)
v_sub_f32 v4, 1.0, v4
""")

        normalize = self.normalize

        def wrow(kind, k, hh, u):
            if kind == "m":
                return ("v6", (72 * k + 18 * hh + 8 * u) * 64) if k < 8 else ("v7", (144 * u + 18 * hh) * 64)
            return ("v14", (144 * k + 18 * hh + 8 * u) * 16) if k < 4 else ("v15", (144 * u + 18 * hh) * 16)

        def consume(i, probe):
            OB, AX = 192, 248
            hh = i >> 1
            seq = []
            for ks in range(9):
                seq.append(("m", ks))
                if ks % 2 == 1 or ks == 8: seq.append(("x", ks // 2))
            def rd(k):
                for u in range(2):
                    base, off = wrow("x", k, hh, u)
                    a(f"ds_read_b64_tr_b16 {vr(AX+4*(k%2)+2*u,2)}, {base} offset:{off}")
            rd(0); rd(1)
            if probe:
                l = a.label("CP"); d = a.label("CQ")
                a(f"{l}:\ns_add_u32 s90, s94, {i*9216 + 8192}\nbuffer_load_dwordx4 {vr(OB,4)}, v5, {SWS}, s90 offen sc1")
                a(f"s_waitcnt vmcnt(0)\nv_max_u32 v1, v{OB}, v{OB+1}\nv_max3_u32 v1, v1, v{OB+2}, v{OB+3}")
                a(f"v_cmp_eq_u32 vcc, -1, v1\ns_cmp_eq_u64 vcc, 0\ns_cbranch_scc1 {d}")
                a(f"s_sleep 8\ns_sub_u32 {sSPIN}, {sSPIN}, 1\ns_cbranch_scc0 {l}\ns_branch L_bail\n{d}:")
            l = a.label("CL"); d = a.label("CD")
            a(f"{l}:")
            chk = []
            oreg = lambda it: OB + (4 * it[1] if it[0] == "m" else 36 + 4 * it[1])
            for it in seq:
                kind, k = it
                if kind == "m" and k % 4 == 0:
                    a(f"s_add_u32 s90, s94, {i*9216 + 1024*k}")
                voff, last = ("v5", k == 8) if kind == "m" else ("v41" if k < 4 else "v42", k == 4)
                imm = 1024 * (k % 4) if kind == "m" else 2048 * (k % 2)
                a(f"buffer_load_dwordx4 {vr(oreg(it),4)}, {voff}, {SWS}, s90 offen offset:{imm} sc1")
                chk.append([oreg(it) + r for r in range(4 if last else 1)])
            flat = [(j, r) for j, rs in enumerate(chk) for r in rs]
            a(f"s_waitcnt vmcnt({len(chk) - 2})\nv_max_u32 v1, v{flat[0][1]}, v{flat[1][1]}")
            for p in range(2, len(flat), 2):
                a(f"s_waitcnt vmcnt({len(chk) - 1 - flat[p+1][0]})\nv_max3_u32 v1, v1, v{flat[p][1]}, v{flat[p+1][1]}")
            a(f"v_cmp_eq_u32 vcc, -1, v1\ns_cmp_eq_u64 vcc, 0\ns_cbranch_scc1 {d}")
            a(f"s_sleep {2 if i >= 6 else 8}\ns_sub_u32 {sSPIN}, {sSPIN}, 1\ns_cbranch_scc0 {l}\ns_branch L_bail\n{d}:")
            for kind, k in seq:
                if kind == "m":
                    a(f"v_mfma_f32_32x32x16_bf16 {vr(ACC,16)}, {vr(WF+36*hh+4*k,4)}, {vr(oreg((kind,k)),4)}, {vr(ACC,16)}")
                else:
                    a(f"s_waitcnt lgkmcnt({2 if k < 4 else 0})")
                    a(f"v_mfma_f32_16x16x32_bf16 {vr(ACX,4)}, {vr(AX+4*(k%2),4)}, {vr(oreg((kind,k)),4)}, {vr(ACX,4)}")
                    if k + 2 < 5:
                        rd(k + 2)

        if w == 2:
            a(f"s_mov_b32 s92, {WS_FP}")
            self.poll(f"buffer_load_dwordx4 {vr(NT,4)}, v5, {SWS}, s92 offen sc1", [NT, NT + 1, NT + 2, NT + 3], sleep=16)
            self.add1(SA)
        normalize(2 * mm + (1 - n))
        self.stamp(2, 4)
        nw = a.label("NWO")
        a(f"s_sub_u32 s73, s2, 64\ns_cmp_gt_u32 s73, 32\ns_cbranch_scc1 {nw}")
        self.srd(SWO, 18, 663552)
        self.panel_setup(4, va=48)
        self.wait(CV, 8, sleep=4, idle=True)
        self.panel_loads(SWO, L_WO0, L_WO1, L_WOX, False, 36, 4, va=48)
        a("s_waitcnt vmcnt(0)")
        self.add1(S3)
        a(f"{nw}:")
        self.wait(S3, 4, sleep=2)
        self.stamp(3, 4)
        for hh in range(4):
            for k in range(9):
                for u in range(2):
                    base, off = wrow("m", k, hh, u)
                    a(f"ds_read_b64_tr_b16 {vr(WF+36*hh+4*k+2*u,2)}, {base} offset:{off}")
                if k % 3 == 2:
                    a("s_waitcnt lgkmcnt(6)")
        self.stamp(4, 4)
        GM, GX, GD, GE = 192, 224, 8, 3
        AC2, BF, BX = ACC, 236, 248
        a(f"""
v_lshrrev_b32 v39, 3, v0
v_lshlrev_b32 v39, 12, v39
v_lshlrev_b32 v40, 2, v46
v_xor_b32 v40, v40, v0
v_and_b32 v40, 7, v40
v_lshl_add_u32 v39, v40, 4, v39
v_bfe_u32 v40, v0, 3, 1
v_xor_b32 v40, {n}, v40
v_lshlrev_b32 v40, 6, v40
v_lshl_add_u32 v40, v44, 3, v40
v_lshl_add_u32 v40, v43, 7, v40
v_lshl_add_u32 v43, v13, 10, v40
v_lshl_add_u32 v43, v46, 5, v43
v_add_u32 v44, 36864, v43
v_lshl_add_u32 v45, v38, 10, v40
v_add_u32 v45, {32 * mm}, v45
v_add_u32 v46, 36864, v45
s_mul_i32 s93, {sJ}, {3*36*1024}
s_add_u32 s98, s93, {WS_G + 2*36*1024}
s_add_u32 s93, s93, {WS_G + mm*36*1024}
s_waitcnt lgkmcnt(0)
""")
        self.add1(S2)
        vm = []
        def gm(ks):
            a(f"buffer_load_dwordx4 {vr(GM+4*(ks%GD),4)}, v5, {SWS}, s93 offen offset:{1024*(ks%4)} sc1")
            if ks % 4 == 3: a("s_add_u32 s93, s93, 4096")
            vm.append(("m", ks))
        def gx(T):
            a(f"buffer_load_dwordx4 {vr(GX+4*(T%GE),4)}, v47, {SWS}, s98 offen offset:{2048*(T%2)} sc1")
            if T % 2 == 1: a("s_add_u32 s98, s98, 4096")
            vm.append(("x", T))
        self.wait(CV, 7, sleep=4, idle=True)
        for ks in range(GD):
            gm(ks)
            if ks % 2 == 1 and ks // 2 < GE: gx(ks // 2)
        if w == 2:
            cl = a.label("YC"); yd = a.label("YD")
            a(f"s_lshr_b32 s73, s2, 3\ns_cmp_lg_u32 s73, 16\ns_cbranch_scc1 {cl}")
            a(f"v_lshlrev_b32 v{BF}, 7, v0\nv_min_u32 v{BF+1}, {7*128}, v{BF}\ns_mov_b32 s99, {WS_FY}\ns_mov_b32 s92, {WS_FY + 8192}\ns_mov_b32 s88, {WS_FY + 72*128}")
            self.poll(f"buffer_load_dwordx4 {vr(BF+2,4)}, v{BF}, {SWS}, s99 offen sc1\nbuffer_load_dwordx4 {vr(BF+6,4)}, v{BF+1}, {SWS}, s92 offen sc1\n"
                      f"buffer_load_dword v{BF+10}, off, {SWS}, s88 sc1", [BF + 2 + k for k in range(9)], sleep=4)
            a(f"s_and_b32 s92, s2, 7\ns_lshl_b32 s92, s92, 7\ns_add_u32 s92, s92, {WS_GOY}")
            self.set_flag("s92")
            a(f"s_branch {yd}\n{cl}:")
            self.go_wait(WS_GOY, BF, 6)
            a(f"{yd}:")
            self.add1(CY)
            ne = a.label("NE")
            a(f"s_cmp_lg_u32 s2, 0\ns_cbranch_scc1 {ne}")
            self.set_flag(str(WS_EPOCH))
            a(f"{ne}:")
        else:
            self.wait(CY, 1, sleep=4, idle=True)
        self.wait(S2, 4, sleep=2)
        self.stamp(1); self.stamp(5, 4)
        a(f"s_lshl_b32 s99, {sP}, 7\ns_add_u32 s99, s99, {WS_Y + w * 32768}\ns_mov_b32 s92, {L_Y + w * 1024}")
        def ydma():
            lp = a.label("YL")
            a(f"s_mov_b32 s88, 2\n{lp}:")
            for k in range(3):
                a(f"s_mov_b32 m0, s92\ns_add_u32 s92, s92, 4096\nbuffer_load_dwordx4 v39, {SWS}, s99 offen sc1 lds\ns_add_u32 s99, s99, {4*32768}")
            a(f"s_sub_u32 s88, s88, 1\ns_cbranch_scc0 {lp}")
        ydma()
        ydma()
        vm.extend([("y", k) for k in range(18)])
        a("s_waitcnt vmcnt(9)")
        self.add1(S1)
        self.stamp(6, 4)
        def yrd(it):
            kind, k = it
            if kind == "m":
                b = BF + 4 * (k % 3); base, off = ("v43", 2048 * k) if k < 18 else ("v44", 2048 * (k - 18))
            else:
                b = BX + 4 * (k % 2); base, off = ("v45", 4096 * k) if k < 9 else ("v46", 4096 * (k - 9))
            a(f"ds_read_b64_tr_b16 {vr(b,2)}, {base} offset:{off}\nds_read_b64_tr_b16 {vr(b+2,2)}, {base} offset:{off+512}")
        done = {"vm": len(vm) - 9}
        def half(k0):
            seq = []
            for ks in range(k0, k0 + 18):
                seq.append(("m", ks))
                if ks % 2 == 1: seq.append(("x", ks // 2))
            for it in seq[:3]:
                yrd(it)
            for i, it in enumerate(seq):
                wv = ""
                if vm.index(it) + 1 > done["vm"]:
                    done["vm"] = vm.index(it) + 1
                    wv = f"vmcnt({len(vm) - done['vm']}) "
                a(f"s_waitcnt {wv}lgkmcnt({2 * (min(i + 3, len(seq)) - i - 1)})")
                kind, k = it
                if kind == "m":
                    a(f"v_mfma_f32_32x32x16_bf16 {vr(AC2,16)}, {vr(GM+4*(k%GD),4)}, {vr(BF+4*(k%3),4)}, {'0' if k == 0 else vr(AC2,16)}")
                    if k + GD < 36: gm(k + GD)
                else:
                    a(f"v_mfma_f32_16x16x32_bf16 {vr(AC2+16,4)}, {vr(GX+4*(k%GE),4)}, {vr(BX+4*(k%2),4)}, {'0' if k == 0 else vr(AC2+16,4)}")
                    if k + GE < 18: gx(k + GE)
                if i + 3 < len(seq):
                    yrd(seq[i + 3])
                if it == ("m", GD):
                    self.add1(S4)
        self.wait(S1, 4, sleep=1)
        self.stamp(7, 4)
        half(0)
        self.wait(S4, 4, sleep=1)
        half(18)
        self.stamp(2); self.stamp(8, 4)
        self.srd(SOUT, 22, 2359296)
        a(f"""
s_mov_b32 s73, 73728
v_mul_lo_u32 v39, v12, s73
v_lshl_add_u32 v39, v13, 5, v39
v_mul_lo_u32 v40, v37, s73
v_lshl_add_u32 v40, v38, 3, v40
s_mul_i32 s93, {sP}, 2304
s_add_u32 s93, s93, s95
s_add_u32 s93, s93, {1152 * n}
s_add_u32 s92, s93, {16 * mm * 73728}
""")
        for i in range(8):
            a(f"v_pk_mul_f32 {vr(ACC+2*i,2)}, {vr(ACC+2*i,2)}, v[10:11] op_sel:[0,1] op_sel_hi:[1,1]")
        for i in range(2):
            a(f"v_pk_mul_f32 {vr(ACX+2*i,2)}, {vr(ACX+2*i,2)}, v[36:37] op_sel_hi:[1,0]")
        consume(n, False)
        consume(2 + n, False)
        self.stamp(9, 4)
        prog = {0: ["N5", "C4", "C6"], 1: ["N4", "C5", "C7"], 2: ["C4", "C6"], 3: ["N6", "C5", "C7"]}[w]
        gates = {4: 5, 5: 6, 6: 7, 7: 7}
        for it in prog:
            i = int(it[1])
            if it[0] == "N":
                normalize(i)
                self.stamp(3)
            else:
                self.wait(CT + 4 * gates[i], 4, sleep=2 if gates[i] == 7 else 4, idle=True)
                if i == 7:
                    a(f"s_sleep {self.opt('d7', 10)}")
                if i >= 6: self.stamp(4)
                consume(i, i < 6)
        self.stamp(6)
        fl = " sc1" if "outsc1" in self.opts else ""
        a(f"v_cvt_pk_bf16_f32 v{ACX}, v{ACX}, v{ACX+1}\nv_cvt_pk_bf16_f32 v{ACX+1}, v{ACX+2}, v{ACX+3}")
        for k in range(8):
            a(f"v_cvt_pk_bf16_f32 v{ACC+k}, v{ACC+2*k}, v{ACC+2*k+1}")
        a(f"buffer_store_dwordx4 {vr(ACC,4)}, v39, {SOUT}, s93 offen offset:{64*mm}{fl}")
        a(f"buffer_store_dwordx4 {vr(ACC+4,4)}, v39, {SOUT}, s93 offen offset:{64*mm+16}{fl}")
        a(f"s_mov_b32 exec_hi, 0\nbuffer_store_dwordx2 {vr(ACX,2)}, v40, {SOUT}, s92 offen offset:128{fl}\ns_mov_b64 exec, -1")
        self.stamp(7)

    def norm_setup(self, rows):
        self.a(f"""
v_lshlrev_b32 v5, 4, v0
v_and_b32 v12, 31, v0
v_lshrrev_b32 v13, 5, v0
v_add_u32 v8, {L_EX}, v5
v_lshlrev_b32 v9, 3, v0
v_add_u32 v9, {L_EX + 2048}, v9
v_lshlrev_b32 v10, 3, v12
v_add_u32 v10, {L_EX + 2048 + 256}, v10
v_lshl_add_u32 v14, v12, 2, v2
ds_read_b32 v4, v14 offset:{256 + 128 * rows}
s_mul_i32 s94, {sP}, {8*9216}
s_add_u32 s94, s94, {WS_OF}
s_lshl_b32 s96, {sJ}, 10
s_add_u32 s96, s96, s94
s_lshr_b32 s97, {sJ}, 2
s_lshl_b32 s97, s97, 9
s_and_b32 s73, {sJ}, 3
s_lshl_b32 s73, s73, 2
s_add_u32 s97, s97, s73
s_add_u32 s97, s97, s94
s_add_u32 s97, s97, 8192
""")

    def normalize(self, i, wait=True):
        a = self.a
        NT = self.NT
        q = i % 4
        if wait:
            self.wait(CT + 4 * i, 4, sleep=1 if i >= 6 else 4, idle=True)
        for s in range(4):
            b = NT + 12 * s; o = 10240 * q + 2560 * s
            a(f"ds_read_b128 {vr(b,4)}, v8 offset:{o}\nds_read_b128 {vr(b+4,4)}, v8 offset:{o+1024}\nds_read_b64 {vr(b+8,2)}, v9 offset:{o}")
            if s == 3:
                a("s_waitcnt lgkmcnt(9)")
            a(f"ds_read_b32 v{b+10}, v10 offset:{o}")
        a(f"s_add_u32 s90, s96, {i*9216}\ns_add_u32 s91, s97, {i*9216}\ns_movk_i32 s89, {i}")
        a("s_waitcnt lgkmcnt(8)")
        for s in range(1, 4):
            if s > 1:
                a(f"s_waitcnt lgkmcnt({4 * (3 - s)})")
            for k in range(5):
                a(f"v_pk_add_f32 {vr(NT+2*k,2)}, {vr(NT+2*k,2)}, {vr(NT+12*s+2*k,2)}")
            a(f"v_add_f32 v{NT+10}, v{NT+10}, v{NT+12*s+10}")
        if i < 4:
            self.wait(SA, 1, sleep=2)
            self.add1(CN)
        self.safety()
        a(f"v_rcp_f32 v{NT+10}, v{NT+10}\ns_nop 0\nv_mul_f32 v{NT+10}, v4, v{NT+10}")
        for k in range(5):
            a(f"v_pk_mul_f32 {vr(NT+2*k,2)}, {vr(NT+2*k,2)}, {vr(NT+10,2)} op_sel_hi:[1,0]")
        for k in range(5):
            a(f"v_cvt_pk_bf16_f32 v{NT+12+k}, v{NT+2*k}, v{NT+2*k+1}")
        a(f"v_min_u32 v{NT+12}, -2, v{NT+12}\nv_min_u32 v{NT+16}, -2, v{NT+16}")
        a(f"buffer_store_dwordx4 {vr(NT+12,4)}, v5, {SWS}, s90 offen sc1\ns_mov_b32 exec_hi, 0")
        a(f"buffer_store_dword v{NT+16}, v5, {SWS}, s91 offen sc1\ns_mov_b64 exec, -1")

    def safety(self):
        a = self.a
        NT = self.NT
        ok = a.label("SOK")
        t = NT + 12
        a(f"v_mov_b32 v{t}, 0\nv_mov_b32 v{t+1}, 0\nv_mov_b32 v{t+2}, 0\nv_mov_b32 v{t+3}, 0")
        for k in range(5):
            a(f"v_pk_fma_f32 {vr(t,2)}, {vr(NT+2*k,2)}, {vr(t+2,2)}, {vr(t,2)}")
        lo, hi = (127 - 60) << 23, (127 + 64) << 23
        if "forcefb" in self.opts:
            lo, hi = (127 + 60) << 23, (127 + 64) << 23
        a(f"v_add_f32 v{t}, v{t}, v{t+1}\nv_subrev_u32 v{t+1}, {lo:#x}, v{NT+10}\nv_cmp_u_f32 vcc, v{t}, v{t}")
        a(f"s_mov_b32 s73, {hi - lo:#x}\nv_cmp_lt_u32 s[74:75], s73, v{t+1}\ns_or_b64 vcc, vcc, s[74:75]\ns_cmp_eq_u64 vcc, 0\ns_cbranch_scc1 {ok}")
        a(f"s_call_b64 s[86:87], L_fallback\n{ok}:")

    def fallback(self):
        a = self.a
        NT = self.NT
        Q, QX, K, KX, V, S, O, MX = 48, 52, 56, 60, 64, 72, 88, 104
        vK, vKX, vV, T0 = 105, 106, 107, 108
        l1 = a.label("FB1"); l2 = a.label("FB2")
        qk = f"""
buffer_load_dwordx4 {vr(K,4)}, v{vK}, {SWS}, s[84] offen sc1
buffer_load_dword v{KX}, v{vKX}, {SWS}, s[85] offen sc1
""".replace("s[84]", "s84").replace("s[85]", "s85")
        mm = f"""
v_mfma_f32_32x32x16_bf16 {vr(S,16)}, {vr(K,4)}, {vr(Q,4)}, 0
v_mfma_f32_32x32x8_bf16 {vr(S,16)}, {vr(KX,2)}, {vr(QX,2)}, {vr(S,16)}
s_add_u32 s84, s84, 1024
s_add_u32 s85, s85, 128
"""
        a(f"""
L_fallback:
s_nop 4
v_lshlrev_b32 v{vK}, 5, v12
v_lshl_add_u32 v{vK}, v13, 4, v{vK}
v_mov_b32 v{T0}, {OOB}
v_lshlrev_b32 v{vKX}, 2, v12
v_cmp_lt_u32 vcc, 31, v0
v_subrev_u32 v{T0+1}, 64, v{vK}
v_cndmask_b32 v{vKX}, v{vKX}, v{T0}, vcc
v_cmp_eq_u32 vcc, 20, v12
s_mul_i32 s73, s89, 1536
v_cndmask_b32 v{T0+1}, v{T0}, v{T0+1}, vcc
v_cmp_gt_u32 vcc, 18, v12
s_add_u32 s73, s73, {L_QS}
v_cndmask_b32 v{vV}, v{T0+1}, v{vK}, vcc
v_mul_u32_u24 v{T0}, 48, v12
v_add_u32 v{T0}, s73, v{T0}
v_lshl_add_u32 v{T0+1}, v13, 2, v{T0}
v_lshl_add_u32 v{T0}, v13, 4, v{T0}
ds_read_b128 {vr(Q,4)}, v{T0}
ds_read_b32 v{QX}, v{T0+1} offset:32
v_mov_b32 v{QX+1}, 0
v_mov_b32 v{KX+1}, 0
v_mov_b32 v{MX}, 0xff800000
s_mov_b32 s84, {WS_K16}
s_mov_b32 s85, {WS_KX}
s_mov_b32 s88, 63
{l1}:
{qk}
s_waitcnt vmcnt(0) lgkmcnt(0)
{mm}
""")
        for k in range(8):
            a(f"v_max3_f32 v{MX}, v{MX}, v{S+2*k}, v{S+2*k+1}")
        a(f"""
s_sub_u32 s88, s88, 1
s_cbranch_scc0 {l1}
v_mov_b32 v{T0}, v{MX}
v_permlane32_swap_b32 v{MX}, v{T0}
v_max_f32 v{MX}, v{MX}, v{T0}
s_mov_b32 s84, {WS_K16}
s_mov_b32 s85, {WS_KX}
s_mov_b32 s83, {WS_VF}
s_mov_b32 s88, 63
""")
        for r in range(16):
            a(f"v_mov_b32 v{O+r}, 0")
        a(f"""
{l2}:
{qk}
buffer_load_dwordx4 {vr(V,4)}, v{vV}, {SWS}, s83 offen sc1
buffer_load_dwordx4 {vr(V+4,4)}, v{vV}, {SWS}, s83 offen offset:{VPITCH} sc1
s_waitcnt vmcnt(0)
{mm}
s_add_u32 s83, s83, {2*VPITCH}
""")
        for r in range(16):
            a(f"v_sub_f32 v{S+r}, v{S+r}, v{MX}")
        for r in range(16):
            a(f"v_exp_f32 v{S+r}, v{S+r}")
        for k in range(8):
            a(f"v_cvt_pk_bf16_f32 v{S+k}, v{S+2*k}, v{S+2*k+1}")
        a(f"""
v_mfma_f32_32x32x16_bf16 {vr(O,16)}, {vr(V,4)}, {vr(S,4)}, {vr(O,16)}
v_mfma_f32_32x32x16_bf16 {vr(O,16)}, {vr(V+4,4)}, {vr(S+4,4)}, {vr(O,16)}
s_nop 15
s_sub_u32 s88, s88, 1
s_cbranch_scc0 {l2}
""")
        for r in range(10):
            a(f"v_mov_b32 v{NT+r}, v{O+r}")
        a(f"v_mov_b32 v{T0}, v{O+8}\nv_mov_b32 v{NT+10}, v{O+8}\nv_permlane32_swap_b32 v{T0}, v{NT+10}\ns_nop 4\ns_setpc_b64 s[86:87]")

    def finish_stamps(self):
        a = self.a
        if self.stamps:
            a("v_mov_b32 v2, 0")
            for i in range(12):
                a(f"v_writelane_b32 v2, s{STAMPS[i]}, {i}")
            a(f"s_lshl_b32 s73, s2, 3\ns_add_u32 s73, s73, {sW}\ns_lshl_b32 s73, s73, 7\ns_add_u32 s73, s73, {WS_DBG}")
            a(f"v_lshlrev_b32 v3, 2, v0\ns_mov_b32 exec_hi, 0\nbuffer_store_dword v2, v3, {SWS}, s73 offen\ns_mov_b64 exec, -1")

    def build(self):
        a = self.a
        self.prologue()
        self.e_front()
        a("L_attn:")
        self.attention()
        self.stamp(8)
        a(f"s_cmp_ge_u32 {sW}, 4\ns_cbranch_scc1 L_last")
        labs = [a.label("TL") for _ in range(4)]
        for w in range(1, 4):
            a(f"s_cmp_eq_u32 {sW}, {w}\ns_cbranch_scc1 {labs[w]}")
        for w in range(4):
            a(f"{labs[w]}:")
            self.tail(w >> 1, w & 1)
            a("s_branch L_fin")
        a(f"L_last:\ns_waitcnt lgkmcnt(0)\nv_readfirstlane_b32 s73, v1\nv_sub_f32 v4, 1.0, v4\ns_cmp_lg_u32 s73, 3\ns_cbranch_scc1 L_fin\ns_setprio 3")
        self.normalize(7, wait=False)
        self.stamp(3)
        a("s_branch L_fin")
        a("L_lwave:")
        self.l_front()
        self.l_mid()
        a("s_branch L_attn")
        self.fallback()
        a("L_bail:")
        if self.stamps:
            a(f"s_mov_b32 s{STAMPS[11]}, 0xdead0000")
        a("L_fin:")
        if self.opt("padto", 0):
            a(f"L_pad:\ns_sleep 2\ns_memrealtime s[78:79]\ns_waitcnt lgkmcnt(0)\ns_sub_u32 s78, s78, s76\ns_cmp_lt_u32 s78, s80\ns_cbranch_scc1 L_pad")
        self.finish_stamps()
        a("L_end:\ns_endpgm")
        body = a.finish()
        tw = self.make_tables()
        assert tw.size == 2 * self.NTAB * 256
        tab = "\n".join(".long " + ",".join(f"{x:#x}" for x in tw[i:i+16]) for i in range(0, tw.size, 16))
        hdr = open("cdna_kernels/" + NAME + ".s.ref").read().split("; Override launch")[0]
        return f"""{hdr}; @launch grid=(256,1,1) block=(512,1,1) lds={LDS_BYTES}
.amdgcn_target "amdgcn-amd-amdhsa--gfx950"
.text
.globl {NAME}_kernel
.p2align 8
.type {NAME}_kernel,@function
{NAME}_kernel:
{body}
.section .rodata,"a"
.p2align 8
.type spectral_tables,@object
spectral_tables:
{tab}
.size spectral_tables, {2*self.NTAB*1024}
.p2align 6
.amdhsa_kernel {NAME}_kernel
  .amdhsa_next_free_vgpr 256
  .amdhsa_next_free_sgpr 102
  .amdhsa_accum_offset 256
  .amdhsa_group_segment_fixed_size 0
  .amdhsa_kernarg_size 96
  .amdhsa_user_sgpr_count 2
  .amdhsa_user_sgpr_kernarg_segment_ptr 1
  .amdhsa_system_sgpr_workgroup_id_x 1
.end_amdhsa_kernel
"""


if __name__ == "__main__":
    opts = sys.argv[2:]
    g = Gen(stamps=2 if "st2" in opts else 3 if "st3" in opts else 4 if "st4" in opts else int("stamps" in opts), cyc="cyc" in opts, opts=opts)
    src = g.build()
    open(sys.argv[1], "w").write(src)
    print("nops added:", g.a.added_nops, "lines:", len(src.splitlines()))
```

```python
import sys
import numpy as np
from asmlib import Asm
import model as M

NAME = "gated_mix__spectral_gfnet__grouped_kv_mqa__prompt"

WS_EPOCH = 0
WS_FKV = 0x50000
WS_FS = 0x58000
WS_FY = 0x60000
WS_GOS = 0x68000
WS_K16 = 0x10000
WS_KX = 0x20000
WS_VF = 0x30000
WS_DBG = 0x80000
WS_G = 0x100000
WS_T = 0x200000
WS_Y = 0x500000
WS_OF = 0x800000
WS_WT = 0xB00000
WS_QDUMP = 0x1100000
WS_SIZE = 0x2000000
OOB = 0x40000000
VPITCH = 640

XP = 1040
L_X = 0
L_X2 = 64 * XP
L_WQ0 = 74752
L_WQ1 = 111616
P2SZ = 9728
L_P2Q = 148480
L_P2KV = L_P2Q - P2SZ
L_MISC = 162816
L_CT = L_MISC - 2048
(C0A, C0B, C0C, C1, CX, CK, CE, CV, CY, S1, S2, S3, CN, CW, CF, CD, CG, S4, C0D, SA, XA, XB, YA, YB, CR) = (2048 + 4 * i for i in range(25))
L_G = L_MISC + 256
L_QS = L_WQ0
L_WO0 = 0
L_WO1 = 36864
L_Y = 0
L_EX = L_QS + 12288
L_WOX = L_EX + 16 * 2560
L_XCH = L_WOX + 9216
LDS_BYTES = 163840
assert L_XCH + 8192 <= L_CT and L_P2Q + P2SZ <= L_CT and L_P2Q + P2SZ <= L_MISC and L_P2KV >= L_WQ1 + 416 * 64

SX, SWQ, SKV, SG, SWS, SWO, SOUT, SWR, SWI, STB = (f"s[{a}:{a+3}]" for a in range(28, 68, 4))
sW, sP, sJ, sTAG, sSPIN = "s68", "s69", "s70", "s71", "s72"
STAMPS = [76, 77, 78, 79, 80, 81, 100, 101, 3, 10, 11, 24]
SPIN_MAX = 400000

f32bits = lambda v: int(np.float32(v).view(np.uint32))
QSCALE_BITS = f32bits(M.QSCALE)
LOG2E_BITS = f32bits(M.LOG2E)


def vr(a, n=1):
    return f"v{a}" if n == 1 else f"v[{a}:{a+n-1}]"


class Gen:
    AQ, AQX, AO, AK, AKX, AV, AS = 24, 28, 32, 88, 120, 128, 192
    vQ, vQX, vEX, vEX2, vK, vKX, vV, vCT = 78, 79, 80, 81, 82, 83, 4, 84
    vCT2 = vCT

    def __init__(self, stamps=0, cyc=False, opts=()):
        self.a = Asm()
        self.stamps = stamps
        self.clk = "s_memtime" if cyc else "s_memrealtime"
        self.opts = set(opts)
        self.busy = 3

    def opt(self, name, default):
        for o in self.opts:
            if o.startswith(name + "="):
                return int(o.split("=")[1])
        return default

    def _st(self, i):
        self.a(f"{self.clk} s[74:75]\ns_waitcnt lgkmcnt(0)\ns_mov_b32 s{STAMPS[i]}, s74")

    def stamp(self, i, level=1):
        if self.stamps == level:
            self._st(i)
        if self.opt("pid", -1) == i and self.opt("plev", 1) == level:
            l = self.a.label("PB")
            self.a(f"s_cmp_lg_u32 {sW}, {self.opt('pw', 0)}\ns_cbranch_scc1 {l}\ns_memrealtime s[78:79]\ns_waitcnt lgkmcnt(0)\n"
                   f"s_sub_u32 s80, s78, s76\ns_add_u32 s80, s80, {self.opt('padto', 0)}\n{l}:")

    def srd(self, srd, lo, size):
        b = int(srd[2:].split(":")[0])
        self.a(f"s_mov_b32 s{b}, s{lo}\ns_mov_b32 s{b+1}, s{lo+1}\ns_mov_b32 s{b+2}, {size}\ns_mov_b32 s{b+3}, 0x20000")

    def add1(self, off, base="v2"):
        self.a(f"s_mov_b64 exec, 1\nds_add_u32 {base}, v3 offset:{off}\ns_mov_b64 exec, -1")

    def wait(self, off, target, sleep=1, base="v2", idle=False):
        a = self.a
        l = a.label("LW"); d = a.label("LWD")
        if idle and "noidle" not in self.opts:
            a("s_setprio 0")
        a(f"{l}:\nds_read_b32 v1, {base} offset:{off}\ns_waitcnt lgkmcnt(0)\nv_readfirstlane_b32 s73, v1")
        a(f"s_cmp_ge_u32 s73, {target}\ns_cbranch_scc1 {d}")
        if sleep:
            a(f"s_sleep {sleep}")
        a(f"s_sub_u32 {sSPIN}, {sSPIN}, 1\ns_cbranch_scc0 {l}\ns_branch L_bail\n{d}:")
        if idle and "noidle" not in self.opts:
            a(f"s_setprio {self.busy}")

    def cmp_regs(self, regs, val, op="ne"):
        a = self.a
        a(f"v_cmp_{op}_u32 vcc, {val}, v{regs[0]}")
        for r in regs[1:]:
            a(f"v_cmp_{op}_u32 s[74:75], {val}, v{r}\ns_or_b64 vcc, vcc, s[74:75]")
        a("s_cmp_eq_u64 vcc, 0")

    def poll(self, loads, regs, sleep=2):
        a = self.a
        l = a.label("PL"); d = a.label("PD")
        a(f"{l}:")
        a(loads)
        a("s_waitcnt vmcnt(0)")
        self.cmp_regs(regs, sTAG)
        a(f"s_cbranch_scc1 {d}\ns_sleep {sleep}\ns_sub_u32 {sSPIN}, {sSPIN}, 1\ns_cbranch_scc0 {l}\ns_branch L_bail\n{d}:")

    def set_flag(self, soff):
        self.a(f"v_mov_b32 v1, {sTAG}\ns_mov_b64 exec, 1\nbuffer_store_dword v1, off, {SWS}, {soff} sc1\ns_mov_b64 exec, -1")

    def flag4(self, dst, idx, base):
        self.a(f"s_lshr_b32 {dst}, {idx}, 2\ns_lshl_b32 {dst}, {dst}, 7\ns_and_b32 s73, {idx}, 3\ns_lshl_b32 s73, s73, 2\n"
               f"s_add_u32 {dst}, {dst}, s73\ns_add_u32 {dst}, {dst}, {base}")

    def go_wait(self, base, vt, sleep):
        self.a(f"s_and_b32 s92, s2, 7\ns_lshl_b32 s92, s92, 7\ns_add_u32 s92, s92, {base}")
        self.poll(f"s_mov_b64 exec, 1\nbuffer_load_dword v{vt}, off, {SWS}, s92 sc1\ns_waitcnt vmcnt(0)\nv_readfirstlane_b32 s73, v{vt}\ns_mov_b64 exec, -1\nv_mov_b32 v{vt}, s73", [vt], sleep=sleep)

    def tag(self):
        self.a(f"s_mul_i32 {sTAG}, {sTAG}, 0x9E3779B1\ns_add_u32 {sTAG}, {sTAG}, 0x7F4A7C15")

    def prologue(self):
        a = self.a
        a(f"""
s_cmp_ge_u32 s2, 256
s_cbranch_scc1 L_end
s_load_dwordx16 s[4:19], s[0:1], 0
s_load_dwordx8 s[20:27], s[0:1], 64
v_lshrrev_b32 v1, 6, v0
v_and_b32 v0, 63, v0
v_readfirstlane_b32 {sW}, v1
s_and_b32 {sP}, s2, 31
s_lshr_b32 {sJ}, s2, 5
""")
        if self.stamps:
            a(f"{self.clk} s[74:75]")
        if self.opt("padto", 0):
            a(f"s_memrealtime s[76:77]\ns_mov_b32 s80, {self.opt('padto', 0)}")
        a(f"""
v_lshl_add_u32 v4, v1, 6, v0
v_mov_b32 v2, {L_CT}
v_mov_b32 v3, 1
v_lshlrev_b32 v7, 4, v0
s_mul_i32 s94, {sP}, 2304
s_mul_i32 s95, {sJ}, 144
s_lshl_b32 s91, {sJ}, 2
s_add_u32 s91, s91, {sW}
s_mov_b32 s30, 2359296
s_mov_b32 s31, 0x20000
s_mov_b32 {sSPIN}, {SPIN_MAX}
s_cmp_ge_u32 {sW}, 4
s_waitcnt lgkmcnt(0)
""")
        if self.stamps:
            a(f"s_mov_b32 s{STAMPS[0]}, s74")
            for r in STAMPS[1:]:
                a(f"s_mov_b32 s{r}, 0")
        a("s_cbranch_scc1 L_lwave")

    def kv_addr(self):
        a = self.a
        a(f"""
v_and_b32 v84, 31, v0
v_lshrrev_b32 v85, 5, v0
v_lshlrev_b32 v{self.vK}, 5, v84
v_lshl_add_u32 v{self.vK}, v85, 4, v{self.vK}
v_mov_b32 v86, {OOB}
v_lshlrev_b32 v{self.vKX}, 2, v84
v_cmp_lt_u32 vcc, 31, v0
v_subrev_u32 v87, 64, v{self.vK}
v_cndmask_b32 v{self.vKX}, v{self.vKX}, v86, vcc
v_cmp_eq_u32 vcc, 20, v84
s_and_b32 s73, {sW}, 3
v_cndmask_b32 v87, v86, v87, vcc
v_cmp_gt_u32 vcc, 18, v84
s_lshl_b32 s96, s73, 14
v_cndmask_b32 v{self.vV}, v87, v{self.vK}, vcc
s_add_u32 s96, s96, {WS_K16}
s_lshl_b32 s97, s73, 11
s_add_u32 s97, s97, {WS_KX}
s_mul_i32 s98, s73, {32*VPITCH}
s_add_u32 s98, s98, {WS_VF}
""")

    def ld_k(self, t, slot):
        adv = "\ns_add_u32 s96, s96, 4096" if t % 4 == 3 else ""
        return (f"buffer_load_dwordx4 {vr(self.AK+4*slot,4)}, v{self.vK}, {SWS}, s96 offen offset:{1024*(t%4)} sc1" + adv,
                f"buffer_load_dword v{self.AKX+slot}, v{self.vKX}, {SWS}, s97 offen offset:{128*t} sc1")

    def ld_v(self, t, slot):
        adv = f"\ns_add_u32 s98, s98, {4*VPITCH}" if t % 2 == 1 else ""
        o = 2 * VPITCH * (t % 2)
        return (f"buffer_load_dwordx4 {vr(self.AV+8*slot,4)}, v{self.vV}, {SWS}, s98 offen offset:{o} sc1",
                f"buffer_load_dwordx4 {vr(self.AV+8*slot+4,4)}, v{self.vV}, {SWS}, s98 offen offset:{o+VPITCH} sc1" + adv)

    NFIRST = 4

    def kv_loads(self):
        for t in range(self.NFIRST):
            for x in self.ld_k(t, t) + self.ld_v(t, t):
                self.a(x)

    def e_front(self):
        a = self.a
        a("s_setprio 3\ns_mov_b32 s28, s4\ns_mov_b32 s29, s5")
        for k in range(8):
            a(f"""
s_and_b32 s91, s91, 31
s_mul_i32 s90, s91, 73728
s_mul_i32 m0, s91, {XP}
s_add_u32 s90, s90, s94
s_add_u32 s91, s91, 4
buffer_load_dwordx4 v7, {SX}, s90 offen lds
s_add_u32 m0, m0, {32*XP - 1152}
s_nop 0
buffer_load_dwordx4 v7, {SX}, s90 offen offset:1152 lds
""")
        a(f"""
s_load_dword {sTAG}, s[26:27], {WS_EPOCH}
v_lshrrev_b32 v20, 3, v0
s_mov_b32 s73, 73728
v_mul_lo_u32 v21, v20, s73
v_lshrrev_b32 v22, 4, v0
v_xor_b32 v22, v22, v0
v_and_b32 v22, 7, v22
v_lshl_add_u32 v21, v22, 4, v21
s_and_b32 s90, {sW}, 1
s_mul_i32 s90, s90, {16*73728}
s_lshr_b32 s73, {sW}, 1
s_mul_i32 s73, s73, 1152
s_add_u32 s90, s90, s73
s_add_u32 s90, s90, s94
s_add_u32 s90, s90, 1024
s_lshl_b32 s91, {sW}, 11
s_add_u32 m0, s91, {L_X2}
v_xor_b32 v22, 64, v21
buffer_load_dwordx4 v21, {SX}, s90 offen lds
s_add_u32 m0, s91, {L_X2 + 1024}
s_add_u32 s90, s90, {8*73728}
buffer_load_dwordx4 v22, {SX}, s90 offen lds
s_cmp_lt_u32 {sJ}, 4
s_cselect_b32 s36, s14, s16
s_cselect_b32 s37, s15, s17
s_mov_b32 s38, 20736
s_mov_b32 s39, 0x20000
v_mul_u32_u24 v5, 36, v4
v_lshlrev_b32 v6, 1, v4
s_and_b32 s73, {sJ}, 3
s_lshl_b32 s92, s73, 3
""")
        self.srd(SG, 20, 1152)
        s = a.label("KV3")
        a(f"""
buffer_load_dwordx3 v[24:26], v5, {SKV}, s92 offen
buffer_load_ushort v27, v6, {SG}, 0 offen
v_add_u32 v5, {256*36}, v5
buffer_load_dwordx3 v[28:30], v5, {SKV}, s92 offen
buffer_load_ushort v31, v6, {SG}, 0 offen offset:512
s_cmp_gt_u32 {sW}, 0
s_cbranch_scc1 {s}
v_add_u32 v5, {256*36}, v5
buffer_load_dwordx3 v[40:42], v5, {SKV}, s92 offen
buffer_load_ushort v43, v6, {SG}, 0 offen offset:1024
{s}:
s_barrier
""")
        self.stamp(6, 3)
        self.srd(SWS, 26, WS_SIZE)
        a(f"""
v_lshrrev_b32 v7, 7, v4
v_lshlrev_b32 v7, 7, v7
v_lshl_add_u32 v7, v4, 4, v7
v_add_u32 v7, {L_P2KV}, v7
v_and_b32 v14, 15, v0
v_lshrrev_b32 v15, 4, v0
v_and_b32 v17, 31, v0
v_lshrrev_b32 v18, 5, v0
v_bfe_u32 v22, v0, 2, 2
v_lshlrev_b32 v22, 4, v22
v_and_b32 v23, 1, v0
v_lshl_add_u32 v22, v23, 3, v22
v_mul_u32_u24 v16, 2176, v15
v_add_u32 v16, v16, v22
v_lshl_add_u32 v12, v15, 7, v22
v_add_u32 v12, {512*16 + 512}, v12
v_add_u32 v19, {L_P2KV}, v16
v_add_u32 v10, {L_P2KV}, v12
v_add_u32 v16, {L_P2Q}, v16
v_add_u32 v12, {L_P2Q}, v12
s_lshl_b32 s73, {sW}, 4
v_add_u32 v21, s73, v14
v_mul_u32_u24 v20, {XP}, v21
v_lshl_add_u32 v20, v15, 8, v20
v_lshrrev_b32 v22, 1, v21
v_xor_b32 v22, v22, v15
v_and_b32 v22, 7, v22
v_lshlrev_b32 v22, 4, v22
v_lshl_add_u32 v11, v21, 7, v22
v_add_u32 v11, {L_X2}, v11
v_xor_b32 v9, 64, v11
s_lshl_b32 s90, {sP}, 1
s_lshr_b32 s73, {sW}, 1
s_add_u32 s90, s90, s73
s_and_b32 s91, {sW}, 1
s_mov_b32 s92, {(LOG2E_BITS | 0x80000000):#x}
s_lshl_b32 s99, {sW}, 6
s_add_u32 s99, s99, {L_G}
""")
        RG, XF, AK_ = 32, 160, 252
        def wrd(b1, b2, T, dst):
            base, off = (b1, T * 128) if T < 16 else (b2, (T - 16) * 512)
            a(f"ds_read_b64_tr_b16 {vr(dst,2)}, {base} offset:{off}\nds_read_b64_tr_b16 {vr(dst+2,2)}, {base} offset:{off+64}")
        def land():
            s = a.label("KW")
            a(f"s_waitcnt vmcnt(0)\nds_write_b128 v7, v[24:27]\nds_write_b128 v7, v[28:31] offset:{4096+256}")
            a(f"s_cmp_gt_u32 {sW}, 0\ns_cbranch_scc1 {s}\nds_write_b128 v7, v[40:43] offset:{8192+512}\n{s}:")
            self.stamp(1, 3)
            self.add1(CX)
            self.wait(CX, 4, sleep=0)
            self.tag()
            self.stamp(2, 3)
        def kv_gemm(swap):
            acc = vr(AK_, 4)
            def rd(T):
                wrd("v19", "v10", T, 44 + 4 * (T % 5))
                if T < 16:
                    a(f"ds_read_b128 {vr(XF+4*T,4)}, v20 offset:{T*16}")
                else:
                    a(f"ds_read_b128 {vr(XF+4*T,4)}, {'v11' if T == 16 else 'v9'}")
            for T in range(4):
                rd(T)
            for T in range(18):
                if T + 4 < 18:
                    rd(T + 4)
                a(f"s_waitcnt lgkmcnt({3 * (min(T + 5, 18) - T - 1)})")
                W, X = vr(44 + 4 * (T % 5), 4), vr(XF + 4 * T, 4)
                A, B = (X, W) if swap else (W, X)
                a(f"v_mfma_f32_16x16x32_bf16 {acc}, {A}, {B}, {'0' if T == 0 else acc}")
            self.add1(CK)
        kpath = a.label("EK"); done = a.label("EKD")
        a(f"s_cmp_lt_u32 {sJ}, 4\ns_cbranch_scc1 {kpath}")
        a(f"""
s_lshl_b32 s90, s90, 1
s_add_u32 s90, s90, s91
s_mul_i32 s90, s90, {VPITCH}
s_add_u32 s90, s90, {WS_VF}
s_sub_u32 s73, {sJ}, 4
s_lshl_b32 s73, s73, 2
v_add_u32 v36, s73, v14
v_cmp_eq_u32 vcc, 7, v14
v_lshrrev_b32 v37, 1, v15
v_cndmask_b32 v36, v36, 18, vcc
v_lshlrev_b32 v36, 5, v36
v_lshl_add_u32 v36, v37, 3, v36
v_and_b32 v37, 1, v15
v_lshl_add_u32 v36, v37, 4, v36
v_mov_b32 v37, 0x3f803f80
v_lshl_add_u32 v38, v15, 4, s99
s_mov_b32 s88, 0x000f000f
s_cmp_eq_u32 {sJ}, 7
s_cmov_b32 s88, 0x00bf00bf
""")
        land()
        kv_gemm(True)
        a(f"""
v_cvt_pk_bf16_f32 v22, v{AK_}, v{AK_+1}
v_cvt_pk_bf16_f32 v23, v{AK_+2}, v{AK_+3}
v_cndmask_b32 v22, v22, v37, vcc
v_cndmask_b32 v23, v23, v37, vcc
s_mov_b32 exec_lo, s88
s_mov_b32 exec_hi, s88
buffer_store_dwordx2 v[22:23], v36, {SWS}, s90 offen sc1
s_mov_b64 exec, -1
""")
        for r in range(4):
            a(f"v_mul_f32 v{AK_+r}, s92, v{AK_+r}\nv_exp_f32 v{AK_+r}, v{AK_+r}")
        for r in range(4):
            a(f"v_add_f32 v{AK_+r}, 1.0, v{AK_+r}\nv_rcp_f32 v{AK_+r}, v{AK_+r}")
        a(f"""
s_mov_b32 exec_lo, 0x00400040
s_mov_b32 exec_hi, 0x00400040
ds_write_b128 v38, {vr(AK_,4)}
s_branch {done}
{kpath}:
s_lshl_b32 s91, s91, 4
v_add_u32 v37, s91, v14
v_lshlrev_b32 v36, 5, v37
v_lshlrev_b32 v37, 2, v37
v_lshl_add_u32 v38, v14, 2, s99
s_lshl_b32 s88, s90, 10
s_lshl_b32 s73, {sJ}, 3
s_add_u32 s88, s88, s73
s_add_u32 s88, s88, {WS_K16}
s_lshl_b32 s90, s90, 7
s_add_u32 s90, s90, {WS_KX}
s_cmp_lg_u32 {sJ}, 3
s_cmov_b32 s90, {OOB}
s_mov_b32 s91, {QSCALE_BITS:#x}
""")
        land()
        kv_gemm(False)
        a(f"""
v_mul_f32 v39, s92, v{AK_+2}
v_mul_f32 v{AK_}, s91, v{AK_}
v_mul_f32 v{AK_+1}, s91, v{AK_+1}
v_mul_f32 v{AK_+2}, s91, v{AK_+2}
v_mul_f32 v{AK_+3}, s91, v{AK_+3}
v_cvt_pk_bf16_f32 v22, v{AK_}, v{AK_+1}
v_cvt_pk_bf16_f32 v23, v{AK_+2}, v{AK_+3}
s_mov_b64 exec, 0xffff
buffer_store_dwordx2 v[22:23], v36, {SWS}, s88 offen sc1
s_mov_b32 exec_lo, 0xffff0000
buffer_store_dword v22, v37, {SWS}, s90 offen sc1
v_exp_f32 v39, v39
s_nop 0
v_add_f32 v39, 1.0, v39
v_rcp_f32 v39, v39
s_nop 0
ds_write_b32 v38, v39
{done}:
s_mov_b64 exec, -1
""")
        self.stamp(7, 3)
        a(f"""
s_lshl_b32 s73, {sP}, 3
s_add_u32 s73, s73, {sJ}
s_lshl_b32 s73, s73, 4
s_add_u32 s91, s73, {WS_FKV}
v_bfe_u32 v22, v0, 2, 2
v_lshl_add_u32 v19, v18, 3, v22
v_lshlrev_b32 v19, 6, v19
v_bfe_u32 v22, v0, 4, 1
v_lshl_add_u32 v19, v22, 5, v19
v_and_b32 v22, 3, v0
v_lshl_add_u32 v19, v22, 3, v19
s_and_b32 s73, {sW}, 1
s_mul_i32 s73, s73, {L_WQ1 - L_WQ0}
s_add_u32 s73, s73, {L_WQ0}
v_add_u32 v19, s73, v19
s_lshr_b32 s73, {sW}, 1
s_lshl_b32 s73, s73, 5
v_add_u32 v21, s73, v17
v_mul_u32_u24 v13, {XP}, v21
v_lshl_add_u32 v13, v18, 4, v13
v_mul_u32_u24 v26, 48, v4
v_add_u32 v26, {L_QS + 36}, v26
v_lshrrev_b32 v22, 1, v21
v_xor_b32 v22, v22, v18
v_and_b32 v22, 7, v22
v_lshlrev_b32 v22, 4, v22
v_lshl_add_u32 v6, v21, 7, v22
v_add_u32 v6, {L_X2}, v6
v_xor_b32 v7, 32, v6
v_xor_b32 v8, 64, v6
v_xor_b32 v9, 0x60, v6
v_mul_u32_u24 v22, 48, v21
v_add_u32 v22, {L_QS}, v22
v_lshl_add_u32 v23, v18, 3, v22
v_mul_u32_u24 v24, 3044, v18
v_add_u32 v24, v24, v22
s_lshl_b32 s73, {sW}, 4
v_add_u32 v25, s73, v14
v_mul_u32_u24 v25, 48, v25
v_lshl_add_u32 v25, v15, 3, v25
v_add_u32 v25, {L_QS + 3*3072 + 20}, v25
v_mov_b32 v27, 0
v_lshlrev_b32 v28, 4, v0
s_lshl_b32 s93, {sW}, 10
s_add_u32 s93, s93, {WS_FKV}
""")
        self.kv_addr()
        nf = a.label("NF")
        a(f"s_waitcnt vmcnt(0)\ns_mov_b64 exec, 1\nds_add_rtn_u32 v1, v2, v3 offset:{CF}\ns_mov_b64 exec, -1\ns_waitcnt lgkmcnt(0)")
        a(f"v_readfirstlane_b32 s73, v1\ns_cmp_lg_u32 s73, 3\ns_cbranch_scc1 {nf}")
        self.set_flag("s91")
        a(f"{nf}:")
        self.stamp(3, 3)
        RX, AM, AXQ = 64, 232, 248
        def rdm(t):
            b = RG + 8 * (t % 4)
            a(f"ds_read_b64_tr_b16 {vr(b,2)}, v19 offset:{t*1024}\nds_read_b64_tr_b16 {vr(b+2,2)}, v19 offset:{t*1024+256}")
            a(f"ds_read_b128 {vr(b+4,4)}, v13 offset:{t*32}" if t < 32 else f"ds_read_b128 {vr(b+4,4)}, v{6+t-32}")
        def mm(t):
            b = RG + 8 * (t % 4)
            a(f"v_mfma_f32_32x32x16_bf16 {vr(AM,16)}, {vr(b,4)}, {vr(b+4,4)}, {'0' if t == 0 else vr(AM,16)}")
        def stage(t0, t1):
            for t in range(t0, min(t0 + 3, t1)):
                rdm(t)
            for t in range(t0, t1):
                if t + 3 < t1:
                    rdm(t + 3)
                a(f"s_waitcnt lgkmcnt({3 * (min(t + 4, t1) - t - 1)})")
                mm(t)
        self.wait(C0A, 2, sleep=0)
        self.stamp(4, 3)
        stage(0, 12)
        self.add1(CE)
        self.wait(C0B, 2, sleep=0)
        flags = f"buffer_load_dword v84, v28, {SWS}, s93 offen sc1"
        stage(12, 20)
        self.wait(C0D, 2, sleep=0)
        stage(20, 28)
        self.wait(C0C, 2, sleep=0)
        self.stamp(9, 3)
        a(flags)
        seq = []
        xs = list(range(18))
        for t in range(28, 36):
            seq.append(("m", t))
            for _ in range(3 if t < 30 else 2):
                seq.append(("x", xs.pop(0)))
        assert not xs
        cost = lambda it: 3 if it[0] == "m" else 2
        def issue(it):
            if it[0] == "m": rdm(it[1])
            else: wrd("v16", "v12", it[1], RX + 4 * (it[1] % 3))
        AH = 3
        for it in seq[:AH]:
            issue(it)
        a(f"ds_read_b32 v31, v2 offset:{CE}")
        for i, it in enumerate(seq):
            ahead = sum(cost(x) for x in seq[i + 1:i + AH]) + (1 if i < AH else 0)
            a(f"s_waitcnt lgkmcnt({ahead})")
            if it[0] == "m":
                mm(it[1])
            else:
                T = it[1]
                a(f"v_mfma_f32_16x16x32_bf16 {vr(AXQ,4)}, {vr(RX+4*(T%3),4)}, {vr(XF+4*T,4)}, {'0' if T == 0 else vr(AXQ,4)}")
            if i + AH < len(seq):
                issue(seq[i + AH])
        self.stamp(8, 3)
        miss = a.label("KM")
        a("s_waitcnt vmcnt(0)")
        self.cmp_regs([84], sTAG)
        a(f"s_cselect_b32 s89, 1, 0\ns_cbranch_scc0 {miss}")
        self.kv_loads()
        a(f"{miss}:")
        self.stamp(11, 3)
        ok = a.label("CEOK")
        a(f"v_readfirstlane_b32 s73, v31\ns_cmp_ge_u32 s73, 4\ns_cbranch_scc1 {ok}")
        self.wait(CE, 4, sleep=0)
        a(f"{ok}:")
        a(f"ds_write_b32 v26, v27\nv_cvt_pk_bf16_f32 v{AXQ}, v{AXQ}, v{AXQ+1}\nv_cvt_pk_bf16_f32 v{AXQ+1}, v{AXQ+2}, v{AXQ+3}")
        a(f"s_mov_b32 exec_hi, 0\nds_write2_b32 v25, v{AXQ}, v{AXQ+1} offset0:0 offset1:1\ns_mov_b64 exec, -1")
        m1 = a.label("QM1"); md = a.label("QMD")
        a(f"s_bitcmp1_b32 {sW}, 0\ns_cbranch_scc1 {m1}")
        off = lambda c: (c // 18) * 3072 + (c % 18) * 2
        for m in range(2):
            if m == 1:
                a(f"s_branch {md}\n{m1}:")
            for k in range(8):
                c0 = 32 * m + 8 * (k // 2) + 2 * (k % 2)
                d = off(c0 + 4) - off(c0)
                assert d in (8, 3044)
                a(f"v_cvt_pk_bf16_f32 v{AM+k}, v{AM+2*k}, v{AM+2*k+1}")
                a(f"ds_write_b32 {'v23' if d == 8 else 'v24'}, v{AM+k} offset:{off(c0)}")
        a(f"{md}:")
        self.add1(C1)
        have = a.label("KH")
        a(f"s_cmp_eq_u32 s89, 1\ns_cbranch_scc1 {have}")
        self.poll(flags, [84], sleep=12)
        self.kv_loads()
        a(f"{have}:")
        self.stamp(10, 3); self.stamp(10)
        a(f"s_setprio 2\ns_mov_b32 s99, {OOB}\nv_mov_b32 v232, v2")

    def panel_setup(self, nw, va=14):
        self.a(f"""
v_lshrrev_b32 v{va}, 2, v0
v_mul_u32_u24 v{va}, 1152, v{va}
v_and_b32 v{va+1}, 3, v0
v_lshl_add_u32 v{va}, v{va+1}, 4, v{va}
v_mul_u32_u24 v{va+1}, 1152, v0
s_and_b32 s73, {sW}, {nw-1}
s_mul_i32 s84, s73, {16*1152}
s_add_u32 s84, s84, s95
s_lshl_b32 s85, s73, 10
""")

    def panel_loads(self, srd, l0, l1, lx, padded, end, nw, va=14, rotate=False):
        a = self.a
        lp = a.label("PNL")
        if rotate:
            a(f"s_lshr_b32 s73, {sP}, 3\ns_mul_i32 s82, s73, {8*1024}\ns_add_u32 s85, s85, s82\ns_mul_i32 s82, s73, {8*16*1152}\ns_add_u32 s84, s84, s82\ns_mov_b32 s88, {end//nw - 1}")
        a(f"""
{lp}:
s_add_u32 m0, s85, {l0}
s_add_u32 s83, s84, 128
buffer_load_dwordx4 v{va}, {srd}, s84 offen lds
s_add_u32 m0, s85, {l1 - 64}
s_lshr_b32 s82, s85, 2
buffer_load_dwordx4 v{va}, {srd}, s84 offen offset:64 lds
""")
        if padded:
            a("s_lshr_b32 s73, s85, 13\ns_lshl_b32 s73, s73, 7\ns_add_u32 s82, s82, s73")
        a(f"""
s_add_u32 m0, s82, {lx}
s_mov_b64 exec, 0xffff
buffer_load_dwordx4 v{va+1}, {srd}, s83 offen lds
s_mov_b64 exec, -1
s_add_u32 s85, s85, {1024*nw}
s_add_u32 s84, s84, {16*nw*1152}
s_cmp_lt_u32 s85, {1024*end}
""")
        if rotate:
            a(f"s_cselect_b32 s82, 0, {1024*end}\ns_cselect_b32 s83, 0, {16*1152*end}\ns_sub_u32 s85, s85, s82\ns_sub_u32 s84, s84, s83\ns_sub_u32 s88, s88, 1\ns_cbranch_scc0 {lp}")
        else:
            a(f"s_cbranch_scc1 {lp}")

    def l_front(self):
        a = self.a
        a(f"""
s_load_dword {sTAG}, s[26:27], {WS_EPOCH}
v_lshl_add_u32 v5, v0, 2, v2
v_mov_b32 v6, 0
ds_write_b32 v5, v6 offset:2048
v_lshlrev_b32 v5, 3, v4
v_add_u32 v5, {L_CT - 2048}, v5
v_mov_b32 v7, 0
ds_write_b64 v5, v[6:7]
s_sub_u32 s99, {sW}, 4
v_and_b32 v18, 31, v0
v_lshrrev_b32 v19, 5, v0
s_lshl_b32 s89, s99, 3
s_add_u32 s89, s89, {sJ}
s_cmp_ge_u32 s89, 18
s_cselect_b32 s89, 99, s89
v_bfe_u32 v20, v0, 2, 1
v_lshlrev_b32 v20, 4, v20
v_bfe_u32 v21, v0, 3, 2
v_lshl_add_u32 v20, v21, 2, v20
v_and_b32 v21, 3, v0
v_add_u32 v20, v20, v21
""")
        self.srd(SWS, 26, WS_SIZE)
        self.srd(SWQ, 12, 663552)
        FPRE = self.opt("fpre", 8)
        def fsetup():
            a(f"""
s_lshl_b32 s73, s89, 5
v_add_u32 v44, s73, v18
v_lshrrev_b32 v45, 1, v44
v_and_b32 v46, 1, v44
v_cmp_eq_u32 vcc, 1, v44
v_mov_b32 v47, 288
v_cndmask_b32 v45, v45, v47, vcc
v_cndmask_b32 v46, v46, 0, vcc
v_and_b32 v47, 1, v45
v_lshlrev_b32 v47, 31, v47
v_or_b32 v17, 1.0, v47
v_cvt_f32_u32 v45, v45
v_cvt_f32_u32 v46, v46
v_mul_f32 v45, {f32bits(1/576):#x}, v45
v_mul_f32 v46, 0x3e800000, v46
v_lshlrev_b32 v47, 3, v19
v_cvt_f32_u32 v47, v47
v_fma_f32 v46, v47, v45, v46
v_mul_f32 v55, 0x41800000, v45
""")
            for jj in range(8):
                a(f"s_mov_b32 s73, {f32bits(jj):#x}\nv_fma_f32 v{56+jj}, s73, v45, v46")
        def fgen(t):
            if t:
                a(f"s_mov_b32 s73, {f32bits(t):#x}")
            for jj in range(8):
                if t:
                    a(f"v_fma_f32 v{64+jj}, s73, v55, v{56+jj}\nv_cos_f32 v{64+jj}, v{64+jj}")
                else:
                    a(f"v_cos_f32 v{64+jj}, v{56+jj}")
            for k in range(4):
                a(f"v_cvt_pk_bf16_f32 v{104+4*t+k}, v{64+2*k}, v{65+2*k}")
        npre = a.label("NPRE"); n7 = a.label("NW7")
        a(f"v_mov_b32 v23, 0\ns_mov_b32 s98, {OOB}")
        if "wearly" in self.opts:
            a(f"s_cmp_lg_u32 {sW}, 7\ns_cbranch_scc1 {n7}")
            self.wt_loads()
        a(f"{n7}:\ns_cmp_eq_u32 s89, 99\ns_cbranch_scc1 {npre}")
        fsetup()
        for t in range(FPRE):
            fgen(t)
        a(f"{npre}:\ns_waitcnt lgkmcnt(0)")
        self.tag()
        a("s_barrier")
        wqd = a.label("WQD")
        a(f"s_cmp_lt_u32 {sW}, 6\ns_cbranch_scc1 {wqd}")
        self.panel_setup(2)
        self.panel_loads(SWQ, L_WQ0, L_WQ1, L_P2Q, True, 20, 2)
        a("s_waitcnt vmcnt(12)")
        self.add1(C0A)
        self.panel_loads(SWQ, L_WQ0, L_WQ1, L_P2Q, True, 26, 2)
        self.wait(CK, 4, sleep=0)
        self.panel_loads(SWQ, L_WQ0, L_WQ1, L_P2Q, True, 36, 2)
        self.stamp(6, 3)
        a("s_waitcnt vmcnt(24)")
        self.add1(C0B)
        a("s_waitcnt vmcnt(12)")
        self.add1(C0D)
        if "wmid" in self.opts:
            n7 = a.label("NM7"); d7 = a.label("DM7")
            a(f"s_cmp_lg_u32 {sW}, 7\ns_cbranch_scc1 {n7}")
            self.wt_loads()
            a(f"s_waitcnt vmcnt(16)\ns_branch {d7}\n{n7}:\ns_waitcnt vmcnt(0)\n{d7}:")
        else:
            a("s_waitcnt vmcnt(0)")
        self.add1(C0C)
        self.stamp(1, 3)
        a(f"{wqd}:")
        nod = a.label("NOD")
        a(f"s_cmp_eq_u32 s89, 99\ns_cbranch_scc1 {nod}")
        for t in range(FPRE, 18):
            fgen(t)
        self.stamp(9, 3)
        a(f"""
v_mul_u32_u24 v25, {XP}, v20
v_lshl_add_u32 v25, v19, 4, v25
v_lshrrev_b32 v22, 1, v20
v_xor_b32 v22, v22, v19
v_and_b32 v22, 7, v22
v_lshlrev_b32 v22, 4, v22
v_lshl_add_u32 v6, v20, 7, v22
v_add_u32 v6, {L_X2}, v6
v_xor_b32 v7, 32, v6
v_xor_b32 v8, 64, v6
v_xor_b32 v9, 0x60, v6
v_lshlrev_b32 v22, 12, v18
v_lshl_add_u32 v22, v19, 5, v22
s_lshl_b32 s90, s89, 17
s_lshl_b32 s73, {sP}, 7
s_add_u32 s90, s90, s73
s_add_u32 s90, s90, {WS_T}
""")
        RG = 44
        def frag(t, n, q):
            return vr(RG + 16 * (t % 3) + 8 * n + 4 * q, 4)
        def rd(t):
            for n in range(2):
                for q in range(2):
                    ks = t + 18 * q
                    if ks < 32:
                        a(f"ds_read_b128 {frag(t,n,q)}, v25 offset:{n*32*XP + ks*32}")
                    else:
                        a(f"ds_read_b128 {frag(t,n,q)}, v{6+ks-32} offset:{n*4096}")
        def dft(t0, t1):
            for t in range(t0, min(t0 + 2, t1)):
                rd(t)
            for t in range(t0, t1):
                if t + 2 < t1:
                    rd(t + 2)
                a(f"s_waitcnt lgkmcnt({4 * (min(t+3, t1) - t - 1)})")
                for n in range(2):
                    for q in range(2):
                        acc = vr(176 + 32 * n + 16 * q, 16)
                        a(f"v_mfma_f32_32x32x16_bf16 {acc}, {frag(t,n,q)}, {vr(104+4*t,4)}, {'0' if t == 0 else acc}")
        DPRE = self.opt("dpre", 10)
        if DPRE:
            self.wait(CK, 4)
            dft(0, DPRE)
        a("s_setprio 3")
        self.wait(C1, 4)
        self.stamp(3, 3)
        dft(DPRE, 18)
        self.stamp(8, 3)
        self.wait(CV, 4, sleep=2)
        for n in range(2):
            b = 176 + 32 * n
            for r in range(16):
                a(f"v_fma_f32 v{b+r}, v17, v{b+16+r}, v{b+r}")
            for k in range(8):
                a(f"v_cvt_pk_bf16_f32 v{b+k}, v{b+2*k}, v{b+2*k+1}")
            a(f"buffer_store_dwordx4 {vr(b,4)}, v22, {SWS}, s90 offen offset:{64*n} sc1")
            a(f"buffer_store_dwordx4 {vr(b+4,4)}, v22, {SWS}, s90 offen offset:{64*n+16} sc1")
        a(f"{nod}:")
        n6 = a.label("N6"); n7 = a.label("N7")
        a(f"s_cmp_eq_u32 {sW}, 7\ns_cbranch_scc1 {n7}\ns_cmp_lg_u32 {sW}, 6\ns_cbranch_scc1 {n6}\ns_setprio 3")
        self.wait(CV, 4, sleep=2)
        self.poison()
        a(f"{n6}:\ns_waitcnt vmcnt(0)")
        self.add1(CD)
        self.stamp(4, 3); self.stamp(4)
        a(f"s_cmp_eq_u32 {sW}, 6\ns_cbranch_scc1 {n7}")
        self.srd(SWO, 18, 663552)
        self.panel_setup(2)
        self.wait(CD, 3, sleep=2)
        if "wogate" in self.opts:
            self.wait(CR, 4, sleep=6, idle=True)
        a(f"s_setprio {self.opt('wop', 2)}")
        self.panel_loads(SWO, L_WO0, L_WO1, L_WOX, False, 36, 2, rotate=True)
        self.stamp(10)
        a("s_waitcnt vmcnt(0)")
        self.add1(S3)
        a(f"{n7}:")

    def g_gen(self):
        a = self.a
        N = 1.0 / (M.S * M.D)
        skip = a.label("GS"); nx = a.label("GNX"); nk = a.label("GNK")
        assert all((f * 1821) >> 16 == f // 36 for f in range(864))
        assert all((f * 21846) >> 16 == f // 3 for f in range(24))
        a(f"""
s_mov_b32 s99, {OOB}
s_cmp_ge_u32 s2, 216
s_cbranch_scc1 {skip}
s_lshl_b32 s90, s2, 2
s_lshl_b32 s99, s2, 12
s_add_u32 s99, s99, {WS_G}
s_mul_i32 s91, s90, 1821
s_lshr_b32 s91, s91, 16
s_mul_i32 s73, s91, 36
s_sub_u32 s92, s90, s73
s_mul_i32 s93, s91, 21846
s_lshr_b32 s93, s93, 16
s_mul_i32 s73, s93, 3
s_sub_u32 s91, s91, s73
s_mul_i32 s93, s93, 72
s_lshl_b32 s73, s91, 5
s_add_u32 s93, s93, s73
v_mov_b32 v44, v20
s_cmp_lg_u32 s91, 2
s_cbranch_scc1 {nx}
v_mov_b32 v44, v18
{nx}:
v_add_u32 v44, s93, v44
s_lshl_b32 s73, s92, 3
v_lshl_add_u32 v45, v19, 2, s73
v_mul_u32_u24 v45, v45, v44
v_mul_u32_u24 v47, 5, v44
s_mov_b32 s73, {f32bits(1/576):#x}
s_mov_b32 s93, {f32bits(2*N):#x}
""")
        for fr in range(4):
            for cq in range(4):
                a(f"v_cvt_f32_u32 v46, v45\nv_mul_f32 v46, s73, v46\nv_fract_f32 v46, v46")
                a(f"v_cos_f32 v{48+2*cq}, v46\nv_sin_f32 v{49+2*cq}, v46")
                a("v_add_u32 v45, v45, v44" if cq < 3 else "v_add_u32 v45, v45, v47")
            for cq in range(4):
                a(f"v_mul_f32 v{48+2*cq}, s93, v{48+2*cq}\nv_mul_f32 v{49+2*cq}, s93, -v{49+2*cq}")
            if fr == 0:
                a(f"""
s_cmp_lg_u32 s92, 0
s_cbranch_scc1 {nk}
s_mov_b32 exec_hi, 0
v_mov_b32 v48, {f32bits(N):#x}
v_lshlrev_b32 v49, 31, v44
v_or_b32 v49, v48, v49
s_mov_b64 exec, -1
{nk}:
""")
            for k in range(4):
                a(f"v_cvt_pk_bf16_f32 v{240+4*fr+k}, v{48+2*k}, v{49+2*k}")
        a(f"{skip}:")

    WB = 112

    def poison(self):
        a = self.a
        a(f"v_lshlrev_b32 v24, 4, v0\nv_mov_b32 v28, -1\nv_mov_b32 v29, -1\nv_mov_b32 v30, -1\nv_mov_b32 v31, -1")
        a(f"s_mul_i32 s90, {sP}, {8*9216}\ns_add_u32 s90, s90, {WS_OF}\ns_mul_i32 s91, {sJ}, 9216\ns_add_u32 s91, s91, s90\ns_add_u32 s91, s91, 8192")
        a(f"buffer_store_dwordx4 v[28:31], v24, {SWS}, s91 offen sc1\ns_lshl_b32 s73, {sJ}, 10\ns_add_u32 s90, s90, s73")
        for i in range(8):
            a(f"buffer_store_dwordx4 v[28:31], v24, {SWS}, s90 offen sc1\ns_add_u32 s90, s90, 9216")

    def wt_loads(self):
        a = self.a
        self.srd(SWR, 6, 2048 * 578)
        self.srd(SWI, 8, 2048 * 578)
        a(f"""
v_and_b32 v26, 7, v0
v_lshrrev_b32 v27, 3, v0
v_mul_u32_u24 v22, 578, v26
v_mad_u32_u24 v22, v27, 18, v22
s_lshr_b32 s93, s2, 6
s_bfe_u32 s92, s2, 0x20004
s_and_b32 s88, s2, 15
s_lshl_b32 s90, s88, 7
s_lshl_b32 s73, s92, 3
s_add_u32 s90, s90, s73
s_mul_i32 s90, s90, 578
s_mul_i32 s73, s93, 144
s_add_u32 s90, s90, s73
""")
        for jr in range(4):
            for ri, srd in enumerate((SWR, SWI)):
                b = self.WB + 24 * ri + 6 * jr
                a(f"buffer_load_dwordx4 {vr(b,4)}, v22, {srd}, s90 offen\nbuffer_load_dword v{b+4}, v22, {srd}, s90 offen offset:16")
            if jr < 3:
                a(f"s_add_u32 s90, s90, {32*578}")
        a(f"""
s_mov_b32 s73, {9*8192}
v_mul_lo_u32 v23, v27, s73
v_lshl_add_u32 v23, v26, 4, v23
s_mul_i32 s98, s93, {72*8192}
s_lshl_b32 s73, s88, 8
s_add_u32 s98, s98, s73
s_and_b32 s73, s92, 1
s_lshl_b32 s73, s73, 7
s_add_u32 s98, s98, s73
s_lshr_b32 s73, s92, 1
s_lshl_b32 s73, s73, 12
s_add_u32 s98, s98, s73
s_add_u32 s98, s98, {WS_WT}
""")

    def wt_stores(self):
        a = self.a
        last = a.label("WL")
        a("s_mov_b32 s92, 0x05040100\ns_mov_b32 s93, 0x07060302")
        for x in range(10):
            if x == 9:
                a(f"s_cmp_lt_u32 s2, 192\ns_cbranch_scc1 {last}\ns_mov_b32 exec_lo, 0\ns_mov_b32 exec_hi, 0xff000000")
            t = self.WB + 48 + 4 * (x % 3)
            for ri in range(2):
                for pr in range(2):
                    lo = self.WB + 24 * ri + 12 * pr + x // 2
                    a(f"v_perm_b32 v{t+2*ri+pr}, v{lo+6}, v{lo}, {'s93' if x % 2 else 's92'}")
            a(f"buffer_store_dwordx4 {vr(t,4)}, v23, {SWS}, s98 offen sc1\ns_add_u32 s98, s98, 8192")
        a(f"s_mov_b64 exec, -1\n{last}:")

    def s_flag(self):
        a = self.a
        self.g_gen()
        a("s_setprio 3\nv_lshlrev_b32 v24, 4, v0")
        self.wait(CV, 4, sleep=2)
        self.stamp(3, 3)
        if "wearly" not in self.opts and "wmid" not in self.opts:
            self.wt_loads()
        a("s_waitcnt vmcnt(0)")
        self.wt_stores()
        for fr in range(4):
            a(f"buffer_store_dwordx4 {vr(240+4*fr,4)}, v24, {SWS}, s99 offen offset:{1024*fr} sc1")
        self.stamp(10, 3)
        self.flag4("s91", "s2", WS_FS)
        a("s_waitcnt vmcnt(0)")
        self.stamp(11, 3)
        self.wait(CD, 3, sleep=2)
        self.set_flag("s91")
        self.add1(CW)
        self.stamp(6); self.stamp(2, 3)
        self.stage2_tables()

    def attention(self):
        a = self.a
        K0, KX0, V0, S0, O0, Q0, QX0 = self.AK, self.AKX, self.AV, self.AS, self.AO, self.AQ, self.AQX
        a(f"""
v_and_b32 v84, 31, v0
v_lshrrev_b32 v85, 5, v0
s_lshr_b32 s88, {sW}, 2
s_mul_i32 s73, s88, 6144
s_add_u32 s73, s73, {L_QS}
v_mul_u32_u24 v{self.vQ}, 48, v84
v_add_u32 v{self.vQ}, s73, v{self.vQ}
v_lshl_add_u32 v{self.vQX}, v85, 2, v{self.vQ}
v_add_u32 v{self.vQX}, 32, v{self.vQX}
v_lshl_add_u32 v{self.vQ}, v85, 4, v{self.vQ}
s_and_b32 s73, {sW}, 3
s_mul_i32 s73, s73, 2560
s_add_u32 s73, s73, {L_EX}
v_lshl_add_u32 v{self.vEX}, v0, 4, s73
s_add_u32 s73, s73, 2048
v_lshl_add_u32 v{self.vEX2}, v0, 3, s73
s_lshl_b32 s73, s88, 10
s_add_u32 s73, s73, {L_CT}
v_lshl_add_u32 v{self.vCT}, v0, 2, s73
s_mul_i32 s73, s88, {CN - C1}
v_add_u32 v86, s73, v2
v_mov_b32 v{QX0+1}, 0
v_mov_b32 v{QX0+2}, 0
""")
        self.wait(C1, 4, sleep=0)
        self.stamp(5); self.stamp(5, 3); self.stamp(1, 5)
        qmain = lambda q: f"ds_read_b128 {vr(Q0,4)}, v{self.vQ} offset:{1536*(q%4)}"
        qx = lambda q: f"ds_read_b32 v{QX0}, v{self.vQX} offset:{1536*(q%4)}\nds_read_b32 v{QX0+3}, v{self.vQX} offset:{1536*(q%4)}"
        a(qmain(0)); a(qx(0))
        issued = []
        for t in range(self.NFIRST):
            issued += [("K", t), ("X", t), ("V0", t), ("V1", t)]
        state = {"done": 0}
        def need(*keys):
            idx = max(issued.index(k) for k in keys) + 1
            if idx > state["done"]:
                state["done"] = idx
                return [f"s_waitcnt vmcnt({len(issued) - idx})"]
            return []
        def reload(kind, t):
            ins = self.ld_k(8 + t, t) if kind == "K" else self.ld_v(8 + t, t)
            issued.extend([("K", 8 + t), ("X", 8 + t)] if kind == "K" else [("V0", 8 + t), ("V1", 8 + t)])
            return list(ins)
        sreg = lambda g: S0 + 16 * (g % 2)
        oreg = lambda ps: O0 + 10 * (ps % 4)
        def qk16(g):
            return f"v_mfma_f32_32x32x16_bf16 {vr(sreg(g),16)}, {vr(K0+4*(g%8),4)}, {vr(Q0,4)}, 0"
        def qkx(g):
            return f"v_mfma_f32_32x32x8_bf16 {vr(sreg(g),16)}, {vr(KX0+2*((g%8)//2),2)}, {vr(QX0+2*(g%2),2)}, {vr(sreg(g),16)}"
        def pv(g, u):
            o = vr(oreg(g // 8), 16)
            c = "0" if (g // 8 < 4 and g % 8 == 0 and u == 0) else o
            return f"v_mfma_f32_32x32x16_bf16 {o}, {vr(V0+8*(g%8)+4*u,4)}, {vr(sreg(g)+4*u,4)}, {c}"
        kt = lambda g: (g % 8) + (8 if g >= 32 else 0)
        def kneed(g):
            t = kt(g)
            return need(("K", t), ("X", t), ("X", t ^ 1)) if ("X", t ^ 1) in issued else need(("K", t), ("X", t))
        def export(q):
            o = O0 + 10 * q
            return [f"ds_write_b128 v{self.vEX}, {vr(o,4)} offset:{10240*q}", f"ds_write_b128 v{self.vEX}, {vr(o+4,4)} offset:{10240*q+1024}",
                    f"ds_write_b64 v{self.vEX2}, {vr(o+8,2)} offset:{10240*q}",
                    f"ds_add_u32 v{self.vCT}, v3 offset:{256*q}"]
        for x in kneed(0) + ["s_waitcnt lgkmcnt(0)", qk16(0), qkx(0)]:
            a(x)
        for g in range(64):
            ps, t = divmod(g, 8)
            s = sreg(g)
            e = lambda i: f"v_exp_f32 v{s+i}, v{s+i}"
            c = lambda k: f"v_cvt_pk_bf16_f32 v{s+k}, v{s+2*k}, v{s+2*k+1}"
            seq = [e(0), e(1)]
            if 32 <= g < 39:
                seq += need(("V1", kt(g)))
            if g > 0:
                seq += need(("V1", kt(g - 1))) + [pv(g - 1, 1)]
                if g - 1 in range(24, 32):
                    seq += reload("V", (g - 1) % 8)
            seq += [e(2), e(3), c(0), e(4), c(1)]
            last = g == 63
            if not last:
                seq += kneed(g + 1) + (["s_waitcnt lgkmcnt(0)"] if t == 7 else []) + [qk16(g + 1)]
                if t == 6 and ps < 7:
                    seq.append(qmain(ps + 1))
            seq += [e(5), e(6), e(7), c(2), e(8), c(3)]
            if not last:
                seq.append(qkx(g + 1))
                if t == 6 and ps < 7:
                    seq.append(qx(ps + 1))
                if g + 1 in range(24, 32):
                    seq += reload("K", (g + 1) % 8)
            if g + self.NFIRST < 8:
                issued.extend([(k, g + self.NFIRST) for k in ("K", "X", "V0", "V1")])
            tail = [e(9), e(10), e(11), c(4), e(12), c(5)] + need(("V0", kt(g))) + [pv(g, 0), e(13), e(14), e(15), c(6), c(7)]
            if g + self.NFIRST < 8:
                tn = g + self.NFIRST
                ins = list(self.ld_k(tn, tn) + self.ld_v(tn, tn))
                for k, i in enumerate((9, 10, 11, 12)):
                    tail.insert(tail.index(e(i)) + 1, ins[k])
                if tn == 7:
                    tail.append(f"s_mov_b64 exec, 1\nds_add_u32 v2, v3 offset:{CV}\ns_mov_b64 exec, -1")
            if ps >= 5 and t == 0:
                ex = export(ps - 5)
                for k, i in enumerate((9, 10, 11, 12)):
                    tail.insert(tail.index(e(i)) + 1, ex[k])
            if g == 1:
                nf = a.label("NYF")
                tail.append(f"s_cmp_eq_u32 s99, {OOB}\ns_cbranch_scc1 {nf}\ns_waitcnt vmcnt(8)\ns_mov_b64 exec, 1\nds_add_rtn_u32 v233, v232, v3 offset:{YA}\n"
                            f"v_mov_b32 v1, {sTAG}\ns_waitcnt lgkmcnt(0)\nv_readfirstlane_b32 s73, v233\ns_cmp_lg_u32 s73, 1\ns_cmov_b32 s99, {OOB}\n"
                            f"buffer_store_dword v1, off, {SWS}, s99 sc1\ns_mov_b64 exec, -1\ns_setprio 1\n{nf}:")
            if g == 22:
                tail.append("s_setprio 3")
            if g == 32 and "wogate" in self.opts:
                tail.append(f"s_mov_b64 exec, 1\nds_add_u32 v2, v3 offset:{CR}\ns_mov_b64 exec, -1")
            if g == 32:
                lo = a.label("PLO")
                tail.append(f"s_setprio 1\ns_cmp_ge_u32 {sW}, 4\ns_cbranch_scc1 {lo}\ns_setprio 2\n{lo}:")
            if g == 36:
                tail.append(f"ds_read_b32 v87, v86 offset:{C1}")
            if g == 38:
                ok = a.label("CNOK")
                tail.append(f"s_waitcnt lgkmcnt(0)\nv_readfirstlane_b32 s73, v87\ns_cmp_ge_u32 s73, 4\ns_cbranch_scc1 {ok}")
                tail.append(("wait", ok))
            for x in seq + tail:
                if isinstance(x, tuple):
                    self.wait(C1, 4, sleep=2, base="v86")
                    a(f"{x[1]}:")
                else:
                    a(x)
            if g == 7:
                self.stamp(11)
            if t == 7:
                self.stamp(2 + ps, 5)
        a(pv(63, 1))
        self.norm_setup(1)
        ex = export(3)
        for x in ex[:3]:
            a(x)
        a(f"ds_add_rtn_u32 v1, v{self.vCT}, v3 offset:768")

    T64, T32A, TW1, TW2, T32B, NTAB = 0, 24, 27, 35, 43, 49
    NPRE = 35

    def make_tables(self):
        L = np.arange(64); Lm = (L & 15)[:, None]; Lg = (L >> 4)[:, None]
        jj = np.arange(8)[None, :]; r = np.arange(4)[None, :]
        def pk(v):
            b = M.bf(v.astype(np.float32)).astype(np.uint32)
            return (b[:, 0::2] | (b[:, 1::2] << 16)).astype(np.uint32)
        parts = lambda z: (z.real, z.imag, -z.imag)
        w = lambda n, x, y: np.exp(-2j * np.pi * ((x * y) % n) / n)
        f32 = lambda v: v.astype(np.float32).view(np.uint32)
        out = []
        for H in range(2):
            for k in range(3):
                for t in range(4):
                    for ks in range(2):
                        out.append(pk(parts(w(64, 16 * (t ^ (2 * H)) + Lm, 32 * (ks ^ H) + 16 * (jj >> 2) + 4 * Lg + (jj & 3)))[k]))
            for k in range(3):
                out.append(pk(parts(w(32, 8 * Lg + jj, 16 * H + Lm))[k]))
            for t in range(4):
                z = w(2048, 16 * (t ^ (2 * H)) + 4 * Lg + r, 16 * H + Lm)
                out += [f32(z.real), f32(z.imag)]
            for t in range(4):
                z = np.conj(w(2048, 16 * (t ^ (2 * H)) + Lm, 16 * H + 4 * Lg + r))
                out += [f32(z.real), f32(z.imag)]
            for k in range(3):
                for at in range(2):
                    out.append(pk(parts(w(32, 8 * (Lm >> 2) + 4 * at + (Lm & 3), 16 * (H ^ (jj >> 2)) + 4 * Lg + (jj & 3)))[k]))
        return np.concatenate([o.reshape(-1) for o in out])

    def tload(self, frag, dst):
        if self.tgroup != frag // 4:
            self.tgroup = frag // 4
            self.a(f"s_add_u32 s88, s87, {(frag // 4) * 4096}")
        self.a(f"buffer_load_dwordx4 {vr(dst,4)}, v5, {STB}, s88 offen offset:{(frag % 4) * 1024}")

    def stage2_tables(self):
        a = self.a
        a(f"""
s_getpc_b64 s[64:65]
s_add_u32 s64, s64, spectral_tables@rel32@lo+4
s_addc_u32 s65, s65, spectral_tables@rel32@hi+12
s_mov_b32 s66, {2*self.NTAB*1024}
s_mov_b32 s67, 0x20000
v_lshlrev_b32 v5, 4, v0
s_and_b32 s86, {sW}, 1
s_mul_i32 s87, s86, {self.NTAB*1024}
""")
        self.tgroup = None
        for f in range(24):
            self.tload(self.T64 + f, 80 + 4 * f)
        for f in range(3):
            self.tload(self.T32A + f, 240 + 4 * f)
        for f in range(8):
            self.tload(self.TW1 + f, 16 + 4 * f)

    def stage2(self):
        a = self.a
        A, P, Q, TW, WW, PK, TMP = 80, 48, 176, 16, 208, 240, 8
        self.tgroup = None
        a(f"""
v_and_b32 v6, 15, v0
v_lshlrev_b32 v6, 6, v6
v_lshrrev_b32 v7, 4, v0
v_lshl_add_u32 v6, v7, 4, v6
s_lshl_b32 s90, s89, 13
s_add_u32 s91, s90, 4096
s_cmp_eq_u32 s89, 288
s_cmov_b32 s90, 4096
s_cmov_b32 s91, {OOB}
s_cmp_eq_u32 s89, 0
s_cmov_b32 s91, {OOB}
s_lshl_b32 s73, s86, 11
s_add_u32 s90, s90, s73
s_add_u32 s91, s91, s73
s_lshl_b32 s85, s86, 12
s_sub_u32 s85, 2048, s85
s_lshr_b32 s73, {sW}, 1
s_and_b32 s73, s73, 1
s_xor_b32 s73, s73, 1
s_lshl_b32 s99, s73, 2
s_lshl_b32 s73, s73, 12
s_lshl_b32 s84, s86, 11
s_add_u32 s73, s73, s84
s_add_u32 s73, s73, {L_XCH}
v_add_u32 v7, s73, v5
s_sub_u32 s73, s73, s84
s_xor_b32 s84, s84, 0x800
s_add_u32 s84, s84, s73
""")
        cl = a.label("GC"); cg = a.label("CG"); ot = a.label("GO"); dn = a.label("GD")
        a(f"s_cmp_lg_u32 {sW}, 7\ns_cbranch_scc1 {ot}\ns_lshr_b32 s73, s2, 3\ns_cmp_lg_u32 s73, 16\ns_cbranch_scc1 {cl}")
        a(f"v_lshlrev_b32 v8, 7, v0\ns_mov_b32 s92, {WS_FS}\ns_sleep {self.opt('dw', 8)}")
        self.poll(f"buffer_load_dwordx4 v[12:15], v8, {SWS}, s92 offen sc1", [12, 13, 14, 15], sleep=4)
        a(f"s_and_b32 s92, s2, 7\ns_lshl_b32 s92, s92, 7\ns_add_u32 s92, s92, {WS_GOS}")
        self.set_flag("s92")
        a(f"s_branch {cg}\n{cl}:\ns_sleep {self.opt('d2', 32)}")
        self.go_wait(WS_GOS, 252, 8)
        a(f"{cg}:")
        self.add1(CG)
        a(f"s_branch {dn}\n{ot}:")
        self.wait(CG, 1, sleep=2, idle=True)
        a(f"s_waitcnt vmcnt(0)\n{dn}:")
        self.stamp(7)
        self.stamp(1, 2)
        a(f"s_add_u32 s92, s90, {WS_T}\ns_add_u32 s93, s91, {WS_T}\ns_add_u32 s82, s92, s85\ns_add_u32 s83, s93, s85")
        for t in range(4):
            for ri in range(2):
                so = (("s92", "s93"), ("s82", "s83"))[t >> 1][ri]
                a(f"buffer_load_dwordx4 {vr(WW+8*t+4*ri,4)}, v6, {SWS}, {so} offen offset:{1024*(t&1)} sc1")
        mf = lambda acc, x, y, first: a(f"v_mfma_f32_16x16x32_bf16 {vr(acc,4)}, {vr(x,4)}, {vr(y,4)}, {'0' if first else vr(acc,4)}")
        re = lambda base, t: base + 8 * t
        im = lambda base, t: base + 8 * t + 4
        for t in range(4):
            a(f"s_waitcnt vmcnt({6 - 2*t})")
            if t == 0: self.stamp(2, 2)
            mf(re(P, t), re(WW, t), PK, True); mf(im(P, t), re(WW, t), PK + 4, True)
            mf(re(P, t), im(WW, t), PK + 8, False); mf(im(P, t), im(WW, t), PK, False)
        a(f"s_lshl_b32 s92, s89, 13\ns_lshl_b32 s73, s86, 12\ns_add_u32 s92, s92, s73\ns_lshl_b32 s73, s86, 11\ns_add_u32 s92, s92, s73\ns_add_u32 s92, s92, {WS_WT}")
        a("s_add_u32 s82, s92, s85")
        for t in range(4):
            a(f"buffer_load_dwordx4 {vr(WW+8*t+4,4)}, v5, {SWS}, {('s92', 's82')[t >> 1]} offen offset:{1024*(t&1)} sc1")
        def cmul(x, c, dst):
            for t in range(4):
                ops = []
                for h in range(2):
                    t0, t1 = TMP + 4 * h, TMP + 4 * h + 2
                    xr, xi, cr, ci = re(x, t) + 2 * h, im(x, t) + 2 * h, re(c, t) + 2 * h, im(c, t) + 2 * h
                    ops.append([f"v_pk_mul_f32 {vr(t0,2)}, {vr(xr,2)}, {vr(cr,2)}",
                                f"v_pk_mul_f32 {vr(t1,2)}, {vr(xr,2)}, {vr(ci,2)}",
                                f"v_pk_fma_f32 {vr(t0,2)}, {vr(xi,2)}, {vr(ci,2)}, {vr(t0,2)} neg_lo:[1,0,0] neg_hi:[1,0,0]",
                                f"v_pk_fma_f32 {vr(t1,2)}, {vr(xi,2)}, {vr(cr,2)}, {vr(t1,2)}",
                                f"v_cvt_pk_bf16_f32 v{dst(t,0)+h}, v{t0}, v{t0+1}",
                                f"v_cvt_pk_bf16_f32 v{dst(t,1)+h}, v{t1}, v{t1+1}"])
                for j in range(0, 6, 2):
                    for o in ops:
                        a(o[j]); a(o[j + 1])
        pkd = lambda t, part: PK + 8 * part + 2 * t
        ks_ = lambda part, ks: PK + 8 * part + 4 * ks
        t64 = lambda k, t, ks: A + 32 * k + 8 * t + 4 * ks
        self.stamp(3, 2)
        cmul(P, TW, pkd)
        self.stamp(4, 2)
        for f in range(8):
            self.tload(self.TW2 + f, TW + 4 * f)
        for t in range(4):
            for ks in range(2):
                mf(re(Q, t), t64(0, t, ks), ks_(0, ks), ks == 0); mf(im(Q, t), t64(1, t, ks), ks_(0, ks), ks == 0)
            for ks in range(2):
                mf(re(Q, t), t64(2, t, ks), ks_(1, ks), False); mf(im(Q, t), t64(0, t, ks), ks_(1, ks), False)
        self.stamp(5, 2)
        a("s_waitcnt vmcnt(8)")
        for t in range(4):
            b = WW + 8 * t
            for k in range(4):
                a(f"v_lshlrev_b32 v{b+2*k}, 16, v{b+4+k}\nv_and_b32 v{b+2*k+1}, 0xffff0000, v{b+4+k}" if k < 2 else "")
            a(f"v_and_b32 v{b+5}, 0xffff0000, v{b+6}\nv_lshlrev_b32 v{b+4}, 16, v{b+6}\nv_lshlrev_b32 v{b+6}, 16, v{b+7}\nv_and_b32 v{b+7}, 0xffff0000, v{b+7}")
        cmul(Q, WW, pkd)
        self.stamp(6, 2)
        for f in range(6):
            self.tload(self.T32B + f, WW + 4 * f)
        for t in (2, 3, 0, 1):
            for ks in range(2):
                mf(re(P, t), ks_(0, ks), t64(0, t, ks), ks == 0); mf(im(P, t), ks_(1, ks), t64(0, t, ks), ks == 0)
            for ks in range(2):
                mf(re(P, t), ks_(1, ks), t64(1, t, ks), False); mf(im(P, t), ks_(0, ks), t64(2, t, ks), False)
        self.stamp(7, 2)
        a("v_add_u32 v232, s99, v2")
        self.kv_addr()
        self.kv_loads()
        a(f"s_waitcnt vmcnt({6 + 4 * self.NFIRST})")
        cmul(P, TW, lambda t, part: (PK + 8 * t + 4 * part) if t < 2 else (Q + 4 * (t - 2) + 2 * part))
        a(f"ds_write_b128 v7, {vr(Q,4)}\nds_write_b128 v7, {vr(Q+4,4)} offset:1024")
        self.add1(XA, base="v232")
        a("v_add_u32 v7, s84, v5")
        self.wait(XA, 2, sleep=0, base="v232")
        for t in range(2):
            for part in range(2):
                a(f"ds_read_b64 {vr(PK+8*t+4*part+2,2)}, v7 offset:{1024*t+8*part}")
        self.stamp(8, 2)
        a(f"s_waitcnt vmcnt({4 * self.NFIRST}) lgkmcnt(0)")
        t32 = lambda k, at: WW + 8 * k + 4 * at
        out = lambda t, part, at: Q + 16 * t + 8 * part + 4 * at
        for t in range(2):
            for at in range(2):
                mf(out(t, 0, at), t32(0, at), PK + 8 * t, True); mf(out(t, 1, at), t32(0, at), PK + 8 * t + 4, True)
            for at in range(2):
                mf(out(t, 0, at), t32(1, at), PK + 8 * t + 4, False); mf(out(t, 1, at), t32(2, at), PK + 8 * t, False)
        a(f"s_add_u32 s92, s90, {WS_Y}\ns_add_u32 s93, s91, {WS_Y}")
        for t in range(2):
            for part in range(2):
                b = out(t, part, 0); d = 48 + 8 * t + 4 * part
                for k in range(4):
                    a(f"v_cvt_pk_bf16_f32 v{d+k}, v{b+2*k}, v{b+2*k+1}")
                a(f"buffer_store_dwordx4 {vr(d,4)}, v6, {SWS}, {'s93' if part else 's92'} offen offset:{1024*t} sc1")
        self.stamp(9, 2)
        self.flag4("s99", "s89", WS_FY)

    def l_mid(self):
        a = self.a
        go = a.label("S2"); no = a.label("NS2"); n7 = a.label("N7"); kv = a.label("LKV"); tb = a.label("TB"); nw = a.label("NW")
        a(f"s_mov_b32 s89, s2\ns_cmp_lg_u32 {sW}, 7\ns_cbranch_scc1 {n7}")
        self.s_flag()
        a(f"s_mov_b32 s89, s2\ns_branch {go}\n{n7}:")
        self.wait(CW, 1, sleep=4, idle=True)
        a(f"s_cmp_eq_u32 {sW}, 6\ns_cbranch_scc1 {tb}")
        a(f"""
s_add_u32 s89, s2, 192
s_sub_u32 s73, s2, 64
s_cmp_gt_u32 s73, 32
s_cbranch_scc1 {nw}
{tb}:
""")
        self.stage2_tables()
        a(f"{go}:")
        self.stage2()
        a(f"s_branch {kv}\n{nw}:")
        a(f"{no}:\ns_mov_b32 s99, {OOB}")
        self.kv_addr()
        self.kv_loads()
        a(f"s_setprio 1\n{kv}:")
        self.stamp(9)

    NT = 192

    def tail(self, mm, n):
        a = self.a
        ACC, ACX = 16, 32
        WF = 48
        NT = self.NT
        w = 2 * mm + n
        a("s_setprio 2")
        self.busy = 2
        self.norm_setup(1 - n)
        a(f"""
ds_read_b32 v11, v14 offset:{2304 + 128 * n}
v_and_b32 v37, 15, v0
v_lshrrev_b32 v38, 4, v0
v_lshl_add_u32 v14, v37, 2, v2
ds_read_b32 v36, v14 offset:{2304 + 128 * n + 64 * mm}
v_bfe_u32 v43, v0, 2, 2
v_and_b32 v44, 3, v0
v_bfe_u32 v46, v0, 4, 1
v_and_b32 v39, 1, v44
v_lshlrev_b32 v15, 2, v39
v_lshl_add_u32 v15, v46, 1, v15
v_lshrrev_b32 v14, 1, v44
v_add_u32 v45, v15, v14
v_lshlrev_b32 v45, 3, v45
v_add_u32 v45, {L_WO1 if mm else L_WO0}, v45
v_lshl_add_u32 v6, v13, 2, v43
v_lshl_add_u32 v6, v6, 6, v45
v_lshrrev_b32 v7, 1, v43
v_mul_u32_u24 v7, 72, v7
v_and_b32 v14, 1, v43
v_add3_u32 v40, v7, v14, 16
v_lshl_add_u32 v7, v40, 6, v45
v_mul_u32_u24 v14, 18432, v13
v_add_u32 v7, v7, v14
v_lshlrev_b32 v39, 3, v39
v_add_u32 v39, {L_WOX}, v39
v_mul_u32_u24 v15, 288, v46
v_add_u32 v15, v15, v40
v_lshl_add_u32 v15, v15, 4, v39
v_mul_u32_u24 v14, 72, v13
v_lshl_add_u32 v14, v46, 2, v14
v_add_u32 v14, v14, v43
v_lshl_add_u32 v14, v14, 4, v39
v_lshlrev_b32 v41, 4, v37
v_lshl_add_u32 v41, v46, 9, v41
v_lshl_add_u32 v47, v13, 10, v41
v_cmp_gt_u32 vcc, 32, v0
v_mov_b32 v40, {OOB}
v_add_u32 v41, {256 * mm}, v47
v_cndmask_b32 v42, v40, v41, vcc
v_cmp_gt_u32 vcc, 8, v37
s_nop 0
v_cndmask_b32 v47, v40, v47, vcc
s_waitcnt lgkmcnt(0)
v_sub_f32 v4, 1.0, v4
""")

        normalize = self.normalize

        def wrow(kind, k, hh, u):
            if kind == "m":
                return ("v6", (72 * k + 18 * hh + 8 * u) * 64) if k < 8 else ("v7", (144 * u + 18 * hh) * 64)
            return ("v14", (144 * k + 18 * hh + 8 * u) * 16) if k < 4 else ("v15", (144 * u + 18 * hh) * 16)

        def consume(i, probe):
            OB, AX = 192, 248
            hh = i >> 1
            seq = []
            for ks in range(9):
                seq.append(("m", ks))
                if ks % 2 == 1 or ks == 8: seq.append(("x", ks // 2))
            def rd(k):
                for u in range(2):
                    base, off = wrow("x", k, hh, u)
                    a(f"ds_read_b64_tr_b16 {vr(AX+4*(k%2)+2*u,2)}, {base} offset:{off}")
            rd(0); rd(1)
            if probe:
                l = a.label("CP"); d = a.label("CQ")
                a(f"{l}:\ns_add_u32 s90, s94, {i*9216 + 8192}\nbuffer_load_dwordx4 {vr(OB,4)}, v5, {SWS}, s90 offen sc1")
                a(f"s_waitcnt vmcnt(0)\nv_max_u32 v1, v{OB}, v{OB+1}\nv_max3_u32 v1, v1, v{OB+2}, v{OB+3}")
                a(f"v_cmp_eq_u32 vcc, -1, v1\ns_cmp_eq_u64 vcc, 0\ns_cbranch_scc1 {d}")
                a(f"s_sleep 8\ns_sub_u32 {sSPIN}, {sSPIN}, 1\ns_cbranch_scc0 {l}\ns_branch L_bail\n{d}:")
            l = a.label("CL"); d = a.label("CD")
            a(f"{l}:")
            chk = []
            oreg = lambda it: OB + (4 * it[1] if it[0] == "m" else 36 + 4 * it[1])
            for it in seq:
                kind, k = it
                if kind == "m" and k % 4 == 0:
                    a(f"s_add_u32 s90, s94, {i*9216 + 1024*k}")
                voff, last = ("v5", k == 8) if kind == "m" else ("v41" if k < 4 else "v42", k == 4)
                imm = 1024 * (k % 4) if kind == "m" else 2048 * (k % 2)
                a(f"buffer_load_dwordx4 {vr(oreg(it),4)}, {voff}, {SWS}, s90 offen offset:{imm} sc1")
                chk.append([oreg(it) + r for r in range(4 if last else 1)])
            flat = [(j, r) for j, rs in enumerate(chk) for r in rs]
            a(f"s_waitcnt vmcnt({len(chk) - 2})\nv_max_u32 v1, v{flat[0][1]}, v{flat[1][1]}")
            for p in range(2, len(flat), 2):
                a(f"s_waitcnt vmcnt({len(chk) - 1 - flat[p+1][0]})\nv_max3_u32 v1, v1, v{flat[p][1]}, v{flat[p+1][1]}")
            a(f"v_cmp_eq_u32 vcc, -1, v1\ns_cmp_eq_u64 vcc, 0\ns_cbranch_scc1 {d}")
            a(f"s_sleep {2 if i >= 6 else 8}\ns_sub_u32 {sSPIN}, {sSPIN}, 1\ns_cbranch_scc0 {l}\ns_branch L_bail\n{d}:")
            for kind, k in seq:
                if kind == "m":
                    a(f"v_mfma_f32_32x32x16_bf16 {vr(ACC,16)}, {vr(WF+36*hh+4*k,4)}, {vr(oreg((kind,k)),4)}, {vr(ACC,16)}")
                else:
                    a(f"s_waitcnt lgkmcnt({2 if k < 4 else 0})")
                    a(f"v_mfma_f32_16x16x32_bf16 {vr(ACX,4)}, {vr(AX+4*(k%2),4)}, {vr(oreg((kind,k)),4)}, {vr(ACX,4)}")
                    if k + 2 < 5:
                        rd(k + 2)

        normalize(2 * mm + (1 - n))
        self.stamp(2, 4)
        self.wait(S3, 2, sleep=2)
        self.stamp(3, 4)
        for hh in range(4):
            for k in range(9):
                for u in range(2):
                    base, off = wrow("m", k, hh, u)
                    a(f"ds_read_b64_tr_b16 {vr(WF+36*hh+4*k+2*u,2)}, {base} offset:{off}")
                if k % 3 == 2:
                    a("s_waitcnt lgkmcnt(6)")
        self.stamp(4, 4)
        GM, GX, GD, GE = 192, 224, 8, 3
        AC2, BF, BX = ACC, 236, 248
        a(f"""
v_lshrrev_b32 v39, 3, v0
v_lshlrev_b32 v39, 12, v39
v_lshlrev_b32 v40, 2, v46
v_xor_b32 v40, v40, v0
v_and_b32 v40, 7, v40
v_lshl_add_u32 v39, v40, 4, v39
v_bfe_u32 v40, v0, 3, 1
v_xor_b32 v40, {n}, v40
v_lshlrev_b32 v40, 6, v40
v_lshl_add_u32 v40, v44, 3, v40
v_lshl_add_u32 v40, v43, 7, v40
v_lshl_add_u32 v43, v13, 10, v40
v_lshl_add_u32 v43, v46, 5, v43
v_add_u32 v44, 36864, v43
v_lshl_add_u32 v45, v38, 10, v40
v_add_u32 v45, {32 * mm}, v45
v_add_u32 v46, 36864, v45
s_mul_i32 s93, {sJ}, {3*36*1024}
s_add_u32 s98, s93, {WS_G + 2*36*1024}
s_add_u32 s93, s93, {WS_G + mm*36*1024}
s_waitcnt lgkmcnt(0)
""")
        self.add1(S2)
        vm = []
        def gm(ks):
            a(f"buffer_load_dwordx4 {vr(GM+4*(ks%GD),4)}, v5, {SWS}, s93 offen offset:{1024*(ks%4)} sc1")
            if ks % 4 == 3: a("s_add_u32 s93, s93, 4096")
            vm.append(("m", ks))
        def gx(T):
            a(f"buffer_load_dwordx4 {vr(GX+4*(T%GE),4)}, v47, {SWS}, s98 offen offset:{2048*(T%2)} sc1")
            if T % 2 == 1: a("s_add_u32 s98, s98, 4096")
            vm.append(("x", T))
        self.wait(CV, 7, sleep=4, idle=True)
        for ks in range(GD):
            gm(ks)
            if ks % 2 == 1 and ks // 2 < GE: gx(ks // 2)
        if w == 0:
            a(f"v_lshlrev_b32 v{BF}, 7, v0\nv_min_u32 v{BF+1}, {7*128}, v{BF}\ns_mov_b32 s99, {WS_FY}\ns_mov_b32 s92, {WS_FY + 8192}\ns_mov_b32 s88, {WS_FY + 72*128}")
            self.wait(YA, 2, sleep=4, idle=True)
            a(f"s_sleep {self.opt('dy', 20)}")
            self.poll(f"buffer_load_dwordx4 {vr(BF+2,4)}, v{BF}, {SWS}, s99 offen sc1\nbuffer_load_dwordx4 {vr(BF+6,4)}, v{BF+1}, {SWS}, s92 offen sc1\n"
                      f"buffer_load_dword v{BF+10}, off, {SWS}, s88 sc1", [BF + 2 + k for k in range(9)], sleep=12)
            self.add1(CY)
            ne = a.label("NE")
            a(f"s_cmp_lg_u32 s2, 0\ns_cbranch_scc1 {ne}")
            self.set_flag(str(WS_EPOCH))
            a(f"{ne}:")
        else:
            self.wait(CY, 1, sleep=4, idle=True)
        self.wait(S2, 4, sleep=2)
        self.stamp(1); self.stamp(5, 4)
        a(f"s_lshl_b32 s99, {sP}, 7\ns_add_u32 s99, s99, {WS_Y + w * 32768}\ns_mov_b32 s92, {L_Y + w * 1024}")
        def ydma():
            lp = a.label("YL")
            a(f"s_mov_b32 s88, 2\n{lp}:")
            for k in range(3):
                a(f"s_mov_b32 m0, s92\ns_add_u32 s92, s92, 4096\nbuffer_load_dwordx4 v39, {SWS}, s99 offen sc1 lds\ns_add_u32 s99, s99, {4*32768}")
            a(f"s_sub_u32 s88, s88, 1\ns_cbranch_scc0 {lp}")
        ydma()
        ydma()
        vm.extend([("y", k) for k in range(18)])
        a("s_waitcnt vmcnt(9)")
        self.add1(S1)
        self.stamp(6, 4)
        def yrd(it):
            kind, k = it
            if kind == "m":
                b = BF + 4 * (k % 3); base, off = ("v43", 2048 * k) if k < 18 else ("v44", 2048 * (k - 18))
            else:
                b = BX + 4 * (k % 2); base, off = ("v45", 4096 * k) if k < 9 else ("v46", 4096 * (k - 9))
            a(f"ds_read_b64_tr_b16 {vr(b,2)}, {base} offset:{off}\nds_read_b64_tr_b16 {vr(b+2,2)}, {base} offset:{off+512}")
        done = {"vm": len(vm) - 9}
        def half(k0):
            seq = []
            for ks in range(k0, k0 + 18):
                seq.append(("m", ks))
                if ks % 2 == 1: seq.append(("x", ks // 2))
            for it in seq[:3]:
                yrd(it)
            for i, it in enumerate(seq):
                wv = ""
                if vm.index(it) + 1 > done["vm"]:
                    done["vm"] = vm.index(it) + 1
                    wv = f"vmcnt({len(vm) - done['vm']}) "
                a(f"s_waitcnt {wv}lgkmcnt({2 * (min(i + 3, len(seq)) - i - 1)})")
                kind, k = it
                if kind == "m":
                    a(f"v_mfma_f32_32x32x16_bf16 {vr(AC2,16)}, {vr(GM+4*(k%GD),4)}, {vr(BF+4*(k%3),4)}, {'0' if k == 0 else vr(AC2,16)}")
                    if k + GD < 36: gm(k + GD)
                else:
                    a(f"v_mfma_f32_16x16x32_bf16 {vr(AC2+16,4)}, {vr(GX+4*(k%GE),4)}, {vr(BX+4*(k%2),4)}, {'0' if k == 0 else vr(AC2+16,4)}")
                    if k + GE < 18: gx(k + GE)
                if i + 3 < len(seq):
                    yrd(seq[i + 3])
                if it == ("m", GD):
                    self.add1(S4)
        self.wait(S1, 4, sleep=1)
        self.stamp(7, 4)
        half(0)
        self.wait(S4, 4, sleep=1)
        half(18)
        self.stamp(2); self.stamp(8, 4)
        self.srd(SOUT, 22, 2359296)
        a(f"""
s_mov_b32 s73, 73728
v_mul_lo_u32 v39, v12, s73
v_lshl_add_u32 v39, v13, 5, v39
v_mul_lo_u32 v40, v37, s73
v_lshl_add_u32 v40, v38, 3, v40
s_mul_i32 s93, {sP}, 2304
s_add_u32 s93, s93, s95
s_add_u32 s93, s93, {1152 * n}
s_add_u32 s92, s93, {16 * mm * 73728}
""")
        for i in range(8):
            a(f"v_pk_mul_f32 {vr(ACC+2*i,2)}, {vr(ACC+2*i,2)}, v[10:11] op_sel:[0,1] op_sel_hi:[1,1]")
        for i in range(2):
            a(f"v_pk_mul_f32 {vr(ACX+2*i,2)}, {vr(ACX+2*i,2)}, v[36:37] op_sel_hi:[1,0]")
        prog = {0: ["N5", "C0", "C2", "C4", "C6"], 1: ["N4", "C1", "C3", "C5", "C7"],
                2: ["C0", "C2", "C4", "C6"], 3: ["C1", "C3", "N6", "C5", "C7"]}[w]
        gates = {4: 5, 5: 6, 6: 7, 7: 7}
        for it in prog:
            i = int(it[1])
            if it[0] == "N":
                normalize(i)
                self.stamp(3)
            else:
                if i >= 4:
                    self.wait(256 * gates[i], 4, sleep=2 if gates[i] == 7 else 4, idle=True)
                if i == 7:
                    a(f"s_sleep {self.opt('d7', 10)}")
                if i >= 6: self.stamp(4)
                consume(i, i in (4, 5))
                if i in (2, 3): self.stamp(9, 4)
        self.stamp(6)
        fl = " sc1" if "outsc1" in self.opts else " nt" if "outnt" in self.opts else ""
        a(f"v_cvt_pk_bf16_f32 v{ACX}, v{ACX}, v{ACX+1}\nv_cvt_pk_bf16_f32 v{ACX+1}, v{ACX+2}, v{ACX+3}")
        for k in range(8):
            a(f"v_cvt_pk_bf16_f32 v{ACC+k}, v{ACC+2*k}, v{ACC+2*k+1}")
        a(f"buffer_store_dwordx4 {vr(ACC,4)}, v39, {SOUT}, s93 offen offset:{64*mm}{fl}")
        a(f"buffer_store_dwordx4 {vr(ACC+4,4)}, v39, {SOUT}, s93 offen offset:{64*mm+16}{fl}")
        a(f"s_mov_b32 exec_hi, 0\nbuffer_store_dwordx2 {vr(ACX,2)}, v40, {SOUT}, s92 offen offset:128{fl}\ns_mov_b64 exec, -1")
        self.stamp(7)

    def norm_setup(self, rows):
        self.a(f"""
v_lshlrev_b32 v5, 4, v0
v_and_b32 v12, 31, v0
v_lshrrev_b32 v13, 5, v0
v_add_u32 v8, {L_EX}, v5
v_lshlrev_b32 v9, 3, v0
v_add_u32 v9, {L_EX + 2048}, v9
v_lshlrev_b32 v10, 3, v12
v_add_u32 v10, {L_EX + 2048 + 256}, v10
v_lshl_add_u32 v14, v12, 2, v2
ds_read_b32 v4, v14 offset:{2304 + 128 * rows}
s_mul_i32 s94, {sP}, {8*9216}
s_add_u32 s94, s94, {WS_OF}
s_lshl_b32 s96, {sJ}, 10
s_add_u32 s96, s96, s94
s_lshr_b32 s97, {sJ}, 2
s_lshl_b32 s97, s97, 9
s_and_b32 s73, {sJ}, 3
s_lshl_b32 s73, s73, 2
s_add_u32 s97, s97, s73
s_add_u32 s97, s97, s94
s_add_u32 s97, s97, 8192
""")

    def normalize(self, i, wait=True):
        a = self.a
        NT = self.NT
        q = i % 4
        if wait:
            self.wait(256 * i, 4, sleep=1 if i >= 6 else 4, idle=True)
        for s in range(4):
            b = NT + 12 * s; o = 10240 * q + 2560 * s
            a(f"ds_read_b128 {vr(b,4)}, v8 offset:{o}\nds_read_b128 {vr(b+4,4)}, v8 offset:{o+1024}\nds_read_b64 {vr(b+8,2)}, v9 offset:{o}")
            if s == 3:
                a("s_waitcnt lgkmcnt(9)")
            a(f"ds_read_b32 v{b+10}, v10 offset:{o}")
        a(f"s_add_u32 s90, s96, {i*9216}\ns_add_u32 s91, s97, {i*9216}\ns_movk_i32 s89, {i}")
        a("s_waitcnt lgkmcnt(8)")
        for s in range(1, 4):
            if s > 1:
                a(f"s_waitcnt lgkmcnt({4 * (3 - s)})")
            for k in range(5):
                a(f"v_pk_add_f32 {vr(NT+2*k,2)}, {vr(NT+2*k,2)}, {vr(NT+12*s+2*k,2)}")
            a(f"v_add_f32 v{NT+10}, v{NT+10}, v{NT+12*s+10}")
        if i < 4:
            self.wait(CG, 1, sleep=2)
            self.add1(CN)
        self.safety()
        a(f"v_rcp_f32 v{NT+10}, v{NT+10}\ns_nop 0\nv_mul_f32 v{NT+10}, v4, v{NT+10}")
        for k in range(5):
            a(f"v_pk_mul_f32 {vr(NT+2*k,2)}, {vr(NT+2*k,2)}, {vr(NT+10,2)} op_sel_hi:[1,0]")
        for k in range(5):
            a(f"v_cvt_pk_bf16_f32 v{NT+12+k}, v{NT+2*k}, v{NT+2*k+1}")
        a(f"v_min_u32 v{NT+12}, -2, v{NT+12}\nv_min_u32 v{NT+16}, -2, v{NT+16}")
        a(f"buffer_store_dwordx4 {vr(NT+12,4)}, v5, {SWS}, s90 offen sc1\ns_mov_b32 exec_hi, 0")
        a(f"buffer_store_dword v{NT+16}, v5, {SWS}, s91 offen sc1\ns_mov_b64 exec, -1")

    def safety(self):
        a = self.a
        NT = self.NT
        ok = a.label("SOK")
        t = NT + 12
        a(f"v_mov_b32 v{t}, 0\nv_mov_b32 v{t+1}, 0\nv_mov_b32 v{t+2}, 0\nv_mov_b32 v{t+3}, 0")
        for k in range(5):
            a(f"v_pk_fma_f32 {vr(t,2)}, {vr(NT+2*k,2)}, {vr(t+2,2)}, {vr(t,2)}")
        lo, hi = (127 - 60) << 23, (127 + 64) << 23
        if "forcefb" in self.opts:
            lo, hi = (127 + 60) << 23, (127 + 64) << 23
        a(f"v_add_f32 v{t}, v{t}, v{t+1}\nv_subrev_u32 v{t+1}, {lo:#x}, v{NT+10}\nv_cmp_u_f32 vcc, v{t}, v{t}")
        a(f"s_mov_b32 s73, {hi - lo:#x}\nv_cmp_lt_u32 s[74:75], s73, v{t+1}\ns_or_b64 vcc, vcc, s[74:75]\ns_cmp_eq_u64 vcc, 0\ns_cbranch_scc1 {ok}")
        a(f"s_call_b64 s[86:87], L_fallback\n{ok}:")

    def fallback(self):
        a = self.a
        NT = self.NT
        O, S, Q, QX, K, KX, V, MX = NT, 208, 224, 228, 230, 234, 236, 244
        vK, vKX, vV, T0 = 245, 246, 247, 248
        l1 = a.label("FB1"); l2 = a.label("FB2")
        qk = f"""
buffer_load_dwordx4 {vr(K,4)}, v{vK}, {SWS}, s[84] offen sc1
buffer_load_dword v{KX}, v{vKX}, {SWS}, s[85] offen sc1
""".replace("s[84]", "s84").replace("s[85]", "s85")
        mm = f"""
v_mfma_f32_32x32x16_bf16 {vr(S,16)}, {vr(K,4)}, {vr(Q,4)}, 0
v_mfma_f32_32x32x8_bf16 {vr(S,16)}, {vr(KX,2)}, {vr(QX,2)}, {vr(S,16)}
s_add_u32 s84, s84, 1024
s_add_u32 s85, s85, 128
"""
        a(f"""
L_fallback:
s_nop 4
v_lshlrev_b32 v{vK}, 5, v12
v_lshl_add_u32 v{vK}, v13, 4, v{vK}
v_mov_b32 v{T0}, {OOB}
v_lshlrev_b32 v{vKX}, 2, v12
v_cmp_lt_u32 vcc, 31, v0
v_subrev_u32 v{T0+1}, 64, v{vK}
v_cndmask_b32 v{vKX}, v{vKX}, v{T0}, vcc
v_cmp_eq_u32 vcc, 20, v12
s_mul_i32 s73, s89, 1536
v_cndmask_b32 v{T0+1}, v{T0}, v{T0+1}, vcc
v_cmp_gt_u32 vcc, 18, v12
s_add_u32 s73, s73, {L_QS}
v_cndmask_b32 v{vV}, v{T0+1}, v{vK}, vcc
v_mul_u32_u24 v{T0}, 48, v12
v_add_u32 v{T0}, s73, v{T0}
v_lshl_add_u32 v{T0+1}, v13, 2, v{T0}
v_lshl_add_u32 v{T0}, v13, 4, v{T0}
ds_read_b128 {vr(Q,4)}, v{T0}
ds_read_b32 v{QX}, v{T0+1} offset:32
v_mov_b32 v{QX+1}, 0
v_mov_b32 v{KX+1}, 0
v_mov_b32 v{MX}, 0xff800000
s_mov_b32 s84, {WS_K16}
s_mov_b32 s85, {WS_KX}
s_mov_b32 s88, 63
{l1}:
{qk}
s_waitcnt vmcnt(0) lgkmcnt(0)
{mm}
""")
        for k in range(8):
            a(f"v_max3_f32 v{MX}, v{MX}, v{S+2*k}, v{S+2*k+1}")
        a(f"""
s_sub_u32 s88, s88, 1
s_cbranch_scc0 {l1}
v_mov_b32 v{T0}, v{MX}
v_permlane32_swap_b32 v{MX}, v{T0}
v_max_f32 v{MX}, v{MX}, v{T0}
s_mov_b32 s84, {WS_K16}
s_mov_b32 s85, {WS_KX}
s_mov_b32 s83, {WS_VF}
s_mov_b32 s88, 63
""")
        for r in range(16):
            a(f"v_mov_b32 v{O+r}, 0")
        a(f"""
{l2}:
{qk}
buffer_load_dwordx4 {vr(V,4)}, v{vV}, {SWS}, s83 offen sc1
buffer_load_dwordx4 {vr(V+4,4)}, v{vV}, {SWS}, s83 offen offset:{VPITCH} sc1
s_waitcnt vmcnt(0)
{mm}
s_add_u32 s83, s83, {2*VPITCH}
""")
        for r in range(16):
            a(f"v_sub_f32 v{S+r}, v{S+r}, v{MX}")
        for r in range(16):
            a(f"v_exp_f32 v{S+r}, v{S+r}")
        for k in range(8):
            a(f"v_cvt_pk_bf16_f32 v{S+k}, v{S+2*k}, v{S+2*k+1}")
        a(f"""
v_mfma_f32_32x32x16_bf16 {vr(O,16)}, {vr(V,4)}, {vr(S,4)}, {vr(O,16)}
v_mfma_f32_32x32x16_bf16 {vr(O,16)}, {vr(V+4,4)}, {vr(S+4,4)}, {vr(O,16)}
s_nop 15
s_sub_u32 s88, s88, 1
s_cbranch_scc0 {l2}
""")
        a(f"v_mov_b32 v{T0}, v{O+8}\nv_mov_b32 v{NT+10}, v{O+8}\nv_permlane32_swap_b32 v{T0}, v{NT+10}\ns_nop 4\ns_setpc_b64 s[86:87]")

    def finish_stamps(self):
        a = self.a
        if self.stamps:
            a("v_mov_b32 v2, 0")
            for i in range(12):
                a(f"v_writelane_b32 v2, s{STAMPS[i]}, {i}")
            a(f"s_lshl_b32 s73, s2, 3\ns_add_u32 s73, s73, {sW}\ns_lshl_b32 s73, s73, 7\ns_add_u32 s73, s73, {WS_DBG}")
            a(f"v_lshlrev_b32 v3, 2, v0\ns_mov_b32 exec_hi, 0\nbuffer_store_dword v2, v3, {SWS}, s73 offen\ns_mov_b64 exec, -1")

    def build(self):
        a = self.a
        self.prologue()
        self.e_front()
        a("L_attn:")
        self.attention()
        self.stamp(8)
        a(f"s_cmp_ge_u32 {sW}, 4\ns_cbranch_scc1 L_last")
        labs = [a.label("TL") for _ in range(4)]
        for w in range(1, 4):
            a(f"s_cmp_eq_u32 {sW}, {w}\ns_cbranch_scc1 {labs[w]}")
        for w in range(4):
            a(f"{labs[w]}:")
            self.tail(w >> 1, w & 1)
            a("s_branch L_fin")
        a(f"L_last:\ns_waitcnt lgkmcnt(0)\nv_readfirstlane_b32 s73, v1\nv_sub_f32 v4, 1.0, v4\ns_cmp_lg_u32 s73, 3\ns_cbranch_scc1 L_fin\ns_setprio 3")
        self.normalize(7, wait=False)
        self.stamp(3)
        a("s_branch L_fin")
        a("L_lwave:")
        self.busy = 3
        self.l_front()
        self.l_mid()
        a("s_branch L_attn")
        self.fallback()
        a("L_bail:")
        if self.stamps:
            a(f"s_mov_b32 s{STAMPS[11]}, 0xdead0000")
        a("L_fin:")
        if self.opt("padto", 0):
            a(f"L_pad:\ns_sleep 2\ns_memrealtime s[78:79]\ns_waitcnt lgkmcnt(0)\ns_sub_u32 s78, s78, s76\ns_cmp_lt_u32 s78, s80\ns_cbranch_scc1 L_pad")
        self.finish_stamps()
        a("L_end:\ns_endpgm")
        body = a.finish()
        tw = self.make_tables()
        assert tw.size == 2 * self.NTAB * 256
        tab = "\n".join(".long " + ",".join(f"{x:#x}" for x in tw[i:i+16]) for i in range(0, tw.size, 16))
        hdr = open("cdna_kernels/" + NAME + ".s.ref").read().split("; Override launch")[0]
        return f"""{hdr}; @launch grid=(256,1,1) block=(512,1,1) lds={LDS_BYTES}
.amdgcn_target "amdgcn-amd-amdhsa--gfx950"
.text
.globl {NAME}_kernel
.p2align 8
.type {NAME}_kernel,@function
{NAME}_kernel:
{body}
.section .rodata,"a"
.p2align 8
.type spectral_tables,@object
spectral_tables:
{tab}
.size spectral_tables, {2*self.NTAB*1024}
.p2align 6
.amdhsa_kernel {NAME}_kernel
  .amdhsa_next_free_vgpr 256
  .amdhsa_next_free_sgpr 102
  .amdhsa_accum_offset 256
  .amdhsa_group_segment_fixed_size 0
  .amdhsa_kernarg_size 96
  .amdhsa_user_sgpr_count 2
  .amdhsa_user_sgpr_kernarg_segment_ptr 1
  .amdhsa_system_sgpr_workgroup_id_x 1
.end_amdhsa_kernel
"""


if __name__ == "__main__":
    opts = sys.argv[2:]
    g = Gen(stamps=2 if "st2" in opts else 3 if "st3" in opts else 4 if "st4" in opts else 5 if "st5" in opts else int("stamps" in opts), cyc="cyc" in opts, opts=opts)
    src = g.build()
    open(sys.argv[1], "w").write(src)
    print("nops added:", g.a.added_nops, "lines:", len(src.splitlines()))
```

```python
import sys
import numpy as np
from asmlib import Asm
import model as M

NAME = "gated_mix__spectral_gfnet__grouped_kv_mqa__prompt"

WS_EPOCH = 0
WS_FKV = 0x50000
WS_FS = 0x58000
WS_FY = 0x60000
WS_GOS = 0x68000
WS_K16 = 0x10000
WS_KX = 0x20000
WS_VF = 0x30000
WS_DBG = 0x80000
WS_G = 0x100000
WS_T = 0x200000
WS_Y = 0x500000
WS_OF = 0x800000
WS_WT = 0xB00000
WS_QDUMP = 0x1100000
WS_SIZE = 0x2000000
OOB = 0x40000000
VPITCH = 640

XP = 1040
L_X = 0
L_X2 = 64 * XP
L_WQ0 = 74752
L_WQ1 = 111616
P2SZ = 9728
L_P2Q = 148480
L_P2KV = L_P2Q - P2SZ
L_MISC = 162816
L_CT = L_MISC - 2048
(C0A, C0B, C0C, C1, CX, CK, CE, CV, CY, S1, S2, S3, CN, CW, CF, CD, CG, S4, C0D, SA, XA, XB, YA, YB, CR) = (2048 + 4 * i for i in range(25))
L_G = L_MISC + 256
L_QS = L_WQ0
L_WO0 = 0
L_WO1 = 36864
L_Y = 0
L_EX = L_QS + 12288
L_WOX = L_EX + 16 * 2560
L_XCH = L_WOX + 9216
LDS_BYTES = 163840
assert L_XCH + 8192 <= L_CT and L_P2Q + P2SZ <= L_CT and L_P2Q + P2SZ <= L_MISC and L_P2KV >= L_WQ1 + 416 * 64

SX, SWQ, SKV, SG, SWS, SWO, SOUT, SWR, SWI, STB = (f"s[{a}:{a+3}]" for a in range(28, 68, 4))
sW, sP, sJ, sTAG, sSPIN = "s68", "s69", "s70", "s71", "s72"
STAMPS = [76, 77, 78, 79, 80, 81, 100, 101, 3, 10, 11, 24]
SPIN_MAX = 400000

f32bits = lambda v: int(np.float32(v).view(np.uint32))
QSCALE_BITS = f32bits(M.QSCALE)
LOG2E_BITS = f32bits(M.LOG2E)


def vr(a, n=1):
    return f"v{a}" if n == 1 else f"v[{a}:{a+n-1}]"


class Gen:
    AQ, AQX, AO, AK, AKX, AV, AS = 24, 28, 32, 88, 120, 128, 192
    vQ, vQX, vEX, vEX2, vK, vKX, vV, vCT = 78, 79, 80, 81, 82, 83, 4, 84
    vCT2 = vCT

    def __init__(self, stamps=0, cyc=False, opts=()):
        self.a = Asm()
        self.stamps = stamps
        self.clk = "s_memtime" if cyc else "s_memrealtime"
        self.opts = set(opts)
        self.busy = 3

    def opt(self, name, default):
        for o in self.opts:
            if o.startswith(name + "="):
                return int(o.split("=")[1])
        return default

    def _st(self, i):
        self.a(f"{self.clk} s[74:75]\ns_waitcnt lgkmcnt(0)\ns_mov_b32 s{STAMPS[i]}, s74")

    def stamp(self, i, level=1):
        if self.stamps == level:
            self._st(i)
        if self.opt("pid", -1) == i and self.opt("plev", 1) == level:
            l = self.a.label("PB")
            self.a(f"s_cmp_lg_u32 {sW}, {self.opt('pw', 0)}\ns_cbranch_scc1 {l}\ns_memrealtime s[78:79]\ns_waitcnt lgkmcnt(0)\n"
                   f"s_sub_u32 s80, s78, s76\ns_add_u32 s80, s80, {self.opt('padto', 0)}\n{l}:")

    def srd(self, srd, lo, size):
        b = int(srd[2:].split(":")[0])
        self.a(f"s_mov_b32 s{b}, s{lo}\ns_mov_b32 s{b+1}, s{lo+1}\ns_mov_b32 s{b+2}, {size}\ns_mov_b32 s{b+3}, 0x20000")

    def add1(self, off, base="v2"):
        self.a(f"s_mov_b64 exec, 1\nds_add_u32 {base}, v3 offset:{off}\ns_mov_b64 exec, -1")

    def wait(self, off, target, sleep=1, base="v2", idle=False):
        a = self.a
        l = a.label("LW"); d = a.label("LWD")
        if idle and "noidle" not in self.opts:
            a("s_setprio 0")
        a(f"{l}:\nds_read_b32 v1, {base} offset:{off}\ns_waitcnt lgkmcnt(0)\nv_readfirstlane_b32 s73, v1")
        a(f"s_cmp_ge_u32 s73, {target}\ns_cbranch_scc1 {d}")
        if sleep:
            a(f"s_sleep {sleep}")
        a(f"s_sub_u32 {sSPIN}, {sSPIN}, 1\ns_cbranch_scc0 {l}\ns_branch L_bail\n{d}:")
        if idle and "noidle" not in self.opts:
            a(f"s_setprio {self.busy}")

    def cmp_regs(self, regs, val, op="ne"):
        a = self.a
        a(f"v_cmp_{op}_u32 vcc, {val}, v{regs[0]}")
        for r in regs[1:]:
            a(f"v_cmp_{op}_u32 s[74:75], {val}, v{r}\ns_or_b64 vcc, vcc, s[74:75]")
        a("s_cmp_eq_u64 vcc, 0")

    def poll(self, loads, regs, sleep=2):
        a = self.a
        l = a.label("PL"); d = a.label("PD")
        a(f"{l}:")
        a(loads)
        a("s_waitcnt vmcnt(0)")
        self.cmp_regs(regs, sTAG)
        a(f"s_cbranch_scc1 {d}\ns_sleep {sleep}\ns_sub_u32 {sSPIN}, {sSPIN}, 1\ns_cbranch_scc0 {l}\ns_branch L_bail\n{d}:")

    def set_flag(self, soff):
        self.a(f"v_mov_b32 v1, {sTAG}\ns_mov_b64 exec, 1\nbuffer_store_dword v1, off, {SWS}, {soff} sc1\ns_mov_b64 exec, -1")

    def flag4(self, dst, idx, base):
        self.a(f"s_lshr_b32 {dst}, {idx}, 2\ns_lshl_b32 {dst}, {dst}, 7\ns_and_b32 s73, {idx}, 3\ns_lshl_b32 s73, s73, 2\n"
               f"s_add_u32 {dst}, {dst}, s73\ns_add_u32 {dst}, {dst}, {base}")

    def go_wait(self, base, vt, sleep):
        self.a(f"s_and_b32 s92, s2, 7\ns_lshl_b32 s92, s92, 7\ns_add_u32 s92, s92, {base}")
        self.poll(f"s_mov_b64 exec, 1\nbuffer_load_dword v{vt}, off, {SWS}, s92 sc1\ns_waitcnt vmcnt(0)\nv_readfirstlane_b32 s73, v{vt}\ns_mov_b64 exec, -1\nv_mov_b32 v{vt}, s73", [vt], sleep=sleep)

    def tag(self):
        self.a(f"s_mul_i32 {sTAG}, {sTAG}, 0x9E3779B1\ns_add_u32 {sTAG}, {sTAG}, 0x7F4A7C15")

    def prologue(self):
        a = self.a
        a(f"""
s_cmp_ge_u32 s2, 256
s_cbranch_scc1 L_end
s_load_dwordx16 s[4:19], s[0:1], 0
s_load_dwordx8 s[20:27], s[0:1], 64
v_lshrrev_b32 v1, 6, v0
v_and_b32 v0, 63, v0
v_readfirstlane_b32 {sW}, v1
s_and_b32 {sP}, s2, 31
s_lshr_b32 {sJ}, s2, 5
""")
        if self.stamps:
            a(f"{self.clk} s[74:75]")
        if self.opt("padto", 0):
            a(f"s_memrealtime s[76:77]\ns_mov_b32 s80, {self.opt('padto', 0)}")
        a(f"""
v_lshl_add_u32 v4, v1, 6, v0
v_mov_b32 v2, {L_CT}
v_mov_b32 v3, 1
v_lshlrev_b32 v7, 4, v0
s_mul_i32 s94, {sP}, 2304
s_mul_i32 s95, {sJ}, 144
s_lshl_b32 s91, {sJ}, 2
s_add_u32 s91, s91, {sW}
s_mov_b32 s30, 2359296
s_mov_b32 s31, 0x20000
s_mov_b32 {sSPIN}, {SPIN_MAX}
s_cmp_ge_u32 {sW}, 4
s_waitcnt lgkmcnt(0)
""")
        if self.stamps:
            a(f"s_mov_b32 s{STAMPS[0]}, s74")
            for r in STAMPS[1:]:
                a(f"s_mov_b32 s{r}, 0")
        a("s_cbranch_scc1 L_lwave")

    def kv_addr(self):
        a = self.a
        a(f"""
v_and_b32 v84, 31, v0
v_lshrrev_b32 v85, 5, v0
v_lshlrev_b32 v{self.vK}, 5, v84
v_lshl_add_u32 v{self.vK}, v85, 4, v{self.vK}
v_mov_b32 v86, {OOB}
v_lshlrev_b32 v{self.vKX}, 2, v84
v_cmp_lt_u32 vcc, 31, v0
v_subrev_u32 v87, 64, v{self.vK}
v_cndmask_b32 v{self.vKX}, v{self.vKX}, v86, vcc
v_cmp_eq_u32 vcc, 20, v84
s_and_b32 s73, {sW}, 3
v_cndmask_b32 v87, v86, v87, vcc
v_cmp_gt_u32 vcc, 18, v84
s_lshl_b32 s96, s73, 14
v_cndmask_b32 v{self.vV}, v87, v{self.vK}, vcc
s_add_u32 s96, s96, {WS_K16}
s_lshl_b32 s97, s73, 11
s_add_u32 s97, s97, {WS_KX}
s_mul_i32 s98, s73, {32*VPITCH}
s_add_u32 s98, s98, {WS_VF}
""")

    def ld_k(self, t, slot):
        adv = "\ns_add_u32 s96, s96, 4096" if t % 4 == 3 else ""
        return (f"buffer_load_dwordx4 {vr(self.AK+4*slot,4)}, v{self.vK}, {SWS}, s96 offen offset:{1024*(t%4)} sc1" + adv,
                f"buffer_load_dword v{self.AKX+slot}, v{self.vKX}, {SWS}, s97 offen offset:{128*t} sc1")

    def ld_v(self, t, slot):
        adv = f"\ns_add_u32 s98, s98, {4*VPITCH}" if t % 2 == 1 else ""
        o = 2 * VPITCH * (t % 2)
        return (f"buffer_load_dwordx4 {vr(self.AV+8*slot,4)}, v{self.vV}, {SWS}, s98 offen offset:{o} sc1",
                f"buffer_load_dwordx4 {vr(self.AV+8*slot+4,4)}, v{self.vV}, {SWS}, s98 offen offset:{o+VPITCH} sc1" + adv)

    NFIRST = 4

    def kv_loads(self):
        for t in range(self.NFIRST):
            for x in self.ld_k(t, t) + self.ld_v(t, t):
                self.a(x)

    def e_front(self):
        a = self.a
        a("s_setprio 3\ns_mov_b32 s28, s4\ns_mov_b32 s29, s5")
        for k in range(8):
            a(f"""
s_and_b32 s91, s91, 31
s_mul_i32 s90, s91, 73728
s_mul_i32 m0, s91, {XP}
s_add_u32 s90, s90, s94
s_add_u32 s91, s91, 4
buffer_load_dwordx4 v7, {SX}, s90 offen lds
s_add_u32 m0, m0, {32*XP - 1152}
s_nop 0
buffer_load_dwordx4 v7, {SX}, s90 offen offset:1152 lds
""")
        a(f"""
s_load_dword {sTAG}, s[26:27], {WS_EPOCH}
v_lshrrev_b32 v20, 3, v0
s_mov_b32 s73, 73728
v_mul_lo_u32 v21, v20, s73
v_lshrrev_b32 v22, 4, v0
v_xor_b32 v22, v22, v0
v_and_b32 v22, 7, v22
v_lshl_add_u32 v21, v22, 4, v21
s_and_b32 s90, {sW}, 1
s_mul_i32 s90, s90, {16*73728}
s_lshr_b32 s73, {sW}, 1
s_mul_i32 s73, s73, 1152
s_add_u32 s90, s90, s73
s_add_u32 s90, s90, s94
s_add_u32 s90, s90, 1024
s_lshl_b32 s91, {sW}, 11
s_add_u32 m0, s91, {L_X2}
v_xor_b32 v22, 64, v21
buffer_load_dwordx4 v21, {SX}, s90 offen lds
s_add_u32 m0, s91, {L_X2 + 1024}
s_add_u32 s90, s90, {8*73728}
buffer_load_dwordx4 v22, {SX}, s90 offen lds
s_cmp_lt_u32 {sJ}, 4
s_cselect_b32 s36, s14, s16
s_cselect_b32 s37, s15, s17
s_mov_b32 s38, 20736
s_mov_b32 s39, 0x20000
v_mul_u32_u24 v5, 36, v4
v_lshlrev_b32 v6, 1, v4
s_and_b32 s73, {sJ}, 3
s_lshl_b32 s92, s73, 3
""")
        self.srd(SG, 20, 1152)
        s = a.label("KV3")
        a(f"""
buffer_load_dwordx3 v[24:26], v5, {SKV}, s92 offen
buffer_load_ushort v27, v6, {SG}, 0 offen
v_add_u32 v5, {256*36}, v5
buffer_load_dwordx3 v[28:30], v5, {SKV}, s92 offen
buffer_load_ushort v31, v6, {SG}, 0 offen offset:512
s_cmp_gt_u32 {sW}, 0
s_cbranch_scc1 {s}
v_add_u32 v5, {256*36}, v5
buffer_load_dwordx3 v[40:42], v5, {SKV}, s92 offen
buffer_load_ushort v43, v6, {SG}, 0 offen offset:1024
{s}:
s_barrier
""")
        self.stamp(6, 3)
        self.srd(SWS, 26, WS_SIZE)
        a(f"""
v_lshrrev_b32 v7, 7, v4
v_lshlrev_b32 v7, 7, v7
v_lshl_add_u32 v7, v4, 4, v7
v_add_u32 v7, {L_P2KV}, v7
v_and_b32 v14, 15, v0
v_lshrrev_b32 v15, 4, v0
v_and_b32 v17, 31, v0
v_lshrrev_b32 v18, 5, v0
v_bfe_u32 v22, v0, 2, 2
v_lshlrev_b32 v22, 4, v22
v_and_b32 v23, 1, v0
v_lshl_add_u32 v22, v23, 3, v22
v_mul_u32_u24 v16, 2176, v15
v_add_u32 v16, v16, v22
v_lshl_add_u32 v12, v15, 7, v22
v_add_u32 v12, {512*16 + 512}, v12
v_add_u32 v19, {L_P2KV}, v16
v_add_u32 v10, {L_P2KV}, v12
v_add_u32 v16, {L_P2Q}, v16
v_add_u32 v12, {L_P2Q}, v12
s_lshl_b32 s73, {sW}, 4
v_add_u32 v21, s73, v14
v_mul_u32_u24 v20, {XP}, v21
v_lshl_add_u32 v20, v15, 8, v20
v_lshrrev_b32 v22, 1, v21
v_xor_b32 v22, v22, v15
v_and_b32 v22, 7, v22
v_lshlrev_b32 v22, 4, v22
v_lshl_add_u32 v11, v21, 7, v22
v_add_u32 v11, {L_X2}, v11
v_xor_b32 v9, 64, v11
s_lshl_b32 s90, {sP}, 1
s_lshr_b32 s73, {sW}, 1
s_add_u32 s90, s90, s73
s_and_b32 s91, {sW}, 1
s_mov_b32 s92, {(LOG2E_BITS | 0x80000000):#x}
s_lshl_b32 s99, {sW}, 6
s_add_u32 s99, s99, {L_G}
""")
        RG, XF, AK_ = 32, 160, 252
        def wrd(b1, b2, T, dst):
            base, off = (b1, T * 128) if T < 16 else (b2, (T - 16) * 512)
            a(f"ds_read_b64_tr_b16 {vr(dst,2)}, {base} offset:{off}\nds_read_b64_tr_b16 {vr(dst+2,2)}, {base} offset:{off+64}")
        def land():
            s = a.label("KW")
            a(f"s_waitcnt vmcnt(0)\nds_write_b128 v7, v[24:27]\nds_write_b128 v7, v[28:31] offset:{4096+256}")
            a(f"s_cmp_gt_u32 {sW}, 0\ns_cbranch_scc1 {s}\nds_write_b128 v7, v[40:43] offset:{8192+512}\n{s}:")
            self.stamp(1, 3)
            self.add1(CX)
            self.wait(CX, 4, sleep=0)
            self.tag()
            self.stamp(2, 3)
        def kv_gemm(swap):
            acc = vr(AK_, 4)
            def rd(T):
                wrd("v19", "v10", T, 44 + 4 * (T % 5))
                if T < 16:
                    a(f"ds_read_b128 {vr(XF+4*T,4)}, v20 offset:{T*16}")
                else:
                    a(f"ds_read_b128 {vr(XF+4*T,4)}, {'v11' if T == 16 else 'v9'}")
            for T in range(4):
                rd(T)
            for T in range(18):
                if T + 4 < 18:
                    rd(T + 4)
                a(f"s_waitcnt lgkmcnt({3 * (min(T + 5, 18) - T - 1)})")
                W, X = vr(44 + 4 * (T % 5), 4), vr(XF + 4 * T, 4)
                A, B = (X, W) if swap else (W, X)
                a(f"v_mfma_f32_16x16x32_bf16 {acc}, {A}, {B}, {'0' if T == 0 else acc}")
            self.add1(CK)
        kpath = a.label("EK"); done = a.label("EKD")
        a(f"s_cmp_lt_u32 {sJ}, 4\ns_cbranch_scc1 {kpath}")
        a(f"""
s_lshl_b32 s90, s90, 1
s_add_u32 s90, s90, s91
s_mul_i32 s90, s90, {VPITCH}
s_add_u32 s90, s90, {WS_VF}
s_sub_u32 s73, {sJ}, 4
s_lshl_b32 s73, s73, 2
v_add_u32 v36, s73, v14
v_cmp_eq_u32 vcc, 7, v14
v_lshrrev_b32 v37, 1, v15
v_cndmask_b32 v36, v36, 18, vcc
v_lshlrev_b32 v36, 5, v36
v_lshl_add_u32 v36, v37, 3, v36
v_and_b32 v37, 1, v15
v_lshl_add_u32 v36, v37, 4, v36
v_mov_b32 v37, 0x3f803f80
v_lshl_add_u32 v38, v15, 4, s99
s_mov_b32 s88, 0x000f000f
s_cmp_eq_u32 {sJ}, 7
s_cmov_b32 s88, 0x00bf00bf
""")
        land()
        kv_gemm(True)
        a(f"""
v_cvt_pk_bf16_f32 v22, v{AK_}, v{AK_+1}
v_cvt_pk_bf16_f32 v23, v{AK_+2}, v{AK_+3}
v_cndmask_b32 v22, v22, v37, vcc
v_cndmask_b32 v23, v23, v37, vcc
s_mov_b32 exec_lo, s88
s_mov_b32 exec_hi, s88
buffer_store_dwordx2 v[22:23], v36, {SWS}, s90 offen sc1
s_mov_b64 exec, -1
""")
        for r in range(4):
            a(f"v_mul_f32 v{AK_+r}, s92, v{AK_+r}\nv_exp_f32 v{AK_+r}, v{AK_+r}")
        for r in range(4):
            a(f"v_add_f32 v{AK_+r}, 1.0, v{AK_+r}\nv_rcp_f32 v{AK_+r}, v{AK_+r}")
        a(f"""
s_mov_b32 exec_lo, 0x00400040
s_mov_b32 exec_hi, 0x00400040
ds_write_b128 v38, {vr(AK_,4)}
s_branch {done}
{kpath}:
s_lshl_b32 s91, s91, 4
v_add_u32 v37, s91, v14
v_lshlrev_b32 v36, 5, v37
v_lshlrev_b32 v37, 2, v37
v_lshl_add_u32 v38, v14, 2, s99
s_lshl_b32 s88, s90, 10
s_lshl_b32 s73, {sJ}, 3
s_add_u32 s88, s88, s73
s_add_u32 s88, s88, {WS_K16}
s_lshl_b32 s90, s90, 7
s_add_u32 s90, s90, {WS_KX}
s_cmp_lg_u32 {sJ}, 3
s_cmov_b32 s90, {OOB}
s_mov_b32 s91, {QSCALE_BITS:#x}
""")
        land()
        kv_gemm(False)
        a(f"""
v_mul_f32 v39, s92, v{AK_+2}
v_mul_f32 v{AK_}, s91, v{AK_}
v_mul_f32 v{AK_+1}, s91, v{AK_+1}
v_mul_f32 v{AK_+2}, s91, v{AK_+2}
v_mul_f32 v{AK_+3}, s91, v{AK_+3}
v_cvt_pk_bf16_f32 v22, v{AK_}, v{AK_+1}
v_cvt_pk_bf16_f32 v23, v{AK_+2}, v{AK_+3}
s_mov_b64 exec, 0xffff
buffer_store_dwordx2 v[22:23], v36, {SWS}, s88 offen sc1
s_mov_b32 exec_lo, 0xffff0000
buffer_store_dword v22, v37, {SWS}, s90 offen sc1
v_exp_f32 v39, v39
s_nop 0
v_add_f32 v39, 1.0, v39
v_rcp_f32 v39, v39
s_nop 0
ds_write_b32 v38, v39
{done}:
s_mov_b64 exec, -1
""")
        self.stamp(7, 3)
        a(f"""
s_lshl_b32 s73, {sP}, 3
s_add_u32 s73, s73, {sJ}
s_lshl_b32 s73, s73, 4
s_add_u32 s91, s73, {WS_FKV}
v_bfe_u32 v22, v0, 2, 2
v_lshl_add_u32 v19, v18, 3, v22
v_lshlrev_b32 v19, 6, v19
v_bfe_u32 v22, v0, 4, 1
v_lshl_add_u32 v19, v22, 5, v19
v_and_b32 v22, 3, v0
v_lshl_add_u32 v19, v22, 3, v19
s_and_b32 s73, {sW}, 1
s_mul_i32 s73, s73, {L_WQ1 - L_WQ0}
s_add_u32 s73, s73, {L_WQ0}
v_add_u32 v19, s73, v19
s_lshr_b32 s73, {sW}, 1
s_lshl_b32 s73, s73, 5
v_add_u32 v21, s73, v17
v_mul_u32_u24 v13, {XP}, v21
v_lshl_add_u32 v13, v18, 4, v13
v_mul_u32_u24 v26, 48, v4
v_add_u32 v26, {L_QS + 36}, v26
v_lshrrev_b32 v22, 1, v21
v_xor_b32 v22, v22, v18
v_and_b32 v22, 7, v22
v_lshlrev_b32 v22, 4, v22
v_lshl_add_u32 v6, v21, 7, v22
v_add_u32 v6, {L_X2}, v6
v_xor_b32 v7, 32, v6
v_xor_b32 v8, 64, v6
v_xor_b32 v9, 0x60, v6
v_mul_u32_u24 v22, 48, v21
v_add_u32 v22, {L_QS}, v22
v_lshl_add_u32 v23, v18, 3, v22
v_mul_u32_u24 v24, 3044, v18
v_add_u32 v24, v24, v22
s_lshl_b32 s73, {sW}, 4
v_add_u32 v25, s73, v14
v_mul_u32_u24 v25, 48, v25
v_lshl_add_u32 v25, v15, 3, v25
v_add_u32 v25, {L_QS + 3*3072 + 20}, v25
v_mov_b32 v27, 0
v_lshlrev_b32 v28, 4, v0
s_lshl_b32 s93, {sW}, 10
s_add_u32 s93, s93, {WS_FKV}
""")
        self.kv_addr()
        nf = a.label("NF")
        a(f"s_waitcnt vmcnt(0)\ns_mov_b64 exec, 1\nds_add_rtn_u32 v1, v2, v3 offset:{CF}\ns_mov_b64 exec, -1\ns_waitcnt lgkmcnt(0)")
        a(f"v_readfirstlane_b32 s73, v1\ns_cmp_lg_u32 s73, 3\ns_cbranch_scc1 {nf}")
        self.set_flag("s91")
        a(f"{nf}:")
        self.stamp(3, 3)
        RX, AM, AXQ = 64, 232, 248
        def rdm(t):
            b = RG + 8 * (t % 4)
            a(f"ds_read_b64_tr_b16 {vr(b,2)}, v19 offset:{t*1024}\nds_read_b64_tr_b16 {vr(b+2,2)}, v19 offset:{t*1024+256}")
            a(f"ds_read_b128 {vr(b+4,4)}, v13 offset:{t*32}" if t < 32 else f"ds_read_b128 {vr(b+4,4)}, v{6+t-32}")
        def mm(t):
            b = RG + 8 * (t % 4)
            a(f"v_mfma_f32_32x32x16_bf16 {vr(AM,16)}, {vr(b,4)}, {vr(b+4,4)}, {'0' if t == 0 else vr(AM,16)}")
        def stage(t0, t1):
            for t in range(t0, min(t0 + 3, t1)):
                rdm(t)
            for t in range(t0, t1):
                if t + 3 < t1:
                    rdm(t + 3)
                a(f"s_waitcnt lgkmcnt({3 * (min(t + 4, t1) - t - 1)})")
                mm(t)
        self.wait(C0A, 2, sleep=0)
        self.stamp(4, 3)
        stage(0, 12)
        self.add1(CE)
        self.wait(C0B, 2, sleep=0)
        flags = f"buffer_load_dword v84, v28, {SWS}, s93 offen sc1"
        stage(12, 20)
        self.wait(C0D, 2, sleep=0)
        stage(20, 28)
        self.wait(C0C, 2, sleep=0)
        self.stamp(9, 3)
        a(flags)
        seq = []
        xs = list(range(18))
        for t in range(28, 36):
            seq.append(("m", t))
            for _ in range(3 if t < 30 else 2):
                seq.append(("x", xs.pop(0)))
        assert not xs
        cost = lambda it: 3 if it[0] == "m" else 2
        def issue(it):
            if it[0] == "m": rdm(it[1])
            else: wrd("v16", "v12", it[1], RX + 4 * (it[1] % 3))
        AH = 3
        for it in seq[:AH]:
            issue(it)
        a(f"ds_read_b32 v31, v2 offset:{CE}")
        for i, it in enumerate(seq):
            ahead = sum(cost(x) for x in seq[i + 1:i + AH]) + (1 if i < AH else 0)
            a(f"s_waitcnt lgkmcnt({ahead})")
            if it[0] == "m":
                mm(it[1])
            else:
                T = it[1]
                a(f"v_mfma_f32_16x16x32_bf16 {vr(AXQ,4)}, {vr(RX+4*(T%3),4)}, {vr(XF+4*T,4)}, {'0' if T == 0 else vr(AXQ,4)}")
            if i + AH < len(seq):
                issue(seq[i + AH])
        self.stamp(8, 3)
        miss = a.label("KM")
        a("s_waitcnt vmcnt(0)")
        self.cmp_regs([84], sTAG)
        a(f"s_cselect_b32 s89, 1, 0\ns_cbranch_scc0 {miss}")
        self.kv_loads()
        a(f"{miss}:")
        self.stamp(11, 3)
        ok = a.label("CEOK")
        a(f"v_readfirstlane_b32 s73, v31\ns_cmp_ge_u32 s73, 4\ns_cbranch_scc1 {ok}")
        self.wait(CE, 4, sleep=0)
        a(f"{ok}:")
        a(f"ds_write_b32 v26, v27\nv_cvt_pk_bf16_f32 v{AXQ}, v{AXQ}, v{AXQ+1}\nv_cvt_pk_bf16_f32 v{AXQ+1}, v{AXQ+2}, v{AXQ+3}")
        a(f"s_mov_b32 exec_hi, 0\nds_write2_b32 v25, v{AXQ}, v{AXQ+1} offset0:0 offset1:1\ns_mov_b64 exec, -1")
        m1 = a.label("QM1"); md = a.label("QMD")
        a(f"s_bitcmp1_b32 {sW}, 0\ns_cbranch_scc1 {m1}")
        off = lambda c: (c // 18) * 3072 + (c % 18) * 2
        for m in range(2):
            if m == 1:
                a(f"s_branch {md}\n{m1}:")
            for k in range(8):
                c0 = 32 * m + 8 * (k // 2) + 2 * (k % 2)
                d = off(c0 + 4) - off(c0)
                assert d in (8, 3044)
                a(f"v_cvt_pk_bf16_f32 v{AM+k}, v{AM+2*k}, v{AM+2*k+1}")
                a(f"ds_write_b32 {'v23' if d == 8 else 'v24'}, v{AM+k} offset:{off(c0)}")
        a(f"{md}:")
        self.add1(C1)
        have = a.label("KH")
        a(f"s_cmp_eq_u32 s89, 1\ns_cbranch_scc1 {have}")
        self.poll(flags, [84], sleep=12)
        self.kv_loads()
        a(f"{have}:")
        self.stamp(10, 3); self.stamp(10)
        a(f"s_setprio 2\ns_mov_b32 s99, {OOB}\nv_mov_b32 v232, v2")

    def panel_setup(self, nw, va=14):
        self.a(f"""
v_lshrrev_b32 v{va}, 2, v0
v_mul_u32_u24 v{va}, 1152, v{va}
v_and_b32 v{va+1}, 3, v0
v_lshl_add_u32 v{va}, v{va+1}, 4, v{va}
v_mul_u32_u24 v{va+1}, 1152, v0
s_and_b32 s73, {sW}, {nw-1}
s_mul_i32 s84, s73, {16*1152}
s_add_u32 s84, s84, s95
s_lshl_b32 s85, s73, 10
""")

    def panel_loads(self, srd, l0, l1, lx, padded, end, nw, va=14, rotate=False):
        a = self.a
        lp = a.label("PNL")
        if rotate:
            a(f"s_lshr_b32 s73, {sP}, 3\ns_mul_i32 s82, s73, {8*1024}\ns_add_u32 s85, s85, s82\ns_mul_i32 s82, s73, {8*16*1152}\ns_add_u32 s84, s84, s82\ns_mov_b32 s88, {end//nw - 1}")
        a(f"""
{lp}:
s_add_u32 m0, s85, {l0}
s_add_u32 s83, s84, 128
buffer_load_dwordx4 v{va}, {srd}, s84 offen lds
s_add_u32 m0, s85, {l1 - 64}
s_lshr_b32 s82, s85, 2
buffer_load_dwordx4 v{va}, {srd}, s84 offen offset:64 lds
""")
        if padded:
            a("s_lshr_b32 s73, s85, 13\ns_lshl_b32 s73, s73, 7\ns_add_u32 s82, s82, s73")
        a(f"""
s_add_u32 m0, s82, {lx}
s_mov_b64 exec, 0xffff
buffer_load_dwordx4 v{va+1}, {srd}, s83 offen lds
s_mov_b64 exec, -1
s_add_u32 s85, s85, {1024*nw}
s_add_u32 s84, s84, {16*nw*1152}
s_cmp_lt_u32 s85, {1024*end}
""")
        if rotate:
            a(f"s_cselect_b32 s82, 0, {1024*end}\ns_cselect_b32 s83, 0, {16*1152*end}\ns_sub_u32 s85, s85, s82\ns_sub_u32 s84, s84, s83\ns_sub_u32 s88, s88, 1\ns_cbranch_scc0 {lp}")
        else:
            a(f"s_cbranch_scc1 {lp}")

    def l_front(self):
        a = self.a
        a(f"""
s_load_dword {sTAG}, s[26:27], {WS_EPOCH}
v_lshl_add_u32 v5, v0, 2, v2
v_mov_b32 v6, 0
ds_write_b32 v5, v6 offset:2048
v_lshlrev_b32 v5, 3, v4
v_add_u32 v5, {L_CT - 2048}, v5
v_mov_b32 v7, 0
ds_write_b64 v5, v[6:7]
s_sub_u32 s99, {sW}, 4
v_and_b32 v18, 31, v0
v_lshrrev_b32 v19, 5, v0
s_lshl_b32 s89, s99, 3
s_add_u32 s89, s89, {sJ}
s_cmp_ge_u32 s89, 18
s_cselect_b32 s89, 99, s89
v_bfe_u32 v20, v0, 2, 1
v_lshlrev_b32 v20, 4, v20
v_bfe_u32 v21, v0, 3, 2
v_lshl_add_u32 v20, v21, 2, v20
v_and_b32 v21, 3, v0
v_add_u32 v20, v20, v21
""")
        if "ipf" in self.opts:
            n4 = a.label("NPF")
            a(f"""
s_cmp_lg_u32 {sW}, 6
s_cbranch_scc1 {n4}
s_getpc_b64 s[64:65]
L_pc0:
s_sub_u32 s64, s64, L_pc0-{NAME}_kernel
s_subb_u32 s65, s65, 0
s_mov_b32 s66, L_end-{NAME}_kernel
s_mov_b32 s67, 0x20000
s_lshr_b32 s73, s2, 3
v_lshlrev_b32 v8, 12, v0
s_lshl_b32 s73, s73, 7
buffer_load_dword v9, v8, {STB}, s73 offen
s_getpc_b64 s[64:65]
s_add_u32 s64, s64, spectral_tables@rel32@lo+4
s_addc_u32 s65, s65, spectral_tables@rel32@hi+12
s_mov_b32 s66, {2*self.NTAB*1024}
s_nop 1
buffer_load_dword v10, v8, {STB}, s73 offen
{n4}:
""")
        self.srd(SWS, 26, WS_SIZE)
        self.srd(SWQ, 12, 663552)
        FPRE = self.opt("fpre", 8)
        def fsetup():
            a(f"""
s_lshl_b32 s73, s89, 5
v_add_u32 v44, s73, v18
v_lshrrev_b32 v45, 1, v44
v_and_b32 v46, 1, v44
v_cmp_eq_u32 vcc, 1, v44
v_mov_b32 v47, 288
v_cndmask_b32 v45, v45, v47, vcc
v_cndmask_b32 v46, v46, 0, vcc
v_and_b32 v47, 1, v45
v_lshlrev_b32 v47, 31, v47
v_or_b32 v17, 1.0, v47
v_cvt_f32_u32 v45, v45
v_cvt_f32_u32 v46, v46
v_mul_f32 v45, {f32bits(1/576):#x}, v45
v_mul_f32 v46, 0x3e800000, v46
v_lshlrev_b32 v47, 3, v19
v_cvt_f32_u32 v47, v47
v_fma_f32 v46, v47, v45, v46
v_mul_f32 v55, 0x41800000, v45
""")
            for jj in range(8):
                a(f"s_mov_b32 s73, {f32bits(jj):#x}\nv_fma_f32 v{56+jj}, s73, v45, v46")
        def fgen(t):
            if t:
                a(f"s_mov_b32 s73, {f32bits(t):#x}")
            for jj in range(8):
                if t:
                    a(f"v_fma_f32 v{64+jj}, s73, v55, v{56+jj}\nv_cos_f32 v{64+jj}, v{64+jj}")
                else:
                    a(f"v_cos_f32 v{64+jj}, v{56+jj}")
            for k in range(4):
                a(f"v_cvt_pk_bf16_f32 v{104+4*t+k}, v{64+2*k}, v{65+2*k}")
        npre = a.label("NPRE"); n7 = a.label("NW7")
        a(f"v_mov_b32 v23, 0\ns_mov_b32 s98, {OOB}")
        if "wearly" in self.opts:
            a(f"s_cmp_lg_u32 {sW}, 7\ns_cbranch_scc1 {n7}")
            self.wt_loads()
        a(f"{n7}:\ns_cmp_eq_u32 s89, 99\ns_cbranch_scc1 {npre}")
        fsetup()
        for t in range(FPRE):
            fgen(t)
        a(f"{npre}:\ns_waitcnt lgkmcnt(0)")
        self.tag()
        a("s_barrier")
        wqd = a.label("WQD")
        a(f"s_cmp_lt_u32 {sW}, 6\ns_cbranch_scc1 {wqd}")
        self.panel_setup(2)
        self.panel_loads(SWQ, L_WQ0, L_WQ1, L_P2Q, True, 20, 2)
        a("s_waitcnt vmcnt(12)")
        self.add1(C0A)
        self.panel_loads(SWQ, L_WQ0, L_WQ1, L_P2Q, True, 26, 2)
        self.wait(CK, 4, sleep=0)
        self.panel_loads(SWQ, L_WQ0, L_WQ1, L_P2Q, True, 36, 2)
        self.stamp(6, 3)
        a("s_waitcnt vmcnt(24)")
        self.add1(C0B)
        a("s_waitcnt vmcnt(12)")
        self.add1(C0D)
        if "wmid" in self.opts:
            n7 = a.label("NM7"); d7 = a.label("DM7")
            a(f"s_cmp_lg_u32 {sW}, 7\ns_cbranch_scc1 {n7}")
            self.wt_loads()
            a(f"s_waitcnt vmcnt(16)\ns_branch {d7}\n{n7}:\ns_waitcnt vmcnt(0)\n{d7}:")
        else:
            a("s_waitcnt vmcnt(0)")
        self.add1(C0C)
        self.stamp(1, 3)
        a(f"{wqd}:")
        nod = a.label("NOD")
        a(f"s_cmp_eq_u32 s89, 99\ns_cbranch_scc1 {nod}")
        for t in range(FPRE, 18):
            fgen(t)
        self.stamp(9, 3)
        a(f"""
v_mul_u32_u24 v25, {XP}, v20
v_lshl_add_u32 v25, v19, 4, v25
v_lshrrev_b32 v22, 1, v20
v_xor_b32 v22, v22, v19
v_and_b32 v22, 7, v22
v_lshlrev_b32 v22, 4, v22
v_lshl_add_u32 v6, v20, 7, v22
v_add_u32 v6, {L_X2}, v6
v_xor_b32 v7, 32, v6
v_xor_b32 v8, 64, v6
v_xor_b32 v9, 0x60, v6
v_lshlrev_b32 v22, 12, v18
v_lshl_add_u32 v22, v19, 5, v22
s_lshl_b32 s90, s89, 17
s_lshl_b32 s73, {sP}, 7
s_add_u32 s90, s90, s73
s_add_u32 s90, s90, {WS_T}
""")
        RG = 44
        def frag(t, n, q):
            return vr(RG + 16 * (t % 3) + 8 * n + 4 * q, 4)
        def rd(t):
            for n in range(2):
                for q in range(2):
                    ks = t + 18 * q
                    if ks < 32:
                        a(f"ds_read_b128 {frag(t,n,q)}, v25 offset:{n*32*XP + ks*32}")
                    else:
                        a(f"ds_read_b128 {frag(t,n,q)}, v{6+ks-32} offset:{n*4096}")
        def dft(t0, t1):
            for t in range(t0, min(t0 + 2, t1)):
                rd(t)
            for t in range(t0, t1):
                if t + 2 < t1:
                    rd(t + 2)
                a(f"s_waitcnt lgkmcnt({4 * (min(t+3, t1) - t - 1)})")
                for n in range(2):
                    for q in range(2):
                        acc = vr(176 + 32 * n + 16 * q, 16)
                        a(f"v_mfma_f32_32x32x16_bf16 {acc}, {frag(t,n,q)}, {vr(104+4*t,4)}, {'0' if t == 0 else acc}")
        DPRE = self.opt("dpre", 10)
        if DPRE:
            self.wait(CK, 4)
            dft(0, DPRE)
        a("s_setprio 3")
        self.wait(C1, 4)
        self.stamp(3, 3)
        dft(DPRE, 18)
        self.stamp(8, 3)
        self.wait(CV, 4, sleep=2)
        for n in range(2):
            b = 176 + 32 * n
            for r in range(16):
                a(f"v_fma_f32 v{b+r}, v17, v{b+16+r}, v{b+r}")
            for k in range(8):
                a(f"v_cvt_pk_bf16_f32 v{b+k}, v{b+2*k}, v{b+2*k+1}")
            a(f"buffer_store_dwordx4 {vr(b,4)}, v22, {SWS}, s90 offen offset:{64*n} sc1")
            a(f"buffer_store_dwordx4 {vr(b+4,4)}, v22, {SWS}, s90 offen offset:{64*n+16} sc1")
        a(f"{nod}:")
        n6 = a.label("N6"); n7 = a.label("N7")
        a(f"s_cmp_eq_u32 {sW}, 7\ns_cbranch_scc1 {n7}\ns_cmp_lg_u32 {sW}, 6\ns_cbranch_scc1 {n6}\ns_setprio 3")
        self.wait(CV, 4, sleep=2)
        self.poison()
        a(f"{n6}:\ns_waitcnt vmcnt(0)")
        self.add1(CD)
        self.stamp(4, 3); self.stamp(4)
        a(f"s_cmp_eq_u32 {sW}, 6\ns_cbranch_scc1 {n7}")
        self.srd(SWO, 18, 663552)
        self.panel_setup(2)
        self.wait(CD, 3, sleep=2)
        if "wogate" in self.opts:
            self.wait(CR, 4, sleep=6, idle=True)
        a(f"s_setprio {self.opt('wop', 2)}")
        self.panel_loads(SWO, L_WO0, L_WO1, L_WOX, False, 36, 2, rotate=True)
        self.stamp(10)
        a("s_waitcnt vmcnt(0)")
        self.add1(S3)
        a(f"{n7}:")

    def g_gen(self):
        a = self.a
        N = 1.0 / (M.S * M.D)
        skip = a.label("GS"); nx = a.label("GNX"); nk = a.label("GNK")
        assert all((f * 1821) >> 16 == f // 36 for f in range(864))
        assert all((f * 21846) >> 16 == f // 3 for f in range(24))
        a(f"""
s_mov_b32 s99, {OOB}
s_cmp_ge_u32 s2, 216
s_cbranch_scc1 {skip}
s_lshl_b32 s90, s2, 2
s_lshl_b32 s99, s2, 12
s_add_u32 s99, s99, {WS_G}
s_mul_i32 s91, s90, 1821
s_lshr_b32 s91, s91, 16
s_mul_i32 s73, s91, 36
s_sub_u32 s92, s90, s73
s_mul_i32 s93, s91, 21846
s_lshr_b32 s93, s93, 16
s_mul_i32 s73, s93, 3
s_sub_u32 s91, s91, s73
s_mul_i32 s93, s93, 72
s_lshl_b32 s73, s91, 5
s_add_u32 s93, s93, s73
v_mov_b32 v44, v20
s_cmp_lg_u32 s91, 2
s_cbranch_scc1 {nx}
v_mov_b32 v44, v18
{nx}:
v_add_u32 v44, s93, v44
s_lshl_b32 s73, s92, 3
v_lshl_add_u32 v45, v19, 2, s73
v_mul_u32_u24 v45, v45, v44
v_mul_u32_u24 v47, 5, v44
s_mov_b32 s73, {f32bits(1/576):#x}
s_mov_b32 s93, {f32bits(2*N):#x}
""")
        for fr in range(4):
            for cq in range(4):
                a(f"v_cvt_f32_u32 v46, v45\nv_mul_f32 v46, s73, v46\nv_fract_f32 v46, v46")
                a(f"v_cos_f32 v{48+2*cq}, v46\nv_sin_f32 v{49+2*cq}, v46")
                a("v_add_u32 v45, v45, v44" if cq < 3 else "v_add_u32 v45, v45, v47")
            for cq in range(4):
                a(f"v_mul_f32 v{48+2*cq}, s93, v{48+2*cq}\nv_mul_f32 v{49+2*cq}, s93, -v{49+2*cq}")
            if fr == 0:
                a(f"""
s_cmp_lg_u32 s92, 0
s_cbranch_scc1 {nk}
s_mov_b32 exec_hi, 0
v_mov_b32 v48, {f32bits(N):#x}
v_lshlrev_b32 v49, 31, v44
v_or_b32 v49, v48, v49
s_mov_b64 exec, -1
{nk}:
""")
            for k in range(4):
                a(f"v_cvt_pk_bf16_f32 v{240+4*fr+k}, v{48+2*k}, v{49+2*k}")
        a(f"{skip}:")

    WB = 112

    def poison(self):
        a = self.a
        a(f"v_lshlrev_b32 v24, 4, v0\nv_mov_b32 v28, -1\nv_mov_b32 v29, -1\nv_mov_b32 v30, -1\nv_mov_b32 v31, -1")
        a(f"s_mul_i32 s90, {sP}, {8*9216}\ns_add_u32 s90, s90, {WS_OF}\ns_mul_i32 s91, {sJ}, 9216\ns_add_u32 s91, s91, s90\ns_add_u32 s91, s91, 8192")
        a(f"buffer_store_dwordx4 v[28:31], v24, {SWS}, s91 offen sc1\ns_lshl_b32 s73, {sJ}, 10\ns_add_u32 s90, s90, s73")
        for i in range(8):
            a(f"buffer_store_dwordx4 v[28:31], v24, {SWS}, s90 offen sc1\ns_add_u32 s90, s90, 9216")

    def wt_loads(self):
        a = self.a
        self.srd(SWR, 6, 2048 * 578)
        self.srd(SWI, 8, 2048 * 578)
        a(f"""
v_and_b32 v26, 7, v0
v_lshrrev_b32 v27, 3, v0
v_mul_u32_u24 v22, 578, v26
v_mad_u32_u24 v22, v27, 18, v22
s_lshr_b32 s93, s2, 6
s_bfe_u32 s92, s2, 0x20004
s_and_b32 s88, s2, 15
s_lshl_b32 s90, s88, 7
s_lshl_b32 s73, s92, 3
s_add_u32 s90, s90, s73
s_mul_i32 s90, s90, 578
s_mul_i32 s73, s93, 144
s_add_u32 s90, s90, s73
""")
        for jr in range(4):
            for ri, srd in enumerate((SWR, SWI)):
                b = self.WB + 24 * ri + 6 * jr
                a(f"buffer_load_dwordx4 {vr(b,4)}, v22, {srd}, s90 offen\nbuffer_load_dword v{b+4}, v22, {srd}, s90 offen offset:16")
            if jr < 3:
                a(f"s_add_u32 s90, s90, {32*578}")
        a(f"""
s_mov_b32 s73, {9*8192}
v_mul_lo_u32 v23, v27, s73
v_lshl_add_u32 v23, v26, 4, v23
s_mul_i32 s98, s93, {72*8192}
s_lshl_b32 s73, s88, 8
s_add_u32 s98, s98, s73
s_and_b32 s73, s92, 1
s_lshl_b32 s73, s73, 7
s_add_u32 s98, s98, s73
s_lshr_b32 s73, s92, 1
s_lshl_b32 s73, s73, 12
s_add_u32 s98, s98, s73
s_add_u32 s98, s98, {WS_WT}
""")

    def wt_stores(self):
        a = self.a
        last = a.label("WL")
        a("s_mov_b32 s92, 0x05040100\ns_mov_b32 s93, 0x07060302")
        for x in range(10):
            if x == 9:
                a(f"s_cmp_lt_u32 s2, 192\ns_cbranch_scc1 {last}\ns_mov_b32 exec_lo, 0\ns_mov_b32 exec_hi, 0xff000000")
            t = self.WB + 48 + 4 * (x % 3)
            for ri in range(2):
                for pr in range(2):
                    lo = self.WB + 24 * ri + 12 * pr + x // 2
                    a(f"v_perm_b32 v{t+2*ri+pr}, v{lo+6}, v{lo}, {'s93' if x % 2 else 's92'}")
            a(f"buffer_store_dwordx4 {vr(t,4)}, v23, {SWS}, s98 offen sc1\ns_add_u32 s98, s98, 8192")
        a(f"s_mov_b64 exec, -1\n{last}:")

    def s_flag(self):
        a = self.a
        self.g_gen()
        a("s_setprio 3\nv_lshlrev_b32 v24, 4, v0")
        self.wait(CV, 4, sleep=2)
        self.stamp(3, 3)
        if "wearly" not in self.opts and "wmid" not in self.opts:
            self.wt_loads()
        a("s_waitcnt vmcnt(0)")
        self.wt_stores()
        for fr in range(4):
            a(f"buffer_store_dwordx4 {vr(240+4*fr,4)}, v24, {SWS}, s99 offen offset:{1024*fr} sc1")
        self.stamp(10, 3)
        self.flag4("s91", "s2", WS_FS)
        a("s_waitcnt vmcnt(0)")
        self.stamp(11, 3)
        self.wait(CD, 3, sleep=2)
        self.set_flag("s91")
        self.add1(CW)
        self.stamp(6); self.stamp(2, 3)
        self.stage2_tables()

    def attention(self):
        a = self.a
        K0, KX0, V0, S0, O0, Q0, QX0 = self.AK, self.AKX, self.AV, self.AS, self.AO, self.AQ, self.AQX
        a(f"""
v_and_b32 v84, 31, v0
v_lshrrev_b32 v85, 5, v0
s_lshr_b32 s88, {sW}, 2
s_mul_i32 s73, s88, 6144
s_add_u32 s73, s73, {L_QS}
v_mul_u32_u24 v{self.vQ}, 48, v84
v_add_u32 v{self.vQ}, s73, v{self.vQ}
v_lshl_add_u32 v{self.vQX}, v85, 2, v{self.vQ}
v_add_u32 v{self.vQX}, 32, v{self.vQX}
v_lshl_add_u32 v{self.vQ}, v85, 4, v{self.vQ}
s_and_b32 s73, {sW}, 3
s_mul_i32 s73, s73, 2560
s_add_u32 s73, s73, {L_EX}
v_lshl_add_u32 v{self.vEX}, v0, 4, s73
s_add_u32 s73, s73, 2048
v_lshl_add_u32 v{self.vEX2}, v0, 3, s73
s_lshl_b32 s73, s88, 10
s_add_u32 s73, s73, {L_CT}
v_lshl_add_u32 v{self.vCT}, v0, 2, s73
s_mul_i32 s73, s88, {CN - C1}
v_add_u32 v86, s73, v2
v_mov_b32 v{QX0+1}, 0
v_mov_b32 v{QX0+2}, 0
""")
        self.wait(C1, 4, sleep=0)
        self.stamp(5); self.stamp(5, 3); self.stamp(1, 5)
        qmain = lambda q: f"ds_read_b128 {vr(Q0,4)}, v{self.vQ} offset:{1536*(q%4)}"
        qx = lambda q: f"ds_read_b32 v{QX0}, v{self.vQX} offset:{1536*(q%4)}\nds_read_b32 v{QX0+3}, v{self.vQX} offset:{1536*(q%4)}"
        a(qmain(0)); a(qx(0))
        issued = []
        for t in range(self.NFIRST):
            issued += [("K", t), ("X", t), ("V0", t), ("V1", t)]
        state = {"done": 0}
        def need(*keys):
            idx = max(issued.index(k) for k in keys) + 1
            if idx > state["done"]:
                state["done"] = idx
                return [f"s_waitcnt vmcnt({len(issued) - idx})"]
            return []
        def reload(kind, t):
            ins = self.ld_k(8 + t, t) if kind == "K" else self.ld_v(8 + t, t)
            issued.extend([("K", 8 + t), ("X", 8 + t)] if kind == "K" else [("V0", 8 + t), ("V1", 8 + t)])
            return list(ins)
        sreg = lambda g: S0 + 16 * (g % 2)
        oreg = lambda ps: O0 + 10 * (ps % 4)
        def qk16(g):
            return f"v_mfma_f32_32x32x16_bf16 {vr(sreg(g),16)}, {vr(K0+4*(g%8),4)}, {vr(Q0,4)}, 0"
        def qkx(g):
            return f"v_mfma_f32_32x32x8_bf16 {vr(sreg(g),16)}, {vr(KX0+2*((g%8)//2),2)}, {vr(QX0+2*(g%2),2)}, {vr(sreg(g),16)}"
        def pv(g, u):
            o = vr(oreg(g // 8), 16)
            c = "0" if (g // 8 < 4 and g % 8 == 0 and u == 0) else o
            return f"v_mfma_f32_32x32x16_bf16 {o}, {vr(V0+8*(g%8)+4*u,4)}, {vr(sreg(g)+4*u,4)}, {c}"
        kt = lambda g: (g % 8) + (8 if g >= 32 else 0)
        def kneed(g):
            t = kt(g)
            return need(("K", t), ("X", t), ("X", t ^ 1)) if ("X", t ^ 1) in issued else need(("K", t), ("X", t))
        def export(q):
            o = O0 + 10 * q
            return [f"ds_write_b128 v{self.vEX}, {vr(o,4)} offset:{10240*q}", f"ds_write_b128 v{self.vEX}, {vr(o+4,4)} offset:{10240*q+1024}",
                    f"ds_write_b64 v{self.vEX2}, {vr(o+8,2)} offset:{10240*q}",
                    f"ds_add_u32 v{self.vCT}, v3 offset:{256*q}"]
        for x in kneed(0) + ["s_waitcnt lgkmcnt(0)", qk16(0), qkx(0)]:
            a(x)
        for g in range(64):
            ps, t = divmod(g, 8)
            s = sreg(g)
            e = lambda i: f"v_exp_f32 v{s+i}, v{s+i}"
            c = lambda k: f"v_cvt_pk_bf16_f32 v{s+k}, v{s+2*k}, v{s+2*k+1}"
            seq = [e(0), e(1)]
            if 32 <= g < 39:
                seq += need(("V1", kt(g)))
            if g > 0:
                seq += need(("V1", kt(g - 1))) + [pv(g - 1, 1)]
                if g - 1 in range(24, 32):
                    seq += reload("V", (g - 1) % 8)
            seq += [e(2), e(3), c(0), e(4), c(1)]
            last = g == 63
            if not last:
                seq += kneed(g + 1) + (["s_waitcnt lgkmcnt(0)"] if t == 7 else []) + [qk16(g + 1)]
                if t == 6 and ps < 7:
                    seq.append(qmain(ps + 1))
            seq += [e(5), e(6), e(7), c(2), e(8), c(3)]
            if not last:
                seq.append(qkx(g + 1))
                if t == 6 and ps < 7:
                    seq.append(qx(ps + 1))
                if g + 1 in range(24, 32):
                    seq += reload("K", (g + 1) % 8)
            if g + self.NFIRST < 8:
                issued.extend([(k, g + self.NFIRST) for k in ("K", "X", "V0", "V1")])
            tail = [e(9), e(10), e(11), c(4), e(12), c(5)] + need(("V0", kt(g))) + [pv(g, 0), e(13), e(14), e(15), c(6), c(7)]
            if g + self.NFIRST < 8:
                tn = g + self.NFIRST
                ins = list(self.ld_k(tn, tn) + self.ld_v(tn, tn))
                for k, i in enumerate((9, 10, 11, 12)):
                    tail.insert(tail.index(e(i)) + 1, ins[k])
                if tn == 7:
                    tail.append(f"s_mov_b64 exec, 1\nds_add_u32 v2, v3 offset:{CV}\ns_mov_b64 exec, -1")
            if ps >= 5 and t == 0:
                ex = export(ps - 5)
                for k, i in enumerate((9, 10, 11, 12)):
                    tail.insert(tail.index(e(i)) + 1, ex[k])
            if g == 1:
                nf = a.label("NYF")
                tail.append(f"s_cmp_eq_u32 s99, {OOB}\ns_cbranch_scc1 {nf}\ns_waitcnt vmcnt(8)\ns_mov_b64 exec, 1\nds_add_rtn_u32 v233, v232, v3 offset:{YA}\n"
                            f"v_mov_b32 v1, {sTAG}\ns_waitcnt lgkmcnt(0)\nv_readfirstlane_b32 s73, v233\ns_cmp_lg_u32 s73, 1\ns_cmov_b32 s99, {OOB}\n"
                            f"buffer_store_dword v1, off, {SWS}, s99 sc1\ns_mov_b64 exec, -1\ns_setprio 1\n{nf}:")
            if g == 22:
                tail.append("s_setprio 3")
            if g == 32 and "wogate" in self.opts:
                tail.append(f"s_mov_b64 exec, 1\nds_add_u32 v2, v3 offset:{CR}\ns_mov_b64 exec, -1")
            if g == 32:
                lo = a.label("PLO")
                tail.append(f"s_setprio 1\ns_cmp_ge_u32 {sW}, 4\ns_cbranch_scc1 {lo}\ns_setprio 2\n{lo}:")
            if g == 36:
                tail.append(f"ds_read_b32 v87, v86 offset:{C1}")
            if g == 38:
                ok = a.label("CNOK")
                tail.append(f"s_waitcnt lgkmcnt(0)\nv_readfirstlane_b32 s73, v87\ns_cmp_ge_u32 s73, 4\ns_cbranch_scc1 {ok}")
                tail.append(("wait", ok))
            for x in seq + tail:
                if isinstance(x, tuple):
                    self.wait(C1, 4, sleep=2, base="v86")
                    a(f"{x[1]}:")
                else:
                    a(x)
            if g == 7:
                self.stamp(11)
            if t == 7:
                self.stamp(2 + ps, 5)
        a(pv(63, 1))
        self.norm_setup(1)
        ex = export(3)
        for x in ex[:3]:
            a(x)
        a(f"ds_add_rtn_u32 v1, v{self.vCT}, v3 offset:768")

    T64, T32A, TW1, TW2, T32B, NTAB = 0, 24, 27, 35, 43, 49
    NPRE = 35

    def make_tables(self):
        L = np.arange(64); Lm = (L & 15)[:, None]; Lg = (L >> 4)[:, None]
        jj = np.arange(8)[None, :]; r = np.arange(4)[None, :]
        def pk(v):
            b = M.bf(v.astype(np.float32)).astype(np.uint32)
            return (b[:, 0::2] | (b[:, 1::2] << 16)).astype(np.uint32)
        parts = lambda z: (z.real, z.imag, -z.imag)
        w = lambda n, x, y: np.exp(-2j * np.pi * ((x * y) % n) / n)
        f32 = lambda v: v.astype(np.float32).view(np.uint32)
        out = []
        for H in range(2):
            for k in range(3):
                for t in range(4):
                    for ks in range(2):
                        out.append(pk(parts(w(64, 16 * (t ^ (2 * H)) + Lm, 32 * (ks ^ H) + 16 * (jj >> 2) + 4 * Lg + (jj & 3)))[k]))
            for k in range(3):
                out.append(pk(parts(w(32, 8 * Lg + jj, 16 * H + Lm))[k]))
            for t in range(4):
                z = w(2048, 16 * (t ^ (2 * H)) + 4 * Lg + r, 16 * H + Lm)
                out += [f32(z.real), f32(z.imag)]
            for t in range(4):
                z = np.conj(w(2048, 16 * (t ^ (2 * H)) + Lm, 16 * H + 4 * Lg + r))
                out += [f32(z.real), f32(z.imag)]
            for k in range(3):
                for at in range(2):
                    out.append(pk(parts(w(32, 8 * (Lm >> 2) + 4 * at + (Lm & 3), 16 * (H ^ (jj >> 2)) + 4 * Lg + (jj & 3)))[k]))
        return np.concatenate([o.reshape(-1) for o in out])

    def tload(self, frag, dst):
        if self.tgroup != frag // 4:
            self.tgroup = frag // 4
            self.a(f"s_add_u32 s88, s87, {(frag // 4) * 4096}")
        self.a(f"buffer_load_dwordx4 {vr(dst,4)}, v5, {STB}, s88 offen offset:{(frag % 4) * 1024}")

    def stage2_tables(self):
        a = self.a
        a(f"""
s_getpc_b64 s[64:65]
s_add_u32 s64, s64, spectral_tables@rel32@lo+4
s_addc_u32 s65, s65, spectral_tables@rel32@hi+12
s_mov_b32 s66, {2*self.NTAB*1024}
s_mov_b32 s67, 0x20000
v_lshlrev_b32 v5, 4, v0
s_and_b32 s86, {sW}, 1
s_mul_i32 s87, s86, {self.NTAB*1024}
""")
        self.tgroup = None
        for f in range(24):
            self.tload(self.T64 + f, 80 + 4 * f)
        for f in range(3):
            self.tload(self.T32A + f, 240 + 4 * f)
        for f in range(8):
            self.tload(self.TW1 + f, 16 + 4 * f)

    def stage2(self):
        a = self.a
        A, P, Q, TW, WW, PK, TMP = 80, 48, 176, 16, 208, 240, 8
        self.tgroup = None
        a(f"""
v_and_b32 v6, 15, v0
v_lshlrev_b32 v6, 6, v6
v_lshrrev_b32 v7, 4, v0
v_lshl_add_u32 v6, v7, 4, v6
s_lshl_b32 s90, s89, 13
s_add_u32 s91, s90, 4096
s_cmp_eq_u32 s89, 288
s_cmov_b32 s90, 4096
s_cmov_b32 s91, {OOB}
s_cmp_eq_u32 s89, 0
s_cmov_b32 s91, {OOB}
s_lshl_b32 s73, s86, 11
s_add_u32 s90, s90, s73
s_add_u32 s91, s91, s73
s_lshl_b32 s85, s86, 12
s_sub_u32 s85, 2048, s85
s_lshr_b32 s73, {sW}, 1
s_and_b32 s73, s73, 1
s_xor_b32 s73, s73, 1
s_lshl_b32 s99, s73, 2
s_lshl_b32 s73, s73, 12
s_lshl_b32 s84, s86, 11
s_add_u32 s73, s73, s84
s_add_u32 s73, s73, {L_XCH}
v_add_u32 v7, s73, v5
s_sub_u32 s73, s73, s84
s_xor_b32 s84, s84, 0x800
s_add_u32 s84, s84, s73
""")
        cl = a.label("GC"); cg = a.label("CG"); ot = a.label("GO"); dn = a.label("GD")
        a(f"s_cmp_lg_u32 {sW}, 7\ns_cbranch_scc1 {ot}\ns_lshr_b32 s73, s2, 3\ns_cmp_lg_u32 s73, 16\ns_cbranch_scc1 {cl}")
        a(f"v_lshlrev_b32 v8, 7, v0\ns_mov_b32 s92, {WS_FS}\ns_sleep {self.opt('dw', 8)}")
        self.poll(f"buffer_load_dwordx4 v[12:15], v8, {SWS}, s92 offen sc1", [12, 13, 14, 15], sleep=4)
        a(f"s_and_b32 s92, s2, 7\ns_lshl_b32 s92, s92, 7\ns_add_u32 s92, s92, {WS_GOS}")
        self.set_flag("s92")
        a(f"s_branch {cg}\n{cl}:\ns_sleep {self.opt('d2', 32)}")
        self.go_wait(WS_GOS, 252, 8)
        a(f"{cg}:")
        self.add1(CG)
        a(f"s_branch {dn}\n{ot}:")
        self.wait(CG, 1, sleep=2, idle=True)
        a(f"s_waitcnt vmcnt(0)\n{dn}:")
        self.stamp(7)
        self.stamp(1, 2)
        a(f"s_add_u32 s92, s90, {WS_T}\ns_add_u32 s93, s91, {WS_T}\ns_add_u32 s82, s92, s85\ns_add_u32 s83, s93, s85")
        for t in range(4):
            for ri in range(2):
                so = (("s92", "s93"), ("s82", "s83"))[t >> 1][ri]
                a(f"buffer_load_dwordx4 {vr(WW+8*t+4*ri,4)}, v6, {SWS}, {so} offen offset:{1024*(t&1)} sc1")
        mf = lambda acc, x, y, first: a(f"v_mfma_f32_16x16x32_bf16 {vr(acc,4)}, {vr(x,4)}, {vr(y,4)}, {'0' if first else vr(acc,4)}")
        re = lambda base, t: base + 8 * t
        im = lambda base, t: base + 8 * t + 4
        for t in range(4):
            a(f"s_waitcnt vmcnt({6 - 2*t})")
            if t == 0: self.stamp(2, 2)
            mf(re(P, t), re(WW, t), PK, True); mf(im(P, t), re(WW, t), PK + 4, True)
            mf(re(P, t), im(WW, t), PK + 8, False); mf(im(P, t), im(WW, t), PK, False)
        a(f"s_lshl_b32 s92, s89, 13\ns_lshl_b32 s73, s86, 12\ns_add_u32 s92, s92, s73\ns_lshl_b32 s73, s86, 11\ns_add_u32 s92, s92, s73\ns_add_u32 s92, s92, {WS_WT}")
        a("s_add_u32 s82, s92, s85")
        for t in range(4):
            a(f"buffer_load_dwordx4 {vr(WW+8*t+4,4)}, v5, {SWS}, {('s92', 's82')[t >> 1]} offen offset:{1024*(t&1)} sc1")
        def cmul(x, c, dst):
            for t in range(4):
                ops = []
                for h in range(2):
                    t0, t1 = TMP + 4 * h, TMP + 4 * h + 2
                    xr, xi, cr, ci = re(x, t) + 2 * h, im(x, t) + 2 * h, re(c, t) + 2 * h, im(c, t) + 2 * h
                    ops.append([f"v_pk_mul_f32 {vr(t0,2)}, {vr(xr,2)}, {vr(cr,2)}",
                                f"v_pk_mul_f32 {vr(t1,2)}, {vr(xr,2)}, {vr(ci,2)}",
                                f"v_pk_fma_f32 {vr(t0,2)}, {vr(xi,2)}, {vr(ci,2)}, {vr(t0,2)} neg_lo:[1,0,0] neg_hi:[1,0,0]",
                                f"v_pk_fma_f32 {vr(t1,2)}, {vr(xi,2)}, {vr(cr,2)}, {vr(t1,2)}",
                                f"v_cvt_pk_bf16_f32 v{dst(t,0)+h}, v{t0}, v{t0+1}",
                                f"v_cvt_pk_bf16_f32 v{dst(t,1)+h}, v{t1}, v{t1+1}"])
                for j in range(0, 6, 2):
                    for o in ops:
                        a(o[j]); a(o[j + 1])
        pkd = lambda t, part: PK + 8 * part + 2 * t
        ks_ = lambda part, ks: PK + 8 * part + 4 * ks
        t64 = lambda k, t, ks: A + 32 * k + 8 * t + 4 * ks
        self.stamp(3, 2)
        cmul(P, TW, pkd)
        self.stamp(4, 2)
        for f in range(8):
            self.tload(self.TW2 + f, TW + 4 * f)
        for t in range(4):
            for ks in range(2):
                mf(re(Q, t), t64(0, t, ks), ks_(0, ks), ks == 0); mf(im(Q, t), t64(1, t, ks), ks_(0, ks), ks == 0)
            for ks in range(2):
                mf(re(Q, t), t64(2, t, ks), ks_(1, ks), False); mf(im(Q, t), t64(0, t, ks), ks_(1, ks), False)
        self.stamp(5, 2)
        a("s_waitcnt vmcnt(8)")
        for t in range(4):
            b = WW + 8 * t
            for k in range(4):
                a(f"v_lshlrev_b32 v{b+2*k}, 16, v{b+4+k}\nv_and_b32 v{b+2*k+1}, 0xffff0000, v{b+4+k}" if k < 2 else "")
            a(f"v_and_b32 v{b+5}, 0xffff0000, v{b+6}\nv_lshlrev_b32 v{b+4}, 16, v{b+6}\nv_lshlrev_b32 v{b+6}, 16, v{b+7}\nv_and_b32 v{b+7}, 0xffff0000, v{b+7}")
        cmul(Q, WW, pkd)
        self.stamp(6, 2)
        for f in range(6):
            self.tload(self.T32B + f, WW + 4 * f)
        for t in (2, 3, 0, 1):
            for ks in range(2):
                mf(re(P, t), ks_(0, ks), t64(0, t, ks), ks == 0); mf(im(P, t), ks_(1, ks), t64(0, t, ks), ks == 0)
            for ks in range(2):
                mf(re(P, t), ks_(1, ks), t64(1, t, ks), False); mf(im(P, t), ks_(0, ks), t64(2, t, ks), False)
        self.stamp(7, 2)
        a("v_add_u32 v232, s99, v2")
        self.kv_addr()
        self.kv_loads()
        a(f"s_waitcnt vmcnt({6 + 4 * self.NFIRST})")
        cmul(P, TW, lambda t, part: (PK + 8 * t + 4 * part) if t < 2 else (Q + 4 * (t - 2) + 2 * part))
        a(f"ds_write_b128 v7, {vr(Q,4)}\nds_write_b128 v7, {vr(Q+4,4)} offset:1024")
        self.add1(XA, base="v232")
        a("v_add_u32 v7, s84, v5")
        self.wait(XA, 2, sleep=0, base="v232")
        for t in range(2):
            for part in range(2):
                a(f"ds_read_b64 {vr(PK+8*t+4*part+2,2)}, v7 offset:{1024*t+8*part}")
        self.stamp(8, 2)
        a(f"s_waitcnt vmcnt({4 * self.NFIRST}) lgkmcnt(0)")
        t32 = lambda k, at: WW + 8 * k + 4 * at
        out = lambda t, part, at: Q + 16 * t + 8 * part + 4 * at
        for t in range(2):
            for at in range(2):
                mf(out(t, 0, at), t32(0, at), PK + 8 * t, True); mf(out(t, 1, at), t32(0, at), PK + 8 * t + 4, True)
            for at in range(2):
                mf(out(t, 0, at), t32(1, at), PK + 8 * t + 4, False); mf(out(t, 1, at), t32(2, at), PK + 8 * t, False)
        a(f"s_add_u32 s92, s90, {WS_Y}\ns_add_u32 s93, s91, {WS_Y}")
        for t in range(2):
            for part in range(2):
                b = out(t, part, 0); d = 48 + 8 * t + 4 * part
                for k in range(4):
                    a(f"v_cvt_pk_bf16_f32 v{d+k}, v{b+2*k}, v{b+2*k+1}")
                a(f"buffer_store_dwordx4 {vr(d,4)}, v6, {SWS}, {'s93' if part else 's92'} offen offset:{1024*t} sc1")
        self.stamp(9, 2)
        self.flag4("s99", "s89", WS_FY)

    def l_mid(self):
        a = self.a
        go = a.label("S2"); no = a.label("NS2"); n7 = a.label("N7"); kv = a.label("LKV"); tb = a.label("TB"); nw = a.label("NW")
        a(f"s_mov_b32 s89, s2\ns_cmp_lg_u32 {sW}, 7\ns_cbranch_scc1 {n7}")
        self.s_flag()
        a(f"s_mov_b32 s89, s2\ns_branch {go}\n{n7}:")
        self.wait(CW, 1, sleep=4, idle=True)
        a(f"s_cmp_eq_u32 {sW}, 6\ns_cbranch_scc1 {tb}")
        a(f"""
s_add_u32 s89, s2, 192
s_sub_u32 s73, s2, 64
s_cmp_gt_u32 s73, 32
s_cbranch_scc1 {nw}
{tb}:
""")
        self.stage2_tables()
        a(f"{go}:")
        self.stage2()
        a(f"s_branch {kv}\n{nw}:")
        a(f"{no}:\ns_mov_b32 s99, {OOB}")
        self.kv_addr()
        self.kv_loads()
        a(f"s_setprio 1\n{kv}:")
        self.stamp(9)

    NT = 192

    def tail(self, mm, n):
        a = self.a
        ACC, ACX = 16, 32
        WF = 48
        NT = self.NT
        w = 2 * mm + n
        a("s_setprio 2")
        self.busy = 2
        self.norm_setup(1 - n)
        a(f"""
ds_read_b32 v11, v14 offset:{2304 + 128 * n}
v_and_b32 v37, 15, v0
v_lshrrev_b32 v38, 4, v0
v_lshl_add_u32 v14, v37, 2, v2
ds_read_b32 v36, v14 offset:{2304 + 128 * n + 64 * mm}
v_bfe_u32 v43, v0, 2, 2
v_and_b32 v44, 3, v0
v_bfe_u32 v46, v0, 4, 1
v_and_b32 v39, 1, v44
v_lshlrev_b32 v15, 2, v39
v_lshl_add_u32 v15, v46, 1, v15
v_lshrrev_b32 v14, 1, v44
v_add_u32 v45, v15, v14
v_lshlrev_b32 v45, 3, v45
v_add_u32 v45, {L_WO1 if mm else L_WO0}, v45
v_lshl_add_u32 v6, v13, 2, v43
v_lshl_add_u32 v6, v6, 6, v45
v_lshrrev_b32 v7, 1, v43
v_mul_u32_u24 v7, 72, v7
v_and_b32 v14, 1, v43
v_add3_u32 v40, v7, v14, 16
v_lshl_add_u32 v7, v40, 6, v45
v_mul_u32_u24 v14, 18432, v13
v_add_u32 v7, v7, v14
v_lshlrev_b32 v39, 3, v39
v_add_u32 v39, {L_WOX}, v39
v_mul_u32_u24 v15, 288, v46
v_add_u32 v15, v15, v40
v_lshl_add_u32 v15, v15, 4, v39
v_mul_u32_u24 v14, 72, v13
v_lshl_add_u32 v14, v46, 2, v14
v_add_u32 v14, v14, v43
v_lshl_add_u32 v14, v14, 4, v39
v_lshlrev_b32 v41, 4, v37
v_lshl_add_u32 v41, v46, 9, v41
v_lshl_add_u32 v47, v13, 10, v41
v_cmp_gt_u32 vcc, 32, v0
v_mov_b32 v40, {OOB}
v_add_u32 v41, {256 * mm}, v47
v_cndmask_b32 v42, v40, v41, vcc
v_cmp_gt_u32 vcc, 8, v37
s_nop 0
v_cndmask_b32 v47, v40, v47, vcc
s_waitcnt lgkmcnt(0)
v_sub_f32 v4, 1.0, v4
""")

        normalize = self.normalize

        def wrow(kind, k, hh, u):
            if kind == "m":
                return ("v6", (72 * k + 18 * hh + 8 * u) * 64) if k < 8 else ("v7", (144 * u + 18 * hh) * 64)
            return ("v14", (144 * k + 18 * hh + 8 * u) * 16) if k < 4 else ("v15", (144 * u + 18 * hh) * 16)

        def consume(i, probe):
            OB, AX = 192, 248
            hh = i >> 1
            seq = []
            for ks in range(9):
                seq.append(("m", ks))
                if ks % 2 == 1 or ks == 8: seq.append(("x", ks // 2))
            def rd(k):
                for u in range(2):
                    base, off = wrow("x", k, hh, u)
                    a(f"ds_read_b64_tr_b16 {vr(AX+4*(k%2)+2*u,2)}, {base} offset:{off}")
            rd(0); rd(1)
            if probe:
                l = a.label("CP"); d = a.label("CQ")
                a(f"{l}:\ns_add_u32 s90, s94, {i*9216 + 8192}\nbuffer_load_dwordx4 {vr(OB,4)}, v5, {SWS}, s90 offen sc1")
                a(f"s_waitcnt vmcnt(0)\nv_max_u32 v1, v{OB}, v{OB+1}\nv_max3_u32 v1, v1, v{OB+2}, v{OB+3}")
                a(f"v_cmp_eq_u32 vcc, -1, v1\ns_cmp_eq_u64 vcc, 0\ns_cbranch_scc1 {d}")
                a(f"s_sleep 8\ns_sub_u32 {sSPIN}, {sSPIN}, 1\ns_cbranch_scc0 {l}\ns_branch L_bail\n{d}:")
            l = a.label("CL"); d = a.label("CD")
            a(f"{l}:")
            chk = []
            oreg = lambda it: OB + (4 * it[1] if it[0] == "m" else 36 + 4 * it[1])
            for it in seq:
                kind, k = it
                if kind == "m" and k % 4 == 0:
                    a(f"s_add_u32 s90, s94, {i*9216 + 1024*k}")
                voff, last = ("v5", k == 8) if kind == "m" else ("v41" if k < 4 else "v42", k == 4)
                imm = 1024 * (k % 4) if kind == "m" else 2048 * (k % 2)
                a(f"buffer_load_dwordx4 {vr(oreg(it),4)}, {voff}, {SWS}, s90 offen offset:{imm} sc1")
                chk.append([oreg(it) + r for r in range(4 if last else 1)])
            flat = [(j, r) for j, rs in enumerate(chk) for r in rs]
            a(f"s_waitcnt vmcnt({len(chk) - 2})\nv_max_u32 v1, v{flat[0][1]}, v{flat[1][1]}")
            for p in range(2, len(flat), 2):
                a(f"s_waitcnt vmcnt({len(chk) - 1 - flat[p+1][0]})\nv_max3_u32 v1, v1, v{flat[p][1]}, v{flat[p+1][1]}")
            a(f"v_cmp_eq_u32 vcc, -1, v1\ns_cmp_eq_u64 vcc, 0\ns_cbranch_scc1 {d}")
            a(f"s_sleep {2 if i >= 6 else 8}\ns_sub_u32 {sSPIN}, {sSPIN}, 1\ns_cbranch_scc0 {l}\ns_branch L_bail\n{d}:")
            for kind, k in seq:
                if kind == "m":
                    a(f"v_mfma_f32_32x32x16_bf16 {vr(ACC,16)}, {vr(WF+36*hh+4*k,4)}, {vr(oreg((kind,k)),4)}, {vr(ACC,16)}")
                else:
                    a(f"s_waitcnt lgkmcnt({2 if k < 4 else 0})")
                    a(f"v_mfma_f32_16x16x32_bf16 {vr(ACX,4)}, {vr(AX+4*(k%2),4)}, {vr(oreg((kind,k)),4)}, {vr(ACX,4)}")
                    if k + 2 < 5:
                        rd(k + 2)

        normalize(2 * mm + (1 - n))
        self.stamp(2, 4)
        self.wait(S3, 2, sleep=2)
        self.stamp(3, 4)
        for hh in range(4):
            for k in range(9):
                for u in range(2):
                    base, off = wrow("m", k, hh, u)
                    a(f"ds_read_b64_tr_b16 {vr(WF+36*hh+4*k+2*u,2)}, {base} offset:{off}")
                if k % 3 == 2:
                    a("s_waitcnt lgkmcnt(6)")
        self.stamp(4, 4)
        GM, GX, GD, GE = 192, 224, 8, 3
        AC2, BF, BX = ACC, 236, 248
        a(f"""
v_lshrrev_b32 v39, 3, v0
v_lshlrev_b32 v39, 12, v39
v_lshlrev_b32 v40, 2, v46
v_xor_b32 v40, v40, v0
v_and_b32 v40, 7, v40
v_lshl_add_u32 v39, v40, 4, v39
v_bfe_u32 v40, v0, 3, 1
v_xor_b32 v40, {n}, v40
v_lshlrev_b32 v40, 6, v40
v_lshl_add_u32 v40, v44, 3, v40
v_lshl_add_u32 v40, v43, 7, v40
v_lshl_add_u32 v43, v13, 10, v40
v_lshl_add_u32 v43, v46, 5, v43
v_add_u32 v44, 36864, v43
v_lshl_add_u32 v45, v38, 10, v40
v_add_u32 v45, {32 * mm}, v45
v_add_u32 v46, 36864, v45
s_mul_i32 s93, {sJ}, {3*36*1024}
s_add_u32 s98, s93, {WS_G + 2*36*1024}
s_add_u32 s93, s93, {WS_G + mm*36*1024}
s_waitcnt lgkmcnt(0)
""")
        self.add1(S2)
        vm = []
        def gm(ks):
            a(f"buffer_load_dwordx4 {vr(GM+4*(ks%GD),4)}, v5, {SWS}, s93 offen offset:{1024*(ks%4)} sc1")
            if ks % 4 == 3: a("s_add_u32 s93, s93, 4096")
            vm.append(("m", ks))
        def gx(T):
            a(f"buffer_load_dwordx4 {vr(GX+4*(T%GE),4)}, v47, {SWS}, s98 offen offset:{2048*(T%2)} sc1")
            if T % 2 == 1: a("s_add_u32 s98, s98, 4096")
            vm.append(("x", T))
        self.wait(CV, 7, sleep=4, idle=True)
        for ks in range(GD):
            gm(ks)
            if ks % 2 == 1 and ks // 2 < GE: gx(ks // 2)
        if w == 0:
            a(f"v_lshlrev_b32 v{BF}, 7, v0\nv_min_u32 v{BF+1}, {7*128}, v{BF}\ns_mov_b32 s99, {WS_FY}\ns_mov_b32 s92, {WS_FY + 8192}\ns_mov_b32 s88, {WS_FY + 72*128}")
            self.wait(YA, 2, sleep=4, idle=True)
            a(f"s_sleep {self.opt('dy', 20)}")
            self.poll(f"buffer_load_dwordx4 {vr(BF+2,4)}, v{BF}, {SWS}, s99 offen sc1\nbuffer_load_dwordx4 {vr(BF+6,4)}, v{BF+1}, {SWS}, s92 offen sc1\n"
                      f"buffer_load_dword v{BF+10}, off, {SWS}, s88 sc1", [BF + 2 + k for k in range(9)], sleep=12)
            self.add1(CY)
            ne = a.label("NE")
            a(f"s_cmp_lg_u32 s2, 0\ns_cbranch_scc1 {ne}")
            self.set_flag(str(WS_EPOCH))
            a(f"{ne}:")
        else:
            self.wait(CY, 1, sleep=4, idle=True)
        self.wait(S2, 4, sleep=2)
        self.stamp(1); self.stamp(5, 4)
        a(f"s_lshl_b32 s99, {sP}, 7\ns_add_u32 s99, s99, {WS_Y + w * 32768}\ns_mov_b32 s92, {L_Y + w * 1024}")
        def ydma():
            lp = a.label("YL")
            a(f"s_mov_b32 s88, 2\n{lp}:")
            for k in range(3):
                a(f"s_mov_b32 m0, s92\ns_add_u32 s92, s92, 4096\nbuffer_load_dwordx4 v39, {SWS}, s99 offen sc1 lds\ns_add_u32 s99, s99, {4*32768}")
            a(f"s_sub_u32 s88, s88, 1\ns_cbranch_scc0 {lp}")
        ydma()
        ydma()
        vm.extend([("y", k) for k in range(18)])
        a("s_waitcnt vmcnt(9)")
        self.add1(S1)
        self.stamp(6, 4)
        def yrd(it):
            kind, k = it
            if kind == "m":
                b = BF + 4 * (k % 3); base, off = ("v43", 2048 * k) if k < 18 else ("v44", 2048 * (k - 18))
            else:
                b = BX + 4 * (k % 2); base, off = ("v45", 4096 * k) if k < 9 else ("v46", 4096 * (k - 9))
            a(f"ds_read_b64_tr_b16 {vr(b,2)}, {base} offset:{off}\nds_read_b64_tr_b16 {vr(b+2,2)}, {base} offset:{off+512}")
        done = {"vm": len(vm) - 9}
        def half(k0):
            seq = []
            for ks in range(k0, k0 + 18):
                seq.append(("m", ks))
                if ks % 2 == 1: seq.append(("x", ks // 2))
            for it in seq[:3]:
                yrd(it)
            for i, it in enumerate(seq):
                wv = ""
                if vm.index(it) + 1 > done["vm"]:
                    done["vm"] = vm.index(it) + 1
                    wv = f"vmcnt({len(vm) - done['vm']}) "
                a(f"s_waitcnt {wv}lgkmcnt({2 * (min(i + 3, len(seq)) - i - 1)})")
                kind, k = it
                if kind == "m":
                    a(f"v_mfma_f32_32x32x16_bf16 {vr(AC2,16)}, {vr(GM+4*(k%GD),4)}, {vr(BF+4*(k%3),4)}, {'0' if k == 0 else vr(AC2,16)}")
                    if k + GD < 36: gm(k + GD)
                else:
                    a(f"v_mfma_f32_16x16x32_bf16 {vr(AC2+16,4)}, {vr(GX+4*(k%GE),4)}, {vr(BX+4*(k%2),4)}, {'0' if k == 0 else vr(AC2+16,4)}")
                    if k + GE < 18: gx(k + GE)
                if i + 3 < len(seq):
                    yrd(seq[i + 3])
                if it == ("m", GD):
                    self.add1(S4)
        self.wait(S1, 4, sleep=1)
        self.stamp(7, 4)
        half(0)
        self.wait(S4, 4, sleep=1)
        half(18)
        self.stamp(2); self.stamp(8, 4)
        self.srd(SOUT, 22, 2359296)
        a(f"""
s_mov_b32 s73, 73728
v_mul_lo_u32 v39, v12, s73
v_lshl_add_u32 v39, v13, 5, v39
v_mul_lo_u32 v40, v37, s73
v_lshl_add_u32 v40, v38, 3, v40
s_mul_i32 s93, {sP}, 2304
s_add_u32 s93, s93, s95
s_add_u32 s93, s93, {1152 * n}
s_add_u32 s92, s93, {16 * mm * 73728}
""")
        for i in range(8):
            a(f"v_pk_mul_f32 {vr(ACC+2*i,2)}, {vr(ACC+2*i,2)}, v[10:11] op_sel:[0,1] op_sel_hi:[1,1]")
        for i in range(2):
            a(f"v_pk_mul_f32 {vr(ACX+2*i,2)}, {vr(ACX+2*i,2)}, v[36:37] op_sel_hi:[1,0]")
        prog = {0: ["N5", "C0", "C2", "C4", "C6"], 1: ["N4", "C1", "C3", "C5", "C7"],
                2: ["C0", "C2", "C4", "C6"], 3: ["C1", "C3", "N6", "C5", "C7"]}[w]
        gates = {4: 5, 5: 6, 6: 7, 7: 7}
        for it in prog:
            i = int(it[1])
            if it[0] == "N":
                normalize(i)
                self.stamp(3)
            else:
                if i >= 4:
                    self.wait(256 * gates[i], 4, sleep=2 if gates[i] == 7 else 4, idle=True)
                if i == 7:
                    a(f"s_sleep {self.opt('d7', 10)}")
                if i >= 6: self.stamp(4)
                consume(i, i in (4, 5))
                if i in (2, 3): self.stamp(9, 4)
        self.stamp(6)
        fl = " sc1" if "outsc1" in self.opts else " nt" if "outnt" in self.opts else ""
        a(f"v_cvt_pk_bf16_f32 v{ACX}, v{ACX}, v{ACX+1}\nv_cvt_pk_bf16_f32 v{ACX+1}, v{ACX+2}, v{ACX+3}")
        for k in range(8):
            a(f"v_cvt_pk_bf16_f32 v{ACC+k}, v{ACC+2*k}, v{ACC+2*k+1}")
        a(f"buffer_store_dwordx4 {vr(ACC,4)}, v39, {SOUT}, s93 offen offset:{64*mm}{fl}")
        a(f"buffer_store_dwordx4 {vr(ACC+4,4)}, v39, {SOUT}, s93 offen offset:{64*mm+16}{fl}")
        a(f"s_mov_b32 exec_hi, 0\nbuffer_store_dwordx2 {vr(ACX,2)}, v40, {SOUT}, s92 offen offset:128{fl}\ns_mov_b64 exec, -1")
        self.stamp(7)

    def norm_setup(self, rows):
        self.a(f"""
v_lshlrev_b32 v5, 4, v0
v_and_b32 v12, 31, v0
v_lshrrev_b32 v13, 5, v0
v_add_u32 v8, {L_EX}, v5
v_lshlrev_b32 v9, 3, v0
v_add_u32 v9, {L_EX + 2048}, v9
v_lshlrev_b32 v10, 3, v12
v_add_u32 v10, {L_EX + 2048 + 256}, v10
v_lshl_add_u32 v14, v12, 2, v2
ds_read_b32 v4, v14 offset:{2304 + 128 * rows}
s_mul_i32 s94, {sP}, {8*9216}
s_add_u32 s94, s94, {WS_OF}
s_lshl_b32 s96, {sJ}, 10
s_add_u32 s96, s96, s94
s_lshr_b32 s97, {sJ}, 2
s_lshl_b32 s97, s97, 9
s_and_b32 s73, {sJ}, 3
s_lshl_b32 s73, s73, 2
s_add_u32 s97, s97, s73
s_add_u32 s97, s97, s94
s_add_u32 s97, s97, 8192
""")

    def normalize(self, i, wait=True):
        a = self.a
        NT = self.NT
        q = i % 4
        if wait:
            self.wait(256 * i, 4, sleep=1 if i >= 6 else 4, idle=True)
        for s in range(4):
            b = NT + 12 * s; o = 10240 * q + 2560 * s
            a(f"ds_read_b128 {vr(b,4)}, v8 offset:{o}\nds_read_b128 {vr(b+4,4)}, v8 offset:{o+1024}\nds_read_b64 {vr(b+8,2)}, v9 offset:{o}")
            if s == 3:
                a("s_waitcnt lgkmcnt(9)")
            a(f"ds_read_b32 v{b+10}, v10 offset:{o}")
        a(f"s_add_u32 s90, s96, {i*9216}\ns_add_u32 s91, s97, {i*9216}\ns_movk_i32 s89, {i}")
        a("s_waitcnt lgkmcnt(8)")
        for s in range(1, 4):
            if s > 1:
                a(f"s_waitcnt lgkmcnt({4 * (3 - s)})")
            for k in range(5):
                a(f"v_pk_add_f32 {vr(NT+2*k,2)}, {vr(NT+2*k,2)}, {vr(NT+12*s+2*k,2)}")
            a(f"v_add_f32 v{NT+10}, v{NT+10}, v{NT+12*s+10}")
        if i < 4:
            self.wait(CG, 1, sleep=2)
            self.add1(CN)
        self.safety()
        a(f"v_rcp_f32 v{NT+10}, v{NT+10}\ns_nop 0\nv_mul_f32 v{NT+10}, v4, v{NT+10}")
        for k in range(5):
            a(f"v_pk_mul_f32 {vr(NT+2*k,2)}, {vr(NT+2*k,2)}, {vr(NT+10,2)} op_sel_hi:[1,0]")
        for k in range(5):
            a(f"v_cvt_pk_bf16_f32 v{NT+12+k}, v{NT+2*k}, v{NT+2*k+1}")
        a(f"v_min_u32 v{NT+12}, -2, v{NT+12}\nv_min_u32 v{NT+16}, -2, v{NT+16}")
        a(f"buffer_store_dwordx4 {vr(NT+12,4)}, v5, {SWS}, s90 offen sc1\ns_mov_b32 exec_hi, 0")
        a(f"buffer_store_dword v{NT+16}, v5, {SWS}, s91 offen sc1\ns_mov_b64 exec, -1")

    def safety(self):
        a = self.a
        NT = self.NT
        ok = a.label("SOK")
        t = NT + 12
        a(f"v_mov_b32 v{t}, 0\nv_mov_b32 v{t+1}, 0\nv_mov_b32 v{t+2}, 0\nv_mov_b32 v{t+3}, 0")
        for k in range(5):
            a(f"v_pk_fma_f32 {vr(t,2)}, {vr(NT+2*k,2)}, {vr(t+2,2)}, {vr(t,2)}")
        lo, hi = (127 - 60) << 23, (127 + 64) << 23
        if "forcefb" in self.opts:
            lo, hi = (127 + 60) << 23, (127 + 64) << 23
        a(f"v_add_f32 v{t}, v{t}, v{t+1}\nv_subrev_u32 v{t+1}, {lo:#x}, v{NT+10}\nv_cmp_u_f32 vcc, v{t}, v{t}")
        a(f"s_mov_b32 s73, {hi - lo:#x}\nv_cmp_lt_u32 s[74:75], s73, v{t+1}\ns_or_b64 vcc, vcc, s[74:75]\ns_cmp_eq_u64 vcc, 0\ns_cbranch_scc1 {ok}")
        a(f"s_call_b64 s[86:87], L_fallback\n{ok}:")

    def fallback(self):
        a = self.a
        NT = self.NT
        O, S, Q, QX, K, KX, V, MX = NT, 208, 224, 228, 230, 234, 236, 244
        vK, vKX, vV, T0 = 245, 246, 247, 248
        l1 = a.label("FB1"); l2 = a.label("FB2")
        qk = f"""
buffer_load_dwordx4 {vr(K,4)}, v{vK}, {SWS}, s[84] offen sc1
buffer_load_dword v{KX}, v{vKX}, {SWS}, s[85] offen sc1
""".replace("s[84]", "s84").replace("s[85]", "s85")
        mm = f"""
v_mfma_f32_32x32x16_bf16 {vr(S,16)}, {vr(K,4)}, {vr(Q,4)}, 0
v_mfma_f32_32x32x8_bf16 {vr(S,16)}, {vr(KX,2)}, {vr(QX,2)}, {vr(S,16)}
s_add_u32 s84, s84, 1024
s_add_u32 s85, s85, 128
"""
        a(f"""
L_fallback:
s_nop 4
v_lshlrev_b32 v{vK}, 5, v12
v_lshl_add_u32 v{vK}, v13, 4, v{vK}
v_mov_b32 v{T0}, {OOB}
v_lshlrev_b32 v{vKX}, 2, v12
v_cmp_lt_u32 vcc, 31, v0
v_subrev_u32 v{T0+1}, 64, v{vK}
v_cndmask_b32 v{vKX}, v{vKX}, v{T0}, vcc
v_cmp_eq_u32 vcc, 20, v12
s_mul_i32 s73, s89, 1536
v_cndmask_b32 v{T0+1}, v{T0}, v{T0+1}, vcc
v_cmp_gt_u32 vcc, 18, v12
s_add_u32 s73, s73, {L_QS}
v_cndmask_b32 v{vV}, v{T0+1}, v{vK}, vcc
v_mul_u32_u24 v{T0}, 48, v12
v_add_u32 v{T0}, s73, v{T0}
v_lshl_add_u32 v{T0+1}, v13, 2, v{T0}
v_lshl_add_u32 v{T0}, v13, 4, v{T0}
ds_read_b128 {vr(Q,4)}, v{T0}
ds_read_b32 v{QX}, v{T0+1} offset:32
v_mov_b32 v{QX+1}, 0
v_mov_b32 v{KX+1}, 0
v_mov_b32 v{MX}, 0xff800000
s_mov_b32 s84, {WS_K16}
s_mov_b32 s85, {WS_KX}
s_mov_b32 s88, 63
{l1}:
{qk}
s_waitcnt vmcnt(0) lgkmcnt(0)
{mm}
""")
        for k in range(8):
            a(f"v_max3_f32 v{MX}, v{MX}, v{S+2*k}, v{S+2*k+1}")
        a(f"""
s_sub_u32 s88, s88, 1
s_cbranch_scc0 {l1}
v_mov_b32 v{T0}, v{MX}
v_permlane32_swap_b32 v{MX}, v{T0}
v_max_f32 v{MX}, v{MX}, v{T0}
s_mov_b32 s84, {WS_K16}
s_mov_b32 s85, {WS_KX}
s_mov_b32 s83, {WS_VF}
s_mov_b32 s88, 63
""")
        for r in range(16):
            a(f"v_mov_b32 v{O+r}, 0")
        a(f"""
{l2}:
{qk}
buffer_load_dwordx4 {vr(V,4)}, v{vV}, {SWS}, s83 offen sc1
buffer_load_dwordx4 {vr(V+4,4)}, v{vV}, {SWS}, s83 offen offset:{VPITCH} sc1
s_waitcnt vmcnt(0)
{mm}
s_add_u32 s83, s83, {2*VPITCH}
""")
        for r in range(16):
            a(f"v_sub_f32 v{S+r}, v{S+r}, v{MX}")
        for r in range(16):
            a(f"v_exp_f32 v{S+r}, v{S+r}")
        for k in range(8):
            a(f"v_cvt_pk_bf16_f32 v{S+k}, v{S+2*k}, v{S+2*k+1}")
        a(f"""
v_mfma_f32_32x32x16_bf16 {vr(O,16)}, {vr(V,4)}, {vr(S,4)}, {vr(O,16)}
v_mfma_f32_32x32x16_bf16 {vr(O,16)}, {vr(V+4,4)}, {vr(S+4,4)}, {vr(O,16)}
s_nop 15
s_sub_u32 s88, s88, 1
s_cbranch_scc0 {l2}
""")
        a(f"v_mov_b32 v{T0}, v{O+8}\nv_mov_b32 v{NT+10}, v{O+8}\nv_permlane32_swap_b32 v{T0}, v{NT+10}\ns_nop 4\ns_setpc_b64 s[86:87]")

    def finish_stamps(self):
        a = self.a
        if self.stamps:
            a("v_mov_b32 v2, 0")
            for i in range(12):
                a(f"v_writelane_b32 v2, s{STAMPS[i]}, {i}")
            a(f"s_lshl_b32 s73, s2, 3\ns_add_u32 s73, s73, {sW}\ns_lshl_b32 s73, s73, 7\ns_add_u32 s73, s73, {WS_DBG}")
            a(f"v_lshlrev_b32 v3, 2, v0\ns_mov_b32 exec_hi, 0\nbuffer_store_dword v2, v3, {SWS}, s73 offen\ns_mov_b64 exec, -1")

    def build(self):
        a = self.a
        self.prologue()
        self.e_front()
        a("L_attn:")
        self.attention()
        self.stamp(8)
        a(f"s_cmp_ge_u32 {sW}, 4\ns_cbranch_scc1 L_last")
        labs = [a.label("TL") for _ in range(4)]
        for w in range(1, 4):
            a(f"s_cmp_eq_u32 {sW}, {w}\ns_cbranch_scc1 {labs[w]}")
        for w in range(4):
            a(f"{labs[w]}:")
            self.tail(w >> 1, w & 1)
            a("s_branch L_fin")
        a(f"L_last:\ns_waitcnt lgkmcnt(0)\nv_readfirstlane_b32 s73, v1\nv_sub_f32 v4, 1.0, v4\ns_cmp_lg_u32 s73, 3\ns_cbranch_scc1 L_fin\ns_setprio 3")
        self.normalize(7, wait=False)
        self.stamp(3)
        a("s_branch L_fin")
        a("L_lwave:")
        self.busy = 3
        self.l_front()
        self.l_mid()
        a("s_branch L_attn")
        self.fallback()
        a("L_bail:")
        if self.stamps:
            a(f"s_mov_b32 s{STAMPS[11]}, 0xdead0000")
        a("L_fin:")
        if self.opt("padto", 0):
            a(f"L_pad:\ns_sleep 2\ns_memrealtime s[78:79]\ns_waitcnt lgkmcnt(0)\ns_sub_u32 s78, s78, s76\ns_cmp_lt_u32 s78, s80\ns_cbranch_scc1 L_pad")
        self.finish_stamps()
        a("L_end:\ns_endpgm")
        body = a.finish()
        tw = self.make_tables()
        assert tw.size == 2 * self.NTAB * 256
        tab = "\n".join(".long " + ",".join(f"{x:#x}" for x in tw[i:i+16]) for i in range(0, tw.size, 16))
        hdr = open("cdna_kernels/" + NAME + ".s.ref").read().split("; Override launch")[0]
        return f"""{hdr}; @launch grid=(256,1,1) block=(512,1,1) lds={LDS_BYTES}
.amdgcn_target "amdgcn-amd-amdhsa--gfx950"
.text
.globl {NAME}_kernel
.p2align 8
.type {NAME}_kernel,@function
{NAME}_kernel:
{body}
.section .rodata,"a"
.p2align 8
.type spectral_tables,@object
spectral_tables:
{tab}
.size spectral_tables, {2*self.NTAB*1024}
.p2align 6
.amdhsa_kernel {NAME}_kernel
  .amdhsa_next_free_vgpr 256
  .amdhsa_next_free_sgpr 102
  .amdhsa_accum_offset 256
  .amdhsa_group_segment_fixed_size 0
  .amdhsa_kernarg_size 96
  .amdhsa_user_sgpr_count 2
  .amdhsa_user_sgpr_kernarg_segment_ptr 1
  .amdhsa_system_sgpr_workgroup_id_x 1
.end_amdhsa_kernel
"""


if __name__ == "__main__":
    opts = sys.argv[2:]
    g = Gen(stamps=2 if "st2" in opts else 3 if "st3" in opts else 4 if "st4" in opts else 5 if "st5" in opts else int("stamps" in opts), cyc="cyc" in opts, opts=opts)
    src = g.build()
    open(sys.argv[1], "w").write(src)
    print("nops added:", g.a.added_nops, "lines:", len(src.splitlines()))
```

```python
import sys
import numpy as np
from asmlib import Asm
import model as M

NAME = "gated_mix__spectral_gfnet__grouped_kv_mqa__prompt"

WS_EPOCH = 0
WS_FKV = 0x50000
WS_FS = 0x58000
WS_FY = 0x60000
WS_GOS = 0x68000
WS_K16 = 0x10000
WS_KX = 0x20000
WS_VF = 0x30000
WS_DBG = 0x80000
WS_G = 0x100000
WS_T = 0x200000
WS_Y = 0x500000
WS_OF = 0x800000
WS_WT = 0xB00000
WS_QDUMP = 0x1100000
WS_SIZE = 0x2000000
OOB = 0x40000000
VPITCH = 640

XP = 1040
L_X = 0
L_X2 = 64 * XP
L_WQ0 = 74752
L_WQ1 = 111616
P2SZ = 9728
L_P2Q = 148480
L_P2KV = L_P2Q - P2SZ
L_MISC = 162816
L_CT = L_MISC - 2048
(C0A, C0B, C0C, C1, CX, CK, CE, CV, CY, S1, S2, S3, CN, CW, CF, CD, CG, S4, C0D, SA, XA, XB, YA, YB, CR) = (2048 + 4 * i for i in range(25))
L_G = L_MISC + 256
L_QS = L_WQ0
L_WO0 = 0
L_WO1 = 36864
L_Y = 0
L_EX = L_QS + 12288
L_WOX = L_EX + 16 * 2560
L_XCH = L_WOX + 9216
LDS_BYTES = 163840
assert L_XCH + 8192 <= L_CT and L_P2Q + P2SZ <= L_CT and L_P2Q + P2SZ <= L_MISC and L_P2KV >= L_WQ1 + 416 * 64

SX, SWQ, SKV, SG, SWS, SWO, SOUT, SWR, SWI, STB = (f"s[{a}:{a+3}]" for a in range(28, 68, 4))
sW, sP, sJ, sTAG, sSPIN = "s68", "s69", "s70", "s71", "s72"
STAMPS = [76, 77, 78, 79, 80, 81, 100, 101, 3, 10, 11, 24]
SPIN_MAX = 400000

f32bits = lambda v: int(np.float32(v).view(np.uint32))
QSCALE_BITS = f32bits(M.QSCALE)
LOG2E_BITS = f32bits(M.LOG2E)


def vr(a, n=1):
    return f"v{a}" if n == 1 else f"v[{a}:{a+n-1}]"


class Gen:
    AQ, AQX, AO, AK, AKX, AV, AS = 24, 28, 32, 88, 120, 128, 192
    vQ, vQX, vEX, vEX2, vK, vKX, vV, vCT = 78, 79, 80, 81, 82, 83, 4, 84
    vCT2 = vCT

    def __init__(self, stamps=0, cyc=False, opts=()):
        self.a = Asm()
        self.stamps = stamps
        self.clk = "s_memtime" if cyc else "s_memrealtime"
        self.opts = set(opts)
        self.busy = 3

    def opt(self, name, default):
        for o in self.opts:
            if o.startswith(name + "="):
                return int(o.split("=")[1])
        return default

    def _st(self, i):
        self.a(f"{self.clk} s[74:75]\ns_waitcnt lgkmcnt(0)\ns_mov_b32 s{STAMPS[i]}, s74")

    def stamp(self, i, level=1):
        if self.stamps == level:
            self._st(i)
        if self.opt("pid", -1) == i and self.opt("plev", 1) == level:
            l = self.a.label("PB")
            self.a(f"s_cmp_lg_u32 {sW}, {self.opt('pw', 0)}\ns_cbranch_scc1 {l}\ns_memrealtime s[78:79]\ns_waitcnt lgkmcnt(0)\n"
                   f"s_sub_u32 s80, s78, s76\ns_add_u32 s80, s80, {self.opt('padto', 0)}\n{l}:")

    def srd(self, srd, lo, size):
        b = int(srd[2:].split(":")[0])
        self.a(f"s_mov_b32 s{b}, s{lo}\ns_mov_b32 s{b+1}, s{lo+1}\ns_mov_b32 s{b+2}, {size}\ns_mov_b32 s{b+3}, 0x20000")

    def add1(self, off, base="v2"):
        self.a(f"s_mov_b64 exec, 1\nds_add_u32 {base}, v3 offset:{off}\ns_mov_b64 exec, -1")

    def wait(self, off, target, sleep=1, base="v2", idle=False):
        a = self.a
        l = a.label("LW"); d = a.label("LWD")
        if idle and "noidle" not in self.opts:
            a("s_setprio 0")
        a(f"{l}:\nds_read_b32 v1, {base} offset:{off}\ns_waitcnt lgkmcnt(0)\nv_readfirstlane_b32 s73, v1")
        a(f"s_cmp_ge_u32 s73, {target}\ns_cbranch_scc1 {d}")
        if sleep:
            a(f"s_sleep {sleep}")
        a(f"s_sub_u32 {sSPIN}, {sSPIN}, 1\ns_cbranch_scc0 {l}\ns_branch L_bail\n{d}:")
        if idle and "noidle" not in self.opts:
            a(f"s_setprio {self.busy}")

    def cmp_regs(self, regs, val, op="ne"):
        a = self.a
        a(f"v_cmp_{op}_u32 vcc, {val}, v{regs[0]}")
        for r in regs[1:]:
            a(f"v_cmp_{op}_u32 s[74:75], {val}, v{r}\ns_or_b64 vcc, vcc, s[74:75]")
        a("s_cmp_eq_u64 vcc, 0")

    def poll(self, loads, regs, sleep=2):
        a = self.a
        l = a.label("PL"); d = a.label("PD")
        a(f"{l}:")
        a(loads)
        a("s_waitcnt vmcnt(0)")
        self.cmp_regs(regs, sTAG)
        a(f"s_cbranch_scc1 {d}\ns_sleep {sleep}\ns_sub_u32 {sSPIN}, {sSPIN}, 1\ns_cbranch_scc0 {l}\ns_branch L_bail\n{d}:")

    def set_flag(self, soff):
        self.a(f"v_mov_b32 v1, {sTAG}\ns_mov_b64 exec, 1\nbuffer_store_dword v1, off, {SWS}, {soff} sc1\ns_mov_b64 exec, -1")

    def flag4(self, dst, idx, base):
        self.a(f"s_lshr_b32 {dst}, {idx}, 2\ns_lshl_b32 {dst}, {dst}, 7\ns_and_b32 s73, {idx}, 3\ns_lshl_b32 s73, s73, 2\n"
               f"s_add_u32 {dst}, {dst}, s73\ns_add_u32 {dst}, {dst}, {base}")

    def go_wait(self, base, vt, sleep):
        self.a(f"s_and_b32 s92, s2, 7\ns_lshl_b32 s92, s92, 7\ns_add_u32 s92, s92, {base}")
        self.poll(f"s_mov_b64 exec, 1\nbuffer_load_dword v{vt}, off, {SWS}, s92 sc1\ns_waitcnt vmcnt(0)\nv_readfirstlane_b32 s73, v{vt}\ns_mov_b64 exec, -1\nv_mov_b32 v{vt}, s73", [vt], sleep=sleep)

    def tag(self):
        self.a(f"s_mul_i32 {sTAG}, {sTAG}, 0x9E3779B1\ns_add_u32 {sTAG}, {sTAG}, 0x7F4A7C15")

    def prologue(self):
        a = self.a
        a(f"""
s_cmp_ge_u32 s2, 256
s_cbranch_scc1 L_end
s_load_dwordx16 s[4:19], s[0:1], 0
s_load_dwordx8 s[20:27], s[0:1], 64
v_lshrrev_b32 v1, 6, v0
v_and_b32 v0, 63, v0
v_readfirstlane_b32 {sW}, v1
s_and_b32 {sP}, s2, 31
s_lshr_b32 {sJ}, s2, 5
""")
        if self.stamps:
            a(f"{self.clk} s[74:75]")
        if self.opt("padto", 0):
            a(f"s_memrealtime s[76:77]\ns_mov_b32 s80, {self.opt('padto', 0)}")
        a(f"""
v_lshl_add_u32 v4, v1, 6, v0
v_mov_b32 v2, {L_CT}
v_mov_b32 v3, 1
v_lshlrev_b32 v7, 4, v0
s_mul_i32 s94, {sP}, 2304
s_mul_i32 s95, {sJ}, 144
s_lshl_b32 s91, {sJ}, 2
s_add_u32 s91, s91, {sW}
s_mov_b32 s30, 2359296
s_mov_b32 s31, 0x20000
s_mov_b32 {sSPIN}, {SPIN_MAX}
s_cmp_ge_u32 {sW}, 4
s_waitcnt lgkmcnt(0)
""")
        if self.stamps:
            a(f"s_mov_b32 s{STAMPS[0]}, s74")
            for r in STAMPS[1:]:
                a(f"s_mov_b32 s{r}, 0")
        a("s_cbranch_scc1 L_lwave")

    def kv_addr(self):
        a = self.a
        a(f"""
v_and_b32 v84, 31, v0
v_lshrrev_b32 v85, 5, v0
v_lshlrev_b32 v{self.vK}, 5, v84
v_lshl_add_u32 v{self.vK}, v85, 4, v{self.vK}
v_mov_b32 v86, {OOB}
v_lshlrev_b32 v{self.vKX}, 3, v84
v_cmp_lt_u32 vcc, 31, v0
v_subrev_u32 v87, 64, v{self.vK}
v_cndmask_b32 v{self.vKX}, v{self.vKX}, v86, vcc
v_cmp_eq_u32 vcc, 20, v84
s_and_b32 s73, {sW}, 3
v_cndmask_b32 v87, v86, v87, vcc
v_cmp_gt_u32 vcc, 18, v84
s_lshl_b32 s96, s73, 14
v_cndmask_b32 v{self.vV}, v87, v{self.vK}, vcc
s_add_u32 s96, s96, {WS_K16}
s_lshl_b32 s97, s73, 11
s_add_u32 s97, s97, {WS_KX}
s_mul_i32 s98, s73, {32*VPITCH}
s_add_u32 s98, s98, {WS_VF}
""")

    def ld_k(self, t, slot):
        adv = "\ns_add_u32 s96, s96, 4096" if t % 4 == 3 else ""
        k = f"buffer_load_dwordx4 {vr(self.AK+4*slot,4)}, v{self.vK}, {SWS}, s96 offen offset:{1024*(t%4)} sc1" + adv
        if t % 2:
            return (k,)
        return (k, f"buffer_load_dwordx2 {vr(self.AKX+slot,2)}, v{self.vKX}, {SWS}, s97 offen offset:{128*t} sc1")

    def ld_v(self, t, slot):
        adv = f"\ns_add_u32 s98, s98, {4*VPITCH}" if t % 2 == 1 else ""
        o = 2 * VPITCH * (t % 2)
        return (f"buffer_load_dwordx4 {vr(self.AV+8*slot,4)}, v{self.vV}, {SWS}, s98 offen offset:{o} sc1",
                f"buffer_load_dwordx4 {vr(self.AV+8*slot+4,4)}, v{self.vV}, {SWS}, s98 offen offset:{o+VPITCH} sc1" + adv)

    NFIRST = 4
    NLD1 = 14

    def kv_loads(self):
        for t in range(self.NFIRST):
            for x in self.ld_k(t, t) + self.ld_v(t, t):
                self.a(x)

    def e_front(self):
        a = self.a
        a("s_setprio 3\ns_mov_b32 s28, s4\ns_mov_b32 s29, s5")
        for k in range(8):
            a(f"""
s_and_b32 s91, s91, 31
s_mul_i32 s90, s91, 73728
s_mul_i32 m0, s91, {XP}
s_add_u32 s90, s90, s94
s_add_u32 s91, s91, 4
buffer_load_dwordx4 v7, {SX}, s90 offen lds
s_add_u32 m0, m0, {32*XP - 1152}
s_nop 0
buffer_load_dwordx4 v7, {SX}, s90 offen offset:1152 lds
""")
        a(f"""
s_load_dword {sTAG}, s[26:27], {WS_EPOCH}
v_lshrrev_b32 v20, 3, v0
s_mov_b32 s73, 73728
v_mul_lo_u32 v21, v20, s73
v_lshrrev_b32 v22, 4, v0
v_xor_b32 v22, v22, v0
v_and_b32 v22, 7, v22
v_lshl_add_u32 v21, v22, 4, v21
s_and_b32 s90, {sW}, 1
s_mul_i32 s90, s90, {16*73728}
s_lshr_b32 s73, {sW}, 1
s_mul_i32 s73, s73, 1152
s_add_u32 s90, s90, s73
s_add_u32 s90, s90, s94
s_add_u32 s90, s90, 1024
s_lshl_b32 s91, {sW}, 11
s_add_u32 m0, s91, {L_X2}
v_xor_b32 v22, 64, v21
buffer_load_dwordx4 v21, {SX}, s90 offen lds
s_add_u32 m0, s91, {L_X2 + 1024}
s_add_u32 s90, s90, {8*73728}
buffer_load_dwordx4 v22, {SX}, s90 offen lds
s_cmp_lt_u32 {sJ}, 4
s_cselect_b32 s36, s14, s16
s_cselect_b32 s37, s15, s17
s_mov_b32 s38, 20736
s_mov_b32 s39, 0x20000
v_mul_u32_u24 v5, 36, v4
v_lshlrev_b32 v6, 1, v4
s_and_b32 s73, {sJ}, 3
s_lshl_b32 s92, s73, 3
""")
        self.srd(SG, 20, 1152)
        s = a.label("KV3")
        a(f"""
buffer_load_dwordx3 v[24:26], v5, {SKV}, s92 offen
buffer_load_ushort v27, v6, {SG}, 0 offen
v_add_u32 v5, {256*36}, v5
buffer_load_dwordx3 v[28:30], v5, {SKV}, s92 offen
buffer_load_ushort v31, v6, {SG}, 0 offen offset:512
s_cmp_gt_u32 {sW}, 0
s_cbranch_scc1 {s}
v_add_u32 v5, {256*36}, v5
buffer_load_dwordx3 v[40:42], v5, {SKV}, s92 offen
buffer_load_ushort v43, v6, {SG}, 0 offen offset:1024
{s}:
s_barrier
""")
        self.stamp(6, 3)
        self.srd(SWS, 26, WS_SIZE)
        a(f"""
v_lshrrev_b32 v7, 7, v4
v_lshlrev_b32 v7, 7, v7
v_lshl_add_u32 v7, v4, 4, v7
v_add_u32 v7, {L_P2KV}, v7
v_and_b32 v14, 15, v0
v_lshrrev_b32 v15, 4, v0
v_and_b32 v17, 31, v0
v_lshrrev_b32 v18, 5, v0
v_bfe_u32 v22, v0, 2, 2
v_lshlrev_b32 v22, 4, v22
v_and_b32 v23, 1, v0
v_lshl_add_u32 v22, v23, 3, v22
v_mul_u32_u24 v16, 2176, v15
v_add_u32 v16, v16, v22
v_lshl_add_u32 v12, v15, 7, v22
v_add_u32 v12, {512*16 + 512}, v12
v_add_u32 v19, {L_P2KV}, v16
v_add_u32 v10, {L_P2KV}, v12
v_add_u32 v16, {L_P2Q}, v16
v_add_u32 v12, {L_P2Q}, v12
s_lshl_b32 s73, {sW}, 4
v_add_u32 v21, s73, v14
v_mul_u32_u24 v20, {XP}, v21
v_lshl_add_u32 v20, v15, 8, v20
v_lshrrev_b32 v22, 1, v21
v_xor_b32 v22, v22, v15
v_and_b32 v22, 7, v22
v_lshlrev_b32 v22, 4, v22
v_lshl_add_u32 v11, v21, 7, v22
v_add_u32 v11, {L_X2}, v11
v_xor_b32 v9, 64, v11
s_lshl_b32 s90, {sP}, 1
s_lshr_b32 s73, {sW}, 1
s_add_u32 s90, s90, s73
s_and_b32 s91, {sW}, 1
s_mov_b32 s92, {(LOG2E_BITS | 0x80000000):#x}
s_lshl_b32 s99, {sW}, 6
s_add_u32 s99, s99, {L_G}
""")
        RG, XF, AK_ = 32, 160, 252
        def wrd(b1, b2, T, dst):
            base, off = (b1, T * 128) if T < 16 else (b2, (T - 16) * 512)
            a(f"ds_read_b64_tr_b16 {vr(dst,2)}, {base} offset:{off}\nds_read_b64_tr_b16 {vr(dst+2,2)}, {base} offset:{off+64}")
        def land():
            s = a.label("KW")
            a(f"s_waitcnt vmcnt(0)\nds_write_b128 v7, v[24:27]\nds_write_b128 v7, v[28:31] offset:{4096+256}")
            a(f"s_cmp_gt_u32 {sW}, 0\ns_cbranch_scc1 {s}\nds_write_b128 v7, v[40:43] offset:{8192+512}\n{s}:")
            self.stamp(1, 3)
            self.add1(CX)
            self.wait(CX, 4, sleep=0)
            self.tag()
            self.stamp(2, 3)
        def kv_gemm(swap):
            acc = vr(AK_, 4)
            def rd(T):
                wrd("v19", "v10", T, 44 + 4 * (T % 5))
                if T < 16:
                    a(f"ds_read_b128 {vr(XF+4*T,4)}, v20 offset:{T*16}")
                else:
                    a(f"ds_read_b128 {vr(XF+4*T,4)}, {'v11' if T == 16 else 'v9'}")
            for T in range(4):
                rd(T)
            for T in range(18):
                if T + 4 < 18:
                    rd(T + 4)
                a(f"s_waitcnt lgkmcnt({3 * (min(T + 5, 18) - T - 1)})")
                W, X = vr(44 + 4 * (T % 5), 4), vr(XF + 4 * T, 4)
                A, B = (X, W) if swap else (W, X)
                a(f"v_mfma_f32_16x16x32_bf16 {acc}, {A}, {B}, {'0' if T == 0 else acc}")
            self.add1(CK)
        kpath = a.label("EK"); done = a.label("EKD")
        a(f"s_cmp_lt_u32 {sJ}, 4\ns_cbranch_scc1 {kpath}")
        a(f"""
s_lshl_b32 s90, s90, 1
s_add_u32 s90, s90, s91
s_mul_i32 s90, s90, {VPITCH}
s_add_u32 s90, s90, {WS_VF}
s_sub_u32 s73, {sJ}, 4
s_lshl_b32 s73, s73, 2
v_add_u32 v36, s73, v14
v_cmp_eq_u32 vcc, 7, v14
v_lshrrev_b32 v37, 1, v15
v_cndmask_b32 v36, v36, 18, vcc
v_lshlrev_b32 v36, 5, v36
v_lshl_add_u32 v36, v37, 3, v36
v_and_b32 v37, 1, v15
v_lshl_add_u32 v36, v37, 4, v36
v_mov_b32 v37, 0x3f803f80
v_lshl_add_u32 v38, v15, 4, s99
s_mov_b32 s88, 0x000f000f
s_cmp_eq_u32 {sJ}, 7
s_cmov_b32 s88, 0x00bf00bf
""")
        land()
        kv_gemm(True)
        a(f"""
v_cvt_pk_bf16_f32 v22, v{AK_}, v{AK_+1}
v_cvt_pk_bf16_f32 v23, v{AK_+2}, v{AK_+3}
v_cndmask_b32 v22, v22, v37, vcc
v_cndmask_b32 v23, v23, v37, vcc
s_mov_b32 exec_lo, s88
s_mov_b32 exec_hi, s88
buffer_store_dwordx2 v[22:23], v36, {SWS}, s90 offen sc1
s_mov_b64 exec, -1
""")
        for r in range(4):
            a(f"v_mul_f32 v{AK_+r}, s92, v{AK_+r}\nv_exp_f32 v{AK_+r}, v{AK_+r}")
        for r in range(4):
            a(f"v_add_f32 v{AK_+r}, 1.0, v{AK_+r}\nv_rcp_f32 v{AK_+r}, v{AK_+r}")
        a(f"""
s_mov_b32 exec_lo, 0x00400040
s_mov_b32 exec_hi, 0x00400040
ds_write_b128 v38, {vr(AK_,4)}
s_branch {done}
{kpath}:
s_lshl_b32 s91, s91, 4
v_add_u32 v37, s91, v14
v_lshlrev_b32 v36, 5, v37
v_lshlrev_b32 v37, 3, v37
v_lshl_add_u32 v38, v14, 2, s99
s_lshl_b32 s88, s90, 10
s_lshl_b32 s73, {sJ}, 3
s_add_u32 s88, s88, s73
s_add_u32 s88, s88, {WS_K16}
s_lshl_b32 s90, {sP}, 8
s_lshr_b32 s73, {sW}, 1
s_lshl_b32 s73, s73, 2
s_add_u32 s90, s90, s73
s_add_u32 s90, s90, {WS_KX}
s_cmp_lg_u32 {sJ}, 3
s_cmov_b32 s90, {OOB}
s_mov_b32 s91, {QSCALE_BITS:#x}
""")
        land()
        kv_gemm(False)
        a(f"""
v_mul_f32 v39, s92, v{AK_+2}
v_mul_f32 v{AK_}, s91, v{AK_}
v_mul_f32 v{AK_+1}, s91, v{AK_+1}
v_mul_f32 v{AK_+2}, s91, v{AK_+2}
v_mul_f32 v{AK_+3}, s91, v{AK_+3}
v_cvt_pk_bf16_f32 v22, v{AK_}, v{AK_+1}
v_cvt_pk_bf16_f32 v23, v{AK_+2}, v{AK_+3}
s_mov_b64 exec, 0xffff
buffer_store_dwordx2 v[22:23], v36, {SWS}, s88 offen sc1
s_mov_b32 exec_lo, 0xffff0000
buffer_store_dword v22, v37, {SWS}, s90 offen sc1
v_exp_f32 v39, v39
s_nop 0
v_add_f32 v39, 1.0, v39
v_rcp_f32 v39, v39
s_nop 0
ds_write_b32 v38, v39
{done}:
s_mov_b64 exec, -1
""")
        self.stamp(7, 3)
        a(f"""
s_lshl_b32 s73, {sP}, 3
s_add_u32 s73, s73, {sJ}
s_lshl_b32 s73, s73, 4
s_add_u32 s91, s73, {WS_FKV}
v_bfe_u32 v22, v0, 2, 2
v_lshl_add_u32 v19, v18, 3, v22
v_lshlrev_b32 v19, 6, v19
v_bfe_u32 v22, v0, 4, 1
v_lshl_add_u32 v19, v22, 5, v19
v_and_b32 v22, 3, v0
v_lshl_add_u32 v19, v22, 3, v19
s_and_b32 s73, {sW}, 1
s_mul_i32 s73, s73, {L_WQ1 - L_WQ0}
s_add_u32 s73, s73, {L_WQ0}
v_add_u32 v19, s73, v19
s_lshr_b32 s73, {sW}, 1
s_lshl_b32 s73, s73, 5
v_add_u32 v21, s73, v17
v_mul_u32_u24 v13, {XP}, v21
v_lshl_add_u32 v13, v18, 4, v13
v_mul_u32_u24 v26, 48, v4
v_add_u32 v26, {L_QS + 36}, v26
v_lshrrev_b32 v22, 1, v21
v_xor_b32 v22, v22, v18
v_and_b32 v22, 7, v22
v_lshlrev_b32 v22, 4, v22
v_lshl_add_u32 v6, v21, 7, v22
v_add_u32 v6, {L_X2}, v6
v_xor_b32 v7, 32, v6
v_xor_b32 v8, 64, v6
v_xor_b32 v9, 0x60, v6
v_mul_u32_u24 v22, 48, v21
v_add_u32 v22, {L_QS}, v22
v_lshl_add_u32 v23, v18, 3, v22
v_mul_u32_u24 v24, 3044, v18
v_add_u32 v24, v24, v22
s_lshl_b32 s73, {sW}, 4
v_add_u32 v25, s73, v14
v_mul_u32_u24 v25, 48, v25
v_lshl_add_u32 v25, v15, 3, v25
v_add_u32 v25, {L_QS + 3*3072 + 20}, v25
v_mov_b32 v27, 0
v_lshlrev_b32 v28, 4, v0
s_lshl_b32 s93, {sW}, 10
s_add_u32 s93, s93, {WS_FKV}
""")
        self.kv_addr()
        nf = a.label("NF")
        a(f"s_waitcnt vmcnt(0)\ns_mov_b64 exec, 1\nds_add_rtn_u32 v1, v2, v3 offset:{CF}\ns_mov_b64 exec, -1\ns_waitcnt lgkmcnt(0)")
        a(f"v_readfirstlane_b32 s73, v1\ns_cmp_lg_u32 s73, 3\ns_cbranch_scc1 {nf}")
        self.set_flag("s91")
        a(f"{nf}:")
        self.stamp(3, 3)
        RX, AM, AXQ = 64, 232, 248
        def rdm(t):
            b = RG + 8 * (t % 4)
            a(f"ds_read_b64_tr_b16 {vr(b,2)}, v19 offset:{t*1024}\nds_read_b64_tr_b16 {vr(b+2,2)}, v19 offset:{t*1024+256}")
            a(f"ds_read_b128 {vr(b+4,4)}, v13 offset:{t*32}" if t < 32 else f"ds_read_b128 {vr(b+4,4)}, v{6+t-32}")
        def mm(t):
            b = RG + 8 * (t % 4)
            a(f"v_mfma_f32_32x32x16_bf16 {vr(AM,16)}, {vr(b,4)}, {vr(b+4,4)}, {'0' if t == 0 else vr(AM,16)}")
        def stage(t0, t1):
            for t in range(t0, min(t0 + 3, t1)):
                rdm(t)
            for t in range(t0, t1):
                if t + 3 < t1:
                    rdm(t + 3)
                a(f"s_waitcnt lgkmcnt({3 * (min(t + 4, t1) - t - 1)})")
                mm(t)
        self.wait(C0A, 2, sleep=0)
        self.stamp(4, 3)
        stage(0, 12)
        self.add1(CE)
        self.wait(C0B, 2, sleep=0)
        flags = f"buffer_load_dword v84, v28, {SWS}, s93 offen sc1"
        stage(12, 20)
        self.wait(C0D, 2, sleep=0)
        stage(20, 28)
        self.wait(C0C, 2, sleep=0)
        self.stamp(9, 3)
        a(flags)
        seq = []
        xs = list(range(18))
        for t in range(28, 36):
            seq.append(("m", t))
            for _ in range(3 if t < 30 else 2):
                seq.append(("x", xs.pop(0)))
        assert not xs
        cost = lambda it: 3 if it[0] == "m" else 2
        def issue(it):
            if it[0] == "m": rdm(it[1])
            else: wrd("v16", "v12", it[1], RX + 4 * (it[1] % 3))
        AH = 3
        for it in seq[:AH]:
            issue(it)
        a(f"ds_read_b32 v31, v2 offset:{CE}")
        for i, it in enumerate(seq):
            ahead = sum(cost(x) for x in seq[i + 1:i + AH]) + (1 if i < AH else 0)
            a(f"s_waitcnt lgkmcnt({ahead})")
            if it[0] == "m":
                mm(it[1])
            else:
                T = it[1]
                a(f"v_mfma_f32_16x16x32_bf16 {vr(AXQ,4)}, {vr(RX+4*(T%3),4)}, {vr(XF+4*T,4)}, {'0' if T == 0 else vr(AXQ,4)}")
            if i + AH < len(seq):
                issue(seq[i + AH])
        self.stamp(8, 3)
        miss = a.label("KM")
        a("s_waitcnt vmcnt(0)")
        self.cmp_regs([84], sTAG)
        a(f"s_cselect_b32 s89, 1, 0\ns_cbranch_scc0 {miss}")
        self.kv_loads()
        a(f"{miss}:")
        self.stamp(11, 3)
        ok = a.label("CEOK")
        a(f"v_readfirstlane_b32 s73, v31\ns_cmp_ge_u32 s73, 4\ns_cbranch_scc1 {ok}")
        self.wait(CE, 4, sleep=0)
        a(f"{ok}:")
        a(f"ds_write_b32 v26, v27\nv_cvt_pk_bf16_f32 v{AXQ}, v{AXQ}, v{AXQ+1}\nv_cvt_pk_bf16_f32 v{AXQ+1}, v{AXQ+2}, v{AXQ+3}")
        a(f"s_mov_b32 exec_hi, 0\nds_write2_b32 v25, v{AXQ}, v{AXQ+1} offset0:0 offset1:1\ns_mov_b64 exec, -1")
        m1 = a.label("QM1"); md = a.label("QMD")
        a(f"s_bitcmp1_b32 {sW}, 0\ns_cbranch_scc1 {m1}")
        off = lambda c: (c // 18) * 3072 + (c % 18) * 2
        for m in range(2):
            if m == 1:
                a(f"s_branch {md}\n{m1}:")
            for k in range(8):
                c0 = 32 * m + 8 * (k // 2) + 2 * (k % 2)
                d = off(c0 + 4) - off(c0)
                assert d in (8, 3044)
                a(f"v_cvt_pk_bf16_f32 v{AM+k}, v{AM+2*k}, v{AM+2*k+1}")
                a(f"ds_write_b32 {'v23' if d == 8 else 'v24'}, v{AM+k} offset:{off(c0)}")
        a(f"{md}:")
        self.add1(C1)
        have = a.label("KH")
        a(f"s_cmp_eq_u32 s89, 1\ns_cbranch_scc1 {have}")
        self.poll(flags, [84], sleep=12)
        self.kv_loads()
        a(f"{have}:")
        self.stamp(10, 3); self.stamp(10)
        a(f"s_setprio 2\ns_mov_b32 s99, {OOB}\nv_mov_b32 v232, v2")

    def panel_setup(self, nw, va=14):
        self.a(f"""
v_lshrrev_b32 v{va}, 2, v0
v_mul_u32_u24 v{va}, 1152, v{va}
v_and_b32 v{va+1}, 3, v0
v_lshl_add_u32 v{va}, v{va+1}, 4, v{va}
v_mul_u32_u24 v{va+1}, 1152, v0
s_and_b32 s73, {sW}, {nw-1}
s_mul_i32 s84, s73, {16*1152}
s_add_u32 s84, s84, s95
s_lshl_b32 s85, s73, 10
""")

    def panel_loads(self, srd, l0, l1, lx, padded, end, nw, va=14, rotate=False):
        a = self.a
        lp = a.label("PNL")
        if rotate:
            a(f"s_lshr_b32 s73, {sP}, 3\ns_mul_i32 s82, s73, {8*1024}\ns_add_u32 s85, s85, s82\ns_mul_i32 s82, s73, {8*16*1152}\ns_add_u32 s84, s84, s82\ns_mov_b32 s88, {end//nw - 1}")
        a(f"""
{lp}:
s_add_u32 m0, s85, {l0}
s_add_u32 s83, s84, 128
buffer_load_dwordx4 v{va}, {srd}, s84 offen lds
s_add_u32 m0, s85, {l1 - 64}
s_lshr_b32 s82, s85, 2
buffer_load_dwordx4 v{va}, {srd}, s84 offen offset:64 lds
""")
        if padded:
            a("s_lshr_b32 s73, s85, 13\ns_lshl_b32 s73, s73, 7\ns_add_u32 s82, s82, s73")
        a(f"""
s_add_u32 m0, s82, {lx}
s_mov_b64 exec, 0xffff
buffer_load_dwordx4 v{va+1}, {srd}, s83 offen lds
s_mov_b64 exec, -1
s_add_u32 s85, s85, {1024*nw}
s_add_u32 s84, s84, {16*nw*1152}
s_cmp_lt_u32 s85, {1024*end}
""")
        if rotate:
            a(f"s_cselect_b32 s82, 0, {1024*end}\ns_cselect_b32 s83, 0, {16*1152*end}\ns_sub_u32 s85, s85, s82\ns_sub_u32 s84, s84, s83\ns_sub_u32 s88, s88, 1\ns_cbranch_scc0 {lp}")
        else:
            a(f"s_cbranch_scc1 {lp}")

    def l_front(self):
        a = self.a
        a(f"""
s_load_dword {sTAG}, s[26:27], {WS_EPOCH}
v_lshl_add_u32 v5, v0, 2, v2
v_mov_b32 v6, 0
ds_write_b32 v5, v6 offset:2048
v_lshlrev_b32 v5, 3, v4
v_add_u32 v5, {L_CT - 2048}, v5
v_mov_b32 v7, 0
ds_write_b64 v5, v[6:7]
s_sub_u32 s99, {sW}, 4
v_and_b32 v18, 31, v0
v_lshrrev_b32 v19, 5, v0
s_lshl_b32 s89, s99, 3
s_add_u32 s89, s89, {sJ}
s_cmp_ge_u32 s89, 18
s_cselect_b32 s89, 99, s89
v_bfe_u32 v20, v0, 2, 1
v_lshlrev_b32 v20, 4, v20
v_bfe_u32 v21, v0, 3, 2
v_lshl_add_u32 v20, v21, 2, v20
v_and_b32 v21, 3, v0
v_add_u32 v20, v20, v21
""")
        if "ipf" in self.opts:
            n4 = a.label("NPF")
            a(f"""
s_cmp_lg_u32 {sW}, 6
s_cbranch_scc1 {n4}
s_getpc_b64 s[64:65]
L_pc0:
s_sub_u32 s64, s64, L_pc0-{NAME}_kernel
s_subb_u32 s65, s65, 0
s_mov_b32 s66, L_end-{NAME}_kernel
s_mov_b32 s67, 0x20000
s_lshr_b32 s73, s2, 3
v_lshlrev_b32 v8, 12, v0
s_lshl_b32 s73, s73, 7
buffer_load_dword v9, v8, {STB}, s73 offen
s_getpc_b64 s[64:65]
s_add_u32 s64, s64, spectral_tables@rel32@lo+4
s_addc_u32 s65, s65, spectral_tables@rel32@hi+12
s_mov_b32 s66, {2*self.NTAB*1024}
s_nop 1
buffer_load_dword v10, v8, {STB}, s73 offen
{n4}:
""")
        self.srd(SWS, 26, WS_SIZE)
        self.srd(SWQ, 12, 663552)
        FPRE = self.opt("fpre", 8)
        def fsetup():
            a(f"""
s_lshl_b32 s73, s89, 5
v_add_u32 v44, s73, v18
v_lshrrev_b32 v45, 1, v44
v_and_b32 v46, 1, v44
v_cmp_eq_u32 vcc, 1, v44
v_mov_b32 v47, 288
v_cndmask_b32 v45, v45, v47, vcc
v_cndmask_b32 v46, v46, 0, vcc
v_and_b32 v47, 1, v45
v_lshlrev_b32 v47, 31, v47
v_or_b32 v17, 1.0, v47
v_cvt_f32_u32 v45, v45
v_cvt_f32_u32 v46, v46
v_mul_f32 v45, {f32bits(1/576):#x}, v45
v_mul_f32 v46, 0x3e800000, v46
v_lshlrev_b32 v47, 3, v19
v_cvt_f32_u32 v47, v47
v_fma_f32 v46, v47, v45, v46
v_mul_f32 v55, 0x41800000, v45
""")
            for jj in range(8):
                a(f"s_mov_b32 s73, {f32bits(jj):#x}\nv_fma_f32 v{56+jj}, s73, v45, v46")
        def fgen(t):
            if t:
                a(f"s_mov_b32 s73, {f32bits(t):#x}")
            for jj in range(8):
                if t:
                    a(f"v_fma_f32 v{64+jj}, s73, v55, v{56+jj}\nv_cos_f32 v{64+jj}, v{64+jj}")
                else:
                    a(f"v_cos_f32 v{64+jj}, v{56+jj}")
            for k in range(4):
                a(f"v_cvt_pk_bf16_f32 v{104+4*t+k}, v{64+2*k}, v{65+2*k}")
        npre = a.label("NPRE"); n7 = a.label("NW7")
        a(f"v_mov_b32 v23, 0\ns_mov_b32 s98, {OOB}")
        if "wearly" in self.opts:
            a(f"s_cmp_lg_u32 {sW}, 7\ns_cbranch_scc1 {n7}")
            self.wt_loads()
        a(f"{n7}:\ns_cmp_eq_u32 s89, 99\ns_cbranch_scc1 {npre}")
        fsetup()
        for t in range(FPRE):
            fgen(t)
        a(f"{npre}:\ns_waitcnt lgkmcnt(0)")
        self.tag()
        a("s_barrier")
        wqd = a.label("WQD")
        a(f"s_cmp_lt_u32 {sW}, 6\ns_cbranch_scc1 {wqd}")
        self.panel_setup(2)
        self.panel_loads(SWQ, L_WQ0, L_WQ1, L_P2Q, True, 20, 2)
        a("s_waitcnt vmcnt(12)")
        self.add1(C0A)
        self.panel_loads(SWQ, L_WQ0, L_WQ1, L_P2Q, True, 26, 2)
        self.wait(CK, 4, sleep=0)
        self.panel_loads(SWQ, L_WQ0, L_WQ1, L_P2Q, True, 36, 2)
        self.stamp(6, 3)
        a("s_waitcnt vmcnt(24)")
        self.add1(C0B)
        a("s_waitcnt vmcnt(12)")
        self.add1(C0D)
        if "wmid" in self.opts:
            n7 = a.label("NM7"); d7 = a.label("DM7")
            a(f"s_cmp_lg_u32 {sW}, 7\ns_cbranch_scc1 {n7}")
            self.wt_loads()
            a(f"s_waitcnt vmcnt(16)\ns_branch {d7}\n{n7}:\ns_waitcnt vmcnt(0)\n{d7}:")
        else:
            a("s_waitcnt vmcnt(0)")
        self.add1(C0C)
        self.stamp(1, 3)
        a(f"{wqd}:")
        nod = a.label("NOD")
        a(f"s_cmp_eq_u32 s89, 99\ns_cbranch_scc1 {nod}")
        for t in range(FPRE, 18):
            fgen(t)
        self.stamp(9, 3)
        a(f"""
v_mul_u32_u24 v25, {XP}, v20
v_lshl_add_u32 v25, v19, 4, v25
v_lshrrev_b32 v22, 1, v20
v_xor_b32 v22, v22, v19
v_and_b32 v22, 7, v22
v_lshlrev_b32 v22, 4, v22
v_lshl_add_u32 v6, v20, 7, v22
v_add_u32 v6, {L_X2}, v6
v_xor_b32 v7, 32, v6
v_xor_b32 v8, 64, v6
v_xor_b32 v9, 0x60, v6
v_lshlrev_b32 v22, 12, v18
v_lshl_add_u32 v22, v19, 5, v22
s_lshl_b32 s90, s89, 17
s_lshl_b32 s73, {sP}, 7
s_add_u32 s90, s90, s73
s_add_u32 s90, s90, {WS_T}
""")
        RG = 44
        def frag(t, n, q):
            return vr(RG + 16 * (t % 3) + 8 * n + 4 * q, 4)
        def rd(t):
            for n in range(2):
                for q in range(2):
                    ks = t + 18 * q
                    if ks < 32:
                        a(f"ds_read_b128 {frag(t,n,q)}, v25 offset:{n*32*XP + ks*32}")
                    else:
                        a(f"ds_read_b128 {frag(t,n,q)}, v{6+ks-32} offset:{n*4096}")
        def dft(t0, t1):
            for t in range(t0, min(t0 + 2, t1)):
                rd(t)
            for t in range(t0, t1):
                if t + 2 < t1:
                    rd(t + 2)
                a(f"s_waitcnt lgkmcnt({4 * (min(t+3, t1) - t - 1)})")
                for n in range(2):
                    for q in range(2):
                        acc = vr(176 + 32 * n + 16 * q, 16)
                        a(f"v_mfma_f32_32x32x16_bf16 {acc}, {frag(t,n,q)}, {vr(104+4*t,4)}, {'0' if t == 0 else acc}")
        DPRE = self.opt("dpre", 10)
        if DPRE:
            self.wait(CK, 4)
            dft(0, DPRE)
        a("s_setprio 3")
        self.wait(C1, 4)
        self.stamp(3, 3)
        dft(DPRE, 18)
        self.stamp(8, 3)
        self.wait(CV, 4, sleep=2)
        for n in range(2):
            b = 176 + 32 * n
            for r in range(16):
                a(f"v_fma_f32 v{b+r}, v17, v{b+16+r}, v{b+r}")
            for k in range(8):
                a(f"v_cvt_pk_bf16_f32 v{b+k}, v{b+2*k}, v{b+2*k+1}")
            a(f"buffer_store_dwordx4 {vr(b,4)}, v22, {SWS}, s90 offen offset:{64*n} sc1")
            a(f"buffer_store_dwordx4 {vr(b+4,4)}, v22, {SWS}, s90 offen offset:{64*n+16} sc1")
        a(f"{nod}:")
        n6 = a.label("N6"); n7 = a.label("N7")
        a(f"s_cmp_eq_u32 {sW}, 7\ns_cbranch_scc1 {n7}\ns_cmp_lg_u32 {sW}, 6\ns_cbranch_scc1 {n6}\ns_setprio 3")
        self.wait(CV, 4, sleep=2)
        self.poison()
        a(f"{n6}:\ns_waitcnt vmcnt(0)")
        self.add1(CD)
        self.stamp(4, 3); self.stamp(4)
        a(f"{n7}:")

    def g_gen(self):
        a = self.a
        N = 1.0 / (M.S * M.D)
        skip = a.label("GS"); nx = a.label("GNX"); nk = a.label("GNK")
        assert all((f * 1821) >> 16 == f // 36 for f in range(864))
        assert all((f * 21846) >> 16 == f // 3 for f in range(24))
        a(f"""
s_mov_b32 s99, {OOB}
s_cmp_ge_u32 s2, 216
s_cbranch_scc1 {skip}
s_lshl_b32 s90, s2, 2
s_lshl_b32 s99, s2, 12
s_add_u32 s99, s99, {WS_G}
s_mul_i32 s91, s90, 1821
s_lshr_b32 s91, s91, 16
s_mul_i32 s73, s91, 36
s_sub_u32 s92, s90, s73
s_mul_i32 s93, s91, 21846
s_lshr_b32 s93, s93, 16
s_mul_i32 s73, s93, 3
s_sub_u32 s91, s91, s73
s_mul_i32 s93, s93, 72
s_lshl_b32 s73, s91, 5
s_add_u32 s93, s93, s73
v_mov_b32 v44, v20
s_cmp_lg_u32 s91, 2
s_cbranch_scc1 {nx}
v_mov_b32 v44, v18
{nx}:
v_add_u32 v44, s93, v44
s_lshl_b32 s73, s92, 3
v_lshl_add_u32 v45, v19, 2, s73
v_mul_u32_u24 v45, v45, v44
v_mul_u32_u24 v47, 5, v44
s_mov_b32 s73, {f32bits(1/576):#x}
s_mov_b32 s93, {f32bits(2*N):#x}
""")
        for fr in range(4):
            for cq in range(4):
                a(f"v_cvt_f32_u32 v46, v45\nv_mul_f32 v46, s73, v46\nv_fract_f32 v46, v46")
                a(f"v_cos_f32 v{48+2*cq}, v46\nv_sin_f32 v{49+2*cq}, v46")
                a("v_add_u32 v45, v45, v44" if cq < 3 else "v_add_u32 v45, v45, v47")
            for cq in range(4):
                a(f"v_mul_f32 v{48+2*cq}, s93, v{48+2*cq}\nv_mul_f32 v{49+2*cq}, s93, -v{49+2*cq}")
            if fr == 0:
                a(f"""
s_cmp_lg_u32 s92, 0
s_cbranch_scc1 {nk}
s_mov_b32 exec_hi, 0
v_mov_b32 v48, {f32bits(N):#x}
v_lshlrev_b32 v49, 31, v44
v_or_b32 v49, v48, v49
s_mov_b64 exec, -1
{nk}:
""")
            for k in range(4):
                a(f"v_cvt_pk_bf16_f32 v{240+4*fr+k}, v{48+2*k}, v{49+2*k}")
        a(f"{skip}:")

    WB = 112

    def poison(self):
        a = self.a
        a(f"v_lshlrev_b32 v24, 4, v0\nv_mov_b32 v28, -1\nv_mov_b32 v29, -1\nv_mov_b32 v30, -1\nv_mov_b32 v31, -1")
        a(f"s_mul_i32 s90, {sP}, {8*9216}\ns_add_u32 s90, s90, {WS_OF}\ns_mul_i32 s91, {sJ}, 9216\ns_add_u32 s91, s91, s90\ns_add_u32 s91, s91, 8192")
        a(f"buffer_store_dwordx4 v[28:31], v24, {SWS}, s91 offen sc1\ns_lshl_b32 s73, {sJ}, 10\ns_add_u32 s90, s90, s73")
        for i in range(8):
            a(f"buffer_store_dwordx4 v[28:31], v24, {SWS}, s90 offen sc1\ns_add_u32 s90, s90, 9216")

    def wt_loads(self):
        a = self.a
        self.srd(SWR, 6, 2048 * 578)
        self.srd(SWI, 8, 2048 * 578)
        a(f"""
v_and_b32 v26, 7, v0
v_lshrrev_b32 v27, 3, v0
v_mul_u32_u24 v22, 578, v26
v_mad_u32_u24 v22, v27, 18, v22
s_lshr_b32 s93, s2, 6
s_bfe_u32 s92, s2, 0x20004
s_and_b32 s88, s2, 15
s_lshl_b32 s90, s88, 7
s_lshl_b32 s73, s92, 3
s_add_u32 s90, s90, s73
s_mul_i32 s90, s90, 578
s_mul_i32 s73, s93, 144
s_add_u32 s90, s90, s73
""")
        for jr in range(4):
            for ri, srd in enumerate((SWR, SWI)):
                b = self.WB + 24 * ri + 6 * jr
                a(f"buffer_load_dwordx4 {vr(b,4)}, v22, {srd}, s90 offen\nbuffer_load_dword v{b+4}, v22, {srd}, s90 offen offset:16")
            if jr < 3:
                a(f"s_add_u32 s90, s90, {32*578}")
        a(f"""
s_mov_b32 s73, {9*8192}
v_mul_lo_u32 v23, v27, s73
v_lshl_add_u32 v23, v26, 4, v23
s_mul_i32 s98, s93, {72*8192}
s_lshl_b32 s73, s88, 8
s_add_u32 s98, s98, s73
s_and_b32 s73, s92, 1
s_lshl_b32 s73, s73, 7
s_add_u32 s98, s98, s73
s_lshr_b32 s73, s92, 1
s_lshl_b32 s73, s73, 12
s_add_u32 s98, s98, s73
s_add_u32 s98, s98, {WS_WT}
""")

    def wt_stores(self):
        a = self.a
        last = a.label("WL")
        a("s_mov_b32 s92, 0x05040100\ns_mov_b32 s93, 0x07060302")
        for x in range(10):
            if x == 9:
                a(f"s_cmp_lt_u32 s2, 192\ns_cbranch_scc1 {last}\ns_mov_b32 exec_lo, 0\ns_mov_b32 exec_hi, 0xff000000")
            t = self.WB + 48 + 4 * (x % 3)
            for ri in range(2):
                for pr in range(2):
                    lo = self.WB + 24 * ri + 12 * pr + x // 2
                    a(f"v_perm_b32 v{t+2*ri+pr}, v{lo+6}, v{lo}, {'s93' if x % 2 else 's92'}")
            a(f"buffer_store_dwordx4 {vr(t,4)}, v23, {SWS}, s98 offen sc1\ns_add_u32 s98, s98, 8192")
        a(f"s_mov_b64 exec, -1\n{last}:")

    def s_flag(self):
        a = self.a
        self.g_gen()
        a("s_setprio 3\nv_lshlrev_b32 v24, 4, v0")
        self.wait(CV, 4, sleep=2)
        self.stamp(3, 3)
        if "wearly" not in self.opts and "wmid" not in self.opts:
            self.wt_loads()
        a("s_waitcnt vmcnt(0)")
        self.wt_stores()
        for fr in range(4):
            a(f"buffer_store_dwordx4 {vr(240+4*fr,4)}, v24, {SWS}, s99 offen offset:{1024*fr} sc1")
        self.stamp(10, 3)
        self.flag4("s91", "s2", WS_FS)
        a("s_waitcnt vmcnt(0)")
        self.stamp(11, 3)
        self.wait(CD, 3, sleep=2)
        self.set_flag("s91")
        self.add1(CW)
        self.stamp(6); self.stamp(2, 3)
        self.wait(CR, 4, sleep=4, idle=True)
        self.stage2_tables()

    def attention(self):
        a = self.a
        K0, KX0, V0, S0, O0, Q0, QX0 = self.AK, self.AKX, self.AV, self.AS, self.AO, self.AQ, self.AQX
        a(f"""
v_and_b32 v84, 31, v0
v_lshrrev_b32 v85, 5, v0
s_lshr_b32 s88, {sW}, 2
s_mul_i32 s73, s88, 6144
s_add_u32 s73, s73, {L_QS}
v_mul_u32_u24 v{self.vQ}, 48, v84
v_add_u32 v{self.vQ}, s73, v{self.vQ}
v_lshl_add_u32 v{self.vQX}, v85, 2, v{self.vQ}
v_add_u32 v{self.vQX}, 32, v{self.vQX}
v_lshl_add_u32 v{self.vQ}, v85, 4, v{self.vQ}
s_and_b32 s73, {sW}, 3
s_mul_i32 s73, s73, 2560
s_add_u32 s73, s73, {L_EX}
v_lshl_add_u32 v{self.vEX}, v0, 4, s73
s_add_u32 s73, s73, 2048
v_lshl_add_u32 v{self.vEX2}, v0, 3, s73
s_lshl_b32 s73, s88, 10
s_add_u32 s73, s73, {L_CT}
v_lshl_add_u32 v{self.vCT}, v0, 2, s73
s_mul_i32 s73, s88, {CN - C1}
v_add_u32 v86, s73, v2
v_mov_b32 v{QX0+1}, 0
v_mov_b32 v{QX0+2}, 0
""")
        self.wait(C1, 4, sleep=0)
        self.stamp(5); self.stamp(5, 3); self.stamp(1, 5)
        qmain = lambda q: f"ds_read_b128 {vr(Q0,4)}, v{self.vQ} offset:{1536*(q%4)}"
        qx = lambda q: f"ds_read_b32 v{QX0}, v{self.vQX} offset:{1536*(q%4)}\nds_read_b32 v{QX0+3}, v{self.vQX} offset:{1536*(q%4)}"
        a(qmain(0)); a(qx(0))
        keys = lambda kind, t: ([("K", t)] + ([] if t % 2 else [("X", t)])) if kind == "K" else [("V0", t), ("V1", t)]
        issued = []
        for t in range(self.NFIRST):
            issued += keys("K", t) + keys("V", t)
        state = {"done": 0}
        def need(*ks):
            idx = max(issued.index(k) for k in ks) + 1
            if idx > state["done"]:
                state["done"] = idx
                return [f"s_waitcnt vmcnt({len(issued) - idx})"]
            return []
        slots = {}
        def put(g, name, *items):
            slots.setdefault((g, name), []).extend(items)
        def put_loads(kind, t, where):
            ins = self.ld_k(t, t % 8) if kind == "K" else self.ld_v(t, t % 8)
            for x, key, (g, name) in zip(ins, keys(kind, t), where):
                put(g, name, (key, x))
        for t in range(self.NFIRST, 8):
            g = t - self.NFIRST
            put_loads("K", t, [(g, "B"), (g, "B")])
            put_loads("V", t, [(g, "C"), (g, "D")])
        for t in range(8):
            g = 24 + (3 * t) // 2
            put_loads("K", 8 + t, [(g, "C"), (g, "D")])
            put_loads("V", 8 + t, [(g + 1, "A"), (g + 1, "B")])
        def slot(g, name):
            out = []
            for it in slots.get((g, name), []):
                if isinstance(it, tuple):
                    issued.append(it[0]); out.append(it[1])
                else:
                    out.append(it)
            return out
        sreg = lambda g: S0 + 16 * (g % 2)
        oreg = lambda ps: O0 + 10 * (ps % 4)
        def qk16(g):
            return f"v_mfma_f32_32x32x16_bf16 {vr(sreg(g),16)}, {vr(K0+4*(g%8),4)}, {vr(Q0,4)}, 0"
        def qkx(g):
            return f"v_mfma_f32_32x32x8_bf16 {vr(sreg(g),16)}, {vr(KX0+2*((g%8)//2),2)}, {vr(QX0+2*(g%2),2)}, {vr(sreg(g),16)}"
        def pv(g, u):
            o = vr(oreg(g // 8), 16)
            c = "0" if (g // 8 < 4 and g % 8 == 0 and u == 0) else o
            return f"v_mfma_f32_32x32x16_bf16 {o}, {vr(V0+8*(g%8)+4*u,4)}, {vr(sreg(g)+4*u,4)}, {c}"
        kt = lambda g: (g % 8) + (8 if g >= 32 else 0)
        def kneed(g):
            t = kt(g)
            return need(("K", t), ("X", t & ~1))
        def export(q):
            o = O0 + 10 * q
            return [f"ds_write_b128 v{self.vEX}, {vr(o,4)} offset:{10240*q}", f"ds_write_b128 v{self.vEX}, {vr(o+4,4)} offset:{10240*q+1024}",
                    f"ds_write_b64 v{self.vEX2}, {vr(o+8,2)} offset:{10240*q}",
                    f"ds_add_u32 v{self.vCT}, v3 offset:{256*q}"]
        for x in kneed(0) + ["s_waitcnt lgkmcnt(0)", qk16(0), qkx(0)]:
            a(x)
        for ps in range(7):
            put(8 * ps + 6, "B", qmain(ps + 1))
            q1, q2 = qx(ps + 1).split("\n")
            put(8 * ps + 6, "C", q1); put(8 * ps + 6, "D", q2)
        for ps in range(5, 8):
            ex = export(ps - 5)
            put(8 * ps, "C", ex[0]); put(8 * ps, "D", ex[1]); put(8 * ps + 1, "A", ex[2]); put(8 * ps + 1, "B", ex[3])
        hi = a.label("PHI"); nf = a.label("NYF"); lo = a.label("PLO"); ok = a.label("CNOK")
        put(7 - self.NFIRST, "D", f"s_mov_b64 exec, 1\nds_add_u32 v2, v3 offset:{CV}\ns_mov_b64 exec, -1\ns_cmp_lt_u32 {sW}, 4\ns_cbranch_scc1 {hi}\ns_setprio 1\n{hi}:")
        put(1, "D", f"s_cmp_eq_u32 s99, {OOB}\ns_cbranch_scc1 {nf}\ns_waitcnt vmcnt(7)\ns_mov_b64 exec, 1\nds_add_rtn_u32 v233, v232, v3 offset:{YA}\n"
                    f"v_mov_b32 v1, {sTAG}\ns_waitcnt lgkmcnt(0)\nv_readfirstlane_b32 s73, v233\ns_cmp_lg_u32 s73, 1\ns_cmov_b32 s99, {OOB}\n"
                    f"buffer_store_dword v1, off, {SWS}, s99 sc1\ns_mov_b64 exec, -1\n{nf}:")
        put(23, "D", "s_setprio 3")
        put(self.opt("cr", 35), "C", f"s_mov_b64 exec, 1\nds_add_u32 v2, v3 offset:{CR}\ns_mov_b64 exec, -1")
        put(36, "A", f"s_setprio 1\ns_cmp_ge_u32 {sW}, 4\ns_cbranch_scc1 {lo}\ns_setprio 2\n{lo}:")
        put(36, "D", f"ds_read_b32 v87, v86 offset:{C1}")
        for g in range(64):
            ps, t = divmod(g, 8)
            s = sreg(g)
            e = lambda i: f"v_exp_f32 v{s+i}, v{s+i}"
            c = lambda k: f"v_cvt_pk_bf16_f32 v{s+k}, v{s+2*k}, v{s+2*k+1}"
            last = g == 63
            seq = [e(0), e(1)]
            if g > 0:
                seq.append(pv(g - 1, 1))
            seq += slot(g, "A")
            if not last:
                w = kneed(g + 1)
                if t == 7:
                    w = [(w[0] + " " if w else "s_waitcnt ") + "lgkmcnt(0)"]
                seq += w
            seq += [e(2), e(3), c(0), e(4), c(1)]
            if not last:
                seq.append(qk16(g + 1))
            seq += slot(g, "B") + [e(5), e(6), e(7), c(2), e(8), c(3)]
            if not last:
                seq.append(qkx(g + 1))
            seq += slot(g, "C") + need(("V0", kt(g)), ("V1", kt(g)))
            seq += [e(9), e(10), e(11), c(4), e(12), c(5), pv(g, 0)] + slot(g, "D") + [e(13), e(14), e(15), c(6), c(7)]
            for x in seq:
                a(x)
            if g == 39:
                a(f"v_readfirstlane_b32 s73, v87\ns_cmp_ge_u32 s73, 4\ns_cbranch_scc1 {ok}")
                self.wait(C1, 4, sleep=2, base="v86")
                a(f"{ok}:")
            if g == 7:
                self.stamp(11)
            if t == 7:
                self.stamp(2 + ps, 5)
        a(pv(63, 1))
        self.norm_setup(1)
        ex = export(3)
        for x in ex[:3]:
            a(x)
        a(f"ds_add_rtn_u32 v1, v{self.vCT}, v3 offset:768")

    T64, T32A, TW1, TW2, T32B, NTAB = 0, 24, 27, 35, 43, 49
    NPRE = 35

    def make_tables(self):
        L = np.arange(64); Lm = (L & 15)[:, None]; Lg = (L >> 4)[:, None]
        jj = np.arange(8)[None, :]; r = np.arange(4)[None, :]
        def pk(v):
            b = M.bf(v.astype(np.float32)).astype(np.uint32)
            return (b[:, 0::2] | (b[:, 1::2] << 16)).astype(np.uint32)
        parts = lambda z: (z.real, z.imag, -z.imag)
        w = lambda n, x, y: np.exp(-2j * np.pi * ((x * y) % n) / n)
        f32 = lambda v: v.astype(np.float32).view(np.uint32)
        out = []
        for H in range(2):
            for k in range(3):
                for t in range(4):
                    for ks in range(2):
                        out.append(pk(parts(w(64, 16 * (t ^ (2 * H)) + Lm, 32 * (ks ^ H) + 16 * (jj >> 2) + 4 * Lg + (jj & 3)))[k]))
            for k in range(3):
                out.append(pk(parts(w(32, 8 * Lg + jj, 16 * H + Lm))[k]))
            for t in range(4):
                z = w(2048, 16 * (t ^ (2 * H)) + 4 * Lg + r, 16 * H + Lm)
                out += [f32(z.real), f32(z.imag)]
            for t in range(4):
                z = np.conj(w(2048, 16 * (t ^ (2 * H)) + Lm, 16 * H + 4 * Lg + r))
                out += [f32(z.real), f32(z.imag)]
            for k in range(3):
                for at in range(2):
                    out.append(pk(parts(w(32, 8 * (Lm >> 2) + 4 * at + (Lm & 3), 16 * (H ^ (jj >> 2)) + 4 * Lg + (jj & 3)))[k]))
        return np.concatenate([o.reshape(-1) for o in out])

    def tload(self, frag, dst):
        if self.tgroup != frag // 4:
            self.tgroup = frag // 4
            self.a(f"s_add_u32 s88, s87, {(frag // 4) * 4096}")
        self.a(f"buffer_load_dwordx4 {vr(dst,4)}, v5, {STB}, s88 offen offset:{(frag % 4) * 1024}")

    def stage2_tables(self):
        a = self.a
        a(f"""
s_getpc_b64 s[64:65]
s_add_u32 s64, s64, spectral_tables@rel32@lo+4
s_addc_u32 s65, s65, spectral_tables@rel32@hi+12
s_mov_b32 s66, {2*self.NTAB*1024}
s_mov_b32 s67, 0x20000
v_lshlrev_b32 v5, 4, v0
s_and_b32 s86, {sW}, 1
s_mul_i32 s87, s86, {self.NTAB*1024}
""")
        self.tgroup = None
        for f in range(24):
            self.tload(self.T64 + f, 80 + 4 * f)
        for f in range(3):
            self.tload(self.T32A + f, 240 + 4 * f)
        for f in range(8):
            self.tload(self.TW1 + f, 16 + 4 * f)

    def stage2(self):
        a = self.a
        A, P, Q, TW, WW, PK, TMP = 80, 48, 176, 16, 208, 240, 8
        self.tgroup = None
        a(f"""
v_and_b32 v6, 15, v0
v_lshlrev_b32 v6, 6, v6
v_lshrrev_b32 v7, 4, v0
v_lshl_add_u32 v6, v7, 4, v6
s_lshl_b32 s90, s89, 13
s_add_u32 s91, s90, 4096
s_cmp_eq_u32 s89, 288
s_cmov_b32 s90, 4096
s_cmov_b32 s91, {OOB}
s_cmp_eq_u32 s89, 0
s_cmov_b32 s91, {OOB}
s_lshl_b32 s73, s86, 11
s_add_u32 s90, s90, s73
s_add_u32 s91, s91, s73
s_lshl_b32 s85, s86, 12
s_sub_u32 s85, 2048, s85
s_lshr_b32 s73, {sW}, 1
s_and_b32 s73, s73, 1
s_xor_b32 s73, s73, 1
s_lshl_b32 s99, s73, 2
s_lshl_b32 s73, s73, 12
s_lshl_b32 s84, s86, 11
s_add_u32 s73, s73, s84
s_add_u32 s73, s73, {L_XCH}
v_add_u32 v7, s73, v5
s_sub_u32 s73, s73, s84
s_xor_b32 s84, s84, 0x800
s_add_u32 s84, s84, s73
""")
        cl = a.label("GC"); cg = a.label("CG"); ot = a.label("GO"); dn = a.label("GD")
        a(f"s_cmp_lg_u32 {sW}, 7\ns_cbranch_scc1 {ot}\ns_lshr_b32 s73, s2, 3\ns_cmp_lg_u32 s73, 16\ns_cbranch_scc1 {cl}")
        a(f"v_lshlrev_b32 v8, 7, v0\ns_mov_b32 s92, {WS_FS}\ns_sleep {self.opt('dw', 8)}")
        self.poll(f"buffer_load_dwordx4 v[12:15], v8, {SWS}, s92 offen sc1", [12, 13, 14, 15], sleep=4)
        a(f"s_and_b32 s92, s2, 7\ns_lshl_b32 s92, s92, 7\ns_add_u32 s92, s92, {WS_GOS}")
        self.set_flag("s92")
        a(f"s_branch {cg}\n{cl}:\ns_sleep {self.opt('d2', 32)}")
        self.go_wait(WS_GOS, 252, 8)
        a(f"{cg}:")
        self.add1(CG)
        a(f"s_branch {dn}\n{ot}:")
        self.wait(CG, 1, sleep=2, idle=True)
        a(f"s_waitcnt vmcnt(0)\n{dn}:")
        self.stamp(7)
        self.stamp(1, 2)
        a(f"s_add_u32 s92, s90, {WS_T}\ns_add_u32 s93, s91, {WS_T}\ns_add_u32 s82, s92, s85\ns_add_u32 s83, s93, s85")
        for t in range(4):
            for ri in range(2):
                so = (("s92", "s93"), ("s82", "s83"))[t >> 1][ri]
                a(f"buffer_load_dwordx4 {vr(WW+8*t+4*ri,4)}, v6, {SWS}, {so} offen offset:{1024*(t&1)} sc1")
        mf = lambda acc, x, y, first: a(f"v_mfma_f32_16x16x32_bf16 {vr(acc,4)}, {vr(x,4)}, {vr(y,4)}, {'0' if first else vr(acc,4)}")
        re = lambda base, t: base + 8 * t
        im = lambda base, t: base + 8 * t + 4
        for t in range(4):
            a(f"s_waitcnt vmcnt({6 - 2*t})")
            if t == 0: self.stamp(2, 2)
            mf(re(P, t), re(WW, t), PK, True); mf(im(P, t), re(WW, t), PK + 4, True)
            mf(re(P, t), im(WW, t), PK + 8, False); mf(im(P, t), im(WW, t), PK, False)
        a(f"s_lshl_b32 s92, s89, 13\ns_lshl_b32 s73, s86, 12\ns_add_u32 s92, s92, s73\ns_lshl_b32 s73, s86, 11\ns_add_u32 s92, s92, s73\ns_add_u32 s92, s92, {WS_WT}")
        a("s_add_u32 s82, s92, s85")
        for t in range(4):
            a(f"buffer_load_dwordx4 {vr(WW+8*t+4,4)}, v5, {SWS}, {('s92', 's82')[t >> 1]} offen offset:{1024*(t&1)} sc1")
        def cmul(x, c, dst):
            for t in range(4):
                ops = []
                for h in range(2):
                    t0, t1 = TMP + 4 * h, TMP + 4 * h + 2
                    xr, xi, cr, ci = re(x, t) + 2 * h, im(x, t) + 2 * h, re(c, t) + 2 * h, im(c, t) + 2 * h
                    ops.append([f"v_pk_mul_f32 {vr(t0,2)}, {vr(xr,2)}, {vr(cr,2)}",
                                f"v_pk_mul_f32 {vr(t1,2)}, {vr(xr,2)}, {vr(ci,2)}",
                                f"v_pk_fma_f32 {vr(t0,2)}, {vr(xi,2)}, {vr(ci,2)}, {vr(t0,2)} neg_lo:[1,0,0] neg_hi:[1,0,0]",
                                f"v_pk_fma_f32 {vr(t1,2)}, {vr(xi,2)}, {vr(cr,2)}, {vr(t1,2)}",
                                f"v_cvt_pk_bf16_f32 v{dst(t,0)+h}, v{t0}, v{t0+1}",
                                f"v_cvt_pk_bf16_f32 v{dst(t,1)+h}, v{t1}, v{t1+1}"])
                for j in range(0, 6, 2):
                    for o in ops:
                        a(o[j]); a(o[j + 1])
        pkd = lambda t, part: PK + 8 * part + 2 * t
        ks_ = lambda part, ks: PK + 8 * part + 4 * ks
        t64 = lambda k, t, ks: A + 32 * k + 8 * t + 4 * ks
        self.stamp(3, 2)
        cmul(P, TW, pkd)
        self.stamp(4, 2)
        for f in range(8):
            self.tload(self.TW2 + f, TW + 4 * f)
        for t in range(4):
            for ks in range(2):
                mf(re(Q, t), t64(0, t, ks), ks_(0, ks), ks == 0); mf(im(Q, t), t64(1, t, ks), ks_(0, ks), ks == 0)
            for ks in range(2):
                mf(re(Q, t), t64(2, t, ks), ks_(1, ks), False); mf(im(Q, t), t64(0, t, ks), ks_(1, ks), False)
        self.stamp(5, 2)
        a("s_waitcnt vmcnt(8)")
        for t in range(4):
            b = WW + 8 * t
            for k in range(4):
                a(f"v_lshlrev_b32 v{b+2*k}, 16, v{b+4+k}\nv_and_b32 v{b+2*k+1}, 0xffff0000, v{b+4+k}" if k < 2 else "")
            a(f"v_and_b32 v{b+5}, 0xffff0000, v{b+6}\nv_lshlrev_b32 v{b+4}, 16, v{b+6}\nv_lshlrev_b32 v{b+6}, 16, v{b+7}\nv_and_b32 v{b+7}, 0xffff0000, v{b+7}")
        cmul(Q, WW, pkd)
        self.stamp(6, 2)
        for f in range(6):
            self.tload(self.T32B + f, WW + 4 * f)
        for t in (2, 3, 0, 1):
            for ks in range(2):
                mf(re(P, t), ks_(0, ks), t64(0, t, ks), ks == 0); mf(im(P, t), ks_(1, ks), t64(0, t, ks), ks == 0)
            for ks in range(2):
                mf(re(P, t), ks_(1, ks), t64(1, t, ks), False); mf(im(P, t), ks_(0, ks), t64(2, t, ks), False)
        self.stamp(7, 2)
        a("v_add_u32 v232, s99, v2")
        self.kv_addr()
        self.kv_loads()
        a(f"s_waitcnt vmcnt({6 + self.NLD1})")
        cmul(P, TW, lambda t, part: (PK + 8 * t + 4 * part) if t < 2 else (Q + 4 * (t - 2) + 2 * part))
        a(f"ds_write_b128 v7, {vr(Q,4)}\nds_write_b128 v7, {vr(Q+4,4)} offset:1024")
        self.add1(XA, base="v232")
        a("v_add_u32 v7, s84, v5")
        self.wait(XA, 2, sleep=0, base="v232")
        for t in range(2):
            for part in range(2):
                a(f"ds_read_b64 {vr(PK+8*t+4*part+2,2)}, v7 offset:{1024*t+8*part}")
        self.stamp(8, 2)
        a(f"s_waitcnt vmcnt({self.NLD1}) lgkmcnt(0)")
        t32 = lambda k, at: WW + 8 * k + 4 * at
        out = lambda t, part, at: Q + 16 * t + 8 * part + 4 * at
        for t in range(2):
            for at in range(2):
                mf(out(t, 0, at), t32(0, at), PK + 8 * t, True); mf(out(t, 1, at), t32(0, at), PK + 8 * t + 4, True)
            for at in range(2):
                mf(out(t, 0, at), t32(1, at), PK + 8 * t + 4, False); mf(out(t, 1, at), t32(2, at), PK + 8 * t, False)
        a(f"s_add_u32 s92, s90, {WS_Y}\ns_add_u32 s93, s91, {WS_Y}")
        for t in range(2):
            for part in range(2):
                b = out(t, part, 0); d = 48 + 8 * t + 4 * part
                for k in range(4):
                    a(f"v_cvt_pk_bf16_f32 v{d+k}, v{b+2*k}, v{b+2*k+1}")
                a(f"buffer_store_dwordx4 {vr(d,4)}, v6, {SWS}, {'s93' if part else 's92'} offen offset:{1024*t} sc1")
        self.stamp(9, 2)
        self.flag4("s99", "s89", WS_FY)

    def l_mid(self):
        a = self.a
        go = a.label("S2"); no = a.label("NS2"); n7 = a.label("N7"); kv = a.label("LKV"); tb = a.label("TB"); nw = a.label("NW")
        a(f"s_mov_b32 s89, s2\ns_cmp_lg_u32 {sW}, 7\ns_cbranch_scc1 {n7}")
        self.s_flag()
        a(f"s_mov_b32 s89, s2\ns_branch {go}\n{n7}:")
        self.wait(CW, 1, sleep=4, idle=True)
        self.wait(CR, 4, sleep=4, idle=True)
        a(f"s_cmp_eq_u32 {sW}, 6\ns_cbranch_scc1 {tb}")
        a(f"""
s_add_u32 s89, s2, 192
s_sub_u32 s73, s2, 64
s_cmp_gt_u32 s73, 32
s_cbranch_scc1 {nw}
{tb}:
""")
        self.stage2_tables()
        a(f"{go}:")
        self.stage2()
        a(f"s_branch {kv}\n{nw}:")
        a(f"{no}:\ns_mov_b32 s99, {OOB}")
        self.kv_addr()
        self.kv_loads()
        a(f"s_setprio 1\n{kv}:")
        self.stamp(9)

    NT = 192

    def tail(self, mm, n):
        a = self.a
        ACC, ACX = 16, 32
        WF = 48
        NT = self.NT
        w = 2 * mm + n
        a("s_setprio 2")
        self.busy = 2
        self.norm_setup(1 - n)
        a(f"""
ds_read_b32 v11, v14 offset:{2304 + 128 * n}
v_and_b32 v37, 15, v0
v_lshrrev_b32 v38, 4, v0
v_lshl_add_u32 v14, v37, 2, v2
ds_read_b32 v36, v14 offset:{2304 + 128 * n + 64 * mm}
v_bfe_u32 v43, v0, 2, 2
v_and_b32 v44, 3, v0
v_bfe_u32 v46, v0, 4, 1
v_and_b32 v39, 1, v44
v_lshlrev_b32 v15, 2, v39
v_lshl_add_u32 v15, v46, 1, v15
v_lshrrev_b32 v14, 1, v44
v_add_u32 v45, v15, v14
v_lshlrev_b32 v45, 3, v45
v_add_u32 v45, {L_WO1 if mm else L_WO0}, v45
v_lshl_add_u32 v6, v13, 2, v43
v_lshl_add_u32 v6, v6, 6, v45
v_lshrrev_b32 v7, 1, v43
v_mul_u32_u24 v7, 72, v7
v_and_b32 v14, 1, v43
v_add3_u32 v40, v7, v14, 16
v_lshl_add_u32 v7, v40, 6, v45
v_mul_u32_u24 v14, 18432, v13
v_add_u32 v7, v7, v14
v_lshlrev_b32 v39, 3, v39
v_add_u32 v39, {L_WOX}, v39
v_mul_u32_u24 v15, 288, v46
v_add_u32 v15, v15, v40
v_lshl_add_u32 v15, v15, 4, v39
v_mul_u32_u24 v14, 72, v13
v_lshl_add_u32 v14, v46, 2, v14
v_add_u32 v14, v14, v43
v_lshl_add_u32 v14, v14, 4, v39
v_lshlrev_b32 v41, 4, v37
v_lshl_add_u32 v41, v46, 9, v41
v_lshl_add_u32 v47, v13, 10, v41
v_cmp_gt_u32 vcc, 32, v0
v_mov_b32 v40, {OOB}
v_add_u32 v41, {256 * mm}, v47
v_cndmask_b32 v42, v40, v41, vcc
v_cmp_gt_u32 vcc, 8, v37
s_nop 0
v_cndmask_b32 v47, v40, v47, vcc
s_waitcnt lgkmcnt(0)
v_sub_f32 v4, 1.0, v4
""")

        normalize = self.normalize

        def wrow(kind, k, hh, u):
            if kind == "m":
                return ("v6", (72 * k + 18 * hh + 8 * u) * 64) if k < 8 else ("v7", (144 * u + 18 * hh) * 64)
            return ("v14", (144 * k + 18 * hh + 8 * u) * 16) if k < 4 else ("v15", (144 * u + 18 * hh) * 16)

        def consume(i, probe):
            OB, AX = 192, 248
            hh = i >> 1
            seq = []
            for ks in range(9):
                seq.append(("m", ks))
                if ks % 2 == 1 or ks == 8: seq.append(("x", ks // 2))
            def rd(k):
                for u in range(2):
                    base, off = wrow("x", k, hh, u)
                    a(f"ds_read_b64_tr_b16 {vr(AX+4*(k%2)+2*u,2)}, {base} offset:{off}")
            rd(0); rd(1)
            if probe:
                l = a.label("CP"); d = a.label("CQ")
                a(f"{l}:\ns_add_u32 s90, s94, {i*9216 + 8192}\nbuffer_load_dwordx4 {vr(OB,4)}, v5, {SWS}, s90 offen sc1")
                a(f"s_waitcnt vmcnt(0)\nv_max_u32 v1, v{OB}, v{OB+1}\nv_max3_u32 v1, v1, v{OB+2}, v{OB+3}")
                a(f"v_cmp_eq_u32 vcc, -1, v1\ns_cmp_eq_u64 vcc, 0\ns_cbranch_scc1 {d}")
                a(f"s_sleep 8\ns_sub_u32 {sSPIN}, {sSPIN}, 1\ns_cbranch_scc0 {l}\ns_branch L_bail\n{d}:")
            l = a.label("CL"); d = a.label("CD")
            a(f"{l}:")
            chk = []
            oreg = lambda it: OB + (4 * it[1] if it[0] == "m" else 36 + 4 * it[1])
            for it in seq:
                kind, k = it
                if kind == "m" and k % 4 == 0:
                    a(f"s_add_u32 s90, s94, {i*9216 + 1024*k}")
                voff, last = ("v5", k == 8) if kind == "m" else ("v41" if k < 4 else "v42", k == 4)
                imm = 1024 * (k % 4) if kind == "m" else 2048 * (k % 2)
                a(f"buffer_load_dwordx4 {vr(oreg(it),4)}, {voff}, {SWS}, s90 offen offset:{imm} sc1")
                chk.append([oreg(it) + r for r in range(4 if last else 1)])
            flat = [(j, r) for j, rs in enumerate(chk) for r in rs]
            a(f"s_waitcnt vmcnt({len(chk) - 2})\nv_max_u32 v1, v{flat[0][1]}, v{flat[1][1]}")
            for p in range(2, len(flat), 2):
                a(f"s_waitcnt vmcnt({len(chk) - 1 - flat[p+1][0]})\nv_max3_u32 v1, v1, v{flat[p][1]}, v{flat[p+1][1]}")
            a(f"v_cmp_eq_u32 vcc, -1, v1\ns_cmp_eq_u64 vcc, 0\ns_cbranch_scc1 {d}")
            a(f"s_sleep {2 if i >= 6 else 8}\ns_sub_u32 {sSPIN}, {sSPIN}, 1\ns_cbranch_scc0 {l}\ns_branch L_bail\n{d}:")
            for kind, k in seq:
                if kind == "m":
                    a(f"v_mfma_f32_32x32x16_bf16 {vr(ACC,16)}, {vr(WF+36*hh+4*k,4)}, {vr(oreg((kind,k)),4)}, {vr(ACC,16)}")
                else:
                    a(f"s_waitcnt lgkmcnt({2 if k < 4 else 0})")
                    a(f"v_mfma_f32_16x16x32_bf16 {vr(ACX,4)}, {vr(AX+4*(k%2),4)}, {vr(oreg((kind,k)),4)}, {vr(ACX,4)}")
                    if k + 2 < 5:
                        rd(k + 2)

        normalize(2 * mm + (1 - n))
        self.stamp(2, 4)
        GM, GX, GD, GE = 192, 224, 8, 3
        AC2, BF, BX = ACC, 236, 248
        vm = []
        def gm(ks):
            a(f"buffer_load_dwordx4 {vr(GM+4*(ks%GD),4)}, v5, {SWS}, s93 offen offset:{1024*(ks%4)} sc1")
            if ks % 4 == 3: a("s_add_u32 s93, s93, 4096")
            vm.append(("m", ks))
        def gx(T):
            a(f"buffer_load_dwordx4 {vr(GX+4*(T%GE),4)}, v47, {SWS}, s98 offen offset:{2048*(T%2)} sc1")
            if T % 2 == 1: a("s_add_u32 s98, s98, 4096")
            vm.append(("x", T))
        self.srd(SWO, 18, 663552)
        self.panel_setup(4, va=48)
        a(f"s_mul_i32 s93, {sJ}, {3*36*1024}\ns_add_u32 s98, s93, {WS_G + 2*36*1024}\ns_add_u32 s93, s93, {WS_G + mm*36*1024}")
        self.wait(CV, 8, sleep=4, idle=True)
        self.panel_loads(SWO, L_WO0, L_WO1, L_WOX, False, 36, 4, va=48, rotate=True)
        self.stamp(1, 4)
        for ks in range(GD):
            gm(ks)
            if ks % 2 == 1 and ks // 2 < GE: gx(ks // 2)
        fy = (f"buffer_load_dwordx4 {vr(BF+2,4)}, v{BF}, {SWS}, s99 offen sc1\nbuffer_load_dwordx4 {vr(BF+6,4)}, v{BF+1}, {SWS}, s92 offen sc1\n"
              f"buffer_load_dword v{BF+10}, off, {SWS}, s88 sc1")
        if w == 0:
            a(f"v_lshlrev_b32 v{BF}, 7, v0\nv_min_u32 v{BF+1}, {7*128}, v{BF}\ns_mov_b32 s99, {WS_FY}\ns_mov_b32 s92, {WS_FY + 8192}\ns_mov_b32 s88, {WS_FY + 72*128}")
            a(fy)
        a(f"s_waitcnt vmcnt({len(vm) + (3 if w == 0 else 0)})")
        self.add1(S3)
        self.wait(S3, 4, sleep=1)
        self.stamp(3, 4)
        for hh in range(4):
            for k in range(9):
                for u in range(2):
                    base, off = wrow("m", k, hh, u)
                    a(f"ds_read_b64_tr_b16 {vr(WF+36*hh+4*k+2*u,2)}, {base} offset:{off}")
                if k % 3 == 2:
                    a("s_waitcnt lgkmcnt(6)")
        self.stamp(4, 4)
        a(f"""
v_lshrrev_b32 v39, 3, v0
v_lshlrev_b32 v39, 12, v39
v_lshlrev_b32 v40, 2, v46
v_xor_b32 v40, v40, v0
v_and_b32 v40, 7, v40
v_lshl_add_u32 v39, v40, 4, v39
v_bfe_u32 v40, v0, 3, 1
v_xor_b32 v40, {n}, v40
v_lshlrev_b32 v40, 6, v40
v_lshl_add_u32 v40, v44, 3, v40
v_lshl_add_u32 v40, v43, 7, v40
v_lshl_add_u32 v43, v13, 10, v40
v_lshl_add_u32 v43, v46, 5, v43
v_add_u32 v44, 36864, v43
v_lshl_add_u32 v45, v38, 10, v40
v_add_u32 v45, {32 * mm}, v45
v_add_u32 v46, 36864, v45
s_waitcnt lgkmcnt(0)
""")
        self.add1(S2)
        if w == 0:
            ok = a.label("YOK")
            a("s_waitcnt vmcnt(0)")
            self.cmp_regs([BF + 2 + k for k in range(9)], sTAG)
            a(f"s_cbranch_scc1 {ok}")
            self.poll(fy, [BF + 2 + k for k in range(9)], sleep=12)
            a(f"{ok}:")
            self.add1(CY)
            ne = a.label("NE")
            a(f"s_cmp_lg_u32 s2, 0\ns_cbranch_scc1 {ne}")
            self.set_flag(str(WS_EPOCH))
            a(f"{ne}:")
        else:
            self.wait(CY, 1, sleep=4, idle=True)
        self.wait(S2, 4, sleep=2)
        self.stamp(1); self.stamp(5, 4)
        a(f"s_lshl_b32 s99, {sP}, 7\ns_add_u32 s99, s99, {WS_Y + w * 32768}\ns_mov_b32 s92, {L_Y + w * 1024}")
        def ydma():
            lp = a.label("YL")
            a(f"s_mov_b32 s88, 2\n{lp}:")
            for k in range(3):
                a(f"s_mov_b32 m0, s92\ns_add_u32 s92, s92, 4096\nbuffer_load_dwordx4 v39, {SWS}, s99 offen sc1 lds\ns_add_u32 s99, s99, {4*32768}")
            a(f"s_sub_u32 s88, s88, 1\ns_cbranch_scc0 {lp}")
        ydma()
        ydma()
        vm.extend([("y", k) for k in range(18)])
        a("s_waitcnt vmcnt(9)")
        self.add1(S1)
        self.stamp(6, 4)
        def yrd(it):
            kind, k = it
            if kind == "m":
                b = BF + 4 * (k % 3); base, off = ("v43", 2048 * k) if k < 18 else ("v44", 2048 * (k - 18))
            else:
                b = BX + 4 * (k % 2); base, off = ("v45", 4096 * k) if k < 9 else ("v46", 4096 * (k - 9))
            a(f"ds_read_b64_tr_b16 {vr(b,2)}, {base} offset:{off}\nds_read_b64_tr_b16 {vr(b+2,2)}, {base} offset:{off+512}")
        done = {"vm": len(vm) - 9}
        def half(k0):
            seq = []
            for ks in range(k0, k0 + 18):
                seq.append(("m", ks))
                if ks % 2 == 1: seq.append(("x", ks // 2))
            for it in seq[:3]:
                yrd(it)
            for i, it in enumerate(seq):
                wv = ""
                if vm.index(it) + 1 > done["vm"]:
                    done["vm"] = vm.index(it) + 1
                    wv = f"vmcnt({len(vm) - done['vm']}) "
                a(f"s_waitcnt {wv}lgkmcnt({2 * (min(i + 3, len(seq)) - i - 1)})")
                kind, k = it
                if kind == "m":
                    a(f"v_mfma_f32_32x32x16_bf16 {vr(AC2,16)}, {vr(GM+4*(k%GD),4)}, {vr(BF+4*(k%3),4)}, {'0' if k == 0 else vr(AC2,16)}")
                    if k + GD < 36: gm(k + GD)
                else:
                    a(f"v_mfma_f32_16x16x32_bf16 {vr(AC2+16,4)}, {vr(GX+4*(k%GE),4)}, {vr(BX+4*(k%2),4)}, {'0' if k == 0 else vr(AC2+16,4)}")
                    if k + GE < 18: gx(k + GE)
                if i + 3 < len(seq):
                    yrd(seq[i + 3])
                if it == ("m", GD):
                    self.add1(S4)
        self.wait(S1, 4, sleep=1)
        self.stamp(7, 4)
        half(0)
        self.wait(S4, 4, sleep=1)
        half(18)
        self.stamp(2); self.stamp(8, 4)
        self.srd(SOUT, 22, 2359296)
        a(f"""
s_mov_b32 s73, 73728
v_mul_lo_u32 v39, v12, s73
v_lshl_add_u32 v39, v13, 5, v39
v_mul_lo_u32 v40, v37, s73
v_lshl_add_u32 v40, v38, 3, v40
s_mul_i32 s93, {sP}, 2304
s_add_u32 s93, s93, s95
s_add_u32 s93, s93, {1152 * n}
s_add_u32 s92, s93, {16 * mm * 73728}
""")
        for i in range(8):
            a(f"v_pk_mul_f32 {vr(ACC+2*i,2)}, {vr(ACC+2*i,2)}, v[10:11] op_sel:[0,1] op_sel_hi:[1,1]")
        for i in range(2):
            a(f"v_pk_mul_f32 {vr(ACX+2*i,2)}, {vr(ACX+2*i,2)}, v[36:37] op_sel_hi:[1,0]")
        prog = {0: ["N5", "C0", "C2", "C4", "C6"], 1: ["N4", "C1", "C3", "C5", "C7"],
                2: ["C0", "C2", "C4", "C6"], 3: ["C1", "C3", "N6", "C5", "C7"]}[w]
        gates = {4: 5, 5: 6, 6: 7, 7: 7}
        for it in prog:
            i = int(it[1])
            if it[0] == "N":
                normalize(i)
                self.stamp(3)
            else:
                if i >= 4:
                    self.wait(256 * gates[i], 4, sleep=2 if gates[i] == 7 else 4, idle=True)
                if i == 7:
                    a(f"s_sleep {self.opt('d7', 10)}")
                if i >= 6: self.stamp(4)
                consume(i, i in (4, 5))
                if i in (2, 3): self.stamp(9, 4)
        self.stamp(6)
        fl = " sc1" if "outsc1" in self.opts else " nt" if "outnt" in self.opts else ""
        a(f"v_cvt_pk_bf16_f32 v{ACX}, v{ACX}, v{ACX+1}\nv_cvt_pk_bf16_f32 v{ACX+1}, v{ACX+2}, v{ACX+3}")
        for k in range(8):
            a(f"v_cvt_pk_bf16_f32 v{ACC+k}, v{ACC+2*k}, v{ACC+2*k+1}")
        a(f"buffer_store_dwordx4 {vr(ACC,4)}, v39, {SOUT}, s93 offen offset:{64*mm}{fl}")
        a(f"buffer_store_dwordx4 {vr(ACC+4,4)}, v39, {SOUT}, s93 offen offset:{64*mm+16}{fl}")
        a(f"s_mov_b32 exec_hi, 0\nbuffer_store_dwordx2 {vr(ACX,2)}, v40, {SOUT}, s92 offen offset:128{fl}\ns_mov_b64 exec, -1")
        self.stamp(7)

    def norm_setup(self, rows):
        self.a(f"""
v_lshlrev_b32 v5, 4, v0
v_and_b32 v12, 31, v0
v_lshrrev_b32 v13, 5, v0
v_add_u32 v8, {L_EX}, v5
v_lshlrev_b32 v9, 3, v0
v_add_u32 v9, {L_EX + 2048}, v9
v_lshlrev_b32 v10, 3, v12
v_add_u32 v10, {L_EX + 2048 + 256}, v10
v_lshl_add_u32 v14, v12, 2, v2
ds_read_b32 v4, v14 offset:{2304 + 128 * rows}
s_mul_i32 s94, {sP}, {8*9216}
s_add_u32 s94, s94, {WS_OF}
s_lshl_b32 s96, {sJ}, 10
s_add_u32 s96, s96, s94
s_lshr_b32 s97, {sJ}, 2
s_lshl_b32 s97, s97, 9
s_and_b32 s73, {sJ}, 3
s_lshl_b32 s73, s73, 2
s_add_u32 s97, s97, s73
s_add_u32 s97, s97, s94
s_add_u32 s97, s97, 8192
""")

    def normalize(self, i, wait=True):
        a = self.a
        NT = self.NT
        q = i % 4
        if wait:
            self.wait(256 * i, 4, sleep=1 if i >= 6 else 4, idle=True)
        for s in range(4):
            b = NT + 12 * s; o = 10240 * q + 2560 * s
            a(f"ds_read_b128 {vr(b,4)}, v8 offset:{o}\nds_read_b128 {vr(b+4,4)}, v8 offset:{o+1024}\nds_read_b64 {vr(b+8,2)}, v9 offset:{o}")
            if s == 3:
                a("s_waitcnt lgkmcnt(9)")
            a(f"ds_read_b32 v{b+10}, v10 offset:{o}")
        a(f"s_add_u32 s90, s96, {i*9216}\ns_add_u32 s91, s97, {i*9216}\ns_movk_i32 s89, {i}")
        a("s_waitcnt lgkmcnt(8)")
        for s in range(1, 4):
            if s > 1:
                a(f"s_waitcnt lgkmcnt({4 * (3 - s)})")
            for k in range(5):
                a(f"v_pk_add_f32 {vr(NT+2*k,2)}, {vr(NT+2*k,2)}, {vr(NT+12*s+2*k,2)}")
            a(f"v_add_f32 v{NT+10}, v{NT+10}, v{NT+12*s+10}")
        if i < 4:
            self.wait(CG, 1, sleep=2)
            self.add1(CN)
        self.safety()
        a(f"v_rcp_f32 v{NT+10}, v{NT+10}\ns_nop 0\nv_mul_f32 v{NT+10}, v4, v{NT+10}")
        for k in range(5):
            a(f"v_pk_mul_f32 {vr(NT+2*k,2)}, {vr(NT+2*k,2)}, {vr(NT+10,2)} op_sel_hi:[1,0]")
        for k in range(5):
            a(f"v_cvt_pk_bf16_f32 v{NT+12+k}, v{NT+2*k}, v{NT+2*k+1}")
        a(f"v_min_u32 v{NT+12}, -2, v{NT+12}\nv_min_u32 v{NT+16}, -2, v{NT+16}")
        a(f"buffer_store_dwordx4 {vr(NT+12,4)}, v5, {SWS}, s90 offen sc1\ns_mov_b32 exec_hi, 0")
        a(f"buffer_store_dword v{NT+16}, v5, {SWS}, s91 offen sc1\ns_mov_b64 exec, -1")

    def safety(self):
        a = self.a
        NT = self.NT
        ok = a.label("SOK")
        t = NT + 12
        a(f"v_mov_b32 v{t}, 0\nv_mov_b32 v{t+1}, 0\nv_mov_b32 v{t+2}, 0\nv_mov_b32 v{t+3}, 0")
        for k in range(5):
            a(f"v_pk_fma_f32 {vr(t,2)}, {vr(NT+2*k,2)}, {vr(t+2,2)}, {vr(t,2)}")
        lo, hi = (127 - 60) << 23, (127 + 64) << 23
        if "forcefb" in self.opts:
            lo, hi = (127 + 60) << 23, (127 + 64) << 23
        a(f"v_add_f32 v{t}, v{t}, v{t+1}\nv_subrev_u32 v{t+1}, {lo:#x}, v{NT+10}\nv_cmp_u_f32 vcc, v{t}, v{t}")
        a(f"s_mov_b32 s73, {hi - lo:#x}\nv_cmp_lt_u32 s[74:75], s73, v{t+1}\ns_or_b64 vcc, vcc, s[74:75]\ns_cmp_eq_u64 vcc, 0\ns_cbranch_scc1 {ok}")
        a(f"s_call_b64 s[86:87], L_fallback\n{ok}:")

    def fallback(self):
        a = self.a
        NT = self.NT
        O, S, Q, QX, K, KX, V, MX = NT, 208, 224, 228, 230, 234, 236, 244
        vK, vKX, vV, T0 = 245, 246, 247, 248
        l1 = a.label("FB1"); l2 = a.label("FB2")
        qk = f"""
buffer_load_dwordx4 {vr(K,4)}, v{vK}, {SWS}, s[84] offen sc1
buffer_load_dword v{KX}, v{vKX}, {SWS}, s[85] offen sc1
""".replace("s[84]", "s84").replace("s[85]", "s85")
        mm = f"""
v_mfma_f32_32x32x16_bf16 {vr(S,16)}, {vr(K,4)}, {vr(Q,4)}, 0
v_mfma_f32_32x32x8_bf16 {vr(S,16)}, {vr(KX,2)}, {vr(QX,2)}, {vr(S,16)}
s_add_u32 s84, s84, 1024
s_bitcmp1_b32 s88, 0
s_cselect_b32 s73, 4, 252
s_add_u32 s85, s85, s73
"""
        a(f"""
L_fallback:
s_nop 4
v_lshlrev_b32 v{vK}, 5, v12
v_lshl_add_u32 v{vK}, v13, 4, v{vK}
v_mov_b32 v{T0}, {OOB}
v_lshlrev_b32 v{vKX}, 3, v12
v_cmp_lt_u32 vcc, 31, v0
v_subrev_u32 v{T0+1}, 64, v{vK}
v_cndmask_b32 v{vKX}, v{vKX}, v{T0}, vcc
v_cmp_eq_u32 vcc, 20, v12
s_mul_i32 s73, s89, 1536
v_cndmask_b32 v{T0+1}, v{T0}, v{T0+1}, vcc
v_cmp_gt_u32 vcc, 18, v12
s_add_u32 s73, s73, {L_QS}
v_cndmask_b32 v{vV}, v{T0+1}, v{vK}, vcc
v_mul_u32_u24 v{T0}, 48, v12
v_add_u32 v{T0}, s73, v{T0}
v_lshl_add_u32 v{T0+1}, v13, 2, v{T0}
v_lshl_add_u32 v{T0}, v13, 4, v{T0}
ds_read_b128 {vr(Q,4)}, v{T0}
ds_read_b32 v{QX}, v{T0+1} offset:32
v_mov_b32 v{QX+1}, 0
v_mov_b32 v{KX+1}, 0
v_mov_b32 v{MX}, 0xff800000
s_mov_b32 s84, {WS_K16}
s_mov_b32 s85, {WS_KX}
s_mov_b32 s88, 63
{l1}:
{qk}
s_waitcnt vmcnt(0) lgkmcnt(0)
{mm}
""")
        for k in range(8):
            a(f"v_max3_f32 v{MX}, v{MX}, v{S+2*k}, v{S+2*k+1}")
        a(f"""
s_sub_u32 s88, s88, 1
s_cbranch_scc0 {l1}
v_mov_b32 v{T0}, v{MX}
v_permlane32_swap_b32 v{MX}, v{T0}
v_max_f32 v{MX}, v{MX}, v{T0}
s_mov_b32 s84, {WS_K16}
s_mov_b32 s85, {WS_KX}
s_mov_b32 s83, {WS_VF}
s_mov_b32 s88, 63
""")
        for r in range(16):
            a(f"v_mov_b32 v{O+r}, 0")
        a(f"""
{l2}:
{qk}
buffer_load_dwordx4 {vr(V,4)}, v{vV}, {SWS}, s83 offen sc1
buffer_load_dwordx4 {vr(V+4,4)}, v{vV}, {SWS}, s83 offen offset:{VPITCH} sc1
s_waitcnt vmcnt(0)
{mm}
s_add_u32 s83, s83, {2*VPITCH}
""")
        for r in range(16):
            a(f"v_sub_f32 v{S+r}, v{S+r}, v{MX}")
        for r in range(16):
            a(f"v_exp_f32 v{S+r}, v{S+r}")
        for k in range(8):
            a(f"v_cvt_pk_bf16_f32 v{S+k}, v{S+2*k}, v{S+2*k+1}")
        a(f"""
v_mfma_f32_32x32x16_bf16 {vr(O,16)}, {vr(V,4)}, {vr(S,4)}, {vr(O,16)}
v_mfma_f32_32x32x16_bf16 {vr(O,16)}, {vr(V+4,4)}, {vr(S+4,4)}, {vr(O,16)}
s_nop 15
s_sub_u32 s88, s88, 1
s_cbranch_scc0 {l2}
""")
        a(f"v_mov_b32 v{T0}, v{O+8}\nv_mov_b32 v{NT+10}, v{O+8}\nv_permlane32_swap_b32 v{T0}, v{NT+10}\ns_nop 4\ns_setpc_b64 s[86:87]")

    def finish_stamps(self):
        a = self.a
        if self.stamps:
            a("v_mov_b32 v2, 0")
            for i in range(12):
                a(f"v_writelane_b32 v2, s{STAMPS[i]}, {i}")
            a(f"s_lshl_b32 s73, s2, 3\ns_add_u32 s73, s73, {sW}\ns_lshl_b32 s73, s73, 7\ns_add_u32 s73, s73, {WS_DBG}")
            a(f"v_lshlrev_b32 v3, 2, v0\ns_mov_b32 exec_hi, 0\nbuffer_store_dword v2, v3, {SWS}, s73 offen\ns_mov_b64 exec, -1")

    def build(self):
        a = self.a
        self.prologue()
        self.e_front()
        a("L_attn:")
        self.attention()
        self.stamp(8)
        a(f"s_cmp_ge_u32 {sW}, 4\ns_cbranch_scc1 L_last")
        labs = [a.label("TL") for _ in range(4)]
        for w in range(1, 4):
            a(f"s_cmp_eq_u32 {sW}, {w}\ns_cbranch_scc1 {labs[w]}")
        for w in range(4):
            a(f"{labs[w]}:")
            self.tail(w >> 1, w & 1)
            a("s_branch L_fin")
        a(f"L_last:\ns_waitcnt lgkmcnt(0)\nv_readfirstlane_b32 s73, v1\nv_sub_f32 v4, 1.0, v4\ns_cmp_lg_u32 s73, 3\ns_cbranch_scc1 L_fin\ns_setprio 3")
        self.normalize(7, wait=False)
        self.stamp(3)
        a("s_branch L_fin")
        a("L_lwave:")
        self.busy = 3
        self.l_front()
        self.l_mid()
        a("s_branch L_attn")
        self.fallback()
        a("L_bail:")
        if self.stamps:
            a(f"s_mov_b32 s{STAMPS[11]}, 0xdead0000")
        a("L_fin:")
        if self.opt("padto", 0):
            a(f"L_pad:\ns_sleep 2\ns_memrealtime s[78:79]\ns_waitcnt lgkmcnt(0)\ns_sub_u32 s78, s78, s76\ns_cmp_lt_u32 s78, s80\ns_cbranch_scc1 L_pad")
        self.finish_stamps()
        a("L_end:\ns_endpgm")
        body = a.finish()
        tw = self.make_tables()
        assert tw.size == 2 * self.NTAB * 256
        tab = "\n".join(".long " + ",".join(f"{x:#x}" for x in tw[i:i+16]) for i in range(0, tw.size, 16))
        hdr = open("cdna_kernels/" + NAME + ".s.ref").read().split("; Override launch")[0]
        return f"""{hdr}; @launch grid=(256,1,1) block=(512,1,1) lds={LDS_BYTES}
.amdgcn_target "amdgcn-amd-amdhsa--gfx950"
.text
.globl {NAME}_kernel
.p2align 8
.type {NAME}_kernel,@function
{NAME}_kernel:
{body}
.section .rodata,"a"
.p2align 8
.type spectral_tables,@object
spectral_tables:
{tab}
.size spectral_tables, {2*self.NTAB*1024}
.p2align 6
.amdhsa_kernel {NAME}_kernel
  .amdhsa_next_free_vgpr 256
  .amdhsa_next_free_sgpr 102
  .amdhsa_accum_offset 256
  .amdhsa_group_segment_fixed_size 0
  .amdhsa_kernarg_size 96
  .amdhsa_user_sgpr_count 2
  .amdhsa_user_sgpr_kernarg_segment_ptr 1
  .amdhsa_system_sgpr_workgroup_id_x 1
.end_amdhsa_kernel
"""


if __name__ == "__main__":
    opts = sys.argv[2:]
    g = Gen(stamps=2 if "st2" in opts else 3 if "st3" in opts else 4 if "st4" in opts else 5 if "st5" in opts else int("stamps" in opts), cyc="cyc" in opts, opts=opts)
    src = g.build()
    open(sys.argv[1], "w").write(src)
    print("nops added:", g.a.added_nops, "lines:", len(src.splitlines()))
```

```python
import sys
import numpy as np
from asmlib import Asm
import model as M

NAME = "gated_mix__spectral_gfnet__grouped_kv_mqa__prompt"

WS_EPOCH = 0
WS_FKV = 0x50000
WS_FS = 0x58000
WS_FY = 0x60000
WS_GOS = 0x68000
WS_K16 = 0x10000
WS_KX = 0x20000
WS_VF = 0x30000
WS_DBG = 0x80000
WS_G = 0x100000
WS_T = 0x200000
WS_Y = 0x500000
WS_OF = 0x800000
WS_WT = 0xB00000
WS_QDUMP = 0x1100000
WS_SIZE = 0x2000000
OOB = 0x40000000
VPITCH = 640

XP = 1040
L_X = 0
L_X2 = 64 * XP
L_WQ0 = 74752
L_WQ1 = 111616
P2SZ = 9728
L_P2Q = 148480
L_P2KV = L_P2Q - P2SZ
L_MISC = 162816
L_CT = L_MISC - 2048
(C0A, C0B, C0C, C1, CX, CK, CE, CV, CY, S1, S2, S3, CN, CW, CF, CD, CG, S4, C0D, SA, XA, XB, YA, YB, CR) = (2048 + 4 * i for i in range(25))
L_G = L_MISC + 256
L_QS = L_WQ0
L_WO0 = 0
L_WO1 = 36864
L_Y = 0
L_EX = L_QS + 12288
L_WOX = L_EX + 16 * 2560
L_XCH = L_WOX + 9216
LDS_BYTES = 163840
assert L_XCH + 8192 <= L_CT and L_P2Q + P2SZ <= L_CT and L_P2Q + P2SZ <= L_MISC and L_P2KV >= L_WQ1 + 416 * 64

SX, SWQ, SKV, SG, SWS, SWO, SOUT, SWR, SWI, STB = (f"s[{a}:{a+3}]" for a in range(28, 68, 4))
sW, sP, sJ, sTAG, sSPIN = "s68", "s69", "s70", "s71", "s72"
STAMPS = [76, 77, 78, 79, 80, 81, 100, 101, 3, 10, 11, 24]
SPIN_MAX = 400000

f32bits = lambda v: int(np.float32(v).view(np.uint32))
QSCALE_BITS = f32bits(M.QSCALE)
LOG2E_BITS = f32bits(M.LOG2E)


def vr(a, n=1):
    return f"v{a}" if n == 1 else f"v[{a}:{a+n-1}]"


class Gen:
    AQ, AQX, AO, AK, AKX, AV, AS = 24, 28, 32, 88, 120, 128, 192
    vQ, vQX, vEX, vEX2, vK, vKX, vV, vCT = 78, 79, 80, 81, 82, 83, 4, 84
    vCT2 = vCT

    def __init__(self, stamps=0, cyc=False, opts=()):
        self.a = Asm()
        self.stamps = stamps
        self.clk = "s_memtime" if cyc else "s_memrealtime"
        self.opts = set(opts)
        self.busy = 3

    def opt(self, name, default):
        for o in self.opts:
            if o.startswith(name + "="):
                return int(o.split("=")[1])
        return default

    def _st(self, i):
        self.a(f"{self.clk} s[74:75]\ns_waitcnt lgkmcnt(0)\ns_mov_b32 s{STAMPS[i]}, s74")

    def stamp(self, i, level=1):
        if self.stamps == level:
            self._st(i)
        if self.opt("pid", -1) == i and self.opt("plev", 1) == level:
            l = self.a.label("PB")
            self.a(f"s_cmp_lg_u32 {sW}, {self.opt('pw', 0)}\ns_cbranch_scc1 {l}\ns_memrealtime s[78:79]\ns_waitcnt lgkmcnt(0)\n"
                   f"s_sub_u32 s80, s78, s76\ns_add_u32 s80, s80, {self.opt('padto', 0)}\n{l}:")

    def srd(self, srd, lo, size):
        b = int(srd[2:].split(":")[0])
        self.a(f"s_mov_b32 s{b}, s{lo}\ns_mov_b32 s{b+1}, s{lo+1}\ns_mov_b32 s{b+2}, {size}\ns_mov_b32 s{b+3}, 0x20000")

    def add1(self, off, base="v2"):
        self.a(f"s_mov_b64 exec, 1\nds_add_u32 {base}, v3 offset:{off}\ns_mov_b64 exec, -1")

    def wait(self, off, target, sleep=1, base="v2", idle=False):
        a = self.a
        l = a.label("LW"); d = a.label("LWD")
        if idle and "noidle" not in self.opts:
            a("s_setprio 0")
        a(f"{l}:\nds_read_b32 v1, {base} offset:{off}\ns_waitcnt lgkmcnt(0)\nv_readfirstlane_b32 s73, v1")
        a(f"s_cmp_ge_u32 s73, {target}\ns_cbranch_scc1 {d}")
        if sleep:
            a(f"s_sleep {sleep}")
        a(f"s_sub_u32 {sSPIN}, {sSPIN}, 1\ns_cbranch_scc0 {l}\ns_branch L_bail\n{d}:")
        if idle and "noidle" not in self.opts:
            a(f"s_setprio {self.busy}")

    def cmp_regs(self, regs, val, op="ne"):
        a = self.a
        a(f"v_cmp_{op}_u32 vcc, {val}, v{regs[0]}")
        for r in regs[1:]:
            a(f"v_cmp_{op}_u32 s[74:75], {val}, v{r}\ns_or_b64 vcc, vcc, s[74:75]")
        a("s_cmp_eq_u64 vcc, 0")

    def poll(self, loads, regs, sleep=2):
        a = self.a
        l = a.label("PL"); d = a.label("PD")
        a(f"{l}:")
        a(loads)
        a("s_waitcnt vmcnt(0)")
        self.cmp_regs(regs, sTAG)
        a(f"s_cbranch_scc1 {d}\ns_sleep {sleep}\ns_sub_u32 {sSPIN}, {sSPIN}, 1\ns_cbranch_scc0 {l}\ns_branch L_bail\n{d}:")

    def set_flag(self, soff):
        self.a(f"v_mov_b32 v1, {sTAG}\ns_mov_b64 exec, 1\nbuffer_store_dword v1, off, {SWS}, {soff} sc1\ns_mov_b64 exec, -1")

    def flag4(self, dst, idx, base):
        self.a(f"s_lshr_b32 {dst}, {idx}, 2\ns_lshl_b32 {dst}, {dst}, 7\ns_and_b32 s73, {idx}, 3\ns_lshl_b32 s73, s73, 2\n"
               f"s_add_u32 {dst}, {dst}, s73\ns_add_u32 {dst}, {dst}, {base}")

    def go_wait(self, base, vt, sleep):
        self.a(f"s_and_b32 s92, s2, 7\ns_lshl_b32 s92, s92, 7\ns_add_u32 s92, s92, {base}")
        self.poll(f"s_mov_b64 exec, 1\nbuffer_load_dword v{vt}, off, {SWS}, s92 sc1\ns_waitcnt vmcnt(0)\nv_readfirstlane_b32 s73, v{vt}\ns_mov_b64 exec, -1\nv_mov_b32 v{vt}, s73", [vt], sleep=sleep)

    def tag(self):
        self.a(f"s_mul_i32 {sTAG}, {sTAG}, 0x9E3779B1\ns_add_u32 {sTAG}, {sTAG}, 0x7F4A7C15")

    def prologue(self):
        a = self.a
        a(f"""
s_cmp_ge_u32 s2, 256
s_cbranch_scc1 L_end
s_load_dwordx16 s[4:19], s[0:1], 0
s_load_dwordx8 s[20:27], s[0:1], 64
v_lshrrev_b32 v1, 6, v0
v_and_b32 v0, 63, v0
v_readfirstlane_b32 {sW}, v1
s_and_b32 {sP}, s2, 31
s_lshr_b32 {sJ}, s2, 5
""")
        if self.stamps:
            a(f"{self.clk} s[74:75]")
        if self.opt("padto", 0):
            a(f"s_memrealtime s[76:77]\ns_mov_b32 s80, {self.opt('padto', 0)}")
        a(f"""
v_lshl_add_u32 v4, v1, 6, v0
v_mov_b32 v2, {L_CT}
v_mov_b32 v3, 1
v_lshlrev_b32 v7, 4, v0
s_mul_i32 s94, {sP}, 2304
s_mul_i32 s95, {sJ}, 144
s_lshl_b32 s91, {sJ}, 2
s_add_u32 s91, s91, {sW}
s_mov_b32 s30, 2359296
s_mov_b32 s31, 0x20000
s_mov_b32 {sSPIN}, {SPIN_MAX}
s_cmp_ge_u32 {sW}, 4
s_waitcnt lgkmcnt(0)
""")
        if self.stamps:
            a(f"s_mov_b32 s{STAMPS[0]}, s74")
            for r in STAMPS[1:]:
                a(f"s_mov_b32 s{r}, 0")
        a("s_cbranch_scc1 L_lwave")

    def kv_addr(self):
        a = self.a
        a(f"""
v_and_b32 v84, 31, v0
v_lshrrev_b32 v85, 5, v0
v_lshlrev_b32 v{self.vK}, 5, v84
v_lshl_add_u32 v{self.vK}, v85, 4, v{self.vK}
v_mov_b32 v86, {OOB}
v_lshlrev_b32 v{self.vKX}, 3, v84
v_cmp_lt_u32 vcc, 31, v0
v_subrev_u32 v87, 64, v{self.vK}
v_cndmask_b32 v{self.vKX}, v{self.vKX}, v86, vcc
v_cmp_eq_u32 vcc, 20, v84
s_and_b32 s73, {sW}, 3
v_cndmask_b32 v87, v86, v87, vcc
v_cmp_gt_u32 vcc, 18, v84
s_lshl_b32 s96, s73, 14
v_cndmask_b32 v{self.vV}, v87, v{self.vK}, vcc
s_add_u32 s96, s96, {WS_K16}
s_lshl_b32 s97, s73, 11
s_add_u32 s97, s97, {WS_KX}
s_mul_i32 s98, s73, {32*VPITCH}
s_add_u32 s98, s98, {WS_VF}
""")

    def ld_k(self, t, slot):
        adv = "\ns_add_u32 s96, s96, 4096" if t % 4 == 3 else ""
        k = f"buffer_load_dwordx4 {vr(self.AK+4*slot,4)}, v{self.vK}, {SWS}, s96 offen offset:{1024*(t%4)} sc1" + adv
        if t % 2:
            return (k,)
        return (k, f"buffer_load_dwordx2 {vr(self.AKX+slot,2)}, v{self.vKX}, {SWS}, s97 offen offset:{128*t} sc1")

    def ld_v(self, t, slot):
        adv = f"\ns_add_u32 s98, s98, {4*VPITCH}" if t % 2 == 1 else ""
        o = 2 * VPITCH * (t % 2)
        return (f"buffer_load_dwordx4 {vr(self.AV+8*slot,4)}, v{self.vV}, {SWS}, s98 offen offset:{o} sc1",
                f"buffer_load_dwordx4 {vr(self.AV+8*slot+4,4)}, v{self.vV}, {SWS}, s98 offen offset:{o+VPITCH} sc1" + adv)

    NFIRST = 4
    NLD1 = 14

    def kv_loads(self):
        for t in range(self.NFIRST):
            for x in self.ld_k(t, t) + self.ld_v(t, t):
                self.a(x)

    def e_front(self):
        a = self.a
        a("s_setprio 3\ns_mov_b32 s28, s4\ns_mov_b32 s29, s5")
        for k in range(8):
            a(f"""
s_and_b32 s91, s91, 31
s_mul_i32 s90, s91, 73728
s_mul_i32 m0, s91, {XP}
s_add_u32 s90, s90, s94
s_add_u32 s91, s91, 4
buffer_load_dwordx4 v7, {SX}, s90 offen lds
s_add_u32 m0, m0, {32*XP - 1152}
s_nop 0
buffer_load_dwordx4 v7, {SX}, s90 offen offset:1152 lds
""")
        a(f"""
s_load_dword {sTAG}, s[26:27], {WS_EPOCH}
v_lshrrev_b32 v20, 3, v0
s_mov_b32 s73, 73728
v_mul_lo_u32 v21, v20, s73
v_lshrrev_b32 v22, 4, v0
v_xor_b32 v22, v22, v0
v_and_b32 v22, 7, v22
v_lshl_add_u32 v21, v22, 4, v21
s_and_b32 s90, {sW}, 1
s_mul_i32 s90, s90, {16*73728}
s_lshr_b32 s73, {sW}, 1
s_mul_i32 s73, s73, 1152
s_add_u32 s90, s90, s73
s_add_u32 s90, s90, s94
s_add_u32 s90, s90, 1024
s_lshl_b32 s91, {sW}, 11
s_add_u32 m0, s91, {L_X2}
v_xor_b32 v22, 64, v21
buffer_load_dwordx4 v21, {SX}, s90 offen lds
s_add_u32 m0, s91, {L_X2 + 1024}
s_add_u32 s90, s90, {8*73728}
buffer_load_dwordx4 v22, {SX}, s90 offen lds
s_cmp_lt_u32 {sJ}, 4
s_cselect_b32 s36, s14, s16
s_cselect_b32 s37, s15, s17
s_mov_b32 s38, 20736
s_mov_b32 s39, 0x20000
v_mul_u32_u24 v5, 36, v4
v_lshlrev_b32 v6, 1, v4
s_and_b32 s73, {sJ}, 3
s_lshl_b32 s92, s73, 3
""")
        self.srd(SG, 20, 1152)
        s = a.label("KV3")
        a(f"""
buffer_load_dwordx3 v[24:26], v5, {SKV}, s92 offen
buffer_load_ushort v27, v6, {SG}, 0 offen
v_add_u32 v5, {256*36}, v5
buffer_load_dwordx3 v[28:30], v5, {SKV}, s92 offen
buffer_load_ushort v31, v6, {SG}, 0 offen offset:512
s_cmp_gt_u32 {sW}, 0
s_cbranch_scc1 {s}
v_add_u32 v5, {256*36}, v5
buffer_load_dwordx3 v[40:42], v5, {SKV}, s92 offen
buffer_load_ushort v43, v6, {SG}, 0 offen offset:1024
{s}:
s_barrier
""")
        self.stamp(6, 3)
        self.srd(SWS, 26, WS_SIZE)
        a(f"""
v_lshrrev_b32 v7, 7, v4
v_lshlrev_b32 v7, 7, v7
v_lshl_add_u32 v7, v4, 4, v7
v_add_u32 v7, {L_P2KV}, v7
v_and_b32 v14, 15, v0
v_lshrrev_b32 v15, 4, v0
v_and_b32 v17, 31, v0
v_lshrrev_b32 v18, 5, v0
v_bfe_u32 v22, v0, 2, 2
v_lshlrev_b32 v22, 4, v22
v_and_b32 v23, 1, v0
v_lshl_add_u32 v22, v23, 3, v22
v_mul_u32_u24 v16, 2176, v15
v_add_u32 v16, v16, v22
v_lshl_add_u32 v12, v15, 7, v22
v_add_u32 v12, {512*16 + 512}, v12
v_add_u32 v19, {L_P2KV}, v16
v_add_u32 v10, {L_P2KV}, v12
v_add_u32 v16, {L_P2Q}, v16
v_add_u32 v12, {L_P2Q}, v12
s_lshl_b32 s73, {sW}, 4
v_add_u32 v21, s73, v14
v_mul_u32_u24 v20, {XP}, v21
v_lshl_add_u32 v20, v15, 8, v20
v_lshrrev_b32 v22, 1, v21
v_xor_b32 v22, v22, v15
v_and_b32 v22, 7, v22
v_lshlrev_b32 v22, 4, v22
v_lshl_add_u32 v11, v21, 7, v22
v_add_u32 v11, {L_X2}, v11
v_xor_b32 v9, 64, v11
s_lshl_b32 s90, {sP}, 1
s_lshr_b32 s73, {sW}, 1
s_add_u32 s90, s90, s73
s_and_b32 s91, {sW}, 1
s_mov_b32 s92, {(LOG2E_BITS | 0x80000000):#x}
s_lshl_b32 s99, {sW}, 6
s_add_u32 s99, s99, {L_G}
""")
        RG, XF, AK_ = 32, 160, 252
        def wrd(b1, b2, T, dst):
            base, off = (b1, T * 128) if T < 16 else (b2, (T - 16) * 512)
            a(f"ds_read_b64_tr_b16 {vr(dst,2)}, {base} offset:{off}\nds_read_b64_tr_b16 {vr(dst+2,2)}, {base} offset:{off+64}")
        def land():
            s = a.label("KW")
            a(f"s_waitcnt vmcnt(0)\nds_write_b128 v7, v[24:27]\nds_write_b128 v7, v[28:31] offset:{4096+256}")
            a(f"s_cmp_gt_u32 {sW}, 0\ns_cbranch_scc1 {s}\nds_write_b128 v7, v[40:43] offset:{8192+512}\n{s}:")
            self.stamp(1, 3)
            self.add1(CX)
            self.wait(CX, 4, sleep=0)
            self.tag()
            self.stamp(2, 3)
        def kv_gemm(swap):
            acc = vr(AK_, 4)
            def rd(T):
                wrd("v19", "v10", T, 44 + 4 * (T % 5))
                if T < 16:
                    a(f"ds_read_b128 {vr(XF+4*T,4)}, v20 offset:{T*16}")
                else:
                    a(f"ds_read_b128 {vr(XF+4*T,4)}, {'v11' if T == 16 else 'v9'}")
            for T in range(4):
                rd(T)
            for T in range(18):
                if T + 4 < 18:
                    rd(T + 4)
                a(f"s_waitcnt lgkmcnt({3 * (min(T + 5, 18) - T - 1)})")
                W, X = vr(44 + 4 * (T % 5), 4), vr(XF + 4 * T, 4)
                A, B = (X, W) if swap else (W, X)
                a(f"v_mfma_f32_16x16x32_bf16 {acc}, {A}, {B}, {'0' if T == 0 else acc}")
            self.add1(CK)
        kpath = a.label("EK"); done = a.label("EKD")
        a(f"s_cmp_lt_u32 {sJ}, 4\ns_cbranch_scc1 {kpath}")
        a(f"""
s_lshl_b32 s90, s90, 1
s_add_u32 s90, s90, s91
s_mul_i32 s90, s90, {VPITCH}
s_add_u32 s90, s90, {WS_VF}
s_sub_u32 s73, {sJ}, 4
s_lshl_b32 s73, s73, 2
v_add_u32 v36, s73, v14
v_cmp_eq_u32 vcc, 7, v14
v_lshrrev_b32 v37, 1, v15
v_cndmask_b32 v36, v36, 18, vcc
v_lshlrev_b32 v36, 5, v36
v_lshl_add_u32 v36, v37, 3, v36
v_and_b32 v37, 1, v15
v_lshl_add_u32 v36, v37, 4, v36
v_mov_b32 v37, 0x3f803f80
v_lshl_add_u32 v38, v15, 4, s99
s_mov_b32 s88, 0x000f000f
s_cmp_eq_u32 {sJ}, 7
s_cmov_b32 s88, 0x00bf00bf
""")
        land()
        kv_gemm(True)
        a(f"""
v_cvt_pk_bf16_f32 v22, v{AK_}, v{AK_+1}
v_cvt_pk_bf16_f32 v23, v{AK_+2}, v{AK_+3}
v_cndmask_b32 v22, v22, v37, vcc
v_cndmask_b32 v23, v23, v37, vcc
s_mov_b32 exec_lo, s88
s_mov_b32 exec_hi, s88
buffer_store_dwordx2 v[22:23], v36, {SWS}, s90 offen sc1
s_mov_b64 exec, -1
""")
        for r in range(4):
            a(f"v_mul_f32 v{AK_+r}, s92, v{AK_+r}\nv_exp_f32 v{AK_+r}, v{AK_+r}")
        for r in range(4):
            a(f"v_add_f32 v{AK_+r}, 1.0, v{AK_+r}\nv_rcp_f32 v{AK_+r}, v{AK_+r}")
        a(f"""
s_mov_b32 exec_lo, 0x00400040
s_mov_b32 exec_hi, 0x00400040
ds_write_b128 v38, {vr(AK_,4)}
s_branch {done}
{kpath}:
s_lshl_b32 s91, s91, 4
v_add_u32 v37, s91, v14
v_lshlrev_b32 v36, 5, v37
v_lshlrev_b32 v37, 3, v37
v_lshl_add_u32 v38, v14, 2, s99
s_lshl_b32 s88, s90, 10
s_lshl_b32 s73, {sJ}, 3
s_add_u32 s88, s88, s73
s_add_u32 s88, s88, {WS_K16}
s_lshl_b32 s90, {sP}, 8
s_lshr_b32 s73, {sW}, 1
s_lshl_b32 s73, s73, 2
s_add_u32 s90, s90, s73
s_add_u32 s90, s90, {WS_KX}
s_cmp_lg_u32 {sJ}, 3
s_cmov_b32 s90, {OOB}
s_mov_b32 s91, {QSCALE_BITS:#x}
""")
        land()
        kv_gemm(False)
        a(f"""
v_mul_f32 v39, s92, v{AK_+2}
v_mul_f32 v{AK_}, s91, v{AK_}
v_mul_f32 v{AK_+1}, s91, v{AK_+1}
v_mul_f32 v{AK_+2}, s91, v{AK_+2}
v_mul_f32 v{AK_+3}, s91, v{AK_+3}
v_cvt_pk_bf16_f32 v22, v{AK_}, v{AK_+1}
v_cvt_pk_bf16_f32 v23, v{AK_+2}, v{AK_+3}
s_mov_b64 exec, 0xffff
buffer_store_dwordx2 v[22:23], v36, {SWS}, s88 offen sc1
s_mov_b32 exec_lo, 0xffff0000
buffer_store_dword v22, v37, {SWS}, s90 offen sc1
v_exp_f32 v39, v39
s_nop 0
v_add_f32 v39, 1.0, v39
v_rcp_f32 v39, v39
s_nop 0
ds_write_b32 v38, v39
{done}:
s_mov_b64 exec, -1
""")
        self.stamp(7, 3)
        a(f"""
s_lshl_b32 s73, {sP}, 3
s_add_u32 s73, s73, {sJ}
s_lshl_b32 s73, s73, 4
s_add_u32 s91, s73, {WS_FKV}
v_bfe_u32 v22, v0, 2, 2
v_lshl_add_u32 v19, v18, 3, v22
v_lshlrev_b32 v19, 6, v19
v_bfe_u32 v22, v0, 4, 1
v_lshl_add_u32 v19, v22, 5, v19
v_and_b32 v22, 3, v0
v_lshl_add_u32 v19, v22, 3, v19
s_and_b32 s73, {sW}, 1
s_mul_i32 s73, s73, {L_WQ1 - L_WQ0}
s_add_u32 s73, s73, {L_WQ0}
v_add_u32 v19, s73, v19
s_lshr_b32 s73, {sW}, 1
s_lshl_b32 s73, s73, 5
v_add_u32 v21, s73, v17
v_mul_u32_u24 v13, {XP}, v21
v_lshl_add_u32 v13, v18, 4, v13
v_mul_u32_u24 v26, 48, v4
v_add_u32 v26, {L_QS + 36}, v26
v_lshrrev_b32 v22, 1, v21
v_xor_b32 v22, v22, v18
v_and_b32 v22, 7, v22
v_lshlrev_b32 v22, 4, v22
v_lshl_add_u32 v6, v21, 7, v22
v_add_u32 v6, {L_X2}, v6
v_xor_b32 v7, 32, v6
v_xor_b32 v8, 64, v6
v_xor_b32 v9, 0x60, v6
v_mul_u32_u24 v22, 48, v21
v_add_u32 v22, {L_QS}, v22
v_lshl_add_u32 v23, v18, 3, v22
v_mul_u32_u24 v24, 3044, v18
v_add_u32 v24, v24, v22
s_lshl_b32 s73, {sW}, 4
v_add_u32 v25, s73, v14
v_mul_u32_u24 v25, 48, v25
v_lshl_add_u32 v25, v15, 3, v25
v_add_u32 v25, {L_QS + 3*3072 + 20}, v25
v_mov_b32 v27, 0
v_lshlrev_b32 v28, 4, v0
s_lshl_b32 s93, {sW}, 10
s_add_u32 s93, s93, {WS_FKV}
""")
        self.kv_addr()
        nf = a.label("NF")
        a(f"s_waitcnt vmcnt(0)\ns_mov_b64 exec, 1\nds_add_rtn_u32 v1, v2, v3 offset:{CF}\ns_mov_b64 exec, -1\ns_waitcnt lgkmcnt(0)")
        a(f"v_readfirstlane_b32 s73, v1\ns_cmp_lg_u32 s73, 3\ns_cbranch_scc1 {nf}")
        self.set_flag("s91")
        a(f"{nf}:")
        self.stamp(3, 3)
        RX, AM, AXQ = 64, 232, 248
        def rdm(t):
            b = RG + 8 * (t % 4)
            a(f"ds_read_b64_tr_b16 {vr(b,2)}, v19 offset:{t*1024}\nds_read_b64_tr_b16 {vr(b+2,2)}, v19 offset:{t*1024+256}")
            a(f"ds_read_b128 {vr(b+4,4)}, v13 offset:{t*32}" if t < 32 else f"ds_read_b128 {vr(b+4,4)}, v{6+t-32}")
        def mm(t):
            b = RG + 8 * (t % 4)
            a(f"v_mfma_f32_32x32x16_bf16 {vr(AM,16)}, {vr(b,4)}, {vr(b+4,4)}, {'0' if t == 0 else vr(AM,16)}")
        def stage(t0, t1):
            for t in range(t0, min(t0 + 3, t1)):
                rdm(t)
            for t in range(t0, t1):
                if t + 3 < t1:
                    rdm(t + 3)
                a(f"s_waitcnt lgkmcnt({3 * (min(t + 4, t1) - t - 1)})")
                mm(t)
        self.wait(C0A, 2, sleep=0)
        self.stamp(4, 3)
        stage(0, 12)
        self.add1(CE)
        self.wait(C0B, 2, sleep=0)
        flags = f"buffer_load_dword v84, v28, {SWS}, s93 offen sc1"
        stage(12, 20)
        self.wait(C0D, 2, sleep=0)
        stage(20, 28)
        self.wait(C0C, 2, sleep=0)
        self.stamp(9, 3)
        a(flags)
        seq = []
        xs = list(range(18))
        for t in range(28, 36):
            seq.append(("m", t))
            for _ in range(3 if t < 30 else 2):
                seq.append(("x", xs.pop(0)))
        assert not xs
        cost = lambda it: 3 if it[0] == "m" else 2
        def issue(it):
            if it[0] == "m": rdm(it[1])
            else: wrd("v16", "v12", it[1], RX + 4 * (it[1] % 3))
        AH = 3
        for it in seq[:AH]:
            issue(it)
        a(f"ds_read_b32 v31, v2 offset:{CE}")
        for i, it in enumerate(seq):
            ahead = sum(cost(x) for x in seq[i + 1:i + AH]) + (1 if i < AH else 0)
            a(f"s_waitcnt lgkmcnt({ahead})")
            if it[0] == "m":
                mm(it[1])
            else:
                T = it[1]
                a(f"v_mfma_f32_16x16x32_bf16 {vr(AXQ,4)}, {vr(RX+4*(T%3),4)}, {vr(XF+4*T,4)}, {'0' if T == 0 else vr(AXQ,4)}")
            if i + AH < len(seq):
                issue(seq[i + AH])
        self.stamp(8, 3)
        miss = a.label("KM")
        a("s_waitcnt vmcnt(0)")
        self.cmp_regs([84], sTAG)
        a(f"s_cselect_b32 s89, 1, 0\ns_cbranch_scc0 {miss}")
        self.kv_loads()
        a(f"{miss}:")
        self.stamp(11, 3)
        ok = a.label("CEOK")
        a(f"v_readfirstlane_b32 s73, v31\ns_cmp_ge_u32 s73, 4\ns_cbranch_scc1 {ok}")
        self.wait(CE, 4, sleep=0)
        a(f"{ok}:")
        a(f"ds_write_b32 v26, v27\nv_cvt_pk_bf16_f32 v{AXQ}, v{AXQ}, v{AXQ+1}\nv_cvt_pk_bf16_f32 v{AXQ+1}, v{AXQ+2}, v{AXQ+3}")
        a(f"s_mov_b32 exec_hi, 0\nds_write2_b32 v25, v{AXQ}, v{AXQ+1} offset0:0 offset1:1\ns_mov_b64 exec, -1")
        m1 = a.label("QM1"); md = a.label("QMD")
        a(f"s_bitcmp1_b32 {sW}, 0\ns_cbranch_scc1 {m1}")
        off = lambda c: (c // 18) * 3072 + (c % 18) * 2
        for m in range(2):
            if m == 1:
                a(f"s_branch {md}\n{m1}:")
            for k in range(8):
                c0 = 32 * m + 8 * (k // 2) + 2 * (k % 2)
                d = off(c0 + 4) - off(c0)
                assert d in (8, 3044)
                a(f"v_cvt_pk_bf16_f32 v{AM+k}, v{AM+2*k}, v{AM+2*k+1}")
                a(f"ds_write_b32 {'v23' if d == 8 else 'v24'}, v{AM+k} offset:{off(c0)}")
        a(f"{md}:")
        self.add1(C1)
        have = a.label("KH")
        a(f"s_cmp_eq_u32 s89, 1\ns_cbranch_scc1 {have}")
        self.poll(flags, [84], sleep=12)
        self.kv_loads()
        a(f"{have}:")
        self.stamp(10, 3); self.stamp(10)
        a(f"s_setprio 2\ns_mov_b32 s99, {OOB}\nv_mov_b32 v232, v2")

    def panel_setup(self, nw, va=14):
        self.a(f"""
v_lshrrev_b32 v{va}, 2, v0
v_mul_u32_u24 v{va}, 1152, v{va}
v_and_b32 v{va+1}, 3, v0
v_lshl_add_u32 v{va}, v{va+1}, 4, v{va}
v_mul_u32_u24 v{va+1}, 1152, v0
s_and_b32 s73, {sW}, {nw-1}
s_mul_i32 s84, s73, {16*1152}
s_add_u32 s84, s84, s95
s_lshl_b32 s85, s73, 10
""")

    def panel_loads(self, srd, l0, l1, lx, padded, end, nw, va=14, rotate=False):
        a = self.a
        lp = a.label("PNL")
        if rotate:
            a(f"s_lshr_b32 s73, {sP}, 3\ns_mul_i32 s82, s73, {8*1024}\ns_add_u32 s85, s85, s82\ns_mul_i32 s82, s73, {8*16*1152}\ns_add_u32 s84, s84, s82\ns_mov_b32 s88, {end//nw - 1}")
        a(f"""
{lp}:
s_add_u32 m0, s85, {l0}
s_add_u32 s83, s84, 128
buffer_load_dwordx4 v{va}, {srd}, s84 offen lds
s_add_u32 m0, s85, {l1 - 64}
s_lshr_b32 s82, s85, 2
buffer_load_dwordx4 v{va}, {srd}, s84 offen offset:64 lds
""")
        if padded:
            a("s_lshr_b32 s73, s85, 13\ns_lshl_b32 s73, s73, 7\ns_add_u32 s82, s82, s73")
        a(f"""
s_add_u32 m0, s82, {lx}
s_mov_b64 exec, 0xffff
buffer_load_dwordx4 v{va+1}, {srd}, s83 offen lds
s_mov_b64 exec, -1
s_add_u32 s85, s85, {1024*nw}
s_add_u32 s84, s84, {16*nw*1152}
s_cmp_lt_u32 s85, {1024*end}
""")
        if rotate:
            a(f"s_cselect_b32 s82, 0, {1024*end}\ns_cselect_b32 s83, 0, {16*1152*end}\ns_sub_u32 s85, s85, s82\ns_sub_u32 s84, s84, s83\ns_sub_u32 s88, s88, 1\ns_cbranch_scc0 {lp}")
        else:
            a(f"s_cbranch_scc1 {lp}")

    def l_front(self):
        a = self.a
        a(f"""
s_load_dword {sTAG}, s[26:27], {WS_EPOCH}
v_lshl_add_u32 v5, v0, 2, v2
v_mov_b32 v6, 0
ds_write_b32 v5, v6 offset:2048
v_lshlrev_b32 v5, 3, v4
v_add_u32 v5, {L_CT - 2048}, v5
v_mov_b32 v7, 0
ds_write_b64 v5, v[6:7]
s_sub_u32 s99, {sW}, 4
v_and_b32 v18, 31, v0
v_lshrrev_b32 v19, 5, v0
s_lshl_b32 s89, s99, 3
s_add_u32 s89, s89, {sJ}
s_cmp_ge_u32 s89, 18
s_cselect_b32 s89, 99, s89
v_bfe_u32 v20, v0, 2, 1
v_lshlrev_b32 v20, 4, v20
v_bfe_u32 v21, v0, 3, 2
v_lshl_add_u32 v20, v21, 2, v20
v_and_b32 v21, 3, v0
v_add_u32 v20, v20, v21
""")
        if "ipf" in self.opts:
            n4 = a.label("NPF")
            a(f"""
s_cmp_lg_u32 {sW}, 6
s_cbranch_scc1 {n4}
s_getpc_b64 s[64:65]
L_pc0:
s_sub_u32 s64, s64, L_pc0-{NAME}_kernel
s_subb_u32 s65, s65, 0
s_mov_b32 s66, L_end-{NAME}_kernel
s_mov_b32 s67, 0x20000
s_lshr_b32 s73, s2, 3
v_lshlrev_b32 v8, 12, v0
s_lshl_b32 s73, s73, 7
buffer_load_dword v9, v8, {STB}, s73 offen
s_getpc_b64 s[64:65]
s_add_u32 s64, s64, spectral_tables@rel32@lo+4
s_addc_u32 s65, s65, spectral_tables@rel32@hi+12
s_mov_b32 s66, {2*self.NTAB*1024}
s_nop 1
buffer_load_dword v10, v8, {STB}, s73 offen
{n4}:
""")
        self.srd(SWS, 26, WS_SIZE)
        self.srd(SWQ, 12, 663552)
        FPRE = self.opt("fpre", 8)
        def fsetup():
            a(f"""
s_lshl_b32 s73, s89, 5
v_add_u32 v44, s73, v18
v_lshrrev_b32 v45, 1, v44
v_and_b32 v46, 1, v44
v_cmp_eq_u32 vcc, 1, v44
v_mov_b32 v47, 288
v_cndmask_b32 v45, v45, v47, vcc
v_cndmask_b32 v46, v46, 0, vcc
v_and_b32 v47, 1, v45
v_lshlrev_b32 v47, 31, v47
v_or_b32 v17, 1.0, v47
v_cvt_f32_u32 v45, v45
v_cvt_f32_u32 v46, v46
v_mul_f32 v45, {f32bits(1/576):#x}, v45
v_mul_f32 v46, 0x3e800000, v46
v_lshlrev_b32 v47, 3, v19
v_cvt_f32_u32 v47, v47
v_fma_f32 v46, v47, v45, v46
v_mul_f32 v55, 0x41800000, v45
""")
            for jj in range(8):
                a(f"s_mov_b32 s73, {f32bits(jj):#x}\nv_fma_f32 v{56+jj}, s73, v45, v46")
        def fgen(t):
            if t:
                a(f"s_mov_b32 s73, {f32bits(t):#x}")
            for jj in range(8):
                if t:
                    a(f"v_fma_f32 v{64+jj}, s73, v55, v{56+jj}\nv_cos_f32 v{64+jj}, v{64+jj}")
                else:
                    a(f"v_cos_f32 v{64+jj}, v{56+jj}")
            for k in range(4):
                a(f"v_cvt_pk_bf16_f32 v{104+4*t+k}, v{64+2*k}, v{65+2*k}")
        npre = a.label("NPRE"); n7 = a.label("NW7")
        a(f"v_mov_b32 v23, 0\ns_mov_b32 s98, {OOB}")
        if "wearly" in self.opts:
            a(f"s_cmp_lg_u32 {sW}, 7\ns_cbranch_scc1 {n7}")
            self.wt_loads()
        a(f"{n7}:\ns_cmp_eq_u32 s89, 99\ns_cbranch_scc1 {npre}")
        fsetup()
        for t in range(FPRE):
            fgen(t)
        a(f"{npre}:\ns_waitcnt lgkmcnt(0)")
        self.tag()
        a("s_barrier")
        wqd = a.label("WQD")
        a(f"s_cmp_lt_u32 {sW}, 6\ns_cbranch_scc1 {wqd}")
        self.panel_setup(2)
        self.panel_loads(SWQ, L_WQ0, L_WQ1, L_P2Q, True, 20, 2)
        a("s_waitcnt vmcnt(12)")
        self.add1(C0A)
        self.panel_loads(SWQ, L_WQ0, L_WQ1, L_P2Q, True, 26, 2)
        self.wait(CK, 4, sleep=0)
        self.panel_loads(SWQ, L_WQ0, L_WQ1, L_P2Q, True, 36, 2)
        self.stamp(6, 3)
        a("s_waitcnt vmcnt(24)")
        self.add1(C0B)
        a("s_waitcnt vmcnt(12)")
        self.add1(C0D)
        if "wmid" in self.opts:
            n7 = a.label("NM7"); d7 = a.label("DM7")
            a(f"s_cmp_lg_u32 {sW}, 7\ns_cbranch_scc1 {n7}")
            self.wt_loads()
            a(f"s_waitcnt vmcnt(16)\ns_branch {d7}\n{n7}:\ns_waitcnt vmcnt(0)\n{d7}:")
        else:
            a("s_waitcnt vmcnt(0)")
        self.add1(C0C)
        self.stamp(1, 3)
        a(f"{wqd}:")
        nod = a.label("NOD")
        a(f"s_cmp_eq_u32 s89, 99\ns_cbranch_scc1 {nod}")
        for t in range(FPRE, 18):
            fgen(t)
        self.stamp(9, 3)
        a(f"""
v_mul_u32_u24 v25, {XP}, v20
v_lshl_add_u32 v25, v19, 4, v25
v_lshrrev_b32 v22, 1, v20
v_xor_b32 v22, v22, v19
v_and_b32 v22, 7, v22
v_lshlrev_b32 v22, 4, v22
v_lshl_add_u32 v6, v20, 7, v22
v_add_u32 v6, {L_X2}, v6
v_xor_b32 v7, 32, v6
v_xor_b32 v8, 64, v6
v_xor_b32 v9, 0x60, v6
v_lshlrev_b32 v22, 12, v18
v_lshl_add_u32 v22, v19, 5, v22
s_lshl_b32 s90, s89, 17
s_lshl_b32 s73, {sP}, 7
s_add_u32 s90, s90, s73
s_add_u32 s90, s90, {WS_T}
""")
        RG = 44
        def frag(t, n, q):
            return vr(RG + 16 * (t % 3) + 8 * n + 4 * q, 4)
        def rd(t):
            for n in range(2):
                for q in range(2):
                    ks = t + 18 * q
                    if ks < 32:
                        a(f"ds_read_b128 {frag(t,n,q)}, v25 offset:{n*32*XP + ks*32}")
                    else:
                        a(f"ds_read_b128 {frag(t,n,q)}, v{6+ks-32} offset:{n*4096}")
        def dft(t0, t1):
            for t in range(t0, min(t0 + 2, t1)):
                rd(t)
            for t in range(t0, t1):
                if t + 2 < t1:
                    rd(t + 2)
                a(f"s_waitcnt lgkmcnt({4 * (min(t+3, t1) - t - 1)})")
                for n in range(2):
                    for q in range(2):
                        acc = vr(176 + 32 * n + 16 * q, 16)
                        a(f"v_mfma_f32_32x32x16_bf16 {acc}, {frag(t,n,q)}, {vr(104+4*t,4)}, {'0' if t == 0 else acc}")
        DPRE = self.opt("dpre", 10)
        if DPRE:
            self.wait(CK, 4)
            dft(0, DPRE)
        a("s_setprio 3")
        self.wait(C1, 4)
        self.stamp(3, 3)
        dft(DPRE, 18)
        self.stamp(8, 3)
        self.wait(CV, 4, sleep=2)
        for n in range(2):
            b = 176 + 32 * n
            for r in range(16):
                a(f"v_fma_f32 v{b+r}, v17, v{b+16+r}, v{b+r}")
            for k in range(8):
                a(f"v_cvt_pk_bf16_f32 v{b+k}, v{b+2*k}, v{b+2*k+1}")
            a(f"buffer_store_dwordx4 {vr(b,4)}, v22, {SWS}, s90 offen offset:{64*n} sc1")
            a(f"buffer_store_dwordx4 {vr(b+4,4)}, v22, {SWS}, s90 offen offset:{64*n+16} sc1")
        a(f"{nod}:")
        n6 = a.label("N6"); n7 = a.label("N7")
        a(f"s_cmp_eq_u32 {sW}, 7\ns_cbranch_scc1 {n7}\ns_cmp_lg_u32 {sW}, 6\ns_cbranch_scc1 {n6}\ns_setprio 3")
        self.wait(CV, 4, sleep=2)
        self.poison()
        a(f"{n6}:\ns_waitcnt vmcnt(0)")
        self.add1(CD)
        self.stamp(4, 3); self.stamp(4)
        a(f"{n7}:")

    def g_gen(self):
        a = self.a
        N = 1.0 / (M.S * M.D)
        skip = a.label("GS"); nx = a.label("GNX"); nk = a.label("GNK")
        assert all((f * 1821) >> 16 == f // 36 for f in range(864))
        assert all((f * 21846) >> 16 == f // 3 for f in range(24))
        a(f"""
s_mov_b32 s99, {OOB}
s_cmp_ge_u32 s2, 216
s_cbranch_scc1 {skip}
s_lshl_b32 s90, s2, 2
s_lshl_b32 s99, s2, 12
s_add_u32 s99, s99, {WS_G}
s_mul_i32 s91, s90, 1821
s_lshr_b32 s91, s91, 16
s_mul_i32 s73, s91, 36
s_sub_u32 s92, s90, s73
s_mul_i32 s93, s91, 21846
s_lshr_b32 s93, s93, 16
s_mul_i32 s73, s93, 3
s_sub_u32 s91, s91, s73
s_mul_i32 s93, s93, 72
s_lshl_b32 s73, s91, 5
s_add_u32 s93, s93, s73
v_mov_b32 v44, v20
s_cmp_lg_u32 s91, 2
s_cbranch_scc1 {nx}
v_mov_b32 v44, v18
{nx}:
v_add_u32 v44, s93, v44
s_lshl_b32 s73, s92, 3
v_lshl_add_u32 v45, v19, 2, s73
v_mul_u32_u24 v45, v45, v44
v_mul_u32_u24 v47, 5, v44
s_mov_b32 s73, {f32bits(1/576):#x}
s_mov_b32 s93, {f32bits(2*N):#x}
""")
        for fr in range(4):
            for cq in range(4):
                a(f"v_cvt_f32_u32 v46, v45\nv_mul_f32 v46, s73, v46\nv_fract_f32 v46, v46")
                a(f"v_cos_f32 v{48+2*cq}, v46\nv_sin_f32 v{49+2*cq}, v46")
                a("v_add_u32 v45, v45, v44" if cq < 3 else "v_add_u32 v45, v45, v47")
            for cq in range(4):
                a(f"v_mul_f32 v{48+2*cq}, s93, v{48+2*cq}\nv_mul_f32 v{49+2*cq}, s93, -v{49+2*cq}")
            if fr == 0:
                a(f"""
s_cmp_lg_u32 s92, 0
s_cbranch_scc1 {nk}
s_mov_b32 exec_hi, 0
v_mov_b32 v48, {f32bits(N):#x}
v_lshlrev_b32 v49, 31, v44
v_or_b32 v49, v48, v49
s_mov_b64 exec, -1
{nk}:
""")
            for k in range(4):
                a(f"v_cvt_pk_bf16_f32 v{240+4*fr+k}, v{48+2*k}, v{49+2*k}")
        a(f"{skip}:")

    WB = 112

    def poison(self):
        a = self.a
        a(f"v_lshlrev_b32 v24, 4, v0\nv_mov_b32 v28, -1\nv_mov_b32 v29, -1\nv_mov_b32 v30, -1\nv_mov_b32 v31, -1")
        a(f"s_mul_i32 s90, {sP}, {8*9216}\ns_add_u32 s90, s90, {WS_OF}\ns_mul_i32 s91, {sJ}, 9216\ns_add_u32 s91, s91, s90\ns_add_u32 s91, s91, 8192")
        a(f"buffer_store_dwordx4 v[28:31], v24, {SWS}, s91 offen sc1\ns_lshl_b32 s73, {sJ}, 10\ns_add_u32 s90, s90, s73")
        for i in range(8):
            a(f"buffer_store_dwordx4 v[28:31], v24, {SWS}, s90 offen sc1\ns_add_u32 s90, s90, 9216")

    def wt_loads(self):
        a = self.a
        self.srd(SWR, 6, 2048 * 578)
        self.srd(SWI, 8, 2048 * 578)
        a(f"""
v_and_b32 v26, 7, v0
v_lshrrev_b32 v27, 3, v0
v_mul_u32_u24 v22, 578, v26
v_mad_u32_u24 v22, v27, 18, v22
s_lshr_b32 s93, s2, 6
s_bfe_u32 s92, s2, 0x20004
s_and_b32 s88, s2, 15
s_lshl_b32 s90, s88, 7
s_lshl_b32 s73, s92, 3
s_add_u32 s90, s90, s73
s_mul_i32 s90, s90, 578
s_mul_i32 s73, s93, 144
s_add_u32 s90, s90, s73
""")
        for jr in range(4):
            for ri, srd in enumerate((SWR, SWI)):
                b = self.WB + 24 * ri + 6 * jr
                a(f"buffer_load_dwordx4 {vr(b,4)}, v22, {srd}, s90 offen\nbuffer_load_dword v{b+4}, v22, {srd}, s90 offen offset:16")
            if jr < 3:
                a(f"s_add_u32 s90, s90, {32*578}")
        a(f"""
s_mov_b32 s73, {9*8192}
v_mul_lo_u32 v23, v27, s73
v_lshl_add_u32 v23, v26, 4, v23
s_mul_i32 s98, s93, {72*8192}
s_lshl_b32 s73, s88, 8
s_add_u32 s98, s98, s73
s_and_b32 s73, s92, 1
s_lshl_b32 s73, s73, 7
s_add_u32 s98, s98, s73
s_lshr_b32 s73, s92, 1
s_lshl_b32 s73, s73, 12
s_add_u32 s98, s98, s73
s_add_u32 s98, s98, {WS_WT}
""")

    def wt_stores(self):
        a = self.a
        last = a.label("WL")
        a("s_mov_b32 s92, 0x05040100\ns_mov_b32 s93, 0x07060302")
        for x in range(10):
            if x == 9:
                a(f"s_cmp_lt_u32 s2, 192\ns_cbranch_scc1 {last}\ns_mov_b32 exec_lo, 0\ns_mov_b32 exec_hi, 0xff000000")
            t = self.WB + 48 + 4 * (x % 3)
            for ri in range(2):
                for pr in range(2):
                    lo = self.WB + 24 * ri + 12 * pr + x // 2
                    a(f"v_perm_b32 v{t+2*ri+pr}, v{lo+6}, v{lo}, {'s93' if x % 2 else 's92'}")
            a(f"buffer_store_dwordx4 {vr(t,4)}, v23, {SWS}, s98 offen sc1\ns_add_u32 s98, s98, 8192")
        a(f"s_mov_b64 exec, -1\n{last}:")

    def s_flag(self):
        a = self.a
        self.g_gen()
        a("s_setprio 3\nv_lshlrev_b32 v24, 4, v0")
        self.wait(CV, 4, sleep=2)
        self.stamp(3, 3)
        if "wearly" not in self.opts and "wmid" not in self.opts:
            self.wt_loads()
        a("s_waitcnt vmcnt(0)")
        self.wt_stores()
        for fr in range(4):
            a(f"buffer_store_dwordx4 {vr(240+4*fr,4)}, v24, {SWS}, s99 offen offset:{1024*fr} sc1")
        self.stamp(10, 3)
        self.flag4("s91", "s2", WS_FS)
        a("s_waitcnt vmcnt(0)")
        self.stamp(11, 3)
        self.wait(CD, 3, sleep=2)
        self.set_flag("s91")
        self.add1(CW)
        self.stamp(6); self.stamp(2, 3)
        self.wait(CR, 4, sleep=4)
        self.stage2_tables()

    def attention(self):
        a = self.a
        K0, KX0, V0, S0, O0, Q0, QX0 = self.AK, self.AKX, self.AV, self.AS, self.AO, self.AQ, self.AQX
        a(f"""
v_and_b32 v84, 31, v0
v_lshrrev_b32 v85, 5, v0
s_lshr_b32 s88, {sW}, 2
s_mul_i32 s73, s88, 6144
s_add_u32 s73, s73, {L_QS}
v_mul_u32_u24 v{self.vQ}, 48, v84
v_add_u32 v{self.vQ}, s73, v{self.vQ}
v_lshl_add_u32 v{self.vQX}, v85, 2, v{self.vQ}
v_add_u32 v{self.vQX}, 32, v{self.vQX}
v_lshl_add_u32 v{self.vQ}, v85, 4, v{self.vQ}
s_and_b32 s73, {sW}, 3
s_mul_i32 s73, s73, 2560
s_add_u32 s73, s73, {L_EX}
v_lshl_add_u32 v{self.vEX}, v0, 4, s73
s_add_u32 s73, s73, 2048
v_lshl_add_u32 v{self.vEX2}, v0, 3, s73
s_lshl_b32 s73, s88, 10
s_add_u32 s73, s73, {L_CT}
v_lshl_add_u32 v{self.vCT}, v0, 2, s73
s_mul_i32 s73, s88, {CN - C1}
v_add_u32 v86, s73, v2
v_mov_b32 v{QX0+1}, 0
v_mov_b32 v{QX0+2}, 0
""")
        self.wait(C1, 4, sleep=0)
        self.stamp(5); self.stamp(5, 3); self.stamp(1, 5)
        qmain = lambda q: f"ds_read_b128 {vr(Q0,4)}, v{self.vQ} offset:{1536*(q%4)}"
        qx = lambda q: f"ds_read_b32 v{QX0}, v{self.vQX} offset:{1536*(q%4)}\nds_read_b32 v{QX0+3}, v{self.vQX} offset:{1536*(q%4)}"
        a(qmain(0)); a(qx(0))
        keys = lambda kind, t: ([("K", t)] + ([] if t % 2 else [("X", t)])) if kind == "K" else [("V0", t), ("V1", t)]
        issued = []
        for t in range(self.NFIRST):
            issued += keys("K", t) + keys("V", t)
        state = {"done": 0}
        def need(*ks):
            idx = max(issued.index(k) for k in ks) + 1
            if idx > state["done"]:
                state["done"] = idx
                return [f"s_waitcnt vmcnt({len(issued) - idx})"]
            return []
        slots = {}
        def put(g, name, *items):
            slots.setdefault((g, name), []).extend(items)
        def put_loads(kind, t, where):
            ins = self.ld_k(t, t % 8) if kind == "K" else self.ld_v(t, t % 8)
            for x, key, (g, name) in zip(ins, keys(kind, t), where):
                put(g, name, (key, x))
        for t in range(self.NFIRST, 8):
            g = t - self.NFIRST
            put_loads("K", t, [(g, "B"), (g, "B")])
            put_loads("V", t, [(g, "C"), (g, "D")])
        for t in range(8):
            g = 24 + (3 * t) // 2
            put_loads("K", 8 + t, [(g, "C"), (g, "D")])
            put_loads("V", 8 + t, [(g + 1, "A"), (g + 1, "B")])
        def slot(g, name):
            out = []
            for it in slots.get((g, name), []):
                if isinstance(it, tuple):
                    issued.append(it[0]); out.append(it[1])
                else:
                    out.append(it)
            return out
        sreg = lambda g: S0 + 16 * (g % 2)
        oreg = lambda ps: O0 + 10 * (ps % 4)
        def qk16(g):
            return f"v_mfma_f32_32x32x16_bf16 {vr(sreg(g),16)}, {vr(K0+4*(g%8),4)}, {vr(Q0,4)}, 0"
        def qkx(g):
            return f"v_mfma_f32_32x32x8_bf16 {vr(sreg(g),16)}, {vr(KX0+2*((g%8)//2),2)}, {vr(QX0+2*(g%2),2)}, {vr(sreg(g),16)}"
        def pv(g, u):
            o = vr(oreg(g // 8), 16)
            c = "0" if (g // 8 < 4 and g % 8 == 0 and u == 0) else o
            return f"v_mfma_f32_32x32x16_bf16 {o}, {vr(V0+8*(g%8)+4*u,4)}, {vr(sreg(g)+4*u,4)}, {c}"
        kt = lambda g: (g % 8) + (8 if g >= 32 else 0)
        def kneed(g):
            t = kt(g)
            return need(("K", t), ("X", t & ~1))
        def export(q):
            o = O0 + 10 * q
            return [f"ds_write_b128 v{self.vEX}, {vr(o,4)} offset:{10240*q}", f"ds_write_b128 v{self.vEX}, {vr(o+4,4)} offset:{10240*q+1024}",
                    f"ds_write_b64 v{self.vEX2}, {vr(o+8,2)} offset:{10240*q}",
                    f"ds_add_u32 v{self.vCT}, v3 offset:{256*q}"]
        for x in kneed(0) + ["s_waitcnt lgkmcnt(0)", qk16(0), qkx(0)]:
            a(x)
        for ps in range(7):
            put(8 * ps + 6, "B", qmain(ps + 1))
            q1, q2 = qx(ps + 1).split("\n")
            put(8 * ps + 6, "C", q1); put(8 * ps + 6, "D", q2)
        for ps in range(5, 8):
            ex = export(ps - 5)
            put(8 * ps, "C", ex[0]); put(8 * ps, "D", ex[1]); put(8 * ps + 1, "A", ex[2]); put(8 * ps + 1, "B", ex[3])
        hi = a.label("PHI"); nf = a.label("NYF"); lo = a.label("PLO"); ok = a.label("CNOK")
        put(7 - self.NFIRST, "D", f"s_mov_b64 exec, 1\nds_add_u32 v2, v3 offset:{CV}\ns_mov_b64 exec, -1\ns_cmp_lt_u32 {sW}, 4\ns_cbranch_scc1 {hi}\ns_setprio 1\n{hi}:")
        put(1, "D", f"s_cmp_eq_u32 s99, {OOB}\ns_cbranch_scc1 {nf}\ns_waitcnt vmcnt(7)\ns_mov_b64 exec, 1\nds_add_rtn_u32 v233, v232, v3 offset:{YA}\n"
                    f"v_mov_b32 v1, {sTAG}\ns_waitcnt lgkmcnt(0)\nv_readfirstlane_b32 s73, v233\ns_cmp_lg_u32 s73, 1\ns_cmov_b32 s99, {OOB}\n"
                    f"buffer_store_dword v1, off, {SWS}, s99 sc1\ns_mov_b64 exec, -1\n{nf}:")
        put(23, "D", "s_setprio 3")
        put(self.opt("cr", 35), "C", f"s_mov_b64 exec, 1\nds_add_u32 v2, v3 offset:{CR}\ns_mov_b64 exec, -1")
        put(36, "A", f"s_setprio 1\ns_cmp_ge_u32 {sW}, 4\ns_cbranch_scc1 {lo}\ns_setprio 2\n{lo}:")
        put(36, "D", f"ds_read_b32 v87, v86 offset:{C1}")
        for g in range(64):
            ps, t = divmod(g, 8)
            s = sreg(g)
            e = lambda i: f"v_exp_f32 v{s+i}, v{s+i}"
            c = lambda k: f"v_cvt_pk_bf16_f32 v{s+k}, v{s+2*k}, v{s+2*k+1}"
            last = g == 63
            seq = [e(0), e(1)]
            if g > 0:
                seq.append(pv(g - 1, 1))
            seq += slot(g, "A")
            if not last:
                w = kneed(g + 1)
                if t == 7:
                    w = [(w[0] + " " if w else "s_waitcnt ") + "lgkmcnt(0)"]
                seq += w
            seq += [e(2), e(3), c(0), e(4), c(1)]
            if not last:
                seq.append(qk16(g + 1))
            seq += slot(g, "B") + [e(5), e(6), e(7), c(2), e(8), c(3)]
            if not last:
                seq.append(qkx(g + 1))
            seq += slot(g, "C") + need(("V0", kt(g)), ("V1", kt(g)))
            seq += [e(9), e(10), e(11), c(4), e(12), c(5), pv(g, 0)] + slot(g, "D") + [e(13), e(14), e(15), c(6), c(7)]
            for x in seq:
                a(x)
            if g == 39:
                a(f"v_readfirstlane_b32 s73, v87\ns_cmp_ge_u32 s73, 4\ns_cbranch_scc1 {ok}")
                self.wait(C1, 4, sleep=2, base="v86")
                a(f"{ok}:")
            if g == 7:
                self.stamp(11)
            if t == 7:
                self.stamp(2 + ps, 5)
        a(pv(63, 1))
        self.norm_setup(1)
        ex = export(3)
        for x in ex[:3]:
            a(x)
        a(f"ds_add_rtn_u32 v1, v{self.vCT}, v3 offset:768")

    T64, T32A, TW1, TW2, T32B, NTAB = 0, 24, 27, 35, 43, 49
    NPRE = 35

    def make_tables(self):
        L = np.arange(64); Lm = (L & 15)[:, None]; Lg = (L >> 4)[:, None]
        jj = np.arange(8)[None, :]; r = np.arange(4)[None, :]
        def pk(v):
            b = M.bf(v.astype(np.float32)).astype(np.uint32)
            return (b[:, 0::2] | (b[:, 1::2] << 16)).astype(np.uint32)
        parts = lambda z: (z.real, z.imag, -z.imag)
        w = lambda n, x, y: np.exp(-2j * np.pi * ((x * y) % n) / n)
        f32 = lambda v: v.astype(np.float32).view(np.uint32)
        out = []
        for H in range(2):
            for k in range(3):
                for t in range(4):
                    for ks in range(2):
                        out.append(pk(parts(w(64, 16 * (t ^ (2 * H)) + Lm, 32 * (ks ^ H) + 16 * (jj >> 2) + 4 * Lg + (jj & 3)))[k]))
            for k in range(3):
                out.append(pk(parts(w(32, 8 * Lg + jj, 16 * H + Lm))[k]))
            for t in range(4):
                z = w(2048, 16 * (t ^ (2 * H)) + 4 * Lg + r, 16 * H + Lm)
                out += [f32(z.real), f32(z.imag)]
            for t in range(4):
                z = np.conj(w(2048, 16 * (t ^ (2 * H)) + Lm, 16 * H + 4 * Lg + r))
                out += [f32(z.real), f32(z.imag)]
            for k in range(3):
                for at in range(2):
                    out.append(pk(parts(w(32, 8 * (Lm >> 2) + 4 * at + (Lm & 3), 16 * (H ^ (jj >> 2)) + 4 * Lg + (jj & 3)))[k]))
        return np.concatenate([o.reshape(-1) for o in out])

    def tload(self, frag, dst):
        if self.tgroup != frag // 4:
            self.tgroup = frag // 4
            self.a(f"s_add_u32 s88, s87, {(frag // 4) * 4096}")
        self.a(f"buffer_load_dwordx4 {vr(dst,4)}, v5, {STB}, s88 offen offset:{(frag % 4) * 1024}")

    def stage2_tables(self):
        a = self.a
        a(f"""
s_getpc_b64 s[64:65]
s_add_u32 s64, s64, spectral_tables@rel32@lo+4
s_addc_u32 s65, s65, spectral_tables@rel32@hi+12
s_mov_b32 s66, {2*self.NTAB*1024}
s_mov_b32 s67, 0x20000
v_lshlrev_b32 v5, 4, v0
s_and_b32 s86, {sW}, 1
s_mul_i32 s87, s86, {self.NTAB*1024}
""")
        self.tgroup = None
        for f in range(24):
            self.tload(self.T64 + f, 80 + 4 * f)
        for f in range(3):
            self.tload(self.T32A + f, 240 + 4 * f)
        for f in range(8):
            self.tload(self.TW1 + f, 16 + 4 * f)

    def stage2(self):
        a = self.a
        A, P, Q, TW, WW, PK, TMP = 80, 48, 176, 16, 208, 240, 8
        self.tgroup = None
        a(f"""
v_and_b32 v6, 15, v0
v_lshlrev_b32 v6, 6, v6
v_lshrrev_b32 v7, 4, v0
v_lshl_add_u32 v6, v7, 4, v6
s_lshl_b32 s90, s89, 13
s_add_u32 s91, s90, 4096
s_cmp_eq_u32 s89, 288
s_cmov_b32 s90, 4096
s_cmov_b32 s91, {OOB}
s_cmp_eq_u32 s89, 0
s_cmov_b32 s91, {OOB}
s_lshl_b32 s73, s86, 11
s_add_u32 s90, s90, s73
s_add_u32 s91, s91, s73
s_lshl_b32 s85, s86, 12
s_sub_u32 s85, 2048, s85
s_lshr_b32 s73, {sW}, 1
s_and_b32 s73, s73, 1
s_xor_b32 s73, s73, 1
s_lshl_b32 s99, s73, 2
s_lshl_b32 s73, s73, 12
s_lshl_b32 s84, s86, 11
s_add_u32 s73, s73, s84
s_add_u32 s73, s73, {L_XCH}
v_add_u32 v7, s73, v5
s_sub_u32 s73, s73, s84
s_xor_b32 s84, s84, 0x800
s_add_u32 s84, s84, s73
""")
        cl = a.label("GC"); cg = a.label("CG"); ot = a.label("GO"); dn = a.label("GD")
        a(f"s_cmp_lg_u32 {sW}, 7\ns_cbranch_scc1 {ot}\ns_lshr_b32 s73, s2, 3\ns_cmp_lg_u32 s73, 16\ns_cbranch_scc1 {cl}")
        a(f"v_lshlrev_b32 v8, 7, v0\ns_mov_b32 s92, {WS_FS}\ns_sleep {self.opt('dw', 8)}")
        self.poll(f"buffer_load_dwordx4 v[12:15], v8, {SWS}, s92 offen sc1", [12, 13, 14, 15], sleep=4)
        a(f"s_and_b32 s92, s2, 7\ns_lshl_b32 s92, s92, 7\ns_add_u32 s92, s92, {WS_GOS}")
        self.set_flag("s92")
        a(f"s_branch {cg}\n{cl}:\ns_sleep {self.opt('d2', 32)}")
        self.go_wait(WS_GOS, 252, 8)
        a(f"{cg}:")
        self.add1(CG)
        a(f"s_branch {dn}\n{ot}:")
        self.wait(CG, 1, sleep=2)
        a(f"s_waitcnt vmcnt(0)\n{dn}:")
        self.stamp(7)
        self.stamp(1, 2)
        a(f"s_add_u32 s92, s90, {WS_T}\ns_add_u32 s93, s91, {WS_T}\ns_add_u32 s82, s92, s85\ns_add_u32 s83, s93, s85")
        for t in range(4):
            for ri in range(2):
                so = (("s92", "s93"), ("s82", "s83"))[t >> 1][ri]
                a(f"buffer_load_dwordx4 {vr(WW+8*t+4*ri,4)}, v6, {SWS}, {so} offen offset:{1024*(t&1)} sc1")
        mf = lambda acc, x, y, first: a(f"v_mfma_f32_16x16x32_bf16 {vr(acc,4)}, {vr(x,4)}, {vr(y,4)}, {'0' if first else vr(acc,4)}")
        re = lambda base, t: base + 8 * t
        im = lambda base, t: base + 8 * t + 4
        for t in range(4):
            a(f"s_waitcnt vmcnt({6 - 2*t})")
            if t == 0: self.stamp(2, 2)
            mf(re(P, t), re(WW, t), PK, True); mf(im(P, t), re(WW, t), PK + 4, True)
            mf(re(P, t), im(WW, t), PK + 8, False); mf(im(P, t), im(WW, t), PK, False)
        a(f"s_lshl_b32 s92, s89, 13\ns_lshl_b32 s73, s86, 12\ns_add_u32 s92, s92, s73\ns_lshl_b32 s73, s86, 11\ns_add_u32 s92, s92, s73\ns_add_u32 s92, s92, {WS_WT}")
        a("s_add_u32 s82, s92, s85")
        for t in range(4):
            a(f"buffer_load_dwordx4 {vr(WW+8*t+4,4)}, v5, {SWS}, {('s92', 's82')[t >> 1]} offen offset:{1024*(t&1)} sc1")
        def cmul(x, c, dst):
            for t in range(4):
                ops = []
                for h in range(2):
                    t0, t1 = TMP + 4 * h, TMP + 4 * h + 2
                    xr, xi, cr, ci = re(x, t) + 2 * h, im(x, t) + 2 * h, re(c, t) + 2 * h, im(c, t) + 2 * h
                    ops.append([f"v_pk_mul_f32 {vr(t0,2)}, {vr(xr,2)}, {vr(cr,2)}",
                                f"v_pk_mul_f32 {vr(t1,2)}, {vr(xr,2)}, {vr(ci,2)}",
                                f"v_pk_fma_f32 {vr(t0,2)}, {vr(xi,2)}, {vr(ci,2)}, {vr(t0,2)} neg_lo:[1,0,0] neg_hi:[1,0,0]",
                                f"v_pk_fma_f32 {vr(t1,2)}, {vr(xi,2)}, {vr(cr,2)}, {vr(t1,2)}",
                                f"v_cvt_pk_bf16_f32 v{dst(t,0)+h}, v{t0}, v{t0+1}",
                                f"v_cvt_pk_bf16_f32 v{dst(t,1)+h}, v{t1}, v{t1+1}"])
                for j in range(0, 6, 2):
                    for o in ops:
                        a(o[j]); a(o[j + 1])
        pkd = lambda t, part: PK + 8 * part + 2 * t
        ks_ = lambda part, ks: PK + 8 * part + 4 * ks
        t64 = lambda k, t, ks: A + 32 * k + 8 * t + 4 * ks
        self.stamp(3, 2)
        cmul(P, TW, pkd)
        self.stamp(4, 2)
        for f in range(8):
            self.tload(self.TW2 + f, TW + 4 * f)
        for t in range(4):
            for ks in range(2):
                mf(re(Q, t), t64(0, t, ks), ks_(0, ks), ks == 0); mf(im(Q, t), t64(1, t, ks), ks_(0, ks), ks == 0)
            for ks in range(2):
                mf(re(Q, t), t64(2, t, ks), ks_(1, ks), False); mf(im(Q, t), t64(0, t, ks), ks_(1, ks), False)
        self.stamp(5, 2)
        a("s_waitcnt vmcnt(8)")
        for t in range(4):
            b = WW + 8 * t
            for k in range(4):
                a(f"v_lshlrev_b32 v{b+2*k}, 16, v{b+4+k}\nv_and_b32 v{b+2*k+1}, 0xffff0000, v{b+4+k}" if k < 2 else "")
            a(f"v_and_b32 v{b+5}, 0xffff0000, v{b+6}\nv_lshlrev_b32 v{b+4}, 16, v{b+6}\nv_lshlrev_b32 v{b+6}, 16, v{b+7}\nv_and_b32 v{b+7}, 0xffff0000, v{b+7}")
        cmul(Q, WW, pkd)
        self.stamp(6, 2)
        for f in range(6):
            self.tload(self.T32B + f, WW + 4 * f)
        for t in (2, 3, 0, 1):
            for ks in range(2):
                mf(re(P, t), ks_(0, ks), t64(0, t, ks), ks == 0); mf(im(P, t), ks_(1, ks), t64(0, t, ks), ks == 0)
            for ks in range(2):
                mf(re(P, t), ks_(1, ks), t64(1, t, ks), False); mf(im(P, t), ks_(0, ks), t64(2, t, ks), False)
        self.stamp(7, 2)
        a("v_add_u32 v232, s99, v2")
        self.kv_addr()
        self.kv_loads()
        a(f"s_waitcnt vmcnt({6 + self.NLD1})")
        cmul(P, TW, lambda t, part: (PK + 8 * t + 4 * part) if t < 2 else (Q + 4 * (t - 2) + 2 * part))
        a(f"ds_write_b128 v7, {vr(Q,4)}\nds_write_b128 v7, {vr(Q+4,4)} offset:1024")
        self.add1(XA, base="v232")
        a("v_add_u32 v7, s84, v5")
        self.wait(XA, 2, sleep=0, base="v232")
        for t in range(2):
            for part in range(2):
                a(f"ds_read_b64 {vr(PK+8*t+4*part+2,2)}, v7 offset:{1024*t+8*part}")
        self.stamp(8, 2)
        a(f"s_waitcnt vmcnt({self.NLD1}) lgkmcnt(0)")
        t32 = lambda k, at: WW + 8 * k + 4 * at
        out = lambda t, part, at: Q + 16 * t + 8 * part + 4 * at
        for t in range(2):
            for at in range(2):
                mf(out(t, 0, at), t32(0, at), PK + 8 * t, True); mf(out(t, 1, at), t32(0, at), PK + 8 * t + 4, True)
            for at in range(2):
                mf(out(t, 0, at), t32(1, at), PK + 8 * t + 4, False); mf(out(t, 1, at), t32(2, at), PK + 8 * t, False)
        a(f"s_add_u32 s92, s90, {WS_Y}\ns_add_u32 s93, s91, {WS_Y}")
        for t in range(2):
            for part in range(2):
                b = out(t, part, 0); d = 48 + 8 * t + 4 * part
                for k in range(4):
                    a(f"v_cvt_pk_bf16_f32 v{d+k}, v{b+2*k}, v{b+2*k+1}")
                a(f"buffer_store_dwordx4 {vr(d,4)}, v6, {SWS}, {'s93' if part else 's92'} offen offset:{1024*t} sc1")
        self.stamp(9, 2)
        self.flag4("s99", "s89", WS_FY)

    def l_mid(self):
        a = self.a
        go = a.label("S2"); no = a.label("NS2"); n7 = a.label("N7"); kv = a.label("LKV"); tb = a.label("TB"); nw = a.label("NW")
        a(f"s_mov_b32 s89, s2\ns_cmp_lg_u32 {sW}, 7\ns_cbranch_scc1 {n7}")
        self.s_flag()
        a(f"s_mov_b32 s89, s2\ns_branch {go}\n{n7}:")
        self.wait(CW, 1, sleep=6)
        self.wait(CR, 4, sleep=4)
        a(f"s_cmp_eq_u32 {sW}, 6\ns_cbranch_scc1 {tb}")
        a(f"""
s_add_u32 s89, s2, 192
s_sub_u32 s73, s2, 64
s_cmp_gt_u32 s73, 32
s_cbranch_scc1 {nw}
{tb}:
""")
        self.stage2_tables()
        a(f"{go}:")
        self.stage2()
        a(f"s_branch {kv}\n{nw}:")
        if "wol" in self.opts:
            self.srd(SWO, 18, 663552)
            self.panel_setup(2)
            a(f"s_sleep {self.opt('dwo', 12)}")
            self.panel_loads(SWO, L_WO0, L_WO1, L_WOX, False, 36, 2, rotate=True)
            a("s_waitcnt vmcnt(0)")
            self.add1(S3)
            self.add1(S3)
        a(f"{no}:\ns_mov_b32 s99, {OOB}")
        self.kv_addr()
        self.kv_loads()
        a(f"s_setprio 1\n{kv}:")
        self.stamp(9)

    NT = 192

    def tail(self, mm, n):
        a = self.a
        ACC, ACX = 16, 32
        WF = 48
        NT = self.NT
        w = 2 * mm + n
        a("s_setprio 2")
        self.busy = 2
        self.norm_setup(1 - n)
        a(f"""
ds_read_b32 v11, v14 offset:{2304 + 128 * n}
v_and_b32 v37, 15, v0
v_lshrrev_b32 v38, 4, v0
v_lshl_add_u32 v14, v37, 2, v2
ds_read_b32 v36, v14 offset:{2304 + 128 * n + 64 * mm}
v_bfe_u32 v43, v0, 2, 2
v_and_b32 v44, 3, v0
v_bfe_u32 v46, v0, 4, 1
v_and_b32 v39, 1, v44
v_lshlrev_b32 v15, 2, v39
v_lshl_add_u32 v15, v46, 1, v15
v_lshrrev_b32 v14, 1, v44
v_add_u32 v45, v15, v14
v_lshlrev_b32 v45, 3, v45
v_add_u32 v45, {L_WO1 if mm else L_WO0}, v45
v_lshl_add_u32 v6, v13, 2, v43
v_lshl_add_u32 v6, v6, 6, v45
v_lshrrev_b32 v7, 1, v43
v_mul_u32_u24 v7, 72, v7
v_and_b32 v14, 1, v43
v_add3_u32 v40, v7, v14, 16
v_lshl_add_u32 v7, v40, 6, v45
v_mul_u32_u24 v14, 18432, v13
v_add_u32 v7, v7, v14
v_lshlrev_b32 v39, 3, v39
v_add_u32 v39, {L_WOX}, v39
v_mul_u32_u24 v15, 288, v46
v_add_u32 v15, v15, v40
v_lshl_add_u32 v15, v15, 4, v39
v_mul_u32_u24 v14, 72, v13
v_lshl_add_u32 v14, v46, 2, v14
v_add_u32 v14, v14, v43
v_lshl_add_u32 v14, v14, 4, v39
v_lshlrev_b32 v41, 4, v37
v_lshl_add_u32 v41, v46, 9, v41
v_lshl_add_u32 v47, v13, 10, v41
v_cmp_gt_u32 vcc, 32, v0
v_mov_b32 v40, {OOB}
v_add_u32 v41, {256 * mm}, v47
v_cndmask_b32 v42, v40, v41, vcc
v_cmp_gt_u32 vcc, 8, v37
s_nop 0
v_cndmask_b32 v47, v40, v47, vcc
s_waitcnt lgkmcnt(0)
v_sub_f32 v4, 1.0, v4
""")

        normalize = self.normalize

        def wrow(kind, k, hh, u):
            if kind == "m":
                return ("v6", (72 * k + 18 * hh + 8 * u) * 64) if k < 8 else ("v7", (144 * u + 18 * hh) * 64)
            return ("v14", (144 * k + 18 * hh + 8 * u) * 16) if k < 4 else ("v15", (144 * u + 18 * hh) * 16)

        def consume(i, probe):
            OB, AX = 192, 248
            hh = i >> 1
            seq = []
            for ks in range(9):
                seq.append(("m", ks))
                if ks % 2 == 1 or ks == 8: seq.append(("x", ks // 2))
            def rd(k):
                for u in range(2):
                    base, off = wrow("x", k, hh, u)
                    a(f"ds_read_b64_tr_b16 {vr(AX+4*(k%2)+2*u,2)}, {base} offset:{off}")
            rd(0); rd(1)
            if probe:
                l = a.label("CP"); d = a.label("CQ")
                a(f"{l}:\ns_add_u32 s90, s94, {i*9216 + 8192}\nbuffer_load_dwordx4 {vr(OB,4)}, v5, {SWS}, s90 offen sc1")
                a(f"s_waitcnt vmcnt(0)\nv_max_u32 v1, v{OB}, v{OB+1}\nv_max3_u32 v1, v1, v{OB+2}, v{OB+3}")
                a(f"v_cmp_eq_u32 vcc, -1, v1\ns_cmp_eq_u64 vcc, 0\ns_cbranch_scc1 {d}")
                a(f"s_sleep 8\ns_sub_u32 {sSPIN}, {sSPIN}, 1\ns_cbranch_scc0 {l}\ns_branch L_bail\n{d}:")
            l = a.label("CL"); d = a.label("CD")
            a(f"{l}:")
            chk = []
            oreg = lambda it: OB + (4 * it[1] if it[0] == "m" else 36 + 4 * it[1])
            for it in seq:
                kind, k = it
                if kind == "m" and k % 4 == 0:
                    a(f"s_add_u32 s90, s94, {i*9216 + 1024*k}")
                voff, last = ("v5", k == 8) if kind == "m" else ("v41" if k < 4 else "v42", k == 4)
                imm = 1024 * (k % 4) if kind == "m" else 2048 * (k % 2)
                a(f"buffer_load_dwordx4 {vr(oreg(it),4)}, {voff}, {SWS}, s90 offen offset:{imm} sc1")
                chk.append([oreg(it) + r for r in range(4 if last else 1)])
            flat = [(j, r) for j, rs in enumerate(chk) for r in rs]
            a(f"s_waitcnt vmcnt({len(chk) - 2})\nv_max_u32 v1, v{flat[0][1]}, v{flat[1][1]}")
            for p in range(2, len(flat), 2):
                a(f"s_waitcnt vmcnt({len(chk) - 1 - flat[p+1][0]})\nv_max3_u32 v1, v1, v{flat[p][1]}, v{flat[p+1][1]}")
            a(f"v_cmp_eq_u32 vcc, -1, v1\ns_cmp_eq_u64 vcc, 0\ns_cbranch_scc1 {d}")
            a(f"s_sleep {2 if i >= 6 else 8}\ns_sub_u32 {sSPIN}, {sSPIN}, 1\ns_cbranch_scc0 {l}\ns_branch L_bail\n{d}:")
            for kind, k in seq:
                if kind == "m":
                    a(f"v_mfma_f32_32x32x16_bf16 {vr(ACC,16)}, {vr(WF+36*hh+4*k,4)}, {vr(oreg((kind,k)),4)}, {vr(ACC,16)}")
                else:
                    a(f"s_waitcnt lgkmcnt({2 if k < 4 else 0})")
                    a(f"v_mfma_f32_16x16x32_bf16 {vr(ACX,4)}, {vr(AX+4*(k%2),4)}, {vr(oreg((kind,k)),4)}, {vr(ACX,4)}")
                    if k + 2 < 5:
                        rd(k + 2)

        normalize(2 * mm + (1 - n))
        self.stamp(2, 4)
        GM, GX, GD, GE = 192, 224, 8, 3
        AC2, BF, BX = ACC, 236, 248
        vm = []
        def gm(ks):
            a(f"buffer_load_dwordx4 {vr(GM+4*(ks%GD),4)}, v5, {SWS}, s93 offen offset:{1024*(ks%4)} sc1")
            if ks % 4 == 3: a("s_add_u32 s93, s93, 4096")
            vm.append(("m", ks))
        def gx(T):
            a(f"buffer_load_dwordx4 {vr(GX+4*(T%GE),4)}, v47, {SWS}, s98 offen offset:{2048*(T%2)} sc1")
            if T % 2 == 1: a("s_add_u32 s98, s98, 4096")
            vm.append(("x", T))
        self.srd(SWO, 18, 663552)
        self.panel_setup(4, va=48)
        a(f"s_mul_i32 s93, {sJ}, {3*36*1024}\ns_add_u32 s98, s93, {WS_G + 2*36*1024}\ns_add_u32 s93, s93, {WS_G + mm*36*1024}")
        self.wait(CV, 8, sleep=3)
        nwo = a.label("NWO")
        if "wol" in self.opts:
            a(f"s_sub_u32 s73, s2, 64\ns_cmp_gt_u32 s73, 32\ns_cbranch_scc1 {nwo}")
        self.panel_loads(SWO, L_WO0, L_WO1, L_WOX, False, 36, 4, va=48, rotate=True)
        if "wol" in self.opts:
            a("s_waitcnt vmcnt(0)")
            self.add1(S3)
        a(f"{nwo}:")
        self.stamp(1, 4)
        for ks in range(GD):
            gm(ks)
            if ks % 2 == 1 and ks // 2 < GE: gx(ks // 2)
        fy = (f"buffer_load_dwordx4 {vr(BF+2,4)}, v{BF}, {SWS}, s99 offen sc1\nbuffer_load_dwordx4 {vr(BF+6,4)}, v{BF+1}, {SWS}, s92 offen sc1\n"
              f"buffer_load_dword v{BF+10}, off, {SWS}, s88 sc1")
        if w == 0:
            a(f"v_lshlrev_b32 v{BF}, 7, v0\nv_min_u32 v{BF+1}, {7*128}, v{BF}\ns_mov_b32 s99, {WS_FY}\ns_mov_b32 s92, {WS_FY + 8192}\ns_mov_b32 s88, {WS_FY + 72*128}")
            if "wol" in self.opts:
                a(f"s_sleep {self.opt('dy', 20)}")
            a(fy)
        if "wol" not in self.opts:
            a(f"s_waitcnt vmcnt({len(vm) + (3 if w == 0 else 0)})")
            self.add1(S3)
        self.wait(S3, 4, sleep=1)
        self.stamp(3, 4)
        for hh in range(4):
            for k in range(9):
                for u in range(2):
                    base, off = wrow("m", k, hh, u)
                    a(f"ds_read_b64_tr_b16 {vr(WF+36*hh+4*k+2*u,2)}, {base} offset:{off}")
                if k % 3 == 2:
                    a("s_waitcnt lgkmcnt(6)")
        self.stamp(4, 4)
        a(f"""
v_lshrrev_b32 v39, 3, v0
v_lshlrev_b32 v39, 12, v39
v_lshlrev_b32 v40, 2, v46
v_xor_b32 v40, v40, v0
v_and_b32 v40, 7, v40
v_lshl_add_u32 v39, v40, 4, v39
v_bfe_u32 v40, v0, 3, 1
v_xor_b32 v40, {n}, v40
v_lshlrev_b32 v40, 6, v40
v_lshl_add_u32 v40, v44, 3, v40
v_lshl_add_u32 v40, v43, 7, v40
v_lshl_add_u32 v43, v13, 10, v40
v_lshl_add_u32 v43, v46, 5, v43
v_add_u32 v44, 36864, v43
v_lshl_add_u32 v45, v38, 10, v40
v_add_u32 v45, {32 * mm}, v45
v_add_u32 v46, 36864, v45
s_waitcnt lgkmcnt(0)
""")
        self.add1(S2)
        if w == 0:
            ok = a.label("YOK")
            a("s_waitcnt vmcnt(0)")
            self.cmp_regs([BF + 2 + k for k in range(9)], sTAG)
            a(f"s_cbranch_scc1 {ok}")
            self.poll(fy, [BF + 2 + k for k in range(9)], sleep=12)
            a(f"{ok}:")
            self.add1(CY)
            ne = a.label("NE")
            a(f"s_cmp_lg_u32 s2, 0\ns_cbranch_scc1 {ne}")
            self.set_flag(str(WS_EPOCH))
            a(f"{ne}:")
        else:
            self.wait(CY, 1, sleep=2)
        self.wait(S2, 4, sleep=1)
        self.stamp(1); self.stamp(5, 4)
        a(f"s_lshl_b32 s99, {sP}, 7\ns_add_u32 s99, s99, {WS_Y + w * 32768}\ns_mov_b32 s92, {L_Y + w * 1024}")
        def ydma():
            lp = a.label("YL")
            a(f"s_mov_b32 s88, 2\n{lp}:")
            for k in range(3):
                a(f"s_mov_b32 m0, s92\ns_add_u32 s92, s92, 4096\nbuffer_load_dwordx4 v39, {SWS}, s99 offen sc1 lds\ns_add_u32 s99, s99, {4*32768}")
            a(f"s_sub_u32 s88, s88, 1\ns_cbranch_scc0 {lp}")
        ydma()
        ydma()
        vm.extend([("y", k) for k in range(18)])
        a("s_waitcnt vmcnt(9)")
        self.add1(S1)
        self.stamp(6, 4)
        def yrd(it):
            kind, k = it
            if kind == "m":
                b = BF + 4 * (k % 3); base, off = ("v43", 2048 * k) if k < 18 else ("v44", 2048 * (k - 18))
            else:
                b = BX + 4 * (k % 2); base, off = ("v45", 4096 * k) if k < 9 else ("v46", 4096 * (k - 9))
            a(f"ds_read_b64_tr_b16 {vr(b,2)}, {base} offset:{off}\nds_read_b64_tr_b16 {vr(b+2,2)}, {base} offset:{off+512}")
        done = {"vm": len(vm) - 9}
        def half(k0):
            seq = []
            for ks in range(k0, k0 + 18):
                seq.append(("m", ks))
                if ks % 2 == 1: seq.append(("x", ks // 2))
            for it in seq[:3]:
                yrd(it)
            for i, it in enumerate(seq):
                wv = ""
                if vm.index(it) + 1 > done["vm"]:
                    done["vm"] = vm.index(it) + 1
                    wv = f"vmcnt({len(vm) - done['vm']}) "
                a(f"s_waitcnt {wv}lgkmcnt({2 * (min(i + 3, len(seq)) - i - 1)})")
                kind, k = it
                if kind == "m":
                    a(f"v_mfma_f32_32x32x16_bf16 {vr(AC2,16)}, {vr(GM+4*(k%GD),4)}, {vr(BF+4*(k%3),4)}, {'0' if k == 0 else vr(AC2,16)}")
                    if k + GD < 36: gm(k + GD)
                else:
                    a(f"v_mfma_f32_16x16x32_bf16 {vr(AC2+16,4)}, {vr(GX+4*(k%GE),4)}, {vr(BX+4*(k%2),4)}, {'0' if k == 0 else vr(AC2+16,4)}")
                    if k + GE < 18: gx(k + GE)
                if i + 3 < len(seq):
                    yrd(seq[i + 3])
                if it == ("m", GD):
                    self.add1(S4)
        self.wait(S1, 4, sleep=1)
        self.stamp(7, 4)
        half(0)
        self.wait(S4, 4, sleep=1)
        half(18)
        self.stamp(2); self.stamp(8, 4)
        self.srd(SOUT, 22, 2359296)
        a(f"""
s_mov_b32 s73, 73728
v_mul_lo_u32 v39, v12, s73
v_lshl_add_u32 v39, v13, 5, v39
v_mul_lo_u32 v40, v37, s73
v_lshl_add_u32 v40, v38, 3, v40
s_mul_i32 s93, {sP}, 2304
s_add_u32 s93, s93, s95
s_add_u32 s93, s93, {1152 * n}
s_add_u32 s92, s93, {16 * mm * 73728}
""")
        for i in range(8):
            a(f"v_pk_mul_f32 {vr(ACC+2*i,2)}, {vr(ACC+2*i,2)}, v[10:11] op_sel:[0,1] op_sel_hi:[1,1]")
        for i in range(2):
            a(f"v_pk_mul_f32 {vr(ACX+2*i,2)}, {vr(ACX+2*i,2)}, v[36:37] op_sel_hi:[1,0]")
        prog = {0: ["N5", "C0", "C2", "C4", "C6"], 1: ["N4", "C1", "C3", "C5", "C7"],
                2: ["C0", "C2", "C4", "C6"], 3: ["C1", "C3", "N6", "C5", "C7"]}[w]
        gates = {4: 5, 5: 6, 6: 7, 7: 7}
        for it in prog:
            i = int(it[1])
            if it[0] == "N":
                normalize(i)
                self.stamp(3)
            else:
                if i >= 4:
                    self.wait(256 * gates[i], 4, sleep=2 if gates[i] == 7 else 4)
                if i == 7:
                    a(f"s_sleep {self.opt('d7', 10)}")
                if i >= 6: self.stamp(4)
                consume(i, i in (4, 5))
                if i in (2, 3): self.stamp(9, 4)
                if i in (4, 5): self.stamp(10, 4)
                if i in (6, 7): self.stamp(11, 4)
        self.stamp(6)
        fl = " sc1" if "outsc1" in self.opts else " nt" if "outnt" in self.opts else ""
        a(f"v_cvt_pk_bf16_f32 v{ACX}, v{ACX}, v{ACX+1}\nv_cvt_pk_bf16_f32 v{ACX+1}, v{ACX+2}, v{ACX+3}")
        for k in range(8):
            a(f"v_cvt_pk_bf16_f32 v{ACC+k}, v{ACC+2*k}, v{ACC+2*k+1}")
        a(f"buffer_store_dwordx4 {vr(ACC,4)}, v39, {SOUT}, s93 offen offset:{64*mm}{fl}")
        a(f"buffer_store_dwordx4 {vr(ACC+4,4)}, v39, {SOUT}, s93 offen offset:{64*mm+16}{fl}")
        a(f"s_mov_b32 exec_hi, 0\nbuffer_store_dwordx2 {vr(ACX,2)}, v40, {SOUT}, s92 offen offset:128{fl}\ns_mov_b64 exec, -1")
        self.stamp(7)

    def norm_setup(self, rows):
        self.a(f"""
v_lshlrev_b32 v5, 4, v0
v_and_b32 v12, 31, v0
v_lshrrev_b32 v13, 5, v0
v_add_u32 v8, {L_EX}, v5
v_lshlrev_b32 v9, 3, v0
v_add_u32 v9, {L_EX + 2048}, v9
v_lshlrev_b32 v10, 3, v12
v_add_u32 v10, {L_EX + 2048 + 256}, v10
v_lshl_add_u32 v14, v12, 2, v2
ds_read_b32 v4, v14 offset:{2304 + 128 * rows}
s_mul_i32 s94, {sP}, {8*9216}
s_add_u32 s94, s94, {WS_OF}
s_lshl_b32 s96, {sJ}, 10
s_add_u32 s96, s96, s94
s_lshr_b32 s97, {sJ}, 2
s_lshl_b32 s97, s97, 9
s_and_b32 s73, {sJ}, 3
s_lshl_b32 s73, s73, 2
s_add_u32 s97, s97, s73
s_add_u32 s97, s97, s94
s_add_u32 s97, s97, 8192
""")

    def normalize(self, i, wait=True):
        a = self.a
        NT = self.NT
        q = i % 4
        if wait:
            self.wait(256 * i, 4, sleep=2 if i >= 6 else 4)
        for s in range(4):
            b = NT + 12 * s; o = 10240 * q + 2560 * s
            a(f"ds_read_b128 {vr(b,4)}, v8 offset:{o}\nds_read_b128 {vr(b+4,4)}, v8 offset:{o+1024}\nds_read_b64 {vr(b+8,2)}, v9 offset:{o}")
            if s == 3:
                a("s_waitcnt lgkmcnt(9)")
            a(f"ds_read_b32 v{b+10}, v10 offset:{o}")
        a(f"s_add_u32 s90, s96, {i*9216}\ns_add_u32 s91, s97, {i*9216}\ns_movk_i32 s89, {i}")
        a("s_waitcnt lgkmcnt(8)")
        for s in range(1, 4):
            if s > 1:
                a(f"s_waitcnt lgkmcnt({4 * (3 - s)})")
            for k in range(5):
                a(f"v_pk_add_f32 {vr(NT+2*k,2)}, {vr(NT+2*k,2)}, {vr(NT+12*s+2*k,2)}")
            a(f"v_add_f32 v{NT+10}, v{NT+10}, v{NT+12*s+10}")
        if i < 4:
            self.wait(CG, 1, sleep=2)
            self.add1(CN)
        self.safety()
        a(f"v_rcp_f32 v{NT+10}, v{NT+10}\ns_nop 0\nv_mul_f32 v{NT+10}, v4, v{NT+10}")
        for k in range(5):
            a(f"v_pk_mul_f32 {vr(NT+2*k,2)}, {vr(NT+2*k,2)}, {vr(NT+10,2)} op_sel_hi:[1,0]")
        for k in range(5):
            a(f"v_cvt_pk_bf16_f32 v{NT+12+k}, v{NT+2*k}, v{NT+2*k+1}")
        a(f"v_min_u32 v{NT+12}, -2, v{NT+12}\nv_min_u32 v{NT+16}, -2, v{NT+16}")
        a(f"buffer_store_dwordx4 {vr(NT+12,4)}, v5, {SWS}, s90 offen sc1\ns_mov_b32 exec_hi, 0")
        a(f"buffer_store_dword v{NT+16}, v5, {SWS}, s91 offen sc1\ns_mov_b64 exec, -1")

    def safety(self):
        a = self.a
        NT = self.NT
        ok = a.label("SOK")
        t = NT + 12
        a(f"v_mov_b32 v{t}, 0\nv_mov_b32 v{t+1}, 0\nv_mov_b32 v{t+2}, 0\nv_mov_b32 v{t+3}, 0")
        for k in range(5):
            a(f"v_pk_fma_f32 {vr(t,2)}, {vr(NT+2*k,2)}, {vr(t+2,2)}, {vr(t,2)}")
        lo, hi = (127 - 60) << 23, (127 + 64) << 23
        if "forcefb" in self.opts:
            lo, hi = (127 + 60) << 23, (127 + 64) << 23
        a(f"v_add_f32 v{t}, v{t}, v{t+1}\nv_subrev_u32 v{t+1}, {lo:#x}, v{NT+10}\nv_cmp_u_f32 vcc, v{t}, v{t}")
        a(f"s_mov_b32 s73, {hi - lo:#x}\nv_cmp_lt_u32 s[74:75], s73, v{t+1}\ns_or_b64 vcc, vcc, s[74:75]\ns_cmp_eq_u64 vcc, 0\ns_cbranch_scc1 {ok}")
        a(f"s_call_b64 s[86:87], L_fallback\n{ok}:")

    def fallback(self):
        a = self.a
        NT = self.NT
        O, S, Q, QX, K, KX, V, MX = NT, 208, 224, 228, 230, 234, 236, 244
        vK, vKX, vV, T0 = 245, 246, 247, 248
        l1 = a.label("FB1"); l2 = a.label("FB2")
        qk = f"""
buffer_load_dwordx4 {vr(K,4)}, v{vK}, {SWS}, s[84] offen sc1
buffer_load_dword v{KX}, v{vKX}, {SWS}, s[85] offen sc1
""".replace("s[84]", "s84").replace("s[85]", "s85")
        mm = f"""
v_mfma_f32_32x32x16_bf16 {vr(S,16)}, {vr(K,4)}, {vr(Q,4)}, 0
v_mfma_f32_32x32x8_bf16 {vr(S,16)}, {vr(KX,2)}, {vr(QX,2)}, {vr(S,16)}
s_add_u32 s84, s84, 1024
s_bitcmp1_b32 s88, 0
s_cselect_b32 s73, 4, 252
s_add_u32 s85, s85, s73
"""
        a(f"""
L_fallback:
s_nop 4
v_lshlrev_b32 v{vK}, 5, v12
v_lshl_add_u32 v{vK}, v13, 4, v{vK}
v_mov_b32 v{T0}, {OOB}
v_lshlrev_b32 v{vKX}, 3, v12
v_cmp_lt_u32 vcc, 31, v0
v_subrev_u32 v{T0+1}, 64, v{vK}
v_cndmask_b32 v{vKX}, v{vKX}, v{T0}, vcc
v_cmp_eq_u32 vcc, 20, v12
s_mul_i32 s73, s89, 1536
v_cndmask_b32 v{T0+1}, v{T0}, v{T0+1}, vcc
v_cmp_gt_u32 vcc, 18, v12
s_add_u32 s73, s73, {L_QS}
v_cndmask_b32 v{vV}, v{T0+1}, v{vK}, vcc
v_mul_u32_u24 v{T0}, 48, v12
v_add_u32 v{T0}, s73, v{T0}
v_lshl_add_u32 v{T0+1}, v13, 2, v{T0}
v_lshl_add_u32 v{T0}, v13, 4, v{T0}
ds_read_b128 {vr(Q,4)}, v{T0}
ds_read_b32 v{QX}, v{T0+1} offset:32
v_mov_b32 v{QX+1}, 0
v_mov_b32 v{KX+1}, 0
v_mov_b32 v{MX}, 0xff800000
s_mov_b32 s84, {WS_K16}
s_mov_b32 s85, {WS_KX}
s_mov_b32 s88, 63
{l1}:
{qk}
s_waitcnt vmcnt(0) lgkmcnt(0)
{mm}
""")
        for k in range(8):
            a(f"v_max3_f32 v{MX}, v{MX}, v{S+2*k}, v{S+2*k+1}")
        a(f"""
s_sub_u32 s88, s88, 1
s_cbranch_scc0 {l1}
v_mov_b32 v{T0}, v{MX}
v_permlane32_swap_b32 v{MX}, v{T0}
v_max_f32 v{MX}, v{MX}, v{T0}
s_mov_b32 s84, {WS_K16}
s_mov_b32 s85, {WS_KX}
s_mov_b32 s83, {WS_VF}
s_mov_b32 s88, 63
""")
        for r in range(16):
            a(f"v_mov_b32 v{O+r}, 0")
        a(f"""
{l2}:
{qk}
buffer_load_dwordx4 {vr(V,4)}, v{vV}, {SWS}, s83 offen sc1
buffer_load_dwordx4 {vr(V+4,4)}, v{vV}, {SWS}, s83 offen offset:{VPITCH} sc1
s_waitcnt vmcnt(0)
{mm}
s_add_u32 s83, s83, {2*VPITCH}
""")
        for r in range(16):
            a(f"v_sub_f32 v{S+r}, v{S+r}, v{MX}")
        for r in range(16):
            a(f"v_exp_f32 v{S+r}, v{S+r}")
        for k in range(8):
            a(f"v_cvt_pk_bf16_f32 v{S+k}, v{S+2*k}, v{S+2*k+1}")
        a(f"""
v_mfma_f32_32x32x16_bf16 {vr(O,16)}, {vr(V,4)}, {vr(S,4)}, {vr(O,16)}
v_mfma_f32_32x32x16_bf16 {vr(O,16)}, {vr(V+4,4)}, {vr(S+4,4)}, {vr(O,16)}
s_nop 15
s_sub_u32 s88, s88, 1
s_cbranch_scc0 {l2}
""")
        a(f"v_mov_b32 v{T0}, v{O+8}\nv_mov_b32 v{NT+10}, v{O+8}\nv_permlane32_swap_b32 v{T0}, v{NT+10}\ns_nop 4\ns_setpc_b64 s[86:87]")

    def finish_stamps(self):
        a = self.a
        if self.stamps:
            a("v_mov_b32 v2, 0")
            for i in range(12):
                a(f"v_writelane_b32 v2, s{STAMPS[i]}, {i}")
            a(f"s_lshl_b32 s73, s2, 3\ns_add_u32 s73, s73, {sW}\ns_lshl_b32 s73, s73, 7\ns_add_u32 s73, s73, {WS_DBG}")
            a(f"v_lshlrev_b32 v3, 2, v0\ns_mov_b32 exec_hi, 0\nbuffer_store_dword v2, v3, {SWS}, s73 offen\ns_mov_b64 exec, -1")

    def build(self):
        a = self.a
        self.prologue()
        self.e_front()
        a("L_attn:")
        self.attention()
        self.stamp(8)
        a(f"s_cmp_ge_u32 {sW}, 4\ns_cbranch_scc1 L_last")
        labs = [a.label("TL") for _ in range(4)]
        for w in range(1, 4):
            a(f"s_cmp_eq_u32 {sW}, {w}\ns_cbranch_scc1 {labs[w]}")
        for w in range(4):
            a(f"{labs[w]}:")
            self.tail(w >> 1, w & 1)
            a("s_branch L_fin")
        a(f"L_last:\ns_waitcnt lgkmcnt(0)\nv_readfirstlane_b32 s73, v1\nv_sub_f32 v4, 1.0, v4\ns_cmp_lg_u32 s73, 3\ns_cbranch_scc1 L_fin\ns_setprio 3")
        self.normalize(7, wait=False)
        self.stamp(3)
        a("s_branch L_fin")
        a("L_lwave:")
        self.busy = 3
        self.l_front()
        self.l_mid()
        a("s_branch L_attn")
        self.fallback()
        a("L_bail:")
        if self.stamps:
            a(f"s_mov_b32 s{STAMPS[11]}, 0xdead0000")
        a("L_fin:")
        if self.opt("padto", 0):
            a(f"L_pad:\ns_sleep 2\ns_memrealtime s[78:79]\ns_waitcnt lgkmcnt(0)\ns_sub_u32 s78, s78, s76\ns_cmp_lt_u32 s78, s80\ns_cbranch_scc1 L_pad")
        self.finish_stamps()
        a("L_end:\ns_endpgm")
        body = a.finish()
        tw = self.make_tables()
        assert tw.size == 2 * self.NTAB * 256
        tab = "\n".join(".long " + ",".join(f"{x:#x}" for x in tw[i:i+16]) for i in range(0, tw.size, 16))
        hdr = open("cdna_kernels/" + NAME + ".s.ref").read().split("; Override launch")[0]
        return f"""{hdr}; @launch grid=(256,1,1) block=(512,1,1) lds={LDS_BYTES}
.amdgcn_target "amdgcn-amd-amdhsa--gfx950"
.text
.globl {NAME}_kernel
.p2align 8
.type {NAME}_kernel,@function
{NAME}_kernel:
{body}
.section .rodata,"a"
.p2align 8
.type spectral_tables,@object
spectral_tables:
{tab}
.size spectral_tables, {2*self.NTAB*1024}
.p2align 6
.amdhsa_kernel {NAME}_kernel
  .amdhsa_next_free_vgpr 256
  .amdhsa_next_free_sgpr 102
  .amdhsa_accum_offset 256
  .amdhsa_group_segment_fixed_size 0
  .amdhsa_kernarg_size 96
  .amdhsa_user_sgpr_count 2
  .amdhsa_user_sgpr_kernarg_segment_ptr 1
  .amdhsa_system_sgpr_workgroup_id_x 1
.end_amdhsa_kernel
"""


if __name__ == "__main__":
    opts = sys.argv[2:]
    g = Gen(stamps=2 if "st2" in opts else 3 if "st3" in opts else 4 if "st4" in opts else 5 if "st5" in opts else int("stamps" in opts), cyc="cyc" in opts, opts=opts)
    src = g.build()
    open(sys.argv[1], "w").write(src)
    print("nops added:", g.a.added_nops, "lines:", len(src.splitlines()))
```

```python
import sys
import numpy as np
from asmlib import Asm
import model as M

NAME = "gated_mix__spectral_gfnet__grouped_kv_mqa__prompt"

WS_EPOCH = 0
WS_FKV = 0x50000
WS_FS = 0x58000
WS_FY = 0x60000
WS_GOS = 0x68000
WS_K16 = 0x10000
WS_KX = 0x20000
WS_VF = 0x30000
WS_DBG = 0x80000
WS_G = 0x100000
WS_T = 0x200000
WS_Y = 0x500000
WS_OF = 0x800000
WS_WT = 0xB00000
WS_QDUMP = 0x1100000
WS_SIZE = 0x2000000
OOB = 0x40000000
VPITCH = 640

XP = 1040
L_X = 0
L_X2 = 64 * XP
L_WQ0 = 74752
L_WQ1 = 111616
P2SZ = 9728
L_P2Q = 148480
L_P2KV = L_P2Q - P2SZ
L_MISC = 162816
L_CT = L_MISC - 2048
(C0A, C0B, C0C, C1, CX, CK, CE, CV, CY, S1, S2, S3, CN, CW, CF, CD, CG, S4, C0D, SA, XA, XB, YA, YB, CR) = (2048 + 4 * i for i in range(25))
L_G = L_MISC + 256
L_QS = L_WQ0
L_WO0 = 0
L_WO1 = 36864
L_Y = 0
L_EX = L_QS + 12288
L_WOX = L_EX + 16 * 2560
L_XCH = L_WOX + 9216
LDS_BYTES = 163840
assert L_XCH + 8192 <= L_CT and L_P2Q + P2SZ <= L_CT and L_P2Q + P2SZ <= L_MISC and L_P2KV >= L_WQ1 + 416 * 64

SX, SWQ, SKV, SG, SWS, SWO, SOUT, SWR, SWI, STB = (f"s[{a}:{a+3}]" for a in range(28, 68, 4))
sW, sP, sJ, sTAG, sSPIN = "s68", "s69", "s70", "s71", "s72"
STAMPS = [76, 77, 78, 79, 80, 81, 100, 101, 3, 10, 11, 24]
SPIN_MAX = 400000

f32bits = lambda v: int(np.float32(v).view(np.uint32))
QSCALE_BITS = f32bits(M.QSCALE)
LOG2E_BITS = f32bits(M.LOG2E)


def vr(a, n=1):
    return f"v{a}" if n == 1 else f"v[{a}:{a+n-1}]"


class Gen:
    AQ, AQX, AO, AK, AKX, AV, AS = 24, 28, 32, 88, 120, 128, 192
    vQ, vQX, vEX, vEX2, vK, vKX, vV, vCT = 78, 79, 80, 81, 82, 83, 4, 84
    vCT2 = vCT

    def __init__(self, stamps=0, cyc=False, opts=()):
        self.a = Asm()
        self.stamps = stamps
        self.clk = "s_memtime" if cyc else "s_memrealtime"
        self.opts = set(opts)
        self.busy = 3

    def opt(self, name, default):
        for o in self.opts:
            if o.startswith(name + "="):
                return int(o.split("=")[1])
        return default

    def _st(self, i):
        self.a(f"{self.clk} s[74:75]\ns_waitcnt lgkmcnt(0)\ns_mov_b32 s{STAMPS[i]}, s74")

    def stamp(self, i, level=1):
        if self.stamps == level:
            self._st(i)
        if self.opt("pid", -1) == i and self.opt("plev", 1) == level:
            l = self.a.label("PB")
            self.a(f"s_cmp_lg_u32 {sW}, {self.opt('pw', 0)}\ns_cbranch_scc1 {l}\ns_memrealtime s[78:79]\ns_waitcnt lgkmcnt(0)\n"
                   f"s_sub_u32 s80, s78, s76\ns_add_u32 s80, s80, {self.opt('padto', 0)}\n{l}:")

    def srd(self, srd, lo, size):
        b = int(srd[2:].split(":")[0])
        self.a(f"s_mov_b32 s{b}, s{lo}\ns_mov_b32 s{b+1}, s{lo+1}\ns_mov_b32 s{b+2}, {size}\ns_mov_b32 s{b+3}, 0x20000")

    def add1(self, off, base="v2"):
        self.a(f"s_mov_b64 exec, 1\nds_add_u32 {base}, v3 offset:{off}\ns_mov_b64 exec, -1")

    def wait(self, off, target, sleep=1, base="v2", idle=False):
        a = self.a
        l = a.label("LW"); d = a.label("LWD")
        if idle and "noidle" not in self.opts:
            a("s_setprio 0")
        a(f"{l}:\nds_read_b32 v1, {base} offset:{off}\ns_waitcnt lgkmcnt(0)\nv_readfirstlane_b32 s73, v1")
        a(f"s_cmp_ge_u32 s73, {target}\ns_cbranch_scc1 {d}")
        if sleep:
            a(f"s_sleep {sleep}")
        a(f"s_sub_u32 {sSPIN}, {sSPIN}, 1\ns_cbranch_scc0 {l}\ns_branch L_bail\n{d}:")
        if idle and "noidle" not in self.opts:
            a(f"s_setprio {self.busy}")

    def cmp_regs(self, regs, val, op="ne"):
        a = self.a
        a(f"v_cmp_{op}_u32 vcc, {val}, v{regs[0]}")
        for r in regs[1:]:
            a(f"v_cmp_{op}_u32 s[74:75], {val}, v{r}\ns_or_b64 vcc, vcc, s[74:75]")
        a("s_cmp_eq_u64 vcc, 0")

    def poll(self, loads, regs, sleep=2):
        a = self.a
        l = a.label("PL"); d = a.label("PD")
        a(f"{l}:")
        a(loads)
        a("s_waitcnt vmcnt(0)")
        self.cmp_regs(regs, sTAG)
        a(f"s_cbranch_scc1 {d}\ns_sleep {sleep}\ns_sub_u32 {sSPIN}, {sSPIN}, 1\ns_cbranch_scc0 {l}\ns_branch L_bail\n{d}:")

    def set_flag(self, soff):
        self.a(f"v_mov_b32 v1, {sTAG}\ns_mov_b64 exec, 1\nbuffer_store_dword v1, off, {SWS}, {soff} sc1\ns_mov_b64 exec, -1")

    def flag4(self, dst, idx, base):
        self.a(f"s_lshr_b32 {dst}, {idx}, 2\ns_lshl_b32 {dst}, {dst}, 7\ns_and_b32 s73, {idx}, 3\ns_lshl_b32 s73, s73, 2\n"
               f"s_add_u32 {dst}, {dst}, s73\ns_add_u32 {dst}, {dst}, {base}")

    def go_wait(self, base, vt, sleep):
        self.a(f"s_and_b32 s92, s2, 7\ns_lshl_b32 s92, s92, 7\ns_add_u32 s92, s92, {base}")
        self.poll(f"s_mov_b64 exec, 1\nbuffer_load_dword v{vt}, off, {SWS}, s92 sc1\ns_waitcnt vmcnt(0)\nv_readfirstlane_b32 s73, v{vt}\ns_mov_b64 exec, -1\nv_mov_b32 v{vt}, s73", [vt], sleep=sleep)

    def tag(self):
        self.a(f"s_mul_i32 {sTAG}, {sTAG}, 0x9E3779B1\ns_add_u32 {sTAG}, {sTAG}, 0x7F4A7C15")

    def prologue(self):
        a = self.a
        a(f"""
s_cmp_ge_u32 s2, 256
s_cbranch_scc1 L_end
s_load_dwordx16 s[4:19], s[0:1], 0
s_load_dwordx8 s[20:27], s[0:1], 64
v_lshrrev_b32 v1, 6, v0
v_and_b32 v0, 63, v0
v_readfirstlane_b32 {sW}, v1
s_and_b32 {sP}, s2, 31
s_lshr_b32 {sJ}, s2, 5
""")
        if self.stamps:
            a(f"{self.clk} s[74:75]")
        if self.opt("padto", 0):
            a(f"s_memrealtime s[76:77]\ns_mov_b32 s80, {self.opt('padto', 0)}")
        a(f"""
v_lshl_add_u32 v4, v1, 6, v0
v_mov_b32 v2, {L_CT}
v_mov_b32 v3, 1
v_lshlrev_b32 v7, 4, v0
s_mul_i32 s94, {sP}, 2304
s_mul_i32 s95, {sJ}, 144
s_lshl_b32 s91, {sJ}, 2
s_add_u32 s91, s91, {sW}
s_mov_b32 s30, 2359296
s_mov_b32 s31, 0x20000
s_mov_b32 {sSPIN}, {SPIN_MAX}
s_cmp_ge_u32 {sW}, 4
s_waitcnt lgkmcnt(0)
""")
        if self.stamps:
            a(f"s_mov_b32 s{STAMPS[0]}, s74")
            for r in STAMPS[1:]:
                a(f"s_mov_b32 s{r}, 0")
        a("s_cbranch_scc1 L_lwave")

    def kv_addr(self):
        a = self.a
        a(f"""
v_and_b32 v84, 31, v0
v_lshrrev_b32 v85, 5, v0
v_lshlrev_b32 v{self.vK}, 5, v84
v_lshl_add_u32 v{self.vK}, v85, 4, v{self.vK}
v_mov_b32 v86, {OOB}
v_lshlrev_b32 v{self.vKX}, 3, v84
v_cmp_lt_u32 vcc, 31, v0
v_subrev_u32 v87, 64, v{self.vK}
v_cndmask_b32 v{self.vKX}, v{self.vKX}, v86, vcc
v_cmp_eq_u32 vcc, 20, v84
s_and_b32 s73, {sW}, 3
v_cndmask_b32 v87, v86, v87, vcc
v_cmp_gt_u32 vcc, 18, v84
s_lshl_b32 s96, s73, 14
v_cndmask_b32 v{self.vV}, v87, v{self.vK}, vcc
s_add_u32 s96, s96, {WS_K16}
s_lshl_b32 s97, s73, 11
s_add_u32 s97, s97, {WS_KX}
s_mul_i32 s98, s73, {32*VPITCH}
s_add_u32 s98, s98, {WS_VF}
""")

    def ld_k(self, t, slot):
        adv = "\ns_add_u32 s96, s96, 4096" if t % 4 == 3 else ""
        k = f"buffer_load_dwordx4 {vr(self.AK+4*slot,4)}, v{self.vK}, {SWS}, s96 offen offset:{1024*(t%4)} sc1" + adv
        if t % 2:
            return (k,)
        return (k, f"buffer_load_dwordx2 {vr(self.AKX+slot,2)}, v{self.vKX}, {SWS}, s97 offen offset:{128*t} sc1")

    def ld_v(self, t, slot):
        adv = f"\ns_add_u32 s98, s98, {4*VPITCH}" if t % 2 == 1 else ""
        o = 2 * VPITCH * (t % 2)
        return (f"buffer_load_dwordx4 {vr(self.AV+8*slot,4)}, v{self.vV}, {SWS}, s98 offen offset:{o} sc1",
                f"buffer_load_dwordx4 {vr(self.AV+8*slot+4,4)}, v{self.vV}, {SWS}, s98 offen offset:{o+VPITCH} sc1" + adv)

    NFIRST = 4
    NLD1 = 14

    def kv_loads(self):
        for t in range(self.NFIRST):
            for x in self.ld_k(t, t) + self.ld_v(t, t):
                self.a(x)

    def e_front(self):
        a = self.a
        a("s_setprio 3\ns_mov_b32 s28, s4\ns_mov_b32 s29, s5")
        for k in range(8):
            a(f"""
s_and_b32 s91, s91, 31
s_mul_i32 s90, s91, 73728
s_mul_i32 m0, s91, {XP}
s_add_u32 s90, s90, s94
s_add_u32 s91, s91, 4
buffer_load_dwordx4 v7, {SX}, s90 offen lds
s_add_u32 m0, m0, {32*XP - 1152}
s_nop 0
buffer_load_dwordx4 v7, {SX}, s90 offen offset:1152 lds
""")
        a(f"""
s_load_dword {sTAG}, s[26:27], {WS_EPOCH}
v_lshrrev_b32 v20, 3, v0
s_mov_b32 s73, 73728
v_mul_lo_u32 v21, v20, s73
v_lshrrev_b32 v22, 4, v0
v_xor_b32 v22, v22, v0
v_and_b32 v22, 7, v22
v_lshl_add_u32 v21, v22, 4, v21
s_and_b32 s90, {sW}, 1
s_mul_i32 s90, s90, {16*73728}
s_lshr_b32 s73, {sW}, 1
s_mul_i32 s73, s73, 1152
s_add_u32 s90, s90, s73
s_add_u32 s90, s90, s94
s_add_u32 s90, s90, 1024
s_lshl_b32 s91, {sW}, 11
s_add_u32 m0, s91, {L_X2}
v_xor_b32 v22, 64, v21
buffer_load_dwordx4 v21, {SX}, s90 offen lds
s_add_u32 m0, s91, {L_X2 + 1024}
s_add_u32 s90, s90, {8*73728}
buffer_load_dwordx4 v22, {SX}, s90 offen lds
s_cmp_lt_u32 {sJ}, 4
s_cselect_b32 s36, s14, s16
s_cselect_b32 s37, s15, s17
s_mov_b32 s38, 20736
s_mov_b32 s39, 0x20000
v_mul_u32_u24 v5, 36, v4
v_lshlrev_b32 v6, 1, v4
s_and_b32 s73, {sJ}, 3
s_lshl_b32 s92, s73, 3
""")
        self.srd(SG, 20, 1152)
        s = a.label("KV3")
        a(f"""
buffer_load_dwordx3 v[24:26], v5, {SKV}, s92 offen
buffer_load_ushort v27, v6, {SG}, 0 offen
v_add_u32 v5, {256*36}, v5
buffer_load_dwordx3 v[28:30], v5, {SKV}, s92 offen
buffer_load_ushort v31, v6, {SG}, 0 offen offset:512
s_cmp_gt_u32 {sW}, 0
s_cbranch_scc1 {s}
v_add_u32 v5, {256*36}, v5
buffer_load_dwordx3 v[40:42], v5, {SKV}, s92 offen
buffer_load_ushort v43, v6, {SG}, 0 offen offset:1024
{s}:
s_barrier
""")
        self.stamp(6, 3)
        self.srd(SWS, 26, WS_SIZE)
        a(f"""
v_lshrrev_b32 v7, 7, v4
v_lshlrev_b32 v7, 7, v7
v_lshl_add_u32 v7, v4, 4, v7
v_add_u32 v7, {L_P2KV}, v7
v_and_b32 v14, 15, v0
v_lshrrev_b32 v15, 4, v0
v_and_b32 v17, 31, v0
v_lshrrev_b32 v18, 5, v0
v_bfe_u32 v22, v0, 2, 2
v_lshlrev_b32 v22, 4, v22
v_and_b32 v23, 1, v0
v_lshl_add_u32 v22, v23, 3, v22
v_mul_u32_u24 v16, 2176, v15
v_add_u32 v16, v16, v22
v_lshl_add_u32 v12, v15, 7, v22
v_add_u32 v12, {512*16 + 512}, v12
v_add_u32 v19, {L_P2KV}, v16
v_add_u32 v10, {L_P2KV}, v12
v_add_u32 v16, {L_P2Q}, v16
v_add_u32 v12, {L_P2Q}, v12
s_lshl_b32 s73, {sW}, 4
v_add_u32 v21, s73, v14
v_mul_u32_u24 v20, {XP}, v21
v_lshl_add_u32 v20, v15, 8, v20
v_lshrrev_b32 v22, 1, v21
v_xor_b32 v22, v22, v15
v_and_b32 v22, 7, v22
v_lshlrev_b32 v22, 4, v22
v_lshl_add_u32 v11, v21, 7, v22
v_add_u32 v11, {L_X2}, v11
v_xor_b32 v9, 64, v11
s_lshl_b32 s90, {sP}, 1
s_lshr_b32 s73, {sW}, 1
s_add_u32 s90, s90, s73
s_and_b32 s91, {sW}, 1
s_mov_b32 s92, {(LOG2E_BITS | 0x80000000):#x}
s_lshl_b32 s99, {sW}, 6
s_add_u32 s99, s99, {L_G}
""")
        RG, XF, AK_ = 32, 160, 252
        def wrd(b1, b2, T, dst):
            base, off = (b1, T * 128) if T < 16 else (b2, (T - 16) * 512)
            a(f"ds_read_b64_tr_b16 {vr(dst,2)}, {base} offset:{off}\nds_read_b64_tr_b16 {vr(dst+2,2)}, {base} offset:{off+64}")
        def land():
            s = a.label("KW")
            a(f"s_waitcnt vmcnt(0)\nds_write_b128 v7, v[24:27]\nds_write_b128 v7, v[28:31] offset:{4096+256}")
            a(f"s_cmp_gt_u32 {sW}, 0\ns_cbranch_scc1 {s}\nds_write_b128 v7, v[40:43] offset:{8192+512}\n{s}:")
            self.stamp(1, 3)
            self.add1(CX)
            self.wait(CX, 4, sleep=0)
            self.tag()
            self.stamp(2, 3)
        def kv_gemm(swap):
            acc = vr(AK_, 4)
            def rd(T):
                wrd("v19", "v10", T, 44 + 4 * (T % 5))
                if T < 16:
                    a(f"ds_read_b128 {vr(XF+4*T,4)}, v20 offset:{T*16}")
                else:
                    a(f"ds_read_b128 {vr(XF+4*T,4)}, {'v11' if T == 16 else 'v9'}")
            for T in range(4):
                rd(T)
            for T in range(18):
                if T + 4 < 18:
                    rd(T + 4)
                a(f"s_waitcnt lgkmcnt({3 * (min(T + 5, 18) - T - 1)})")
                W, X = vr(44 + 4 * (T % 5), 4), vr(XF + 4 * T, 4)
                A, B = (X, W) if swap else (W, X)
                a(f"v_mfma_f32_16x16x32_bf16 {acc}, {A}, {B}, {'0' if T == 0 else acc}")
            self.add1(CK)
        kpath = a.label("EK"); done = a.label("EKD")
        a(f"s_cmp_lt_u32 {sJ}, 4\ns_cbranch_scc1 {kpath}")
        a(f"""
s_lshl_b32 s90, s90, 1
s_add_u32 s90, s90, s91
s_mul_i32 s90, s90, {VPITCH}
s_add_u32 s90, s90, {WS_VF}
s_sub_u32 s73, {sJ}, 4
s_lshl_b32 s73, s73, 2
v_add_u32 v36, s73, v14
v_cmp_eq_u32 vcc, 7, v14
v_lshrrev_b32 v37, 1, v15
v_cndmask_b32 v36, v36, 18, vcc
v_lshlrev_b32 v36, 5, v36
v_lshl_add_u32 v36, v37, 3, v36
v_and_b32 v37, 1, v15
v_lshl_add_u32 v36, v37, 4, v36
v_mov_b32 v37, 0x3f803f80
v_lshl_add_u32 v38, v15, 4, s99
s_mov_b32 s88, 0x000f000f
s_cmp_eq_u32 {sJ}, 7
s_cmov_b32 s88, 0x00bf00bf
""")
        land()
        kv_gemm(True)
        a(f"""
v_cvt_pk_bf16_f32 v22, v{AK_}, v{AK_+1}
v_cvt_pk_bf16_f32 v23, v{AK_+2}, v{AK_+3}
v_cndmask_b32 v22, v22, v37, vcc
v_cndmask_b32 v23, v23, v37, vcc
s_mov_b32 exec_lo, s88
s_mov_b32 exec_hi, s88
buffer_store_dwordx2 v[22:23], v36, {SWS}, s90 offen sc1
s_mov_b64 exec, -1
""")
        for r in range(4):
            a(f"v_mul_f32 v{AK_+r}, s92, v{AK_+r}\nv_exp_f32 v{AK_+r}, v{AK_+r}")
        for r in range(4):
            a(f"v_add_f32 v{AK_+r}, 1.0, v{AK_+r}\nv_rcp_f32 v{AK_+r}, v{AK_+r}")
        a(f"""
s_mov_b32 exec_lo, 0x00400040
s_mov_b32 exec_hi, 0x00400040
ds_write_b128 v38, {vr(AK_,4)}
s_branch {done}
{kpath}:
s_lshl_b32 s91, s91, 4
v_add_u32 v37, s91, v14
v_lshlrev_b32 v36, 5, v37
v_lshlrev_b32 v37, 3, v37
v_lshl_add_u32 v38, v14, 2, s99
s_lshl_b32 s88, s90, 10
s_lshl_b32 s73, {sJ}, 3
s_add_u32 s88, s88, s73
s_add_u32 s88, s88, {WS_K16}
s_lshl_b32 s90, {sP}, 8
s_lshr_b32 s73, {sW}, 1
s_lshl_b32 s73, s73, 2
s_add_u32 s90, s90, s73
s_add_u32 s90, s90, {WS_KX}
s_cmp_lg_u32 {sJ}, 3
s_cmov_b32 s90, {OOB}
s_mov_b32 s91, {QSCALE_BITS:#x}
""")
        land()
        kv_gemm(False)
        a(f"""
v_mul_f32 v39, s92, v{AK_+2}
v_mul_f32 v{AK_}, s91, v{AK_}
v_mul_f32 v{AK_+1}, s91, v{AK_+1}
v_mul_f32 v{AK_+2}, s91, v{AK_+2}
v_mul_f32 v{AK_+3}, s91, v{AK_+3}
v_cvt_pk_bf16_f32 v22, v{AK_}, v{AK_+1}
v_cvt_pk_bf16_f32 v23, v{AK_+2}, v{AK_+3}
s_mov_b64 exec, 0xffff
buffer_store_dwordx2 v[22:23], v36, {SWS}, s88 offen sc1
s_mov_b32 exec_lo, 0xffff0000
buffer_store_dword v22, v37, {SWS}, s90 offen sc1
v_exp_f32 v39, v39
s_nop 0
v_add_f32 v39, 1.0, v39
v_rcp_f32 v39, v39
s_nop 0
ds_write_b32 v38, v39
{done}:
s_mov_b64 exec, -1
""")
        self.stamp(7, 3)
        a(f"""
s_lshl_b32 s73, {sP}, 3
s_add_u32 s73, s73, {sJ}
s_lshl_b32 s73, s73, 4
s_add_u32 s91, s73, {WS_FKV}
v_bfe_u32 v22, v0, 2, 2
v_lshl_add_u32 v19, v18, 3, v22
v_lshlrev_b32 v19, 6, v19
v_bfe_u32 v22, v0, 4, 1
v_lshl_add_u32 v19, v22, 5, v19
v_and_b32 v22, 3, v0
v_lshl_add_u32 v19, v22, 3, v19
s_and_b32 s73, {sW}, 1
s_mul_i32 s73, s73, {L_WQ1 - L_WQ0}
s_add_u32 s73, s73, {L_WQ0}
v_add_u32 v19, s73, v19
s_lshr_b32 s73, {sW}, 1
s_lshl_b32 s73, s73, 5
v_add_u32 v21, s73, v17
v_mul_u32_u24 v13, {XP}, v21
v_lshl_add_u32 v13, v18, 4, v13
v_mul_u32_u24 v26, 48, v4
v_add_u32 v26, {L_QS + 36}, v26
v_lshrrev_b32 v22, 1, v21
v_xor_b32 v22, v22, v18
v_and_b32 v22, 7, v22
v_lshlrev_b32 v22, 4, v22
v_lshl_add_u32 v6, v21, 7, v22
v_add_u32 v6, {L_X2}, v6
v_xor_b32 v7, 32, v6
v_xor_b32 v8, 64, v6
v_xor_b32 v9, 0x60, v6
v_mul_u32_u24 v22, 48, v21
v_add_u32 v22, {L_QS}, v22
v_lshl_add_u32 v23, v18, 3, v22
v_mul_u32_u24 v24, 3044, v18
v_add_u32 v24, v24, v22
s_lshl_b32 s73, {sW}, 4
v_add_u32 v25, s73, v14
v_mul_u32_u24 v25, 48, v25
v_lshl_add_u32 v25, v15, 3, v25
v_add_u32 v25, {L_QS + 3*3072 + 20}, v25
v_mov_b32 v27, 0
v_lshlrev_b32 v28, 4, v0
s_lshl_b32 s93, {sW}, 10
s_add_u32 s93, s93, {WS_FKV}
""")
        self.kv_addr()
        nf = a.label("NF")
        a(f"s_waitcnt vmcnt(0)\ns_mov_b64 exec, 1\nds_add_rtn_u32 v1, v2, v3 offset:{CF}\ns_mov_b64 exec, -1\ns_waitcnt lgkmcnt(0)")
        a(f"v_readfirstlane_b32 s73, v1\ns_cmp_lg_u32 s73, 3\ns_cbranch_scc1 {nf}")
        self.set_flag("s91")
        a(f"{nf}:")
        self.stamp(3, 3)
        RX, AM, AXQ = 64, 232, 248
        def rdm(t):
            b = RG + 8 * (t % 4)
            a(f"ds_read_b64_tr_b16 {vr(b,2)}, v19 offset:{t*1024}\nds_read_b64_tr_b16 {vr(b+2,2)}, v19 offset:{t*1024+256}")
            a(f"ds_read_b128 {vr(b+4,4)}, v13 offset:{t*32}" if t < 32 else f"ds_read_b128 {vr(b+4,4)}, v{6+t-32}")
        def mm(t):
            b = RG + 8 * (t % 4)
            a(f"v_mfma_f32_32x32x16_bf16 {vr(AM,16)}, {vr(b,4)}, {vr(b+4,4)}, {'0' if t == 0 else vr(AM,16)}")
        def stage(t0, t1):
            for t in range(t0, min(t0 + 3, t1)):
                rdm(t)
            for t in range(t0, t1):
                if t + 3 < t1:
                    rdm(t + 3)
                a(f"s_waitcnt lgkmcnt({3 * (min(t + 4, t1) - t - 1)})")
                mm(t)
        self.wait(C0A, 2, sleep=0)
        self.stamp(4, 3)
        stage(0, 12)
        self.add1(CE)
        self.wait(C0B, 2, sleep=0)
        flags = f"buffer_load_dword v84, v28, {SWS}, s93 offen sc1"
        stage(12, 20)
        self.wait(C0D, 2, sleep=0)
        stage(20, 28)
        self.wait(C0C, 2, sleep=0)
        self.stamp(9, 3)
        a(flags)
        seq = []
        xs = list(range(18))
        for t in range(28, 36):
            seq.append(("m", t))
            for _ in range(3 if t < 30 else 2):
                seq.append(("x", xs.pop(0)))
        assert not xs
        cost = lambda it: 3 if it[0] == "m" else 2
        def issue(it):
            if it[0] == "m": rdm(it[1])
            else: wrd("v16", "v12", it[1], RX + 4 * (it[1] % 3))
        AH = 3
        for it in seq[:AH]:
            issue(it)
        a(f"ds_read_b32 v31, v2 offset:{CE}")
        for i, it in enumerate(seq):
            ahead = sum(cost(x) for x in seq[i + 1:i + AH]) + (1 if i < AH else 0)
            a(f"s_waitcnt lgkmcnt({ahead})")
            if it[0] == "m":
                mm(it[1])
            else:
                T = it[1]
                a(f"v_mfma_f32_16x16x32_bf16 {vr(AXQ,4)}, {vr(RX+4*(T%3),4)}, {vr(XF+4*T,4)}, {'0' if T == 0 else vr(AXQ,4)}")
            if i + AH < len(seq):
                issue(seq[i + AH])
        self.stamp(8, 3)
        miss = a.label("KM")
        a("s_waitcnt vmcnt(0)")
        self.cmp_regs([84], sTAG)
        a(f"s_cselect_b32 s89, 1, 0\ns_cbranch_scc0 {miss}")
        self.kv_loads()
        a(f"{miss}:")
        self.stamp(11, 3)
        ok = a.label("CEOK")
        a(f"v_readfirstlane_b32 s73, v31\ns_cmp_ge_u32 s73, 4\ns_cbranch_scc1 {ok}")
        self.wait(CE, 4, sleep=0)
        a(f"{ok}:")
        a(f"ds_write_b32 v26, v27\nv_cvt_pk_bf16_f32 v{AXQ}, v{AXQ}, v{AXQ+1}\nv_cvt_pk_bf16_f32 v{AXQ+1}, v{AXQ+2}, v{AXQ+3}")
        a(f"s_mov_b32 exec_hi, 0\nds_write2_b32 v25, v{AXQ}, v{AXQ+1} offset0:0 offset1:1\ns_mov_b64 exec, -1")
        m1 = a.label("QM1"); md = a.label("QMD")
        a(f"s_bitcmp1_b32 {sW}, 0\ns_cbranch_scc1 {m1}")
        off = lambda c: (c // 18) * 3072 + (c % 18) * 2
        for m in range(2):
            if m == 1:
                a(f"s_branch {md}\n{m1}:")
            for k in range(8):
                c0 = 32 * m + 8 * (k // 2) + 2 * (k % 2)
                d = off(c0 + 4) - off(c0)
                assert d in (8, 3044)
                a(f"v_cvt_pk_bf16_f32 v{AM+k}, v{AM+2*k}, v{AM+2*k+1}")
                a(f"ds_write_b32 {'v23' if d == 8 else 'v24'}, v{AM+k} offset:{off(c0)}")
        a(f"{md}:")
        self.add1(C1)
        have = a.label("KH")
        a(f"s_cmp_eq_u32 s89, 1\ns_cbranch_scc1 {have}")
        self.poll(flags, [84], sleep=12)
        self.kv_loads()
        a(f"{have}:")
        self.stamp(10, 3); self.stamp(10)
        a(f"s_setprio 2\ns_mov_b32 s99, {OOB}\nv_mov_b32 v232, v2")

    def panel_setup(self, nw, va=14):
        self.a(f"""
v_lshrrev_b32 v{va}, 2, v0
v_mul_u32_u24 v{va}, 1152, v{va}
v_and_b32 v{va+1}, 3, v0
v_lshl_add_u32 v{va}, v{va+1}, 4, v{va}
v_mul_u32_u24 v{va+1}, 1152, v0
s_and_b32 s73, {sW}, {nw-1}
s_mul_i32 s84, s73, {16*1152}
s_add_u32 s84, s84, s95
s_lshl_b32 s85, s73, 10
""")

    def panel_loads(self, srd, l0, l1, lx, padded, end, nw, va=14, rotate=False):
        a = self.a
        lp = a.label("PNL")
        if rotate:
            a(f"s_lshr_b32 s73, {sP}, 3\ns_mul_i32 s82, s73, {8*1024}\ns_add_u32 s85, s85, s82\ns_mul_i32 s82, s73, {8*16*1152}\ns_add_u32 s84, s84, s82\ns_mov_b32 s88, {end//nw - 1}")
        a(f"""
{lp}:
s_add_u32 m0, s85, {l0}
s_add_u32 s83, s84, 128
buffer_load_dwordx4 v{va}, {srd}, s84 offen lds
s_add_u32 m0, s85, {l1 - 64}
s_lshr_b32 s82, s85, 2
buffer_load_dwordx4 v{va}, {srd}, s84 offen offset:64 lds
""")
        if padded:
            a("s_lshr_b32 s73, s85, 13\ns_lshl_b32 s73, s73, 7\ns_add_u32 s82, s82, s73")
        a(f"""
s_add_u32 m0, s82, {lx}
s_mov_b64 exec, 0xffff
buffer_load_dwordx4 v{va+1}, {srd}, s83 offen lds
s_mov_b64 exec, -1
s_add_u32 s85, s85, {1024*nw}
s_add_u32 s84, s84, {16*nw*1152}
s_cmp_lt_u32 s85, {1024*end}
""")
        if rotate:
            a(f"s_cselect_b32 s82, 0, {1024*end}\ns_cselect_b32 s83, 0, {16*1152*end}\ns_sub_u32 s85, s85, s82\ns_sub_u32 s84, s84, s83\ns_sub_u32 s88, s88, 1\ns_cbranch_scc0 {lp}")
        else:
            a(f"s_cbranch_scc1 {lp}")

    def l_front(self):
        a = self.a
        a(f"""
s_load_dword {sTAG}, s[26:27], {WS_EPOCH}
v_lshl_add_u32 v5, v0, 2, v2
v_mov_b32 v6, 0
ds_write_b32 v5, v6 offset:2048
v_lshlrev_b32 v5, 3, v4
v_add_u32 v5, {L_CT - 2048}, v5
v_mov_b32 v7, 0
ds_write_b64 v5, v[6:7]
s_sub_u32 s99, {sW}, 4
v_and_b32 v18, 31, v0
v_lshrrev_b32 v19, 5, v0
s_lshl_b32 s89, s99, 3
s_add_u32 s89, s89, {sJ}
s_cmp_ge_u32 s89, 18
s_cselect_b32 s89, 99, s89
v_bfe_u32 v20, v0, 2, 1
v_lshlrev_b32 v20, 4, v20
v_bfe_u32 v21, v0, 3, 2
v_lshl_add_u32 v20, v21, 2, v20
v_and_b32 v21, 3, v0
v_add_u32 v20, v20, v21
""")
        if "ipf" in self.opts:
            n4 = a.label("NPF")
            a(f"""
s_cmp_lg_u32 {sW}, 6
s_cbranch_scc1 {n4}
s_getpc_b64 s[64:65]
L_pc0:
s_sub_u32 s64, s64, L_pc0-{NAME}_kernel
s_subb_u32 s65, s65, 0
s_mov_b32 s66, L_end-{NAME}_kernel
s_mov_b32 s67, 0x20000
s_lshr_b32 s73, s2, 3
v_lshlrev_b32 v8, 12, v0
s_lshl_b32 s73, s73, 7
buffer_load_dword v9, v8, {STB}, s73 offen
s_getpc_b64 s[64:65]
s_add_u32 s64, s64, spectral_tables@rel32@lo+4
s_addc_u32 s65, s65, spectral_tables@rel32@hi+12
s_mov_b32 s66, {2*self.NTAB*1024}
s_nop 1
buffer_load_dword v10, v8, {STB}, s73 offen
{n4}:
""")
        self.srd(SWS, 26, WS_SIZE)
        self.srd(SWQ, 12, 663552)
        FPRE = self.opt("fpre", 8)
        def fsetup():
            a(f"""
s_lshl_b32 s73, s89, 5
v_add_u32 v44, s73, v18
v_lshrrev_b32 v45, 1, v44
v_and_b32 v46, 1, v44
v_cmp_eq_u32 vcc, 1, v44
v_mov_b32 v47, 288
v_cndmask_b32 v45, v45, v47, vcc
v_cndmask_b32 v46, v46, 0, vcc
v_and_b32 v47, 1, v45
v_lshlrev_b32 v47, 31, v47
v_or_b32 v17, 1.0, v47
v_cvt_f32_u32 v45, v45
v_cvt_f32_u32 v46, v46
v_mul_f32 v45, {f32bits(1/576):#x}, v45
v_mul_f32 v46, 0x3e800000, v46
v_lshlrev_b32 v47, 3, v19
v_cvt_f32_u32 v47, v47
v_fma_f32 v46, v47, v45, v46
v_mul_f32 v55, 0x41800000, v45
""")
            for jj in range(8):
                a(f"s_mov_b32 s73, {f32bits(jj):#x}\nv_fma_f32 v{56+jj}, s73, v45, v46")
        def fgen(t):
            if t:
                a(f"s_mov_b32 s73, {f32bits(t):#x}")
            for jj in range(8):
                if t:
                    a(f"v_fma_f32 v{64+jj}, s73, v55, v{56+jj}\nv_cos_f32 v{64+jj}, v{64+jj}")
                else:
                    a(f"v_cos_f32 v{64+jj}, v{56+jj}")
            for k in range(4):
                a(f"v_cvt_pk_bf16_f32 v{104+4*t+k}, v{64+2*k}, v{65+2*k}")
        npre = a.label("NPRE"); n7 = a.label("NW7")
        a(f"v_mov_b32 v23, 0\ns_mov_b32 s98, {OOB}")
        if "wearly" in self.opts:
            a(f"s_cmp_lg_u32 {sW}, 7\ns_cbranch_scc1 {n7}")
            self.wt_loads()
        a(f"{n7}:\ns_cmp_eq_u32 s89, 99\ns_cbranch_scc1 {npre}")
        fsetup()
        for t in range(FPRE):
            fgen(t)
        a(f"{npre}:\ns_waitcnt lgkmcnt(0)")
        self.tag()
        a("s_barrier")
        wqd = a.label("WQD")
        a(f"s_cmp_lt_u32 {sW}, 6\ns_cbranch_scc1 {wqd}")
        self.panel_setup(2)
        self.panel_loads(SWQ, L_WQ0, L_WQ1, L_P2Q, True, 20, 2)
        a("s_waitcnt vmcnt(12)")
        self.add1(C0A)
        self.panel_loads(SWQ, L_WQ0, L_WQ1, L_P2Q, True, 26, 2)
        self.wait(CK, 4, sleep=0)
        self.panel_loads(SWQ, L_WQ0, L_WQ1, L_P2Q, True, 36, 2)
        self.stamp(6, 3)
        a("s_waitcnt vmcnt(24)")
        self.add1(C0B)
        a("s_waitcnt vmcnt(12)")
        self.add1(C0D)
        if "wmid" in self.opts:
            n7 = a.label("NM7"); d7 = a.label("DM7")
            a(f"s_cmp_lg_u32 {sW}, 7\ns_cbranch_scc1 {n7}")
            self.wt_loads()
            a(f"s_waitcnt vmcnt(16)\ns_branch {d7}\n{n7}:\ns_waitcnt vmcnt(0)\n{d7}:")
        else:
            a("s_waitcnt vmcnt(0)")
        self.add1(C0C)
        self.stamp(1, 3)
        a(f"{wqd}:")
        nod = a.label("NOD")
        a(f"s_cmp_eq_u32 s89, 99\ns_cbranch_scc1 {nod}")
        for t in range(FPRE, 18):
            fgen(t)
        self.stamp(9, 3)
        a(f"""
v_mul_u32_u24 v25, {XP}, v20
v_lshl_add_u32 v25, v19, 4, v25
v_lshrrev_b32 v22, 1, v20
v_xor_b32 v22, v22, v19
v_and_b32 v22, 7, v22
v_lshlrev_b32 v22, 4, v22
v_lshl_add_u32 v6, v20, 7, v22
v_add_u32 v6, {L_X2}, v6
v_xor_b32 v7, 32, v6
v_xor_b32 v8, 64, v6
v_xor_b32 v9, 0x60, v6
v_lshlrev_b32 v22, 12, v18
v_lshl_add_u32 v22, v19, 5, v22
s_lshl_b32 s90, s89, 17
s_lshl_b32 s73, {sP}, 7
s_add_u32 s90, s90, s73
s_add_u32 s90, s90, {WS_T}
""")
        RG = 44
        def frag(t, n, q):
            return vr(RG + 16 * (t % 3) + 8 * n + 4 * q, 4)
        def rd(t):
            for n in range(2):
                for q in range(2):
                    ks = t + 18 * q
                    if ks < 32:
                        a(f"ds_read_b128 {frag(t,n,q)}, v25 offset:{n*32*XP + ks*32}")
                    else:
                        a(f"ds_read_b128 {frag(t,n,q)}, v{6+ks-32} offset:{n*4096}")
        def dft(t0, t1):
            for t in range(t0, min(t0 + 2, t1)):
                rd(t)
            for t in range(t0, t1):
                if t + 2 < t1:
                    rd(t + 2)
                a(f"s_waitcnt lgkmcnt({4 * (min(t+3, t1) - t - 1)})")
                for n in range(2):
                    for q in range(2):
                        acc = vr(176 + 32 * n + 16 * q, 16)
                        a(f"v_mfma_f32_32x32x16_bf16 {acc}, {frag(t,n,q)}, {vr(104+4*t,4)}, {'0' if t == 0 else acc}")
        DPRE = self.opt("dpre", 10)
        if DPRE:
            self.wait(CK, 4)
            dft(0, DPRE)
        a("s_setprio 3")
        self.wait(C1, 4)
        self.stamp(3, 3)
        dft(DPRE, 18)
        self.stamp(8, 3)
        self.wait(CV, 4, sleep=2)
        for n in range(2):
            b = 176 + 32 * n
            for r in range(16):
                a(f"v_fma_f32 v{b+r}, v17, v{b+16+r}, v{b+r}")
            for k in range(8):
                a(f"v_cvt_pk_bf16_f32 v{b+k}, v{b+2*k}, v{b+2*k+1}")
            a(f"buffer_store_dwordx4 {vr(b,4)}, v22, {SWS}, s90 offen offset:{64*n} sc1")
            a(f"buffer_store_dwordx4 {vr(b+4,4)}, v22, {SWS}, s90 offen offset:{64*n+16} sc1")
        a(f"{nod}:")
        n6 = a.label("N6"); n7 = a.label("N7")
        a(f"s_cmp_eq_u32 {sW}, 7\ns_cbranch_scc1 {n7}\ns_cmp_lg_u32 {sW}, 6\ns_cbranch_scc1 {n6}\ns_setprio 3")
        self.wait(CV, 4, sleep=2)
        self.poison()
        a(f"{n6}:\ns_waitcnt vmcnt(0)")
        self.add1(CD)
        self.stamp(4, 3); self.stamp(4)
        a(f"{n7}:")

    def g_gen(self):
        a = self.a
        N = 1.0 / (M.S * M.D)
        skip = a.label("GS"); nx = a.label("GNX"); nk = a.label("GNK")
        assert all((f * 1821) >> 16 == f // 36 for f in range(864))
        assert all((f * 21846) >> 16 == f // 3 for f in range(24))
        a(f"""
s_mov_b32 s99, {OOB}
s_cmp_ge_u32 s2, 216
s_cbranch_scc1 {skip}
s_lshl_b32 s90, s2, 2
s_lshl_b32 s99, s2, 12
s_add_u32 s99, s99, {WS_G}
s_mul_i32 s91, s90, 1821
s_lshr_b32 s91, s91, 16
s_mul_i32 s73, s91, 36
s_sub_u32 s92, s90, s73
s_mul_i32 s93, s91, 21846
s_lshr_b32 s93, s93, 16
s_mul_i32 s73, s93, 3
s_sub_u32 s91, s91, s73
s_mul_i32 s93, s93, 72
s_lshl_b32 s73, s91, 5
s_add_u32 s93, s93, s73
v_mov_b32 v44, v20
s_cmp_lg_u32 s91, 2
s_cbranch_scc1 {nx}
v_mov_b32 v44, v18
{nx}:
v_add_u32 v44, s93, v44
s_lshl_b32 s73, s92, 3
v_lshl_add_u32 v45, v19, 2, s73
v_mul_u32_u24 v45, v45, v44
v_mul_u32_u24 v47, 5, v44
s_mov_b32 s73, {f32bits(1/576):#x}
s_mov_b32 s93, {f32bits(2*N):#x}
""")
        for fr in range(4):
            for cq in range(4):
                a(f"v_cvt_f32_u32 v46, v45\nv_mul_f32 v46, s73, v46\nv_fract_f32 v46, v46")
                a(f"v_cos_f32 v{48+2*cq}, v46\nv_sin_f32 v{49+2*cq}, v46")
                a("v_add_u32 v45, v45, v44" if cq < 3 else "v_add_u32 v45, v45, v47")
            for cq in range(4):
                a(f"v_mul_f32 v{48+2*cq}, s93, v{48+2*cq}\nv_mul_f32 v{49+2*cq}, s93, -v{49+2*cq}")
            if fr == 0:
                a(f"""
s_cmp_lg_u32 s92, 0
s_cbranch_scc1 {nk}
s_mov_b32 exec_hi, 0
v_mov_b32 v48, {f32bits(N):#x}
v_lshlrev_b32 v49, 31, v44
v_or_b32 v49, v48, v49
s_mov_b64 exec, -1
{nk}:
""")
            for k in range(4):
                a(f"v_cvt_pk_bf16_f32 v{240+4*fr+k}, v{48+2*k}, v{49+2*k}")
        a(f"{skip}:")

    WB = 112

    def poison(self):
        a = self.a
        a(f"v_lshlrev_b32 v24, 4, v0\nv_mov_b32 v28, -1\nv_mov_b32 v29, -1\nv_mov_b32 v30, -1\nv_mov_b32 v31, -1")
        a(f"s_mul_i32 s90, {sP}, {8*9216}\ns_add_u32 s90, s90, {WS_OF}\ns_mul_i32 s91, {sJ}, 9216\ns_add_u32 s91, s91, s90\ns_add_u32 s91, s91, 8192")
        a(f"buffer_store_dwordx4 v[28:31], v24, {SWS}, s91 offen sc1\ns_lshl_b32 s73, {sJ}, 10\ns_add_u32 s90, s90, s73")
        for i in range(8):
            a(f"buffer_store_dwordx4 v[28:31], v24, {SWS}, s90 offen sc1\ns_add_u32 s90, s90, 9216")

    def wt_loads(self):
        a = self.a
        self.srd(SWR, 6, 2048 * 578)
        self.srd(SWI, 8, 2048 * 578)
        a(f"""
v_and_b32 v26, 7, v0
v_lshrrev_b32 v27, 3, v0
v_mul_u32_u24 v22, 578, v26
v_mad_u32_u24 v22, v27, 18, v22
s_lshr_b32 s93, s2, 6
s_bfe_u32 s92, s2, 0x20004
s_and_b32 s88, s2, 15
s_lshl_b32 s90, s88, 7
s_lshl_b32 s73, s92, 3
s_add_u32 s90, s90, s73
s_mul_i32 s90, s90, 578
s_mul_i32 s73, s93, 144
s_add_u32 s90, s90, s73
""")
        for jr in range(4):
            for ri, srd in enumerate((SWR, SWI)):
                b = self.WB + 24 * ri + 6 * jr
                a(f"buffer_load_dwordx4 {vr(b,4)}, v22, {srd}, s90 offen\nbuffer_load_dword v{b+4}, v22, {srd}, s90 offen offset:16")
            if jr < 3:
                a(f"s_add_u32 s90, s90, {32*578}")
        a(f"""
s_mov_b32 s73, {9*8192}
v_mul_lo_u32 v23, v27, s73
v_lshl_add_u32 v23, v26, 4, v23
s_mul_i32 s98, s93, {72*8192}
s_lshl_b32 s73, s88, 8
s_add_u32 s98, s98, s73
s_and_b32 s73, s92, 1
s_lshl_b32 s73, s73, 7
s_add_u32 s98, s98, s73
s_lshr_b32 s73, s92, 1
s_lshl_b32 s73, s73, 12
s_add_u32 s98, s98, s73
s_add_u32 s98, s98, {WS_WT}
""")

    def wt_stores(self):
        a = self.a
        last = a.label("WL")
        a("s_mov_b32 s92, 0x05040100\ns_mov_b32 s93, 0x07060302")
        for x in range(10):
            if x == 9:
                a(f"s_cmp_lt_u32 s2, 192\ns_cbranch_scc1 {last}\ns_mov_b32 exec_lo, 0\ns_mov_b32 exec_hi, 0xff000000")
            t = self.WB + 48 + 4 * (x % 3)
            for ri in range(2):
                for pr in range(2):
                    lo = self.WB + 24 * ri + 12 * pr + x // 2
                    a(f"v_perm_b32 v{t+2*ri+pr}, v{lo+6}, v{lo}, {'s93' if x % 2 else 's92'}")
            a(f"buffer_store_dwordx4 {vr(t,4)}, v23, {SWS}, s98 offen sc1\ns_add_u32 s98, s98, 8192")
        a(f"s_mov_b64 exec, -1\n{last}:")

    def s_flag(self):
        a = self.a
        self.g_gen()
        a("s_setprio 3\nv_lshlrev_b32 v24, 4, v0")
        self.wait(CV, 4, sleep=2)
        self.stamp(3, 3)
        if "wearly" not in self.opts and "wmid" not in self.opts:
            self.wt_loads()
        a("s_waitcnt vmcnt(0)")
        self.wt_stores()
        for fr in range(4):
            a(f"buffer_store_dwordx4 {vr(240+4*fr,4)}, v24, {SWS}, s99 offen offset:{1024*fr} sc1")
        self.stamp(10, 3)
        self.flag4("s91", "s2", WS_FS)
        a("s_waitcnt vmcnt(0)")
        self.stamp(11, 3)
        self.wait(CD, 3, sleep=2)
        self.set_flag("s91")
        self.add1(CW)
        self.stamp(6); self.stamp(2, 3)
        self.wait(CR, 4, sleep=4)
        self.stage2_tables()

    def attention(self):
        a = self.a
        K0, KX0, V0, S0, O0, Q0, QX0 = self.AK, self.AKX, self.AV, self.AS, self.AO, self.AQ, self.AQX
        a(f"""
v_and_b32 v84, 31, v0
v_lshrrev_b32 v85, 5, v0
s_lshr_b32 s88, {sW}, 2
s_mul_i32 s73, s88, 6144
s_add_u32 s73, s73, {L_QS}
v_mul_u32_u24 v{self.vQ}, 48, v84
v_add_u32 v{self.vQ}, s73, v{self.vQ}
v_lshl_add_u32 v{self.vQX}, v85, 2, v{self.vQ}
v_add_u32 v{self.vQX}, 32, v{self.vQX}
v_lshl_add_u32 v{self.vQ}, v85, 4, v{self.vQ}
s_and_b32 s73, {sW}, 3
s_mul_i32 s73, s73, 2560
s_add_u32 s73, s73, {L_EX}
v_lshl_add_u32 v{self.vEX}, v0, 4, s73
s_add_u32 s73, s73, 2048
v_lshl_add_u32 v{self.vEX2}, v0, 3, s73
s_lshl_b32 s73, s88, 10
s_add_u32 s73, s73, {L_CT}
v_lshl_add_u32 v{self.vCT}, v0, 2, s73
s_mul_i32 s73, s88, {CN - C1}
v_add_u32 v86, s73, v2
v_mov_b32 v{QX0+1}, 0
v_mov_b32 v{QX0+2}, 0
""")
        self.wait(C1, 4, sleep=0)
        self.stamp(5); self.stamp(5, 3); self.stamp(1, 5)
        qmain = lambda q: f"ds_read_b128 {vr(Q0,4)}, v{self.vQ} offset:{1536*(q%4)}"
        qx = lambda q: f"ds_read_b32 v{QX0}, v{self.vQX} offset:{1536*(q%4)}\nds_read_b32 v{QX0+3}, v{self.vQX} offset:{1536*(q%4)}"
        a(qmain(0)); a(qx(0))
        keys = lambda kind, t: ([("K", t)] + ([] if t % 2 else [("X", t)])) if kind == "K" else [("V0", t), ("V1", t)]
        issued = []
        for t in range(self.NFIRST):
            issued += keys("K", t) + keys("V", t)
        state = {"done": 0}
        def need(*ks):
            idx = max(issued.index(k) for k in ks) + 1
            if idx > state["done"]:
                state["done"] = idx
                return [f"s_waitcnt vmcnt({len(issued) - idx})"]
            return []
        slots = {}
        def put(g, name, *items):
            slots.setdefault((g, name), []).extend(items)
        def put_loads(kind, t, where):
            ins = self.ld_k(t, t % 8) if kind == "K" else self.ld_v(t, t % 8)
            for x, key, (g, name) in zip(ins, keys(kind, t), where):
                put(g, name, (key, x))
        for t in range(self.NFIRST, 8):
            g = t - self.NFIRST
            put_loads("K", t, [(g, "B"), (g, "B")])
            put_loads("V", t, [(g, "C"), (g, "D")])
        for t in range(8):
            g = 24 + (3 * t) // 2
            put_loads("K", 8 + t, [(g, "C"), (g, "D")])
            put_loads("V", 8 + t, [(g + 1, "A"), (g + 1, "B")])
        def slot(g, name):
            out = []
            for it in slots.get((g, name), []):
                if isinstance(it, tuple):
                    issued.append(it[0]); out.append(it[1])
                else:
                    out.append(it)
            return out
        sreg = lambda g: S0 + 16 * (g % 2)
        oreg = lambda ps: O0 + 10 * (ps % 4)
        def qk16(g):
            return f"v_mfma_f32_32x32x16_bf16 {vr(sreg(g),16)}, {vr(K0+4*(g%8),4)}, {vr(Q0,4)}, 0"
        def qkx(g):
            return f"v_mfma_f32_32x32x8_bf16 {vr(sreg(g),16)}, {vr(KX0+2*((g%8)//2),2)}, {vr(QX0+2*(g%2),2)}, {vr(sreg(g),16)}"
        def pv(g, u):
            o = vr(oreg(g // 8), 16)
            c = "0" if (g // 8 < 4 and g % 8 == 0 and u == 0) else o
            return f"v_mfma_f32_32x32x16_bf16 {o}, {vr(V0+8*(g%8)+4*u,4)}, {vr(sreg(g)+4*u,4)}, {c}"
        kt = lambda g: (g % 8) + (8 if g >= 32 else 0)
        def kneed(g):
            t = kt(g)
            return need(("K", t), ("X", t & ~1))
        def export(q):
            o = O0 + 10 * q
            return [f"ds_write_b128 v{self.vEX}, {vr(o,4)} offset:{10240*q}", f"ds_write_b128 v{self.vEX}, {vr(o+4,4)} offset:{10240*q+1024}",
                    f"ds_write_b64 v{self.vEX2}, {vr(o+8,2)} offset:{10240*q}",
                    f"ds_add_u32 v{self.vCT}, v3 offset:{256*q}"]
        for x in kneed(0) + ["s_waitcnt lgkmcnt(0)", qk16(0), qkx(0)]:
            a(x)
        for ps in range(7):
            put(8 * ps + 6, "B", qmain(ps + 1))
            q1, q2 = qx(ps + 1).split("\n")
            put(8 * ps + 6, "C", q1); put(8 * ps + 6, "D", q2)
        for ps in range(5, 8):
            ex = export(ps - 5)
            put(8 * ps, "C", ex[0]); put(8 * ps, "D", ex[1]); put(8 * ps + 1, "A", ex[2]); put(8 * ps + 1, "B", ex[3])
        hi = a.label("PHI"); nf = a.label("NYF"); lo = a.label("PLO"); ok = a.label("CNOK")
        put(7 - self.NFIRST, "D", f"s_mov_b64 exec, 1\nds_add_u32 v2, v3 offset:{CV}\ns_mov_b64 exec, -1\ns_cmp_lt_u32 {sW}, 4\ns_cbranch_scc1 {hi}\ns_setprio 1\n{hi}:")
        put(1, "D", f"s_cmp_eq_u32 s99, {OOB}\ns_cbranch_scc1 {nf}\ns_waitcnt vmcnt(7)\ns_mov_b64 exec, 1\nds_add_rtn_u32 v233, v232, v3 offset:{YA}\n"
                    f"v_mov_b32 v1, {sTAG}\ns_waitcnt lgkmcnt(0)\nv_readfirstlane_b32 s73, v233\ns_cmp_lg_u32 s73, 1\ns_cmov_b32 s99, {OOB}\n"
                    f"buffer_store_dword v1, off, {SWS}, s99 sc1\ns_mov_b64 exec, -1\n{nf}:")
        put(23, "D", "s_setprio 3")
        put(self.opt("cr", 35), "C", f"s_mov_b64 exec, 1\nds_add_u32 v2, v3 offset:{CR}\ns_mov_b64 exec, -1")
        put(36, "A", f"s_setprio 1\ns_cmp_ge_u32 {sW}, 4\ns_cbranch_scc1 {lo}\ns_setprio 2\n{lo}:")
        put(36, "D", f"ds_read_b32 v87, v86 offset:{C1}")
        for g in range(64):
            ps, t = divmod(g, 8)
            s = sreg(g)
            e = lambda i: f"v_exp_f32 v{s+i}, v{s+i}"
            c = lambda k: f"v_cvt_pk_bf16_f32 v{s+k}, v{s+2*k}, v{s+2*k+1}"
            last = g == 63
            seq = [e(0), e(1)]
            if g > 0:
                seq.append(pv(g - 1, 1))
            seq += slot(g, "A")
            if not last:
                w = kneed(g + 1)
                if t == 7:
                    w = [(w[0] + " " if w else "s_waitcnt ") + "lgkmcnt(0)"]
                seq += w
            seq += [e(2), e(3), c(0), e(4), c(1)]
            if not last:
                seq.append(qk16(g + 1))
            seq += slot(g, "B") + [e(5), e(6), e(7), c(2), e(8), c(3)]
            if not last:
                seq.append(qkx(g + 1))
            seq += slot(g, "C") + need(("V0", kt(g)), ("V1", kt(g)))
            seq += [e(9), e(10), e(11), c(4), e(12), c(5), pv(g, 0)] + slot(g, "D") + [e(13), e(14), e(15), c(6), c(7)]
            for x in seq:
                a(x)
            if g == 39:
                a(f"v_readfirstlane_b32 s73, v87\ns_cmp_ge_u32 s73, 4\ns_cbranch_scc1 {ok}")
                self.wait(C1, 4, sleep=2, base="v86")
                a(f"{ok}:")
            if g == 7:
                self.stamp(11)
            if t == 7:
                self.stamp(2 + ps, 5)
        a(pv(63, 1))
        self.norm_setup(1)
        ex = export(3)
        for x in ex[:3]:
            a(x)
        a(f"ds_add_rtn_u32 v1, v{self.vCT}, v3 offset:768")

    T64, T32A, TW1, TW2, T32B, NTAB = 0, 24, 27, 35, 43, 49
    NPRE = 35

    def make_tables(self):
        L = np.arange(64); Lm = (L & 15)[:, None]; Lg = (L >> 4)[:, None]
        jj = np.arange(8)[None, :]; r = np.arange(4)[None, :]
        def pk(v):
            b = M.bf(v.astype(np.float32)).astype(np.uint32)
            return (b[:, 0::2] | (b[:, 1::2] << 16)).astype(np.uint32)
        parts = lambda z: (z.real, z.imag, -z.imag)
        w = lambda n, x, y: np.exp(-2j * np.pi * ((x * y) % n) / n)
        f32 = lambda v: v.astype(np.float32).view(np.uint32)
        out = []
        for H in range(2):
            for k in range(3):
                for t in range(4):
                    for ks in range(2):
                        out.append(pk(parts(w(64, 16 * (t ^ (2 * H)) + Lm, 32 * (ks ^ H) + 16 * (jj >> 2) + 4 * Lg + (jj & 3)))[k]))
            for k in range(3):
                out.append(pk(parts(w(32, 8 * Lg + jj, 16 * H + Lm))[k]))
            for t in range(4):
                z = w(2048, 16 * (t ^ (2 * H)) + 4 * Lg + r, 16 * H + Lm)
                out += [f32(z.real), f32(z.imag)]
            for t in range(4):
                z = np.conj(w(2048, 16 * (t ^ (2 * H)) + Lm, 16 * H + 4 * Lg + r))
                out += [f32(z.real), f32(z.imag)]
            for k in range(3):
                for at in range(2):
                    out.append(pk(parts(w(32, 8 * (Lm >> 2) + 4 * at + (Lm & 3), 16 * (H ^ (jj >> 2)) + 4 * Lg + (jj & 3)))[k]))
        return np.concatenate([o.reshape(-1) for o in out])

    def tload(self, frag, dst):
        if self.tgroup != frag // 4:
            self.tgroup = frag // 4
            self.a(f"s_add_u32 s88, s87, {(frag // 4) * 4096}")
        self.a(f"buffer_load_dwordx4 {vr(dst,4)}, v5, {STB}, s88 offen offset:{(frag % 4) * 1024}")

    def stage2_tables(self):
        a = self.a
        a(f"""
s_getpc_b64 s[64:65]
s_add_u32 s64, s64, spectral_tables@rel32@lo+4
s_addc_u32 s65, s65, spectral_tables@rel32@hi+12
s_mov_b32 s66, {2*self.NTAB*1024}
s_mov_b32 s67, 0x20000
v_lshlrev_b32 v5, 4, v0
s_and_b32 s86, {sW}, 1
s_mul_i32 s87, s86, {self.NTAB*1024}
""")
        self.tgroup = None
        for f in range(24):
            self.tload(self.T64 + f, 80 + 4 * f)
        for f in range(3):
            self.tload(self.T32A + f, 240 + 4 * f)
        for f in range(8):
            self.tload(self.TW1 + f, 16 + 4 * f)

    def stage2(self):
        a = self.a
        A, P, Q, TW, WW, PK, TMP = 80, 48, 176, 16, 208, 240, 8
        self.tgroup = None
        a(f"""
v_and_b32 v6, 15, v0
v_lshlrev_b32 v6, 6, v6
v_lshrrev_b32 v7, 4, v0
v_lshl_add_u32 v6, v7, 4, v6
s_lshl_b32 s90, s89, 13
s_add_u32 s91, s90, 4096
s_cmp_eq_u32 s89, 288
s_cmov_b32 s90, 4096
s_cmov_b32 s91, {OOB}
s_cmp_eq_u32 s89, 0
s_cmov_b32 s91, {OOB}
s_lshl_b32 s73, s86, 11
s_add_u32 s90, s90, s73
s_add_u32 s91, s91, s73
s_lshl_b32 s85, s86, 12
s_sub_u32 s85, 2048, s85
s_lshr_b32 s73, {sW}, 1
s_and_b32 s73, s73, 1
s_xor_b32 s73, s73, 1
s_lshl_b32 s99, s73, 2
s_lshl_b32 s73, s73, 12
s_lshl_b32 s84, s86, 11
s_add_u32 s73, s73, s84
s_add_u32 s73, s73, {L_XCH}
v_add_u32 v7, s73, v5
s_sub_u32 s73, s73, s84
s_xor_b32 s84, s84, 0x800
s_add_u32 s84, s84, s73
""")
        cl = a.label("GC"); cg = a.label("CG"); ot = a.label("GO"); dn = a.label("GD")
        a(f"s_cmp_lg_u32 {sW}, 7\ns_cbranch_scc1 {ot}\ns_lshr_b32 s73, s2, 3\ns_cmp_lg_u32 s73, 16\ns_cbranch_scc1 {cl}")
        a(f"v_lshlrev_b32 v8, 7, v0\ns_mov_b32 s92, {WS_FS}\ns_sleep {self.opt('dw', 8)}")
        self.poll(f"buffer_load_dwordx4 v[12:15], v8, {SWS}, s92 offen sc1", [12, 13, 14, 15], sleep=4)
        a(f"s_and_b32 s92, s2, 7\ns_lshl_b32 s92, s92, 7\ns_add_u32 s92, s92, {WS_GOS}")
        self.set_flag("s92")
        a(f"s_branch {cg}\n{cl}:\ns_sleep {self.opt('d2', 32)}")
        self.go_wait(WS_GOS, 252, 8)
        a(f"{cg}:")
        self.add1(CG)
        a(f"s_branch {dn}\n{ot}:")
        self.wait(CG, 1, sleep=2)
        a(f"s_waitcnt vmcnt(0)\n{dn}:")
        self.stamp(7)
        self.stamp(1, 2)
        a(f"s_add_u32 s92, s90, {WS_T}\ns_add_u32 s93, s91, {WS_T}\ns_add_u32 s82, s92, s85\ns_add_u32 s83, s93, s85")
        for t in range(4):
            for ri in range(2):
                so = (("s92", "s93"), ("s82", "s83"))[t >> 1][ri]
                a(f"buffer_load_dwordx4 {vr(WW+8*t+4*ri,4)}, v6, {SWS}, {so} offen offset:{1024*(t&1)} sc1")
        mf = lambda acc, x, y, first: a(f"v_mfma_f32_16x16x32_bf16 {vr(acc,4)}, {vr(x,4)}, {vr(y,4)}, {'0' if first else vr(acc,4)}")
        re = lambda base, t: base + 8 * t
        im = lambda base, t: base + 8 * t + 4
        for t in range(4):
            a(f"s_waitcnt vmcnt({6 - 2*t})")
            if t == 0: self.stamp(2, 2)
            mf(re(P, t), re(WW, t), PK, True); mf(im(P, t), re(WW, t), PK + 4, True)
            mf(re(P, t), im(WW, t), PK + 8, False); mf(im(P, t), im(WW, t), PK, False)
        a(f"s_lshl_b32 s92, s89, 13\ns_lshl_b32 s73, s86, 12\ns_add_u32 s92, s92, s73\ns_lshl_b32 s73, s86, 11\ns_add_u32 s92, s92, s73\ns_add_u32 s92, s92, {WS_WT}")
        a("s_add_u32 s82, s92, s85")
        for t in range(4):
            a(f"buffer_load_dwordx4 {vr(WW+8*t+4,4)}, v5, {SWS}, {('s92', 's82')[t >> 1]} offen offset:{1024*(t&1)} sc1")
        def cmul(x, c, dst):
            for t in range(4):
                ops = []
                for h in range(2):
                    t0, t1 = TMP + 4 * h, TMP + 4 * h + 2
                    xr, xi, cr, ci = re(x, t) + 2 * h, im(x, t) + 2 * h, re(c, t) + 2 * h, im(c, t) + 2 * h
                    ops.append([f"v_pk_mul_f32 {vr(t0,2)}, {vr(xr,2)}, {vr(cr,2)}",
                                f"v_pk_mul_f32 {vr(t1,2)}, {vr(xr,2)}, {vr(ci,2)}",
                                f"v_pk_fma_f32 {vr(t0,2)}, {vr(xi,2)}, {vr(ci,2)}, {vr(t0,2)} neg_lo:[1,0,0] neg_hi:[1,0,0]",
                                f"v_pk_fma_f32 {vr(t1,2)}, {vr(xi,2)}, {vr(cr,2)}, {vr(t1,2)}",
                                f"v_cvt_pk_bf16_f32 v{dst(t,0)+h}, v{t0}, v{t0+1}",
                                f"v_cvt_pk_bf16_f32 v{dst(t,1)+h}, v{t1}, v{t1+1}"])
                for j in range(0, 6, 2):
                    for o in ops:
                        a(o[j]); a(o[j + 1])
        pkd = lambda t, part: PK + 8 * part + 2 * t
        ks_ = lambda part, ks: PK + 8 * part + 4 * ks
        t64 = lambda k, t, ks: A + 32 * k + 8 * t + 4 * ks
        self.stamp(3, 2)
        cmul(P, TW, pkd)
        self.stamp(4, 2)
        for f in range(8):
            self.tload(self.TW2 + f, TW + 4 * f)
        for t in range(4):
            for ks in range(2):
                mf(re(Q, t), t64(0, t, ks), ks_(0, ks), ks == 0); mf(im(Q, t), t64(1, t, ks), ks_(0, ks), ks == 0)
            for ks in range(2):
                mf(re(Q, t), t64(2, t, ks), ks_(1, ks), False); mf(im(Q, t), t64(0, t, ks), ks_(1, ks), False)
        self.stamp(5, 2)
        a("s_waitcnt vmcnt(8)")
        for t in range(4):
            b = WW + 8 * t
            for k in range(4):
                a(f"v_lshlrev_b32 v{b+2*k}, 16, v{b+4+k}\nv_and_b32 v{b+2*k+1}, 0xffff0000, v{b+4+k}" if k < 2 else "")
            a(f"v_and_b32 v{b+5}, 0xffff0000, v{b+6}\nv_lshlrev_b32 v{b+4}, 16, v{b+6}\nv_lshlrev_b32 v{b+6}, 16, v{b+7}\nv_and_b32 v{b+7}, 0xffff0000, v{b+7}")
        cmul(Q, WW, pkd)
        self.stamp(6, 2)
        for f in range(6):
            self.tload(self.T32B + f, WW + 4 * f)
        for t in (2, 3, 0, 1):
            for ks in range(2):
                mf(re(P, t), ks_(0, ks), t64(0, t, ks), ks == 0); mf(im(P, t), ks_(1, ks), t64(0, t, ks), ks == 0)
            for ks in range(2):
                mf(re(P, t), ks_(1, ks), t64(1, t, ks), False); mf(im(P, t), ks_(0, ks), t64(2, t, ks), False)
        self.stamp(7, 2)
        a("v_add_u32 v232, s99, v2")
        self.kv_addr()
        self.kv_loads()
        a(f"s_waitcnt vmcnt({6 + self.NLD1})")
        cmul(P, TW, lambda t, part: (PK + 8 * t + 4 * part) if t < 2 else (Q + 4 * (t - 2) + 2 * part))
        a(f"ds_write_b128 v7, {vr(Q,4)}\nds_write_b128 v7, {vr(Q+4,4)} offset:1024")
        self.add1(XA, base="v232")
        a("v_add_u32 v7, s84, v5")
        self.wait(XA, 2, sleep=0, base="v232")
        for t in range(2):
            for part in range(2):
                a(f"ds_read_b64 {vr(PK+8*t+4*part+2,2)}, v7 offset:{1024*t+8*part}")
        self.stamp(8, 2)
        a(f"s_waitcnt vmcnt({self.NLD1}) lgkmcnt(0)")
        t32 = lambda k, at: WW + 8 * k + 4 * at
        out = lambda t, part, at: Q + 16 * t + 8 * part + 4 * at
        for t in range(2):
            for at in range(2):
                mf(out(t, 0, at), t32(0, at), PK + 8 * t, True); mf(out(t, 1, at), t32(0, at), PK + 8 * t + 4, True)
            for at in range(2):
                mf(out(t, 0, at), t32(1, at), PK + 8 * t + 4, False); mf(out(t, 1, at), t32(2, at), PK + 8 * t, False)
        a(f"s_add_u32 s92, s90, {WS_Y}\ns_add_u32 s93, s91, {WS_Y}")
        for t in range(2):
            for part in range(2):
                b = out(t, part, 0); d = 48 + 8 * t + 4 * part
                for k in range(4):
                    a(f"v_cvt_pk_bf16_f32 v{d+k}, v{b+2*k}, v{b+2*k+1}")
                a(f"buffer_store_dwordx4 {vr(d,4)}, v6, {SWS}, {'s93' if part else 's92'} offen offset:{1024*t} sc1")
        self.stamp(9, 2)
        self.flag4("s99", "s89", WS_FY)

    def l_mid(self):
        a = self.a
        go = a.label("S2"); no = a.label("NS2"); n7 = a.label("N7"); kv = a.label("LKV"); tb = a.label("TB"); nw = a.label("NW")
        a(f"s_mov_b32 s89, s2\ns_cmp_lg_u32 {sW}, 7\ns_cbranch_scc1 {n7}")
        self.s_flag()
        a(f"s_mov_b32 s89, s2\ns_branch {go}\n{n7}:")
        self.wait(CW, 1, sleep=6)
        self.wait(CR, 4, sleep=4)
        a(f"s_cmp_eq_u32 {sW}, 6\ns_cbranch_scc1 {tb}")
        a(f"""
s_add_u32 s89, s2, 192
s_sub_u32 s73, s2, 64
s_cmp_gt_u32 s73, 32
s_cbranch_scc1 {nw}
{tb}:
""")
        self.stage2_tables()
        a(f"{go}:")
        self.stage2()
        a(f"s_branch {kv}\n{nw}:")
        a(f"{no}:\ns_mov_b32 s99, {OOB}")
        self.kv_addr()
        self.kv_loads()
        a(f"s_setprio 1\n{kv}:")
        self.stamp(9)

    NT = 192

    def tail(self, mm, n):
        a = self.a
        ACC, ACX = 16, 32
        WF = 48
        NT = self.NT
        w = 2 * mm + n
        a("s_setprio 2")
        self.busy = 2
        self.norm_setup(1 - n)
        a(f"""
ds_read_b32 v11, v14 offset:{2304 + 128 * n}
v_and_b32 v37, 15, v0
v_lshrrev_b32 v38, 4, v0
v_lshl_add_u32 v14, v37, 2, v2
ds_read_b32 v36, v14 offset:{2304 + 128 * n + 64 * mm}
v_bfe_u32 v43, v0, 2, 2
v_and_b32 v44, 3, v0
v_bfe_u32 v46, v0, 4, 1
v_and_b32 v39, 1, v44
v_lshlrev_b32 v15, 2, v39
v_lshl_add_u32 v15, v46, 1, v15
v_lshrrev_b32 v14, 1, v44
v_add_u32 v45, v15, v14
v_lshlrev_b32 v45, 3, v45
v_add_u32 v45, {L_WO1 if mm else L_WO0}, v45
v_lshl_add_u32 v6, v13, 2, v43
v_lshl_add_u32 v6, v6, 6, v45
v_lshrrev_b32 v7, 1, v43
v_mul_u32_u24 v7, 72, v7
v_and_b32 v14, 1, v43
v_add3_u32 v40, v7, v14, 16
v_lshl_add_u32 v7, v40, 6, v45
v_mul_u32_u24 v14, 18432, v13
v_add_u32 v7, v7, v14
v_lshlrev_b32 v39, 3, v39
v_add_u32 v39, {L_WOX}, v39
v_mul_u32_u24 v15, 288, v46
v_add_u32 v15, v15, v40
v_lshl_add_u32 v15, v15, 4, v39
v_mul_u32_u24 v14, 72, v13
v_lshl_add_u32 v14, v46, 2, v14
v_add_u32 v14, v14, v43
v_lshl_add_u32 v14, v14, 4, v39
v_lshlrev_b32 v41, 4, v37
v_lshl_add_u32 v41, v46, 9, v41
v_lshl_add_u32 v47, v13, 10, v41
v_cmp_gt_u32 vcc, 32, v0
v_mov_b32 v40, {OOB}
v_add_u32 v41, {256 * mm}, v47
v_cndmask_b32 v42, v40, v41, vcc
v_cmp_gt_u32 vcc, 8, v37
s_nop 0
v_cndmask_b32 v47, v40, v47, vcc
s_waitcnt lgkmcnt(0)
v_sub_f32 v4, 1.0, v4
""")

        normalize = self.normalize

        def wrow(kind, k, hh, u):
            if kind == "m":
                return ("v6", (72 * k + 18 * hh + 8 * u) * 64) if k < 8 else ("v7", (144 * u + 18 * hh) * 64)
            return ("v14", (144 * k + 18 * hh + 8 * u) * 16) if k < 4 else ("v15", (144 * u + 18 * hh) * 16)

        def consume(i, probe):
            OB, AX = 192, 248
            hh = i >> 1
            seq = []
            for ks in range(9):
                seq.append(("m", ks))
                if ks % 2 == 1 or ks == 8: seq.append(("x", ks // 2))
            def rd(k):
                for u in range(2):
                    base, off = wrow("x", k, hh, u)
                    a(f"ds_read_b64_tr_b16 {vr(AX+4*(k%2)+2*u,2)}, {base} offset:{off}")
            rd(0); rd(1)
            if probe:
                l = a.label("CP"); d = a.label("CQ")
                a(f"{l}:\ns_add_u32 s90, s94, {i*9216 + 8192}\nbuffer_load_dwordx4 {vr(OB,4)}, v5, {SWS}, s90 offen sc1")
                a(f"s_waitcnt vmcnt(0)\nv_max_u32 v1, v{OB}, v{OB+1}\nv_max3_u32 v1, v1, v{OB+2}, v{OB+3}")
                a(f"v_cmp_eq_u32 vcc, -1, v1\ns_cmp_eq_u64 vcc, 0\ns_cbranch_scc1 {d}")
                a(f"s_sleep 8\ns_sub_u32 {sSPIN}, {sSPIN}, 1\ns_cbranch_scc0 {l}\ns_branch L_bail\n{d}:")
            l = a.label("CL"); d = a.label("CD")
            a(f"{l}:")
            chk = []
            oreg = lambda it: OB + (4 * it[1] if it[0] == "m" else 36 + 4 * it[1])
            for it in seq:
                kind, k = it
                if kind == "m" and k % 4 == 0:
                    a(f"s_add_u32 s90, s94, {i*9216 + 1024*k}")
                voff, last = ("v5", k == 8) if kind == "m" else ("v41" if k < 4 else "v42", k == 4)
                imm = 1024 * (k % 4) if kind == "m" else 2048 * (k % 2)
                a(f"buffer_load_dwordx4 {vr(oreg(it),4)}, {voff}, {SWS}, s90 offen offset:{imm} sc1")
                chk.append([oreg(it) + r for r in range(4 if last else 1)])
            flat = [(j, r) for j, rs in enumerate(chk) for r in rs]
            a(f"s_waitcnt vmcnt({len(chk) - 2})\nv_max_u32 v1, v{flat[0][1]}, v{flat[1][1]}")
            for p in range(2, len(flat), 2):
                a(f"s_waitcnt vmcnt({len(chk) - 1 - flat[p+1][0]})\nv_max3_u32 v1, v1, v{flat[p][1]}, v{flat[p+1][1]}")
            a(f"v_cmp_eq_u32 vcc, -1, v1\ns_cmp_eq_u64 vcc, 0\ns_cbranch_scc1 {d}")
            a(f"s_sleep {2 if i >= 6 else 8}\ns_sub_u32 {sSPIN}, {sSPIN}, 1\ns_cbranch_scc0 {l}\ns_branch L_bail\n{d}:")
            for kind, k in seq:
                if kind == "m":
                    a(f"v_mfma_f32_32x32x16_bf16 {vr(ACC,16)}, {vr(WF+36*hh+4*k,4)}, {vr(oreg((kind,k)),4)}, {vr(ACC,16)}")
                else:
                    a(f"s_waitcnt lgkmcnt({2 if k < 4 else 0})")
                    a(f"v_mfma_f32_16x16x32_bf16 {vr(ACX,4)}, {vr(AX+4*(k%2),4)}, {vr(oreg((kind,k)),4)}, {vr(ACX,4)}")
                    if k + 2 < 5:
                        rd(k + 2)

        normalize(2 * mm + (1 - n))
        self.stamp(2, 4)
        GM, GX, GD, GE = 192, 224, 8, 3
        AC2, BF, BX = ACC, 236, 248
        vm = []
        def gm(ks):
            a(f"buffer_load_dwordx4 {vr(GM+4*(ks%GD),4)}, v5, {SWS}, s93 offen offset:{1024*(ks%4)} sc1")
            if ks % 4 == 3: a("s_add_u32 s93, s93, 4096")
            vm.append(("m", ks))
        def gx(T):
            a(f"buffer_load_dwordx4 {vr(GX+4*(T%GE),4)}, v47, {SWS}, s98 offen offset:{2048*(T%2)} sc1")
            if T % 2 == 1: a("s_add_u32 s98, s98, 4096")
            vm.append(("x", T))
        bulk = w < 2
        if bulk:
            self.srd(SWO, 18, 663552)
            self.panel_setup(2, va=48)
        a(f"s_mul_i32 s93, {sJ}, {3*36*1024}\ns_add_u32 s98, s93, {WS_G + 2*36*1024}\ns_add_u32 s93, s93, {WS_G + mm*36*1024}")
        self.wait(CV, 8, sleep=3)
        if bulk:
            self.panel_loads(SWO, L_WO0, L_WO1, L_WOX, False, 36, 2, va=48, rotate=True)
        self.stamp(1, 4)
        for ks in range(GD):
            gm(ks)
            if ks % 2 == 1 and ks // 2 < GE: gx(ks // 2)
        fy = (f"buffer_load_dwordx4 {vr(BF+2,4)}, v{BF}, {SWS}, s99 offen sc1\nbuffer_load_dwordx4 {vr(BF+6,4)}, v{BF+1}, {SWS}, s92 offen sc1\n"
              f"buffer_load_dword v{BF+10}, off, {SWS}, s88 sc1")
        if w == 0:
            a(f"v_lshlrev_b32 v{BF}, 7, v0\nv_min_u32 v{BF+1}, {7*128}, v{BF}\ns_mov_b32 s99, {WS_FY}\ns_mov_b32 s92, {WS_FY + 8192}\ns_mov_b32 s88, {WS_FY + 72*128}")
            a(fy)
        if bulk:
            a(f"s_waitcnt vmcnt({len(vm) + (3 if w == 0 else 0)})")
            self.add1(S3)
        self.wait(S3, 2, sleep=1 if bulk else 3)
        self.stamp(3, 4)
        for hh in range(4):
            for k in range(9):
                for u in range(2):
                    base, off = wrow("m", k, hh, u)
                    a(f"ds_read_b64_tr_b16 {vr(WF+36*hh+4*k+2*u,2)}, {base} offset:{off}")
                if k % 3 == 2:
                    a("s_waitcnt lgkmcnt(6)")
        self.stamp(4, 4)
        a(f"""
v_lshrrev_b32 v39, 3, v0
v_lshlrev_b32 v39, 12, v39
v_lshlrev_b32 v40, 2, v46
v_xor_b32 v40, v40, v0
v_and_b32 v40, 7, v40
v_lshl_add_u32 v39, v40, 4, v39
v_bfe_u32 v40, v0, 3, 1
v_xor_b32 v40, {n}, v40
v_lshlrev_b32 v40, 6, v40
v_lshl_add_u32 v40, v44, 3, v40
v_lshl_add_u32 v40, v43, 7, v40
v_lshl_add_u32 v43, v13, 10, v40
v_lshl_add_u32 v43, v46, 5, v43
v_add_u32 v44, 36864, v43
v_lshl_add_u32 v45, v38, 10, v40
v_add_u32 v45, {32 * mm}, v45
v_add_u32 v46, 36864, v45
s_waitcnt lgkmcnt(0)
""")
        self.add1(S2)
        if w == 0:
            ok = a.label("YOK")
            a("s_waitcnt vmcnt(0)")
            self.cmp_regs([BF + 2 + k for k in range(9)], sTAG)
            a(f"s_cbranch_scc1 {ok}")
            self.poll(fy, [BF + 2 + k for k in range(9)], sleep=12)
            a(f"{ok}:")
            self.add1(CY)
            ne = a.label("NE")
            a(f"s_cmp_lg_u32 s2, 0\ns_cbranch_scc1 {ne}")
            self.set_flag(str(WS_EPOCH))
            a(f"{ne}:")
        elif bulk:
            self.wait(CY, 1, sleep=2)
        if bulk:
            self.wait(S2, 4, sleep=1)
            self.stamp(1); self.stamp(5, 4)
            a(f"s_lshl_b32 s99, {sP}, 7\ns_add_u32 s99, s99, {WS_Y + w * 32768}\ns_mov_b32 s92, {L_Y + w * 1024}")
            lp = a.label("YL")
            a(f"s_mov_b32 s88, 5\n{lp}:")
            for k in range(6):
                a(f"s_mov_b32 m0, s92\ns_add_u32 s92, s92, 2048\nbuffer_load_dwordx4 v39, {SWS}, s99 offen sc1 lds\ns_add_u32 s99, s99, {2*32768}")
            a(f"s_sub_u32 s88, s88, 1\ns_cbranch_scc0 {lp}")
            vm.extend([("y", k) for k in range(36)])
            a("s_waitcnt vmcnt(18)")
            self.add1(S1)
        self.stamp(6, 4)
        def yrd(it):
            kind, k = it
            if kind == "m":
                b = BF + 4 * (k % 3); base, off = ("v43", 2048 * k) if k < 18 else ("v44", 2048 * (k - 18))
            else:
                b = BX + 4 * (k % 2); base, off = ("v45", 4096 * k) if k < 9 else ("v46", 4096 * (k - 9))
            a(f"ds_read_b64_tr_b16 {vr(b,2)}, {base} offset:{off}\nds_read_b64_tr_b16 {vr(b+2,2)}, {base} offset:{off+512}")
        done = {"vm": len(vm) - 18 if bulk else 0}
        def half(k0):
            seq = []
            for ks in range(k0, k0 + 18):
                seq.append(("m", ks))
                if ks % 2 == 1: seq.append(("x", ks // 2))
            for it in seq[:3]:
                yrd(it)
            for i, it in enumerate(seq):
                wv = ""
                if vm.index(it) + 1 > done["vm"]:
                    done["vm"] = vm.index(it) + 1
                    wv = f"vmcnt({len(vm) - done['vm']}) "
                a(f"s_waitcnt {wv}lgkmcnt({2 * (min(i + 3, len(seq)) - i - 1)})")
                kind, k = it
                if kind == "m":
                    a(f"v_mfma_f32_32x32x16_bf16 {vr(AC2,16)}, {vr(GM+4*(k%GD),4)}, {vr(BF+4*(k%3),4)}, {'0' if k == 0 else vr(AC2,16)}")
                    if k + GD < 36: gm(k + GD)
                else:
                    a(f"v_mfma_f32_16x16x32_bf16 {vr(AC2+16,4)}, {vr(GX+4*(k%GE),4)}, {vr(BX+4*(k%2),4)}, {'0' if k == 0 else vr(AC2+16,4)}")
                    if k + GE < 18: gx(k + GE)
                if i + 3 < len(seq):
                    yrd(seq[i + 3])
                if bulk and it == ("m", GD):
                    self.add1(S4)
        self.wait(S1, 2, sleep=1 if bulk else 2)
        self.stamp(7, 4)
        half(0)
        self.wait(S4, 2, sleep=1)
        half(18)
        self.stamp(2); self.stamp(8, 4)
        self.srd(SOUT, 22, 2359296)
        a(f"""
s_mov_b32 s73, 73728
v_mul_lo_u32 v39, v12, s73
v_lshl_add_u32 v39, v13, 5, v39
v_mul_lo_u32 v40, v37, s73
v_lshl_add_u32 v40, v38, 3, v40
s_mul_i32 s93, {sP}, 2304
s_add_u32 s93, s93, s95
s_add_u32 s93, s93, {1152 * n}
s_add_u32 s92, s93, {16 * mm * 73728}
""")
        for i in range(8):
            a(f"v_pk_mul_f32 {vr(ACC+2*i,2)}, {vr(ACC+2*i,2)}, v[10:11] op_sel:[0,1] op_sel_hi:[1,1]")
        for i in range(2):
            a(f"v_pk_mul_f32 {vr(ACX+2*i,2)}, {vr(ACX+2*i,2)}, v[36:37] op_sel_hi:[1,0]")
        prog = {0: ["N5", "C0", "C2", "C4", "C6"], 1: ["N4", "C1", "C3", "C5", "C7"],
                2: ["C0", "C2", "C4", "C6"], 3: ["C1", "C3", "N6", "C5", "C7"]}[w]
        gates = {4: 5, 5: 6, 6: 7, 7: 7}
        for it in prog:
            i = int(it[1])
            if it[0] == "N":
                normalize(i)
                self.stamp(3)
            else:
                if i >= 4:
                    self.wait(256 * gates[i], 4, sleep=2 if gates[i] == 7 else 4)
                if i == 7:
                    a(f"s_sleep {self.opt('d7', 10)}")
                if i >= 6: self.stamp(4)
                consume(i, i in (4, 5))
                if i in (2, 3): self.stamp(9, 4)
                if i in (4, 5): self.stamp(10, 4)
                if i in (6, 7): self.stamp(11, 4)
        self.stamp(6)
        fl = " sc1" if "outsc1" in self.opts else " nt" if "outnt" in self.opts else ""
        a(f"v_cvt_pk_bf16_f32 v{ACX}, v{ACX}, v{ACX+1}\nv_cvt_pk_bf16_f32 v{ACX+1}, v{ACX+2}, v{ACX+3}")
        for k in range(8):
            a(f"v_cvt_pk_bf16_f32 v{ACC+k}, v{ACC+2*k}, v{ACC+2*k+1}")
        a(f"buffer_store_dwordx4 {vr(ACC,4)}, v39, {SOUT}, s93 offen offset:{64*mm}{fl}")
        a(f"buffer_store_dwordx4 {vr(ACC+4,4)}, v39, {SOUT}, s93 offen offset:{64*mm+16}{fl}")
        a(f"s_mov_b32 exec_hi, 0\nbuffer_store_dwordx2 {vr(ACX,2)}, v40, {SOUT}, s92 offen offset:128{fl}\ns_mov_b64 exec, -1")
        self.stamp(7)

    def norm_setup(self, rows):
        self.a(f"""
v_lshlrev_b32 v5, 4, v0
v_and_b32 v12, 31, v0
v_lshrrev_b32 v13, 5, v0
v_add_u32 v8, {L_EX}, v5
v_lshlrev_b32 v9, 3, v0
v_add_u32 v9, {L_EX + 2048}, v9
v_lshlrev_b32 v10, 3, v12
v_add_u32 v10, {L_EX + 2048 + 256}, v10
v_lshl_add_u32 v14, v12, 2, v2
ds_read_b32 v4, v14 offset:{2304 + 128 * rows}
s_mul_i32 s94, {sP}, {8*9216}
s_add_u32 s94, s94, {WS_OF}
s_lshl_b32 s96, {sJ}, 10
s_add_u32 s96, s96, s94
s_lshr_b32 s97, {sJ}, 2
s_lshl_b32 s97, s97, 9
s_and_b32 s73, {sJ}, 3
s_lshl_b32 s73, s73, 2
s_add_u32 s97, s97, s73
s_add_u32 s97, s97, s94
s_add_u32 s97, s97, 8192
""")

    def normalize(self, i, wait=True):
        a = self.a
        NT = self.NT
        q = i % 4
        if wait:
            self.wait(256 * i, 4, sleep=2 if i >= 6 else 4)
        for s in range(4):
            b = NT + 12 * s; o = 10240 * q + 2560 * s
            a(f"ds_read_b128 {vr(b,4)}, v8 offset:{o}\nds_read_b128 {vr(b+4,4)}, v8 offset:{o+1024}\nds_read_b64 {vr(b+8,2)}, v9 offset:{o}")
            if s == 3:
                a("s_waitcnt lgkmcnt(9)")
            a(f"ds_read_b32 v{b+10}, v10 offset:{o}")
        a(f"s_add_u32 s90, s96, {i*9216}\ns_add_u32 s91, s97, {i*9216}\ns_movk_i32 s89, {i}")
        a("s_waitcnt lgkmcnt(8)")
        for s in range(1, 4):
            if s > 1:
                a(f"s_waitcnt lgkmcnt({4 * (3 - s)})")
            for k in range(5):
                a(f"v_pk_add_f32 {vr(NT+2*k,2)}, {vr(NT+2*k,2)}, {vr(NT+12*s+2*k,2)}")
            a(f"v_add_f32 v{NT+10}, v{NT+10}, v{NT+12*s+10}")
        if i < 4:
            self.wait(CG, 1, sleep=2)
            self.add1(CN)
        self.safety()
        a(f"v_rcp_f32 v{NT+10}, v{NT+10}\ns_nop 0\nv_mul_f32 v{NT+10}, v4, v{NT+10}")
        for k in range(5):
            a(f"v_pk_mul_f32 {vr(NT+2*k,2)}, {vr(NT+2*k,2)}, {vr(NT+10,2)} op_sel_hi:[1,0]")
        for k in range(5):
            a(f"v_cvt_pk_bf16_f32 v{NT+12+k}, v{NT+2*k}, v{NT+2*k+1}")
        a(f"v_min_u32 v{NT+12}, -2, v{NT+12}\nv_min_u32 v{NT+16}, -2, v{NT+16}")
        a(f"buffer_store_dwordx4 {vr(NT+12,4)}, v5, {SWS}, s90 offen sc1\ns_mov_b32 exec_hi, 0")
        a(f"buffer_store_dword v{NT+16}, v5, {SWS}, s91 offen sc1\ns_mov_b64 exec, -1")

    def safety(self):
        a = self.a
        NT = self.NT
        ok = a.label("SOK")
        t = NT + 12
        a(f"v_mov_b32 v{t}, 0\nv_mov_b32 v{t+1}, 0\nv_mov_b32 v{t+2}, 0\nv_mov_b32 v{t+3}, 0")
        for k in range(5):
            a(f"v_pk_fma_f32 {vr(t,2)}, {vr(NT+2*k,2)}, {vr(t+2,2)}, {vr(t,2)}")
        lo, hi = (127 - 60) << 23, (127 + 64) << 23
        if "forcefb" in self.opts:
            lo, hi = (127 + 60) << 23, (127 + 64) << 23
        a(f"v_add_f32 v{t}, v{t}, v{t+1}\nv_subrev_u32 v{t+1}, {lo:#x}, v{NT+10}\nv_cmp_u_f32 vcc, v{t}, v{t}")
        a(f"s_mov_b32 s73, {hi - lo:#x}\nv_cmp_lt_u32 s[74:75], s73, v{t+1}\ns_or_b64 vcc, vcc, s[74:75]\ns_cmp_eq_u64 vcc, 0\ns_cbranch_scc1 {ok}")
        a(f"s_call_b64 s[86:87], L_fallback\n{ok}:")

    def fallback(self):
        a = self.a
        NT = self.NT
        O, S, Q, QX, K, KX, V, MX = NT, 208, 224, 228, 230, 234, 236, 244
        vK, vKX, vV, T0 = 245, 246, 247, 248
        l1 = a.label("FB1"); l2 = a.label("FB2")
        qk = f"""
buffer_load_dwordx4 {vr(K,4)}, v{vK}, {SWS}, s[84] offen sc1
buffer_load_dword v{KX}, v{vKX}, {SWS}, s[85] offen sc1
""".replace("s[84]", "s84").replace("s[85]", "s85")
        mm = f"""
v_mfma_f32_32x32x16_bf16 {vr(S,16)}, {vr(K,4)}, {vr(Q,4)}, 0
v_mfma_f32_32x32x8_bf16 {vr(S,16)}, {vr(KX,2)}, {vr(QX,2)}, {vr(S,16)}
s_add_u32 s84, s84, 1024
s_bitcmp1_b32 s88, 0
s_cselect_b32 s73, 4, 252
s_add_u32 s85, s85, s73
"""
        a(f"""
L_fallback:
s_nop 4
v_lshlrev_b32 v{vK}, 5, v12
v_lshl_add_u32 v{vK}, v13, 4, v{vK}
v_mov_b32 v{T0}, {OOB}
v_lshlrev_b32 v{vKX}, 3, v12
v_cmp_lt_u32 vcc, 31, v0
v_subrev_u32 v{T0+1}, 64, v{vK}
v_cndmask_b32 v{vKX}, v{vKX}, v{T0}, vcc
v_cmp_eq_u32 vcc, 20, v12
s_mul_i32 s73, s89, 1536
v_cndmask_b32 v{T0+1}, v{T0}, v{T0+1}, vcc
v_cmp_gt_u32 vcc, 18, v12
s_add_u32 s73, s73, {L_QS}
v_cndmask_b32 v{vV}, v{T0+1}, v{vK}, vcc
v_mul_u32_u24 v{T0}, 48, v12
v_add_u32 v{T0}, s73, v{T0}
v_lshl_add_u32 v{T0+1}, v13, 2, v{T0}
v_lshl_add_u32 v{T0}, v13, 4, v{T0}
ds_read_b128 {vr(Q,4)}, v{T0}
ds_read_b32 v{QX}, v{T0+1} offset:32
v_mov_b32 v{QX+1}, 0
v_mov_b32 v{KX+1}, 0
v_mov_b32 v{MX}, 0xff800000
s_mov_b32 s84, {WS_K16}
s_mov_b32 s85, {WS_KX}
s_mov_b32 s88, 63
{l1}:
{qk}
s_waitcnt vmcnt(0) lgkmcnt(0)
{mm}
""")
        for k in range(8):
            a(f"v_max3_f32 v{MX}, v{MX}, v{S+2*k}, v{S+2*k+1}")
        a(f"""
s_sub_u32 s88, s88, 1
s_cbranch_scc0 {l1}
v_mov_b32 v{T0}, v{MX}
v_permlane32_swap_b32 v{MX}, v{T0}
v_max_f32 v{MX}, v{MX}, v{T0}
s_mov_b32 s84, {WS_K16}
s_mov_b32 s85, {WS_KX}
s_mov_b32 s83, {WS_VF}
s_mov_b32 s88, 63
""")
        for r in range(16):
            a(f"v_mov_b32 v{O+r}, 0")
        a(f"""
{l2}:
{qk}
buffer_load_dwordx4 {vr(V,4)}, v{vV}, {SWS}, s83 offen sc1
buffer_load_dwordx4 {vr(V+4,4)}, v{vV}, {SWS}, s83 offen offset:{VPITCH} sc1
s_waitcnt vmcnt(0)
{mm}
s_add_u32 s83, s83, {2*VPITCH}
""")
        for r in range(16):
            a(f"v_sub_f32 v{S+r}, v{S+r}, v{MX}")
        for r in range(16):
            a(f"v_exp_f32 v{S+r}, v{S+r}")
        for k in range(8):
            a(f"v_cvt_pk_bf16_f32 v{S+k}, v{S+2*k}, v{S+2*k+1}")
        a(f"""
v_mfma_f32_32x32x16_bf16 {vr(O,16)}, {vr(V,4)}, {vr(S,4)}, {vr(O,16)}
v_mfma_f32_32x32x16_bf16 {vr(O,16)}, {vr(V+4,4)}, {vr(S+4,4)}, {vr(O,16)}
s_nop 15
s_sub_u32 s88, s88, 1
s_cbranch_scc0 {l2}
""")
        a(f"v_mov_b32 v{T0}, v{O+8}\nv_mov_b32 v{NT+10}, v{O+8}\nv_permlane32_swap_b32 v{T0}, v{NT+10}\ns_nop 4\ns_setpc_b64 s[86:87]")

    def finish_stamps(self):
        a = self.a
        if self.stamps:
            a("v_mov_b32 v2, 0")
            for i in range(12):
                a(f"v_writelane_b32 v2, s{STAMPS[i]}, {i}")
            a(f"s_lshl_b32 s73, s2, 3\ns_add_u32 s73, s73, {sW}\ns_lshl_b32 s73, s73, 7\ns_add_u32 s73, s73, {WS_DBG}")
            a(f"v_lshlrev_b32 v3, 2, v0\ns_mov_b32 exec_hi, 0\nbuffer_store_dword v2, v3, {SWS}, s73 offen\ns_mov_b64 exec, -1")

    def build(self):
        a = self.a
        self.prologue()
        self.e_front()
        a("L_attn:")
        self.attention()
        self.stamp(8)
        a(f"s_cmp_ge_u32 {sW}, 4\ns_cbranch_scc1 L_last")
        labs = [a.label("TL") for _ in range(4)]
        for w in range(1, 4):
            a(f"s_cmp_eq_u32 {sW}, {w}\ns_cbranch_scc1 {labs[w]}")
        for w in range(4):
            a(f"{labs[w]}:")
            self.tail(w >> 1, w & 1)
            a("s_branch L_fin")
        a(f"L_last:\ns_waitcnt lgkmcnt(0)\nv_readfirstlane_b32 s73, v1\nv_sub_f32 v4, 1.0, v4\ns_cmp_lg_u32 s73, 3\ns_cbranch_scc1 L_fin\ns_setprio 3")
        self.normalize(7, wait=False)
        self.stamp(3)
        a("s_branch L_fin")
        a("L_lwave:")
        self.busy = 3
        self.l_front()
        self.l_mid()
        a("s_branch L_attn")
        self.fallback()
        a("L_bail:")
        if self.stamps:
            a(f"s_mov_b32 s{STAMPS[11]}, 0xdead0000")
        a("L_fin:")
        if self.opt("padto", 0):
            a(f"L_pad:\ns_sleep 2\ns_memrealtime s[78:79]\ns_waitcnt lgkmcnt(0)\ns_sub_u32 s78, s78, s76\ns_cmp_lt_u32 s78, s80\ns_cbranch_scc1 L_pad")
        self.finish_stamps()
        a("L_end:\ns_endpgm")
        body = a.finish()
        tw = self.make_tables()
        assert tw.size == 2 * self.NTAB * 256
        tab = "\n".join(".long " + ",".join(f"{x:#x}" for x in tw[i:i+16]) for i in range(0, tw.size, 16))
        hdr = open("cdna_kernels/" + NAME + ".s.ref").read().split("; Override launch")[0]
        return f"""{hdr}; @launch grid=(256,1,1) block=(512,1,1) lds={LDS_BYTES}
.amdgcn_target "amdgcn-amd-amdhsa--gfx950"
.text
.globl {NAME}_kernel
.p2align 8
.type {NAME}_kernel,@function
{NAME}_kernel:
{body}
.section .rodata,"a"
.p2align 8
.type spectral_tables,@object
spectral_tables:
{tab}
.size spectral_tables, {2*self.NTAB*1024}
.p2align 6
.amdhsa_kernel {NAME}_kernel
  .amdhsa_next_free_vgpr 256
  .amdhsa_next_free_sgpr 102
  .amdhsa_accum_offset 256
  .amdhsa_group_segment_fixed_size 0
  .amdhsa_kernarg_size 96
  .amdhsa_user_sgpr_count 2
  .amdhsa_user_sgpr_kernarg_segment_ptr 1
  .amdhsa_system_sgpr_workgroup_id_x 1
.end_amdhsa_kernel
"""


if __name__ == "__main__":
    opts = sys.argv[2:]
    g = Gen(stamps=2 if "st2" in opts else 3 if "st3" in opts else 4 if "st4" in opts else 5 if "st5" in opts else int("stamps" in opts), cyc="cyc" in opts, opts=opts)
    src = g.build()
    open(sys.argv[1], "w").write(src)
    print("nops added:", g.a.added_nops, "lines:", len(src.splitlines()))
```

```python
import sys
import numpy as np
from asmlib import Asm
import model as M

NAME = "gated_mix__spectral_gfnet__grouped_kv_mqa__prompt"

WS_EPOCH = 0
WS_FKV = 0x50000
WS_FS = 0x58000
WS_FY = 0x60000
WS_GOS = 0x68000
WS_K16 = 0x10000
WS_KX = 0x20000
WS_VF = 0x30000
WS_DBG = 0x80000
WS_G = 0x100000
WS_T = 0x200000
WS_Y = 0x500000
WS_OF = 0x800000
WS_WT = 0xB00000
WS_QDUMP = 0x1100000
WS_SIZE = 0x2000000
OOB = 0x40000000
VPITCH = 640

XP = 1040
L_X = 0
L_X2 = 64 * XP
L_WQ0 = 74752
L_WQ1 = 111616
P2SZ = 9728
L_P2Q = 148480
L_P2KV = L_P2Q - P2SZ
L_MISC = 162816
L_CT = L_MISC - 2048
(C0A, C0B, C0C, C1, CX, CK, CE, CV, CY, S1, S2, S3, CN, CW, CF, CD, CG, S4, C0D, SA, XA, XB, YA, YB, CR) = (2048 + 4 * i for i in range(25))
L_G = L_MISC + 256
L_QS = L_WQ0
L_WO0 = 0
L_WO1 = 36864
L_Y = 0
L_EX = L_QS + 12288
L_WOX = L_EX + 16 * 2560
L_XCH = L_WOX + 9216
LDS_BYTES = 163840
assert L_XCH + 8192 <= L_CT and L_P2Q + P2SZ <= L_CT and L_P2Q + P2SZ <= L_MISC and L_P2KV >= L_WQ1 + 416 * 64

SX, SWQ, SKV, SG, SWS, SWO, SOUT, SWR, SWI, STB = (f"s[{a}:{a+3}]" for a in range(28, 68, 4))
sW, sP, sJ, sTAG, sSPIN = "s68", "s69", "s70", "s71", "s72"
STAMPS = [76, 77, 78, 79, 80, 81, 100, 101, 3, 10, 11, 24]
SPIN_MAX = 400000

f32bits = lambda v: int(np.float32(v).view(np.uint32))
QSCALE_BITS = f32bits(M.QSCALE)
LOG2E_BITS = f32bits(M.LOG2E)


def vr(a, n=1):
    return f"v{a}" if n == 1 else f"v[{a}:{a+n-1}]"


class Gen:
    AQ, AQX, AO, AK, AKX, AV, AS = 24, 28, 32, 88, 120, 128, 192
    vQ, vQX, vEX, vEX2, vK, vKX, vV, vCT = 78, 79, 80, 81, 82, 83, 4, 84
    vCT2 = vCT

    def __init__(self, stamps=0, cyc=False, opts=()):
        self.a = Asm()
        self.stamps = stamps
        self.clk = "s_memtime" if cyc else "s_memrealtime"
        self.opts = set(opts)
        self.busy = 3

    def opt(self, name, default):
        for o in self.opts:
            if o.startswith(name + "="):
                return int(o.split("=")[1])
        return default

    def _st(self, i):
        self.a(f"{self.clk} s[74:75]\ns_waitcnt lgkmcnt(0)\ns_mov_b32 s{STAMPS[i]}, s74")

    def stamp(self, i, level=1):
        if self.stamps == level:
            self._st(i)
        if self.opt("pid", -1) == i and self.opt("plev", 1) == level:
            l = self.a.label("PB")
            self.a(f"s_cmp_lg_u32 {sW}, {self.opt('pw', 0)}\ns_cbranch_scc1 {l}\ns_memrealtime s[78:79]\ns_waitcnt lgkmcnt(0)\n"
                   f"s_sub_u32 s80, s78, s76\ns_add_u32 s80, s80, {self.opt('padto', 0)}\n{l}:")

    def srd(self, srd, lo, size):
        b = int(srd[2:].split(":")[0])
        self.a(f"s_mov_b32 s{b}, s{lo}\ns_mov_b32 s{b+1}, s{lo+1}\ns_mov_b32 s{b+2}, {size}\ns_mov_b32 s{b+3}, 0x20000")

    def add1(self, off, base="v2"):
        self.a(f"s_mov_b64 exec, 1\nds_add_u32 {base}, v3 offset:{off}\ns_mov_b64 exec, -1")

    def wait(self, off, target, sleep=1, base="v2", idle=False):
        a = self.a
        l = a.label("LW"); d = a.label("LWD")
        if idle and "noidle" not in self.opts:
            a("s_setprio 0")
        a(f"{l}:\nds_read_b32 v1, {base} offset:{off}\ns_waitcnt lgkmcnt(0)\nv_readfirstlane_b32 s73, v1")
        a(f"s_cmp_ge_u32 s73, {target}\ns_cbranch_scc1 {d}")
        if sleep:
            a(f"s_sleep {sleep}")
        a(f"s_sub_u32 {sSPIN}, {sSPIN}, 1\ns_cbranch_scc0 {l}\ns_branch L_bail\n{d}:")
        if idle and "noidle" not in self.opts:
            a(f"s_setprio {self.busy}")

    def cmp_regs(self, regs, val, op="ne"):
        a = self.a
        a(f"v_cmp_{op}_u32 vcc, {val}, v{regs[0]}")
        for r in regs[1:]:
            a(f"v_cmp_{op}_u32 s[74:75], {val}, v{r}\ns_or_b64 vcc, vcc, s[74:75]")
        a("s_cmp_eq_u64 vcc, 0")

    def poll(self, loads, regs, sleep=2):
        a = self.a
        l = a.label("PL"); d = a.label("PD")
        a(f"{l}:")
        a(loads)
        a("s_waitcnt vmcnt(0)")
        self.cmp_regs(regs, sTAG)
        a(f"s_cbranch_scc1 {d}\ns_sleep {sleep}\ns_sub_u32 {sSPIN}, {sSPIN}, 1\ns_cbranch_scc0 {l}\ns_branch L_bail\n{d}:")

    def set_flag(self, soff):
        self.a(f"v_mov_b32 v1, {sTAG}\ns_mov_b64 exec, 1\nbuffer_store_dword v1, off, {SWS}, {soff} sc1\ns_mov_b64 exec, -1")

    def flag4(self, dst, idx, base):
        self.a(f"s_lshr_b32 {dst}, {idx}, 2\ns_lshl_b32 {dst}, {dst}, 7\ns_and_b32 s73, {idx}, 3\ns_lshl_b32 s73, s73, 2\n"
               f"s_add_u32 {dst}, {dst}, s73\ns_add_u32 {dst}, {dst}, {base}")

    def go_wait(self, base, vt, sleep):
        self.a(f"s_and_b32 s92, s2, 7\ns_lshl_b32 s92, s92, 7\ns_add_u32 s92, s92, {base}")
        self.poll(f"s_mov_b64 exec, 1\nbuffer_load_dword v{vt}, off, {SWS}, s92 sc1\ns_waitcnt vmcnt(0)\nv_readfirstlane_b32 s73, v{vt}\ns_mov_b64 exec, -1\nv_mov_b32 v{vt}, s73", [vt], sleep=sleep)

    def tag(self):
        self.a(f"s_mul_i32 {sTAG}, {sTAG}, 0x9E3779B1\ns_add_u32 {sTAG}, {sTAG}, 0x7F4A7C15")

    def prologue(self):
        a = self.a
        a(f"""
s_cmp_ge_u32 s2, 256
s_cbranch_scc1 L_end
s_load_dwordx16 s[4:19], s[0:1], 0
s_load_dwordx8 s[20:27], s[0:1], 64
v_lshrrev_b32 v1, 6, v0
v_and_b32 v0, 63, v0
v_readfirstlane_b32 {sW}, v1
s_and_b32 {sP}, s2, 31
s_lshr_b32 {sJ}, s2, 5
""")
        if self.stamps:
            a(f"{self.clk} s[74:75]")
        if self.opt("padto", 0):
            a(f"s_memrealtime s[76:77]\ns_mov_b32 s80, {self.opt('padto', 0)}")
        a(f"""
v_lshl_add_u32 v4, v1, 6, v0
v_mov_b32 v2, {L_CT}
v_mov_b32 v3, 1
v_lshlrev_b32 v7, 4, v0
s_mul_i32 s94, {sP}, 2304
s_mul_i32 s95, {sJ}, 144
s_lshl_b32 s91, {sJ}, 2
s_add_u32 s91, s91, {sW}
s_mov_b32 s30, 2359296
s_mov_b32 s31, 0x20000
s_mov_b32 {sSPIN}, {SPIN_MAX}
s_cmp_ge_u32 {sW}, 4
s_waitcnt lgkmcnt(0)
""")
        if self.stamps:
            a(f"s_mov_b32 s{STAMPS[0]}, s74")
            for r in STAMPS[1:]:
                a(f"s_mov_b32 s{r}, 0")
        a("s_cbranch_scc1 L_lwave")

    def kv_addr(self):
        a = self.a
        a(f"""
v_and_b32 v84, 31, v0
v_lshrrev_b32 v85, 5, v0
v_lshlrev_b32 v{self.vK}, 5, v84
v_lshl_add_u32 v{self.vK}, v85, 4, v{self.vK}
v_mov_b32 v86, {OOB}
v_lshlrev_b32 v{self.vKX}, 3, v84
v_cmp_lt_u32 vcc, 31, v0
v_subrev_u32 v87, 64, v{self.vK}
v_cndmask_b32 v{self.vKX}, v{self.vKX}, v86, vcc
v_cmp_eq_u32 vcc, 20, v84
s_and_b32 s73, {sW}, 3
v_cndmask_b32 v87, v86, v87, vcc
v_cmp_gt_u32 vcc, 18, v84
s_lshl_b32 s96, s73, 14
v_cndmask_b32 v{self.vV}, v87, v{self.vK}, vcc
s_add_u32 s96, s96, {WS_K16}
s_lshl_b32 s97, s73, 11
s_add_u32 s97, s97, {WS_KX}
s_mul_i32 s98, s73, {32*VPITCH}
s_add_u32 s98, s98, {WS_VF}
""")

    def ld_k(self, t, slot):
        adv = "\ns_add_u32 s96, s96, 4096" if t % 4 == 3 else ""
        k = f"buffer_load_dwordx4 {vr(self.AK+4*slot,4)}, v{self.vK}, {SWS}, s96 offen offset:{1024*(t%4)} sc1" + adv
        if t % 2:
            return (k,)
        return (k, f"buffer_load_dwordx2 {vr(self.AKX+slot,2)}, v{self.vKX}, {SWS}, s97 offen offset:{128*t} sc1")

    def ld_v(self, t, slot):
        adv = f"\ns_add_u32 s98, s98, {4*VPITCH}" if t % 2 == 1 else ""
        o = 2 * VPITCH * (t % 2)
        return (f"buffer_load_dwordx4 {vr(self.AV+8*slot,4)}, v{self.vV}, {SWS}, s98 offen offset:{o} sc1",
                f"buffer_load_dwordx4 {vr(self.AV+8*slot+4,4)}, v{self.vV}, {SWS}, s98 offen offset:{o+VPITCH} sc1" + adv)

    NFIRST = 4
    NLD1 = 14

    def kv_loads(self):
        for t in range(self.NFIRST):
            for x in self.ld_k(t, t) + self.ld_v(t, t):
                self.a(x)

    def e_front(self):
        a = self.a
        a("s_setprio 3\ns_mov_b32 s28, s4\ns_mov_b32 s29, s5")
        for k in range(8):
            a(f"""
s_and_b32 s91, s91, 31
s_mul_i32 s90, s91, 73728
s_mul_i32 m0, s91, {XP}
s_add_u32 s90, s90, s94
s_add_u32 s91, s91, 4
buffer_load_dwordx4 v7, {SX}, s90 offen lds
s_add_u32 m0, m0, {32*XP - 1152}
s_nop 0
buffer_load_dwordx4 v7, {SX}, s90 offen offset:1152 lds
""")
        a(f"""
s_load_dword {sTAG}, s[26:27], {WS_EPOCH}
v_lshrrev_b32 v20, 3, v0
s_mov_b32 s73, 73728
v_mul_lo_u32 v21, v20, s73
v_lshrrev_b32 v22, 4, v0
v_xor_b32 v22, v22, v0
v_and_b32 v22, 7, v22
v_lshl_add_u32 v21, v22, 4, v21
s_and_b32 s90, {sW}, 1
s_mul_i32 s90, s90, {16*73728}
s_lshr_b32 s73, {sW}, 1
s_mul_i32 s73, s73, 1152
s_add_u32 s90, s90, s73
s_add_u32 s90, s90, s94
s_add_u32 s90, s90, 1024
s_lshl_b32 s91, {sW}, 11
s_add_u32 m0, s91, {L_X2}
v_xor_b32 v22, 64, v21
buffer_load_dwordx4 v21, {SX}, s90 offen lds
s_add_u32 m0, s91, {L_X2 + 1024}
s_add_u32 s90, s90, {8*73728}
buffer_load_dwordx4 v22, {SX}, s90 offen lds
s_cmp_lt_u32 {sJ}, 4
s_cselect_b32 s36, s14, s16
s_cselect_b32 s37, s15, s17
s_mov_b32 s38, 20736
s_mov_b32 s39, 0x20000
v_mul_u32_u24 v5, 36, v4
v_lshlrev_b32 v6, 1, v4
s_and_b32 s73, {sJ}, 3
s_lshl_b32 s92, s73, 3
""")
        self.srd(SG, 20, 1152)
        s = a.label("KV3")
        a(f"""
buffer_load_dwordx3 v[24:26], v5, {SKV}, s92 offen
buffer_load_ushort v27, v6, {SG}, 0 offen
v_add_u32 v5, {256*36}, v5
buffer_load_dwordx3 v[28:30], v5, {SKV}, s92 offen
buffer_load_ushort v31, v6, {SG}, 0 offen offset:512
s_cmp_gt_u32 {sW}, 0
s_cbranch_scc1 {s}
v_add_u32 v5, {256*36}, v5
buffer_load_dwordx3 v[40:42], v5, {SKV}, s92 offen
buffer_load_ushort v43, v6, {SG}, 0 offen offset:1024
{s}:
s_barrier
""")
        self.stamp(6, 3)
        self.srd(SWS, 26, WS_SIZE)
        a(f"""
v_lshrrev_b32 v7, 7, v4
v_lshlrev_b32 v7, 7, v7
v_lshl_add_u32 v7, v4, 4, v7
v_add_u32 v7, {L_P2KV}, v7
v_and_b32 v14, 15, v0
v_lshrrev_b32 v15, 4, v0
v_and_b32 v17, 31, v0
v_lshrrev_b32 v18, 5, v0
v_bfe_u32 v22, v0, 2, 2
v_lshlrev_b32 v22, 4, v22
v_and_b32 v23, 1, v0
v_lshl_add_u32 v22, v23, 3, v22
v_mul_u32_u24 v16, 2176, v15
v_add_u32 v16, v16, v22
v_lshl_add_u32 v12, v15, 7, v22
v_add_u32 v12, {512*16 + 512}, v12
v_add_u32 v19, {L_P2KV}, v16
v_add_u32 v10, {L_P2KV}, v12
v_add_u32 v16, {L_P2Q}, v16
v_add_u32 v12, {L_P2Q}, v12
s_lshl_b32 s73, {sW}, 4
v_add_u32 v21, s73, v14
v_mul_u32_u24 v20, {XP}, v21
v_lshl_add_u32 v20, v15, 8, v20
v_lshrrev_b32 v22, 1, v21
v_xor_b32 v22, v22, v15
v_and_b32 v22, 7, v22
v_lshlrev_b32 v22, 4, v22
v_lshl_add_u32 v11, v21, 7, v22
v_add_u32 v11, {L_X2}, v11
v_xor_b32 v9, 64, v11
s_lshl_b32 s90, {sP}, 1
s_lshr_b32 s73, {sW}, 1
s_add_u32 s90, s90, s73
s_and_b32 s91, {sW}, 1
s_mov_b32 s92, {(LOG2E_BITS | 0x80000000):#x}
s_lshl_b32 s99, {sW}, 6
s_add_u32 s99, s99, {L_G}
""")
        RG, XF, AK_ = 32, 160, 252
        def wrd(b1, b2, T, dst):
            base, off = (b1, T * 128) if T < 16 else (b2, (T - 16) * 512)
            a(f"ds_read_b64_tr_b16 {vr(dst,2)}, {base} offset:{off}\nds_read_b64_tr_b16 {vr(dst+2,2)}, {base} offset:{off+64}")
        def land():
            s = a.label("KW")
            a(f"s_waitcnt vmcnt(0)\nds_write_b128 v7, v[24:27]\nds_write_b128 v7, v[28:31] offset:{4096+256}")
            a(f"s_cmp_gt_u32 {sW}, 0\ns_cbranch_scc1 {s}\nds_write_b128 v7, v[40:43] offset:{8192+512}\n{s}:")
            self.stamp(1, 3)
            self.add1(CX)
            self.wait(CX, 4, sleep=0)
            self.tag()
            self.stamp(2, 3)
        def kv_gemm(swap):
            acc = vr(AK_, 4)
            def rd(T):
                wrd("v19", "v10", T, 44 + 4 * (T % 5))
                if T < 16:
                    a(f"ds_read_b128 {vr(XF+4*T,4)}, v20 offset:{T*16}")
                else:
                    a(f"ds_read_b128 {vr(XF+4*T,4)}, {'v11' if T == 16 else 'v9'}")
            for T in range(4):
                rd(T)
            for T in range(18):
                if T + 4 < 18:
                    rd(T + 4)
                a(f"s_waitcnt lgkmcnt({3 * (min(T + 5, 18) - T - 1)})")
                W, X = vr(44 + 4 * (T % 5), 4), vr(XF + 4 * T, 4)
                A, B = (X, W) if swap else (W, X)
                a(f"v_mfma_f32_16x16x32_bf16 {acc}, {A}, {B}, {'0' if T == 0 else acc}")
            self.add1(CK)
        kpath = a.label("EK"); done = a.label("EKD")
        a(f"s_cmp_lt_u32 {sJ}, 4\ns_cbranch_scc1 {kpath}")
        a(f"""
s_lshl_b32 s90, s90, 1
s_add_u32 s90, s90, s91
s_mul_i32 s90, s90, {VPITCH}
s_add_u32 s90, s90, {WS_VF}
s_sub_u32 s73, {sJ}, 4
s_lshl_b32 s73, s73, 2
v_add_u32 v36, s73, v14
v_cmp_eq_u32 vcc, 7, v14
v_lshrrev_b32 v37, 1, v15
v_cndmask_b32 v36, v36, 18, vcc
v_lshlrev_b32 v36, 5, v36
v_lshl_add_u32 v36, v37, 3, v36
v_and_b32 v37, 1, v15
v_lshl_add_u32 v36, v37, 4, v36
v_mov_b32 v37, 0x3f803f80
v_lshl_add_u32 v38, v15, 4, s99
s_mov_b32 s88, 0x000f000f
s_cmp_eq_u32 {sJ}, 7
s_cmov_b32 s88, 0x00bf00bf
""")
        land()
        kv_gemm(True)
        a(f"""
v_cvt_pk_bf16_f32 v22, v{AK_}, v{AK_+1}
v_cvt_pk_bf16_f32 v23, v{AK_+2}, v{AK_+3}
v_cndmask_b32 v22, v22, v37, vcc
v_cndmask_b32 v23, v23, v37, vcc
s_mov_b32 exec_lo, s88
s_mov_b32 exec_hi, s88
buffer_store_dwordx2 v[22:23], v36, {SWS}, s90 offen sc1
s_mov_b64 exec, -1
""")
        for r in range(4):
            a(f"v_mul_f32 v{AK_+r}, s92, v{AK_+r}\nv_exp_f32 v{AK_+r}, v{AK_+r}")
        for r in range(4):
            a(f"v_add_f32 v{AK_+r}, 1.0, v{AK_+r}\nv_rcp_f32 v{AK_+r}, v{AK_+r}")
        a(f"""
s_mov_b32 exec_lo, 0x00400040
s_mov_b32 exec_hi, 0x00400040
ds_write_b128 v38, {vr(AK_,4)}
s_branch {done}
{kpath}:
s_lshl_b32 s91, s91, 4
v_add_u32 v37, s91, v14
v_lshlrev_b32 v36, 5, v37
v_lshlrev_b32 v37, 3, v37
v_lshl_add_u32 v38, v14, 2, s99
s_lshl_b32 s88, s90, 10
s_lshl_b32 s73, {sJ}, 3
s_add_u32 s88, s88, s73
s_add_u32 s88, s88, {WS_K16}
s_lshl_b32 s90, {sP}, 8
s_lshr_b32 s73, {sW}, 1
s_lshl_b32 s73, s73, 2
s_add_u32 s90, s90, s73
s_add_u32 s90, s90, {WS_KX}
s_cmp_lg_u32 {sJ}, 3
s_cmov_b32 s90, {OOB}
s_mov_b32 s91, {QSCALE_BITS:#x}
""")
        land()
        kv_gemm(False)
        a(f"""
v_mul_f32 v39, s92, v{AK_+2}
v_mul_f32 v{AK_}, s91, v{AK_}
v_mul_f32 v{AK_+1}, s91, v{AK_+1}
v_mul_f32 v{AK_+2}, s91, v{AK_+2}
v_mul_f32 v{AK_+3}, s91, v{AK_+3}
v_cvt_pk_bf16_f32 v22, v{AK_}, v{AK_+1}
v_cvt_pk_bf16_f32 v23, v{AK_+2}, v{AK_+3}
s_mov_b64 exec, 0xffff
buffer_store_dwordx2 v[22:23], v36, {SWS}, s88 offen sc1
s_mov_b32 exec_lo, 0xffff0000
buffer_store_dword v22, v37, {SWS}, s90 offen sc1
v_exp_f32 v39, v39
s_nop 0
v_add_f32 v39, 1.0, v39
v_rcp_f32 v39, v39
s_nop 0
ds_write_b32 v38, v39
{done}:
s_mov_b64 exec, -1
""")
        self.stamp(7, 3)
        a(f"""
s_lshl_b32 s73, {sP}, 3
s_add_u32 s73, s73, {sJ}
s_lshl_b32 s73, s73, 4
s_add_u32 s91, s73, {WS_FKV}
v_bfe_u32 v22, v0, 2, 2
v_lshl_add_u32 v19, v18, 3, v22
v_lshlrev_b32 v19, 6, v19
v_bfe_u32 v22, v0, 4, 1
v_lshl_add_u32 v19, v22, 5, v19
v_and_b32 v22, 3, v0
v_lshl_add_u32 v19, v22, 3, v19
s_and_b32 s73, {sW}, 1
s_mul_i32 s73, s73, {L_WQ1 - L_WQ0}
s_add_u32 s73, s73, {L_WQ0}
v_add_u32 v19, s73, v19
s_lshr_b32 s73, {sW}, 1
s_lshl_b32 s73, s73, 5
v_add_u32 v21, s73, v17
v_mul_u32_u24 v13, {XP}, v21
v_lshl_add_u32 v13, v18, 4, v13
v_mul_u32_u24 v26, 48, v4
v_add_u32 v26, {L_QS + 36}, v26
v_lshrrev_b32 v22, 1, v21
v_xor_b32 v22, v22, v18
v_and_b32 v22, 7, v22
v_lshlrev_b32 v22, 4, v22
v_lshl_add_u32 v6, v21, 7, v22
v_add_u32 v6, {L_X2}, v6
v_xor_b32 v7, 32, v6
v_xor_b32 v8, 64, v6
v_xor_b32 v9, 0x60, v6
v_mul_u32_u24 v22, 48, v21
v_add_u32 v22, {L_QS}, v22
v_lshl_add_u32 v23, v18, 3, v22
v_mul_u32_u24 v24, 3044, v18
v_add_u32 v24, v24, v22
s_lshl_b32 s73, {sW}, 4
v_add_u32 v25, s73, v14
v_mul_u32_u24 v25, 48, v25
v_lshl_add_u32 v25, v15, 3, v25
v_add_u32 v25, {L_QS + 3*3072 + 20}, v25
v_mov_b32 v27, 0
v_lshlrev_b32 v28, 4, v0
s_lshl_b32 s93, {sW}, 10
s_add_u32 s93, s93, {WS_FKV}
""")
        self.kv_addr()
        nf = a.label("NF")
        a(f"s_waitcnt vmcnt(0)\ns_mov_b64 exec, 1\nds_add_rtn_u32 v1, v2, v3 offset:{CF}\ns_mov_b64 exec, -1\ns_waitcnt lgkmcnt(0)")
        a(f"v_readfirstlane_b32 s73, v1\ns_cmp_lg_u32 s73, 3\ns_cbranch_scc1 {nf}")
        self.set_flag("s91")
        a(f"{nf}:")
        self.stamp(3, 3)
        RX, AM, AXQ = 64, 232, 248
        def rdm(t):
            b = RG + 8 * (t % 4)
            a(f"ds_read_b64_tr_b16 {vr(b,2)}, v19 offset:{t*1024}\nds_read_b64_tr_b16 {vr(b+2,2)}, v19 offset:{t*1024+256}")
            a(f"ds_read_b128 {vr(b+4,4)}, v13 offset:{t*32}" if t < 32 else f"ds_read_b128 {vr(b+4,4)}, v{6+t-32}")
        def mm(t):
            b = RG + 8 * (t % 4)
            a(f"v_mfma_f32_32x32x16_bf16 {vr(AM,16)}, {vr(b,4)}, {vr(b+4,4)}, {'0' if t == 0 else vr(AM,16)}")
        def stage(t0, t1):
            for t in range(t0, min(t0 + 3, t1)):
                rdm(t)
            for t in range(t0, t1):
                if t + 3 < t1:
                    rdm(t + 3)
                a(f"s_waitcnt lgkmcnt({3 * (min(t + 4, t1) - t - 1)})")
                mm(t)
        self.wait(C0A, 2, sleep=0)
        self.stamp(4, 3)
        stage(0, 12)
        self.add1(CE)
        self.wait(C0B, 2, sleep=0)
        flags = f"buffer_load_dword v84, v28, {SWS}, s93 offen sc1"
        stage(12, 20)
        self.wait(C0D, 2, sleep=0)
        stage(20, 28)
        self.wait(C0C, 2, sleep=0)
        self.stamp(9, 3)
        a(flags)
        seq = []
        xs = list(range(18))
        for t in range(28, 36):
            seq.append(("m", t))
            for _ in range(3 if t < 30 else 2):
                seq.append(("x", xs.pop(0)))
        assert not xs
        cost = lambda it: 3 if it[0] == "m" else 2
        def issue(it):
            if it[0] == "m": rdm(it[1])
            else: wrd("v16", "v12", it[1], RX + 4 * (it[1] % 3))
        AH = 3
        for it in seq[:AH]:
            issue(it)
        a(f"ds_read_b32 v31, v2 offset:{CE}")
        for i, it in enumerate(seq):
            ahead = sum(cost(x) for x in seq[i + 1:i + AH]) + (1 if i < AH else 0)
            a(f"s_waitcnt lgkmcnt({ahead})")
            if it[0] == "m":
                mm(it[1])
            else:
                T = it[1]
                a(f"v_mfma_f32_16x16x32_bf16 {vr(AXQ,4)}, {vr(RX+4*(T%3),4)}, {vr(XF+4*T,4)}, {'0' if T == 0 else vr(AXQ,4)}")
            if i + AH < len(seq):
                issue(seq[i + AH])
        self.stamp(8, 3)
        miss = a.label("KM")
        a("s_waitcnt vmcnt(0)")
        self.cmp_regs([84], sTAG)
        a(f"s_cselect_b32 s89, 1, 0\ns_cbranch_scc0 {miss}")
        self.kv_loads()
        a(f"{miss}:")
        self.stamp(11, 3)
        ok = a.label("CEOK")
        a(f"v_readfirstlane_b32 s73, v31\ns_cmp_ge_u32 s73, 4\ns_cbranch_scc1 {ok}")
        self.wait(CE, 4, sleep=0)
        a(f"{ok}:")
        a(f"ds_write_b32 v26, v27\nv_cvt_pk_bf16_f32 v{AXQ}, v{AXQ}, v{AXQ+1}\nv_cvt_pk_bf16_f32 v{AXQ+1}, v{AXQ+2}, v{AXQ+3}")
        a(f"s_mov_b32 exec_hi, 0\nds_write2_b32 v25, v{AXQ}, v{AXQ+1} offset0:0 offset1:1\ns_mov_b64 exec, -1")
        m1 = a.label("QM1"); md = a.label("QMD")
        a(f"s_bitcmp1_b32 {sW}, 0\ns_cbranch_scc1 {m1}")
        off = lambda c: (c // 18) * 3072 + (c % 18) * 2
        for m in range(2):
            if m == 1:
                a(f"s_branch {md}\n{m1}:")
            for k in range(8):
                c0 = 32 * m + 8 * (k // 2) + 2 * (k % 2)
                d = off(c0 + 4) - off(c0)
                assert d in (8, 3044)
                a(f"v_cvt_pk_bf16_f32 v{AM+k}, v{AM+2*k}, v{AM+2*k+1}")
                a(f"ds_write_b32 {'v23' if d == 8 else 'v24'}, v{AM+k} offset:{off(c0)}")
        a(f"{md}:")
        self.add1(C1)
        have = a.label("KH")
        a(f"s_cmp_eq_u32 s89, 1\ns_cbranch_scc1 {have}")
        self.poll(flags, [84], sleep=12)
        self.kv_loads()
        a(f"{have}:")
        self.stamp(10, 3); self.stamp(10)
        a(f"s_setprio 2\ns_mov_b32 s99, {OOB}\nv_mov_b32 v232, v2")

    def panel_setup(self, nw, va=14):
        self.a(f"""
v_lshrrev_b32 v{va}, 2, v0
v_mul_u32_u24 v{va}, 1152, v{va}
v_and_b32 v{va+1}, 3, v0
v_lshl_add_u32 v{va}, v{va+1}, 4, v{va}
v_mul_u32_u24 v{va+1}, 1152, v0
s_and_b32 s73, {sW}, {nw-1}
s_mul_i32 s84, s73, {16*1152}
s_add_u32 s84, s84, s95
s_lshl_b32 s85, s73, 10
""")

    def panel_loads(self, srd, l0, l1, lx, padded, end, nw, va=14, rotate=False):
        a = self.a
        lp = a.label("PNL")
        if rotate:
            a(f"s_lshr_b32 s73, {sP}, 3\ns_mul_i32 s82, s73, {8*1024}\ns_add_u32 s85, s85, s82\ns_mul_i32 s82, s73, {8*16*1152}\ns_add_u32 s84, s84, s82\ns_mov_b32 s88, {end//nw - 1}")
        a(f"""
{lp}:
s_add_u32 m0, s85, {l0}
s_add_u32 s83, s84, 128
buffer_load_dwordx4 v{va}, {srd}, s84 offen lds
s_add_u32 m0, s85, {l1 - 64}
s_lshr_b32 s82, s85, 2
buffer_load_dwordx4 v{va}, {srd}, s84 offen offset:64 lds
""")
        if padded:
            a("s_lshr_b32 s73, s85, 13\ns_lshl_b32 s73, s73, 7\ns_add_u32 s82, s82, s73")
        a(f"""
s_add_u32 m0, s82, {lx}
s_mov_b64 exec, 0xffff
buffer_load_dwordx4 v{va+1}, {srd}, s83 offen lds
s_mov_b64 exec, -1
s_add_u32 s85, s85, {1024*nw}
s_add_u32 s84, s84, {16*nw*1152}
s_cmp_lt_u32 s85, {1024*end}
""")
        if rotate:
            a(f"s_cselect_b32 s82, 0, {1024*end}\ns_cselect_b32 s83, 0, {16*1152*end}\ns_sub_u32 s85, s85, s82\ns_sub_u32 s84, s84, s83\ns_sub_u32 s88, s88, 1\ns_cbranch_scc0 {lp}")
        else:
            a(f"s_cbranch_scc1 {lp}")

    def l_front(self):
        a = self.a
        a(f"""
s_load_dword {sTAG}, s[26:27], {WS_EPOCH}
v_lshl_add_u32 v5, v0, 2, v2
v_mov_b32 v6, 0
ds_write_b32 v5, v6 offset:2048
v_lshlrev_b32 v5, 3, v4
v_add_u32 v5, {L_CT - 2048}, v5
v_mov_b32 v7, 0
ds_write_b64 v5, v[6:7]
s_sub_u32 s99, {sW}, 4
v_and_b32 v18, 31, v0
v_lshrrev_b32 v19, 5, v0
s_lshl_b32 s89, s99, 3
s_add_u32 s89, s89, {sJ}
s_cmp_ge_u32 s89, 18
s_cselect_b32 s89, 99, s89
v_bfe_u32 v20, v0, 2, 1
v_lshlrev_b32 v20, 4, v20
v_bfe_u32 v21, v0, 3, 2
v_lshl_add_u32 v20, v21, 2, v20
v_and_b32 v21, 3, v0
v_add_u32 v20, v20, v21
""")
        if "ipf" in self.opts:
            n4 = a.label("NPF")
            a(f"""
s_cmp_lg_u32 {sW}, 6
s_cbranch_scc1 {n4}
s_getpc_b64 s[64:65]
L_pc0:
s_sub_u32 s64, s64, L_pc0-{NAME}_kernel
s_subb_u32 s65, s65, 0
s_mov_b32 s66, L_end-{NAME}_kernel
s_mov_b32 s67, 0x20000
s_lshr_b32 s73, s2, 3
v_lshlrev_b32 v8, 12, v0
s_lshl_b32 s73, s73, 7
buffer_load_dword v9, v8, {STB}, s73 offen
s_getpc_b64 s[64:65]
s_add_u32 s64, s64, spectral_tables@rel32@lo+4
s_addc_u32 s65, s65, spectral_tables@rel32@hi+12
s_mov_b32 s66, {2*self.NTAB*1024}
s_nop 1
buffer_load_dword v10, v8, {STB}, s73 offen
{n4}:
""")
        self.srd(SWS, 26, WS_SIZE)
        self.srd(SWQ, 12, 663552)
        FPRE = self.opt("fpre", 8)
        def fsetup():
            a(f"""
s_lshl_b32 s73, s89, 5
v_add_u32 v44, s73, v18
v_lshrrev_b32 v45, 1, v44
v_and_b32 v46, 1, v44
v_cmp_eq_u32 vcc, 1, v44
v_mov_b32 v47, 288
v_cndmask_b32 v45, v45, v47, vcc
v_cndmask_b32 v46, v46, 0, vcc
v_and_b32 v47, 1, v45
v_lshlrev_b32 v47, 31, v47
v_or_b32 v17, 1.0, v47
v_cvt_f32_u32 v45, v45
v_cvt_f32_u32 v46, v46
v_mul_f32 v45, {f32bits(1/576):#x}, v45
v_mul_f32 v46, 0x3e800000, v46
v_lshlrev_b32 v47, 3, v19
v_cvt_f32_u32 v47, v47
v_fma_f32 v46, v47, v45, v46
v_mul_f32 v55, 0x41800000, v45
""")
            for jj in range(8):
                a(f"s_mov_b32 s73, {f32bits(jj):#x}\nv_fma_f32 v{56+jj}, s73, v45, v46")
        def fgen(t):
            if t:
                a(f"s_mov_b32 s73, {f32bits(t):#x}")
            for jj in range(8):
                if t:
                    a(f"v_fma_f32 v{64+jj}, s73, v55, v{56+jj}\nv_cos_f32 v{64+jj}, v{64+jj}")
                else:
                    a(f"v_cos_f32 v{64+jj}, v{56+jj}")
            for k in range(4):
                a(f"v_cvt_pk_bf16_f32 v{104+4*t+k}, v{64+2*k}, v{65+2*k}")
        npre = a.label("NPRE"); n7 = a.label("NW7")
        a(f"v_mov_b32 v23, 0\ns_mov_b32 s98, {OOB}")
        if "wearly" in self.opts:
            a(f"s_cmp_lg_u32 {sW}, 7\ns_cbranch_scc1 {n7}")
            self.wt_loads()
        a(f"{n7}:\ns_cmp_eq_u32 s89, 99\ns_cbranch_scc1 {npre}")
        fsetup()
        for t in range(FPRE):
            fgen(t)
        a(f"{npre}:\ns_waitcnt lgkmcnt(0)")
        self.tag()
        a("s_barrier")
        wqd = a.label("WQD")
        a(f"s_cmp_lt_u32 {sW}, 6\ns_cbranch_scc1 {wqd}")
        self.panel_setup(2)
        self.panel_loads(SWQ, L_WQ0, L_WQ1, L_P2Q, True, 20, 2)
        a("s_waitcnt vmcnt(12)")
        self.add1(C0A)
        self.panel_loads(SWQ, L_WQ0, L_WQ1, L_P2Q, True, 26, 2)
        self.wait(CK, 4, sleep=0)
        self.panel_loads(SWQ, L_WQ0, L_WQ1, L_P2Q, True, 36, 2)
        self.stamp(6, 3)
        a("s_waitcnt vmcnt(24)")
        self.add1(C0B)
        a("s_waitcnt vmcnt(12)")
        self.add1(C0D)
        if "wmid" in self.opts:
            n7 = a.label("NM7"); d7 = a.label("DM7")
            a(f"s_cmp_lg_u32 {sW}, 7\ns_cbranch_scc1 {n7}")
            self.wt_loads()
            a(f"s_waitcnt vmcnt(16)\ns_branch {d7}\n{n7}:\ns_waitcnt vmcnt(0)\n{d7}:")
        else:
            a("s_waitcnt vmcnt(0)")
        self.add1(C0C)
        self.stamp(1, 3)
        a(f"{wqd}:")
        nod = a.label("NOD")
        a(f"s_cmp_eq_u32 s89, 99\ns_cbranch_scc1 {nod}")
        for t in range(FPRE, 18):
            fgen(t)
        self.stamp(9, 3)
        a(f"""
v_mul_u32_u24 v25, {XP}, v20
v_lshl_add_u32 v25, v19, 4, v25
v_lshrrev_b32 v22, 1, v20
v_xor_b32 v22, v22, v19
v_and_b32 v22, 7, v22
v_lshlrev_b32 v22, 4, v22
v_lshl_add_u32 v6, v20, 7, v22
v_add_u32 v6, {L_X2}, v6
v_xor_b32 v7, 32, v6
v_xor_b32 v8, 64, v6
v_xor_b32 v9, 0x60, v6
v_lshlrev_b32 v22, 12, v18
v_lshl_add_u32 v22, v19, 5, v22
s_lshl_b32 s90, s89, 17
s_lshl_b32 s73, {sP}, 7
s_add_u32 s90, s90, s73
s_add_u32 s90, s90, {WS_T}
""")
        RG = 44
        def frag(t, n, q):
            return vr(RG + 16 * (t % 3) + 8 * n + 4 * q, 4)
        def rd(t):
            for n in range(2):
                for q in range(2):
                    ks = t + 18 * q
                    if ks < 32:
                        a(f"ds_read_b128 {frag(t,n,q)}, v25 offset:{n*32*XP + ks*32}")
                    else:
                        a(f"ds_read_b128 {frag(t,n,q)}, v{6+ks-32} offset:{n*4096}")
        def dft(t0, t1):
            for t in range(t0, min(t0 + 2, t1)):
                rd(t)
            for t in range(t0, t1):
                if t + 2 < t1:
                    rd(t + 2)
                a(f"s_waitcnt lgkmcnt({4 * (min(t+3, t1) - t - 1)})")
                for n in range(2):
                    for q in range(2):
                        acc = vr(176 + 32 * n + 16 * q, 16)
                        a(f"v_mfma_f32_32x32x16_bf16 {acc}, {frag(t,n,q)}, {vr(104+4*t,4)}, {'0' if t == 0 else acc}")
        DPRE = self.opt("dpre", 10)
        if DPRE:
            self.wait(CK, 4)
            dft(0, DPRE)
        a("s_setprio 3")
        self.wait(C1, 4)
        self.stamp(3, 3)
        dft(DPRE, 18)
        self.stamp(8, 3)
        self.wait(CV, 4, sleep=2)
        for n in range(2):
            b = 176 + 32 * n
            for r in range(16):
                a(f"v_fma_f32 v{b+r}, v17, v{b+16+r}, v{b+r}")
            for k in range(8):
                a(f"v_cvt_pk_bf16_f32 v{b+k}, v{b+2*k}, v{b+2*k+1}")
            a(f"buffer_store_dwordx4 {vr(b,4)}, v22, {SWS}, s90 offen offset:{64*n} sc1")
            a(f"buffer_store_dwordx4 {vr(b+4,4)}, v22, {SWS}, s90 offen offset:{64*n+16} sc1")
        a(f"{nod}:")
        n6 = a.label("N6"); n7 = a.label("N7")
        a(f"s_cmp_eq_u32 {sW}, 7\ns_cbranch_scc1 {n7}\ns_cmp_lg_u32 {sW}, 6\ns_cbranch_scc1 {n6}\ns_setprio 3")
        self.wait(CV, 4, sleep=2)
        self.poison()
        a(f"{n6}:\ns_waitcnt vmcnt(0)")
        self.add1(CD)
        self.stamp(4, 3); self.stamp(4)
        a(f"{n7}:")

    def g_gen(self):
        a = self.a
        N = 1.0 / (M.S * M.D)
        skip = a.label("GS"); nx = a.label("GNX"); nk = a.label("GNK")
        assert all((f * 1821) >> 16 == f // 36 for f in range(864))
        assert all((f * 21846) >> 16 == f // 3 for f in range(24))
        a(f"""
s_mov_b32 s99, {OOB}
s_cmp_ge_u32 s2, 216
s_cbranch_scc1 {skip}
s_lshl_b32 s90, s2, 2
s_lshl_b32 s99, s2, 12
s_add_u32 s99, s99, {WS_G}
s_mul_i32 s91, s90, 1821
s_lshr_b32 s91, s91, 16
s_mul_i32 s73, s91, 36
s_sub_u32 s92, s90, s73
s_mul_i32 s93, s91, 21846
s_lshr_b32 s93, s93, 16
s_mul_i32 s73, s93, 3
s_sub_u32 s91, s91, s73
s_mul_i32 s93, s93, 72
s_lshl_b32 s73, s91, 5
s_add_u32 s93, s93, s73
v_mov_b32 v44, v20
s_cmp_lg_u32 s91, 2
s_cbranch_scc1 {nx}
v_mov_b32 v44, v18
{nx}:
v_add_u32 v44, s93, v44
s_lshl_b32 s73, s92, 3
v_lshl_add_u32 v45, v19, 2, s73
v_mul_u32_u24 v45, v45, v44
v_mul_u32_u24 v47, 5, v44
s_mov_b32 s73, {f32bits(1/576):#x}
s_mov_b32 s93, {f32bits(2*N):#x}
""")
        for fr in range(4):
            for cq in range(4):
                a(f"v_cvt_f32_u32 v46, v45\nv_mul_f32 v46, s73, v46\nv_fract_f32 v46, v46")
                a(f"v_cos_f32 v{48+2*cq}, v46\nv_sin_f32 v{49+2*cq}, v46")
                a("v_add_u32 v45, v45, v44" if cq < 3 else "v_add_u32 v45, v45, v47")
            for cq in range(4):
                a(f"v_mul_f32 v{48+2*cq}, s93, v{48+2*cq}\nv_mul_f32 v{49+2*cq}, s93, -v{49+2*cq}")
            if fr == 0:
                a(f"""
s_cmp_lg_u32 s92, 0
s_cbranch_scc1 {nk}
s_mov_b32 exec_hi, 0
v_mov_b32 v48, {f32bits(N):#x}
v_lshlrev_b32 v49, 31, v44
v_or_b32 v49, v48, v49
s_mov_b64 exec, -1
{nk}:
""")
            for k in range(4):
                a(f"v_cvt_pk_bf16_f32 v{240+4*fr+k}, v{48+2*k}, v{49+2*k}")
        a(f"{skip}:")

    WB = 112

    def poison(self):
        a = self.a
        a(f"v_lshlrev_b32 v24, 4, v0\nv_mov_b32 v28, -1\nv_mov_b32 v29, -1\nv_mov_b32 v30, -1\nv_mov_b32 v31, -1")
        a(f"s_mul_i32 s90, {sP}, {8*9216}\ns_add_u32 s90, s90, {WS_OF}\ns_mul_i32 s91, {sJ}, 9216\ns_add_u32 s91, s91, s90\ns_add_u32 s91, s91, 8192")
        a(f"buffer_store_dwordx4 v[28:31], v24, {SWS}, s91 offen sc1\ns_lshl_b32 s73, {sJ}, 10\ns_add_u32 s90, s90, s73")
        for i in range(8):
            a(f"buffer_store_dwordx4 v[28:31], v24, {SWS}, s90 offen sc1\ns_add_u32 s90, s90, 9216")

    def wt_loads(self):
        a = self.a
        self.srd(SWR, 6, 2048 * 578)
        self.srd(SWI, 8, 2048 * 578)
        a(f"""
v_and_b32 v26, 7, v0
v_lshrrev_b32 v27, 3, v0
v_mul_u32_u24 v22, 578, v26
v_mad_u32_u24 v22, v27, 18, v22
s_lshr_b32 s93, s2, 6
s_bfe_u32 s92, s2, 0x20004
s_and_b32 s88, s2, 15
s_lshl_b32 s90, s88, 7
s_lshl_b32 s73, s92, 3
s_add_u32 s90, s90, s73
s_mul_i32 s90, s90, 578
s_mul_i32 s73, s93, 144
s_add_u32 s90, s90, s73
""")
        for jr in range(4):
            for ri, srd in enumerate((SWR, SWI)):
                b = self.WB + 24 * ri + 6 * jr
                a(f"buffer_load_dwordx4 {vr(b,4)}, v22, {srd}, s90 offen\nbuffer_load_dword v{b+4}, v22, {srd}, s90 offen offset:16")
            if jr < 3:
                a(f"s_add_u32 s90, s90, {32*578}")
        a(f"""
s_mov_b32 s73, {9*8192}
v_mul_lo_u32 v23, v27, s73
v_lshl_add_u32 v23, v26, 4, v23
s_mul_i32 s98, s93, {72*8192}
s_lshl_b32 s73, s88, 8
s_add_u32 s98, s98, s73
s_and_b32 s73, s92, 1
s_lshl_b32 s73, s73, 7
s_add_u32 s98, s98, s73
s_lshr_b32 s73, s92, 1
s_lshl_b32 s73, s73, 12
s_add_u32 s98, s98, s73
s_add_u32 s98, s98, {WS_WT}
""")

    def wt_stores(self):
        a = self.a
        last = a.label("WL")
        a("s_mov_b32 s92, 0x05040100\ns_mov_b32 s93, 0x07060302")
        for x in range(10):
            if x == 9:
                a(f"s_cmp_lt_u32 s2, 192\ns_cbranch_scc1 {last}\ns_mov_b32 exec_lo, 0\ns_mov_b32 exec_hi, 0xff000000")
            t = self.WB + 48 + 4 * (x % 3)
            for ri in range(2):
                for pr in range(2):
                    lo = self.WB + 24 * ri + 12 * pr + x // 2
                    a(f"v_perm_b32 v{t+2*ri+pr}, v{lo+6}, v{lo}, {'s93' if x % 2 else 's92'}")
            a(f"buffer_store_dwordx4 {vr(t,4)}, v23, {SWS}, s98 offen sc1\ns_add_u32 s98, s98, 8192")
        a(f"s_mov_b64 exec, -1\n{last}:")

    def s_flag(self):
        a = self.a
        self.g_gen()
        a("s_setprio 3\nv_lshlrev_b32 v24, 4, v0")
        self.wait(CV, 4, sleep=2)
        self.stamp(3, 3)
        if "wearly" not in self.opts and "wmid" not in self.opts:
            self.wt_loads()
        a("s_waitcnt vmcnt(0)")
        self.wt_stores()
        for fr in range(4):
            a(f"buffer_store_dwordx4 {vr(240+4*fr,4)}, v24, {SWS}, s99 offen offset:{1024*fr} sc1")
        self.stamp(10, 3)
        self.flag4("s91", "s2", WS_FS)
        a("s_waitcnt vmcnt(0)")
        self.stamp(11, 3)
        self.wait(CD, 3, sleep=2)
        self.set_flag("s91")
        self.add1(CW)
        self.stamp(6); self.stamp(2, 3)
        self.wait(CR, 4, sleep=4)
        self.stage2_tables()

    def attention(self):
        a = self.a
        K0, KX0, V0, S0, O0, Q0, QX0 = self.AK, self.AKX, self.AV, self.AS, self.AO, self.AQ, self.AQX
        a(f"""
v_and_b32 v84, 31, v0
v_lshrrev_b32 v85, 5, v0
s_lshr_b32 s88, {sW}, 2
s_mul_i32 s73, s88, 6144
s_add_u32 s73, s73, {L_QS}
v_mul_u32_u24 v{self.vQ}, 48, v84
v_add_u32 v{self.vQ}, s73, v{self.vQ}
v_lshl_add_u32 v{self.vQX}, v85, 2, v{self.vQ}
v_add_u32 v{self.vQX}, 32, v{self.vQX}
v_lshl_add_u32 v{self.vQ}, v85, 4, v{self.vQ}
s_and_b32 s73, {sW}, 3
s_mul_i32 s73, s73, 2560
s_add_u32 s73, s73, {L_EX}
v_lshl_add_u32 v{self.vEX}, v0, 4, s73
s_add_u32 s73, s73, 2048
v_lshl_add_u32 v{self.vEX2}, v0, 3, s73
s_lshl_b32 s73, s88, 10
s_add_u32 s73, s73, {L_CT}
v_lshl_add_u32 v{self.vCT}, v0, 2, s73
s_mul_i32 s73, s88, {CN - C1}
v_add_u32 v86, s73, v2
v_mov_b32 v{QX0+1}, 0
v_mov_b32 v{QX0+2}, 0
""")
        self.wait(C1, 4, sleep=0)
        self.stamp(5); self.stamp(5, 3); self.stamp(1, 5)
        qmain = lambda q: f"ds_read_b128 {vr(Q0,4)}, v{self.vQ} offset:{1536*(q%4)}"
        qx = lambda q: f"ds_read_b32 v{QX0}, v{self.vQX} offset:{1536*(q%4)}\nds_read_b32 v{QX0+3}, v{self.vQX} offset:{1536*(q%4)}"
        a(qmain(0)); a(qx(0))
        keys = lambda kind, t: ([("K", t)] + ([] if t % 2 else [("X", t)])) if kind == "K" else [("V0", t), ("V1", t)]
        issued = []
        for t in range(self.NFIRST):
            issued += keys("K", t) + keys("V", t)
        state = {"done": 0}
        def need(*ks):
            idx = max(issued.index(k) for k in ks) + 1
            if idx > state["done"]:
                state["done"] = idx
                return [f"s_waitcnt vmcnt({len(issued) - idx})"]
            return []
        slots = {}
        def put(g, name, *items):
            slots.setdefault((g, name), []).extend(items)
        def put_loads(kind, t, where):
            ins = self.ld_k(t, t % 8) if kind == "K" else self.ld_v(t, t % 8)
            for x, key, (g, name) in zip(ins, keys(kind, t), where):
                put(g, name, (key, x))
        for t in range(self.NFIRST, 8):
            g = t - self.NFIRST
            put_loads("K", t, [(g, "B"), (g, "B")])
            put_loads("V", t, [(g, "C"), (g, "D")])
        for t in range(8):
            g = 24 + (3 * t) // 2
            put_loads("K", 8 + t, [(g, "C"), (g, "D")])
            put_loads("V", 8 + t, [(g + 1, "A"), (g + 1, "B")])
        def slot(g, name):
            out = []
            for it in slots.get((g, name), []):
                if isinstance(it, tuple):
                    issued.append(it[0]); out.append(it[1])
                else:
                    out.append(it)
            return out
        sreg = lambda g: S0 + 16 * (g % 2)
        oreg = lambda ps: O0 + 10 * (ps % 4)
        def qk16(g):
            return f"v_mfma_f32_32x32x16_bf16 {vr(sreg(g),16)}, {vr(K0+4*(g%8),4)}, {vr(Q0,4)}, 0"
        def qkx(g):
            return f"v_mfma_f32_32x32x8_bf16 {vr(sreg(g),16)}, {vr(KX0+2*((g%8)//2),2)}, {vr(QX0+2*(g%2),2)}, {vr(sreg(g),16)}"
        def pv(g, u):
            o = vr(oreg(g // 8), 16)
            c = "0" if (g // 8 < 4 and g % 8 == 0 and u == 0) else o
            return f"v_mfma_f32_32x32x16_bf16 {o}, {vr(V0+8*(g%8)+4*u,4)}, {vr(sreg(g)+4*u,4)}, {c}"
        kt = lambda g: (g % 8) + (8 if g >= 32 else 0)
        def kneed(g):
            t = kt(g)
            return need(("K", t), ("X", t & ~1))
        def export(q):
            o = O0 + 10 * q
            return [f"ds_write_b128 v{self.vEX}, {vr(o,4)} offset:{10240*q}", f"ds_write_b128 v{self.vEX}, {vr(o+4,4)} offset:{10240*q+1024}",
                    f"ds_write_b64 v{self.vEX2}, {vr(o+8,2)} offset:{10240*q}",
                    f"ds_add_u32 v{self.vCT}, v3 offset:{256*q}"]
        for x in kneed(0) + ["s_waitcnt lgkmcnt(0)", qk16(0), qkx(0)]:
            a(x)
        for ps in range(7):
            put(8 * ps + 6, "B", qmain(ps + 1))
            q1, q2 = qx(ps + 1).split("\n")
            put(8 * ps + 6, "C", q1); put(8 * ps + 6, "D", q2)
        for ps in range(5, 8):
            ex = export(ps - 5)
            put(8 * ps, "C", ex[0]); put(8 * ps, "D", ex[1]); put(8 * ps + 1, "A", ex[2]); put(8 * ps + 1, "B", ex[3])
        hi = a.label("PHI"); nf = a.label("NYF"); lo = a.label("PLO"); ok = a.label("CNOK")
        put(7 - self.NFIRST, "D", f"s_mov_b64 exec, 1\nds_add_u32 v2, v3 offset:{CV}\ns_mov_b64 exec, -1\ns_cmp_lt_u32 {sW}, 4\ns_cbranch_scc1 {hi}\ns_setprio 1\n{hi}:")
        put(1, "D", f"s_cmp_eq_u32 s99, {OOB}\ns_cbranch_scc1 {nf}\ns_waitcnt vmcnt(7)\ns_mov_b64 exec, 1\nds_add_rtn_u32 v233, v232, v3 offset:{YA}\n"
                    f"v_mov_b32 v1, {sTAG}\ns_waitcnt lgkmcnt(0)\nv_readfirstlane_b32 s73, v233\ns_cmp_lg_u32 s73, 1\ns_cmov_b32 s99, {OOB}\n"
                    f"buffer_store_dword v1, off, {SWS}, s99 sc1\ns_mov_b64 exec, -1\n{nf}:")
        put(23, "D", "s_setprio 3")
        put(self.opt("cr", 35), "C", f"s_mov_b64 exec, 1\nds_add_u32 v2, v3 offset:{CR}\ns_mov_b64 exec, -1")
        put(36, "A", f"s_setprio 1\ns_cmp_ge_u32 {sW}, 4\ns_cbranch_scc1 {lo}\ns_setprio 2\n{lo}:")
        put(36, "D", f"ds_read_b32 v87, v86 offset:{C1}")
        for g in range(64):
            ps, t = divmod(g, 8)
            s = sreg(g)
            e = lambda i: f"v_exp_f32 v{s+i}, v{s+i}"
            c = lambda k: f"v_cvt_pk_bf16_f32 v{s+k}, v{s+2*k}, v{s+2*k+1}"
            last = g == 63
            seq = [e(0), e(1)]
            if g > 0:
                seq.append(pv(g - 1, 1))
            seq += slot(g, "A")
            if not last:
                w = kneed(g + 1)
                if t == 7:
                    w = [(w[0] + " " if w else "s_waitcnt ") + "lgkmcnt(0)"]
                seq += w
            seq += [e(2), e(3), c(0), e(4), c(1)]
            if not last:
                seq.append(qk16(g + 1))
            seq += slot(g, "B") + [e(5), e(6), e(7), c(2), e(8), c(3)]
            if not last:
                seq.append(qkx(g + 1))
            seq += slot(g, "C") + need(("V0", kt(g)), ("V1", kt(g)))
            seq += [e(9), e(10), e(11), c(4), e(12), c(5), pv(g, 0)] + slot(g, "D") + [e(13), e(14), e(15), c(6), c(7)]
            for x in seq:
                a(x)
            if g == 39:
                a(f"v_readfirstlane_b32 s73, v87\ns_cmp_ge_u32 s73, 4\ns_cbranch_scc1 {ok}")
                self.wait(C1, 4, sleep=2, base="v86")
                a(f"{ok}:")
            if g == 7:
                self.stamp(11)
            if t == 7:
                self.stamp(2 + ps, 5)
        a(pv(63, 1))
        self.norm_setup(1)
        ex = export(3)
        for x in ex[:3]:
            a(x)
        a(f"ds_add_rtn_u32 v1, v{self.vCT}, v3 offset:768")

    T64, T32A, TW1, TW2, T32B, NTAB = 0, 24, 27, 35, 43, 49
    NPRE = 35

    def make_tables(self):
        L = np.arange(64); Lm = (L & 15)[:, None]; Lg = (L >> 4)[:, None]
        jj = np.arange(8)[None, :]; r = np.arange(4)[None, :]
        def pk(v):
            b = M.bf(v.astype(np.float32)).astype(np.uint32)
            return (b[:, 0::2] | (b[:, 1::2] << 16)).astype(np.uint32)
        parts = lambda z: (z.real, z.imag, -z.imag)
        w = lambda n, x, y: np.exp(-2j * np.pi * ((x * y) % n) / n)
        f32 = lambda v: v.astype(np.float32).view(np.uint32)
        out = []
        for H in range(2):
            for k in range(3):
                for t in range(4):
                    for ks in range(2):
                        out.append(pk(parts(w(64, 16 * (t ^ (2 * H)) + Lm, 32 * (ks ^ H) + 16 * (jj >> 2) + 4 * Lg + (jj & 3)))[k]))
            for k in range(3):
                out.append(pk(parts(w(32, 8 * Lg + jj, 16 * H + Lm))[k]))
            for t in range(4):
                z = w(2048, 16 * (t ^ (2 * H)) + 4 * Lg + r, 16 * H + Lm)
                out += [f32(z.real), f32(z.imag)]
            for t in range(4):
                z = np.conj(w(2048, 16 * (t ^ (2 * H)) + Lm, 16 * H + 4 * Lg + r))
                out += [f32(z.real), f32(z.imag)]
            for k in range(3):
                for at in range(2):
                    out.append(pk(parts(w(32, 8 * (Lm >> 2) + 4 * at + (Lm & 3), 16 * (H ^ (jj >> 2)) + 4 * Lg + (jj & 3)))[k]))
        return np.concatenate([o.reshape(-1) for o in out])

    def tload(self, frag, dst):
        if self.tgroup != frag // 4:
            self.tgroup = frag // 4
            self.a(f"s_add_u32 s88, s87, {(frag // 4) * 4096}")
        self.a(f"buffer_load_dwordx4 {vr(dst,4)}, v5, {STB}, s88 offen offset:{(frag % 4) * 1024}")

    def stage2_tables(self):
        a = self.a
        a(f"""
s_getpc_b64 s[64:65]
s_add_u32 s64, s64, spectral_tables@rel32@lo+4
s_addc_u32 s65, s65, spectral_tables@rel32@hi+12
s_mov_b32 s66, {2*self.NTAB*1024}
s_mov_b32 s67, 0x20000
v_lshlrev_b32 v5, 4, v0
s_and_b32 s86, {sW}, 1
s_mul_i32 s87, s86, {self.NTAB*1024}
""")
        self.tgroup = None
        for f in range(24):
            self.tload(self.T64 + f, 80 + 4 * f)
        for f in range(3):
            self.tload(self.T32A + f, 240 + 4 * f)
        for f in range(8):
            self.tload(self.TW1 + f, 16 + 4 * f)

    def stage2(self):
        a = self.a
        A, P, Q, TW, WW, PK, TMP = 80, 48, 176, 16, 208, 240, 8
        self.tgroup = None
        a(f"""
v_and_b32 v6, 15, v0
v_lshlrev_b32 v6, 6, v6
v_lshrrev_b32 v7, 4, v0
v_lshl_add_u32 v6, v7, 4, v6
s_lshl_b32 s90, s89, 13
s_add_u32 s91, s90, 4096
s_cmp_eq_u32 s89, 288
s_cmov_b32 s90, 4096
s_cmov_b32 s91, {OOB}
s_cmp_eq_u32 s89, 0
s_cmov_b32 s91, {OOB}
s_lshl_b32 s73, s86, 11
s_add_u32 s90, s90, s73
s_add_u32 s91, s91, s73
s_lshl_b32 s85, s86, 12
s_sub_u32 s85, 2048, s85
s_lshr_b32 s73, {sW}, 1
s_and_b32 s73, s73, 1
s_xor_b32 s73, s73, 1
s_lshl_b32 s99, s73, 2
s_lshl_b32 s73, s73, 12
s_lshl_b32 s84, s86, 11
s_add_u32 s73, s73, s84
s_add_u32 s73, s73, {L_XCH}
v_add_u32 v7, s73, v5
s_sub_u32 s73, s73, s84
s_xor_b32 s84, s84, 0x800
s_add_u32 s84, s84, s73
""")
        cl = a.label("GC"); cg = a.label("CG"); ot = a.label("GO"); dn = a.label("GD")
        a(f"s_cmp_lg_u32 {sW}, 7\ns_cbranch_scc1 {ot}\ns_lshr_b32 s73, s2, 3\ns_cmp_lg_u32 s73, 16\ns_cbranch_scc1 {cl}")
        a(f"v_lshlrev_b32 v8, 7, v0\ns_mov_b32 s92, {WS_FS}\ns_sleep {self.opt('dw', 8)}")
        self.poll(f"buffer_load_dwordx4 v[12:15], v8, {SWS}, s92 offen sc1", [12, 13, 14, 15], sleep=4)
        a(f"s_and_b32 s92, s2, 7\ns_lshl_b32 s92, s92, 7\ns_add_u32 s92, s92, {WS_GOS}")
        self.set_flag("s92")
        a(f"s_branch {cg}\n{cl}:\ns_sleep {self.opt('d2', 32)}")
        self.go_wait(WS_GOS, 252, 8)
        a(f"{cg}:")
        self.add1(CG)
        a(f"s_branch {dn}\n{ot}:")
        self.wait(CG, 1, sleep=2)
        a(f"s_waitcnt vmcnt(0)\n{dn}:")
        self.stamp(7)
        self.stamp(1, 2)
        a(f"s_add_u32 s92, s90, {WS_T}\ns_add_u32 s93, s91, {WS_T}\ns_add_u32 s82, s92, s85\ns_add_u32 s83, s93, s85")
        for t in range(4):
            for ri in range(2):
                so = (("s92", "s93"), ("s82", "s83"))[t >> 1][ri]
                a(f"buffer_load_dwordx4 {vr(WW+8*t+4*ri,4)}, v6, {SWS}, {so} offen offset:{1024*(t&1)} sc1")
        mf = lambda acc, x, y, first: a(f"v_mfma_f32_16x16x32_bf16 {vr(acc,4)}, {vr(x,4)}, {vr(y,4)}, {'0' if first else vr(acc,4)}")
        re = lambda base, t: base + 8 * t
        im = lambda base, t: base + 8 * t + 4
        for t in range(4):
            a(f"s_waitcnt vmcnt({6 - 2*t})")
            if t == 0: self.stamp(2, 2)
            mf(re(P, t), re(WW, t), PK, True); mf(im(P, t), re(WW, t), PK + 4, True)
            mf(re(P, t), im(WW, t), PK + 8, False); mf(im(P, t), im(WW, t), PK, False)
        a(f"s_lshl_b32 s92, s89, 13\ns_lshl_b32 s73, s86, 12\ns_add_u32 s92, s92, s73\ns_lshl_b32 s73, s86, 11\ns_add_u32 s92, s92, s73\ns_add_u32 s92, s92, {WS_WT}")
        a("s_add_u32 s82, s92, s85")
        for t in range(4):
            a(f"buffer_load_dwordx4 {vr(WW+8*t+4,4)}, v5, {SWS}, {('s92', 's82')[t >> 1]} offen offset:{1024*(t&1)} sc1")
        def cmul(x, c, dst):
            for t in range(4):
                ops = []
                for h in range(2):
                    t0, t1 = TMP + 4 * h, TMP + 4 * h + 2
                    xr, xi, cr, ci = re(x, t) + 2 * h, im(x, t) + 2 * h, re(c, t) + 2 * h, im(c, t) + 2 * h
                    ops.append([f"v_pk_mul_f32 {vr(t0,2)}, {vr(xr,2)}, {vr(cr,2)}",
                                f"v_pk_mul_f32 {vr(t1,2)}, {vr(xr,2)}, {vr(ci,2)}",
                                f"v_pk_fma_f32 {vr(t0,2)}, {vr(xi,2)}, {vr(ci,2)}, {vr(t0,2)} neg_lo:[1,0,0] neg_hi:[1,0,0]",
                                f"v_pk_fma_f32 {vr(t1,2)}, {vr(xi,2)}, {vr(cr,2)}, {vr(t1,2)}",
                                f"v_cvt_pk_bf16_f32 v{dst(t,0)+h}, v{t0}, v{t0+1}",
                                f"v_cvt_pk_bf16_f32 v{dst(t,1)+h}, v{t1}, v{t1+1}"])
                for j in range(0, 6, 2):
                    for o in ops:
                        a(o[j]); a(o[j + 1])
        pkd = lambda t, part: PK + 8 * part + 2 * t
        ks_ = lambda part, ks: PK + 8 * part + 4 * ks
        t64 = lambda k, t, ks: A + 32 * k + 8 * t + 4 * ks
        self.stamp(3, 2)
        cmul(P, TW, pkd)
        self.stamp(4, 2)
        for f in range(8):
            self.tload(self.TW2 + f, TW + 4 * f)
        for t in range(4):
            for ks in range(2):
                mf(re(Q, t), t64(0, t, ks), ks_(0, ks), ks == 0); mf(im(Q, t), t64(1, t, ks), ks_(0, ks), ks == 0)
            for ks in range(2):
                mf(re(Q, t), t64(2, t, ks), ks_(1, ks), False); mf(im(Q, t), t64(0, t, ks), ks_(1, ks), False)
        self.stamp(5, 2)
        a("s_waitcnt vmcnt(8)")
        for t in range(4):
            b = WW + 8 * t
            for k in range(4):
                a(f"v_lshlrev_b32 v{b+2*k}, 16, v{b+4+k}\nv_and_b32 v{b+2*k+1}, 0xffff0000, v{b+4+k}" if k < 2 else "")
            a(f"v_and_b32 v{b+5}, 0xffff0000, v{b+6}\nv_lshlrev_b32 v{b+4}, 16, v{b+6}\nv_lshlrev_b32 v{b+6}, 16, v{b+7}\nv_and_b32 v{b+7}, 0xffff0000, v{b+7}")
        cmul(Q, WW, pkd)
        self.stamp(6, 2)
        for f in range(6):
            self.tload(self.T32B + f, WW + 4 * f)
        for t in (2, 3, 0, 1):
            for ks in range(2):
                mf(re(P, t), ks_(0, ks), t64(0, t, ks), ks == 0); mf(im(P, t), ks_(1, ks), t64(0, t, ks), ks == 0)
            for ks in range(2):
                mf(re(P, t), ks_(1, ks), t64(1, t, ks), False); mf(im(P, t), ks_(0, ks), t64(2, t, ks), False)
        self.stamp(7, 2)
        a("v_add_u32 v232, s99, v2")
        self.kv_addr()
        self.kv_loads()
        a(f"s_waitcnt vmcnt({6 + self.NLD1})")
        cmul(P, TW, lambda t, part: (PK + 8 * t + 4 * part) if t < 2 else (Q + 4 * (t - 2) + 2 * part))
        a(f"ds_write_b128 v7, {vr(Q,4)}\nds_write_b128 v7, {vr(Q+4,4)} offset:1024")
        self.add1(XA, base="v232")
        a("v_add_u32 v7, s84, v5")
        self.wait(XA, 2, sleep=0, base="v232")
        for t in range(2):
            for part in range(2):
                a(f"ds_read_b64 {vr(PK+8*t+4*part+2,2)}, v7 offset:{1024*t+8*part}")
        self.stamp(8, 2)
        a(f"s_waitcnt vmcnt({self.NLD1}) lgkmcnt(0)")
        t32 = lambda k, at: WW + 8 * k + 4 * at
        out = lambda t, part, at: Q + 16 * t + 8 * part + 4 * at
        for t in range(2):
            for at in range(2):
                mf(out(t, 0, at), t32(0, at), PK + 8 * t, True); mf(out(t, 1, at), t32(0, at), PK + 8 * t + 4, True)
            for at in range(2):
                mf(out(t, 0, at), t32(1, at), PK + 8 * t + 4, False); mf(out(t, 1, at), t32(2, at), PK + 8 * t, False)
        a(f"s_add_u32 s92, s90, {WS_Y}\ns_add_u32 s93, s91, {WS_Y}")
        for t in range(2):
            for part in range(2):
                b = out(t, part, 0); d = 48 + 8 * t + 4 * part
                for k in range(4):
                    a(f"v_cvt_pk_bf16_f32 v{d+k}, v{b+2*k}, v{b+2*k+1}")
                a(f"buffer_store_dwordx4 {vr(d,4)}, v6, {SWS}, {'s93' if part else 's92'} offen offset:{1024*t} sc1")
        self.stamp(9, 2)
        self.flag4("s99", "s89", WS_FY)

    def l_mid(self):
        a = self.a
        go = a.label("S2"); no = a.label("NS2"); n7 = a.label("N7"); kv = a.label("LKV"); tb = a.label("TB"); nw = a.label("NW")
        a(f"s_mov_b32 s89, s2\ns_cmp_lg_u32 {sW}, 7\ns_cbranch_scc1 {n7}")
        self.s_flag()
        a(f"s_mov_b32 s89, s2\ns_branch {go}\n{n7}:")
        self.wait(CW, 1, sleep=6)
        self.wait(CR, 4, sleep=4)
        a(f"s_cmp_eq_u32 {sW}, 6\ns_cbranch_scc1 {tb}")
        a(f"""
s_add_u32 s89, s2, 192
s_sub_u32 s73, s2, 64
s_cmp_gt_u32 s73, 32
s_cbranch_scc1 {nw}
{tb}:
""")
        self.stage2_tables()
        a(f"{go}:")
        self.stage2()
        a(f"s_branch {kv}\n{nw}:")
        a(f"{no}:\ns_mov_b32 s99, {OOB}")
        self.kv_addr()
        self.kv_loads()
        a(f"s_setprio 1\n{kv}:")
        self.stamp(9)

    NT = 192

    def tail(self, mm, n):
        a = self.a
        ACC, ACX = 16, 32
        WF = 48
        NT = self.NT
        w = 2 * mm + n
        a("s_setprio 2")
        self.busy = 2
        self.norm_setup(1 - n)
        a(f"""
ds_read_b32 v11, v14 offset:{2304 + 128 * n}
v_and_b32 v37, 15, v0
v_lshrrev_b32 v38, 4, v0
v_lshl_add_u32 v14, v37, 2, v2
ds_read_b32 v36, v14 offset:{2304 + 128 * n + 64 * mm}
v_bfe_u32 v43, v0, 2, 2
v_and_b32 v44, 3, v0
v_bfe_u32 v46, v0, 4, 1
v_and_b32 v39, 1, v44
v_lshlrev_b32 v15, 2, v39
v_lshl_add_u32 v15, v46, 1, v15
v_lshrrev_b32 v14, 1, v44
v_add_u32 v45, v15, v14
v_lshlrev_b32 v45, 3, v45
v_add_u32 v45, {L_WO1 if mm else L_WO0}, v45
v_lshl_add_u32 v6, v13, 2, v43
v_lshl_add_u32 v6, v6, 6, v45
v_lshrrev_b32 v7, 1, v43
v_mul_u32_u24 v7, 72, v7
v_and_b32 v14, 1, v43
v_add3_u32 v40, v7, v14, 16
v_lshl_add_u32 v7, v40, 6, v45
v_mul_u32_u24 v14, 18432, v13
v_add_u32 v7, v7, v14
v_lshlrev_b32 v39, 3, v39
v_add_u32 v39, {L_WOX}, v39
v_mul_u32_u24 v15, 288, v46
v_add_u32 v15, v15, v40
v_lshl_add_u32 v15, v15, 4, v39
v_mul_u32_u24 v14, 72, v13
v_lshl_add_u32 v14, v46, 2, v14
v_add_u32 v14, v14, v43
v_lshl_add_u32 v14, v14, 4, v39
v_lshlrev_b32 v41, 4, v37
v_lshl_add_u32 v41, v46, 9, v41
v_lshl_add_u32 v47, v13, 10, v41
v_cmp_gt_u32 vcc, 32, v0
v_mov_b32 v40, {OOB}
v_add_u32 v41, {256 * mm}, v47
v_cndmask_b32 v42, v40, v41, vcc
v_cmp_gt_u32 vcc, 8, v37
s_nop 0
v_cndmask_b32 v47, v40, v47, vcc
s_waitcnt lgkmcnt(0)
v_sub_f32 v4, 1.0, v4
""")

        normalize = self.normalize

        def wrow(kind, k, hh, u):
            if kind == "m":
                return ("v6", (72 * k + 18 * hh + 8 * u) * 64) if k < 8 else ("v7", (144 * u + 18 * hh) * 64)
            return ("v14", (144 * k + 18 * hh + 8 * u) * 16) if k < 4 else ("v15", (144 * u + 18 * hh) * 16)

        def consume(i, probe):
            OB, AX = 192, 248
            hh = i >> 1
            seq = []
            for ks in range(9):
                seq.append(("m", ks))
                if ks % 2 == 1 or ks == 8: seq.append(("x", ks // 2))
            def rd(k):
                for u in range(2):
                    base, off = wrow("x", k, hh, u)
                    a(f"ds_read_b64_tr_b16 {vr(AX+4*(k%2)+2*u,2)}, {base} offset:{off}")
            rd(0); rd(1)
            if probe:
                l = a.label("CP"); d = a.label("CQ")
                a(f"{l}:\ns_add_u32 s90, s94, {i*9216 + 8192}\nbuffer_load_dwordx4 {vr(OB,4)}, v5, {SWS}, s90 offen sc1")
                a(f"s_waitcnt vmcnt(0)\nv_max_u32 v1, v{OB}, v{OB+1}\nv_max3_u32 v1, v1, v{OB+2}, v{OB+3}")
                a(f"v_cmp_eq_u32 vcc, -1, v1\ns_cmp_eq_u64 vcc, 0\ns_cbranch_scc1 {d}")
                a(f"s_sleep 8\ns_sub_u32 {sSPIN}, {sSPIN}, 1\ns_cbranch_scc0 {l}\ns_branch L_bail\n{d}:")
            l = a.label("CL"); d = a.label("CD")
            a(f"{l}:")
            chk = []
            oreg = lambda it: OB + (4 * it[1] if it[0] == "m" else 36 + 4 * it[1])
            for it in seq:
                kind, k = it
                if kind == "m" and k % 4 == 0:
                    a(f"s_add_u32 s90, s94, {i*9216 + 1024*k}")
                voff, last = ("v5", k == 8) if kind == "m" else ("v41" if k < 4 else "v42", k == 4)
                imm = 1024 * (k % 4) if kind == "m" else 2048 * (k % 2)
                a(f"buffer_load_dwordx4 {vr(oreg(it),4)}, {voff}, {SWS}, s90 offen offset:{imm} sc1")
                chk.append([oreg(it) + r for r in range(4 if last else 1)])
            flat = [(j, r) for j, rs in enumerate(chk) for r in rs]
            a(f"s_waitcnt vmcnt({len(chk) - 2})\nv_max_u32 v1, v{flat[0][1]}, v{flat[1][1]}")
            for p in range(2, len(flat), 2):
                a(f"s_waitcnt vmcnt({len(chk) - 1 - flat[p+1][0]})\nv_max3_u32 v1, v1, v{flat[p][1]}, v{flat[p+1][1]}")
            a(f"v_cmp_eq_u32 vcc, -1, v1\ns_cmp_eq_u64 vcc, 0\ns_cbranch_scc1 {d}")
            a(f"s_sleep {2 if i >= 6 else 8}\ns_sub_u32 {sSPIN}, {sSPIN}, 1\ns_cbranch_scc0 {l}\ns_branch L_bail\n{d}:")
            for kind, k in seq:
                if kind == "m":
                    a(f"v_mfma_f32_32x32x16_bf16 {vr(ACC,16)}, {vr(WF+36*hh+4*k,4)}, {vr(oreg((kind,k)),4)}, {vr(ACC,16)}")
                else:
                    a(f"s_waitcnt lgkmcnt({2 if k < 4 else 0})")
                    a(f"v_mfma_f32_16x16x32_bf16 {vr(ACX,4)}, {vr(AX+4*(k%2),4)}, {vr(oreg((kind,k)),4)}, {vr(ACX,4)}")
                    if k + 2 < 5:
                        rd(k + 2)

        normalize(2 * mm + (1 - n))
        self.stamp(2, 4)
        GM, GX, GD, GE = 192, 224, 8, 3
        AC2, BF, BX = ACC, 236, 248
        vm = []
        def gm(ks):
            a(f"buffer_load_dwordx4 {vr(GM+4*(ks%GD),4)}, v5, {SWS}, s93 offen offset:{1024*(ks%4)} sc1")
            if ks % 4 == 3: a("s_add_u32 s93, s93, 4096")
            vm.append(("m", ks))
        def gx(T):
            a(f"buffer_load_dwordx4 {vr(GX+4*(T%GE),4)}, v47, {SWS}, s98 offen offset:{2048*(T%2)} sc1")
            if T % 2 == 1: a("s_add_u32 s98, s98, 4096")
            vm.append(("x", T))
        bulk = w < 2
        if bulk:
            self.srd(SWO, 18, 663552)
            self.panel_setup(2, va=48)
        a(f"s_mul_i32 s93, {sJ}, {3*36*1024}\ns_add_u32 s98, s93, {WS_G + 2*36*1024}\ns_add_u32 s93, s93, {WS_G + mm*36*1024}")
        self.wait(CV, 8, sleep=3)
        if bulk:
            self.panel_loads(SWO, L_WO0, L_WO1, L_WOX, False, 36, 2, va=48, rotate=True)
        self.stamp(1, 4)
        for ks in range(GD):
            gm(ks)
            if ks % 2 == 1 and ks // 2 < GE: gx(ks // 2)
        fy = (f"buffer_load_dwordx4 {vr(BF+2,4)}, v{BF}, {SWS}, s99 offen sc1\nbuffer_load_dwordx4 {vr(BF+6,4)}, v{BF+1}, {SWS}, s92 offen sc1\n"
              f"buffer_load_dword v{BF+10}, off, {SWS}, s88 sc1")
        if w == 0:
            a(f"v_lshlrev_b32 v{BF}, 7, v0\nv_min_u32 v{BF+1}, {7*128}, v{BF}\ns_mov_b32 s99, {WS_FY}\ns_mov_b32 s92, {WS_FY + 8192}\ns_mov_b32 s88, {WS_FY + 72*128}")
            a(fy)
        if bulk:
            a(f"s_waitcnt vmcnt({len(vm) + (3 if w == 0 else 0)})")
            self.add1(S3)
        self.wait(S3, 2, sleep=1 if bulk else 3)
        self.stamp(3, 4)
        for hh in range(4):
            for k in range(9):
                for u in range(2):
                    base, off = wrow("m", k, hh, u)
                    a(f"ds_read_b64_tr_b16 {vr(WF+36*hh+4*k+2*u,2)}, {base} offset:{off}")
                if k % 3 == 2:
                    a("s_waitcnt lgkmcnt(6)")
        self.stamp(4, 4)
        a(f"""
v_lshrrev_b32 v39, 3, v0
v_lshlrev_b32 v39, 12, v39
v_lshlrev_b32 v40, 2, v46
v_xor_b32 v40, v40, v0
v_and_b32 v40, 7, v40
v_lshl_add_u32 v39, v40, 4, v39
v_bfe_u32 v40, v0, 3, 1
v_xor_b32 v40, {n}, v40
v_lshlrev_b32 v40, 6, v40
v_lshl_add_u32 v40, v44, 3, v40
v_lshl_add_u32 v40, v43, 7, v40
v_lshl_add_u32 v43, v13, 10, v40
v_lshl_add_u32 v43, v46, 5, v43
v_add_u32 v44, 36864, v43
v_lshl_add_u32 v45, v38, 10, v40
v_add_u32 v45, {32 * mm}, v45
v_add_u32 v46, 36864, v45
s_waitcnt lgkmcnt(0)
""")
        self.add1(S2)
        if w == 0:
            ok = a.label("YOK")
            a("s_waitcnt vmcnt(0)")
            self.cmp_regs([BF + 2 + k for k in range(9)], sTAG)
            a(f"s_cbranch_scc1 {ok}")
            self.poll(fy, [BF + 2 + k for k in range(9)], sleep=12)
            a(f"{ok}:")
            self.add1(CY)
            ne = a.label("NE")
            a(f"s_cmp_lg_u32 s2, 0\ns_cbranch_scc1 {ne}")
            self.set_flag(str(WS_EPOCH))
            a(f"{ne}:")
        elif bulk:
            self.wait(CY, 1, sleep=2)
        if bulk:
            self.wait(S2, 4, sleep=1)
            self.stamp(1); self.stamp(5, 4)
            a(f"s_lshl_b32 s99, {sP}, 7\ns_add_u32 s99, s99, {WS_Y + w * 32768}\ns_mov_b32 s92, {L_Y + w * 1024}")
            lp = a.label("YL")
            a(f"s_mov_b32 s88, 5\n{lp}:")
            for k in range(6):
                a(f"s_mov_b32 m0, s92\ns_add_u32 s92, s92, 2048\nbuffer_load_dwordx4 v39, {SWS}, s99 offen sc1 lds\ns_add_u32 s99, s99, {2*32768}")
            a(f"s_sub_u32 s88, s88, 1\ns_cbranch_scc0 {lp}")
            vm.extend([("y", k) for k in range(36)])
            a("s_waitcnt vmcnt(18)")
            self.add1(S1)
        self.stamp(6, 4)
        def yrd(it):
            kind, k = it
            if kind == "m":
                b = BF + 4 * (k % 3); base, off = ("v43", 2048 * k) if k < 18 else ("v44", 2048 * (k - 18))
            else:
                b = BX + 4 * (k % 2); base, off = ("v45", 4096 * k) if k < 9 else ("v46", 4096 * (k - 9))
            a(f"ds_read_b64_tr_b16 {vr(b,2)}, {base} offset:{off}\nds_read_b64_tr_b16 {vr(b+2,2)}, {base} offset:{off+512}")
        done = {"vm": len(vm) - 18 if bulk else 0}
        def half(k0):
            seq = []
            for ks in range(k0, k0 + 18):
                seq.append(("m", ks))
                if ks % 2 == 1: seq.append(("x", ks // 2))
            for it in seq[:3]:
                yrd(it)
            for i, it in enumerate(seq):
                wv = ""
                if vm.index(it) + 1 > done["vm"]:
                    done["vm"] = vm.index(it) + 1
                    wv = f"vmcnt({len(vm) - done['vm']}) "
                a(f"s_waitcnt {wv}lgkmcnt({2 * (min(i + 3, len(seq)) - i - 1)})")
                kind, k = it
                if kind == "m":
                    a(f"v_mfma_f32_32x32x16_bf16 {vr(AC2,16)}, {vr(GM+4*(k%GD),4)}, {vr(BF+4*(k%3),4)}, {'0' if k == 0 else vr(AC2,16)}")
                    if k + GD < 36: gm(k + GD)
                else:
                    a(f"v_mfma_f32_16x16x32_bf16 {vr(AC2+16,4)}, {vr(GX+4*(k%GE),4)}, {vr(BX+4*(k%2),4)}, {'0' if k == 0 else vr(AC2+16,4)}")
                    if k + GE < 18: gx(k + GE)
                if i + 3 < len(seq):
                    yrd(seq[i + 3])
                if bulk and it == ("m", GD):
                    self.add1(S4)
        self.wait(S1, 2, sleep=1 if bulk else 2)
        self.stamp(7, 4)
        half(0)
        self.wait(S4, 2, sleep=1)
        half(18)
        self.stamp(2); self.stamp(8, 4)
        self.srd(SOUT, 22, 2359296)
        a(f"""
s_mov_b32 s73, 73728
v_mul_lo_u32 v39, v12, s73
v_lshl_add_u32 v39, v13, 5, v39
v_mul_lo_u32 v40, v37, s73
v_lshl_add_u32 v40, v38, 3, v40
s_mul_i32 s93, {sP}, 2304
s_add_u32 s93, s93, s95
s_add_u32 s93, s93, {1152 * n}
s_add_u32 s92, s93, {16 * mm * 73728}
""")
        for i in range(8):
            a(f"v_pk_mul_f32 {vr(ACC+2*i,2)}, {vr(ACC+2*i,2)}, v[10:11] op_sel:[0,1] op_sel_hi:[1,1]")
        for i in range(2):
            a(f"v_pk_mul_f32 {vr(ACX+2*i,2)}, {vr(ACX+2*i,2)}, v[36:37] op_sel_hi:[1,0]")
        prog = {0: ["N5", "C0", "C2", "C4", "C6"], 1: ["N4", "C1", "C3", "C5", "C7"],
                2: ["C0", "C2", "C4", "C6"], 3: ["C1", "C3", "N6", "C5", "C7"]}[w]
        gates = {4: 5, 5: 6, 6: 7, 7: 7}
        for it in prog:
            i = int(it[1])
            if it[0] == "N":
                normalize(i)
                self.stamp(3)
            else:
                if i >= 4:
                    self.wait(256 * gates[i], 4, sleep=2 if gates[i] == 7 else 4)
                if i == 7:
                    a(f"s_sleep {self.opt('d7', 10)}")
                if i >= 6: self.stamp(4)
                consume(i, i in (4, 5))
                if i in (2, 3): self.stamp(9, 4)
                if i in (4, 5): self.stamp(10, 4)
                if i in (6, 7): self.stamp(11, 4)
        self.stamp(6)
        fl = " sc1" if "outsc1" in self.opts else " nt" if "outnt" in self.opts else ""
        a(f"v_cvt_pk_bf16_f32 v{ACX}, v{ACX}, v{ACX+1}\nv_cvt_pk_bf16_f32 v{ACX+1}, v{ACX+2}, v{ACX+3}")
        for k in range(8):
            a(f"v_cvt_pk_bf16_f32 v{ACC+k}, v{ACC+2*k}, v{ACC+2*k+1}")
        a(f"buffer_store_dwordx4 {vr(ACC,4)}, v39, {SOUT}, s93 offen offset:{64*mm}{fl}")
        a(f"buffer_store_dwordx4 {vr(ACC+4,4)}, v39, {SOUT}, s93 offen offset:{64*mm+16}{fl}")
        a(f"s_mov_b32 exec_hi, 0\nbuffer_store_dwordx2 {vr(ACX,2)}, v40, {SOUT}, s92 offen offset:128{fl}\ns_mov_b64 exec, -1")
        self.stamp(7)

    def norm_setup(self, rows):
        self.a(f"""
v_lshlrev_b32 v5, 4, v0
v_and_b32 v12, 31, v0
v_lshrrev_b32 v13, 5, v0
v_add_u32 v8, {L_EX}, v5
v_lshlrev_b32 v9, 3, v0
v_add_u32 v9, {L_EX + 2048}, v9
v_lshlrev_b32 v10, 3, v12
v_add_u32 v10, {L_EX + 2048 + 256}, v10
v_lshl_add_u32 v14, v12, 2, v2
ds_read_b32 v4, v14 offset:{2304 + 128 * rows}
s_mul_i32 s94, {sP}, {8*9216}
s_add_u32 s94, s94, {WS_OF}
s_lshl_b32 s96, {sJ}, 10
s_add_u32 s96, s96, s94
s_lshr_b32 s97, {sJ}, 2
s_lshl_b32 s97, s97, 9
s_and_b32 s73, {sJ}, 3
s_lshl_b32 s73, s73, 2
s_add_u32 s97, s97, s73
s_add_u32 s97, s97, s94
s_add_u32 s97, s97, 8192
""")

    def normalize(self, i, wait=True):
        a = self.a
        NT = self.NT
        q = i % 4
        if wait:
            self.wait(256 * i, 4, sleep=2 if i >= 6 else 4)
        for s in range(4):
            b = NT + 12 * s; o = 10240 * q + 2560 * s
            a(f"ds_read_b128 {vr(b,4)}, v8 offset:{o}\nds_read_b128 {vr(b+4,4)}, v8 offset:{o+1024}\nds_read_b64 {vr(b+8,2)}, v9 offset:{o}")
            if s == 3:
                a("s_waitcnt lgkmcnt(9)")
            a(f"ds_read_b32 v{b+10}, v10 offset:{o}")
        a(f"s_add_u32 s90, s96, {i*9216}\ns_add_u32 s91, s97, {i*9216}\ns_movk_i32 s89, {i}")
        a("s_waitcnt lgkmcnt(8)")
        for s in range(1, 4):
            if s > 1:
                a(f"s_waitcnt lgkmcnt({4 * (3 - s)})")
            for k in range(5):
                a(f"v_pk_add_f32 {vr(NT+2*k,2)}, {vr(NT+2*k,2)}, {vr(NT+12*s+2*k,2)}")
            a(f"v_add_f32 v{NT+10}, v{NT+10}, v{NT+12*s+10}")
        if i < 4:
            self.wait(CG, 1, sleep=2)
            self.add1(CN)
        self.safety()
        a(f"v_rcp_f32 v{NT+10}, v{NT+10}\ns_nop 0\nv_mul_f32 v{NT+10}, v4, v{NT+10}")
        for k in range(5):
            a(f"v_pk_mul_f32 {vr(NT+2*k,2)}, {vr(NT+2*k,2)}, {vr(NT+10,2)} op_sel_hi:[1,0]")
        for k in range(5):
            a(f"v_cvt_pk_bf16_f32 v{NT+12+k}, v{NT+2*k}, v{NT+2*k+1}")
        a(f"v_min_u32 v{NT+12}, -2, v{NT+12}\nv_min_u32 v{NT+16}, -2, v{NT+16}")
        a(f"buffer_store_dwordx4 {vr(NT+12,4)}, v5, {SWS}, s90 offen sc1\ns_mov_b32 exec_hi, 0")
        a(f"buffer_store_dword v{NT+16}, v5, {SWS}, s91 offen sc1")
        if "dbl" in self.opts:
            a(f"buffer_store_dword v{NT+16}, v5, {SWS}, s91 offen\ns_mov_b64 exec, -1\nbuffer_store_dwordx4 {vr(NT+12,4)}, v5, {SWS}, s90 offen")
        else:
            a("s_mov_b64 exec, -1")

    def safety(self):
        a = self.a
        NT = self.NT
        ok = a.label("SOK")
        t = NT + 12
        a(f"v_mov_b32 v{t}, 0\nv_mov_b32 v{t+1}, 0\nv_mov_b32 v{t+2}, 0\nv_mov_b32 v{t+3}, 0")
        for k in range(5):
            a(f"v_pk_fma_f32 {vr(t,2)}, {vr(NT+2*k,2)}, {vr(t+2,2)}, {vr(t,2)}")
        lo, hi = (127 - 60) << 23, (127 + 64) << 23
        if "forcefb" in self.opts:
            lo, hi = (127 + 60) << 23, (127 + 64) << 23
        a(f"v_add_f32 v{t}, v{t}, v{t+1}\nv_subrev_u32 v{t+1}, {lo:#x}, v{NT+10}\nv_cmp_u_f32 vcc, v{t}, v{t}")
        a(f"s_mov_b32 s73, {hi - lo:#x}\nv_cmp_lt_u32 s[74:75], s73, v{t+1}\ns_or_b64 vcc, vcc, s[74:75]\ns_cmp_eq_u64 vcc, 0\ns_cbranch_scc1 {ok}")
        a(f"s_call_b64 s[86:87], L_fallback\n{ok}:")

    def fallback(self):
        a = self.a
        NT = self.NT
        O, S, Q, QX, K, KX, V, MX = NT, 208, 224, 228, 230, 234, 236, 244
        vK, vKX, vV, T0 = 245, 246, 247, 248
        l1 = a.label("FB1"); l2 = a.label("FB2")
        qk = f"""
buffer_load_dwordx4 {vr(K,4)}, v{vK}, {SWS}, s[84] offen sc1
buffer_load_dword v{KX}, v{vKX}, {SWS}, s[85] offen sc1
""".replace("s[84]", "s84").replace("s[85]", "s85")
        mm = f"""
v_mfma_f32_32x32x16_bf16 {vr(S,16)}, {vr(K,4)}, {vr(Q,4)}, 0
v_mfma_f32_32x32x8_bf16 {vr(S,16)}, {vr(KX,2)}, {vr(QX,2)}, {vr(S,16)}
s_add_u32 s84, s84, 1024
s_bitcmp1_b32 s88, 0
s_cselect_b32 s73, 4, 252
s_add_u32 s85, s85, s73
"""
        a(f"""
L_fallback:
s_nop 4
v_lshlrev_b32 v{vK}, 5, v12
v_lshl_add_u32 v{vK}, v13, 4, v{vK}
v_mov_b32 v{T0}, {OOB}
v_lshlrev_b32 v{vKX}, 3, v12
v_cmp_lt_u32 vcc, 31, v0
v_subrev_u32 v{T0+1}, 64, v{vK}
v_cndmask_b32 v{vKX}, v{vKX}, v{T0}, vcc
v_cmp_eq_u32 vcc, 20, v12
s_mul_i32 s73, s89, 1536
v_cndmask_b32 v{T0+1}, v{T0}, v{T0+1}, vcc
v_cmp_gt_u32 vcc, 18, v12
s_add_u32 s73, s73, {L_QS}
v_cndmask_b32 v{vV}, v{T0+1}, v{vK}, vcc
v_mul_u32_u24 v{T0}, 48, v12
v_add_u32 v{T0}, s73, v{T0}
v_lshl_add_u32 v{T0+1}, v13, 2, v{T0}
v_lshl_add_u32 v{T0}, v13, 4, v{T0}
ds_read_b128 {vr(Q,4)}, v{T0}
ds_read_b32 v{QX}, v{T0+1} offset:32
v_mov_b32 v{QX+1}, 0
v_mov_b32 v{KX+1}, 0
v_mov_b32 v{MX}, 0xff800000
s_mov_b32 s84, {WS_K16}
s_mov_b32 s85, {WS_KX}
s_mov_b32 s88, 63
{l1}:
{qk}
s_waitcnt vmcnt(0) lgkmcnt(0)
{mm}
""")
        for k in range(8):
            a(f"v_max3_f32 v{MX}, v{MX}, v{S+2*k}, v{S+2*k+1}")
        a(f"""
s_sub_u32 s88, s88, 1
s_cbranch_scc0 {l1}
v_mov_b32 v{T0}, v{MX}
v_permlane32_swap_b32 v{MX}, v{T0}
v_max_f32 v{MX}, v{MX}, v{T0}
s_mov_b32 s84, {WS_K16}
s_mov_b32 s85, {WS_KX}
s_mov_b32 s83, {WS_VF}
s_mov_b32 s88, 63
""")
        for r in range(16):
            a(f"v_mov_b32 v{O+r}, 0")
        a(f"""
{l2}:
{qk}
buffer_load_dwordx4 {vr(V,4)}, v{vV}, {SWS}, s83 offen sc1
buffer_load_dwordx4 {vr(V+4,4)}, v{vV}, {SWS}, s83 offen offset:{VPITCH} sc1
s_waitcnt vmcnt(0)
{mm}
s_add_u32 s83, s83, {2*VPITCH}
""")
        for r in range(16):
            a(f"v_sub_f32 v{S+r}, v{S+r}, v{MX}")
        for r in range(16):
            a(f"v_exp_f32 v{S+r}, v{S+r}")
        for k in range(8):
            a(f"v_cvt_pk_bf16_f32 v{S+k}, v{S+2*k}, v{S+2*k+1}")
        a(f"""
v_mfma_f32_32x32x16_bf16 {vr(O,16)}, {vr(V,4)}, {vr(S,4)}, {vr(O,16)}
v_mfma_f32_32x32x16_bf16 {vr(O,16)}, {vr(V+4,4)}, {vr(S+4,4)}, {vr(O,16)}
s_nop 15
s_sub_u32 s88, s88, 1
s_cbranch_scc0 {l2}
""")
        a(f"v_mov_b32 v{T0}, v{O+8}\nv_mov_b32 v{NT+10}, v{O+8}\nv_permlane32_swap_b32 v{T0}, v{NT+10}\ns_nop 4\ns_setpc_b64 s[86:87]")

    def finish_stamps(self):
        a = self.a
        if self.stamps:
            a("v_mov_b32 v2, 0")
            for i in range(12):
                a(f"v_writelane_b32 v2, s{STAMPS[i]}, {i}")
            a(f"s_lshl_b32 s73, s2, 3\ns_add_u32 s73, s73, {sW}\ns_lshl_b32 s73, s73, 7\ns_add_u32 s73, s73, {WS_DBG}")
            a(f"v_lshlrev_b32 v3, 2, v0\ns_mov_b32 exec_hi, 0\nbuffer_store_dword v2, v3, {SWS}, s73 offen\ns_mov_b64 exec, -1")

    def build(self):
        a = self.a
        self.prologue()
        self.e_front()
        a("L_attn:")
        self.attention()
        self.stamp(8)
        a(f"s_cmp_ge_u32 {sW}, 4\ns_cbranch_scc1 L_last")
        labs = [a.label("TL") for _ in range(4)]
        for w in range(1, 4):
            a(f"s_cmp_eq_u32 {sW}, {w}\ns_cbranch_scc1 {labs[w]}")
        for w in range(4):
            a(f"{labs[w]}:")
            self.tail(w >> 1, w & 1)
            a("s_branch L_fin")
        a(f"L_last:\ns_waitcnt lgkmcnt(0)\nv_readfirstlane_b32 s73, v1\nv_sub_f32 v4, 1.0, v4\ns_cmp_lg_u32 s73, 3\ns_cbranch_scc1 L_fin\ns_setprio 3")
        self.normalize(7, wait=False)
        self.stamp(3)
        a("s_branch L_fin")
        a("L_lwave:")
        self.busy = 3
        self.l_front()
        self.l_mid()
        a("s_branch L_attn")
        self.fallback()
        a("L_bail:")
        if self.stamps:
            a(f"s_mov_b32 s{STAMPS[11]}, 0xdead0000")
        a("L_fin:")
        if self.opt("padto", 0):
            a(f"L_pad:\ns_sleep 2\ns_memrealtime s[78:79]\ns_waitcnt lgkmcnt(0)\ns_sub_u32 s78, s78, s76\ns_cmp_lt_u32 s78, s80\ns_cbranch_scc1 L_pad")
        self.finish_stamps()
        a("L_end:\ns_endpgm")
        body = a.finish()
        tw = self.make_tables()
        assert tw.size == 2 * self.NTAB * 256
        tab = "\n".join(".long " + ",".join(f"{x:#x}" for x in tw[i:i+16]) for i in range(0, tw.size, 16))
        hdr = open("cdna_kernels/" + NAME + ".s.ref").read().split("; Override launch")[0]
        return f"""{hdr}; @launch grid=(256,1,1) block=(512,1,1) lds={LDS_BYTES}
.amdgcn_target "amdgcn-amd-amdhsa--gfx950"
.text
.globl {NAME}_kernel
.p2align 8
.type {NAME}_kernel,@function
{NAME}_kernel:
{body}
.section .rodata,"a"
.p2align 8
.type spectral_tables,@object
spectral_tables:
{tab}
.size spectral_tables, {2*self.NTAB*1024}
.p2align 6
.amdhsa_kernel {NAME}_kernel
  .amdhsa_next_free_vgpr 256
  .amdhsa_next_free_sgpr 102
  .amdhsa_accum_offset 256
  .amdhsa_group_segment_fixed_size 0
  .amdhsa_kernarg_size 96
  .amdhsa_user_sgpr_count 2
  .amdhsa_user_sgpr_kernarg_segment_ptr 1
  .amdhsa_system_sgpr_workgroup_id_x 1
.end_amdhsa_kernel
"""


if __name__ == "__main__":
    opts = sys.argv[2:]
    g = Gen(stamps=2 if "st2" in opts else 3 if "st3" in opts else 4 if "st4" in opts else 5 if "st5" in opts else int("stamps" in opts), cyc="cyc" in opts, opts=opts)
    src = g.build()
    open(sys.argv[1], "w").write(src)
    print("nops added:", g.a.added_nops, "lines:", len(src.splitlines()))
```

```python
import sys
import numpy as np
from asmlib import Asm
import model as M

NAME = "gated_mix__spectral_gfnet__grouped_kv_mqa__prompt"

WS_EPOCH = 0
WS_FKV = 0x50000
WS_FS = 0x58000
WS_FY = 0x60000
WS_GOS = 0x68000
WS_K16 = 0x10000
WS_KX = 0x20000
WS_VF = 0x30000
WS_DBG = 0x80000
WS_G = 0x100000
WS_T = 0x200000
WS_Y = 0x500000
WS_OF = 0x800000
WS_WT = 0xB00000
WS_QDUMP = 0x1100000
WS_SIZE = 0x2000000
OOB = 0x40000000
VPITCH = 640

XP = 1040
L_X = 0
L_X2 = 64 * XP
L_WQ0 = 74752
L_WQ1 = 111616
P2SZ = 9728
L_P2Q = 148480
L_P2KV = L_P2Q - P2SZ
L_MISC = 162816
L_CT = L_MISC - 2048
(C0A, C0B, C0C, C1, CX, CK, CE, CV, CY, S1, S2, S3, CN, CW, CF, CD, CG, S4, C0D, SA, XA, XB, YA, YB, CR) = (2048 + 4 * i for i in range(25))
L_G = L_MISC + 256
L_QS = L_WQ0
L_WO0 = 0
L_WO1 = 36864
L_Y = 0
L_EX = L_QS + 12288
L_WOX = L_EX + 16 * 2560
L_XCH = L_WOX + 9216
LDS_BYTES = 163840
assert L_XCH + 8192 <= L_CT and L_P2Q + P2SZ <= L_CT and L_P2Q + P2SZ <= L_MISC and L_P2KV >= L_WQ1 + 416 * 64

SX, SWQ, SKV, SG, SWS, SWO, SOUT, SWR, SWI, STB = (f"s[{a}:{a+3}]" for a in range(28, 68, 4))
sW, sP, sJ, sTAG, sSPIN = "s68", "s69", "s70", "s71", "s72"
STAMPS = [76, 77, 78, 79, 80, 81, 100, 101, 3, 10, 11, 24]
SPIN_MAX = 400000

f32bits = lambda v: int(np.float32(v).view(np.uint32))
QSCALE_BITS = f32bits(M.QSCALE)
LOG2E_BITS = f32bits(M.LOG2E)


def vr(a, n=1):
    return f"v{a}" if n == 1 else f"v[{a}:{a+n-1}]"


class Gen:
    AQ, AQX, AO, AK, AKX, AV, AS = 24, 28, 32, 88, 120, 128, 192
    vQ, vQX, vEX, vEX2, vK, vKX, vV, vCT = 78, 79, 80, 81, 82, 83, 4, 84
    vCT2 = vCT

    def __init__(self, stamps=0, cyc=False, opts=()):
        self.a = Asm()
        self.stamps = stamps
        self.clk = "s_memtime" if cyc else "s_memrealtime"
        self.opts = set(opts)
        self.busy = 3

    def opt(self, name, default):
        for o in self.opts:
            if o.startswith(name + "="):
                return int(o.split("=")[1])
        return default

    def _st(self, i):
        self.a(f"{self.clk} s[74:75]\ns_waitcnt lgkmcnt(0)\ns_mov_b32 s{STAMPS[i]}, s74")

    def stamp(self, i, level=1):
        if self.stamps == level:
            self._st(i)
        if self.opt("pid", -1) == i and self.opt("plev", 1) == level:
            l = self.a.label("PB")
            self.a(f"s_cmp_lg_u32 {sW}, {self.opt('pw', 0)}\ns_cbranch_scc1 {l}\ns_memrealtime s[78:79]\ns_waitcnt lgkmcnt(0)\n"
                   f"s_sub_u32 s80, s78, s76\ns_add_u32 s80, s80, {self.opt('padto', 0)}\n{l}:")

    def srd(self, srd, lo, size):
        b = int(srd[2:].split(":")[0])
        self.a(f"s_mov_b32 s{b}, s{lo}\ns_mov_b32 s{b+1}, s{lo+1}\ns_mov_b32 s{b+2}, {size}\ns_mov_b32 s{b+3}, 0x20000")

    def add1(self, off, base="v2"):
        self.a(f"s_mov_b64 exec, 1\nds_add_u32 {base}, v3 offset:{off}\ns_mov_b64 exec, -1")

    def wait(self, off, target, sleep=1, base="v2", idle=False):
        a = self.a
        l = a.label("LW"); d = a.label("LWD")
        if idle and "noidle" not in self.opts:
            a("s_setprio 0")
        a(f"{l}:\nds_read_b32 v1, {base} offset:{off}\ns_waitcnt lgkmcnt(0)\nv_readfirstlane_b32 s73, v1")
        a(f"s_cmp_ge_u32 s73, {target}\ns_cbranch_scc1 {d}")
        if sleep:
            a(f"s_sleep {sleep}")
        a(f"s_sub_u32 {sSPIN}, {sSPIN}, 1\ns_cbranch_scc0 {l}\ns_branch L_bail\n{d}:")
        if idle and "noidle" not in self.opts:
            a(f"s_setprio {self.busy}")

    def cmp_regs(self, regs, val, op="ne"):
        a = self.a
        a(f"v_cmp_{op}_u32 vcc, {val}, v{regs[0]}")
        for r in regs[1:]:
            a(f"v_cmp_{op}_u32 s[74:75], {val}, v{r}\ns_or_b64 vcc, vcc, s[74:75]")
        a("s_cmp_eq_u64 vcc, 0")

    def poll(self, loads, regs, sleep=2):
        a = self.a
        l = a.label("PL"); d = a.label("PD")
        a(f"{l}:")
        a(loads)
        a("s_waitcnt vmcnt(0)")
        self.cmp_regs(regs, sTAG)
        a(f"s_cbranch_scc1 {d}\ns_sleep {sleep}\ns_sub_u32 {sSPIN}, {sSPIN}, 1\ns_cbranch_scc0 {l}\ns_branch L_bail\n{d}:")

    def set_flag(self, soff):
        self.a(f"v_mov_b32 v1, {sTAG}\ns_mov_b64 exec, 1\nbuffer_store_dword v1, off, {SWS}, {soff} sc1\ns_mov_b64 exec, -1")

    def flag4(self, dst, idx, base):
        self.a(f"s_lshr_b32 {dst}, {idx}, 2\ns_lshl_b32 {dst}, {dst}, 7\ns_and_b32 s73, {idx}, 3\ns_lshl_b32 s73, s73, 2\n"
               f"s_add_u32 {dst}, {dst}, s73\ns_add_u32 {dst}, {dst}, {base}")

    def go_wait(self, base, vt, sleep):
        self.a(f"s_and_b32 s92, s2, 7\ns_lshl_b32 s92, s92, 7\ns_add_u32 s92, s92, {base}")
        self.poll(f"s_mov_b64 exec, 1\nbuffer_load_dword v{vt}, off, {SWS}, s92 sc1\ns_waitcnt vmcnt(0)\nv_readfirstlane_b32 s73, v{vt}\ns_mov_b64 exec, -1\nv_mov_b32 v{vt}, s73", [vt], sleep=sleep)

    def tag(self):
        self.a(f"s_mul_i32 {sTAG}, {sTAG}, 0x9E3779B1\ns_add_u32 {sTAG}, {sTAG}, 0x7F4A7C15")

    def prologue(self):
        a = self.a
        a(f"""
s_cmp_ge_u32 s2, 256
s_cbranch_scc1 L_end
s_load_dwordx16 s[4:19], s[0:1], 0
s_load_dwordx8 s[20:27], s[0:1], 64
v_lshrrev_b32 v1, 6, v0
v_and_b32 v0, 63, v0
v_readfirstlane_b32 {sW}, v1
s_and_b32 {sP}, s2, 31
s_lshr_b32 {sJ}, s2, 5
""")
        if self.stamps:
            a(f"{self.clk} s[74:75]")
        if self.opt("padto", 0):
            a(f"s_memrealtime s[76:77]\ns_mov_b32 s80, {self.opt('padto', 0)}")
        a(f"""
v_lshl_add_u32 v4, v1, 6, v0
v_mov_b32 v2, {L_CT}
v_mov_b32 v3, 1
v_lshlrev_b32 v7, 4, v0
s_mul_i32 s94, {sP}, 2304
s_mul_i32 s95, {sJ}, 144
s_lshl_b32 s91, {sJ}, 2
s_add_u32 s91, s91, {sW}
s_mov_b32 s30, 2359296
s_mov_b32 s31, 0x20000
s_mov_b32 {sSPIN}, {SPIN_MAX}
s_cmp_ge_u32 {sW}, 4
s_waitcnt lgkmcnt(0)
""")
        if self.stamps:
            a(f"s_mov_b32 s{STAMPS[0]}, s74")
            for r in STAMPS[1:]:
                a(f"s_mov_b32 s{r}, 0")
        a("s_cbranch_scc1 L_lwave")

    def kv_addr(self):
        a = self.a
        a(f"""
v_and_b32 v84, 31, v0
v_lshrrev_b32 v85, 5, v0
v_lshlrev_b32 v{self.vK}, 5, v84
v_lshl_add_u32 v{self.vK}, v85, 4, v{self.vK}
v_mov_b32 v86, {OOB}
v_lshlrev_b32 v{self.vKX}, 3, v84
v_cmp_lt_u32 vcc, 31, v0
v_subrev_u32 v87, 64, v{self.vK}
v_cndmask_b32 v{self.vKX}, v{self.vKX}, v86, vcc
v_cmp_eq_u32 vcc, 20, v84
s_and_b32 s73, {sW}, 3
v_cndmask_b32 v87, v86, v87, vcc
v_cmp_gt_u32 vcc, 18, v84
s_lshl_b32 s96, s73, 14
v_cndmask_b32 v{self.vV}, v87, v{self.vK}, vcc
s_add_u32 s96, s96, {WS_K16}
s_lshl_b32 s97, s73, 11
s_add_u32 s97, s97, {WS_KX}
s_mul_i32 s98, s73, {32*VPITCH}
s_add_u32 s98, s98, {WS_VF}
""")

    def ld_k(self, t, slot):
        adv = "\ns_add_u32 s96, s96, 4096" if t % 4 == 3 else ""
        k = f"buffer_load_dwordx4 {vr(self.AK+4*slot,4)}, v{self.vK}, {SWS}, s96 offen offset:{1024*(t%4)} sc1" + adv
        if t % 2:
            return (k,)
        return (k, f"buffer_load_dwordx2 {vr(self.AKX+slot,2)}, v{self.vKX}, {SWS}, s97 offen offset:{128*t} sc1")

    def ld_v(self, t, slot):
        adv = f"\ns_add_u32 s98, s98, {4*VPITCH}" if t % 2 == 1 else ""
        o = 2 * VPITCH * (t % 2)
        return (f"buffer_load_dwordx4 {vr(self.AV+8*slot,4)}, v{self.vV}, {SWS}, s98 offen offset:{o} sc1",
                f"buffer_load_dwordx4 {vr(self.AV+8*slot+4,4)}, v{self.vV}, {SWS}, s98 offen offset:{o+VPITCH} sc1" + adv)

    NFIRST = 4
    NLD1 = 14

    def kv_loads(self, t0=0, t1=None):
        for t in range(t0, self.NFIRST if t1 is None else t1):
            for x in self.ld_k(t, t) + self.ld_v(t, t):
                self.a(x)

    def e_front(self):
        a = self.a
        a("s_setprio 3\ns_mov_b32 s28, s4\ns_mov_b32 s29, s5")
        for k in range(8):
            a(f"""
s_and_b32 s91, s91, 31
s_mul_i32 s90, s91, 73728
s_mul_i32 m0, s91, {XP}
s_add_u32 s90, s90, s94
s_add_u32 s91, s91, 4
buffer_load_dwordx4 v7, {SX}, s90 offen lds
s_add_u32 m0, m0, {32*XP - 1152}
s_nop 0
buffer_load_dwordx4 v7, {SX}, s90 offen offset:1152 lds
""")
        a(f"""
s_load_dword {sTAG}, s[26:27], {WS_EPOCH}
v_lshrrev_b32 v20, 3, v0
s_mov_b32 s73, 73728
v_mul_lo_u32 v21, v20, s73
v_lshrrev_b32 v22, 4, v0
v_xor_b32 v22, v22, v0
v_and_b32 v22, 7, v22
v_lshl_add_u32 v21, v22, 4, v21
s_and_b32 s90, {sW}, 1
s_mul_i32 s90, s90, {16*73728}
s_lshr_b32 s73, {sW}, 1
s_mul_i32 s73, s73, 1152
s_add_u32 s90, s90, s73
s_add_u32 s90, s90, s94
s_add_u32 s90, s90, 1024
s_lshl_b32 s91, {sW}, 11
s_add_u32 m0, s91, {L_X2}
v_xor_b32 v22, 64, v21
buffer_load_dwordx4 v21, {SX}, s90 offen lds
s_add_u32 m0, s91, {L_X2 + 1024}
s_add_u32 s90, s90, {8*73728}
buffer_load_dwordx4 v22, {SX}, s90 offen lds
s_cmp_lt_u32 {sJ}, 4
s_cselect_b32 s36, s14, s16
s_cselect_b32 s37, s15, s17
s_mov_b32 s38, 20736
s_mov_b32 s39, 0x20000
v_mul_u32_u24 v5, 36, v4
v_lshlrev_b32 v6, 1, v4
s_and_b32 s73, {sJ}, 3
s_lshl_b32 s92, s73, 3
""")
        self.srd(SG, 20, 1152)
        s = a.label("KV3")
        a(f"""
buffer_load_dwordx3 v[24:26], v5, {SKV}, s92 offen
buffer_load_ushort v27, v6, {SG}, 0 offen
v_add_u32 v5, {256*36}, v5
buffer_load_dwordx3 v[28:30], v5, {SKV}, s92 offen
buffer_load_ushort v31, v6, {SG}, 0 offen offset:512
s_cmp_gt_u32 {sW}, 0
s_cbranch_scc1 {s}
v_add_u32 v5, {256*36}, v5
buffer_load_dwordx3 v[40:42], v5, {SKV}, s92 offen
buffer_load_ushort v43, v6, {SG}, 0 offen offset:1024
{s}:
s_barrier
""")
        self.stamp(6, 3)
        self.srd(SWS, 26, WS_SIZE)
        a(f"""
v_lshrrev_b32 v7, 7, v4
v_lshlrev_b32 v7, 7, v7
v_lshl_add_u32 v7, v4, 4, v7
v_add_u32 v7, {L_P2KV}, v7
v_and_b32 v14, 15, v0
v_lshrrev_b32 v15, 4, v0
v_and_b32 v17, 31, v0
v_lshrrev_b32 v18, 5, v0
v_bfe_u32 v22, v0, 2, 2
v_lshlrev_b32 v22, 4, v22
v_and_b32 v23, 1, v0
v_lshl_add_u32 v22, v23, 3, v22
v_mul_u32_u24 v16, 2176, v15
v_add_u32 v16, v16, v22
v_lshl_add_u32 v12, v15, 7, v22
v_add_u32 v12, {512*16 + 512}, v12
v_add_u32 v19, {L_P2KV}, v16
v_add_u32 v10, {L_P2KV}, v12
v_add_u32 v16, {L_P2Q}, v16
v_add_u32 v12, {L_P2Q}, v12
s_lshl_b32 s73, {sW}, 4
v_add_u32 v21, s73, v14
v_mul_u32_u24 v20, {XP}, v21
v_lshl_add_u32 v20, v15, 8, v20
v_lshrrev_b32 v22, 1, v21
v_xor_b32 v22, v22, v15
v_and_b32 v22, 7, v22
v_lshlrev_b32 v22, 4, v22
v_lshl_add_u32 v11, v21, 7, v22
v_add_u32 v11, {L_X2}, v11
v_xor_b32 v9, 64, v11
s_lshl_b32 s90, {sP}, 1
s_lshr_b32 s73, {sW}, 1
s_add_u32 s90, s90, s73
s_and_b32 s91, {sW}, 1
s_mov_b32 s92, {(LOG2E_BITS | 0x80000000):#x}
s_lshl_b32 s99, {sW}, 6
s_add_u32 s99, s99, {L_G}
""")
        RG, XF, AK_ = 32, 160, 252
        def wrd(b1, b2, T, dst):
            base, off = (b1, T * 128) if T < 16 else (b2, (T - 16) * 512)
            a(f"ds_read_b64_tr_b16 {vr(dst,2)}, {base} offset:{off}\nds_read_b64_tr_b16 {vr(dst+2,2)}, {base} offset:{off+64}")
        def land():
            s = a.label("KW")
            a(f"s_waitcnt vmcnt(0)\nds_write_b128 v7, v[24:27]\nds_write_b128 v7, v[28:31] offset:{4096+256}")
            a(f"s_cmp_gt_u32 {sW}, 0\ns_cbranch_scc1 {s}\nds_write_b128 v7, v[40:43] offset:{8192+512}\n{s}:")
            self.stamp(1, 3)
            self.add1(CX)
            self.wait(CX, 4, sleep=0)
            self.tag()
            self.stamp(2, 3)
        def kv_gemm(swap):
            acc = vr(AK_, 4)
            def rd(T):
                wrd("v19", "v10", T, 44 + 4 * (T % 5))
                if T < 16:
                    a(f"ds_read_b128 {vr(XF+4*T,4)}, v20 offset:{T*16}")
                else:
                    a(f"ds_read_b128 {vr(XF+4*T,4)}, {'v11' if T == 16 else 'v9'}")
            for T in range(4):
                rd(T)
            for T in range(18):
                if T + 4 < 18:
                    rd(T + 4)
                a(f"s_waitcnt lgkmcnt({3 * (min(T + 5, 18) - T - 1)})")
                W, X = vr(44 + 4 * (T % 5), 4), vr(XF + 4 * T, 4)
                A, B = (X, W) if swap else (W, X)
                a(f"v_mfma_f32_16x16x32_bf16 {acc}, {A}, {B}, {'0' if T == 0 else acc}")
            self.add1(CK)
        kpath = a.label("EK"); done = a.label("EKD")
        a(f"s_cmp_lt_u32 {sJ}, 4\ns_cbranch_scc1 {kpath}")
        a(f"""
s_lshl_b32 s90, s90, 1
s_add_u32 s90, s90, s91
s_mul_i32 s90, s90, {VPITCH}
s_add_u32 s90, s90, {WS_VF}
s_sub_u32 s73, {sJ}, 4
s_lshl_b32 s73, s73, 2
v_add_u32 v36, s73, v14
v_cmp_eq_u32 vcc, 7, v14
v_lshrrev_b32 v37, 1, v15
v_cndmask_b32 v36, v36, 18, vcc
v_lshlrev_b32 v36, 5, v36
v_lshl_add_u32 v36, v37, 3, v36
v_and_b32 v37, 1, v15
v_lshl_add_u32 v36, v37, 4, v36
v_mov_b32 v37, 0x3f803f80
v_lshl_add_u32 v38, v15, 4, s99
s_mov_b32 s88, 0x000f000f
s_cmp_eq_u32 {sJ}, 7
s_cmov_b32 s88, 0x00bf00bf
""")
        land()
        kv_gemm(True)
        a(f"""
v_cvt_pk_bf16_f32 v22, v{AK_}, v{AK_+1}
v_cvt_pk_bf16_f32 v23, v{AK_+2}, v{AK_+3}
v_cndmask_b32 v22, v22, v37, vcc
v_cndmask_b32 v23, v23, v37, vcc
s_mov_b32 exec_lo, s88
s_mov_b32 exec_hi, s88
buffer_store_dwordx2 v[22:23], v36, {SWS}, s90 offen sc1
s_mov_b64 exec, -1
""")
        for r in range(4):
            a(f"v_mul_f32 v{AK_+r}, s92, v{AK_+r}\nv_exp_f32 v{AK_+r}, v{AK_+r}")
        for r in range(4):
            a(f"v_add_f32 v{AK_+r}, 1.0, v{AK_+r}\nv_rcp_f32 v{AK_+r}, v{AK_+r}")
        a(f"""
s_mov_b32 exec_lo, 0x00400040
s_mov_b32 exec_hi, 0x00400040
ds_write_b128 v38, {vr(AK_,4)}
s_branch {done}
{kpath}:
s_lshl_b32 s91, s91, 4
v_add_u32 v37, s91, v14
v_lshlrev_b32 v36, 5, v37
v_lshlrev_b32 v37, 3, v37
v_lshl_add_u32 v38, v14, 2, s99
s_lshl_b32 s88, s90, 10
s_lshl_b32 s73, {sJ}, 3
s_add_u32 s88, s88, s73
s_add_u32 s88, s88, {WS_K16}
s_lshl_b32 s90, {sP}, 8
s_lshr_b32 s73, {sW}, 1
s_lshl_b32 s73, s73, 2
s_add_u32 s90, s90, s73
s_add_u32 s90, s90, {WS_KX}
s_cmp_lg_u32 {sJ}, 3
s_cmov_b32 s90, {OOB}
s_mov_b32 s91, {QSCALE_BITS:#x}
""")
        land()
        kv_gemm(False)
        a(f"""
v_mul_f32 v39, s92, v{AK_+2}
v_mul_f32 v{AK_}, s91, v{AK_}
v_mul_f32 v{AK_+1}, s91, v{AK_+1}
v_mul_f32 v{AK_+2}, s91, v{AK_+2}
v_mul_f32 v{AK_+3}, s91, v{AK_+3}
v_cvt_pk_bf16_f32 v22, v{AK_}, v{AK_+1}
v_cvt_pk_bf16_f32 v23, v{AK_+2}, v{AK_+3}
s_mov_b64 exec, 0xffff
buffer_store_dwordx2 v[22:23], v36, {SWS}, s88 offen sc1
s_mov_b32 exec_lo, 0xffff0000
buffer_store_dword v22, v37, {SWS}, s90 offen sc1
v_exp_f32 v39, v39
s_nop 0
v_add_f32 v39, 1.0, v39
v_rcp_f32 v39, v39
s_nop 0
ds_write_b32 v38, v39
{done}:
s_mov_b64 exec, -1
""")
        self.stamp(7, 3)
        a(f"""
s_lshl_b32 s73, {sP}, 3
s_add_u32 s73, s73, {sJ}
s_lshl_b32 s73, s73, 4
s_add_u32 s91, s73, {WS_FKV}
v_bfe_u32 v22, v0, 2, 2
v_lshl_add_u32 v19, v18, 3, v22
v_lshlrev_b32 v19, 6, v19
v_bfe_u32 v22, v0, 4, 1
v_lshl_add_u32 v19, v22, 5, v19
v_and_b32 v22, 3, v0
v_lshl_add_u32 v19, v22, 3, v19
s_and_b32 s73, {sW}, 1
s_mul_i32 s73, s73, {L_WQ1 - L_WQ0}
s_add_u32 s73, s73, {L_WQ0}
v_add_u32 v19, s73, v19
s_lshr_b32 s73, {sW}, 1
s_lshl_b32 s73, s73, 5
v_add_u32 v21, s73, v17
v_mul_u32_u24 v13, {XP}, v21
v_lshl_add_u32 v13, v18, 4, v13
v_mul_u32_u24 v26, 48, v4
v_add_u32 v26, {L_QS + 36}, v26
v_lshrrev_b32 v22, 1, v21
v_xor_b32 v22, v22, v18
v_and_b32 v22, 7, v22
v_lshlrev_b32 v22, 4, v22
v_lshl_add_u32 v6, v21, 7, v22
v_add_u32 v6, {L_X2}, v6
v_xor_b32 v7, 32, v6
v_xor_b32 v8, 64, v6
v_xor_b32 v9, 0x60, v6
v_mul_u32_u24 v22, 48, v21
v_add_u32 v22, {L_QS}, v22
v_lshl_add_u32 v23, v18, 3, v22
v_mul_u32_u24 v24, 3044, v18
v_add_u32 v24, v24, v22
s_lshl_b32 s73, {sW}, 4
v_add_u32 v25, s73, v14
v_mul_u32_u24 v25, 48, v25
v_lshl_add_u32 v25, v15, 3, v25
v_add_u32 v25, {L_QS + 3*3072 + 20}, v25
v_mov_b32 v27, 0
v_lshlrev_b32 v28, 4, v0
s_lshl_b32 s93, {sW}, 10
s_add_u32 s93, s93, {WS_FKV}
""")
        self.kv_addr()
        RX, AM, AXQ = 64, 232, 248
        def rdm(t):
            b = RG + 8 * (t % 4)
            a(f"ds_read_b64_tr_b16 {vr(b,2)}, v19 offset:{t*1024}\nds_read_b64_tr_b16 {vr(b+2,2)}, v19 offset:{t*1024+256}")
            a(f"ds_read_b128 {vr(b+4,4)}, v13 offset:{t*32}" if t < 32 else f"ds_read_b128 {vr(b+4,4)}, v{6+t-32}")
        def mm(t):
            b = RG + 8 * (t % 4)
            a(f"v_mfma_f32_32x32x16_bf16 {vr(AM,16)}, {vr(b,4)}, {vr(b+4,4)}, {'0' if t == 0 else vr(AM,16)}")
        def stage(t0, t1):
            for t in range(t0, min(t0 + 3, t1)):
                rdm(t)
            for t in range(t0, t1):
                if t + 3 < t1:
                    rdm(t + 3)
                a(f"s_waitcnt lgkmcnt({3 * (min(t + 4, t1) - t - 1)})")
                mm(t)
        def kv_flag():
            nf = a.label("NF")
            a(f"s_waitcnt vmcnt(0)\ns_mov_b64 exec, 1\nds_add_rtn_u32 v1, v2, v3 offset:{CF}\ns_mov_b64 exec, -1\ns_waitcnt lgkmcnt(0)")
            a(f"v_readfirstlane_b32 s73, v1\ns_cmp_lg_u32 s73, 3\ns_cbranch_scc1 {nf}")
            self.set_flag("s91")
            a(f"{nf}:")
            self.stamp(3, 3)
        FA = self.opt("fa", 12)
        if FA == 0:
            kv_flag()
        self.wait(C0A, 2, sleep=0)
        self.stamp(4, 3)
        stage(0, 12)
        if FA == 12:
            kv_flag()
        self.add1(CE)
        self.wait(C0B, 2, sleep=0)
        flags = f"buffer_load_dword v84, v28, {SWS}, s93 offen sc1"
        stage(12, 20)
        self.wait(C0D, 2, sleep=0)
        stage(20, 28)
        self.wait(C0C, 2, sleep=0)
        self.stamp(9, 3)
        seq = []
        xs = list(range(18))
        for t in range(28, 36):
            seq.append(("m", t))
            for _ in range(3 if t < 30 else 2):
                seq.append(("x", xs.pop(0)))
        assert not xs
        cost = lambda it: 3 if it[0] == "m" else 2
        def issue(it):
            if it[0] == "m": rdm(it[1])
            else: wrd("v16", "v12", it[1], RX + 4 * (it[1] % 3))
        AH = 3
        for it in seq[:AH]:
            issue(it)
        a(f"ds_read_b32 v31, v2 offset:{CE}")
        for i, it in enumerate(seq):
            ahead = sum(cost(x) for x in seq[i + 1:i + AH]) + (1 if i < AH else 0)
            a(f"s_waitcnt lgkmcnt({ahead})")
            if it[0] == "m":
                mm(it[1])
            else:
                T = it[1]
                a(f"v_mfma_f32_16x16x32_bf16 {vr(AXQ,4)}, {vr(RX+4*(T%3),4)}, {vr(XF+4*T,4)}, {'0' if T == 0 else vr(AXQ,4)}")
            if i == self.opt("fp", 6):
                a(flags)
            if i + AH < len(seq):
                issue(seq[i + AH])
        self.stamp(8, 3)
        miss = a.label("KM")
        a("s_waitcnt vmcnt(0)")
        self.cmp_regs([84], sTAG)
        a(f"s_cselect_b32 s89, 1, 0\ns_cbranch_scc0 {miss}")
        self.kv_loads(0, 2)
        a(f"{miss}:")
        self.stamp(11, 3)
        ok = a.label("CEOK")
        a(f"v_readfirstlane_b32 s73, v31\ns_cmp_ge_u32 s73, 4\ns_cbranch_scc1 {ok}")
        self.wait(CE, 4, sleep=0)
        a(f"{ok}:")
        a(f"ds_write_b32 v26, v27\nv_cvt_pk_bf16_f32 v{AXQ}, v{AXQ}, v{AXQ+1}\nv_cvt_pk_bf16_f32 v{AXQ+1}, v{AXQ+2}, v{AXQ+3}")
        a(f"s_mov_b32 exec_hi, 0\nds_write2_b32 v25, v{AXQ}, v{AXQ+1} offset0:0 offset1:1\ns_mov_b64 exec, -1")
        m1 = a.label("QM1"); md = a.label("QMD")
        a(f"s_bitcmp1_b32 {sW}, 0\ns_cbranch_scc1 {m1}")
        off = lambda c: (c // 18) * 3072 + (c % 18) * 2
        for m in range(2):
            if m == 1:
                a(f"s_branch {md}\n{m1}:")
            for k in range(8):
                c0 = 32 * m + 8 * (k // 2) + 2 * (k % 2)
                d = off(c0 + 4) - off(c0)
                assert d in (8, 3044)
                a(f"v_cvt_pk_bf16_f32 v{AM+k}, v{AM+2*k}, v{AM+2*k+1}")
                a(f"ds_write_b32 {'v23' if d == 8 else 'v24'}, v{AM+k} offset:{off(c0)}")
        a(f"{md}:")
        self.add1(C1)
        have = a.label("KH")
        a(f"s_cmp_eq_u32 s89, 1\ns_cbranch_scc1 {have}")
        self.poll(flags, [84], sleep=12)
        self.kv_loads(0, 2)
        a(f"{have}:")
        self.kv_loads(2)
        self.stamp(10, 3); self.stamp(10)
        a(f"s_setprio 2\ns_mov_b32 s99, {OOB}\nv_mov_b32 v232, v2")

    def panel_setup(self, nw, va=14):
        self.a(f"""
v_lshrrev_b32 v{va}, 2, v0
v_mul_u32_u24 v{va}, 1152, v{va}
v_and_b32 v{va+1}, 3, v0
v_lshl_add_u32 v{va}, v{va+1}, 4, v{va}
v_mul_u32_u24 v{va+1}, 1152, v0
s_and_b32 s73, {sW}, {nw-1}
s_mul_i32 s84, s73, {16*1152}
s_add_u32 s84, s84, s95
s_lshl_b32 s85, s73, 10
""")

    def panel_loads(self, srd, l0, l1, lx, padded, end, nw, va=14, rotate=False):
        a = self.a
        lp = a.label("PNL")
        if rotate:
            a(f"s_lshr_b32 s73, {sP}, 3\ns_mul_i32 s82, s73, {8*1024}\ns_add_u32 s85, s85, s82\ns_mul_i32 s82, s73, {8*16*1152}\ns_add_u32 s84, s84, s82\ns_mov_b32 s88, {end//nw - 1}")
        a(f"""
{lp}:
s_add_u32 m0, s85, {l0}
s_add_u32 s83, s84, 128
buffer_load_dwordx4 v{va}, {srd}, s84 offen lds
s_add_u32 m0, s85, {l1 - 64}
s_lshr_b32 s82, s85, 2
buffer_load_dwordx4 v{va}, {srd}, s84 offen offset:64 lds
""")
        if padded:
            a("s_lshr_b32 s73, s85, 13\ns_lshl_b32 s73, s73, 7\ns_add_u32 s82, s82, s73")
        a(f"""
s_add_u32 m0, s82, {lx}
s_mov_b64 exec, 0xffff
buffer_load_dwordx4 v{va+1}, {srd}, s83 offen lds
s_mov_b64 exec, -1
s_add_u32 s85, s85, {1024*nw}
s_add_u32 s84, s84, {16*nw*1152}
s_cmp_lt_u32 s85, {1024*end}
""")
        if rotate:
            a(f"s_cselect_b32 s82, 0, {1024*end}\ns_cselect_b32 s83, 0, {16*1152*end}\ns_sub_u32 s85, s85, s82\ns_sub_u32 s84, s84, s83\ns_sub_u32 s88, s88, 1\ns_cbranch_scc0 {lp}")
        else:
            a(f"s_cbranch_scc1 {lp}")

    def l_front(self):
        a = self.a
        a(f"""
s_load_dword {sTAG}, s[26:27], {WS_EPOCH}
v_lshl_add_u32 v5, v0, 2, v2
v_mov_b32 v6, 0
ds_write_b32 v5, v6 offset:2048
v_lshlrev_b32 v5, 3, v4
v_add_u32 v5, {L_CT - 2048}, v5
v_mov_b32 v7, 0
ds_write_b64 v5, v[6:7]
s_sub_u32 s99, {sW}, 4
v_and_b32 v18, 31, v0
v_lshrrev_b32 v19, 5, v0
s_lshl_b32 s89, s99, 3
s_add_u32 s89, s89, {sJ}
s_cmp_ge_u32 s89, 18
s_cselect_b32 s89, 99, s89
v_bfe_u32 v20, v0, 2, 1
v_lshlrev_b32 v20, 4, v20
v_bfe_u32 v21, v0, 3, 2
v_lshl_add_u32 v20, v21, 2, v20
v_and_b32 v21, 3, v0
v_add_u32 v20, v20, v21
""")
        if "ipf" in self.opts:
            n4 = a.label("NPF")
            a(f"""
s_cmp_lg_u32 {sW}, 6
s_cbranch_scc1 {n4}
s_getpc_b64 s[64:65]
L_pc0:
s_sub_u32 s64, s64, L_pc0-{NAME}_kernel
s_subb_u32 s65, s65, 0
s_mov_b32 s66, L_end-{NAME}_kernel
s_mov_b32 s67, 0x20000
s_lshr_b32 s73, s2, 3
v_lshlrev_b32 v8, 12, v0
s_lshl_b32 s73, s73, 7
buffer_load_dword v9, v8, {STB}, s73 offen
s_getpc_b64 s[64:65]
s_add_u32 s64, s64, spectral_tables@rel32@lo+4
s_addc_u32 s65, s65, spectral_tables@rel32@hi+12
s_mov_b32 s66, {2*self.NTAB*1024}
s_nop 1
buffer_load_dword v10, v8, {STB}, s73 offen
{n4}:
""")
        self.srd(SWS, 26, WS_SIZE)
        self.srd(SWQ, 12, 663552)
        FPRE = self.opt("fpre", 8)
        def fsetup():
            a(f"""
s_lshl_b32 s73, s89, 5
v_add_u32 v44, s73, v18
v_lshrrev_b32 v45, 1, v44
v_and_b32 v46, 1, v44
v_cmp_eq_u32 vcc, 1, v44
v_mov_b32 v47, 288
v_cndmask_b32 v45, v45, v47, vcc
v_cndmask_b32 v46, v46, 0, vcc
v_and_b32 v47, 1, v45
v_lshlrev_b32 v47, 31, v47
v_or_b32 v17, 1.0, v47
v_cvt_f32_u32 v45, v45
v_cvt_f32_u32 v46, v46
v_mul_f32 v45, {f32bits(1/576):#x}, v45
v_mul_f32 v46, 0x3e800000, v46
v_lshlrev_b32 v47, 3, v19
v_cvt_f32_u32 v47, v47
v_fma_f32 v46, v47, v45, v46
v_mul_f32 v55, 0x41800000, v45
""")
            for jj in range(8):
                a(f"s_mov_b32 s73, {f32bits(jj):#x}\nv_fma_f32 v{56+jj}, s73, v45, v46")
        def fgen(t):
            if t:
                a(f"s_mov_b32 s73, {f32bits(t):#x}")
            for jj in range(8):
                if t:
                    a(f"v_fma_f32 v{64+jj}, s73, v55, v{56+jj}\nv_cos_f32 v{64+jj}, v{64+jj}")
                else:
                    a(f"v_cos_f32 v{64+jj}, v{56+jj}")
            for k in range(4):
                a(f"v_cvt_pk_bf16_f32 v{104+4*t+k}, v{64+2*k}, v{65+2*k}")
        npre = a.label("NPRE"); n7 = a.label("NW7")
        a(f"v_mov_b32 v23, 0\ns_mov_b32 s98, {OOB}")
        if "wearly" in self.opts:
            a(f"s_cmp_lg_u32 {sW}, 7\ns_cbranch_scc1 {n7}")
            self.wt_loads()
        a(f"{n7}:\ns_cmp_eq_u32 s89, 99\ns_cbranch_scc1 {npre}")
        fsetup()
        for t in range(FPRE):
            fgen(t)
        a(f"{npre}:\ns_waitcnt lgkmcnt(0)")
        self.tag()
        a("s_barrier")
        wqd = a.label("WQD")
        a(f"s_cmp_lt_u32 {sW}, 6\ns_cbranch_scc1 {wqd}")
        self.panel_setup(2)
        self.panel_loads(SWQ, L_WQ0, L_WQ1, L_P2Q, True, 20, 2)
        a("s_waitcnt vmcnt(12)")
        self.add1(C0A)
        self.panel_loads(SWQ, L_WQ0, L_WQ1, L_P2Q, True, 26, 2)
        self.wait(CK, 4, sleep=0)
        self.panel_loads(SWQ, L_WQ0, L_WQ1, L_P2Q, True, 36, 2)
        self.stamp(6, 3)
        a("s_waitcnt vmcnt(24)")
        self.add1(C0B)
        a("s_waitcnt vmcnt(12)")
        self.add1(C0D)
        if "wmid" in self.opts:
            n7 = a.label("NM7"); d7 = a.label("DM7")
            a(f"s_cmp_lg_u32 {sW}, 7\ns_cbranch_scc1 {n7}")
            self.wt_loads()
            a(f"s_waitcnt vmcnt(16)\ns_branch {d7}\n{n7}:\ns_waitcnt vmcnt(0)\n{d7}:")
        else:
            a("s_waitcnt vmcnt(0)")
        self.add1(C0C)
        self.stamp(1, 3)
        a(f"{wqd}:")
        nod = a.label("NOD")
        a(f"s_cmp_eq_u32 s89, 99\ns_cbranch_scc1 {nod}")
        for t in range(FPRE, 18):
            fgen(t)
        self.stamp(9, 3)
        a(f"""
v_mul_u32_u24 v25, {XP}, v20
v_lshl_add_u32 v25, v19, 4, v25
v_lshrrev_b32 v22, 1, v20
v_xor_b32 v22, v22, v19
v_and_b32 v22, 7, v22
v_lshlrev_b32 v22, 4, v22
v_lshl_add_u32 v6, v20, 7, v22
v_add_u32 v6, {L_X2}, v6
v_xor_b32 v7, 32, v6
v_xor_b32 v8, 64, v6
v_xor_b32 v9, 0x60, v6
v_lshlrev_b32 v22, 12, v18
v_lshl_add_u32 v22, v19, 5, v22
s_lshl_b32 s90, s89, 17
s_lshl_b32 s73, {sP}, 7
s_add_u32 s90, s90, s73
s_add_u32 s90, s90, {WS_T}
""")
        RG = 44
        def frag(t, n, q):
            return vr(RG + 16 * (t % 3) + 8 * n + 4 * q, 4)
        def rd(t):
            for n in range(2):
                for q in range(2):
                    ks = t + 18 * q
                    if ks < 32:
                        a(f"ds_read_b128 {frag(t,n,q)}, v25 offset:{n*32*XP + ks*32}")
                    else:
                        a(f"ds_read_b128 {frag(t,n,q)}, v{6+ks-32} offset:{n*4096}")
        def dft(t0, t1):
            for t in range(t0, min(t0 + 2, t1)):
                rd(t)
            for t in range(t0, t1):
                if t + 2 < t1:
                    rd(t + 2)
                a(f"s_waitcnt lgkmcnt({4 * (min(t+3, t1) - t - 1)})")
                for n in range(2):
                    for q in range(2):
                        acc = vr(176 + 32 * n + 16 * q, 16)
                        a(f"v_mfma_f32_32x32x16_bf16 {acc}, {frag(t,n,q)}, {vr(104+4*t,4)}, {'0' if t == 0 else acc}")
        DPRE = self.opt("dpre", 10)
        if DPRE:
            self.wait(CK, 4)
            dft(0, DPRE)
        a("s_setprio 3")
        self.wait(C1, 4)
        self.stamp(3, 3)
        dft(DPRE, 18)
        self.stamp(8, 3)
        self.wait(CV, 4, sleep=2)
        for n in range(2):
            b = 176 + 32 * n
            for r in range(16):
                a(f"v_fma_f32 v{b+r}, v17, v{b+16+r}, v{b+r}")
            for k in range(8):
                a(f"v_cvt_pk_bf16_f32 v{b+k}, v{b+2*k}, v{b+2*k+1}")
            a(f"buffer_store_dwordx4 {vr(b,4)}, v22, {SWS}, s90 offen offset:{64*n} sc1")
            a(f"buffer_store_dwordx4 {vr(b+4,4)}, v22, {SWS}, s90 offen offset:{64*n+16} sc1")
        a(f"{nod}:")
        n6 = a.label("N6"); n7 = a.label("N7")
        a(f"s_cmp_eq_u32 {sW}, 7\ns_cbranch_scc1 {n7}\ns_cmp_lg_u32 {sW}, 6\ns_cbranch_scc1 {n6}\ns_setprio 3")
        self.wait(CV, 4, sleep=2)
        self.poison()
        a(f"{n6}:\ns_waitcnt vmcnt(0)")
        self.add1(CD)
        self.stamp(4, 3); self.stamp(4)
        a(f"{n7}:")

    def g_gen(self):
        a = self.a
        N = 1.0 / (M.S * M.D)
        skip = a.label("GS"); nx = a.label("GNX"); nk = a.label("GNK")
        assert all((f * 1821) >> 16 == f // 36 for f in range(864))
        assert all((f * 21846) >> 16 == f // 3 for f in range(24))
        a(f"""
s_mov_b32 s99, {OOB}
s_cmp_ge_u32 s2, 216
s_cbranch_scc1 {skip}
s_lshl_b32 s90, s2, 2
s_lshl_b32 s99, s2, 12
s_add_u32 s99, s99, {WS_G}
s_mul_i32 s91, s90, 1821
s_lshr_b32 s91, s91, 16
s_mul_i32 s73, s91, 36
s_sub_u32 s92, s90, s73
s_mul_i32 s93, s91, 21846
s_lshr_b32 s93, s93, 16
s_mul_i32 s73, s93, 3
s_sub_u32 s91, s91, s73
s_mul_i32 s93, s93, 72
s_lshl_b32 s73, s91, 5
s_add_u32 s93, s93, s73
v_mov_b32 v44, v20
s_cmp_lg_u32 s91, 2
s_cbranch_scc1 {nx}
v_mov_b32 v44, v18
{nx}:
v_add_u32 v44, s93, v44
s_lshl_b32 s73, s92, 3
v_lshl_add_u32 v45, v19, 2, s73
v_mul_u32_u24 v45, v45, v44
v_mul_u32_u24 v47, 5, v44
s_mov_b32 s73, {f32bits(1/576):#x}
s_mov_b32 s93, {f32bits(2*N):#x}
""")
        for fr in range(4):
            for cq in range(4):
                a(f"v_cvt_f32_u32 v46, v45\nv_mul_f32 v46, s73, v46\nv_fract_f32 v46, v46")
                a(f"v_cos_f32 v{48+2*cq}, v46\nv_sin_f32 v{49+2*cq}, v46")
                a("v_add_u32 v45, v45, v44" if cq < 3 else "v_add_u32 v45, v45, v47")
            for cq in range(4):
                a(f"v_mul_f32 v{48+2*cq}, s93, v{48+2*cq}\nv_mul_f32 v{49+2*cq}, s93, -v{49+2*cq}")
            if fr == 0:
                a(f"""
s_cmp_lg_u32 s92, 0
s_cbranch_scc1 {nk}
s_mov_b32 exec_hi, 0
v_mov_b32 v48, {f32bits(N):#x}
v_lshlrev_b32 v49, 31, v44
v_or_b32 v49, v48, v49
s_mov_b64 exec, -1
{nk}:
""")
            for k in range(4):
                a(f"v_cvt_pk_bf16_f32 v{240+4*fr+k}, v{48+2*k}, v{49+2*k}")
        a(f"{skip}:")

    WB = 112

    def poison(self):
        a = self.a
        a(f"v_lshlrev_b32 v24, 4, v0\nv_mov_b32 v28, -1\nv_mov_b32 v29, -1\nv_mov_b32 v30, -1\nv_mov_b32 v31, -1")
        a(f"s_mul_i32 s90, {sP}, {8*9216}\ns_add_u32 s90, s90, {WS_OF}\ns_mul_i32 s91, {sJ}, 9216\ns_add_u32 s91, s91, s90\ns_add_u32 s91, s91, 8192")
        a(f"buffer_store_dwordx4 v[28:31], v24, {SWS}, s91 offen sc1\ns_lshl_b32 s73, {sJ}, 10\ns_add_u32 s90, s90, s73")
        for i in range(8):
            a(f"buffer_store_dwordx4 v[28:31], v24, {SWS}, s90 offen sc1\ns_add_u32 s90, s90, 9216")

    def wt_loads(self):
        a = self.a
        self.srd(SWR, 6, 2048 * 578)
        self.srd(SWI, 8, 2048 * 578)
        a(f"""
v_and_b32 v26, 7, v0
v_lshrrev_b32 v27, 3, v0
v_mul_u32_u24 v22, 578, v26
v_mad_u32_u24 v22, v27, 18, v22
s_lshr_b32 s93, s2, 6
s_bfe_u32 s92, s2, 0x20004
s_and_b32 s88, s2, 15
s_lshl_b32 s90, s88, 7
s_lshl_b32 s73, s92, 3
s_add_u32 s90, s90, s73
s_mul_i32 s90, s90, 578
s_mul_i32 s73, s93, 144
s_add_u32 s90, s90, s73
""")
        for jr in range(4):
            for ri, srd in enumerate((SWR, SWI)):
                b = self.WB + 24 * ri + 6 * jr
                a(f"buffer_load_dwordx4 {vr(b,4)}, v22, {srd}, s90 offen\nbuffer_load_dword v{b+4}, v22, {srd}, s90 offen offset:16")
            if jr < 3:
                a(f"s_add_u32 s90, s90, {32*578}")
        a(f"""
s_mov_b32 s73, {9*8192}
v_mul_lo_u32 v23, v27, s73
v_lshl_add_u32 v23, v26, 4, v23
s_mul_i32 s98, s93, {72*8192}
s_lshl_b32 s73, s88, 8
s_add_u32 s98, s98, s73
s_and_b32 s73, s92, 1
s_lshl_b32 s73, s73, 7
s_add_u32 s98, s98, s73
s_lshr_b32 s73, s92, 1
s_lshl_b32 s73, s73, 12
s_add_u32 s98, s98, s73
s_add_u32 s98, s98, {WS_WT}
""")

    def wt_stores(self):
        a = self.a
        last = a.label("WL")
        a("s_mov_b32 s92, 0x05040100\ns_mov_b32 s93, 0x07060302")
        for x in range(10):
            if x == 9:
                a(f"s_cmp_lt_u32 s2, 192\ns_cbranch_scc1 {last}\ns_mov_b32 exec_lo, 0\ns_mov_b32 exec_hi, 0xff000000")
            t = self.WB + 48 + 4 * (x % 3)
            for ri in range(2):
                for pr in range(2):
                    lo = self.WB + 24 * ri + 12 * pr + x // 2
                    a(f"v_perm_b32 v{t+2*ri+pr}, v{lo+6}, v{lo}, {'s93' if x % 2 else 's92'}")
            a(f"buffer_store_dwordx4 {vr(t,4)}, v23, {SWS}, s98 offen sc1\ns_add_u32 s98, s98, 8192")
        a(f"s_mov_b64 exec, -1\n{last}:")

    def s_flag(self):
        a = self.a
        self.g_gen()
        a("s_setprio 3\nv_lshlrev_b32 v24, 4, v0")
        self.wait(CV, 4, sleep=2)
        self.stamp(3, 3)
        if "wearly" not in self.opts and "wmid" not in self.opts:
            self.wt_loads()
        a("s_waitcnt vmcnt(0)")
        self.wt_stores()
        for fr in range(4):
            a(f"buffer_store_dwordx4 {vr(240+4*fr,4)}, v24, {SWS}, s99 offen offset:{1024*fr} sc1")
        self.stamp(10, 3)
        self.flag4("s91", "s2", WS_FS)
        a("s_waitcnt vmcnt(0)")
        self.stamp(11, 3)
        self.wait(CD, 3, sleep=2)
        self.set_flag("s91")
        self.add1(CW)
        self.stamp(6); self.stamp(2, 3)
        self.wait(CR, 4, sleep=4)
        self.stage2_tables()

    def attention(self):
        a = self.a
        K0, KX0, V0, S0, O0, Q0, QX0 = self.AK, self.AKX, self.AV, self.AS, self.AO, self.AQ, self.AQX
        a(f"""
v_and_b32 v84, 31, v0
v_lshrrev_b32 v85, 5, v0
s_lshr_b32 s88, {sW}, 2
s_mul_i32 s73, s88, 6144
s_add_u32 s73, s73, {L_QS}
v_mul_u32_u24 v{self.vQ}, 48, v84
v_add_u32 v{self.vQ}, s73, v{self.vQ}
v_lshl_add_u32 v{self.vQX}, v85, 2, v{self.vQ}
v_add_u32 v{self.vQX}, 32, v{self.vQX}
v_lshl_add_u32 v{self.vQ}, v85, 4, v{self.vQ}
s_and_b32 s73, {sW}, 3
s_mul_i32 s73, s73, 2560
s_add_u32 s73, s73, {L_EX}
v_lshl_add_u32 v{self.vEX}, v0, 4, s73
s_add_u32 s73, s73, 2048
v_lshl_add_u32 v{self.vEX2}, v0, 3, s73
s_lshl_b32 s73, s88, 10
s_add_u32 s73, s73, {L_CT}
v_lshl_add_u32 v{self.vCT}, v0, 2, s73
s_mul_i32 s73, s88, {CN - C1}
v_add_u32 v86, s73, v2
v_mov_b32 v{QX0+1}, 0
v_mov_b32 v{QX0+2}, 0
""")
        self.wait(C1, 4, sleep=0)
        self.stamp(5); self.stamp(5, 3); self.stamp(1, 5)
        qmain = lambda q: f"ds_read_b128 {vr(Q0,4)}, v{self.vQ} offset:{1536*(q%4)}"
        qx = lambda q: f"ds_read_b32 v{QX0}, v{self.vQX} offset:{1536*(q%4)}\nds_read_b32 v{QX0+3}, v{self.vQX} offset:{1536*(q%4)}"
        a(qmain(0)); a(qx(0))
        keys = lambda kind, t: ([("K", t)] + ([] if t % 2 else [("X", t)])) if kind == "K" else [("V0", t), ("V1", t)]
        issued = []
        for t in range(self.NFIRST):
            issued += keys("K", t) + keys("V", t)
        state = {"done": 0}
        def need(*ks):
            idx = max(issued.index(k) for k in ks) + 1
            if idx > state["done"]:
                state["done"] = idx
                return [f"s_waitcnt vmcnt({len(issued) - idx})"]
            return []
        slots = {}
        def put(g, name, *items):
            slots.setdefault((g, name), []).extend(items)
        def put_loads(kind, t, where):
            ins = self.ld_k(t, t % 8) if kind == "K" else self.ld_v(t, t % 8)
            for x, key, (g, name) in zip(ins, keys(kind, t), where):
                put(g, name, (key, x))
        for t in range(self.NFIRST, 8):
            g = t - self.NFIRST
            put_loads("K", t, [(g, "B"), (g, "B")])
            put_loads("V", t, [(g, "C"), (g, "D")])
        for t in range(8):
            g = 24 + (3 * t) // 2
            put_loads("K", 8 + t, [(g, "C"), (g, "D")])
            put_loads("V", 8 + t, [(g + 1, "A"), (g + 1, "B")])
        def slot(g, name):
            out = []
            for it in slots.get((g, name), []):
                if isinstance(it, tuple):
                    issued.append(it[0]); out.append(it[1])
                else:
                    out.append(it)
            return out
        sreg = lambda g: S0 + 16 * (g % 2)
        oreg = lambda ps: O0 + 10 * (ps % 4)
        def qk16(g):
            return f"v_mfma_f32_32x32x16_bf16 {vr(sreg(g),16)}, {vr(K0+4*(g%8),4)}, {vr(Q0,4)}, 0"
        def qkx(g):
            return f"v_mfma_f32_32x32x8_bf16 {vr(sreg(g),16)}, {vr(KX0+2*((g%8)//2),2)}, {vr(QX0+2*(g%2),2)}, {vr(sreg(g),16)}"
        def pv(g, u):
            o = vr(oreg(g // 8), 16)
            c = "0" if (g // 8 < 4 and g % 8 == 0 and u == 0) else o
            return f"v_mfma_f32_32x32x16_bf16 {o}, {vr(V0+8*(g%8)+4*u,4)}, {vr(sreg(g)+4*u,4)}, {c}"
        kt = lambda g: (g % 8) + (8 if g >= 32 else 0)
        def kneed(g):
            t = kt(g)
            return need(("K", t), ("X", t & ~1))
        def export(q):
            o = O0 + 10 * q
            return [f"ds_write_b128 v{self.vEX}, {vr(o,4)} offset:{10240*q}", f"ds_write_b128 v{self.vEX}, {vr(o+4,4)} offset:{10240*q+1024}",
                    f"ds_write_b64 v{self.vEX2}, {vr(o+8,2)} offset:{10240*q}",
                    f"ds_add_u32 v{self.vCT}, v3 offset:{256*q}"]
        for x in kneed(0) + ["s_waitcnt lgkmcnt(0)", qk16(0), qkx(0)]:
            a(x)
        for ps in range(7):
            put(8 * ps + 6, "B", qmain(ps + 1))
            q1, q2 = qx(ps + 1).split("\n")
            put(8 * ps + 6, "C", q1); put(8 * ps + 6, "D", q2)
        for ps in range(5, 8):
            ex = export(ps - 5)
            put(8 * ps, "C", ex[0]); put(8 * ps, "D", ex[1]); put(8 * ps + 1, "A", ex[2]); put(8 * ps + 1, "B", ex[3])
        hi = a.label("PHI"); nf = a.label("NYF"); lo = a.label("PLO"); ok = a.label("CNOK")
        put(7 - self.NFIRST, "D", f"s_mov_b64 exec, 1\nds_add_u32 v2, v3 offset:{CV}\ns_mov_b64 exec, -1\ns_cmp_lt_u32 {sW}, 4\ns_cbranch_scc1 {hi}\ns_setprio 1\n{hi}:")
        put(1, "D", f"s_cmp_eq_u32 s99, {OOB}\ns_cbranch_scc1 {nf}\ns_waitcnt vmcnt(7)\ns_mov_b64 exec, 1\nds_add_rtn_u32 v233, v232, v3 offset:{YA}\n"
                    f"v_mov_b32 v1, {sTAG}\ns_waitcnt lgkmcnt(0)\nv_readfirstlane_b32 s73, v233\ns_cmp_lg_u32 s73, 1\ns_cmov_b32 s99, {OOB}\n"
                    f"buffer_store_dword v1, off, {SWS}, s99 sc1\ns_mov_b64 exec, -1\n{nf}:")
        put(23, "D", "s_setprio 3")
        put(self.opt("cr", 35), "C", f"s_mov_b64 exec, 1\nds_add_u32 v2, v3 offset:{CR}\ns_mov_b64 exec, -1")
        put(36, "A", f"s_setprio 1\ns_cmp_ge_u32 {sW}, 4\ns_cbranch_scc1 {lo}\ns_setprio 2\n{lo}:")
        put(36, "D", f"ds_read_b32 v87, v86 offset:{C1}")
        for g in range(64):
            ps, t = divmod(g, 8)
            s = sreg(g)
            e = lambda i: f"v_exp_f32 v{s+i}, v{s+i}"
            c = lambda k: f"v_cvt_pk_bf16_f32 v{s+k}, v{s+2*k}, v{s+2*k+1}"
            last = g == 63
            seq = [e(0), e(1)]
            if g > 0:
                seq.append(pv(g - 1, 1))
            seq += slot(g, "A")
            if not last:
                w = kneed(g + 1)
                if t == 7:
                    w = [(w[0] + " " if w else "s_waitcnt ") + "lgkmcnt(0)"]
                seq += w
            seq += [e(2), e(3), c(0), e(4), c(1)]
            if not last:
                seq.append(qk16(g + 1))
            seq += slot(g, "B") + [e(5), e(6), e(7), c(2), e(8), c(3)]
            if not last:
                seq.append(qkx(g + 1))
            seq += slot(g, "C") + need(("V0", kt(g)), ("V1", kt(g)))
            seq += [e(9), e(10), e(11), c(4), e(12), c(5), pv(g, 0)] + slot(g, "D") + [e(13), e(14), e(15), c(6), c(7)]
            for x in seq:
                a(x)
            if g == 39:
                a(f"v_readfirstlane_b32 s73, v87\ns_cmp_ge_u32 s73, 4\ns_cbranch_scc1 {ok}")
                self.wait(C1, 4, sleep=2, base="v86")
                a(f"{ok}:")
            if g == 7:
                self.stamp(11)
            if t == 7:
                self.stamp(2 + ps, 5)
        a(pv(63, 1))
        self.norm_setup(1)
        ex = export(3)
        for x in ex[:3]:
            a(x)
        a(f"ds_add_rtn_u32 v1, v{self.vCT}, v3 offset:768")

    T64, T32A, TW1, TW2, T32B, NTAB = 0, 24, 27, 35, 43, 49
    NPRE = 35

    def make_tables(self):
        L = np.arange(64); Lm = (L & 15)[:, None]; Lg = (L >> 4)[:, None]
        jj = np.arange(8)[None, :]; r = np.arange(4)[None, :]
        def pk(v):
            b = M.bf(v.astype(np.float32)).astype(np.uint32)
            return (b[:, 0::2] | (b[:, 1::2] << 16)).astype(np.uint32)
        parts = lambda z: (z.real, z.imag, -z.imag)
        w = lambda n, x, y: np.exp(-2j * np.pi * ((x * y) % n) / n)
        f32 = lambda v: v.astype(np.float32).view(np.uint32)
        out = []
        for H in range(2):
            for k in range(3):
                for t in range(4):
                    for ks in range(2):
                        out.append(pk(parts(w(64, 16 * (t ^ (2 * H)) + Lm, 32 * (ks ^ H) + 16 * (jj >> 2) + 4 * Lg + (jj & 3)))[k]))
            for k in range(3):
                out.append(pk(parts(w(32, 8 * Lg + jj, 16 * H + Lm))[k]))
            for t in range(4):
                z = w(2048, 16 * (t ^ (2 * H)) + 4 * Lg + r, 16 * H + Lm)
                out += [f32(z.real), f32(z.imag)]
            for t in range(4):
                z = np.conj(w(2048, 16 * (t ^ (2 * H)) + Lm, 16 * H + 4 * Lg + r))
                out += [f32(z.real), f32(z.imag)]
            for k in range(3):
                for at in range(2):
                    out.append(pk(parts(w(32, 8 * (Lm >> 2) + 4 * at + (Lm & 3), 16 * (H ^ (jj >> 2)) + 4 * Lg + (jj & 3)))[k]))
        return np.concatenate([o.reshape(-1) for o in out])

    def tload(self, frag, dst):
        if self.tgroup != frag // 4:
            self.tgroup = frag // 4
            self.a(f"s_add_u32 s88, s87, {(frag // 4) * 4096}")
        self.a(f"buffer_load_dwordx4 {vr(dst,4)}, v5, {STB}, s88 offen offset:{(frag % 4) * 1024}")

    def stage2_tables(self):
        a = self.a
        a(f"""
s_getpc_b64 s[64:65]
s_add_u32 s64, s64, spectral_tables@rel32@lo+4
s_addc_u32 s65, s65, spectral_tables@rel32@hi+12
s_mov_b32 s66, {2*self.NTAB*1024}
s_mov_b32 s67, 0x20000
v_lshlrev_b32 v5, 4, v0
s_and_b32 s86, {sW}, 1
s_mul_i32 s87, s86, {self.NTAB*1024}
""")
        self.tgroup = None
        for f in range(24):
            self.tload(self.T64 + f, 80 + 4 * f)
        for f in range(3):
            self.tload(self.T32A + f, 240 + 4 * f)
        for f in range(8):
            self.tload(self.TW1 + f, 16 + 4 * f)

    def stage2(self):
        a = self.a
        A, P, Q, TW, WW, PK, TMP = 80, 48, 176, 16, 208, 240, 8
        self.tgroup = None
        a(f"""
v_and_b32 v6, 15, v0
v_lshlrev_b32 v6, 6, v6
v_lshrrev_b32 v7, 4, v0
v_lshl_add_u32 v6, v7, 4, v6
s_lshl_b32 s90, s89, 13
s_add_u32 s91, s90, 4096
s_cmp_eq_u32 s89, 288
s_cmov_b32 s90, 4096
s_cmov_b32 s91, {OOB}
s_cmp_eq_u32 s89, 0
s_cmov_b32 s91, {OOB}
s_lshl_b32 s73, s86, 11
s_add_u32 s90, s90, s73
s_add_u32 s91, s91, s73
s_lshl_b32 s85, s86, 12
s_sub_u32 s85, 2048, s85
s_lshr_b32 s73, {sW}, 1
s_and_b32 s73, s73, 1
s_xor_b32 s73, s73, 1
s_lshl_b32 s99, s73, 2
s_lshl_b32 s73, s73, 12
s_lshl_b32 s84, s86, 11
s_add_u32 s73, s73, s84
s_add_u32 s73, s73, {L_XCH}
v_add_u32 v7, s73, v5
s_sub_u32 s73, s73, s84
s_xor_b32 s84, s84, 0x800
s_add_u32 s84, s84, s73
""")
        cl = a.label("GC"); cg = a.label("CG"); ot = a.label("GO"); dn = a.label("GD")
        a(f"s_cmp_lg_u32 {sW}, 7\ns_cbranch_scc1 {ot}\ns_lshr_b32 s73, s2, 3\ns_cmp_lg_u32 s73, 16\ns_cbranch_scc1 {cl}")
        a(f"v_lshlrev_b32 v8, 7, v0\ns_mov_b32 s92, {WS_FS}\ns_sleep {self.opt('dw', 8)}")
        self.poll(f"buffer_load_dwordx4 v[12:15], v8, {SWS}, s92 offen sc1", [12, 13, 14, 15], sleep=4)
        a(f"s_and_b32 s92, s2, 7\ns_lshl_b32 s92, s92, 7\ns_add_u32 s92, s92, {WS_GOS}")
        self.set_flag("s92")
        a(f"s_branch {cg}\n{cl}:\ns_sleep {self.opt('d2', 32)}")
        self.go_wait(WS_GOS, 252, 8)
        a(f"{cg}:")
        self.add1(CG)
        a(f"s_branch {dn}\n{ot}:")
        self.wait(CG, 1, sleep=2)
        a(f"s_waitcnt vmcnt(0)\n{dn}:")
        self.stamp(7)
        self.stamp(1, 2)
        a(f"s_add_u32 s92, s90, {WS_T}\ns_add_u32 s93, s91, {WS_T}\ns_add_u32 s82, s92, s85\ns_add_u32 s83, s93, s85")
        for t in range(4):
            for ri in range(2):
                so = (("s92", "s93"), ("s82", "s83"))[t >> 1][ri]
                a(f"buffer_load_dwordx4 {vr(WW+8*t+4*ri,4)}, v6, {SWS}, {so} offen offset:{1024*(t&1)} sc1")
        mf = lambda acc, x, y, first: a(f"v_mfma_f32_16x16x32_bf16 {vr(acc,4)}, {vr(x,4)}, {vr(y,4)}, {'0' if first else vr(acc,4)}")
        re = lambda base, t: base + 8 * t
        im = lambda base, t: base + 8 * t + 4
        for t in range(4):
            a(f"s_waitcnt vmcnt({6 - 2*t})")
            if t == 0: self.stamp(2, 2)
            mf(re(P, t), re(WW, t), PK, True); mf(im(P, t), re(WW, t), PK + 4, True)
            mf(re(P, t), im(WW, t), PK + 8, False); mf(im(P, t), im(WW, t), PK, False)
        a(f"s_lshl_b32 s92, s89, 13\ns_lshl_b32 s73, s86, 12\ns_add_u32 s92, s92, s73\ns_lshl_b32 s73, s86, 11\ns_add_u32 s92, s92, s73\ns_add_u32 s92, s92, {WS_WT}")
        a("s_add_u32 s82, s92, s85")
        for t in range(4):
            a(f"buffer_load_dwordx4 {vr(WW+8*t+4,4)}, v5, {SWS}, {('s92', 's82')[t >> 1]} offen offset:{1024*(t&1)} sc1")
        def cmul(x, c, dst):
            for t in range(4):
                ops = []
                for h in range(2):
                    t0, t1 = TMP + 4 * h, TMP + 4 * h + 2
                    xr, xi, cr, ci = re(x, t) + 2 * h, im(x, t) + 2 * h, re(c, t) + 2 * h, im(c, t) + 2 * h
                    ops.append([f"v_pk_mul_f32 {vr(t0,2)}, {vr(xr,2)}, {vr(cr,2)}",
                                f"v_pk_mul_f32 {vr(t1,2)}, {vr(xr,2)}, {vr(ci,2)}",
                                f"v_pk_fma_f32 {vr(t0,2)}, {vr(xi,2)}, {vr(ci,2)}, {vr(t0,2)} neg_lo:[1,0,0] neg_hi:[1,0,0]",
                                f"v_pk_fma_f32 {vr(t1,2)}, {vr(xi,2)}, {vr(cr,2)}, {vr(t1,2)}",
                                f"v_cvt_pk_bf16_f32 v{dst(t,0)+h}, v{t0}, v{t0+1}",
                                f"v_cvt_pk_bf16_f32 v{dst(t,1)+h}, v{t1}, v{t1+1}"])
                for j in range(0, 6, 2):
                    for o in ops:
                        a(o[j]); a(o[j + 1])
        pkd = lambda t, part: PK + 8 * part + 2 * t
        ks_ = lambda part, ks: PK + 8 * part + 4 * ks
        t64 = lambda k, t, ks: A + 32 * k + 8 * t + 4 * ks
        self.stamp(3, 2)
        cmul(P, TW, pkd)
        self.stamp(4, 2)
        for f in range(8):
            self.tload(self.TW2 + f, TW + 4 * f)
        for t in range(4):
            for ks in range(2):
                mf(re(Q, t), t64(0, t, ks), ks_(0, ks), ks == 0); mf(im(Q, t), t64(1, t, ks), ks_(0, ks), ks == 0)
            for ks in range(2):
                mf(re(Q, t), t64(2, t, ks), ks_(1, ks), False); mf(im(Q, t), t64(0, t, ks), ks_(1, ks), False)
        self.stamp(5, 2)
        a("s_waitcnt vmcnt(8)")
        for t in range(4):
            b = WW + 8 * t
            for k in range(4):
                a(f"v_lshlrev_b32 v{b+2*k}, 16, v{b+4+k}\nv_and_b32 v{b+2*k+1}, 0xffff0000, v{b+4+k}" if k < 2 else "")
            a(f"v_and_b32 v{b+5}, 0xffff0000, v{b+6}\nv_lshlrev_b32 v{b+4}, 16, v{b+6}\nv_lshlrev_b32 v{b+6}, 16, v{b+7}\nv_and_b32 v{b+7}, 0xffff0000, v{b+7}")
        cmul(Q, WW, pkd)
        self.stamp(6, 2)
        for f in range(6):
            self.tload(self.T32B + f, WW + 4 * f)
        for t in (2, 3, 0, 1):
            for ks in range(2):
                mf(re(P, t), ks_(0, ks), t64(0, t, ks), ks == 0); mf(im(P, t), ks_(1, ks), t64(0, t, ks), ks == 0)
            for ks in range(2):
                mf(re(P, t), ks_(1, ks), t64(1, t, ks), False); mf(im(P, t), ks_(0, ks), t64(2, t, ks), False)
        self.stamp(7, 2)
        a("v_add_u32 v232, s99, v2")
        self.kv_addr()
        self.kv_loads()
        a(f"s_waitcnt vmcnt({6 + self.NLD1})")
        cmul(P, TW, lambda t, part: (PK + 8 * t + 4 * part) if t < 2 else (Q + 4 * (t - 2) + 2 * part))
        a(f"ds_write_b128 v7, {vr(Q,4)}\nds_write_b128 v7, {vr(Q+4,4)} offset:1024")
        self.add1(XA, base="v232")
        a("v_add_u32 v7, s84, v5")
        self.wait(XA, 2, sleep=0, base="v232")
        for t in range(2):
            for part in range(2):
                a(f"ds_read_b64 {vr(PK+8*t+4*part+2,2)}, v7 offset:{1024*t+8*part}")
        self.stamp(8, 2)
        a(f"s_waitcnt vmcnt({self.NLD1}) lgkmcnt(0)")
        t32 = lambda k, at: WW + 8 * k + 4 * at
        out = lambda t, part, at: Q + 16 * t + 8 * part + 4 * at
        for t in range(2):
            for at in range(2):
                mf(out(t, 0, at), t32(0, at), PK + 8 * t, True); mf(out(t, 1, at), t32(0, at), PK + 8 * t + 4, True)
            for at in range(2):
                mf(out(t, 0, at), t32(1, at), PK + 8 * t + 4, False); mf(out(t, 1, at), t32(2, at), PK + 8 * t, False)
        a(f"s_add_u32 s92, s90, {WS_Y}\ns_add_u32 s93, s91, {WS_Y}")
        for t in range(2):
            for part in range(2):
                b = out(t, part, 0); d = 48 + 8 * t + 4 * part
                for k in range(4):
                    a(f"v_cvt_pk_bf16_f32 v{d+k}, v{b+2*k}, v{b+2*k+1}")
                a(f"buffer_store_dwordx4 {vr(d,4)}, v6, {SWS}, {'s93' if part else 's92'} offen offset:{1024*t} sc1")
        self.stamp(9, 2)
        self.flag4("s99", "s89", WS_FY)

    def l_mid(self):
        a = self.a
        go = a.label("S2"); no = a.label("NS2"); n7 = a.label("N7"); kv = a.label("LKV"); tb = a.label("TB"); nw = a.label("NW")
        a(f"s_mov_b32 s89, s2\ns_cmp_lg_u32 {sW}, 7\ns_cbranch_scc1 {n7}")
        self.s_flag()
        a(f"s_mov_b32 s89, s2\ns_branch {go}\n{n7}:")
        self.wait(CW, 1, sleep=6)
        self.wait(CR, 4, sleep=4)
        a(f"s_cmp_eq_u32 {sW}, 6\ns_cbranch_scc1 {tb}")
        a(f"""
s_add_u32 s89, s2, 192
s_sub_u32 s73, s2, 64
s_cmp_gt_u32 s73, 32
s_cbranch_scc1 {nw}
{tb}:
""")
        self.stage2_tables()
        a(f"{go}:")
        self.stage2()
        a(f"s_branch {kv}\n{nw}:")
        a(f"{no}:\ns_mov_b32 s99, {OOB}")
        self.kv_addr()
        self.kv_loads()
        a(f"s_setprio 1\n{kv}:")
        self.stamp(9)

    NT = 192

    def tail(self, mm, n):
        a = self.a
        ACC, ACX = 16, 32
        WF = 48
        NT = self.NT
        w = 2 * mm + n
        a("s_setprio 2")
        self.busy = 2
        self.norm_setup(1 - n)
        a(f"""
ds_read_b32 v11, v14 offset:{2304 + 128 * n}
v_and_b32 v37, 15, v0
v_lshrrev_b32 v38, 4, v0
v_lshl_add_u32 v14, v37, 2, v2
ds_read_b32 v36, v14 offset:{2304 + 128 * n + 64 * mm}
v_bfe_u32 v43, v0, 2, 2
v_and_b32 v44, 3, v0
v_bfe_u32 v46, v0, 4, 1
v_and_b32 v39, 1, v44
v_lshlrev_b32 v15, 2, v39
v_lshl_add_u32 v15, v46, 1, v15
v_lshrrev_b32 v14, 1, v44
v_add_u32 v45, v15, v14
v_lshlrev_b32 v45, 3, v45
v_add_u32 v45, {L_WO1 if mm else L_WO0}, v45
v_lshl_add_u32 v6, v13, 2, v43
v_lshl_add_u32 v6, v6, 6, v45
v_lshrrev_b32 v7, 1, v43
v_mul_u32_u24 v7, 72, v7
v_and_b32 v14, 1, v43
v_add3_u32 v40, v7, v14, 16
v_lshl_add_u32 v7, v40, 6, v45
v_mul_u32_u24 v14, 18432, v13
v_add_u32 v7, v7, v14
v_lshlrev_b32 v39, 3, v39
v_add_u32 v39, {L_WOX}, v39
v_mul_u32_u24 v15, 288, v46
v_add_u32 v15, v15, v40
v_lshl_add_u32 v15, v15, 4, v39
v_mul_u32_u24 v14, 72, v13
v_lshl_add_u32 v14, v46, 2, v14
v_add_u32 v14, v14, v43
v_lshl_add_u32 v14, v14, 4, v39
v_lshlrev_b32 v41, 4, v37
v_lshl_add_u32 v41, v46, 9, v41
v_lshl_add_u32 v47, v13, 10, v41
v_cmp_gt_u32 vcc, 32, v0
v_mov_b32 v40, {OOB}
v_add_u32 v41, {256 * mm}, v47
v_cndmask_b32 v42, v40, v41, vcc
v_cmp_gt_u32 vcc, 8, v37
s_nop 0
v_cndmask_b32 v47, v40, v47, vcc
s_waitcnt lgkmcnt(0)
v_sub_f32 v4, 1.0, v4
""")

        normalize = self.normalize

        def wrow(kind, k, hh, u):
            if kind == "m":
                return ("v6", (72 * k + 18 * hh + 8 * u) * 64) if k < 8 else ("v7", (144 * u + 18 * hh) * 64)
            return ("v14", (144 * k + 18 * hh + 8 * u) * 16) if k < 4 else ("v15", (144 * u + 18 * hh) * 16)

        def consume(i, probe):
            OB, AX = 192, 248
            hh = i >> 1
            seq = []
            for ks in range(9):
                seq.append(("m", ks))
                if ks % 2 == 1 or ks == 8: seq.append(("x", ks // 2))
            def rd(k):
                for u in range(2):
                    base, off = wrow("x", k, hh, u)
                    a(f"ds_read_b64_tr_b16 {vr(AX+4*(k%2)+2*u,2)}, {base} offset:{off}")
            rd(0); rd(1)
            if probe:
                l = a.label("CP"); d = a.label("CQ")
                a(f"{l}:\ns_add_u32 s90, s94, {i*9216 + 8192}\nbuffer_load_dwordx4 {vr(OB,4)}, v5, {SWS}, s90 offen sc1")
                a(f"s_waitcnt vmcnt(0)\nv_max_u32 v1, v{OB}, v{OB+1}\nv_max3_u32 v1, v1, v{OB+2}, v{OB+3}")
                a(f"v_cmp_eq_u32 vcc, -1, v1\ns_cmp_eq_u64 vcc, 0\ns_cbranch_scc1 {d}")
                a(f"s_sleep 8\ns_sub_u32 {sSPIN}, {sSPIN}, 1\ns_cbranch_scc0 {l}\ns_branch L_bail\n{d}:")
            l = a.label("CL"); d = a.label("CD")
            a(f"{l}:")
            chk = []
            oreg = lambda it: OB + (4 * it[1] if it[0] == "m" else 36 + 4 * it[1])
            for it in seq:
                kind, k = it
                if kind == "m" and k % 4 == 0:
                    a(f"s_add_u32 s90, s94, {i*9216 + 1024*k}")
                voff, last = ("v5", k == 8) if kind == "m" else ("v41" if k < 4 else "v42", k == 4)
                imm = 1024 * (k % 4) if kind == "m" else 2048 * (k % 2)
                a(f"buffer_load_dwordx4 {vr(oreg(it),4)}, {voff}, {SWS}, s90 offen offset:{imm} sc1")
                chk.append([oreg(it) + r for r in range(4 if last else 1)])
            flat = [(j, r) for j, rs in enumerate(chk) for r in rs]
            a(f"s_waitcnt vmcnt({len(chk) - 2})\nv_max_u32 v1, v{flat[0][1]}, v{flat[1][1]}")
            for p in range(2, len(flat), 2):
                a(f"s_waitcnt vmcnt({len(chk) - 1 - flat[p+1][0]})\nv_max3_u32 v1, v1, v{flat[p][1]}, v{flat[p+1][1]}")
            a(f"v_cmp_eq_u32 vcc, -1, v1\ns_cmp_eq_u64 vcc, 0\ns_cbranch_scc1 {d}")
            a(f"s_sleep {2 if i >= 6 else 8}\ns_sub_u32 {sSPIN}, {sSPIN}, 1\ns_cbranch_scc0 {l}\ns_branch L_bail\n{d}:")
            for kind, k in seq:
                if kind == "m":
                    a(f"v_mfma_f32_32x32x16_bf16 {vr(ACC,16)}, {vr(WF+36*hh+4*k,4)}, {vr(oreg((kind,k)),4)}, {vr(ACC,16)}")
                else:
                    a(f"s_waitcnt lgkmcnt({2 if k < 4 else 0})")
                    a(f"v_mfma_f32_16x16x32_bf16 {vr(ACX,4)}, {vr(AX+4*(k%2),4)}, {vr(oreg((kind,k)),4)}, {vr(ACX,4)}")
                    if k + 2 < 5:
                        rd(k + 2)

        normalize(2 * mm + (1 - n))
        self.stamp(2, 4)
        GM, GX, GD, GE = 192, 224, 8, 3
        AC2, BF, BX = ACC, 236, 248
        vm = []
        def gm(ks):
            a(f"buffer_load_dwordx4 {vr(GM+4*(ks%GD),4)}, v5, {SWS}, s93 offen offset:{1024*(ks%4)} sc1")
            if ks % 4 == 3: a("s_add_u32 s93, s93, 4096")
            vm.append(("m", ks))
        def gx(T):
            a(f"buffer_load_dwordx4 {vr(GX+4*(T%GE),4)}, v47, {SWS}, s98 offen offset:{2048*(T%2)} sc1")
            if T % 2 == 1: a("s_add_u32 s98, s98, 4096")
            vm.append(("x", T))
        bulk = w < 2
        if bulk:
            self.srd(SWO, 18, 663552)
            self.panel_setup(2, va=48)
        a(f"s_mul_i32 s93, {sJ}, {3*36*1024}\ns_add_u32 s98, s93, {WS_G + 2*36*1024}\ns_add_u32 s93, s93, {WS_G + mm*36*1024}")
        self.wait(CV, 8, sleep=3)
        if bulk:
            self.panel_loads(SWO, L_WO0, L_WO1, L_WOX, False, 36, 2, va=48, rotate=True)
        self.stamp(1, 4)
        for ks in range(GD):
            gm(ks)
            if ks % 2 == 1 and ks // 2 < GE: gx(ks // 2)
        fy = (f"buffer_load_dwordx4 {vr(BF+2,4)}, v{BF}, {SWS}, s99 offen sc1\nbuffer_load_dwordx4 {vr(BF+6,4)}, v{BF+1}, {SWS}, s92 offen sc1\n"
              f"buffer_load_dword v{BF+10}, off, {SWS}, s88 sc1")
        if w == 0:
            a(f"v_lshlrev_b32 v{BF}, 7, v0\nv_min_u32 v{BF+1}, {7*128}, v{BF}\ns_mov_b32 s99, {WS_FY}\ns_mov_b32 s92, {WS_FY + 8192}\ns_mov_b32 s88, {WS_FY + 72*128}")
            a(fy)
        if bulk:
            a(f"s_waitcnt vmcnt({len(vm) + (3 if w == 0 else 0)})")
            self.add1(S3)
        self.wait(S3, 2, sleep=1 if bulk else 3)
        self.stamp(3, 4)
        for hh in range(4):
            for k in range(9):
                for u in range(2):
                    base, off = wrow("m", k, hh, u)
                    a(f"ds_read_b64_tr_b16 {vr(WF+36*hh+4*k+2*u,2)}, {base} offset:{off}")
                if k % 3 == 2:
                    a("s_waitcnt lgkmcnt(6)")
        self.stamp(4, 4)
        a(f"""
v_lshrrev_b32 v39, 3, v0
v_lshlrev_b32 v39, 12, v39
v_lshlrev_b32 v40, 2, v46
v_xor_b32 v40, v40, v0
v_and_b32 v40, 7, v40
v_lshl_add_u32 v39, v40, 4, v39
v_bfe_u32 v40, v0, 3, 1
v_xor_b32 v40, {n}, v40
v_lshlrev_b32 v40, 6, v40
v_lshl_add_u32 v40, v44, 3, v40
v_lshl_add_u32 v40, v43, 7, v40
v_lshl_add_u32 v43, v13, 10, v40
v_lshl_add_u32 v43, v46, 5, v43
v_add_u32 v44, 36864, v43
v_lshl_add_u32 v45, v38, 10, v40
v_add_u32 v45, {32 * mm}, v45
v_add_u32 v46, 36864, v45
s_waitcnt lgkmcnt(0)
""")
        self.add1(S2)
        if w == 0:
            ok = a.label("YOK")
            a("s_waitcnt vmcnt(0)")
            self.cmp_regs([BF + 2 + k for k in range(9)], sTAG)
            a(f"s_cbranch_scc1 {ok}")
            self.poll(fy, [BF + 2 + k for k in range(9)], sleep=12)
            a(f"{ok}:")
            self.add1(CY)
            ne = a.label("NE")
            a(f"s_cmp_lg_u32 s2, 0\ns_cbranch_scc1 {ne}")
            self.set_flag(str(WS_EPOCH))
            a(f"{ne}:")
        elif bulk:
            self.wait(CY, 1, sleep=2)
        if bulk:
            self.wait(S2, 4, sleep=1)
            self.stamp(1); self.stamp(5, 4)
            a(f"s_lshl_b32 s99, {sP}, 7\ns_add_u32 s99, s99, {WS_Y + w * 32768}\ns_mov_b32 s92, {L_Y + w * 1024}")
            lp = a.label("YL")
            a(f"s_mov_b32 s88, 5\n{lp}:")
            for k in range(6):
                a(f"s_mov_b32 m0, s92\ns_add_u32 s92, s92, 2048\nbuffer_load_dwordx4 v39, {SWS}, s99 offen sc1 lds\ns_add_u32 s99, s99, {2*32768}")
            a(f"s_sub_u32 s88, s88, 1\ns_cbranch_scc0 {lp}")
            vm.extend([("y", k) for k in range(36)])
            a("s_waitcnt vmcnt(18)")
            self.add1(S1)
        self.stamp(6, 4)
        def yrd(it):
            kind, k = it
            if kind == "m":
                b = BF + 4 * (k % 3); base, off = ("v43", 2048 * k) if k < 18 else ("v44", 2048 * (k - 18))
            else:
                b = BX + 4 * (k % 2); base, off = ("v45", 4096 * k) if k < 9 else ("v46", 4096 * (k - 9))
            a(f"ds_read_b64_tr_b16 {vr(b,2)}, {base} offset:{off}\nds_read_b64_tr_b16 {vr(b+2,2)}, {base} offset:{off+512}")
        done = {"vm": len(vm) - 18 if bulk else 0}
        def half(k0):
            seq = []
            for ks in range(k0, k0 + 18):
                seq.append(("m", ks))
                if ks % 2 == 1: seq.append(("x", ks // 2))
            for it in seq[:3]:
                yrd(it)
            for i, it in enumerate(seq):
                wv = ""
                if vm.index(it) + 1 > done["vm"]:
                    done["vm"] = vm.index(it) + 1
                    wv = f"vmcnt({len(vm) - done['vm']}) "
                a(f"s_waitcnt {wv}lgkmcnt({2 * (min(i + 3, len(seq)) - i - 1)})")
                kind, k = it
                if kind == "m":
                    a(f"v_mfma_f32_32x32x16_bf16 {vr(AC2,16)}, {vr(GM+4*(k%GD),4)}, {vr(BF+4*(k%3),4)}, {'0' if k == 0 else vr(AC2,16)}")
                    if k + GD < 36: gm(k + GD)
                else:
                    a(f"v_mfma_f32_16x16x32_bf16 {vr(AC2+16,4)}, {vr(GX+4*(k%GE),4)}, {vr(BX+4*(k%2),4)}, {'0' if k == 0 else vr(AC2+16,4)}")
                    if k + GE < 18: gx(k + GE)
                if i + 3 < len(seq):
                    yrd(seq[i + 3])
                if bulk and it == ("m", GD):
                    self.add1(S4)
        self.wait(S1, 2, sleep=1 if bulk else 2)
        self.stamp(7, 4)
        half(0)
        self.wait(S4, 2, sleep=1)
        half(18)
        self.stamp(2); self.stamp(8, 4)
        self.srd(SOUT, 22, 2359296)
        a(f"""
s_mov_b32 s73, 73728
v_mul_lo_u32 v39, v12, s73
v_lshl_add_u32 v39, v13, 5, v39
v_mul_lo_u32 v40, v37, s73
v_lshl_add_u32 v40, v38, 3, v40
s_mul_i32 s93, {sP}, 2304
s_add_u32 s93, s93, s95
s_add_u32 s93, s93, {1152 * n}
s_add_u32 s92, s93, {16 * mm * 73728}
""")
        for i in range(8):
            a(f"v_pk_mul_f32 {vr(ACC+2*i,2)}, {vr(ACC+2*i,2)}, v[10:11] op_sel:[0,1] op_sel_hi:[1,1]")
        for i in range(2):
            a(f"v_pk_mul_f32 {vr(ACX+2*i,2)}, {vr(ACX+2*i,2)}, v[36:37] op_sel_hi:[1,0]")
        prog = {0: ["N5", "C0", "C2", "C4", "C6"], 1: ["N4", "C1", "C3", "C5", "C7"],
                2: ["C0", "C2", "C4", "C6"], 3: ["C1", "C3", "N6", "C5", "C7"]}[w]
        gates = {4: 5, 5: 6, 6: 7, 7: 7}
        for it in prog:
            i = int(it[1])
            if it[0] == "N":
                normalize(i)
                self.stamp(3)
            else:
                if i >= 4:
                    self.wait(256 * gates[i], 4, sleep=2 if gates[i] == 7 else 4)
                if i == 7:
                    a(f"s_sleep {self.opt('d7', 10)}")
                if i >= 6: self.stamp(4)
                consume(i, i in (4, 5))
                if i in (2, 3): self.stamp(9, 4)
                if i in (4, 5): self.stamp(10, 4)
                if i in (6, 7): self.stamp(11, 4)
        self.stamp(6)
        fl = " sc1" if "outsc1" in self.opts else " nt" if "outnt" in self.opts else ""
        a(f"v_cvt_pk_bf16_f32 v{ACX}, v{ACX}, v{ACX+1}\nv_cvt_pk_bf16_f32 v{ACX+1}, v{ACX+2}, v{ACX+3}")
        for k in range(8):
            a(f"v_cvt_pk_bf16_f32 v{ACC+k}, v{ACC+2*k}, v{ACC+2*k+1}")
        a(f"buffer_store_dwordx4 {vr(ACC,4)}, v39, {SOUT}, s93 offen offset:{64*mm}{fl}")
        a(f"buffer_store_dwordx4 {vr(ACC+4,4)}, v39, {SOUT}, s93 offen offset:{64*mm+16}{fl}")
        a(f"s_mov_b32 exec_hi, 0\nbuffer_store_dwordx2 {vr(ACX,2)}, v40, {SOUT}, s92 offen offset:128{fl}\ns_mov_b64 exec, -1")
        self.stamp(7)

    def norm_setup(self, rows):
        self.a(f"""
v_lshlrev_b32 v5, 4, v0
v_and_b32 v12, 31, v0
v_lshrrev_b32 v13, 5, v0
v_add_u32 v8, {L_EX}, v5
v_lshlrev_b32 v9, 3, v0
v_add_u32 v9, {L_EX + 2048}, v9
v_lshlrev_b32 v10, 3, v12
v_add_u32 v10, {L_EX + 2048 + 256}, v10
v_lshl_add_u32 v14, v12, 2, v2
ds_read_b32 v4, v14 offset:{2304 + 128 * rows}
s_mul_i32 s94, {sP}, {8*9216}
s_add_u32 s94, s94, {WS_OF}
s_lshl_b32 s96, {sJ}, 10
s_add_u32 s96, s96, s94
s_lshr_b32 s97, {sJ}, 2
s_lshl_b32 s97, s97, 9
s_and_b32 s73, {sJ}, 3
s_lshl_b32 s73, s73, 2
s_add_u32 s97, s97, s73
s_add_u32 s97, s97, s94
s_add_u32 s97, s97, 8192
""")

    def normalize(self, i, wait=True):
        a = self.a
        NT = self.NT
        q = i % 4
        if wait:
            self.wait(256 * i, 4, sleep=2 if i >= 6 else 4)
        for s in range(4):
            b = NT + 12 * s; o = 10240 * q + 2560 * s
            a(f"ds_read_b128 {vr(b,4)}, v8 offset:{o}\nds_read_b128 {vr(b+4,4)}, v8 offset:{o+1024}\nds_read_b64 {vr(b+8,2)}, v9 offset:{o}")
            if s == 3:
                a("s_waitcnt lgkmcnt(9)")
            a(f"ds_read_b32 v{b+10}, v10 offset:{o}")
        a(f"s_add_u32 s90, s96, {i*9216}\ns_add_u32 s91, s97, {i*9216}\ns_movk_i32 s89, {i}")
        a("s_waitcnt lgkmcnt(8)")
        for s in range(1, 4):
            if s > 1:
                a(f"s_waitcnt lgkmcnt({4 * (3 - s)})")
            for k in range(5):
                a(f"v_pk_add_f32 {vr(NT+2*k,2)}, {vr(NT+2*k,2)}, {vr(NT+12*s+2*k,2)}")
            a(f"v_add_f32 v{NT+10}, v{NT+10}, v{NT+12*s+10}")
        if i < 4:
            self.wait(CG, 1, sleep=2)
            self.add1(CN)
        self.safety()
        a(f"v_rcp_f32 v{NT+10}, v{NT+10}\ns_nop 0\nv_mul_f32 v{NT+10}, v4, v{NT+10}")
        for k in range(5):
            a(f"v_pk_mul_f32 {vr(NT+2*k,2)}, {vr(NT+2*k,2)}, {vr(NT+10,2)} op_sel_hi:[1,0]")
        for k in range(5):
            a(f"v_cvt_pk_bf16_f32 v{NT+12+k}, v{NT+2*k}, v{NT+2*k+1}")
        a(f"v_min_u32 v{NT+12}, -2, v{NT+12}\nv_min_u32 v{NT+16}, -2, v{NT+16}")
        a(f"buffer_store_dwordx4 {vr(NT+12,4)}, v5, {SWS}, s90 offen sc1\ns_mov_b32 exec_hi, 0")
        a(f"buffer_store_dword v{NT+16}, v5, {SWS}, s91 offen sc1")
        a("s_mov_b64 exec, -1")

    def safety(self):
        a = self.a
        NT = self.NT
        ok = a.label("SOK")
        t = NT + 12
        a(f"v_mov_b32 v{t}, 0\nv_mov_b32 v{t+1}, 0\nv_mov_b32 v{t+2}, 0\nv_mov_b32 v{t+3}, 0")
        for k in range(5):
            a(f"v_pk_fma_f32 {vr(t,2)}, {vr(NT+2*k,2)}, {vr(t+2,2)}, {vr(t,2)}")
        lo, hi = (127 - 60) << 23, (127 + 64) << 23
        if "forcefb" in self.opts:
            lo, hi = (127 + 60) << 23, (127 + 64) << 23
        a(f"v_add_f32 v{t}, v{t}, v{t+1}\nv_subrev_u32 v{t+1}, {lo:#x}, v{NT+10}\nv_cmp_u_f32 vcc, v{t}, v{t}")
        a(f"s_mov_b32 s73, {hi - lo:#x}\nv_cmp_lt_u32 s[74:75], s73, v{t+1}\ns_or_b64 vcc, vcc, s[74:75]\ns_cmp_eq_u64 vcc, 0\ns_cbranch_scc1 {ok}")
        a(f"s_call_b64 s[86:87], L_fallback\n{ok}:")

    def fallback(self):
        a = self.a
        NT = self.NT
        O, S, Q, QX, K, KX, V, MX = NT, 208, 224, 228, 230, 234, 236, 244
        vK, vKX, vV, T0 = 245, 246, 247, 248
        l1 = a.label("FB1"); l2 = a.label("FB2")
        qk = f"""
buffer_load_dwordx4 {vr(K,4)}, v{vK}, {SWS}, s[84] offen sc1
buffer_load_dword v{KX}, v{vKX}, {SWS}, s[85] offen sc1
""".replace("s[84]", "s84").replace("s[85]", "s85")
        mm = f"""
v_mfma_f32_32x32x16_bf16 {vr(S,16)}, {vr(K,4)}, {vr(Q,4)}, 0
v_mfma_f32_32x32x8_bf16 {vr(S,16)}, {vr(KX,2)}, {vr(QX,2)}, {vr(S,16)}
s_add_u32 s84, s84, 1024
s_bitcmp1_b32 s88, 0
s_cselect_b32 s73, 4, 252
s_add_u32 s85, s85, s73
"""
        a(f"""
L_fallback:
s_nop 4
v_lshlrev_b32 v{vK}, 5, v12
v_lshl_add_u32 v{vK}, v13, 4, v{vK}
v_mov_b32 v{T0}, {OOB}
v_lshlrev_b32 v{vKX}, 3, v12
v_cmp_lt_u32 vcc, 31, v0
v_subrev_u32 v{T0+1}, 64, v{vK}
v_cndmask_b32 v{vKX}, v{vKX}, v{T0}, vcc
v_cmp_eq_u32 vcc, 20, v12
s_mul_i32 s73, s89, 1536
v_cndmask_b32 v{T0+1}, v{T0}, v{T0+1}, vcc
v_cmp_gt_u32 vcc, 18, v12
s_add_u32 s73, s73, {L_QS}
v_cndmask_b32 v{vV}, v{T0+1}, v{vK}, vcc
v_mul_u32_u24 v{T0}, 48, v12
v_add_u32 v{T0}, s73, v{T0}
v_lshl_add_u32 v{T0+1}, v13, 2, v{T0}
v_lshl_add_u32 v{T0}, v13, 4, v{T0}
ds_read_b128 {vr(Q,4)}, v{T0}
ds_read_b32 v{QX}, v{T0+1} offset:32
v_mov_b32 v{QX+1}, 0
v_mov_b32 v{KX+1}, 0
v_mov_b32 v{MX}, 0xff800000
s_mov_b32 s84, {WS_K16}
s_mov_b32 s85, {WS_KX}
s_mov_b32 s88, 63
{l1}:
{qk}
s_waitcnt vmcnt(0) lgkmcnt(0)
{mm}
""")
        for k in range(8):
            a(f"v_max3_f32 v{MX}, v{MX}, v{S+2*k}, v{S+2*k+1}")
        a(f"""
s_sub_u32 s88, s88, 1
s_cbranch_scc0 {l1}
v_mov_b32 v{T0}, v{MX}
v_permlane32_swap_b32 v{MX}, v{T0}
v_max_f32 v{MX}, v{MX}, v{T0}
s_mov_b32 s84, {WS_K16}
s_mov_b32 s85, {WS_KX}
s_mov_b32 s83, {WS_VF}
s_mov_b32 s88, 63
""")
        for r in range(16):
            a(f"v_mov_b32 v{O+r}, 0")
        a(f"""
{l2}:
{qk}
buffer_load_dwordx4 {vr(V,4)}, v{vV}, {SWS}, s83 offen sc1
buffer_load_dwordx4 {vr(V+4,4)}, v{vV}, {SWS}, s83 offen offset:{VPITCH} sc1
s_waitcnt vmcnt(0)
{mm}
s_add_u32 s83, s83, {2*VPITCH}
""")
        for r in range(16):
            a(f"v_sub_f32 v{S+r}, v{S+r}, v{MX}")
        for r in range(16):
            a(f"v_exp_f32 v{S+r}, v{S+r}")
        for k in range(8):
            a(f"v_cvt_pk_bf16_f32 v{S+k}, v{S+2*k}, v{S+2*k+1}")
        a(f"""
v_mfma_f32_32x32x16_bf16 {vr(O,16)}, {vr(V,4)}, {vr(S,4)}, {vr(O,16)}
v_mfma_f32_32x32x16_bf16 {vr(O,16)}, {vr(V+4,4)}, {vr(S+4,4)}, {vr(O,16)}
s_nop 15
s_sub_u32 s88, s88, 1
s_cbranch_scc0 {l2}
""")
        a(f"v_mov_b32 v{T0}, v{O+8}\nv_mov_b32 v{NT+10}, v{O+8}\nv_permlane32_swap_b32 v{T0}, v{NT+10}\ns_nop 4\ns_setpc_b64 s[86:87]")

    def finish_stamps(self):
        a = self.a
        if self.stamps:
            a("v_mov_b32 v2, 0")
            for i in range(12):
                a(f"v_writelane_b32 v2, s{STAMPS[i]}, {i}")
            a(f"s_lshl_b32 s73, s2, 3\ns_add_u32 s73, s73, {sW}\ns_lshl_b32 s73, s73, 7\ns_add_u32 s73, s73, {WS_DBG}")
            a(f"v_lshlrev_b32 v3, 2, v0\ns_mov_b32 exec_hi, 0\nbuffer_store_dword v2, v3, {SWS}, s73 offen\ns_mov_b64 exec, -1")

    def build(self):
        a = self.a
        self.prologue()
        self.e_front()
        a("L_attn:")
        self.attention()
        self.stamp(8)
        a(f"s_cmp_ge_u32 {sW}, 4\ns_cbranch_scc1 L_last")
        labs = [a.label("TL") for _ in range(4)]
        for w in range(1, 4):
            a(f"s_cmp_eq_u32 {sW}, {w}\ns_cbranch_scc1 {labs[w]}")
        for w in range(4):
            a(f"{labs[w]}:")
            self.tail(w >> 1, w & 1)
            a("s_branch L_fin")
        a(f"L_last:\ns_waitcnt lgkmcnt(0)\nv_readfirstlane_b32 s73, v1\nv_sub_f32 v4, 1.0, v4\ns_cmp_lg_u32 s73, 3\ns_cbranch_scc1 L_fin\ns_setprio 3")
        self.normalize(7, wait=False)
        self.stamp(3)
        a("s_branch L_fin")
        a("L_lwave:")
        self.busy = 3
        self.l_front()
        self.l_mid()
        a("s_branch L_attn")
        self.fallback()
        a("L_bail:")
        if self.stamps:
            a(f"s_mov_b32 s{STAMPS[11]}, 0xdead0000")
        a("L_fin:")
        if self.opt("padto", 0):
            a(f"L_pad:\ns_sleep 2\ns_memrealtime s[78:79]\ns_waitcnt lgkmcnt(0)\ns_sub_u32 s78, s78, s76\ns_cmp_lt_u32 s78, s80\ns_cbranch_scc1 L_pad")
        self.finish_stamps()
        a("L_end:\ns_endpgm")
        body = a.finish()
        tw = self.make_tables()
        assert tw.size == 2 * self.NTAB * 256
        tab = "\n".join(".long " + ",".join(f"{x:#x}" for x in tw[i:i+16]) for i in range(0, tw.size, 16))
        hdr = open("cdna_kernels/" + NAME + ".s.ref").read().split("; Override launch")[0]
        return f"""{hdr}; @launch grid=(256,1,1) block=(512,1,1) lds={LDS_BYTES}
.amdgcn_target "amdgcn-amd-amdhsa--gfx950"
.text
.globl {NAME}_kernel
.p2align 8
.type {NAME}_kernel,@function
{NAME}_kernel:
{body}
.section .rodata,"a"
.p2align 8
.type spectral_tables,@object
spectral_tables:
{tab}
.size spectral_tables, {2*self.NTAB*1024}
.p2align 6
.amdhsa_kernel {NAME}_kernel
  .amdhsa_next_free_vgpr 256
  .amdhsa_next_free_sgpr 102
  .amdhsa_accum_offset 256
  .amdhsa_group_segment_fixed_size 0
  .amdhsa_kernarg_size 96
  .amdhsa_user_sgpr_count 2
  .amdhsa_user_sgpr_kernarg_segment_ptr 1
  .amdhsa_system_sgpr_workgroup_id_x 1
.end_amdhsa_kernel
"""


if __name__ == "__main__":
    opts = sys.argv[2:]
    g = Gen(stamps=2 if "st2" in opts else 3 if "st3" in opts else 4 if "st4" in opts else 5 if "st5" in opts else int("stamps" in opts), cyc="cyc" in opts, opts=opts)
    src = g.build()
    open(sys.argv[1], "w").write(src)
    print("nops added:", g.a.added_nops, "lines:", len(src.splitlines()))
```

```python
import sys
import numpy as np
from asmlib import Asm
import model as M

NAME = "gated_mix__spectral_gfnet__grouped_kv_mqa__prompt"

WS_EPOCH = 0
WS_FKV = 0x50000
WS_FS = 0x58000
WS_FY = 0x60000
WS_GOS = 0x68000
WS_K16 = 0x10000
WS_KX = 0x20000
WS_VF = 0x30000
WS_DBG = 0x80000
WS_G = 0x100000
WS_T = 0x200000
WS_Y = 0x500000
WS_OF = 0x800000
WS_WT = 0xB00000
WS_SIZE = 0x1000000
OOB = 0x40000000
VPITCH = 640
TP = 4096 + 128
WP = 8192 + 128

XP = 1040
L_X = 0
L_X2 = 64 * XP
L_WQ0 = 74752
L_WQ1 = 111616
P2SZ = 9728
L_P2Q = 148480
L_P2KV = L_P2Q - P2SZ
L_MISC = 162816
L_CT = L_MISC - 2048
(C0A, C0B, C0C, C1, CX, CK, CE, CV, CY, S1, S2, S3, CN, CW, CF, CD, CG, S4, C0D, SA, XA, XB, YA, YB, CR, CL, CI) = (2048 + 4 * i for i in range(27))
L_G = L_MISC + 256
L_QS = L_WQ0
L_WO0 = 0
L_WO1 = 36864
L_Y = 0
L_EX = L_QS + 12288
L_WOX = L_EX + 16 * 2560
L_XCH = L_WOX + 9216
LDS_BYTES = 163840
assert L_XCH + 8192 <= L_CT and L_P2Q + P2SZ <= L_CT and L_P2Q + P2SZ <= L_MISC and L_P2KV >= L_WQ1 + 416 * 64

SX, SWQ, SKV, SG, SWS, SWO, SOUT, SWR, SWI, STB = (f"s[{a}:{a+3}]" for a in range(28, 68, 4))
sW, sP, sJ, sTAG, sSPIN = "s68", "s69", "s70", "s71", "s72"
STAMPS = [76, 77, 78, 79, 80, 81, 100, 101, 3, 10, 11, 24]
SPIN_MAX = 400000

f32bits = lambda v: int(np.float32(v).view(np.uint32))
QSCALE_BITS = f32bits(M.QSCALE)
LOG2E_BITS = f32bits(M.LOG2E)


def vr(a, n=1):
    return f"v{a}" if n == 1 else f"v[{a}:{a+n-1}]"


class Gen:
    AQ, AQX, AO, AK, AKX, AV, AS = 24, 28, 32, 88, 120, 128, 192
    vQ, vQX, vEX, vEX2, vK, vKX, vV, vCT = 78, 79, 80, 81, 82, 83, 4, 84
    vCT2 = vCT

    def __init__(self, stamps=0, cyc=False, opts=()):
        self.a = Asm()
        self.stamps = stamps
        self.clk = "s_memtime" if cyc else "s_memrealtime"
        self.opts = set(opts)
        self.busy = 3

    def opt(self, name, default):
        for o in self.opts:
            if o.startswith(name + "="):
                return int(o.split("=")[1])
        return default

    def _st(self, i):
        self.a(f"{self.clk} s[74:75]\ns_waitcnt lgkmcnt(0)\ns_mov_b32 s{STAMPS[i]}, s74")

    def stamp(self, i, level=1):
        if self.stamps == level:
            self._st(i)
        if self.opt("pid", -1) == i and self.opt("plev", 1) == level:
            l = self.a.label("PB")
            self.a(f"s_cmp_lg_u32 {sW}, {self.opt('pw', 0)}\ns_cbranch_scc1 {l}\ns_memrealtime s[78:79]\ns_waitcnt lgkmcnt(0)\n"
                   f"s_sub_u32 s80, s78, s76\ns_add_u32 s80, s80, {self.opt('padto', 0)}\n{l}:")

    def srd(self, srd, lo, size):
        b = int(srd[2:].split(":")[0])
        self.a(f"s_mov_b32 s{b}, s{lo}\ns_mov_b32 s{b+1}, s{lo+1}\ns_mov_b32 s{b+2}, {size}\ns_mov_b32 s{b+3}, 0x20000")

    def add1(self, off, base="v2"):
        self.a(f"s_mov_b64 exec, 1\nds_add_u32 {base}, v3 offset:{off}\ns_mov_b64 exec, -1")

    def wait(self, off, target, sleep=1, base="v2", idle=False):
        a = self.a
        l = a.label("LW"); d = a.label("LWD")
        if idle and "noidle" not in self.opts:
            a("s_setprio 0")
        a(f"{l}:\nds_read_b32 v1, {base} offset:{off}\ns_waitcnt lgkmcnt(0)\nv_readfirstlane_b32 s73, v1")
        a(f"s_cmp_ge_u32 s73, {target}\ns_cbranch_scc1 {d}")
        if sleep:
            a(f"s_sleep {sleep}")
        a(f"s_sub_u32 {sSPIN}, {sSPIN}, 1\ns_cbranch_scc0 {l}\ns_branch L_bail\n{d}:")
        if idle and "noidle" not in self.opts:
            a(f"s_setprio {self.busy}")

    def cmp_regs(self, regs, val, op="ne"):
        a = self.a
        a(f"v_cmp_{op}_u32 vcc, {val}, v{regs[0]}")
        for r in regs[1:]:
            a(f"v_cmp_{op}_u32 s[74:75], {val}, v{r}\ns_or_b64 vcc, vcc, s[74:75]")
        a("s_cmp_eq_u64 vcc, 0")

    def poll(self, loads, regs, sleep=2):
        a = self.a
        l = a.label("PL"); d = a.label("PD")
        a(f"{l}:")
        a(loads)
        a("s_waitcnt vmcnt(0)")
        self.cmp_regs(regs, sTAG)
        a(f"s_cbranch_scc1 {d}\ns_sleep {sleep}\ns_sub_u32 {sSPIN}, {sSPIN}, 1\ns_cbranch_scc0 {l}\ns_branch L_bail\n{d}:")

    def set_flag(self, soff):
        self.a(f"v_mov_b32 v1, {sTAG}\ns_mov_b64 exec, 1\nbuffer_store_dword v1, off, {SWS}, {soff} sc1\ns_mov_b64 exec, -1")

    def flag4(self, dst, idx, base):
        self.a(f"s_lshr_b32 {dst}, {idx}, 2\ns_lshl_b32 {dst}, {dst}, 7\ns_and_b32 s73, {idx}, 3\ns_lshl_b32 s73, s73, 2\n"
               f"s_add_u32 {dst}, {dst}, s73\ns_add_u32 {dst}, {dst}, {base}")

    def go_wait(self, base, vt, sleep):
        self.a(f"s_and_b32 s92, s2, 7\ns_lshl_b32 s92, s92, 7\ns_add_u32 s92, s92, {base}")
        self.poll(f"s_mov_b64 exec, 1\nbuffer_load_dword v{vt}, off, {SWS}, s92 sc1\ns_waitcnt vmcnt(0)\nv_readfirstlane_b32 s73, v{vt}\ns_mov_b64 exec, -1\nv_mov_b32 v{vt}, s73", [vt], sleep=sleep)

    def tag(self):
        self.a(f"s_mul_i32 {sTAG}, {sTAG}, 0x9E3779B1\ns_add_u32 {sTAG}, {sTAG}, 0x7F4A7C15")

    def prologue(self):
        a = self.a
        a(f"""
s_cmp_ge_u32 s2, 256
s_cbranch_scc1 L_end
s_load_dwordx16 s[4:19], s[0:1], 0
s_load_dwordx8 s[20:27], s[0:1], 64
v_lshrrev_b32 v1, 6, v0
v_and_b32 v0, 63, v0
v_readfirstlane_b32 {sW}, v1
s_and_b32 {sP}, s2, 31
s_lshr_b32 {sJ}, s2, 5
""")
        if self.stamps:
            a(f"{self.clk} s[74:75]")
        if self.opt("padto", 0):
            a(f"s_memrealtime s[76:77]\ns_mov_b32 s80, {self.opt('padto', 0)}")
        a(f"""
v_lshl_add_u32 v4, v1, 6, v0
v_mov_b32 v2, {L_CT}
v_mov_b32 v3, 1
v_lshlrev_b32 v7, 4, v0
s_mul_i32 s94, {sP}, 2304
s_mul_i32 s95, {sJ}, 144
s_lshl_b32 s91, {sJ}, 2
s_add_u32 s91, s91, {sW}
s_mov_b32 s30, 2359296
s_mov_b32 s31, 0x20000
s_mov_b32 {sSPIN}, {SPIN_MAX}
s_cmp_ge_u32 {sW}, 4
s_waitcnt lgkmcnt(0)
""")
        if self.opt("wsoff", 0):
            a(f"s_cselect_b32 s73, 1, 0\ns_add_u32 s26, s26, {self.opt('wsoff', 0) << 20}\ns_addc_u32 s27, s27, 0\ns_cmp_eq_u32 s73, 1")
        if self.stamps:
            a(f"s_mov_b32 s{STAMPS[0]}, s74")
            for r in STAMPS[1:]:
                a(f"s_mov_b32 s{r}, 0")
        a("s_cbranch_scc1 L_lwave")

    def kv_addr(self):
        a = self.a
        a(f"""
v_and_b32 v84, 31, v0
v_lshrrev_b32 v85, 5, v0
v_lshlrev_b32 v{self.vK}, 5, v84
v_lshl_add_u32 v{self.vK}, v85, 4, v{self.vK}
v_mov_b32 v86, {OOB}
v_lshlrev_b32 v{self.vKX}, 3, v84
v_cmp_lt_u32 vcc, 31, v0
v_subrev_u32 v87, 64, v{self.vK}
v_cndmask_b32 v{self.vKX}, v{self.vKX}, v86, vcc
v_cmp_eq_u32 vcc, 20, v84
s_and_b32 s73, {sW}, 3
v_cndmask_b32 v87, v86, v87, vcc
v_cmp_gt_u32 vcc, 18, v84
s_lshl_b32 s96, s73, 14
v_cndmask_b32 v{self.vV}, v87, v{self.vK}, vcc
s_add_u32 s96, s96, {WS_K16}
s_lshl_b32 s97, s73, 11
s_add_u32 s97, s97, {WS_KX}
s_mul_i32 s98, s73, {32*VPITCH}
s_add_u32 s98, s98, {WS_VF}
""")

    def ld_k(self, t, slot):
        adv = "\ns_add_u32 s96, s96, 4096" if t % 4 == 3 else ""
        k = f"buffer_load_dwordx4 {vr(self.AK+4*slot,4)}, v{self.vK}, {SWS}, s96 offen offset:{1024*(t%4)} sc1" + adv
        if t % 2:
            return (k,)
        return (k, f"buffer_load_dwordx2 {vr(self.AKX+slot,2)}, v{self.vKX}, {SWS}, s97 offen offset:{128*t} sc1")

    def ld_v(self, t, slot):
        adv = f"\ns_add_u32 s98, s98, {4*VPITCH}" if t % 2 == 1 else ""
        o = 2 * VPITCH * (t % 2)
        return (f"buffer_load_dwordx4 {vr(self.AV+8*slot,4)}, v{self.vV}, {SWS}, s98 offen offset:{o} sc1",
                f"buffer_load_dwordx4 {vr(self.AV+8*slot+4,4)}, v{self.vV}, {SWS}, s98 offen offset:{o+VPITCH} sc1" + adv)

    NFIRST = 4
    NLD1 = 14

    def kv_loads(self, t0=0, t1=None):
        for t in range(t0, self.NFIRST if t1 is None else t1):
            for x in self.ld_k(t, t) + self.ld_v(t, t):
                self.a(x)

    def e_front(self):
        a = self.a
        a("s_setprio 3\ns_mov_b32 s28, s4\ns_mov_b32 s29, s5")
        for k in range(8):
            a(f"""
s_and_b32 s91, s91, 31
s_mul_i32 s90, s91, 73728
s_mul_i32 m0, s91, {XP}
s_add_u32 s90, s90, s94
s_add_u32 s91, s91, 4
buffer_load_dwordx4 v7, {SX}, s90 offen lds
s_add_u32 m0, m0, {32*XP - 1152}
s_nop 0
buffer_load_dwordx4 v7, {SX}, s90 offen offset:1152 lds
""")
        a("s_barrier")
        a(f"""
s_load_dword {sTAG}, s[26:27], {WS_EPOCH}
v_lshrrev_b32 v20, 3, v0
s_mov_b32 s73, 73728
v_mul_lo_u32 v21, v20, s73
v_lshrrev_b32 v22, 4, v0
v_xor_b32 v22, v22, v0
v_and_b32 v22, 7, v22
v_lshl_add_u32 v21, v22, 4, v21
s_and_b32 s90, {sW}, 1
s_mul_i32 s90, s90, {16*73728}
s_lshr_b32 s73, {sW}, 1
s_mul_i32 s73, s73, 1152
s_add_u32 s90, s90, s73
s_add_u32 s90, s90, s94
s_add_u32 s90, s90, 1024
s_lshl_b32 s91, {sW}, 11
s_add_u32 m0, s91, {L_X2}
v_xor_b32 v22, 64, v21
buffer_load_dwordx4 v21, {SX}, s90 offen lds
s_add_u32 m0, s91, {L_X2 + 1024}
s_add_u32 s90, s90, {8*73728}
buffer_load_dwordx4 v22, {SX}, s90 offen lds
s_cmp_lt_u32 {sJ}, 4
s_cselect_b32 s36, s14, s16
s_cselect_b32 s37, s15, s17
s_mov_b32 s38, 20736
s_mov_b32 s39, 0x20000
v_mul_u32_u24 v5, 36, v4
v_lshlrev_b32 v6, 1, v4
s_and_b32 s73, {sJ}, 3
s_lshl_b32 s92, s73, 3
""")
        self.srd(SG, 20, 1152)
        s = a.label("KV3")
        a(f"""
buffer_load_dwordx3 v[24:26], v5, {SKV}, s92 offen
buffer_load_ushort v27, v6, {SG}, 0 offen
v_add_u32 v5, {256*36}, v5
buffer_load_dwordx3 v[28:30], v5, {SKV}, s92 offen
buffer_load_ushort v31, v6, {SG}, 0 offen offset:512
s_cmp_gt_u32 {sW}, 0
s_cbranch_scc1 {s}
v_add_u32 v5, {256*36}, v5
buffer_load_dwordx3 v[40:42], v5, {SKV}, s92 offen
buffer_load_ushort v43, v6, {SG}, 0 offen offset:1024
{s}:
""")
        self.add1(CI)
        self.stamp(6, 3)
        self.srd(SWS, 26, WS_SIZE)
        a(f"""
v_lshrrev_b32 v7, 7, v4
v_lshlrev_b32 v7, 7, v7
v_lshl_add_u32 v7, v4, 4, v7
v_add_u32 v7, {L_P2KV}, v7
v_and_b32 v14, 15, v0
v_lshrrev_b32 v15, 4, v0
v_and_b32 v17, 31, v0
v_lshrrev_b32 v18, 5, v0
v_bfe_u32 v22, v0, 2, 2
v_lshlrev_b32 v22, 4, v22
v_and_b32 v23, 1, v0
v_lshl_add_u32 v22, v23, 3, v22
v_mul_u32_u24 v16, 2176, v15
v_add_u32 v16, v16, v22
v_lshl_add_u32 v12, v15, 7, v22
v_add_u32 v12, {512*16 + 512}, v12
v_add_u32 v19, {L_P2KV}, v16
v_add_u32 v10, {L_P2KV}, v12
v_add_u32 v16, {L_P2Q}, v16
v_add_u32 v12, {L_P2Q}, v12
s_lshl_b32 s73, {sW}, 4
v_add_u32 v21, s73, v14
v_mul_u32_u24 v20, {XP}, v21
v_lshl_add_u32 v20, v15, 8, v20
v_lshrrev_b32 v22, 1, v21
v_xor_b32 v22, v22, v15
v_and_b32 v22, 7, v22
v_lshlrev_b32 v22, 4, v22
v_lshl_add_u32 v11, v21, 7, v22
v_add_u32 v11, {L_X2}, v11
v_xor_b32 v9, 64, v11
s_lshl_b32 s90, {sP}, 1
s_lshr_b32 s73, {sW}, 1
s_add_u32 s90, s90, s73
s_and_b32 s91, {sW}, 1
s_mov_b32 s92, {(LOG2E_BITS | 0x80000000):#x}
s_lshl_b32 s99, {sW}, 6
s_add_u32 s99, s99, {L_G}
""")
        RG, XF, AK_ = 32, 160, 252
        def wrd(b1, b2, T, dst):
            base, off = (b1, T * 128) if T < 16 else (b2, (T - 16) * 512)
            a(f"ds_read_b64_tr_b16 {vr(dst,2)}, {base} offset:{off}\nds_read_b64_tr_b16 {vr(dst+2,2)}, {base} offset:{off+64}")
        def land():
            s = a.label("KW")
            a(f"s_waitcnt vmcnt(0)\nds_write_b128 v7, v[24:27]\nds_write_b128 v7, v[28:31] offset:{4096+256}")
            a(f"s_cmp_gt_u32 {sW}, 0\ns_cbranch_scc1 {s}\nds_write_b128 v7, v[40:43] offset:{8192+512}\n{s}:")
            self.stamp(1, 3)
            self.add1(CX)
            self.wait(CX, 4, sleep=0)
            self.tag()
            self.stamp(2, 3)
        def kv_gemm(swap):
            acc = vr(AK_, 4)
            def rd(T):
                wrd("v19", "v10", T, 44 + 4 * (T % 5))
                if T < 16:
                    a(f"ds_read_b128 {vr(XF+4*T,4)}, v20 offset:{T*16}")
                else:
                    a(f"ds_read_b128 {vr(XF+4*T,4)}, {'v11' if T == 16 else 'v9'}")
            for T in range(4):
                rd(T)
            for T in range(18):
                if T + 4 < 18:
                    rd(T + 4)
                a(f"s_waitcnt lgkmcnt({3 * (min(T + 5, 18) - T - 1)})")
                W, X = vr(44 + 4 * (T % 5), 4), vr(XF + 4 * T, 4)
                A, B = (X, W) if swap else (W, X)
                a(f"v_mfma_f32_16x16x32_bf16 {acc}, {A}, {B}, {'0' if T == 0 else acc}")
            self.add1(CK)
        kpath = a.label("EK"); done = a.label("EKD")
        a(f"s_cmp_lt_u32 {sJ}, 4\ns_cbranch_scc1 {kpath}")
        a(f"""
s_lshl_b32 s90, s90, 1
s_add_u32 s90, s90, s91
s_mul_i32 s90, s90, {VPITCH}
s_add_u32 s90, s90, {WS_VF}
s_sub_u32 s73, {sJ}, 4
s_lshl_b32 s73, s73, 2
v_add_u32 v36, s73, v14
v_cmp_eq_u32 vcc, 7, v14
v_lshrrev_b32 v37, 1, v15
v_cndmask_b32 v36, v36, 18, vcc
v_lshlrev_b32 v36, 5, v36
v_lshl_add_u32 v36, v37, 3, v36
v_and_b32 v37, 1, v15
v_lshl_add_u32 v36, v37, 4, v36
v_mov_b32 v37, 0x3f803f80
v_lshl_add_u32 v38, v15, 4, s99
s_mov_b32 s88, 0x000f000f
s_cmp_eq_u32 {sJ}, 7
s_cmov_b32 s88, 0x00bf00bf
""")
        land()
        kv_gemm(True)
        a(f"""
v_cvt_pk_bf16_f32 v22, v{AK_}, v{AK_+1}
v_cvt_pk_bf16_f32 v23, v{AK_+2}, v{AK_+3}
v_cndmask_b32 v22, v22, v37, vcc
v_cndmask_b32 v23, v23, v37, vcc
s_mov_b32 exec_lo, s88
s_mov_b32 exec_hi, s88
buffer_store_dwordx2 v[22:23], v36, {SWS}, s90 offen sc1
s_mov_b64 exec, -1
""")
        for r in range(4):
            a(f"v_mul_f32 v{AK_+r}, s92, v{AK_+r}\nv_exp_f32 v{AK_+r}, v{AK_+r}")
        for r in range(4):
            a(f"v_add_f32 v{AK_+r}, 1.0, v{AK_+r}\nv_rcp_f32 v{AK_+r}, v{AK_+r}")
        a(f"""
s_mov_b32 exec_lo, 0x00400040
s_mov_b32 exec_hi, 0x00400040
ds_write_b128 v38, {vr(AK_,4)}
s_branch {done}
{kpath}:
s_lshl_b32 s91, s91, 4
v_add_u32 v37, s91, v14
v_lshlrev_b32 v36, 5, v37
v_lshlrev_b32 v37, 3, v37
v_lshl_add_u32 v38, v14, 2, s99
s_lshl_b32 s88, s90, 10
s_lshl_b32 s73, {sJ}, 3
s_add_u32 s88, s88, s73
s_add_u32 s88, s88, {WS_K16}
s_lshl_b32 s90, {sP}, 8
s_lshr_b32 s73, {sW}, 1
s_lshl_b32 s73, s73, 2
s_add_u32 s90, s90, s73
s_add_u32 s90, s90, {WS_KX}
s_cmp_lg_u32 {sJ}, 3
s_cmov_b32 s90, {OOB}
s_mov_b32 s91, {QSCALE_BITS:#x}
""")
        land()
        kv_gemm(False)
        a(f"""
v_mul_f32 v39, s92, v{AK_+2}
v_mul_f32 v{AK_}, s91, v{AK_}
v_mul_f32 v{AK_+1}, s91, v{AK_+1}
v_mul_f32 v{AK_+2}, s91, v{AK_+2}
v_mul_f32 v{AK_+3}, s91, v{AK_+3}
v_cvt_pk_bf16_f32 v22, v{AK_}, v{AK_+1}
v_cvt_pk_bf16_f32 v23, v{AK_+2}, v{AK_+3}
s_mov_b64 exec, 0xffff
buffer_store_dwordx2 v[22:23], v36, {SWS}, s88 offen sc1
s_mov_b32 exec_lo, 0xffff0000
buffer_store_dword v22, v37, {SWS}, s90 offen sc1
v_exp_f32 v39, v39
s_nop 0
v_add_f32 v39, 1.0, v39
v_rcp_f32 v39, v39
s_nop 0
ds_write_b32 v38, v39
{done}:
s_mov_b64 exec, -1
""")
        self.stamp(7, 3)
        a(f"""
s_lshl_b32 s73, {sP}, 3
s_add_u32 s73, s73, {sJ}
s_lshl_b32 s73, s73, 4
s_add_u32 s91, s73, {WS_FKV}
v_bfe_u32 v22, v0, 2, 2
v_lshl_add_u32 v19, v18, 3, v22
v_lshlrev_b32 v19, 6, v19
v_bfe_u32 v22, v0, 4, 1
v_lshl_add_u32 v19, v22, 5, v19
v_and_b32 v22, 3, v0
v_lshl_add_u32 v19, v22, 3, v19
s_and_b32 s73, {sW}, 1
s_mul_i32 s73, s73, {L_WQ1 - L_WQ0}
s_add_u32 s73, s73, {L_WQ0}
v_add_u32 v19, s73, v19
s_lshr_b32 s73, {sW}, 1
s_lshl_b32 s73, s73, 5
v_add_u32 v21, s73, v17
v_mul_u32_u24 v13, {XP}, v21
v_lshl_add_u32 v13, v18, 4, v13
v_mul_u32_u24 v26, 48, v4
v_add_u32 v26, {L_QS + 36}, v26
v_lshrrev_b32 v22, 1, v21
v_xor_b32 v22, v22, v18
v_and_b32 v22, 7, v22
v_lshlrev_b32 v22, 4, v22
v_lshl_add_u32 v6, v21, 7, v22
v_add_u32 v6, {L_X2}, v6
v_xor_b32 v7, 32, v6
v_xor_b32 v8, 64, v6
v_xor_b32 v9, 0x60, v6
v_mul_u32_u24 v22, 48, v21
v_add_u32 v22, {L_QS}, v22
v_lshl_add_u32 v23, v18, 3, v22
v_mul_u32_u24 v24, 3044, v18
v_add_u32 v24, v24, v22
s_lshl_b32 s73, {sW}, 4
v_add_u32 v25, s73, v14
v_mul_u32_u24 v25, 48, v25
v_lshl_add_u32 v25, v15, 3, v25
v_add_u32 v25, {L_QS + 3*3072 + 20}, v25
v_mov_b32 v27, 0
v_lshlrev_b32 v28, 4, v0
s_lshl_b32 s93, {sW}, 10
s_add_u32 s93, s93, {WS_FKV}
""")
        self.kv_addr()
        RX, AM, AXQ = 64, 232, 248
        def rdm(t):
            b = RG + 8 * (t % 4)
            a(f"ds_read_b64_tr_b16 {vr(b,2)}, v19 offset:{t*1024}\nds_read_b64_tr_b16 {vr(b+2,2)}, v19 offset:{t*1024+256}")
            a(f"ds_read_b128 {vr(b+4,4)}, v13 offset:{t*32}" if t < 32 else f"ds_read_b128 {vr(b+4,4)}, v{6+t-32}")
        def mm(t):
            b = RG + 8 * (t % 4)
            a(f"v_mfma_f32_32x32x16_bf16 {vr(AM,16)}, {vr(b,4)}, {vr(b+4,4)}, {'0' if t == 0 else vr(AM,16)}")
        def stage(t0, t1):
            for t in range(t0, min(t0 + 3, t1)):
                rdm(t)
            for t in range(t0, t1):
                if t + 3 < t1:
                    rdm(t + 3)
                a(f"s_waitcnt lgkmcnt({3 * (min(t + 4, t1) - t - 1)})")
                mm(t)
        def kv_flag():
            nf = a.label("NF")
            a(f"s_waitcnt vmcnt(0)\ns_mov_b64 exec, 1\nds_add_rtn_u32 v1, v2, v3 offset:{CF}\ns_mov_b64 exec, -1\ns_waitcnt lgkmcnt(0)")
            a(f"v_readfirstlane_b32 s73, v1\ns_cmp_lg_u32 s73, 3\ns_cbranch_scc1 {nf}")
            self.set_flag("s91")
            a(f"{nf}:")
            self.stamp(3, 3)
        FA = self.opt("fa", 12)
        if FA == 0:
            kv_flag()
        self.wait(C0A, 2, sleep=0)
        self.stamp(4, 3)
        stage(0, 12)
        if FA == 12:
            kv_flag()
        self.add1(CE)
        self.wait(C0B, 2, sleep=0)
        flags = f"buffer_load_dword v84, v28, {SWS}, s93 offen sc1"
        stage(12, 20)
        self.wait(C0D, 2, sleep=0)
        stage(20, 28)
        self.wait(C0C, 2, sleep=0)
        self.stamp(9, 3)
        seq = []
        xs = list(range(18))
        for t in range(28, 36):
            seq.append(("m", t))
            for _ in range(3 if t < 30 else 2):
                seq.append(("x", xs.pop(0)))
        assert not xs
        cost = lambda it: 3 if it[0] == "m" else 2
        def issue(it):
            if it[0] == "m": rdm(it[1])
            else: wrd("v16", "v12", it[1], RX + 4 * (it[1] % 3))
        AH = 3
        for it in seq[:AH]:
            issue(it)
        a(f"ds_read_b32 v31, v2 offset:{CE}")
        for i, it in enumerate(seq):
            ahead = sum(cost(x) for x in seq[i + 1:i + AH]) + (1 if i < AH else 0)
            a(f"s_waitcnt lgkmcnt({ahead})")
            if it[0] == "m":
                mm(it[1])
            else:
                T = it[1]
                a(f"v_mfma_f32_16x16x32_bf16 {vr(AXQ,4)}, {vr(RX+4*(T%3),4)}, {vr(XF+4*T,4)}, {'0' if T == 0 else vr(AXQ,4)}")
            if i == self.opt("fp", 14):
                a(flags)
            if i + AH < len(seq):
                issue(seq[i + AH])
        self.stamp(8, 3)
        miss = a.label("KM")
        a("s_waitcnt vmcnt(0)")
        self.cmp_regs([84], sTAG)
        a(f"s_cselect_b32 s89, 1, 0\ns_cbranch_scc0 {miss}")
        self.kv_loads(0, 2)
        a(f"{miss}:")
        self.stamp(11, 3)
        ok = a.label("CEOK")
        a(f"v_readfirstlane_b32 s73, v31\ns_cmp_ge_u32 s73, 4\ns_cbranch_scc1 {ok}")
        self.wait(CE, 4, sleep=0)
        a(f"{ok}:")
        a(f"ds_write_b32 v26, v27\nv_cvt_pk_bf16_f32 v{AXQ}, v{AXQ}, v{AXQ+1}\nv_cvt_pk_bf16_f32 v{AXQ+1}, v{AXQ+2}, v{AXQ+3}")
        a(f"s_mov_b32 exec_hi, 0\nds_write2_b32 v25, v{AXQ}, v{AXQ+1} offset0:0 offset1:1\ns_mov_b64 exec, -1")
        m1 = a.label("QM1"); md = a.label("QMD")
        a(f"s_bitcmp1_b32 {sW}, 0\ns_cbranch_scc1 {m1}")
        off = lambda c: (c // 18) * 3072 + (c % 18) * 2
        for m in range(2):
            if m == 1:
                a(f"s_branch {md}\n{m1}:")
            for k in range(8):
                c0 = 32 * m + 8 * (k // 2) + 2 * (k % 2)
                d = off(c0 + 4) - off(c0)
                assert d in (8, 3044)
                a(f"v_cvt_pk_bf16_f32 v{AM+k}, v{AM+2*k}, v{AM+2*k+1}")
                a(f"ds_write_b32 {'v23' if d == 8 else 'v24'}, v{AM+k} offset:{off(c0)}")
        a(f"{md}:")
        self.add1(C1)
        have = a.label("KH")
        a(f"s_cmp_eq_u32 s89, 1\ns_cbranch_scc1 {have}")
        self.poll(flags, [84], sleep=12)
        self.kv_loads(0, 2)
        a(f"{have}:")
        self.kv_loads(2)
        self.stamp(10, 3); self.stamp(10)
        a(f"s_setprio 2\ns_mov_b32 s99, {OOB}\nv_mov_b32 v232, v2")

    def panel_setup(self, nw, va=14):
        self.a(f"""
v_lshrrev_b32 v{va}, 2, v0
v_mul_u32_u24 v{va}, 1152, v{va}
v_and_b32 v{va+1}, 3, v0
v_lshl_add_u32 v{va}, v{va+1}, 4, v{va}
v_mul_u32_u24 v{va+1}, 1152, v0
s_and_b32 s73, {sW}, {nw-1}
s_mul_i32 s84, s73, {16*1152}
s_add_u32 s84, s84, s95
s_lshl_b32 s85, s73, 10
""")

    def panel_loads(self, srd, l0, l1, lx, padded, end, nw, va=14, rotate=False):
        a = self.a
        lp = a.label("PNL")
        if rotate:
            a(f"s_lshr_b32 s73, {sP}, 3\ns_mul_i32 s82, s73, {8*1024}\ns_add_u32 s85, s85, s82\ns_mul_i32 s82, s73, {8*16*1152}\ns_add_u32 s84, s84, s82\ns_mov_b32 s88, {end//nw - 1}")
        a(f"""
{lp}:
s_add_u32 m0, s85, {l0}
s_add_u32 s83, s84, 128
buffer_load_dwordx4 v{va}, {srd}, s84 offen lds
s_add_u32 m0, s85, {l1 - 64}
s_lshr_b32 s82, s85, 2
buffer_load_dwordx4 v{va}, {srd}, s84 offen offset:64 lds
""")
        if padded:
            a("s_lshr_b32 s73, s85, 13\ns_lshl_b32 s73, s73, 7\ns_add_u32 s82, s82, s73")
        a(f"""
s_add_u32 m0, s82, {lx}
s_mov_b64 exec, 0xffff
buffer_load_dwordx4 v{va+1}, {srd}, s83 offen lds
s_mov_b64 exec, -1
s_add_u32 s85, s85, {1024*nw}
s_add_u32 s84, s84, {16*nw*1152}
s_cmp_lt_u32 s85, {1024*end}
""")
        if rotate:
            a(f"s_cselect_b32 s82, 0, {1024*end}\ns_cselect_b32 s83, 0, {16*1152*end}\ns_sub_u32 s85, s85, s82\ns_sub_u32 s84, s84, s83\ns_sub_u32 s88, s88, 1\ns_cbranch_scc0 {lp}")
        else:
            a(f"s_cbranch_scc1 {lp}")

    def l_front(self):
        a = self.a
        a(f"""
s_load_dword {sTAG}, s[26:27], {WS_EPOCH}
v_lshl_add_u32 v5, v0, 2, v2
v_mov_b32 v6, 0
ds_write_b32 v5, v6 offset:2048
v_lshlrev_b32 v5, 3, v4
v_add_u32 v5, {L_CT - 2048}, v5
v_mov_b32 v7, 0
ds_write_b64 v5, v[6:7]
s_sub_u32 s99, {sW}, 4
v_and_b32 v18, 31, v0
v_lshrrev_b32 v19, 5, v0
s_lshl_b32 s89, s99, 3
s_add_u32 s89, s89, {sJ}
s_cmp_ge_u32 s89, 18
s_cselect_b32 s89, 99, s89
v_bfe_u32 v20, v0, 2, 1
v_lshlrev_b32 v20, 4, v20
v_bfe_u32 v21, v0, 3, 2
v_lshl_add_u32 v20, v21, 2, v20
v_and_b32 v21, 3, v0
v_add_u32 v20, v20, v21
""")
        if "noipf" not in self.opts:
            n4 = a.label("NPF")
            a(f"""
s_cmp_lg_u32 {sW}, 6
s_cbranch_scc1 {n4}
s_getpc_b64 s[64:65]
L_pc0:
s_sub_u32 s64, s64, L_pc0-{NAME}_kernel
s_subb_u32 s65, s65, 0
s_mov_b32 s66, L_end-{NAME}_kernel
s_mov_b32 s67, 0x20000
s_lshr_b32 s73, s2, 3
v_lshlrev_b32 v8, 12, v0
s_lshl_b32 s73, s73, 7
buffer_load_dword v9, v8, {STB}, s73 offen
s_getpc_b64 s[64:65]
s_add_u32 s64, s64, spectral_tables@rel32@lo+4
s_addc_u32 s65, s65, spectral_tables@rel32@hi+12
s_mov_b32 s66, {2*self.NTAB*1024}
s_nop 1
buffer_load_dword v10, v8, {STB}, s73 offen
{n4}:
""")
        self.srd(SWS, 26, WS_SIZE)
        self.srd(SWQ, 12, 663552)
        FPRE = self.opt("fpre", 8)
        def fsetup():
            a(f"""
s_lshl_b32 s73, s89, 5
v_add_u32 v44, s73, v18
v_lshrrev_b32 v45, 1, v44
v_and_b32 v46, 1, v44
v_cmp_eq_u32 vcc, 1, v44
v_mov_b32 v47, 288
v_cndmask_b32 v45, v45, v47, vcc
v_cndmask_b32 v46, v46, 0, vcc
v_and_b32 v47, 1, v45
v_lshlrev_b32 v47, 31, v47
v_or_b32 v17, 1.0, v47
v_cvt_f32_u32 v45, v45
v_cvt_f32_u32 v46, v46
v_mul_f32 v45, {f32bits(1/576):#x}, v45
v_mul_f32 v46, 0x3e800000, v46
v_lshlrev_b32 v47, 3, v19
v_cvt_f32_u32 v47, v47
v_fma_f32 v46, v47, v45, v46
v_mul_f32 v55, 0x41800000, v45
""")
            for jj in range(8):
                a(f"s_mov_b32 s73, {f32bits(jj):#x}\nv_fma_f32 v{56+jj}, s73, v45, v46")
        def fgen(t):
            if t:
                a(f"s_mov_b32 s73, {f32bits(t):#x}")
            for jj in range(8):
                if t:
                    a(f"v_fma_f32 v{64+jj}, s73, v55, v{56+jj}\nv_cos_f32 v{64+jj}, v{64+jj}")
                else:
                    a(f"v_cos_f32 v{64+jj}, v{56+jj}")
            for k in range(4):
                a(f"v_cvt_pk_bf16_f32 v{104+4*t+k}, v{64+2*k}, v{65+2*k}")
        a("s_waitcnt lgkmcnt(0)\ns_barrier")
        self.tag()
        npre = a.label("NPRE"); n7 = a.label("NW7")
        a(f"v_mov_b32 v23, 0\ns_mov_b32 s98, {OOB}")
        if "wearly" in self.opts:
            a(f"s_cmp_lg_u32 {sW}, 7\ns_cbranch_scc1 {n7}")
            self.wt_loads()
        a(f"{n7}:\ns_cmp_eq_u32 s89, 99\ns_cbranch_scc1 {npre}")
        fsetup()
        for t in range(FPRE):
            fgen(t)
        a(f"{npre}:")
        wqd = a.label("WQD")
        a(f"s_cmp_lt_u32 {sW}, 6\ns_cbranch_scc1 {wqd}")
        self.panel_setup(2)
        self.wait(CI, 4, sleep=0)
        self.panel_loads(SWQ, L_WQ0, L_WQ1, L_P2Q, True, 20, 2)
        a("s_waitcnt vmcnt(12)")
        self.add1(C0A)
        self.panel_loads(SWQ, L_WQ0, L_WQ1, L_P2Q, True, 26, 2)
        self.wait(CK, 4, sleep=0)
        self.panel_loads(SWQ, L_WQ0, L_WQ1, L_P2Q, True, 36, 2)
        self.stamp(6, 3)
        a("s_waitcnt vmcnt(24)")
        self.add1(C0B)
        a("s_waitcnt vmcnt(12)")
        self.add1(C0D)
        if "wmid" in self.opts:
            n7 = a.label("NM7"); d7 = a.label("DM7")
            a(f"s_cmp_lg_u32 {sW}, 7\ns_cbranch_scc1 {n7}")
            self.wt_loads()
            a(f"s_waitcnt vmcnt(16)\ns_branch {d7}\n{n7}:\ns_waitcnt vmcnt(0)\n{d7}:")
        else:
            a("s_waitcnt vmcnt(0)")
        self.add1(C0C)
        self.stamp(1, 3)
        a(f"{wqd}:")
        nod = a.label("NOD")
        a(f"s_cmp_eq_u32 s89, 99\ns_cbranch_scc1 {nod}")
        for t in range(FPRE, 18):
            fgen(t)
        self.stamp(9, 3)
        a(f"""
v_mul_u32_u24 v25, {XP}, v20
v_lshl_add_u32 v25, v19, 4, v25
v_lshrrev_b32 v22, 1, v20
v_xor_b32 v22, v22, v19
v_and_b32 v22, 7, v22
v_lshlrev_b32 v22, 4, v22
v_lshl_add_u32 v6, v20, 7, v22
v_add_u32 v6, {L_X2}, v6
v_xor_b32 v7, 32, v6
v_xor_b32 v8, 64, v6
v_xor_b32 v9, 0x60, v6
v_mul_u32_u24 v22, {TP}, v18
v_lshl_add_u32 v22, v19, 5, v22
s_mul_i32 s90, s89, {32*TP}
s_lshl_b32 s73, {sP}, 7
s_add_u32 s90, s90, s73
s_add_u32 s90, s90, {WS_T}
""")
        RG = 44
        def frag(t, n, q):
            return vr(RG + 16 * (t % 3) + 8 * n + 4 * q, 4)
        def rd(t):
            for n in range(2):
                for q in range(2):
                    ks = t + 18 * q
                    if ks < 32:
                        a(f"ds_read_b128 {frag(t,n,q)}, v25 offset:{n*32*XP + ks*32}")
                    else:
                        a(f"ds_read_b128 {frag(t,n,q)}, v{6+ks-32} offset:{n*4096}")
        def dft(t0, t1):
            for t in range(t0, min(t0 + 2, t1)):
                rd(t)
            for t in range(t0, t1):
                if t + 2 < t1:
                    rd(t + 2)
                a(f"s_waitcnt lgkmcnt({4 * (min(t+3, t1) - t - 1)})")
                for n in range(2):
                    for q in range(2):
                        acc = vr(176 + 32 * n + 16 * q, 16)
                        a(f"v_mfma_f32_32x32x16_bf16 {acc}, {frag(t,n,q)}, {vr(104+4*t,4)}, {'0' if t == 0 else acc}")
        DPRE = self.opt("dpre", 14)
        if DPRE:
            self.wait(CK, 4)
            dft(0, DPRE)
        go6 = a.label("GO6")
        if "six" in self.opts:
            a(f"s_cmp_eq_u32 {sW}, 6\ns_cbranch_scc1 {go6}")
        a("s_setprio 3")
        self.wait(C1, 4)
        a(f"{go6}:")
        self.stamp(3, 3)
        dft(DPRE, 18)
        a("s_setprio 3")
        self.stamp(8, 3)
        self.wait(*((CL, 1) if "word" in self.opts else (CV, 4)), sleep=2)
        for n in range(2):
            b = 176 + 32 * n
            for r in range(16):
                a(f"v_fma_f32 v{b+r}, v17, v{b+16+r}, v{b+r}")
            for k in range(8):
                a(f"v_cvt_pk_bf16_f32 v{b+k}, v{b+2*k}, v{b+2*k+1}")
            a(f"buffer_store_dwordx4 {vr(b,4)}, v22, {SWS}, s90 offen offset:{64*n} sc1")
            a(f"buffer_store_dwordx4 {vr(b+4,4)}, v22, {SWS}, s90 offen offset:{64*n+16} sc1")
        a(f"{nod}:")
        n6 = a.label("N6"); n7 = a.label("N7")
        a(f"s_cmp_eq_u32 {sW}, 7\ns_cbranch_scc1 {n7}\ns_cmp_lg_u32 {sW}, 6\ns_cbranch_scc1 {n6}\ns_setprio 3")
        self.wait(*((CL, 1) if "word" in self.opts else (CV, 4)), sleep=2)
        self.poison()
        a(f"{n6}:\ns_waitcnt vmcnt(0)")
        self.add1(CD)
        self.stamp(4, 3); self.stamp(4)
        a(f"{n7}:")

    def g_gen(self):
        a = self.a
        N = 1.0 / (M.S * M.D)
        skip = a.label("GS"); nx = a.label("GNX"); nk = a.label("GNK")
        assert all((f * 1821) >> 16 == f // 36 for f in range(864))
        assert all((f * 21846) >> 16 == f // 3 for f in range(24))
        a(f"""
s_mov_b32 s99, {OOB}
s_cmp_ge_u32 s2, 216
s_cbranch_scc1 {skip}
s_lshl_b32 s90, s2, 2
s_lshl_b32 s99, s2, 12
s_add_u32 s99, s99, {WS_G}
s_mul_i32 s91, s90, 1821
s_lshr_b32 s91, s91, 16
s_mul_i32 s73, s91, 36
s_sub_u32 s92, s90, s73
s_mul_i32 s93, s91, 21846
s_lshr_b32 s93, s93, 16
s_mul_i32 s73, s93, 3
s_sub_u32 s91, s91, s73
s_mul_i32 s93, s93, 72
s_lshl_b32 s73, s91, 5
s_add_u32 s93, s93, s73
v_mov_b32 v44, v20
s_cmp_lg_u32 s91, 2
s_cbranch_scc1 {nx}
v_mov_b32 v44, v18
{nx}:
v_add_u32 v44, s93, v44
s_lshl_b32 s73, s92, 3
v_lshl_add_u32 v45, v19, 2, s73
v_mul_u32_u24 v45, v45, v44
v_mul_u32_u24 v47, 5, v44
s_mov_b32 s73, {f32bits(1/576):#x}
s_mov_b32 s93, {f32bits(2*N):#x}
""")
        for fr in range(4):
            for cq in range(4):
                a(f"v_cvt_f32_u32 v46, v45\nv_mul_f32 v46, s73, v46\nv_fract_f32 v46, v46")
                a(f"v_cos_f32 v{48+2*cq}, v46\nv_sin_f32 v{49+2*cq}, v46")
                a("v_add_u32 v45, v45, v44" if cq < 3 else "v_add_u32 v45, v45, v47")
            for cq in range(4):
                a(f"v_mul_f32 v{48+2*cq}, s93, v{48+2*cq}\nv_mul_f32 v{49+2*cq}, s93, -v{49+2*cq}")
            if fr == 0:
                a(f"""
s_cmp_lg_u32 s92, 0
s_cbranch_scc1 {nk}
s_mov_b32 exec_hi, 0
v_mov_b32 v48, {f32bits(N):#x}
v_lshlrev_b32 v49, 31, v44
v_or_b32 v49, v48, v49
s_mov_b64 exec, -1
{nk}:
""")
            for k in range(4):
                a(f"v_cvt_pk_bf16_f32 v{240+4*fr+k}, v{48+2*k}, v{49+2*k}")
        a(f"{skip}:")

    WB = 112

    def poison(self):
        a = self.a
        a(f"v_lshlrev_b32 v24, 4, v0\nv_mov_b32 v28, -1\nv_mov_b32 v29, -1\nv_mov_b32 v30, -1\nv_mov_b32 v31, -1")
        a(f"s_mul_i32 s90, {sP}, {8*9216}\ns_add_u32 s90, s90, {WS_OF}\ns_mul_i32 s91, {sJ}, 9216\ns_add_u32 s91, s91, s90\ns_add_u32 s91, s91, 8192")
        a(f"buffer_store_dwordx4 v[28:31], v24, {SWS}, s91 offen sc1\ns_lshl_b32 s73, {sJ}, 10\ns_add_u32 s90, s90, s73")
        for i in range(8):
            a(f"buffer_store_dwordx4 v[28:31], v24, {SWS}, s90 offen sc1\ns_add_u32 s90, s90, 9216")

    def wt_loads(self):
        a = self.a
        self.srd(SWR, 6, 2048 * 578)
        self.srd(SWI, 8, 2048 * 578)
        a(f"""
v_and_b32 v26, 7, v0
v_lshrrev_b32 v27, 3, v0
v_mul_u32_u24 v22, 578, v26
v_mad_u32_u24 v22, v27, 18, v22
s_lshr_b32 s93, s2, 6
s_bfe_u32 s92, s2, 0x20004
s_and_b32 s88, s2, 15
s_lshl_b32 s90, s88, 7
s_lshl_b32 s73, s92, 3
s_add_u32 s90, s90, s73
s_mul_i32 s90, s90, 578
s_mul_i32 s73, s93, 144
s_add_u32 s90, s90, s73
""")
        for jr in range(4):
            for ri, srd in enumerate((SWR, SWI)):
                b = self.WB + 24 * ri + 6 * jr
                a(f"buffer_load_dwordx4 {vr(b,4)}, v22, {srd}, s90 offen\nbuffer_load_dword v{b+4}, v22, {srd}, s90 offen offset:16")
            if jr < 3:
                a(f"s_add_u32 s90, s90, {32*578}")
        a(f"""
s_mov_b32 s73, {9*WP}
v_mul_lo_u32 v23, v27, s73
v_lshl_add_u32 v23, v26, 4, v23
s_mul_i32 s98, s93, {72*WP}
s_lshl_b32 s73, s88, 8
s_add_u32 s98, s98, s73
s_and_b32 s73, s92, 1
s_lshl_b32 s73, s73, 7
s_add_u32 s98, s98, s73
s_lshr_b32 s73, s92, 1
s_lshl_b32 s73, s73, 12
s_add_u32 s98, s98, s73
s_add_u32 s98, s98, {WS_WT}
""")

    def wt_stores(self):
        a = self.a
        last = a.label("WL")
        a("s_mov_b32 s92, 0x05040100\ns_mov_b32 s93, 0x07060302")
        for x in range(10):
            if x == 9:
                a(f"s_cmp_lt_u32 s2, 192\ns_cbranch_scc1 {last}\ns_mov_b32 exec_lo, 0\ns_mov_b32 exec_hi, 0xff000000")
            t = self.WB + 48 + 4 * (x % 3)
            for ri in range(2):
                for pr in range(2):
                    lo = self.WB + 24 * ri + 12 * pr + x // 2
                    a(f"v_perm_b32 v{t+2*ri+pr}, v{lo+6}, v{lo}, {'s93' if x % 2 else 's92'}")
            a(f"buffer_store_dwordx4 {vr(t,4)}, v23, {SWS}, s98 offen sc1\ns_add_u32 s98, s98, {WP}")
        a(f"s_mov_b64 exec, -1\n{last}:")

    def s_flag(self):
        a = self.a
        self.g_gen()
        a("s_setprio 3\nv_lshlrev_b32 v24, 4, v0")
        self.wait(CV, 4, sleep=2)
        self.stamp(3, 3)
        if "wearly" not in self.opts and "wmid" not in self.opts:
            self.wt_loads()
        self.add1(CL)
        self.stamp(8, 3)
        a("s_waitcnt vmcnt(0)")
        self.stamp(9, 3)
        self.wt_stores()
        for fr in range(4):
            a(f"buffer_store_dwordx4 {vr(240+4*fr,4)}, v24, {SWS}, s99 offen offset:{1024*fr} sc1")
        self.stamp(10, 3)
        self.flag4("s91", "s2", WS_FS)
        a("s_waitcnt vmcnt(0)")
        self.stamp(11, 3)
        self.wait(CD, 3, sleep=2)
        self.set_flag("s91")
        self.add1(CW)
        self.stamp(6); self.stamp(2, 3)
        self.wait(CR, 4, sleep=4)
        self.stage2_tables()

    def attention(self):
        a = self.a
        K0, KX0, V0, S0, O0, Q0, QX0 = self.AK, self.AKX, self.AV, self.AS, self.AO, self.AQ, self.AQX
        a(f"""
v_and_b32 v84, 31, v0
v_lshrrev_b32 v85, 5, v0
s_lshr_b32 s88, {sW}, 2
s_mul_i32 s73, s88, 6144
s_add_u32 s73, s73, {L_QS}
v_mul_u32_u24 v{self.vQ}, 48, v84
v_add_u32 v{self.vQ}, s73, v{self.vQ}
v_lshl_add_u32 v{self.vQX}, v85, 2, v{self.vQ}
v_add_u32 v{self.vQX}, 32, v{self.vQX}
v_lshl_add_u32 v{self.vQ}, v85, 4, v{self.vQ}
s_and_b32 s73, {sW}, 3
s_mul_i32 s73, s73, 2560
s_add_u32 s73, s73, {L_EX}
v_lshl_add_u32 v{self.vEX}, v0, 4, s73
s_add_u32 s73, s73, 2048
v_lshl_add_u32 v{self.vEX2}, v0, 3, s73
s_lshl_b32 s73, s88, 10
s_add_u32 s73, s73, {L_CT}
v_lshl_add_u32 v{self.vCT}, v0, 2, s73
s_mul_i32 s73, s88, {CN - C1}
v_add_u32 v86, s73, v2
v_mov_b32 v{QX0+1}, 0
v_mov_b32 v{QX0+2}, 0
""")
        self.wait(C1, 4, sleep=0)
        self.stamp(5); self.stamp(5, 3); self.stamp(1, 5)
        qmain = lambda q: f"ds_read_b128 {vr(Q0,4)}, v{self.vQ} offset:{1536*(q%4)}"
        qx = lambda q: f"ds_read_b32 v{QX0}, v{self.vQX} offset:{1536*(q%4)}\nds_read_b32 v{QX0+3}, v{self.vQX} offset:{1536*(q%4)}"
        a(qmain(0)); a(qx(0))
        keys = lambda kind, t: ([("K", t)] + ([] if t % 2 else [("X", t)])) if kind == "K" else [("V0", t), ("V1", t)]
        issued = []
        for t in range(self.NFIRST):
            issued += keys("K", t) + keys("V", t)
        state = {"done": 0}
        def need(*ks):
            idx = max(issued.index(k) for k in ks) + 1
            if idx > state["done"]:
                state["done"] = idx
                return [f"s_waitcnt vmcnt({len(issued) - idx})"]
            return []
        slots = {}
        def put(g, name, *items):
            slots.setdefault((g, name), []).extend(items)
        def put_loads(kind, t, where):
            ins = self.ld_k(t, t % 8) if kind == "K" else self.ld_v(t, t % 8)
            for x, key, (g, name) in zip(ins, keys(kind, t), where):
                put(g, name, (key, x))
        fast = "cvf" in self.opts
        for t in range(self.NFIRST, 8):
            g = t - self.NFIRST
            if fast:
                x, y = ("A", "B") if g % 2 == 0 else ("C", "D")
                put_loads("K", t, [(g // 2, x), (g // 2, x)])
                put_loads("V", t, [(g // 2, y), (g // 2, y)])
            else:
                put_loads("K", t, [(g, "B"), (g, "B")])
                put_loads("V", t, [(g, "C"), (g, "D")])
        for t in range(8):
            g = 24 + (3 * t) // 2
            put_loads("K", 8 + t, [(g, "C"), (g, "D")])
            put_loads("V", 8 + t, [(g + 1, "A"), (g + 1, "B")])
        def slot(g, name):
            out = []
            for it in slots.get((g, name), []):
                if isinstance(it, tuple):
                    issued.append(it[0]); out.append(it[1])
                else:
                    out.append(it)
            return out
        sreg = lambda g: S0 + 16 * (g % 2)
        oreg = lambda ps: O0 + 10 * (ps % 4)
        def qk16(g):
            return f"v_mfma_f32_32x32x16_bf16 {vr(sreg(g),16)}, {vr(K0+4*(g%8),4)}, {vr(Q0,4)}, 0"
        def qkx(g):
            return f"v_mfma_f32_32x32x8_bf16 {vr(sreg(g),16)}, {vr(KX0+2*((g%8)//2),2)}, {vr(QX0+2*(g%2),2)}, {vr(sreg(g),16)}"
        def pv(g, u):
            o = vr(oreg(g // 8), 16)
            c = "0" if (g // 8 < 4 and g % 8 == 0 and u == 0) else o
            return f"v_mfma_f32_32x32x16_bf16 {o}, {vr(V0+8*(g%8)+4*u,4)}, {vr(sreg(g)+4*u,4)}, {c}"
        kt = lambda g: (g % 8) + (8 if g >= 32 else 0)
        def kneed(g):
            t = kt(g)
            return need(("K", t), ("X", t & ~1))
        def export(q):
            o = O0 + 10 * q
            return [f"ds_write_b128 v{self.vEX}, {vr(o,4)} offset:{10240*q}", f"ds_write_b128 v{self.vEX}, {vr(o+4,4)} offset:{10240*q+1024}",
                    f"ds_write_b64 v{self.vEX2}, {vr(o+8,2)} offset:{10240*q}",
                    f"ds_add_u32 v{self.vCT}, v3 offset:{256*q}"]
        for x in kneed(0) + ["s_waitcnt lgkmcnt(0)", qk16(0), qkx(0)]:
            a(x)
        for ps in range(7):
            put(8 * ps + 6, "B", qmain(ps + 1))
            q1, q2 = qx(ps + 1).split("\n")
            put(8 * ps + 6, "C", q1); put(8 * ps + 6, "D", q2)
        for ps in range(5, 8):
            ex = export(ps - 5)
            put(8 * ps, "C", ex[0]); put(8 * ps, "D", ex[1]); put(8 * ps + 1, "A", ex[2]); put(8 * ps + 1, "B", ex[3])
        hi = a.label("PHI"); nf = a.label("NYF"); lo = a.label("PLO"); ok = a.label("CNOK")
        put(1 if fast else 3, "D", f"s_mov_b64 exec, 1\nds_add_u32 v2, v3 offset:{CV}\ns_mov_b64 exec, -1\ns_cmp_lt_u32 {sW}, 4\ns_cbranch_scc1 {hi}\ns_setprio 1\n{hi}:")
        put(1, "C", f"s_cmp_eq_u32 s99, {OOB}\ns_cbranch_scc1 {nf}\ns_waitcnt vmcnt({12 if fast else 6})\ns_mov_b64 exec, 1\nds_add_rtn_u32 v233, v232, v3 offset:{YA}\n"
                    f"v_mov_b32 v1, {sTAG}\ns_waitcnt lgkmcnt(0)\nv_readfirstlane_b32 s73, v233\ns_cmp_lg_u32 s73, 1\ns_cmov_b32 s99, {OOB}\n"
                    f"buffer_store_dword v1, off, {SWS}, s99 sc1\ns_mov_b64 exec, -1\n{nf}:")
        put(23, "D", "s_setprio 3")
        put(self.opt("cr", 31), "C", f"s_mov_b64 exec, 1\nds_add_u32 v2, v3 offset:{CR}\ns_mov_b64 exec, -1")
        put(36, "A", f"s_setprio 1\ns_cmp_ge_u32 {sW}, 4\ns_cbranch_scc1 {lo}\ns_setprio 2\n{lo}:")
        put(36, "D", f"ds_read_b32 v87, v86 offset:{C1}")
        for g in range(64):
            ps, t = divmod(g, 8)
            s = sreg(g)
            e = lambda i: f"v_exp_f32 v{s+i}, v{s+i}"
            c = lambda k: f"v_cvt_pk_bf16_f32 v{s+k}, v{s+2*k}, v{s+2*k+1}"
            last = g == 63
            seq = [e(0), e(1)]
            if g > 0:
                seq.append(pv(g - 1, 1))
            seq += slot(g, "A")
            if not last:
                w = kneed(g + 1)
                if t == 7:
                    w = [(w[0] + " " if w else "s_waitcnt ") + "lgkmcnt(0)"]
                seq += w
            seq += [e(2), e(3), c(0), e(4), c(1)]
            if not last:
                seq.append(qk16(g + 1))
            seq += slot(g, "B") + [e(5), e(6), e(7), c(2), e(8), c(3)]
            if not last:
                seq.append(qkx(g + 1))
            seq += slot(g, "C") + need(("V0", kt(g)), ("V1", kt(g)))
            seq += [e(9), e(10), e(11), c(4), e(12), c(5), pv(g, 0)] + slot(g, "D") + [e(13), e(14), e(15), c(6), c(7)]
            for x in seq:
                a(x)
            if g == 39:
                a(f"v_readfirstlane_b32 s73, v87\ns_cmp_ge_u32 s73, 4\ns_cbranch_scc1 {ok}")
                self.wait(C1, 4, sleep=2, base="v86")
                a(f"{ok}:")
            if g == 7:
                self.stamp(11)
            if t == 7:
                self.stamp(2 + ps, 5)
        a(pv(63, 1))
        self.norm_setup(1)
        ex = export(3)
        for x in ex[:3]:
            a(x)
        a(f"ds_add_rtn_u32 v1, v{self.vCT}, v3 offset:768")

    T64, T32A, TW1, TW2, T32B, NTAB = 0, 24, 27, 35, 43, 49
    NPRE = 35

    def make_tables(self):
        L = np.arange(64); Lm = (L & 15)[:, None]; Lg = (L >> 4)[:, None]
        jj = np.arange(8)[None, :]; r = np.arange(4)[None, :]
        def pk(v):
            b = M.bf(v.astype(np.float32)).astype(np.uint32)
            return (b[:, 0::2] | (b[:, 1::2] << 16)).astype(np.uint32)
        parts = lambda z: (z.real, z.imag, -z.imag)
        w = lambda n, x, y: np.exp(-2j * np.pi * ((x * y) % n) / n)
        f32 = lambda v: v.astype(np.float32).view(np.uint32)
        out = []
        for H in range(2):
            for k in range(3):
                for t in range(4):
                    for ks in range(2):
                        out.append(pk(parts(w(64, 16 * (t ^ (2 * H)) + Lm, 32 * (ks ^ H) + 16 * (jj >> 2) + 4 * Lg + (jj & 3)))[k]))
            for k in range(3):
                out.append(pk(parts(w(32, 8 * Lg + jj, 16 * H + Lm))[k]))
            for t in range(4):
                z = w(2048, 16 * (t ^ (2 * H)) + 4 * Lg + r, 16 * H + Lm)
                out += [f32(z.real), f32(z.imag)]
            for t in range(4):
                z = np.conj(w(2048, 16 * (t ^ (2 * H)) + Lm, 16 * H + 4 * Lg + r))
                out += [f32(z.real), f32(z.imag)]
            for k in range(3):
                for at in range(2):
                    out.append(pk(parts(w(32, 8 * (Lm >> 2) + 4 * at + (Lm & 3), 16 * (H ^ (jj >> 2)) + 4 * Lg + (jj & 3)))[k]))
        return np.concatenate([o.reshape(-1) for o in out])

    def tload(self, frag, dst):
        if self.tgroup != frag // 4:
            self.tgroup = frag // 4
            self.a(f"s_add_u32 s88, s87, {(frag // 4) * 4096}")
        self.a(f"buffer_load_dwordx4 {vr(dst,4)}, v5, {STB}, s88 offen offset:{(frag % 4) * 1024}")

    def stage2_tables(self):
        a = self.a
        a(f"""
s_getpc_b64 s[64:65]
s_add_u32 s64, s64, spectral_tables@rel32@lo+4
s_addc_u32 s65, s65, spectral_tables@rel32@hi+12
s_mov_b32 s66, {2*self.NTAB*1024}
s_mov_b32 s67, 0x20000
v_lshlrev_b32 v5, 4, v0
s_and_b32 s86, {sW}, 1
s_mul_i32 s87, s86, {self.NTAB*1024}
""")
        self.tgroup = None
        for f in range(24):
            self.tload(self.T64 + f, 80 + 4 * f)
        for f in range(3):
            self.tload(self.T32A + f, 240 + 4 * f)
        for f in range(8):
            self.tload(self.TW1 + f, 16 + 4 * f)

    def stage2(self):
        a = self.a
        A, P, Q, TW, WW, PK, TMP = 80, 48, 176, 16, 208, 240, 8
        self.tgroup = None
        a(f"""
v_and_b32 v6, 15, v0
v_lshlrev_b32 v6, 6, v6
v_lshrrev_b32 v7, 4, v0
v_lshl_add_u32 v6, v7, 4, v6
s_mul_i32 s90, s89, {2*TP}
s_add_u32 s91, s90, {TP}
s_cmp_eq_u32 s89, 288
s_cmov_b32 s90, {TP}
s_cmov_b32 s91, {OOB}
s_cmp_eq_u32 s89, 0
s_cmov_b32 s91, {OOB}
s_lshl_b32 s73, s86, 11
s_add_u32 s90, s90, s73
s_add_u32 s91, s91, s73
s_lshl_b32 s85, s86, 12
s_sub_u32 s85, 2048, s85
s_lshr_b32 s73, {sW}, 1
s_and_b32 s73, s73, 1
s_xor_b32 s73, s73, 1
s_lshl_b32 s99, s73, 2
s_lshl_b32 s73, s73, 12
s_lshl_b32 s84, s86, 11
s_add_u32 s73, s73, s84
s_add_u32 s73, s73, {L_XCH}
v_add_u32 v7, s73, v5
s_sub_u32 s73, s73, s84
s_xor_b32 s84, s84, 0x800
s_add_u32 s84, s84, s73
""")
        cl = a.label("GC"); cg = a.label("CG"); ot = a.label("GO"); dn = a.label("GD")
        a(f"s_cmp_lg_u32 {sW}, 7\ns_cbranch_scc1 {ot}\ns_lshr_b32 s73, s2, 3\ns_cmp_lg_u32 s73, 16\ns_cbranch_scc1 {cl}")
        a(f"v_lshlrev_b32 v8, 7, v0\ns_mov_b32 s92, {WS_FS}\ns_sleep {self.opt('dw', 0)}")
        self.poll(f"buffer_load_dwordx4 v[12:15], v8, {SWS}, s92 offen sc1", [12, 13, 14, 15], sleep=4)
        a(f"s_and_b32 s92, s2, 7\ns_lshl_b32 s92, s92, 7\ns_add_u32 s92, s92, {WS_GOS}")
        self.set_flag("s92")
        a(f"s_branch {cg}\n{cl}:\ns_sleep {self.opt('d2', 16)}")
        self.go_wait(WS_GOS, 252, 8)
        a(f"{cg}:")
        self.add1(CG)
        a(f"s_branch {dn}\n{ot}:")
        self.wait(CG, 1, sleep=2)
        a(f"s_waitcnt vmcnt(0)\n{dn}:")
        self.stamp(7)
        self.stamp(1, 2)
        a(f"s_add_u32 s92, s90, {WS_T}\ns_add_u32 s93, s91, {WS_T}\ns_add_u32 s82, s92, s85\ns_add_u32 s83, s93, s85")
        for t in range(4):
            for ri in range(2):
                so = (("s92", "s93"), ("s82", "s83"))[t >> 1][ri]
                a(f"buffer_load_dwordx4 {vr(WW+8*t+4*ri,4)}, v6, {SWS}, {so} offen offset:{1024*(t&1)} sc1")
        mf = lambda acc, x, y, first: a(f"v_mfma_f32_16x16x32_bf16 {vr(acc,4)}, {vr(x,4)}, {vr(y,4)}, {'0' if first else vr(acc,4)}")
        re = lambda base, t: base + 8 * t
        im = lambda base, t: base + 8 * t + 4
        for t in range(4):
            a(f"s_waitcnt vmcnt({6 - 2*t})")
            if t == 0: self.stamp(2, 2)
            mf(re(P, t), re(WW, t), PK, True); mf(im(P, t), re(WW, t), PK + 4, True)
            mf(re(P, t), im(WW, t), PK + 8, False); mf(im(P, t), im(WW, t), PK, False)
        a(f"s_mul_i32 s92, s89, {WP}\ns_lshl_b32 s73, s86, 12\ns_add_u32 s92, s92, s73\ns_lshl_b32 s73, s86, 11\ns_add_u32 s92, s92, s73\ns_add_u32 s92, s92, {WS_WT}")
        a("s_add_u32 s82, s92, s85")
        for t in range(4):
            a(f"buffer_load_dwordx4 {vr(WW+8*t+4,4)}, v5, {SWS}, {('s92', 's82')[t >> 1]} offen offset:{1024*(t&1)} sc1")
        def cmul(x, c, dst):
            for t in range(4):
                ops = []
                for h in range(2):
                    t0, t1 = TMP + 4 * h, TMP + 4 * h + 2
                    xr, xi, cr, ci = re(x, t) + 2 * h, im(x, t) + 2 * h, re(c, t) + 2 * h, im(c, t) + 2 * h
                    ops.append([f"v_pk_mul_f32 {vr(t0,2)}, {vr(xr,2)}, {vr(cr,2)}",
                                f"v_pk_mul_f32 {vr(t1,2)}, {vr(xr,2)}, {vr(ci,2)}",
                                f"v_pk_fma_f32 {vr(t0,2)}, {vr(xi,2)}, {vr(ci,2)}, {vr(t0,2)} neg_lo:[1,0,0] neg_hi:[1,0,0]",
                                f"v_pk_fma_f32 {vr(t1,2)}, {vr(xi,2)}, {vr(cr,2)}, {vr(t1,2)}",
                                f"v_cvt_pk_bf16_f32 v{dst(t,0)+h}, v{t0}, v{t0+1}",
                                f"v_cvt_pk_bf16_f32 v{dst(t,1)+h}, v{t1}, v{t1+1}"])
                for j in range(0, 6, 2):
                    for o in ops:
                        a(o[j]); a(o[j + 1])
        pkd = lambda t, part: PK + 8 * part + 2 * t
        ks_ = lambda part, ks: PK + 8 * part + 4 * ks
        t64 = lambda k, t, ks: A + 32 * k + 8 * t + 4 * ks
        self.stamp(3, 2)
        cmul(P, TW, pkd)
        self.stamp(4, 2)
        for f in range(8):
            self.tload(self.TW2 + f, TW + 4 * f)
        for t in range(4):
            for ks in range(2):
                mf(re(Q, t), t64(0, t, ks), ks_(0, ks), ks == 0); mf(im(Q, t), t64(1, t, ks), ks_(0, ks), ks == 0)
            for ks in range(2):
                mf(re(Q, t), t64(2, t, ks), ks_(1, ks), False); mf(im(Q, t), t64(0, t, ks), ks_(1, ks), False)
        self.stamp(5, 2)
        a("s_waitcnt vmcnt(8)")
        for t in range(4):
            b = WW + 8 * t
            for k in range(4):
                a(f"v_lshlrev_b32 v{b+2*k}, 16, v{b+4+k}\nv_and_b32 v{b+2*k+1}, 0xffff0000, v{b+4+k}" if k < 2 else "")
            a(f"v_and_b32 v{b+5}, 0xffff0000, v{b+6}\nv_lshlrev_b32 v{b+4}, 16, v{b+6}\nv_lshlrev_b32 v{b+6}, 16, v{b+7}\nv_and_b32 v{b+7}, 0xffff0000, v{b+7}")
        cmul(Q, WW, pkd)
        self.stamp(6, 2)
        for f in range(6):
            self.tload(self.T32B + f, WW + 4 * f)
        for t in (2, 3, 0, 1):
            for ks in range(2):
                mf(re(P, t), ks_(0, ks), t64(0, t, ks), ks == 0); mf(im(P, t), ks_(1, ks), t64(0, t, ks), ks == 0)
            for ks in range(2):
                mf(re(P, t), ks_(1, ks), t64(1, t, ks), False); mf(im(P, t), ks_(0, ks), t64(2, t, ks), False)
        self.stamp(7, 2)
        a("v_add_u32 v232, s99, v2")
        self.kv_addr()
        self.kv_loads()
        a(f"s_waitcnt vmcnt({6 + self.NLD1})")
        cmul(P, TW, lambda t, part: (PK + 8 * t + 4 * part) if t < 2 else (Q + 4 * (t - 2) + 2 * part))
        a(f"ds_write_b128 v7, {vr(Q,4)}\nds_write_b128 v7, {vr(Q+4,4)} offset:1024")
        self.add1(XA, base="v232")
        a("v_add_u32 v7, s84, v5")
        self.wait(XA, 2, sleep=0, base="v232")
        for t in range(2):
            for part in range(2):
                a(f"ds_read_b64 {vr(PK+8*t+4*part+2,2)}, v7 offset:{1024*t+8*part}")
        self.stamp(8, 2)
        a(f"s_waitcnt vmcnt({self.NLD1}) lgkmcnt(0)")
        t32 = lambda k, at: WW + 8 * k + 4 * at
        out = lambda t, part, at: Q + 16 * t + 8 * part + 4 * at
        for t in range(2):
            for at in range(2):
                mf(out(t, 0, at), t32(0, at), PK + 8 * t, True); mf(out(t, 1, at), t32(0, at), PK + 8 * t + 4, True)
            for at in range(2):
                mf(out(t, 0, at), t32(1, at), PK + 8 * t + 4, False); mf(out(t, 1, at), t32(2, at), PK + 8 * t, False)
        a(f"s_add_u32 s92, s90, {WS_Y}\ns_add_u32 s93, s91, {WS_Y}")
        for t in range(2):
            for part in range(2):
                b = out(t, part, 0); d = 48 + 8 * t + 4 * part
                for k in range(4):
                    a(f"v_cvt_pk_bf16_f32 v{d+k}, v{b+2*k}, v{b+2*k+1}")
                a(f"buffer_store_dwordx4 {vr(d,4)}, v6, {SWS}, {'s93' if part else 's92'} offen offset:{1024*t} sc1")
        self.stamp(9, 2)
        self.flag4("s99", "s89", WS_FY)

    def l_mid(self):
        a = self.a
        go = a.label("S2"); no = a.label("NS2"); n7 = a.label("N7"); kv = a.label("LKV"); tb = a.label("TB"); nw = a.label("NW")
        a(f"s_mov_b32 s89, s2\ns_cmp_lg_u32 {sW}, 7\ns_cbranch_scc1 {n7}")
        self.s_flag()
        a(f"s_mov_b32 s89, s2\ns_branch {go}\n{n7}:")
        self.wait(CW, 1, sleep=6)
        self.wait(CR, 4, sleep=4)
        a(f"s_cmp_eq_u32 {sW}, 6\ns_cbranch_scc1 {tb}")
        a(f"""
s_add_u32 s89, s2, 192
s_sub_u32 s73, s2, 64
s_cmp_gt_u32 s73, 32
s_cbranch_scc1 {nw}
{tb}:
""")
        self.stage2_tables()
        a(f"{go}:")
        self.stage2()
        a(f"s_branch {kv}\n{nw}:")
        a(f"{no}:\ns_mov_b32 s99, {OOB}")
        self.kv_addr()
        self.kv_loads()
        a(f"s_setprio 1\n{kv}:")
        self.stamp(9)

    NT = 192

    def tail(self, mm, n):
        a = self.a
        ACC, ACX = 16, 32
        WF = 48
        NT = self.NT
        w = 2 * mm + n
        a("s_setprio 2")
        self.busy = 2
        self.norm_setup(1 - n)
        a(f"""
ds_read_b32 v11, v14 offset:{2304 + 128 * n}
v_and_b32 v37, 15, v0
v_lshrrev_b32 v38, 4, v0
v_lshl_add_u32 v14, v37, 2, v2
ds_read_b32 v36, v14 offset:{2304 + 128 * n + 64 * mm}
v_bfe_u32 v43, v0, 2, 2
v_and_b32 v44, 3, v0
v_bfe_u32 v46, v0, 4, 1
v_and_b32 v39, 1, v44
v_lshlrev_b32 v15, 2, v39
v_lshl_add_u32 v15, v46, 1, v15
v_lshrrev_b32 v14, 1, v44
v_add_u32 v45, v15, v14
v_lshlrev_b32 v45, 3, v45
v_add_u32 v45, {L_WO1 if mm else L_WO0}, v45
v_lshl_add_u32 v6, v13, 2, v43
v_lshl_add_u32 v6, v6, 6, v45
v_lshrrev_b32 v7, 1, v43
v_mul_u32_u24 v7, 72, v7
v_and_b32 v14, 1, v43
v_add3_u32 v40, v7, v14, 16
v_lshl_add_u32 v7, v40, 6, v45
v_mul_u32_u24 v14, 18432, v13
v_add_u32 v7, v7, v14
v_lshlrev_b32 v39, 3, v39
v_add_u32 v39, {L_WOX}, v39
v_mul_u32_u24 v15, 288, v46
v_add_u32 v15, v15, v40
v_lshl_add_u32 v15, v15, 4, v39
v_mul_u32_u24 v14, 72, v13
v_lshl_add_u32 v14, v46, 2, v14
v_add_u32 v14, v14, v43
v_lshl_add_u32 v14, v14, 4, v39
v_lshlrev_b32 v41, 4, v37
v_lshl_add_u32 v41, v46, 9, v41
v_lshl_add_u32 v47, v13, 10, v41
v_cmp_gt_u32 vcc, 32, v0
v_mov_b32 v40, {OOB}
v_add_u32 v41, {256 * mm}, v47
v_cndmask_b32 v42, v40, v41, vcc
v_cmp_gt_u32 vcc, 8, v37
s_nop 0
v_cndmask_b32 v47, v40, v47, vcc
s_waitcnt lgkmcnt(0)
v_sub_f32 v4, 1.0, v4
""")

        normalize = self.normalize

        def wrow(kind, k, hh, u):
            if kind == "m":
                return ("v6", (72 * k + 18 * hh + 8 * u) * 64) if k < 8 else ("v7", (144 * u + 18 * hh) * 64)
            return ("v14", (144 * k + 18 * hh + 8 * u) * 16) if k < 4 else ("v15", (144 * u + 18 * hh) * 16)

        def consume(i, probe):
            OB, AX = 192, 248
            hh = i >> 1
            seq = []
            for ks in range(9):
                seq.append(("m", ks))
                if ks % 2 == 1 or ks == 8: seq.append(("x", ks // 2))
            def rd(k):
                for u in range(2):
                    base, off = wrow("x", k, hh, u)
                    a(f"ds_read_b64_tr_b16 {vr(AX+4*(k%2)+2*u,2)}, {base} offset:{off}")
            rd(0); rd(1)
            if probe:
                l = a.label("CP"); d = a.label("CQ")
                a(f"{l}:\ns_add_u32 s90, s94, {i*9216 + 8192}\nbuffer_load_dwordx4 {vr(OB,4)}, v5, {SWS}, s90 offen sc1")
                a(f"s_waitcnt vmcnt(0)\nv_max_u32 v1, v{OB}, v{OB+1}\nv_max3_u32 v1, v1, v{OB+2}, v{OB+3}")
                a(f"v_cmp_eq_u32 vcc, -1, v1\ns_cmp_eq_u64 vcc, 0\ns_cbranch_scc1 {d}")
                a(f"s_sleep 8\ns_sub_u32 {sSPIN}, {sSPIN}, 1\ns_cbranch_scc0 {l}\ns_branch L_bail\n{d}:")
            l = a.label("CL"); d = a.label("CD")
            a(f"{l}:")
            chk = []
            oreg = lambda it: OB + (4 * it[1] if it[0] == "m" else 36 + 4 * it[1])
            for it in seq:
                kind, k = it
                if kind == "m" and k % 4 == 0:
                    a(f"s_add_u32 s90, s94, {i*9216 + 1024*k}")
                voff, last = ("v5", k == 8) if kind == "m" else ("v41" if k < 4 else "v42", k == 4)
                imm = 1024 * (k % 4) if kind == "m" else 2048 * (k % 2)
                a(f"buffer_load_dwordx4 {vr(oreg(it),4)}, {voff}, {SWS}, s90 offen offset:{imm} sc1")
                chk.append([oreg(it) + r for r in range(4 if last else 1)])
            flat = [(j, r) for j, rs in enumerate(chk) for r in rs]
            a(f"s_waitcnt vmcnt({len(chk) - 2})\nv_max_u32 v1, v{flat[0][1]}, v{flat[1][1]}")
            for p in range(2, len(flat), 2):
                a(f"s_waitcnt vmcnt({len(chk) - 1 - flat[p+1][0]})\nv_max3_u32 v1, v1, v{flat[p][1]}, v{flat[p+1][1]}")
            a(f"v_cmp_eq_u32 vcc, -1, v1\ns_cmp_eq_u64 vcc, 0\ns_cbranch_scc1 {d}")
            a(f"s_sleep {2 if i >= 6 else 8}\ns_sub_u32 {sSPIN}, {sSPIN}, 1\ns_cbranch_scc0 {l}\ns_branch L_bail\n{d}:")
            for kind, k in seq:
                if kind == "m":
                    a(f"v_mfma_f32_32x32x16_bf16 {vr(ACC,16)}, {vr(WF+36*hh+4*k,4)}, {vr(oreg((kind,k)),4)}, {vr(ACC,16)}")
                else:
                    a(f"s_waitcnt lgkmcnt({2 if k < 4 else 0})")
                    a(f"v_mfma_f32_16x16x32_bf16 {vr(ACX,4)}, {vr(AX+4*(k%2),4)}, {vr(oreg((kind,k)),4)}, {vr(ACX,4)}")
                    if k + 2 < 5:
                        rd(k + 2)

        normalize(2 * mm + (1 - n))
        self.stamp(2, 4)
        GM, GX, GD, GE = 192, 224, 8, 3
        AC2, BF, BX = ACC, 236, 248
        vm = []
        def gm(ks):
            a(f"buffer_load_dwordx4 {vr(GM+4*(ks%GD),4)}, v5, {SWS}, s93 offen offset:{1024*(ks%4)} sc1")
            if ks % 4 == 3: a("s_add_u32 s93, s93, 4096")
            vm.append(("m", ks))
        def gx(T):
            a(f"buffer_load_dwordx4 {vr(GX+4*(T%GE),4)}, v47, {SWS}, s98 offen offset:{2048*(T%2)} sc1")
            if T % 2 == 1: a("s_add_u32 s98, s98, 4096")
            vm.append(("x", T))
        bulk = w < 2
        if bulk:
            self.srd(SWO, 18, 663552)
            self.panel_setup(2, va=48)
        a(f"s_mul_i32 s93, {sJ}, {3*36*1024}\ns_add_u32 s98, s93, {WS_G + 2*36*1024}\ns_add_u32 s93, s93, {WS_G + mm*36*1024}")
        self.wait(CV, 8, sleep=3)
        if bulk:
            self.panel_loads(SWO, L_WO0, L_WO1, L_WOX, False, 36, 2, va=48, rotate=True)
        self.stamp(1, 4)
        for ks in range(GD):
            gm(ks)
            if ks % 2 == 1 and ks // 2 < GE: gx(ks // 2)
        fy = (f"buffer_load_dwordx4 {vr(BF+2,4)}, v{BF}, {SWS}, s99 offen sc1\nbuffer_load_dwordx4 {vr(BF+6,4)}, v{BF+1}, {SWS}, s92 offen sc1\n"
              f"buffer_load_dword v{BF+10}, off, {SWS}, s88 sc1")
        if w == 0:
            a(f"v_lshlrev_b32 v{BF}, 7, v0\nv_min_u32 v{BF+1}, {7*128}, v{BF}\ns_mov_b32 s99, {WS_FY}\ns_mov_b32 s92, {WS_FY + 8192}\ns_mov_b32 s88, {WS_FY + 72*128}")
            a(fy)
        if bulk:
            a(f"s_waitcnt vmcnt({len(vm) + (3 if w == 0 else 0)})")
            self.add1(S3)
        self.wait(S3, 2, sleep=1 if bulk else 3)
        self.stamp(3, 4)
        for hh in range(4):
            for k in range(9):
                for u in range(2):
                    base, off = wrow("m", k, hh, u)
                    a(f"ds_read_b64_tr_b16 {vr(WF+36*hh+4*k+2*u,2)}, {base} offset:{off}")
                if k % 3 == 2:
                    a("s_waitcnt lgkmcnt(6)")
        self.stamp(4, 4)
        a(f"""
v_lshrrev_b32 v39, 3, v0
v_mul_u32_u24 v39, {TP}, v39
v_lshlrev_b32 v40, 2, v46
v_xor_b32 v40, v40, v0
v_and_b32 v40, 7, v40
v_lshl_add_u32 v39, v40, 4, v39
v_bfe_u32 v40, v0, 3, 1
v_xor_b32 v40, {n}, v40
v_lshlrev_b32 v40, 6, v40
v_lshl_add_u32 v40, v44, 3, v40
v_lshl_add_u32 v40, v43, 7, v40
v_lshl_add_u32 v43, v13, 10, v40
v_lshl_add_u32 v43, v46, 5, v43
v_add_u32 v44, 36864, v43
v_lshl_add_u32 v45, v38, 10, v40
v_add_u32 v45, {32 * mm}, v45
v_add_u32 v46, 36864, v45
s_waitcnt lgkmcnt(0)
""")
        self.add1(S2)
        if w == 0:
            ok = a.label("YOK")
            a("s_waitcnt vmcnt(0)")
            self.cmp_regs([BF + 2 + k for k in range(9)], sTAG)
            a(f"s_cbranch_scc1 {ok}")
            self.poll(fy, [BF + 2 + k for k in range(9)], sleep=12)
            a(f"{ok}:")
            self.add1(CY)
            ne = a.label("NE")
            a(f"s_cmp_lg_u32 s2, 0\ns_cbranch_scc1 {ne}")
            self.set_flag(str(WS_EPOCH))
            a(f"{ne}:")
        elif bulk:
            self.wait(CY, 1, sleep=2)
        if bulk:
            self.wait(S2, 4, sleep=1)
            self.stamp(1); self.stamp(5, 4)
            a(f"s_lshl_b32 s99, {sP}, 7\ns_add_u32 s99, s99, {WS_Y + w * 8 * TP}\ns_mov_b32 s92, {L_Y + w * 1024}")
            lp = a.label("YL")
            a(f"s_mov_b32 s88, 5\n{lp}:")
            for k in range(6):
                a(f"s_mov_b32 m0, s92\ns_add_u32 s92, s92, 2048\nbuffer_load_dwordx4 v39, {SWS}, s99 offen sc1 lds\ns_add_u32 s99, s99, {16*TP}")
            a(f"s_sub_u32 s88, s88, 1\ns_cbranch_scc0 {lp}")
            vm.extend([("y", k) for k in range(36)])
            a("s_waitcnt vmcnt(18)")
            self.add1(S1)
        self.stamp(6, 4)
        def yrd(it):
            kind, k = it
            if kind == "m":
                b = BF + 4 * (k % 3); base, off = ("v43", 2048 * k) if k < 18 else ("v44", 2048 * (k - 18))
            else:
                b = BX + 4 * (k % 2); base, off = ("v45", 4096 * k) if k < 9 else ("v46", 4096 * (k - 9))
            a(f"ds_read_b64_tr_b16 {vr(b,2)}, {base} offset:{off}\nds_read_b64_tr_b16 {vr(b+2,2)}, {base} offset:{off+512}")
        done = {"vm": len(vm) - 18 if bulk else 0}
        def half(k0):
            seq = []
            for ks in range(k0, k0 + 18):
                seq.append(("m", ks))
                if ks % 2 == 1: seq.append(("x", ks // 2))
            for it in seq[:3]:
                yrd(it)
            for i, it in enumerate(seq):
                wv = ""
                if vm.index(it) + 1 > done["vm"]:
                    done["vm"] = vm.index(it) + 1
                    wv = f"vmcnt({len(vm) - done['vm']}) "
                a(f"s_waitcnt {wv}lgkmcnt({2 * (min(i + 3, len(seq)) - i - 1)})")
                kind, k = it
                if kind == "m":
                    a(f"v_mfma_f32_32x32x16_bf16 {vr(AC2,16)}, {vr(GM+4*(k%GD),4)}, {vr(BF+4*(k%3),4)}, {'0' if k == 0 else vr(AC2,16)}")
                    if k + GD < 36: gm(k + GD)
                else:
                    a(f"v_mfma_f32_16x16x32_bf16 {vr(AC2+16,4)}, {vr(GX+4*(k%GE),4)}, {vr(BX+4*(k%2),4)}, {'0' if k == 0 else vr(AC2+16,4)}")
                    if k + GE < 18: gx(k + GE)
                if i + 3 < len(seq):
                    yrd(seq[i + 3])
                if bulk and it == ("m", GD):
                    self.add1(S4)
        self.wait(S1, 2, sleep=1 if bulk else 2)
        self.stamp(7, 4)
        half(0)
        self.wait(S4, 2, sleep=1)
        half(18)
        self.stamp(2); self.stamp(8, 4)
        self.srd(SOUT, 22, 2359296)
        a(f"""
s_mov_b32 s73, 73728
v_mul_lo_u32 v39, v12, s73
v_lshl_add_u32 v39, v13, 5, v39
v_mul_lo_u32 v40, v37, s73
v_lshl_add_u32 v40, v38, 3, v40
s_mul_i32 s93, {sP}, 2304
s_add_u32 s93, s93, s95
s_add_u32 s93, s93, {1152 * n}
s_add_u32 s92, s93, {16 * mm * 73728}
""")
        for i in range(8):
            a(f"v_pk_mul_f32 {vr(ACC+2*i,2)}, {vr(ACC+2*i,2)}, v[10:11] op_sel:[0,1] op_sel_hi:[1,1]")
        for i in range(2):
            a(f"v_pk_mul_f32 {vr(ACX+2*i,2)}, {vr(ACX+2*i,2)}, v[36:37] op_sel_hi:[1,0]")
        prog = {0: ["N5", "C0", "C2", "C4", "C6"], 1: ["N4", "C1", "C3", "C5", "C7"],
                2: ["C0", "C2", "C4", "C6"], 3: ["C1", "C3", "N6", "C5", "C7"]}[w]
        gates = {4: 5, 5: 6, 6: 7, 7: 7}
        for it in prog:
            i = int(it[1])
            if it[0] == "N":
                normalize(i)
                self.stamp(3)
            else:
                if i >= 4:
                    self.wait(256 * gates[i], 4, sleep=2 if gates[i] == 7 else 4)
                if i == 7:
                    a(f"s_sleep {self.opt('d7', 4)}")
                if i >= 6: self.stamp(4)
                consume(i, i in (4, 5))
                if i in (2, 3): self.stamp(9, 4)
                if i in (4, 5): self.stamp(10, 4)
                if i in (6, 7): self.stamp(11, 4)
        self.stamp(6)
        fl = " sc1" if "outsc1" in self.opts else " nt" if "outnt" in self.opts else ""
        a(f"v_cvt_pk_bf16_f32 v{ACX}, v{ACX}, v{ACX+1}\nv_cvt_pk_bf16_f32 v{ACX+1}, v{ACX+2}, v{ACX+3}")
        for k in range(8):
            a(f"v_cvt_pk_bf16_f32 v{ACC+k}, v{ACC+2*k}, v{ACC+2*k+1}")
        a(f"buffer_store_dwordx4 {vr(ACC,4)}, v39, {SOUT}, s93 offen offset:{64*mm}{fl}")
        a(f"buffer_store_dwordx4 {vr(ACC+4,4)}, v39, {SOUT}, s93 offen offset:{64*mm+16}{fl}")
        a(f"s_mov_b32 exec_hi, 0\nbuffer_store_dwordx2 {vr(ACX,2)}, v40, {SOUT}, s92 offen offset:128{fl}\ns_mov_b64 exec, -1")
        self.stamp(7)

    def norm_setup(self, rows):
        self.a(f"""
v_lshlrev_b32 v5, 4, v0
v_and_b32 v12, 31, v0
v_lshrrev_b32 v13, 5, v0
v_add_u32 v8, {L_EX}, v5
v_lshlrev_b32 v9, 3, v0
v_add_u32 v9, {L_EX + 2048}, v9
v_lshlrev_b32 v10, 3, v12
v_add_u32 v10, {L_EX + 2048 + 256}, v10
v_lshl_add_u32 v14, v12, 2, v2
ds_read_b32 v4, v14 offset:{2304 + 128 * rows}
s_mul_i32 s94, {sP}, {8*9216}
s_add_u32 s94, s94, {WS_OF}
s_lshl_b32 s96, {sJ}, 10
s_add_u32 s96, s96, s94
s_lshr_b32 s97, {sJ}, 2
s_lshl_b32 s97, s97, 9
s_and_b32 s73, {sJ}, 3
s_lshl_b32 s73, s73, 2
s_add_u32 s97, s97, s73
s_add_u32 s97, s97, s94
s_add_u32 s97, s97, 8192
""")

    def normalize(self, i, wait=True):
        a = self.a
        NT = self.NT
        q = i % 4
        if wait:
            self.wait(256 * i, 4, sleep=2 if i >= 6 else 4)
        for s in range(4):
            b = NT + 12 * s; o = 10240 * q + 2560 * s
            a(f"ds_read_b128 {vr(b,4)}, v8 offset:{o}\nds_read_b128 {vr(b+4,4)}, v8 offset:{o+1024}\nds_read_b64 {vr(b+8,2)}, v9 offset:{o}")
            if s == 3:
                a("s_waitcnt lgkmcnt(9)")
            a(f"ds_read_b32 v{b+10}, v10 offset:{o}")
        a(f"s_add_u32 s90, s96, {i*9216}\ns_add_u32 s91, s97, {i*9216}\ns_movk_i32 s89, {i}")
        a("s_waitcnt lgkmcnt(8)")
        for s in range(1, 4):
            if s > 1:
                a(f"s_waitcnt lgkmcnt({4 * (3 - s)})")
            for k in range(5):
                a(f"v_pk_add_f32 {vr(NT+2*k,2)}, {vr(NT+2*k,2)}, {vr(NT+12*s+2*k,2)}")
            a(f"v_add_f32 v{NT+10}, v{NT+10}, v{NT+12*s+10}")
        if i < 4:
            self.wait(CG, 1, sleep=2)
            self.add1(CN)
        self.safety()
        a(f"v_rcp_f32 v{NT+10}, v{NT+10}\ns_nop 0\nv_mul_f32 v{NT+10}, v4, v{NT+10}")
        for k in range(5):
            a(f"v_pk_mul_f32 {vr(NT+2*k,2)}, {vr(NT+2*k,2)}, {vr(NT+10,2)} op_sel_hi:[1,0]")
        for k in range(5):
            a(f"v_cvt_pk_bf16_f32 v{NT+12+k}, v{NT+2*k}, v{NT+2*k+1}")
        a(f"v_min_u32 v{NT+12}, -2, v{NT+12}\nv_min_u32 v{NT+16}, -2, v{NT+16}")
        a(f"buffer_store_dwordx4 {vr(NT+12,4)}, v5, {SWS}, s90 offen sc1\ns_mov_b32 exec_hi, 0")
        a(f"buffer_store_dword v{NT+16}, v5, {SWS}, s91 offen sc1")
        a("s_mov_b64 exec, -1")

    def safety(self):
        a = self.a
        NT = self.NT
        ok = a.label("SOK")
        t = NT + 12
        a(f"v_mov_b32 v{t}, 0\nv_mov_b32 v{t+1}, 0\nv_mov_b32 v{t+2}, 0\nv_mov_b32 v{t+3}, 0")
        for k in range(5):
            a(f"v_pk_fma_f32 {vr(t,2)}, {vr(NT+2*k,2)}, {vr(t+2,2)}, {vr(t,2)}")
        lo, hi = (127 - 60) << 23, (127 + 64) << 23
        if "forcefb" in self.opts:
            lo, hi = (127 + 60) << 23, (127 + 64) << 23
        a(f"v_add_f32 v{t}, v{t}, v{t+1}\nv_subrev_u32 v{t+1}, {lo:#x}, v{NT+10}\nv_cmp_u_f32 vcc, v{t}, v{t}")
        a(f"s_mov_b32 s73, {hi - lo:#x}\nv_cmp_lt_u32 s[74:75], s73, v{t+1}\ns_or_b64 vcc, vcc, s[74:75]\ns_cmp_eq_u64 vcc, 0\ns_cbranch_scc1 {ok}")
        a(f"s_call_b64 s[86:87], L_fallback\n{ok}:")

    def fallback(self):
        a = self.a
        NT = self.NT
        O, S, Q, QX, K, KX, V, MX = NT, 208, 224, 228, 230, 234, 236, 244
        vK, vKX, vV, T0 = 245, 246, 247, 248
        l1 = a.label("FB1"); l2 = a.label("FB2")
        qk = f"""
buffer_load_dwordx4 {vr(K,4)}, v{vK}, {SWS}, s[84] offen sc1
buffer_load_dword v{KX}, v{vKX}, {SWS}, s[85] offen sc1
""".replace("s[84]", "s84").replace("s[85]", "s85")
        mm = f"""
v_mfma_f32_32x32x16_bf16 {vr(S,16)}, {vr(K,4)}, {vr(Q,4)}, 0
v_mfma_f32_32x32x8_bf16 {vr(S,16)}, {vr(KX,2)}, {vr(QX,2)}, {vr(S,16)}
s_add_u32 s84, s84, 1024
s_bitcmp1_b32 s88, 0
s_cselect_b32 s73, 4, 252
s_add_u32 s85, s85, s73
"""
        a(f"""
L_fallback:
s_nop 4
v_lshlrev_b32 v{vK}, 5, v12
v_lshl_add_u32 v{vK}, v13, 4, v{vK}
v_mov_b32 v{T0}, {OOB}
v_lshlrev_b32 v{vKX}, 3, v12
v_cmp_lt_u32 vcc, 31, v0
v_subrev_u32 v{T0+1}, 64, v{vK}
v_cndmask_b32 v{vKX}, v{vKX}, v{T0}, vcc
v_cmp_eq_u32 vcc, 20, v12
s_mul_i32 s73, s89, 1536
v_cndmask_b32 v{T0+1}, v{T0}, v{T0+1}, vcc
v_cmp_gt_u32 vcc, 18, v12
s_add_u32 s73, s73, {L_QS}
v_cndmask_b32 v{vV}, v{T0+1}, v{vK}, vcc
v_mul_u32_u24 v{T0}, 48, v12
v_add_u32 v{T0}, s73, v{T0}
v_lshl_add_u32 v{T0+1}, v13, 2, v{T0}
v_lshl_add_u32 v{T0}, v13, 4, v{T0}
ds_read_b128 {vr(Q,4)}, v{T0}
ds_read_b32 v{QX}, v{T0+1} offset:32
v_mov_b32 v{QX+1}, 0
v_mov_b32 v{KX+1}, 0
v_mov_b32 v{MX}, 0xff800000
s_mov_b32 s84, {WS_K16}
s_mov_b32 s85, {WS_KX}
s_mov_b32 s88, 63
{l1}:
{qk}
s_waitcnt vmcnt(0) lgkmcnt(0)
{mm}
""")
        for k in range(8):
            a(f"v_max3_f32 v{MX}, v{MX}, v{S+2*k}, v{S+2*k+1}")
        a(f"""
s_sub_u32 s88, s88, 1
s_cbranch_scc0 {l1}
v_mov_b32 v{T0}, v{MX}
v_permlane32_swap_b32 v{MX}, v{T0}
v_max_f32 v{MX}, v{MX}, v{T0}
s_mov_b32 s84, {WS_K16}
s_mov_b32 s85, {WS_KX}
s_mov_b32 s83, {WS_VF}
s_mov_b32 s88, 63
""")
        for r in range(16):
            a(f"v_mov_b32 v{O+r}, 0")
        a(f"""
{l2}:
{qk}
buffer_load_dwordx4 {vr(V,4)}, v{vV}, {SWS}, s83 offen sc1
buffer_load_dwordx4 {vr(V+4,4)}, v{vV}, {SWS}, s83 offen offset:{VPITCH} sc1
s_waitcnt vmcnt(0)
{mm}
s_add_u32 s83, s83, {2*VPITCH}
""")
        for r in range(16):
            a(f"v_sub_f32 v{S+r}, v{S+r}, v{MX}")
        for r in range(16):
            a(f"v_exp_f32 v{S+r}, v{S+r}")
        for k in range(8):
            a(f"v_cvt_pk_bf16_f32 v{S+k}, v{S+2*k}, v{S+2*k+1}")
        a(f"""
v_mfma_f32_32x32x16_bf16 {vr(O,16)}, {vr(V,4)}, {vr(S,4)}, {vr(O,16)}
v_mfma_f32_32x32x16_bf16 {vr(O,16)}, {vr(V+4,4)}, {vr(S+4,4)}, {vr(O,16)}
s_nop 15
s_sub_u32 s88, s88, 1
s_cbranch_scc0 {l2}
""")
        a(f"v_mov_b32 v{T0}, v{O+8}\nv_mov_b32 v{NT+10}, v{O+8}\nv_permlane32_swap_b32 v{T0}, v{NT+10}\ns_nop 4\ns_setpc_b64 s[86:87]")

    def finish_stamps(self):
        a = self.a
        if self.stamps:
            a("v_mov_b32 v2, 0")
            for i in range(12):
                a(f"v_writelane_b32 v2, s{STAMPS[i]}, {i}")
            a(f"s_lshl_b32 s73, s2, 3\ns_add_u32 s73, s73, {sW}\ns_lshl_b32 s73, s73, 7\ns_add_u32 s73, s73, {WS_DBG}")
            a(f"v_lshlrev_b32 v3, 2, v0\ns_mov_b32 exec_hi, 0\nbuffer_store_dword v2, v3, {SWS}, s73 offen\ns_mov_b64 exec, -1")

    def build(self):
        a = self.a
        self.prologue()
        self.e_front()
        a("L_attn:")
        self.attention()
        self.stamp(8)
        a(f"s_cmp_ge_u32 {sW}, 4\ns_cbranch_scc1 L_last")
        labs = [a.label("TL") for _ in range(4)]
        for w in range(1, 4):
            a(f"s_cmp_eq_u32 {sW}, {w}\ns_cbranch_scc1 {labs[w]}")
        for w in range(4):
            a(f"{labs[w]}:")
            self.tail(w >> 1, w & 1)
            a("s_branch L_fin")
        a(f"L_last:\ns_waitcnt lgkmcnt(0)\nv_readfirstlane_b32 s73, v1\nv_sub_f32 v4, 1.0, v4\ns_cmp_lg_u32 s73, 3\ns_cbranch_scc1 L_fin\ns_setprio 3")
        self.normalize(7, wait=False)
        self.stamp(3)
        a("s_branch L_fin")
        a("L_lwave:")
        self.busy = 3
        self.l_front()
        self.l_mid()
        a("s_branch L_attn")
        self.fallback()
        a("L_bail:")
        if self.stamps:
            a(f"s_mov_b32 s{STAMPS[11]}, 0xdead0000")
        a("L_fin:")
        self.stamp(1, 6)
        if self.opt("padto", 0):
            a(f"L_pad:\ns_sleep 2\ns_memrealtime s[78:79]\ns_waitcnt lgkmcnt(0)\ns_sub_u32 s78, s78, s76\ns_cmp_lt_u32 s78, s80\ns_cbranch_scc1 L_pad")
        self.finish_stamps()
        a("L_end:\ns_endpgm")
        body = a.finish()
        tw = self.make_tables()
        assert tw.size == 2 * self.NTAB * 256
        tab = "\n".join(".long " + ",".join(f"{x:#x}" for x in tw[i:i+16]) for i in range(0, tw.size, 16))
        hdr = open("cdna_kernels/" + NAME + ".s.ref").read().split("; Override launch")[0]
        return f"""{hdr}; @launch grid=(256,1,1) block=(512,1,1) lds={LDS_BYTES}
.amdgcn_target "amdgcn-amd-amdhsa--gfx950"
.text
.globl {NAME}_kernel
.p2align 8
.type {NAME}_kernel,@function
{NAME}_kernel:
{body}
.section .rodata,"a"
.p2align 8
.type spectral_tables,@object
spectral_tables:
{tab}
.size spectral_tables, {2*self.NTAB*1024}
.p2align 6
.amdhsa_kernel {NAME}_kernel
  .amdhsa_next_free_vgpr 256
  .amdhsa_next_free_sgpr 102
  .amdhsa_accum_offset 256
  .amdhsa_group_segment_fixed_size 0
  .amdhsa_kernarg_size 96
  .amdhsa_user_sgpr_count 2
  .amdhsa_user_sgpr_kernarg_segment_ptr 1
  .amdhsa_system_sgpr_workgroup_id_x 1
.end_amdhsa_kernel
"""


if __name__ == "__main__":
    opts = sys.argv[2:]
    g = Gen(stamps=2 if "st2" in opts else 3 if "st3" in opts else 4 if "st4" in opts else 5 if "st5" in opts else 6 if "tot" in opts else int("stamps" in opts), cyc="cyc" in opts, opts=opts)
    src = g.build()
    open(sys.argv[1], "w").write(src)
    print("nops added:", g.a.added_nops, "lines:", len(src.splitlines()))
```

```python
import sys
import numpy as np
from asmlib import Asm
import model as M

NAME = "gated_mix__spectral_gfnet__grouped_kv_mqa__prompt"

WS_EPOCH = 0
WS_FKV = 0x50000
WS_FS = 0x58000
WS_FY = 0x60000
WS_GOS = 0x68000
WS_K16 = 0x10000
WS_KX = 0x20000
WS_VF = 0x30000
WS_DBG = 0x80000
WS_G = 0x100000
WS_T = 0x200000
WS_Y = 0x500000
WS_OF = 0x800000
WS_WT = 0xB00000
WS_SIZE = 0x1000000
OOB = 0x40000000
VPITCH = 640
TP = 4096 + 128
WP = 8192 + 128

XP = 1040
L_X = 0
L_X2 = 64 * XP
L_WQ0 = 74752
L_WQ1 = 111616
P2SZ = 9728
L_P2Q = 148480
L_P2KV = L_P2Q - P2SZ
L_MISC = 162816
L_CT = L_MISC - 2048
(C0A, C0B, C0C, C1, CX, CK, CE, CV, CY, S1, S2, S3, CN, CW, CF, CD, CG, S4, C0D, SA, XA, XB, YA, YB, CR, CL, CI) = (2048 + 4 * i for i in range(27))
L_G = L_MISC + 256
L_QS = L_WQ0
L_WO0 = 0
L_WO1 = 36864
L_Y = 0
L_EX = L_QS + 12288
L_WOX = L_EX + 16 * 2560
L_XCH = L_WOX + 9216
LDS_BYTES = 163840
assert L_XCH + 8192 <= L_CT and L_P2Q + P2SZ <= L_CT and L_P2Q + P2SZ <= L_MISC and L_P2KV >= L_WQ1 + 416 * 64

SX, SWQ, SKV, SG, SWS, SWO, SOUT, SWR, SWI, STB = (f"s[{a}:{a+3}]" for a in range(28, 68, 4))
sW, sP, sJ, sTAG, sSPIN = "s68", "s69", "s70", "s71", "s72"
STAMPS = [76, 77, 78, 79, 80, 81, 100, 101, 3, 10, 11, 24]
SPIN_MAX = 400000

f32bits = lambda v: int(np.float32(v).view(np.uint32))
QSCALE_BITS = f32bits(M.QSCALE)
LOG2E_BITS = f32bits(M.LOG2E)


def vr(a, n=1):
    return f"v{a}" if n == 1 else f"v[{a}:{a+n-1}]"


class Gen:
    AQ, AQX, AO, AK, AKX, AV, AS = 24, 28, 32, 88, 120, 128, 192
    vQ, vQX, vEX, vEX2, vK, vKX, vV, vCT = 78, 79, 80, 81, 82, 83, 4, 84
    vCT2 = vCT

    def __init__(self, stamps=0, cyc=False, opts=()):
        self.a = Asm()
        self.stamps = stamps
        self.clk = "s_memtime" if cyc else "s_memrealtime"
        self.opts = set(opts)
        self.busy = 3

    def opt(self, name, default):
        for o in self.opts:
            if o.startswith(name + "="):
                return int(o.split("=")[1])
        return default

    def _st(self, i):
        self.a(f"{self.clk} s[74:75]\ns_waitcnt lgkmcnt(0)\ns_mov_b32 s{STAMPS[i]}, s74")

    def stamp(self, i, level=1):
        if self.stamps == level:
            self._st(i)
        if self.opt("pid", -1) == i and self.opt("plev", 1) == level:
            l = self.a.label("PB")
            self.a(f"s_cmp_lg_u32 {sW}, {self.opt('pw', 0)}\ns_cbranch_scc1 {l}\ns_memrealtime s[78:79]\ns_waitcnt lgkmcnt(0)\n"
                   f"s_sub_u32 s80, s78, s76\ns_add_u32 s80, s80, {self.opt('padto', 0)}\n{l}:")

    def srd(self, srd, lo, size):
        b = int(srd[2:].split(":")[0])
        self.a(f"s_mov_b32 s{b}, s{lo}\ns_mov_b32 s{b+1}, s{lo+1}\ns_mov_b32 s{b+2}, {size}\ns_mov_b32 s{b+3}, 0x20000")

    def add1(self, off, base="v2"):
        self.a(f"s_mov_b64 exec, 1\nds_add_u32 {base}, v3 offset:{off}\ns_mov_b64 exec, -1")

    def wait(self, off, target, sleep=1, base="v2", idle=False):
        a = self.a
        l = a.label("LW"); d = a.label("LWD")
        if idle and "noidle" not in self.opts:
            a("s_setprio 0")
        a(f"{l}:\nds_read_b32 v1, {base} offset:{off}\ns_waitcnt lgkmcnt(0)\nv_readfirstlane_b32 s73, v1")
        a(f"s_cmp_ge_u32 s73, {target}\ns_cbranch_scc1 {d}")
        if sleep:
            a(f"s_sleep {sleep}")
        a(f"s_sub_u32 {sSPIN}, {sSPIN}, 1\ns_cbranch_scc0 {l}\ns_branch L_bail\n{d}:")
        if idle and "noidle" not in self.opts:
            a(f"s_setprio {self.busy}")

    def cmp_regs(self, regs, val, op="ne"):
        a = self.a
        a(f"v_cmp_{op}_u32 vcc, {val}, v{regs[0]}")
        for r in regs[1:]:
            a(f"v_cmp_{op}_u32 s[74:75], {val}, v{r}\ns_or_b64 vcc, vcc, s[74:75]")
        a("s_cmp_eq_u64 vcc, 0")

    def poll(self, loads, regs, sleep=2):
        a = self.a
        l = a.label("PL"); d = a.label("PD")
        a(f"{l}:")
        a(loads)
        a("s_waitcnt vmcnt(0)")
        self.cmp_regs(regs, sTAG)
        a(f"s_cbranch_scc1 {d}\ns_sleep {sleep}\ns_sub_u32 {sSPIN}, {sSPIN}, 1\ns_cbranch_scc0 {l}\ns_branch L_bail\n{d}:")

    def set_flag(self, soff):
        self.a(f"v_mov_b32 v1, {sTAG}\ns_mov_b64 exec, 1\nbuffer_store_dword v1, off, {SWS}, {soff} sc1\ns_mov_b64 exec, -1")

    def flag4(self, dst, idx, base):
        self.a(f"s_lshr_b32 {dst}, {idx}, 2\ns_lshl_b32 {dst}, {dst}, 7\ns_and_b32 s73, {idx}, 3\ns_lshl_b32 s73, s73, 2\n"
               f"s_add_u32 {dst}, {dst}, s73\ns_add_u32 {dst}, {dst}, {base}")

    def go_wait(self, base, vt, sleep):
        self.a(f"s_and_b32 s92, s2, 7\ns_lshl_b32 s92, s92, 7\ns_add_u32 s92, s92, {base}")
        self.poll(f"s_mov_b64 exec, 1\nbuffer_load_dword v{vt}, off, {SWS}, s92 sc1\ns_waitcnt vmcnt(0)\nv_readfirstlane_b32 s73, v{vt}\ns_mov_b64 exec, -1\nv_mov_b32 v{vt}, s73", [vt], sleep=sleep)

    def tag(self):
        self.a(f"s_mul_i32 {sTAG}, {sTAG}, 0x9E3779B1\ns_add_u32 {sTAG}, {sTAG}, 0x7F4A7C15")

    def prologue(self):
        a = self.a
        a(f"""
s_cmp_ge_u32 s2, 256
s_cbranch_scc1 L_end
s_load_dwordx16 s[4:19], s[0:1], 0
s_load_dwordx8 s[20:27], s[0:1], 64
v_lshrrev_b32 v1, 6, v0
v_and_b32 v0, 63, v0
v_readfirstlane_b32 {sW}, v1
s_and_b32 {sP}, s2, 31
s_lshr_b32 {sJ}, s2, 5
""")
        if self.stamps:
            a(f"{self.clk} s[74:75]")
        if self.opt("padto", 0):
            a(f"s_memrealtime s[76:77]\ns_mov_b32 s80, {self.opt('padto', 0)}")
        a(f"""
v_lshl_add_u32 v4, v1, 6, v0
v_mov_b32 v2, {L_CT}
v_mov_b32 v3, 1
v_lshlrev_b32 v7, 4, v0
s_mul_i32 s94, {sP}, 2304
s_mul_i32 s95, {sJ}, 144
s_lshl_b32 s91, {sJ}, 2
s_add_u32 s91, s91, {sW}
s_mov_b32 s30, 2359296
s_mov_b32 s31, 0x20000
s_mov_b32 {sSPIN}, {SPIN_MAX}
s_cmp_ge_u32 {sW}, 4
s_waitcnt lgkmcnt(0)
""")
        if self.opt("wsoff", 0):
            a(f"s_cselect_b32 s73, 1, 0\ns_add_u32 s26, s26, {self.opt('wsoff', 0) << 20}\ns_addc_u32 s27, s27, 0\ns_cmp_eq_u32 s73, 1")
        if self.stamps:
            a(f"s_mov_b32 s{STAMPS[0]}, s74")
            for r in STAMPS[1:]:
                a(f"s_mov_b32 s{r}, 0")
        a("s_cbranch_scc1 L_lwave")

    def kv_addr(self):
        a = self.a
        a(f"""
v_and_b32 v84, 31, v0
v_lshrrev_b32 v85, 5, v0
v_lshlrev_b32 v{self.vK}, 5, v84
v_lshl_add_u32 v{self.vK}, v85, 4, v{self.vK}
v_mov_b32 v86, {OOB}
v_lshlrev_b32 v{self.vKX}, 2, v0
v_subrev_u32 v87, 64, v{self.vK}
v_cmp_eq_u32 vcc, 20, v84
s_and_b32 s73, {sW}, 3
v_cndmask_b32 v87, v86, v87, vcc
v_cmp_gt_u32 vcc, 18, v84
s_lshl_b32 s96, s73, 14
v_cndmask_b32 v{self.vV}, v87, v{self.vK}, vcc
s_add_u32 s96, s96, {WS_K16}
s_lshl_b32 s97, s73, 11
s_add_u32 s97, s97, {WS_KX}
s_mul_i32 s98, s73, {32*VPITCH}
s_add_u32 s98, s98, {WS_VF}
""")

    def ld_k(self, t, slot):
        adv = "\ns_add_u32 s96, s96, 4096" if t % 4 == 3 else ""
        return (f"buffer_load_dwordx4 {vr(self.AK+4*slot,4)}, v{self.vK}, {SWS}, s96 offen offset:{1024*(t%4)} sc1" + adv,)

    def ld_x(self, t):
        return f"buffer_load_dword v{self.AKX+(t%8)//2}, v{self.vKX}, {SWS}, s97 offen offset:{128*t} sc1"

    def ld_v(self, t, slot):
        adv = f"\ns_add_u32 s98, s98, {4*VPITCH}" if t % 2 == 1 else ""
        o = 2 * VPITCH * (t % 2)
        return (f"buffer_load_dwordx4 {vr(self.AV+8*slot,4)}, v{self.vV}, {SWS}, s98 offen offset:{o} sc1",
                f"buffer_load_dwordx4 {vr(self.AV+8*slot+4,4)}, v{self.vV}, {SWS}, s98 offen offset:{o+VPITCH} sc1" + adv)

    NFIRST = 4
    NLD1 = 16

    def kv_loads(self, t0=0, t1=None):
        if t0 == 0:
            for t in range(0, 8, 2):
                self.a(self.ld_x(t))
        for t in range(t0, self.NFIRST if t1 is None else t1):
            for x in self.ld_k(t, t) + self.ld_v(t, t):
                self.a(x)

    def e_front(self):
        a = self.a
        a("s_setprio 3\ns_mov_b32 s28, s4\ns_mov_b32 s29, s5")
        for k in range(8):
            a(f"""
s_and_b32 s91, s91, 31
s_mul_i32 s90, s91, 73728
s_mul_i32 m0, s91, {XP}
s_add_u32 s90, s90, s94
s_add_u32 s91, s91, 4
buffer_load_dwordx4 v7, {SX}, s90 offen lds
s_add_u32 m0, m0, {32*XP - 1152}
s_nop 0
buffer_load_dwordx4 v7, {SX}, s90 offen offset:1152 lds
""")
        a("s_barrier")
        a(f"""
s_load_dword {sTAG}, s[26:27], {WS_EPOCH}
v_lshrrev_b32 v20, 3, v0
s_mov_b32 s73, 73728
v_mul_lo_u32 v21, v20, s73
v_lshrrev_b32 v22, 4, v0
v_xor_b32 v22, v22, v0
v_and_b32 v22, 7, v22
v_lshl_add_u32 v21, v22, 4, v21
s_and_b32 s90, {sW}, 1
s_mul_i32 s90, s90, {16*73728}
s_lshr_b32 s73, {sW}, 1
s_mul_i32 s73, s73, 1152
s_add_u32 s90, s90, s73
s_add_u32 s90, s90, s94
s_add_u32 s90, s90, 1024
s_lshl_b32 s91, {sW}, 11
s_add_u32 m0, s91, {L_X2}
v_xor_b32 v22, 64, v21
buffer_load_dwordx4 v21, {SX}, s90 offen lds
s_add_u32 m0, s91, {L_X2 + 1024}
s_add_u32 s90, s90, {8*73728}
buffer_load_dwordx4 v22, {SX}, s90 offen lds
s_cmp_lt_u32 {sJ}, 4
s_cselect_b32 s36, s14, s16
s_cselect_b32 s37, s15, s17
s_mov_b32 s38, 20736
s_mov_b32 s39, 0x20000
v_mul_u32_u24 v5, 36, v4
v_lshlrev_b32 v6, 1, v4
s_and_b32 s73, {sJ}, 3
s_lshl_b32 s92, s73, 3
""")
        self.srd(SG, 20, 1152)
        s = a.label("KV3")
        a(f"""
buffer_load_dwordx3 v[24:26], v5, {SKV}, s92 offen
buffer_load_ushort v27, v6, {SG}, 0 offen
v_add_u32 v5, {256*36}, v5
buffer_load_dwordx3 v[28:30], v5, {SKV}, s92 offen
buffer_load_ushort v31, v6, {SG}, 0 offen offset:512
s_cmp_gt_u32 {sW}, 0
s_cbranch_scc1 {s}
v_add_u32 v5, {256*36}, v5
buffer_load_dwordx3 v[40:42], v5, {SKV}, s92 offen
buffer_load_ushort v43, v6, {SG}, 0 offen offset:1024
{s}:
""")
        self.add1(CI)
        self.stamp(6, 3)
        self.srd(SWS, 26, WS_SIZE)
        a(f"""
v_lshrrev_b32 v7, 7, v4
v_lshlrev_b32 v7, 7, v7
v_lshl_add_u32 v7, v4, 4, v7
v_add_u32 v7, {L_P2KV}, v7
v_and_b32 v14, 15, v0
v_lshrrev_b32 v15, 4, v0
v_and_b32 v17, 31, v0
v_lshrrev_b32 v18, 5, v0
v_bfe_u32 v22, v0, 2, 2
v_lshlrev_b32 v22, 4, v22
v_and_b32 v23, 1, v0
v_lshl_add_u32 v22, v23, 3, v22
v_mul_u32_u24 v16, 2176, v15
v_add_u32 v16, v16, v22
v_lshl_add_u32 v12, v15, 7, v22
v_add_u32 v12, {512*16 + 512}, v12
v_add_u32 v19, {L_P2KV}, v16
v_add_u32 v10, {L_P2KV}, v12
v_add_u32 v16, {L_P2Q}, v16
v_add_u32 v12, {L_P2Q}, v12
s_lshl_b32 s73, {sW}, 4
v_add_u32 v21, s73, v14
v_mul_u32_u24 v20, {XP}, v21
v_lshl_add_u32 v20, v15, 8, v20
v_lshrrev_b32 v22, 1, v21
v_xor_b32 v22, v22, v15
v_and_b32 v22, 7, v22
v_lshlrev_b32 v22, 4, v22
v_lshl_add_u32 v11, v21, 7, v22
v_add_u32 v11, {L_X2}, v11
v_xor_b32 v9, 64, v11
s_lshl_b32 s90, {sP}, 1
s_lshr_b32 s73, {sW}, 1
s_add_u32 s90, s90, s73
s_and_b32 s91, {sW}, 1
s_mov_b32 s92, {(LOG2E_BITS | 0x80000000):#x}
s_lshl_b32 s99, {sW}, 6
s_add_u32 s99, s99, {L_G}
""")
        RG, XF, AK_ = 32, 160, 252
        def wrd(b1, b2, T, dst):
            base, off = (b1, T * 128) if T < 16 else (b2, (T - 16) * 512)
            a(f"ds_read_b64_tr_b16 {vr(dst,2)}, {base} offset:{off}\nds_read_b64_tr_b16 {vr(dst+2,2)}, {base} offset:{off+64}")
        def land():
            s = a.label("KW")
            a(f"s_waitcnt vmcnt(0)\nds_write_b128 v7, v[24:27]\nds_write_b128 v7, v[28:31] offset:{4096+256}")
            a(f"s_cmp_gt_u32 {sW}, 0\ns_cbranch_scc1 {s}\nds_write_b128 v7, v[40:43] offset:{8192+512}\n{s}:")
            self.stamp(1, 3)
            self.add1(CX)
            self.wait(CX, 4, sleep=0)
            self.tag()
            self.stamp(2, 3)
        def kv_gemm(swap):
            acc = vr(AK_, 4)
            def rd(T):
                wrd("v19", "v10", T, 44 + 4 * (T % 5))
                if T < 16:
                    a(f"ds_read_b128 {vr(XF+4*T,4)}, v20 offset:{T*16}")
                else:
                    a(f"ds_read_b128 {vr(XF+4*T,4)}, {'v11' if T == 16 else 'v9'}")
            for T in range(4):
                rd(T)
            for T in range(18):
                if T + 4 < 18:
                    rd(T + 4)
                a(f"s_waitcnt lgkmcnt({3 * (min(T + 5, 18) - T - 1)})")
                W, X = vr(44 + 4 * (T % 5), 4), vr(XF + 4 * T, 4)
                A, B = (X, W) if swap else (W, X)
                a(f"v_mfma_f32_16x16x32_bf16 {acc}, {A}, {B}, {'0' if T == 0 else acc}")
            self.add1(CK)
        kpath = a.label("EK"); done = a.label("EKD")
        a(f"s_cmp_lt_u32 {sJ}, 4\ns_cbranch_scc1 {kpath}")
        a(f"""
s_lshl_b32 s90, s90, 1
s_add_u32 s90, s90, s91
s_mul_i32 s90, s90, {VPITCH}
s_add_u32 s90, s90, {WS_VF}
s_sub_u32 s73, {sJ}, 4
s_lshl_b32 s73, s73, 2
v_add_u32 v36, s73, v14
v_cmp_eq_u32 vcc, 7, v14
v_lshrrev_b32 v37, 1, v15
v_cndmask_b32 v36, v36, 18, vcc
v_lshlrev_b32 v36, 5, v36
v_lshl_add_u32 v36, v37, 3, v36
v_and_b32 v37, 1, v15
v_lshl_add_u32 v36, v37, 4, v36
v_mov_b32 v37, 0x3f803f80
v_lshl_add_u32 v38, v15, 4, s99
s_mov_b32 s88, 0x000f000f
s_cmp_eq_u32 {sJ}, 7
s_cmov_b32 s88, 0x00bf00bf
""")
        land()
        kv_gemm(True)
        a(f"""
v_cvt_pk_bf16_f32 v22, v{AK_}, v{AK_+1}
v_cvt_pk_bf16_f32 v23, v{AK_+2}, v{AK_+3}
v_cndmask_b32 v22, v22, v37, vcc
v_cndmask_b32 v23, v23, v37, vcc
s_mov_b32 exec_lo, s88
s_mov_b32 exec_hi, s88
buffer_store_dwordx2 v[22:23], v36, {SWS}, s90 offen sc1
s_mov_b64 exec, -1
""")
        for r in range(4):
            a(f"v_mul_f32 v{AK_+r}, s92, v{AK_+r}\nv_exp_f32 v{AK_+r}, v{AK_+r}")
        for r in range(4):
            a(f"v_add_f32 v{AK_+r}, 1.0, v{AK_+r}\nv_rcp_f32 v{AK_+r}, v{AK_+r}")
        a(f"""
s_mov_b32 exec_lo, 0x00400040
s_mov_b32 exec_hi, 0x00400040
ds_write_b128 v38, {vr(AK_,4)}
s_branch {done}
{kpath}:
s_lshl_b32 s91, s91, 4
v_add_u32 v37, s91, v14
v_lshlrev_b32 v36, 5, v37
v_lshlrev_b32 v37, 2, v37
v_lshl_add_u32 v38, v14, 2, s99
s_lshl_b32 s88, s90, 10
s_lshl_b32 s73, {sJ}, 3
s_add_u32 s88, s88, s73
s_add_u32 s88, s88, {WS_K16}
s_lshl_b32 s90, s90, 7
s_add_u32 s90, s90, {WS_KX}
s_cmp_lg_u32 {sJ}, 3
s_cmov_b32 s90, {OOB}
s_mov_b32 s91, {QSCALE_BITS:#x}
""")
        land()
        kv_gemm(False)
        a(f"""
v_mul_f32 v39, s92, v{AK_+2}
v_mul_f32 v{AK_}, s91, v{AK_}
v_mul_f32 v{AK_+1}, s91, v{AK_+1}
v_mul_f32 v{AK_+2}, s91, v{AK_+2}
v_mul_f32 v{AK_+3}, s91, v{AK_+3}
v_cvt_pk_bf16_f32 v22, v{AK_}, v{AK_+1}
v_cvt_pk_bf16_f32 v23, v{AK_+2}, v{AK_+3}
s_mov_b64 exec, 0xffff
buffer_store_dwordx2 v[22:23], v36, {SWS}, s88 offen sc1
s_mov_b32 exec_lo, 0xffff0000
buffer_store_dword v22, v37, {SWS}, s90 offen sc1
v_exp_f32 v39, v39
s_nop 0
v_add_f32 v39, 1.0, v39
v_rcp_f32 v39, v39
s_nop 0
ds_write_b32 v38, v39
{done}:
s_mov_b64 exec, -1
""")
        self.stamp(7, 3)
        a(f"""
s_lshl_b32 s73, {sP}, 3
s_add_u32 s73, s73, {sJ}
s_lshl_b32 s73, s73, 4
s_add_u32 s91, s73, {WS_FKV}
v_bfe_u32 v22, v0, 2, 2
v_lshl_add_u32 v19, v18, 3, v22
v_lshlrev_b32 v19, 6, v19
v_bfe_u32 v22, v0, 4, 1
v_lshl_add_u32 v19, v22, 5, v19
v_and_b32 v22, 3, v0
v_lshl_add_u32 v19, v22, 3, v19
s_and_b32 s73, {sW}, 1
s_mul_i32 s73, s73, {L_WQ1 - L_WQ0}
s_add_u32 s73, s73, {L_WQ0}
v_add_u32 v19, s73, v19
s_lshr_b32 s73, {sW}, 1
s_lshl_b32 s73, s73, 5
v_add_u32 v21, s73, v17
v_mul_u32_u24 v13, {XP}, v21
v_lshl_add_u32 v13, v18, 4, v13
v_mul_u32_u24 v26, 48, v4
v_add_u32 v26, {L_QS + 36}, v26
v_lshrrev_b32 v22, 1, v21
v_xor_b32 v22, v22, v18
v_and_b32 v22, 7, v22
v_lshlrev_b32 v22, 4, v22
v_lshl_add_u32 v6, v21, 7, v22
v_add_u32 v6, {L_X2}, v6
v_xor_b32 v7, 32, v6
v_xor_b32 v8, 64, v6
v_xor_b32 v9, 0x60, v6
v_mul_u32_u24 v22, 48, v21
v_add_u32 v22, {L_QS}, v22
v_lshl_add_u32 v23, v18, 3, v22
v_mul_u32_u24 v24, 3044, v18
v_add_u32 v24, v24, v22
s_lshl_b32 s73, {sW}, 4
v_add_u32 v25, s73, v14
v_mul_u32_u24 v25, 48, v25
v_lshl_add_u32 v25, v15, 3, v25
v_add_u32 v25, {L_QS + 3*3072 + 20}, v25
v_mov_b32 v27, 0
v_lshlrev_b32 v28, 4, v0
s_lshl_b32 s93, {sW}, 10
s_add_u32 s93, s93, {WS_FKV}
""")
        self.kv_addr()
        RX, AM, AXQ = 64, 232, 248
        def rdm(t):
            b = RG + 8 * (t % 4)
            a(f"ds_read_b64_tr_b16 {vr(b,2)}, v19 offset:{t*1024}\nds_read_b64_tr_b16 {vr(b+2,2)}, v19 offset:{t*1024+256}")
            a(f"ds_read_b128 {vr(b+4,4)}, v13 offset:{t*32}" if t < 32 else f"ds_read_b128 {vr(b+4,4)}, v{6+t-32}")
        def mm(t):
            b = RG + 8 * (t % 4)
            a(f"v_mfma_f32_32x32x16_bf16 {vr(AM,16)}, {vr(b,4)}, {vr(b+4,4)}, {'0' if t == 0 else vr(AM,16)}")
        def stage(t0, t1):
            for t in range(t0, min(t0 + 3, t1)):
                rdm(t)
            for t in range(t0, t1):
                if t + 3 < t1:
                    rdm(t + 3)
                a(f"s_waitcnt lgkmcnt({3 * (min(t + 4, t1) - t - 1)})")
                mm(t)
        def kv_flag():
            nf = a.label("NF")
            a(f"s_waitcnt vmcnt(0)\ns_mov_b64 exec, 1\nds_add_rtn_u32 v1, v2, v3 offset:{CF}\ns_mov_b64 exec, -1\ns_waitcnt lgkmcnt(0)")
            a(f"v_readfirstlane_b32 s73, v1\ns_cmp_lg_u32 s73, 3\ns_cbranch_scc1 {nf}")
            self.set_flag("s91")
            a(f"{nf}:")
            self.stamp(3, 3)
        FA = self.opt("fa", 12)
        if FA == 0:
            kv_flag()
        self.wait(C0A, 2, sleep=0)
        self.stamp(4, 3)
        stage(0, 12)
        if FA == 12:
            kv_flag()
        self.add1(CE)
        self.wait(C0B, 2, sleep=0)
        flags = f"buffer_load_dword v84, v28, {SWS}, s93 offen sc1"
        stage(12, 20)
        self.wait(C0D, 2, sleep=0)
        stage(20, 28)
        self.wait(C0C, 2, sleep=0)
        self.stamp(9, 3)
        seq = []
        xs = list(range(18))
        for t in range(28, 36):
            seq.append(("m", t))
            for _ in range(3 if t < 30 else 2):
                seq.append(("x", xs.pop(0)))
        assert not xs
        cost = lambda it: 3 if it[0] == "m" else 2
        def issue(it):
            if it[0] == "m": rdm(it[1])
            else: wrd("v16", "v12", it[1], RX + 4 * (it[1] % 3))
        AH = 3
        for it in seq[:AH]:
            issue(it)
        a(f"ds_read_b32 v31, v2 offset:{CE}")
        for i, it in enumerate(seq):
            ahead = sum(cost(x) for x in seq[i + 1:i + AH]) + (1 if i < AH else 0)
            a(f"s_waitcnt lgkmcnt({ahead})")
            if it[0] == "m":
                mm(it[1])
            else:
                T = it[1]
                a(f"v_mfma_f32_16x16x32_bf16 {vr(AXQ,4)}, {vr(RX+4*(T%3),4)}, {vr(XF+4*T,4)}, {'0' if T == 0 else vr(AXQ,4)}")
            if i == self.opt("fp", 14):
                a(flags)
            if i + AH < len(seq):
                issue(seq[i + AH])
        self.stamp(8, 3)
        miss = a.label("KM")
        a("s_waitcnt vmcnt(0)")
        self.cmp_regs([84], sTAG)
        a(f"s_cselect_b32 s89, 1, 0\ns_cbranch_scc0 {miss}")
        self.kv_loads(0, 2)
        a(f"{miss}:")
        self.stamp(11, 3)
        ok = a.label("CEOK")
        a(f"v_readfirstlane_b32 s73, v31\ns_cmp_ge_u32 s73, 4\ns_cbranch_scc1 {ok}")
        self.wait(CE, 4, sleep=0)
        a(f"{ok}:")
        a(f"ds_write_b32 v26, v27\nv_cvt_pk_bf16_f32 v{AXQ}, v{AXQ}, v{AXQ+1}\nv_cvt_pk_bf16_f32 v{AXQ+1}, v{AXQ+2}, v{AXQ+3}")
        a(f"s_mov_b32 exec_hi, 0\nds_write2_b32 v25, v{AXQ}, v{AXQ+1} offset0:0 offset1:1\ns_mov_b64 exec, -1")
        m1 = a.label("QM1"); md = a.label("QMD")
        a(f"s_bitcmp1_b32 {sW}, 0\ns_cbranch_scc1 {m1}")
        off = lambda c: (c // 18) * 3072 + (c % 18) * 2
        for m in range(2):
            if m == 1:
                a(f"s_branch {md}\n{m1}:")
            for k in range(8):
                c0 = 32 * m + 8 * (k // 2) + 2 * (k % 2)
                d = off(c0 + 4) - off(c0)
                assert d in (8, 3044)
                a(f"v_cvt_pk_bf16_f32 v{AM+k}, v{AM+2*k}, v{AM+2*k+1}")
                a(f"ds_write_b32 {'v23' if d == 8 else 'v24'}, v{AM+k} offset:{off(c0)}")
        a(f"{md}:")
        self.add1(C1)
        have = a.label("KH")
        a(f"s_cmp_eq_u32 s89, 1\ns_cbranch_scc1 {have}")
        self.poll(flags, [84], sleep=12)
        self.kv_loads(0, 2)
        a(f"{have}:")
        self.kv_loads(2)
        self.tail_addr()
        self.stamp(10, 3); self.stamp(10)
        a(f"s_setprio 2\ns_mov_b32 s99, {OOB}\nv_mov_b32 v7, v2")

    def tail_addr(self):
        self.a(f"""
s_lshr_b32 s88, {sW}, 1
s_and_b32 s89, {sW}, 1
v_lshrrev_b32 v32, 5, v0
v_and_b32 v33, 15, v0
v_lshrrev_b32 v34, 4, v0
v_bfe_u32 v35, v0, 2, 2
v_and_b32 v36, 3, v0
v_and_b32 v37, 1, v34
v_and_b32 v38, 1, v0
v_lshlrev_b32 v39, 2, v38
v_lshl_add_u32 v39, v37, 1, v39
v_lshrrev_b32 v40, 1, v36
v_add_u32 v39, v39, v40
s_mul_i32 s73, s88, {L_WO1 - L_WO0}
v_lshl_add_u32 v39, v39, 3, s73
v_lshl_add_u32 v6, v32, 2, v35
v_lshl_add_u32 v6, v6, 6, v39
v_lshrrev_b32 v40, 1, v35
v_mul_u32_u24 v40, 72, v40
v_and_b32 v41, 1, v35
v_add3_u32 v40, v40, v41, 16
v_lshl_add_u32 v9, v40, 6, v39
v_mul_u32_u24 v41, 18432, v32
v_add_u32 v9, v9, v41
s_mov_b32 s73, {L_WOX}
v_lshl_add_u32 v38, v38, 3, s73
v_mul_u32_u24 v11, 288, v37
v_add_u32 v11, v11, v40
v_lshl_add_u32 v11, v11, 4, v38
v_mul_u32_u24 v10, 72, v32
v_lshl_add_u32 v10, v37, 2, v10
v_add_u32 v10, v10, v35
v_lshl_add_u32 v10, v10, 4, v38
v_lshlrev_b32 v12, 4, v33
v_lshl_add_u32 v12, v37, 9, v12
v_lshl_add_u32 v14, v32, 10, v12
v_cmp_gt_u32 vcc, 32, v0
v_mov_b32 v40, {OOB}
s_lshl_b32 s73, s88, 8
v_add_u32 v12, s73, v14
v_cndmask_b32 v13, v40, v12, vcc
v_cmp_gt_u32 vcc, 8, v33
v_lshrrev_b32 v15, 3, v0
v_mul_u32_u24 v15, {TP}, v15
v_cndmask_b32 v14, v40, v14, vcc
v_lshlrev_b32 v40, 2, v37
v_xor_b32 v40, v40, v0
v_and_b32 v40, 7, v40
v_lshl_add_u32 v15, v40, 4, v15
v_bfe_u32 v40, v0, 3, 1
v_xor_b32 v40, s89, v40
v_lshlrev_b32 v40, 6, v40
v_lshl_add_u32 v40, v36, 3, v40
v_lshl_add_u32 v40, v35, 7, v40
v_lshl_add_u32 v16, v32, 10, v40
v_lshl_add_u32 v16, v37, 5, v16
v_lshl_add_u32 v17, v34, 10, v40
s_lshl_b32 s73, s88, 5
v_add_u32 v17, s73, v17
s_mov_b32 s73, 73728
v_and_b32 v40, 31, v0
v_mul_lo_u32 v18, v40, s73
v_lshl_add_u32 v18, v32, 5, v18
v_mul_lo_u32 v19, v33, s73
v_lshl_add_u32 v19, v34, 3, v19
""")

    def panel_setup(self, nw, va=14):
        self.a(f"""
v_lshrrev_b32 v{va}, 2, v0
v_mul_u32_u24 v{va}, 1152, v{va}
v_and_b32 v{va+1}, 3, v0
v_lshl_add_u32 v{va}, v{va+1}, 4, v{va}
v_mul_u32_u24 v{va+1}, 1152, v0
s_and_b32 s73, {sW}, {nw-1}
s_mul_i32 s84, s73, {16*1152}
s_add_u32 s84, s84, s95
s_lshl_b32 s85, s73, 10
""")

    def panel_loads(self, srd, l0, l1, lx, padded, end, nw, va=14, rotate=False):
        a = self.a
        lp = a.label("PNL")
        if rotate:
            a(f"s_lshr_b32 s73, {sP}, 3\ns_mul_i32 s82, s73, {8*1024}\ns_add_u32 s85, s85, s82\ns_mul_i32 s82, s73, {8*16*1152}\ns_add_u32 s84, s84, s82\ns_mov_b32 s88, {end//nw - 1}")
        a(f"""
{lp}:
s_add_u32 m0, s85, {l0}
s_add_u32 s83, s84, 128
buffer_load_dwordx4 v{va}, {srd}, s84 offen lds
s_add_u32 m0, s85, {l1 - 64}
s_lshr_b32 s82, s85, 2
buffer_load_dwordx4 v{va}, {srd}, s84 offen offset:64 lds
""")
        if padded:
            a("s_lshr_b32 s73, s85, 13\ns_lshl_b32 s73, s73, 7\ns_add_u32 s82, s82, s73")
        a(f"""
s_add_u32 m0, s82, {lx}
s_mov_b64 exec, 0xffff
buffer_load_dwordx4 v{va+1}, {srd}, s83 offen lds
s_mov_b64 exec, -1
s_add_u32 s85, s85, {1024*nw}
s_add_u32 s84, s84, {16*nw*1152}
s_cmp_lt_u32 s85, {1024*end}
""")
        if rotate:
            a(f"s_cselect_b32 s82, 0, {1024*end}\ns_cselect_b32 s83, 0, {16*1152*end}\ns_sub_u32 s85, s85, s82\ns_sub_u32 s84, s84, s83\ns_sub_u32 s88, s88, 1\ns_cbranch_scc0 {lp}")
        else:
            a(f"s_cbranch_scc1 {lp}")

    def l_front(self):
        a = self.a
        a(f"""
s_load_dword {sTAG}, s[26:27], {WS_EPOCH}
v_lshl_add_u32 v5, v0, 2, v2
v_mov_b32 v6, 0
ds_write_b32 v5, v6 offset:2048
v_lshlrev_b32 v5, 3, v4
v_add_u32 v5, {L_CT - 2048}, v5
v_mov_b32 v7, 0
ds_write_b64 v5, v[6:7]
v_mov_b32 v12, 0
v_mov_b32 v13, 0
v_mov_b32 v14, 0
v_mov_b32 v15, 0
s_sub_u32 s99, {sW}, 4
v_and_b32 v18, 31, v0
v_lshrrev_b32 v19, 5, v0
s_lshl_b32 s89, s99, 3
s_add_u32 s89, s89, {sJ}
s_cmp_ge_u32 s89, 18
s_cselect_b32 s89, 99, s89
v_bfe_u32 v20, v0, 2, 1
v_lshlrev_b32 v20, 4, v20
v_bfe_u32 v21, v0, 3, 2
v_lshl_add_u32 v20, v21, 2, v20
v_and_b32 v21, 3, v0
v_add_u32 v20, v20, v21
""")
        if "noipf" not in self.opts:
            n4 = a.label("NPF")
            a(f"""
s_cmp_lg_u32 {sW}, 6
s_cbranch_scc1 {n4}
s_getpc_b64 s[64:65]
L_pc0:
s_sub_u32 s64, s64, L_pc0-{NAME}_kernel
s_subb_u32 s65, s65, 0
s_mov_b32 s66, L_end-{NAME}_kernel
s_mov_b32 s67, 0x20000
s_lshr_b32 s73, s2, 3
v_lshlrev_b32 v8, 12, v0
s_lshl_b32 s73, s73, 7
buffer_load_dword v9, v8, {STB}, s73 offen
s_getpc_b64 s[64:65]
s_add_u32 s64, s64, spectral_tables@rel32@lo+4
s_addc_u32 s65, s65, spectral_tables@rel32@hi+12
s_mov_b32 s66, {2*self.NTAB*1024}
s_nop 1
buffer_load_dword v10, v8, {STB}, s73 offen
{n4}:
""")
        self.srd(SWS, 26, WS_SIZE)
        self.srd(SWQ, 12, 663552)
        FPRE = self.opt("fpre", 8)
        def fsetup():
            a(f"""
s_lshl_b32 s73, s89, 5
v_add_u32 v44, s73, v18
v_lshrrev_b32 v45, 1, v44
v_and_b32 v46, 1, v44
v_cmp_eq_u32 vcc, 1, v44
v_mov_b32 v47, 288
v_cndmask_b32 v45, v45, v47, vcc
v_cndmask_b32 v46, v46, 0, vcc
v_and_b32 v47, 1, v45
v_lshlrev_b32 v47, 31, v47
v_or_b32 v17, 1.0, v47
v_cvt_f32_u32 v45, v45
v_cvt_f32_u32 v46, v46
v_mul_f32 v45, {f32bits(1/576):#x}, v45
v_mul_f32 v46, 0x3e800000, v46
v_lshlrev_b32 v47, 3, v19
v_cvt_f32_u32 v47, v47
v_fma_f32 v46, v47, v45, v46
v_mul_f32 v55, 0x41800000, v45
""")
            for jj in range(8):
                a(f"s_mov_b32 s73, {f32bits(jj):#x}\nv_fma_f32 v{56+jj}, s73, v45, v46")
        def fgen(t):
            if t:
                a(f"s_mov_b32 s73, {f32bits(t):#x}")
            for jj in range(8):
                if t:
                    a(f"v_fma_f32 v{64+jj}, s73, v55, v{56+jj}\nv_cos_f32 v{64+jj}, v{64+jj}")
                else:
                    a(f"v_cos_f32 v{64+jj}, v{56+jj}")
            for k in range(4):
                a(f"v_cvt_pk_bf16_f32 v{104+4*t+k}, v{64+2*k}, v{65+2*k}")
        a("s_waitcnt lgkmcnt(0)\ns_barrier")
        self.tag()
        npre = a.label("NPRE"); n7 = a.label("NW7")
        a(f"v_mov_b32 v23, 0\ns_mov_b32 s98, {OOB}")
        if "wearly" in self.opts:
            a(f"s_cmp_lg_u32 {sW}, 7\ns_cbranch_scc1 {n7}")
            self.wt_loads()
        a(f"{n7}:\ns_cmp_eq_u32 s89, 99\ns_cbranch_scc1 {npre}")
        fsetup()
        for t in range(FPRE):
            fgen(t)
        a(f"{npre}:")
        wqd = a.label("WQD")
        a(f"s_cmp_lt_u32 {sW}, 6\ns_cbranch_scc1 {wqd}")
        self.panel_setup(2)
        self.wait(CI, 4, sleep=0)
        self.panel_loads(SWQ, L_WQ0, L_WQ1, L_P2Q, True, 20, 2)
        a("s_waitcnt vmcnt(12)")
        self.add1(C0A)
        self.panel_loads(SWQ, L_WQ0, L_WQ1, L_P2Q, True, 26, 2)
        self.wait(CK, 4, sleep=0)
        self.panel_loads(SWQ, L_WQ0, L_WQ1, L_P2Q, True, 36, 2)
        self.stamp(6, 3)
        a("s_waitcnt vmcnt(24)")
        self.add1(C0B)
        a("s_waitcnt vmcnt(12)")
        self.add1(C0D)
        if "wmid" in self.opts:
            n7 = a.label("NM7"); d7 = a.label("DM7")
            a(f"s_cmp_lg_u32 {sW}, 7\ns_cbranch_scc1 {n7}")
            self.wt_loads()
            a(f"s_waitcnt vmcnt(16)\ns_branch {d7}\n{n7}:\ns_waitcnt vmcnt(0)\n{d7}:")
        else:
            a("s_waitcnt vmcnt(0)")
        self.add1(C0C)
        self.stamp(1, 3)
        a(f"{wqd}:")
        nod = a.label("NOD")
        a(f"s_cmp_eq_u32 s89, 99\ns_cbranch_scc1 {nod}")
        for t in range(FPRE, 18):
            fgen(t)
        self.stamp(9, 3)
        a(f"""
v_mul_u32_u24 v25, {XP}, v20
v_lshl_add_u32 v25, v19, 4, v25
v_lshrrev_b32 v22, 1, v20
v_xor_b32 v22, v22, v19
v_and_b32 v22, 7, v22
v_lshlrev_b32 v22, 4, v22
v_lshl_add_u32 v6, v20, 7, v22
v_add_u32 v6, {L_X2}, v6
v_xor_b32 v7, 32, v6
v_xor_b32 v8, 64, v6
v_xor_b32 v9, 0x60, v6
v_mul_u32_u24 v22, {TP}, v18
v_lshl_add_u32 v22, v19, 5, v22
s_mul_i32 s90, s89, {32*TP}
s_lshl_b32 s73, {sP}, 7
s_add_u32 s90, s90, s73
s_add_u32 s90, s90, {WS_T}
""")
        RG = 44
        def frag(t, n, q):
            return vr(RG + 16 * (t % 3) + 8 * n + 4 * q, 4)
        def rd(t):
            for n in range(2):
                for q in range(2):
                    ks = t + 18 * q
                    if ks < 32:
                        a(f"ds_read_b128 {frag(t,n,q)}, v25 offset:{n*32*XP + ks*32}")
                    else:
                        a(f"ds_read_b128 {frag(t,n,q)}, v{6+ks-32} offset:{n*4096}")
        def dft(t0, t1):
            for t in range(t0, min(t0 + 2, t1)):
                rd(t)
            for t in range(t0, t1):
                if t + 2 < t1:
                    rd(t + 2)
                a(f"s_waitcnt lgkmcnt({4 * (min(t+3, t1) - t - 1)})")
                for n in range(2):
                    for q in range(2):
                        acc = vr(176 + 32 * n + 16 * q, 16)
                        a(f"v_mfma_f32_32x32x16_bf16 {acc}, {frag(t,n,q)}, {vr(104+4*t,4)}, {'0' if t == 0 else acc}")
        DPRE = self.opt("dpre", 14)
        if DPRE:
            self.wait(CK, 4)
            dft(0, DPRE)
        go6 = a.label("GO6")
        if "six" in self.opts:
            a(f"s_cmp_eq_u32 {sW}, 6\ns_cbranch_scc1 {go6}")
        a("s_setprio 3")
        self.wait(C1, 4)
        a(f"{go6}:")
        self.stamp(3, 3)
        dft(DPRE, 18)
        a("s_setprio 3")
        self.stamp(8, 3)
        self.wait(*((CL, 1) if "word" in self.opts else (CV, 4)), sleep=2)
        for n in range(2):
            b = 176 + 32 * n
            for r in range(16):
                a(f"v_fma_f32 v{b+r}, v17, v{b+16+r}, v{b+r}")
            for k in range(8):
                a(f"v_cvt_pk_bf16_f32 v{b+k}, v{b+2*k}, v{b+2*k+1}")
            a(f"buffer_store_dwordx4 {vr(b,4)}, v22, {SWS}, s90 offen offset:{64*n} sc1")
            a(f"buffer_store_dwordx4 {vr(b+4,4)}, v22, {SWS}, s90 offen offset:{64*n+16} sc1")
        a(f"{nod}:")
        n6 = a.label("N6"); n7 = a.label("N7")
        a(f"s_cmp_eq_u32 {sW}, 7\ns_cbranch_scc1 {n7}\ns_cmp_lg_u32 {sW}, 6\ns_cbranch_scc1 {n6}\ns_setprio 3")
        self.wait(*((CL, 1) if "word" in self.opts else (CV, 4)), sleep=2)
        self.poison()
        a(f"{n6}:\ns_waitcnt vmcnt(0)")
        self.add1(CD)
        self.stamp(4, 3); self.stamp(4)
        a(f"{n7}:")

    def g_gen(self):
        a = self.a
        N = 1.0 / (M.S * M.D)
        skip = a.label("GS"); nx = a.label("GNX"); nk = a.label("GNK")
        assert all((f * 1821) >> 16 == f // 36 for f in range(864))
        assert all((f * 21846) >> 16 == f // 3 for f in range(24))
        a(f"""
s_mov_b32 s99, {OOB}
s_cmp_ge_u32 s2, 216
s_cbranch_scc1 {skip}
s_lshl_b32 s90, s2, 2
s_lshl_b32 s99, s2, 12
s_add_u32 s99, s99, {WS_G}
s_mul_i32 s91, s90, 1821
s_lshr_b32 s91, s91, 16
s_mul_i32 s73, s91, 36
s_sub_u32 s92, s90, s73
s_mul_i32 s93, s91, 21846
s_lshr_b32 s93, s93, 16
s_mul_i32 s73, s93, 3
s_sub_u32 s91, s91, s73
s_mul_i32 s93, s93, 72
s_lshl_b32 s73, s91, 5
s_add_u32 s93, s93, s73
v_mov_b32 v44, v20
s_cmp_lg_u32 s91, 2
s_cbranch_scc1 {nx}
v_mov_b32 v44, v18
{nx}:
v_add_u32 v44, s93, v44
s_lshl_b32 s73, s92, 3
v_lshl_add_u32 v45, v19, 2, s73
v_mul_u32_u24 v45, v45, v44
v_mul_u32_u24 v47, 5, v44
s_mov_b32 s73, {f32bits(1/576):#x}
s_mov_b32 s93, {f32bits(2*N):#x}
""")
        for fr in range(4):
            for cq in range(4):
                a(f"v_cvt_f32_u32 v46, v45\nv_mul_f32 v46, s73, v46\nv_fract_f32 v46, v46")
                a(f"v_cos_f32 v{48+2*cq}, v46\nv_sin_f32 v{49+2*cq}, v46")
                a("v_add_u32 v45, v45, v44" if cq < 3 else "v_add_u32 v45, v45, v47")
            for cq in range(4):
                a(f"v_mul_f32 v{48+2*cq}, s93, v{48+2*cq}\nv_mul_f32 v{49+2*cq}, s93, -v{49+2*cq}")
            if fr == 0:
                a(f"""
s_cmp_lg_u32 s92, 0
s_cbranch_scc1 {nk}
s_mov_b32 exec_hi, 0
v_mov_b32 v48, {f32bits(N):#x}
v_lshlrev_b32 v49, 31, v44
v_or_b32 v49, v48, v49
s_mov_b64 exec, -1
{nk}:
""")
            for k in range(4):
                a(f"v_cvt_pk_bf16_f32 v{240+4*fr+k}, v{48+2*k}, v{49+2*k}")
        a(f"{skip}:")

    WB = 112

    def poison(self):
        a = self.a
        a(f"v_lshlrev_b32 v24, 4, v0\nv_mov_b32 v28, -1\nv_mov_b32 v29, -1\nv_mov_b32 v30, -1\nv_mov_b32 v31, -1")
        a(f"s_mul_i32 s90, {sP}, {8*9216}\ns_add_u32 s90, s90, {WS_OF}\ns_mul_i32 s91, {sJ}, 9216\ns_add_u32 s91, s91, s90\ns_add_u32 s91, s91, 8192")
        a(f"buffer_store_dwordx4 v[28:31], v24, {SWS}, s91 offen sc1\ns_lshl_b32 s73, {sJ}, 10\ns_add_u32 s90, s90, s73")
        for i in range(8):
            a(f"buffer_store_dwordx4 v[28:31], v24, {SWS}, s90 offen sc1\ns_add_u32 s90, s90, 9216")

    def wt_loads(self):
        a = self.a
        self.srd(SWR, 6, 2048 * 578)
        self.srd(SWI, 8, 2048 * 578)
        a(f"""
v_and_b32 v26, 7, v0
v_lshrrev_b32 v27, 3, v0
v_mul_u32_u24 v22, 578, v26
v_mad_u32_u24 v22, v27, 18, v22
s_lshr_b32 s93, s2, 6
s_bfe_u32 s92, s2, 0x20004
s_and_b32 s88, s2, 15
s_lshl_b32 s90, s88, 7
s_lshl_b32 s73, s92, 3
s_add_u32 s90, s90, s73
s_mul_i32 s90, s90, 578
s_mul_i32 s73, s93, 144
s_add_u32 s90, s90, s73
""")
        for jr in range(4):
            for ri, srd in enumerate((SWR, SWI)):
                b = self.WB + 24 * ri + 6 * jr
                a(f"buffer_load_dwordx4 {vr(b,4)}, v22, {srd}, s90 offen\nbuffer_load_dword v{b+4}, v22, {srd}, s90 offen offset:16")
            if jr < 3:
                a(f"s_add_u32 s90, s90, {32*578}")
        a(f"""
s_mov_b32 s73, {9*WP}
v_mul_lo_u32 v23, v27, s73
v_lshl_add_u32 v23, v26, 4, v23
s_mul_i32 s98, s93, {72*WP}
s_lshl_b32 s73, s88, 8
s_add_u32 s98, s98, s73
s_and_b32 s73, s92, 1
s_lshl_b32 s73, s73, 7
s_add_u32 s98, s98, s73
s_lshr_b32 s73, s92, 1
s_lshl_b32 s73, s73, 12
s_add_u32 s98, s98, s73
s_add_u32 s98, s98, {WS_WT}
""")

    def wt_stores(self):
        a = self.a
        last = a.label("WL")
        a("s_mov_b32 s92, 0x05040100\ns_mov_b32 s93, 0x07060302")
        for x in range(10):
            if x == 9:
                a(f"s_cmp_lt_u32 s2, 192\ns_cbranch_scc1 {last}\ns_mov_b32 exec_lo, 0\ns_mov_b32 exec_hi, 0xff000000")
            t = self.WB + 48 + 4 * (x % 3)
            for ri in range(2):
                for pr in range(2):
                    lo = self.WB + 24 * ri + 12 * pr + x // 2
                    a(f"v_perm_b32 v{t+2*ri+pr}, v{lo+6}, v{lo}, {'s93' if x % 2 else 's92'}")
            a(f"buffer_store_dwordx4 {vr(t,4)}, v23, {SWS}, s98 offen sc1\ns_add_u32 s98, s98, {WP}")
        a(f"s_mov_b64 exec, -1\n{last}:")

    def s_flag(self):
        a = self.a
        self.g_gen()
        a("s_setprio 3\nv_lshlrev_b32 v24, 4, v0")
        self.wait(CV, 4, sleep=2)
        self.stamp(3, 3)
        if "wearly" not in self.opts and "wmid" not in self.opts:
            self.wt_loads()
        self.add1(CL)
        self.stamp(8, 3)
        a("s_waitcnt vmcnt(0)")
        self.stamp(9, 3)
        self.wt_stores()
        for fr in range(4):
            a(f"buffer_store_dwordx4 {vr(240+4*fr,4)}, v24, {SWS}, s99 offen offset:{1024*fr} sc1")
        self.stamp(10, 3)
        self.flag4("s91", "s2", WS_FS)
        a("s_waitcnt vmcnt(0)")
        self.stamp(11, 3)
        self.wait(CD, 3, sleep=2)
        self.set_flag("s91")
        self.add1(CW)
        self.stamp(6); self.stamp(2, 3)
        self.wait(CR, 4, sleep=4)
        self.stage2_tables()

    def attention(self):
        a = self.a
        K0, KX0, V0, S0, O0, Q0, QX0 = self.AK, self.AKX, self.AV, self.AS, self.AO, self.AQ, self.AQX
        a(f"""
v_and_b32 v84, 31, v0
v_lshrrev_b32 v85, 5, v0
s_lshr_b32 s88, {sW}, 2
s_mul_i32 s73, s88, 6144
s_add_u32 s73, s73, {L_QS}
v_mul_u32_u24 v{self.vQ}, 48, v84
v_add_u32 v{self.vQ}, s73, v{self.vQ}
v_add_u32 v{self.vQX}, 32, v{self.vQ}
v_lshl_add_u32 v{self.vQ}, v85, 4, v{self.vQ}
s_and_b32 s73, {sW}, 3
s_mul_i32 s73, s73, 2560
s_add_u32 s73, s73, {L_EX}
v_lshl_add_u32 v{self.vEX}, v0, 4, s73
s_add_u32 s73, s73, 2048
v_lshl_add_u32 v{self.vEX2}, v0, 3, s73
s_lshl_b32 s73, s88, 10
s_add_u32 s73, s73, {L_CT}
v_lshl_add_u32 v{self.vCT}, v0, 2, s73
s_mul_i32 s73, s88, {CN - C1}
v_add_u32 v86, s73, v2
v_mov_b32 v{QX0+1}, 0
v_mov_b32 v{QX0+2}, 0
""")
        self.wait(C1, 4, sleep=0)
        self.stamp(5); self.stamp(5, 3); self.stamp(1, 5)
        qmain = lambda q: f"ds_read_b128 {vr(Q0,4)}, v{self.vQ} offset:{1536*(q%4)}"
        qx = lambda q: f"ds_read_b32 v{QX0}, v{self.vQX} offset:{1536*(q%4)}\nds_read_b32 v{QX0+3}, v{self.vQX} offset:{1536*(q%4)}"
        a(qmain(0)); a(qx(0))
        keys = lambda kind, t: [("K", t)] if kind == "K" else [("V0", t), ("V1", t)]
        issued = [("X", t) for t in range(0, 8, 2)]
        for t in range(self.NFIRST):
            issued += keys("K", t) + keys("V", t)
        state = {"done": 0}
        def need(*ks):
            idx = max(issued.index(k) for k in ks) + 1
            if idx > state["done"]:
                state["done"] = idx
                return [f"s_waitcnt vmcnt({len(issued) - idx})"]
            return []
        slots = {}
        def put(g, name, *items):
            slots.setdefault((g, name), []).extend(items)
        def put_loads(kind, t, where):
            ins = self.ld_k(t, t % 8) if kind == "K" else self.ld_v(t, t % 8)
            for x, key, (g, name) in zip(ins, keys(kind, t), where):
                put(g, name, (key, x))
        for t in range(self.NFIRST, 8):
            g = t - self.NFIRST
            put_loads("K", t, [(g, "A")])
            put_loads("V", t, [(g, "B"), (g, "D")])
        for t in range(8):
            g = 24 + (3 * t) // 2
            put_loads("K", 8 + t, [(g, "D")])
            if t % 2 == 0:
                put(g, "B", (("X", 8 + t), self.ld_x(8 + t)))
            put_loads("V", 8 + t, [(g + 1, "A"), (g + 1, "B")])
        def slot(g, name):
            out = []
            for it in slots.get((g, name), []):
                if isinstance(it, tuple):
                    issued.append(it[0]); out.append(it[1])
                else:
                    out.append(it)
            return out
        sreg = lambda g: S0 + 16 * (g % 4)
        oreg = lambda ps: O0 + 10 * (ps % 4)
        def qk16(g):
            return f"v_mfma_f32_32x32x16_bf16 {vr(sreg(g),16)}, {vr(K0+4*(g%8),4)}, {vr(Q0,4)}, {vr(sreg(g),16)}"
        def qkx(g):
            i = (g % 8) // 2
            return f"v_mfma_f32_32x32x4_2b_bf16 {vr(sreg(g),32)}, {vr(KX0+(i&~1),2)}, {vr(QX0+2*(i%2),2)}, 0"
        def pv(g, u):
            o = vr(oreg(g // 8), 16)
            c = "0" if (g // 8 < 4 and g % 8 == 0 and u == 0) else o
            return f"v_mfma_f32_32x32x16_bf16 {o}, {vr(V0+8*(g%8)+4*u,4)}, {vr(sreg(g)+4*u,4)}, {c}"
        kt = lambda g: (g % 8) + (8 if g >= 32 else 0)
        xneed = lambda g: need(("X", kt(g)))
        def export(q):
            o = O0 + 10 * q
            return [f"ds_write_b128 v{self.vEX}, {vr(o,4)} offset:{10240*q}", f"ds_write_b128 v{self.vEX}, {vr(o+4,4)} offset:{10240*q+1024}",
                    f"ds_write_b64 v{self.vEX2}, {vr(o+8,2)} offset:{10240*q}",
                    f"ds_add_u32 v{self.vCT}, v3 offset:{256*q}"]
        for x in need(("X", 6)) + ["s_waitcnt lgkmcnt(0)", qkx(0)] + need(("K", 1)) + [qk16(0), qk16(1)]:
            a(x)
        for ps in range(7):
            q1, q2 = qx(ps + 1).split("\n")
            put(8 * ps + 4, "D", q1); put(8 * ps + 5, "A", q2)
            put(8 * ps + 5, "D", qmain(ps + 1))
        for ps in range(5, 8):
            ex = export(ps - 5)
            put(8 * ps, "D", ex[0]); put(8 * ps + 1, "A", ex[1]); put(8 * ps + 1, "B", ex[2]); put(8 * ps + 1, "C", ex[3])
        hi = a.label("PHI"); nf = a.label("NYF"); lo = a.label("PLO"); ok = a.label("CNOK")
        put(3, "D", f"s_mov_b64 exec, 1\nds_add_u32 v2, v3 offset:{CV}\ns_mov_b64 exec, -1\ns_cmp_lt_u32 {sW}, 4\ns_cbranch_scc1 {hi}\ns_setprio 1\n{hi}:")
        put(1, "C", f"s_cmp_eq_u32 s99, {OOB}\ns_cbranch_scc1 {nf}\ns_waitcnt vmcnt(5)\ns_mov_b64 exec, 1\nds_add_rtn_u32 v8, v7, v3 offset:{YA}\n"
                    f"v_mov_b32 v1, {sTAG}\ns_waitcnt lgkmcnt(0)\nv_readfirstlane_b32 s73, v8\ns_cmp_lg_u32 s73, 1\ns_cmov_b32 s99, {OOB}\n"
                    f"buffer_store_dword v1, off, {SWS}, s99 sc1\ns_mov_b64 exec, -1\n{nf}:")
        put(23, "D", "s_setprio 3")
        put(self.opt("cr", 31), "D", f"s_mov_b64 exec, 1\nds_add_u32 v2, v3 offset:{CR}\ns_mov_b64 exec, -1")
        put(36, "A", f"s_setprio 1\ns_cmp_ge_u32 {sW}, 4\ns_cbranch_scc1 {lo}\ns_setprio 2\n{lo}:")
        put(36, "D", f"ds_read_b32 v87, v86 offset:{C1}")
        for g in range(64):
            ps, t = divmod(g, 8)
            s = sreg(g)
            e = lambda i: f"v_exp_f32 v{s+i}, v{s+i}"
            c = lambda k: f"v_cvt_pk_bf16_f32 v{s+k}, v{s+2*k}, v{s+2*k+1}"
            more = g < 62
            seq = [e(0), e(1)]
            if g > 0:
                seq.append(pv(g - 1, 1))
            seq += slot(g, "A")
            vw = lambda: need(("V0", kt(g)), ("V1", kt(g)))
            if g % 2 == 0:
                if more:
                    w = xneed(g + 2)
                    if t == 6:
                        w = [(w[0] + " " if w else "s_waitcnt ") + "lgkmcnt(2)"]
                    seq += w
                seq += [e(2), e(3), c(0), e(4), c(1), e(5)]
                if more:
                    seq.append(qkx(g + 2))
                seq += slot(g, "B") + vw() + [e(6), e(7), c(2), e(8), c(3), e(9), e(10), e(11), c(4), e(12), c(5), e(13), pv(g, 0)]
                seq += slot(g, "D") + [e(14), e(15), c(6), c(7)]
                assert (g, "C") not in slots
            else:
                if more:
                    w = need(("K", kt(g + 1)), ("K", kt(g + 2)))
                    if t == 7:
                        w = [(w[0] + " " if w else "s_waitcnt ") + "lgkmcnt(0)"]
                    seq += w
                seq += [e(2), e(3), c(0), e(4), c(1)]
                if more:
                    seq.append(qk16(g + 1))
                seq += slot(g, "B") + [e(5), e(6), e(7), c(2), e(8), c(3)]
                if more:
                    seq.append(qk16(g + 2))
                seq += slot(g, "C") + vw() + [e(9), e(10), e(11), c(4), e(12), c(5), pv(g, 0)] + slot(g, "D") + [e(13), e(14), e(15), c(6), c(7)]
            for x in seq:
                a(x)
            if g == 39:
                a(f"v_readfirstlane_b32 s73, v87\ns_cmp_ge_u32 s73, 4\ns_cbranch_scc1 {ok}")
                self.wait(C1, 4, sleep=2, base="v86")
                a(f"{ok}:")
            if g == 7:
                self.stamp(11)
            if t == 7:
                self.stamp(2 + ps, 5)
        a(pv(63, 1))
        self.norm_setup(1)
        ex = export(3)
        for x in ex[:3]:
            a(x)
        a(f"ds_add_rtn_u32 v1, v{self.vCT}, v3 offset:768")

    T64, T32A, TW1, TW2, T32B, NTAB = 0, 24, 27, 35, 43, 49
    NPRE = 35

    def make_tables(self):
        L = np.arange(64); Lm = (L & 15)[:, None]; Lg = (L >> 4)[:, None]
        jj = np.arange(8)[None, :]; r = np.arange(4)[None, :]
        def pk(v):
            b = M.bf(v.astype(np.float32)).astype(np.uint32)
            return (b[:, 0::2] | (b[:, 1::2] << 16)).astype(np.uint32)
        parts = lambda z: (z.real, z.imag, -z.imag)
        w = lambda n, x, y: np.exp(-2j * np.pi * ((x * y) % n) / n)
        f32 = lambda v: v.astype(np.float32).view(np.uint32)
        out = []
        for H in range(2):
            for k in range(3):
                for t in range(4):
                    for ks in range(2):
                        out.append(pk(parts(w(64, 16 * (t ^ (2 * H)) + Lm, 32 * (ks ^ H) + 16 * (jj >> 2) + 4 * Lg + (jj & 3)))[k]))
            for k in range(3):
                out.append(pk(parts(w(32, 8 * Lg + jj, 16 * H + Lm))[k]))
            for t in range(4):
                z = w(2048, 16 * (t ^ (2 * H)) + 4 * Lg + r, 16 * H + Lm)
                out += [f32(z.real), f32(z.imag)]
            for t in range(4):
                z = np.conj(w(2048, 16 * (t ^ (2 * H)) + Lm, 16 * H + 4 * Lg + r))
                out += [f32(z.real), f32(z.imag)]
            for k in range(3):
                for at in range(2):
                    out.append(pk(parts(w(32, 8 * (Lm >> 2) + 4 * at + (Lm & 3), 16 * (H ^ (jj >> 2)) + 4 * Lg + (jj & 3)))[k]))
        return np.concatenate([o.reshape(-1) for o in out])

    def tload(self, frag, dst):
        if self.tgroup != frag // 4:
            self.tgroup = frag // 4
            self.a(f"s_add_u32 s88, s87, {(frag // 4) * 4096}")
        self.a(f"buffer_load_dwordx4 {vr(dst,4)}, v5, {STB}, s88 offen offset:{(frag % 4) * 1024}")

    def stage2_tables(self):
        a = self.a
        a(f"""
s_getpc_b64 s[64:65]
s_add_u32 s64, s64, spectral_tables@rel32@lo+4
s_addc_u32 s65, s65, spectral_tables@rel32@hi+12
s_mov_b32 s66, {2*self.NTAB*1024}
s_mov_b32 s67, 0x20000
v_lshlrev_b32 v5, 4, v0
s_and_b32 s86, {sW}, 1
s_mul_i32 s87, s86, {self.NTAB*1024}
""")
        self.tgroup = None
        for f in range(24):
            self.tload(self.T64 + f, 80 + 4 * f)
        for f in range(3):
            self.tload(self.T32A + f, 240 + 4 * f)
        for f in range(8):
            self.tload(self.TW1 + f, 16 + 4 * f)

    def stage2(self):
        a = self.a
        A, P, Q, TW, WW, PK, TMP = 80, 48, 176, 16, 208, 240, 8
        self.tgroup = None
        a(f"""
v_and_b32 v6, 15, v0
v_lshlrev_b32 v6, 6, v6
v_lshrrev_b32 v7, 4, v0
v_lshl_add_u32 v6, v7, 4, v6
s_mul_i32 s90, s89, {2*TP}
s_add_u32 s91, s90, {TP}
s_cmp_eq_u32 s89, 288
s_cmov_b32 s90, {TP}
s_cmov_b32 s91, {OOB}
s_cmp_eq_u32 s89, 0
s_cmov_b32 s91, {OOB}
s_lshl_b32 s73, s86, 11
s_add_u32 s90, s90, s73
s_add_u32 s91, s91, s73
s_lshl_b32 s85, s86, 12
s_sub_u32 s85, 2048, s85
s_lshr_b32 s73, {sW}, 1
s_and_b32 s73, s73, 1
s_xor_b32 s73, s73, 1
s_lshl_b32 s99, s73, 2
s_lshl_b32 s73, s73, 12
s_lshl_b32 s84, s86, 11
s_add_u32 s73, s73, s84
s_add_u32 s73, s73, {L_XCH}
v_add_u32 v7, s73, v5
s_sub_u32 s73, s73, s84
s_xor_b32 s84, s84, 0x800
s_add_u32 s84, s84, s73
""")
        cl = a.label("GC"); cg = a.label("CG"); ot = a.label("GO"); dn = a.label("GD")
        a(f"s_cmp_lg_u32 {sW}, 7\ns_cbranch_scc1 {ot}\ns_lshr_b32 s73, s2, 3\ns_cmp_lg_u32 s73, 16\ns_cbranch_scc1 {cl}")
        a(f"v_lshlrev_b32 v8, 7, v0\ns_mov_b32 s92, {WS_FS}\ns_sleep {self.opt('dw', 0)}")
        self.poll(f"buffer_load_dwordx4 v[12:15], v8, {SWS}, s92 offen sc1", [12, 13, 14, 15], sleep=4)
        a(f"s_and_b32 s92, s2, 7\ns_lshl_b32 s92, s92, 7\ns_add_u32 s92, s92, {WS_GOS}")
        self.set_flag("s92")
        a(f"s_branch {cg}\n{cl}:\ns_sleep {self.opt('d2', 16)}")
        self.go_wait(WS_GOS, 252, 8)
        a(f"{cg}:")
        self.add1(CG)
        a(f"s_branch {dn}\n{ot}:")
        self.wait(CG, 1, sleep=2)
        a(f"s_waitcnt vmcnt(0)\n{dn}:")
        self.stamp(7)
        self.stamp(1, 2)
        a(f"s_add_u32 s92, s90, {WS_T}\ns_add_u32 s93, s91, {WS_T}\ns_add_u32 s82, s92, s85\ns_add_u32 s83, s93, s85")
        for t in range(4):
            for ri in range(2):
                so = (("s92", "s93"), ("s82", "s83"))[t >> 1][ri]
                a(f"buffer_load_dwordx4 {vr(WW+8*t+4*ri,4)}, v6, {SWS}, {so} offen offset:{1024*(t&1)} sc1")
        mf = lambda acc, x, y, first: a(f"v_mfma_f32_16x16x32_bf16 {vr(acc,4)}, {vr(x,4)}, {vr(y,4)}, {'0' if first else vr(acc,4)}")
        re = lambda base, t: base + 8 * t
        im = lambda base, t: base + 8 * t + 4
        for t in range(4):
            a(f"s_waitcnt vmcnt({6 - 2*t})")
            if t == 0: self.stamp(2, 2)
            mf(re(P, t), re(WW, t), PK, True); mf(im(P, t), re(WW, t), PK + 4, True)
            mf(re(P, t), im(WW, t), PK + 8, False); mf(im(P, t), im(WW, t), PK, False)
        a(f"s_mul_i32 s92, s89, {WP}\ns_lshl_b32 s73, s86, 12\ns_add_u32 s92, s92, s73\ns_lshl_b32 s73, s86, 11\ns_add_u32 s92, s92, s73\ns_add_u32 s92, s92, {WS_WT}")
        a("s_add_u32 s82, s92, s85")
        for t in range(4):
            a(f"buffer_load_dwordx4 {vr(WW+8*t+4,4)}, v5, {SWS}, {('s92', 's82')[t >> 1]} offen offset:{1024*(t&1)} sc1")
        def cmul(x, c, dst):
            for t in range(4):
                ops = []
                for h in range(2):
                    t0, t1 = TMP + 4 * h, TMP + 4 * h + 2
                    xr, xi, cr, ci = re(x, t) + 2 * h, im(x, t) + 2 * h, re(c, t) + 2 * h, im(c, t) + 2 * h
                    ops.append([f"v_pk_mul_f32 {vr(t0,2)}, {vr(xr,2)}, {vr(cr,2)}",
                                f"v_pk_mul_f32 {vr(t1,2)}, {vr(xr,2)}, {vr(ci,2)}",
                                f"v_pk_fma_f32 {vr(t0,2)}, {vr(xi,2)}, {vr(ci,2)}, {vr(t0,2)} neg_lo:[1,0,0] neg_hi:[1,0,0]",
                                f"v_pk_fma_f32 {vr(t1,2)}, {vr(xi,2)}, {vr(cr,2)}, {vr(t1,2)}",
                                f"v_cvt_pk_bf16_f32 v{dst(t,0)+h}, v{t0}, v{t0+1}",
                                f"v_cvt_pk_bf16_f32 v{dst(t,1)+h}, v{t1}, v{t1+1}"])
                for j in range(0, 6, 2):
                    for o in ops:
                        a(o[j]); a(o[j + 1])
        pkd = lambda t, part: PK + 8 * part + 2 * t
        ks_ = lambda part, ks: PK + 8 * part + 4 * ks
        t64 = lambda k, t, ks: A + 32 * k + 8 * t + 4 * ks
        self.stamp(3, 2)
        cmul(P, TW, pkd)
        self.stamp(4, 2)
        for f in range(8):
            self.tload(self.TW2 + f, TW + 4 * f)
        for t in range(4):
            for ks in range(2):
                mf(re(Q, t), t64(0, t, ks), ks_(0, ks), ks == 0); mf(im(Q, t), t64(1, t, ks), ks_(0, ks), ks == 0)
            for ks in range(2):
                mf(re(Q, t), t64(2, t, ks), ks_(1, ks), False); mf(im(Q, t), t64(0, t, ks), ks_(1, ks), False)
        self.stamp(5, 2)
        a("s_waitcnt vmcnt(8)")
        for t in range(4):
            b = WW + 8 * t
            for k in range(4):
                a(f"v_lshlrev_b32 v{b+2*k}, 16, v{b+4+k}\nv_and_b32 v{b+2*k+1}, 0xffff0000, v{b+4+k}" if k < 2 else "")
            a(f"v_and_b32 v{b+5}, 0xffff0000, v{b+6}\nv_lshlrev_b32 v{b+4}, 16, v{b+6}\nv_lshlrev_b32 v{b+6}, 16, v{b+7}\nv_and_b32 v{b+7}, 0xffff0000, v{b+7}")
        cmul(Q, WW, pkd)
        self.stamp(6, 2)
        for f in range(6):
            self.tload(self.T32B + f, WW + 4 * f)
        for t in (2, 3, 0, 1):
            for ks in range(2):
                mf(re(P, t), ks_(0, ks), t64(0, t, ks), ks == 0); mf(im(P, t), ks_(1, ks), t64(0, t, ks), ks == 0)
            for ks in range(2):
                mf(re(P, t), ks_(1, ks), t64(1, t, ks), False); mf(im(P, t), ks_(0, ks), t64(2, t, ks), False)
        self.stamp(7, 2)
        a("v_add_u32 v160, s99, v2")
        self.kv_addr()
        self.kv_loads()
        a(f"s_waitcnt vmcnt({6 + self.NLD1})")
        cmul(P, TW, lambda t, part: (PK + 8 * t + 4 * part) if t < 2 else (Q + 4 * (t - 2) + 2 * part))
        a(f"ds_write_b128 v7, {vr(Q,4)}\nds_write_b128 v7, {vr(Q+4,4)} offset:1024")
        self.add1(XA, base="v160")
        a("v_add_u32 v7, s84, v5")
        self.wait(XA, 2, sleep=0, base="v160")
        for t in range(2):
            for part in range(2):
                a(f"ds_read_b64 {vr(PK+8*t+4*part+2,2)}, v7 offset:{1024*t+8*part}")
        self.stamp(8, 2)
        a(f"s_waitcnt vmcnt({self.NLD1}) lgkmcnt(0)")
        t32 = lambda k, at: WW + 8 * k + 4 * at
        out = lambda t, part, at: Q + 16 * t + 8 * part + 4 * at
        for t in range(2):
            for at in range(2):
                mf(out(t, 0, at), t32(0, at), PK + 8 * t, True); mf(out(t, 1, at), t32(0, at), PK + 8 * t + 4, True)
            for at in range(2):
                mf(out(t, 0, at), t32(1, at), PK + 8 * t + 4, False); mf(out(t, 1, at), t32(2, at), PK + 8 * t, False)
        a(f"s_add_u32 s92, s90, {WS_Y}\ns_add_u32 s93, s91, {WS_Y}")
        for t in range(2):
            for part in range(2):
                b = out(t, part, 0); d = 48 + 8 * t + 4 * part
                for k in range(4):
                    a(f"v_cvt_pk_bf16_f32 v{d+k}, v{b+2*k}, v{b+2*k+1}")
                a(f"buffer_store_dwordx4 {vr(d,4)}, v6, {SWS}, {'s93' if part else 's92'} offen offset:{1024*t} sc1")
        self.stamp(9, 2)
        a("v_mov_b32 v7, v160")
        self.flag4("s99", "s89", WS_FY)

    def l_mid(self):
        a = self.a
        go = a.label("S2"); no = a.label("NS2"); n7 = a.label("N7"); kv = a.label("LKV"); tb = a.label("TB"); nw = a.label("NW")
        a(f"s_mov_b32 s89, s2\ns_cmp_lg_u32 {sW}, 7\ns_cbranch_scc1 {n7}")
        self.s_flag()
        a(f"s_mov_b32 s89, s2\ns_branch {go}\n{n7}:")
        self.wait(CW, 1, sleep=6)
        self.wait(CR, 4, sleep=4)
        a(f"s_cmp_eq_u32 {sW}, 6\ns_cbranch_scc1 {tb}")
        a(f"""
s_add_u32 s89, s2, 192
s_sub_u32 s73, s2, 64
s_cmp_gt_u32 s73, 32
s_cbranch_scc1 {nw}
{tb}:
""")
        self.stage2_tables()
        a(f"{go}:")
        self.stage2()
        a(f"s_branch {kv}\n{nw}:")
        a(f"{no}:\ns_mov_b32 s99, {OOB}")
        self.kv_addr()
        self.kv_loads()
        a(f"s_setprio 1\n{kv}:")
        self.stamp(9)

    NT = 192

    def tail(self, mm, n):
        a = self.a
        ACC, ACX = 24, 40
        WF = 48
        NT = self.NT
        w = 2 * mm + n
        a("s_setprio 2")
        self.busy = 2
        a(f"""
ds_read_b32 v4, v23 offset:{2304 + 128 * (1 - n)}
ds_read_b32 v45, v23 offset:{2304 + 128 * n}
v_and_b32 v7, 15, v0
v_lshl_add_u32 v7, v7, 2, v2
ds_read_b32 v46, v7 offset:{2304 + 128 * n + 64 * mm}
v_add_u32 v7, 36864, v16
v_add_u32 v8, 36864, v17
s_waitcnt lgkmcnt(0)
v_sub_f32 v4, 1.0, v4
""")

        normalize = self.normalize

        def wrow(kind, k, hh, u):
            if kind == "m":
                return ("v6", (72 * k + 18 * hh + 8 * u) * 64) if k < 8 else ("v9", (144 * u + 18 * hh) * 64)
            return ("v10", (144 * k + 18 * hh + 8 * u) * 16) if k < 4 else ("v11", (144 * u + 18 * hh) * 16)

        def consume(i, probe):
            OB, AX = 192, 248
            hh = i >> 1
            seq = []
            for ks in range(9):
                seq.append(("m", ks))
                if ks % 2 == 1 or ks == 8: seq.append(("x", ks // 2))
            def rd(k):
                for u in range(2):
                    base, off = wrow("x", k, hh, u)
                    a(f"ds_read_b64_tr_b16 {vr(AX+4*(k%2)+2*u,2)}, {base} offset:{off}")
            rd(0); rd(1)
            if probe:
                l = a.label("CP"); d = a.label("CQ")
                a(f"{l}:\ns_add_u32 s90, s94, {i*9216 + 8192}\nbuffer_load_dwordx4 {vr(OB,4)}, v5, {SWS}, s90 offen sc1")
                a(f"s_waitcnt vmcnt(0)\nv_max_u32 v1, v{OB}, v{OB+1}\nv_max3_u32 v1, v1, v{OB+2}, v{OB+3}")
                a(f"v_cmp_eq_u32 vcc, -1, v1\ns_cmp_eq_u64 vcc, 0\ns_cbranch_scc1 {d}")
                a(f"s_sleep 8\ns_sub_u32 {sSPIN}, {sSPIN}, 1\ns_cbranch_scc0 {l}\ns_branch L_bail\n{d}:")
            l = a.label("CL"); d = a.label("CD")
            a(f"{l}:")
            chk = []
            oreg = lambda it: OB + (4 * it[1] if it[0] == "m" else 36 + 4 * it[1])
            for it in seq:
                kind, k = it
                if kind == "m" and k % 4 == 0:
                    a(f"s_add_u32 s90, s94, {i*9216 + 1024*k}")
                voff, last = ("v5", k == 8) if kind == "m" else ("v12" if k < 4 else "v13", k == 4)
                imm = 1024 * (k % 4) if kind == "m" else 2048 * (k % 2)
                a(f"buffer_load_dwordx4 {vr(oreg(it),4)}, {voff}, {SWS}, s90 offen offset:{imm} sc1")
                chk.append([oreg(it) + r for r in range(4 if last else 1)])
            flat = [(j, r) for j, rs in enumerate(chk) for r in rs]
            a(f"s_waitcnt vmcnt({len(chk) - 2})\nv_max_u32 v1, v{flat[0][1]}, v{flat[1][1]}")
            for p in range(2, len(flat), 2):
                a(f"s_waitcnt vmcnt({len(chk) - 1 - flat[p+1][0]})\nv_max3_u32 v1, v1, v{flat[p][1]}, v{flat[p+1][1]}")
            a(f"v_cmp_eq_u32 vcc, -1, v1\ns_cmp_eq_u64 vcc, 0\ns_cbranch_scc1 {d}")
            a(f"s_sleep {2 if i >= 6 else 8}\ns_sub_u32 {sSPIN}, {sSPIN}, 1\ns_cbranch_scc0 {l}\ns_branch L_bail\n{d}:")
            for kind, k in seq:
                if kind == "m":
                    a(f"v_mfma_f32_32x32x16_bf16 {vr(ACC,16)}, {vr(WF+36*hh+4*k,4)}, {vr(oreg((kind,k)),4)}, {vr(ACC,16)}")
                else:
                    a(f"s_waitcnt lgkmcnt({2 if k < 4 else 0})")
                    a(f"v_mfma_f32_16x16x32_bf16 {vr(ACX,4)}, {vr(AX+4*(k%2),4)}, {vr(oreg((kind,k)),4)}, {vr(ACX,4)}")
                    if k + 2 < 5:
                        rd(k + 2)

        normalize(2 * mm + (1 - n))
        self.stamp(2, 4)
        GM, GX, GD, GE = 192, 224, 8, 3
        AC2, BF, BX = ACC, 236, 248
        vm = []
        def gm(ks):
            a(f"buffer_load_dwordx4 {vr(GM+4*(ks%GD),4)}, v5, {SWS}, s93 offen offset:{1024*(ks%4)} sc1")
            if ks % 4 == 3: a("s_add_u32 s93, s93, 4096")
            vm.append(("m", ks))
        def gx(T):
            a(f"buffer_load_dwordx4 {vr(GX+4*(T%GE),4)}, v14, {SWS}, s98 offen offset:{2048*(T%2)} sc1")
            if T % 2 == 1: a("s_add_u32 s98, s98, 4096")
            vm.append(("x", T))
        bulk = w < 2
        if bulk:
            self.srd(SWO, 18, 663552)
            self.panel_setup(2, va=48)
        a(f"s_mul_i32 s93, {sJ}, {3*36*1024}\ns_add_u32 s98, s93, {WS_G + 2*36*1024}\ns_add_u32 s93, s93, {WS_G + mm*36*1024}")
        self.wait(CV, 8, sleep=3)
        if bulk:
            self.panel_loads(SWO, L_WO0, L_WO1, L_WOX, False, 36, 2, va=48, rotate=True)
        self.stamp(1, 4)
        for ks in range(GD):
            gm(ks)
            if ks % 2 == 1 and ks // 2 < GE: gx(ks // 2)
        fy = (f"buffer_load_dwordx4 {vr(BF+2,4)}, v{BF}, {SWS}, s99 offen sc1\nbuffer_load_dwordx4 {vr(BF+6,4)}, v{BF+1}, {SWS}, s92 offen sc1\n"
              f"buffer_load_dword v{BF+10}, off, {SWS}, s88 sc1")
        if w == 0:
            a(f"v_lshlrev_b32 v{BF}, 7, v0\nv_min_u32 v{BF+1}, {7*128}, v{BF}\ns_mov_b32 s99, {WS_FY}\ns_mov_b32 s92, {WS_FY + 8192}\ns_mov_b32 s88, {WS_FY + 72*128}")
            a(fy)
        if bulk:
            a(f"s_waitcnt vmcnt({len(vm) + (3 if w == 0 else 0)})")
            self.add1(S3)
        self.wait(S3, 2, sleep=1 if bulk else 3)
        self.stamp(3, 4)
        for hh in range(4):
            for k in range(9):
                for u in range(2):
                    base, off = wrow("m", k, hh, u)
                    a(f"ds_read_b64_tr_b16 {vr(WF+36*hh+4*k+2*u,2)}, {base} offset:{off}")
                if k % 3 == 2:
                    a("s_waitcnt lgkmcnt(6)")
        self.stamp(4, 4)
        a("s_waitcnt lgkmcnt(0)")
        self.add1(S2)
        if w == 0:
            ok = a.label("YOK")
            a("s_waitcnt vmcnt(0)")
            self.cmp_regs([BF + 2 + k for k in range(9)], sTAG)
            a(f"s_cbranch_scc1 {ok}")
            self.poll(fy, [BF + 2 + k for k in range(9)], sleep=12)
            a(f"{ok}:")
            self.add1(CY)
            ne = a.label("NE")
            a(f"s_cmp_lg_u32 s2, 0\ns_cbranch_scc1 {ne}")
            self.set_flag(str(WS_EPOCH))
            a(f"{ne}:")
        elif bulk:
            self.wait(CY, 1, sleep=2)
        if bulk:
            self.wait(S2, 4, sleep=1)
            self.stamp(1); self.stamp(5, 4)
            a(f"s_lshl_b32 s99, {sP}, 7\ns_add_u32 s99, s99, {WS_Y + w * 8 * TP}\ns_mov_b32 s92, {L_Y + w * 1024}")
            lp = a.label("YL")
            a(f"s_mov_b32 s88, 5\n{lp}:")
            for k in range(6):
                a(f"s_mov_b32 m0, s92\ns_add_u32 s92, s92, 2048\nbuffer_load_dwordx4 v15, {SWS}, s99 offen sc1 lds\ns_add_u32 s99, s99, {16*TP}")
            a(f"s_sub_u32 s88, s88, 1\ns_cbranch_scc0 {lp}")
            vm.extend([("y", k) for k in range(36)])
            a("s_waitcnt vmcnt(18)")
            self.add1(S1)
        self.stamp(6, 4)
        def yrd(it):
            kind, k = it
            if kind == "m":
                b = BF + 4 * (k % 3); base, off = ("v16", 2048 * k) if k < 18 else ("v7", 2048 * (k - 18))
            else:
                b = BX + 4 * (k % 2); base, off = ("v17", 4096 * k) if k < 9 else ("v8", 4096 * (k - 9))
            a(f"ds_read_b64_tr_b16 {vr(b,2)}, {base} offset:{off}\nds_read_b64_tr_b16 {vr(b+2,2)}, {base} offset:{off+512}")
        done = {"vm": len(vm) - 18 if bulk else 0}
        def half(k0):
            seq = []
            for ks in range(k0, k0 + 18):
                seq.append(("m", ks))
                if ks % 2 == 1: seq.append(("x", ks // 2))
            for it in seq[:3]:
                yrd(it)
            for i, it in enumerate(seq):
                wv = ""
                if vm.index(it) + 1 > done["vm"]:
                    done["vm"] = vm.index(it) + 1
                    wv = f"vmcnt({len(vm) - done['vm']}) "
                a(f"s_waitcnt {wv}lgkmcnt({2 * (min(i + 3, len(seq)) - i - 1)})")
                kind, k = it
                if kind == "m":
                    a(f"v_mfma_f32_32x32x16_bf16 {vr(AC2,16)}, {vr(GM+4*(k%GD),4)}, {vr(BF+4*(k%3),4)}, {'0' if k == 0 else vr(AC2,16)}")
                    if k + GD < 36: gm(k + GD)
                else:
                    a(f"v_mfma_f32_16x16x32_bf16 {vr(AC2+16,4)}, {vr(GX+4*(k%GE),4)}, {vr(BX+4*(k%2),4)}, {'0' if k == 0 else vr(AC2+16,4)}")
                    if k + GE < 18: gx(k + GE)
                if i + 3 < len(seq):
                    yrd(seq[i + 3])
                if bulk and it == ("m", GD):
                    self.add1(S4)
        self.wait(S1, 2, sleep=1 if bulk else 2)
        self.stamp(7, 4)
        half(0)
        self.wait(S4, 2, sleep=1)
        half(18)
        self.stamp(2); self.stamp(8, 4)
        self.srd(SOUT, 22, 2359296)
        a(f"""
s_mul_i32 s93, {sP}, 2304
s_add_u32 s93, s93, s95
s_add_u32 s93, s93, {1152 * n}
s_add_u32 s92, s93, {16 * mm * 73728}
""")
        for i in range(8):
            a(f"v_pk_mul_f32 {vr(ACC+2*i,2)}, {vr(ACC+2*i,2)}, v[44:45] op_sel:[0,1] op_sel_hi:[1,1]")
        for i in range(2):
            a(f"v_pk_mul_f32 {vr(ACX+2*i,2)}, {vr(ACX+2*i,2)}, v[46:47] op_sel_hi:[1,0]")
        prog = {0: ["N5", "C0", "C2", "C4", "C6"], 1: ["N4", "C1", "C3", "C5", "C7"],
                2: ["C0", "C2", "C4", "C6"], 3: ["C1", "C3", "N6", "C5", "C7"]}[w]
        gates = {4: 5, 5: 6, 6: 7, 7: 7}
        for it in prog:
            i = int(it[1])
            if it[0] == "N":
                normalize(i)
                self.stamp(3)
            else:
                if i >= 4:
                    self.wait(256 * gates[i], 4, sleep=2 if gates[i] == 7 else 4)
                if i == 7:
                    a(f"s_sleep {self.opt('d7', 4)}")
                if i >= 6: self.stamp(4)
                consume(i, i in (4, 5))
                if i in (2, 3): self.stamp(9, 4)
                if i in (4, 5): self.stamp(10, 4)
                if i in (6, 7): self.stamp(11, 4)
        self.stamp(6)
        fl = " sc1" if "outsc1" in self.opts else " nt" if "outnt" in self.opts else ""
        a(f"v_cvt_pk_bf16_f32 v{ACX}, v{ACX}, v{ACX+1}\nv_cvt_pk_bf16_f32 v{ACX+1}, v{ACX+2}, v{ACX+3}")
        for k in range(8):
            a(f"v_cvt_pk_bf16_f32 v{ACC+k}, v{ACC+2*k}, v{ACC+2*k+1}")
        a(f"buffer_store_dwordx4 {vr(ACC,4)}, v18, {SOUT}, s93 offen offset:{64*mm}{fl}")
        a(f"buffer_store_dwordx4 {vr(ACC+4,4)}, v18, {SOUT}, s93 offen offset:{64*mm+16}{fl}")
        a(f"s_mov_b32 exec_hi, 0\nbuffer_store_dwordx2 {vr(ACX,2)}, v19, {SOUT}, s92 offen offset:128{fl}\ns_mov_b64 exec, -1")
        self.stamp(7)

    def norm_setup(self, rows):
        self.a(f"""
v_lshlrev_b32 v5, 4, v0
v_and_b32 v23, 31, v0
v_add_u32 v20, {L_EX}, v5
v_lshlrev_b32 v21, 3, v0
v_add_u32 v21, {L_EX + 2048}, v21
v_lshlrev_b32 v22, 3, v23
v_add_u32 v22, {L_EX + 2048 + 256}, v22
v_lshl_add_u32 v23, v23, 2, v2
ds_read_b32 v4, v23 offset:{2304 + 128 * rows}
s_mul_i32 s94, {sP}, {8*9216}
s_add_u32 s94, s94, {WS_OF}
s_lshl_b32 s96, {sJ}, 10
s_add_u32 s96, s96, s94
s_lshr_b32 s97, {sJ}, 2
s_lshl_b32 s97, s97, 9
s_and_b32 s73, {sJ}, 3
s_lshl_b32 s73, s73, 2
s_add_u32 s97, s97, s73
s_add_u32 s97, s97, s94
s_add_u32 s97, s97, 8192
""")

    def normalize(self, i, wait=True, gate=None):
        a = self.a
        NT = self.NT
        q = i % 4
        if wait:
            self.wait(256 * i, 4, sleep=2 if i >= 6 else 4)
        def reads(s):
            b = NT + 12 * s; o = 10240 * q + 2560 * s
            a(f"ds_read_b128 {vr(b,4)}, v20 offset:{o}\nds_read_b128 {vr(b+4,4)}, v20 offset:{o+1024}\n"
              f"ds_read_b64 {vr(b+8,2)}, v21 offset:{o}\nds_read_b32 v{b+10}, v22 offset:{o}")
        reads(0); reads(1)
        a(f"s_add_u32 s90, s96, {i*9216}\ns_add_u32 s91, s97, {i*9216}\ns_movk_i32 s89, {i}")
        if gate:
            a("s_waitcnt lgkmcnt(8)")
            a(gate)
        reads(2)
        for s in range(1, 4):
            a(f"s_waitcnt lgkmcnt({4 if s < 3 else 0})")
            if s == 1:
                reads(3)
            for k in range(5):
                a(f"v_pk_add_f32 {vr(NT+2*k,2)}, {vr(NT+2*k,2)}, {vr(NT+12*s+2*k,2)}")
            a(f"v_add_f32 v{NT+10}, v{NT+10}, v{NT+12*s+10}")
        if i < 4:
            self.wait(CG, 1, sleep=2)
            self.add1(CN)
        self.safety()
        a(f"v_rcp_f32 v{NT+10}, v{NT+10}\ns_nop 0\nv_mul_f32 v{NT+10}, v4, v{NT+10}")
        for k in range(5):
            a(f"v_pk_mul_f32 {vr(NT+2*k,2)}, {vr(NT+2*k,2)}, {vr(NT+10,2)} op_sel_hi:[1,0]")
        for k in range(5):
            a(f"v_cvt_pk_bf16_f32 v{NT+12+k}, v{NT+2*k}, v{NT+2*k+1}")
        a(f"v_min_u32 v{NT+12}, -2, v{NT+12}\nv_min_u32 v{NT+16}, -2, v{NT+16}")
        a(f"buffer_store_dwordx4 {vr(NT+12,4)}, v5, {SWS}, s90 offen sc1\ns_mov_b32 exec_hi, 0")
        a(f"buffer_store_dword v{NT+16}, v5, {SWS}, s91 offen sc1")
        a("s_mov_b64 exec, -1")

    def safety(self):
        a = self.a
        NT = self.NT
        ok = a.label("SOK")
        t = NT + 12
        a(f"v_pk_mul_f32 {vr(t,2)}, {vr(NT,2)}, 0 op_sel_hi:[1,0]")
        for k in range(1, 5):
            a(f"v_pk_fma_f32 {vr(t,2)}, {vr(NT+2*k,2)}, 0, {vr(t,2)} op_sel_hi:[1,0,1]")
        lo, hi = (127 - 60) << 23, (127 + 64) << 23
        if "forcefb" in self.opts:
            lo, hi = (127 + 60) << 23, (127 + 64) << 23
        a(f"v_add_f32 v{t}, v{t}, v{t+1}\nv_subrev_u32 v{t+1}, {lo:#x}, v{NT+10}\nv_cmp_u_f32 vcc, v{t}, v{t}")
        a(f"s_mov_b32 s73, {hi - lo:#x}\nv_cmp_lt_u32 s[74:75], s73, v{t+1}\ns_or_b64 vcc, vcc, s[74:75]\ns_cmp_eq_u64 vcc, 0\ns_cbranch_scc1 {ok}")
        a(f"s_call_b64 s[86:87], L_fallback\n{ok}:")

    def fallback(self):
        a = self.a
        NT = self.NT
        O, S, Q, QX, K, KX, V, MX = NT, 208, 224, 228, 230, 234, 236, 244
        vK, vKX, vV, T0 = 245, 246, 247, 248
        l1 = a.label("FB1"); l2 = a.label("FB2")
        qk = f"""
buffer_load_dwordx4 {vr(K,4)}, v{vK}, {SWS}, s[84] offen sc1
buffer_load_dword v{KX}, v{vKX}, {SWS}, s[85] offen sc1
""".replace("s[84]", "s84").replace("s[85]", "s85")
        mm = f"""
v_mfma_f32_32x32x16_bf16 {vr(S,16)}, {vr(K,4)}, {vr(Q,4)}, 0
v_mfma_f32_32x32x8_bf16 {vr(S,16)}, {vr(KX,2)}, {vr(QX,2)}, {vr(S,16)}
s_add_u32 s84, s84, 1024
s_add_u32 s85, s85, 128
"""
        a(f"""
L_fallback:
s_nop 4
v_and_b32 v250, 31, v0
v_lshrrev_b32 v251, 5, v0
v_lshlrev_b32 v{vK}, 5, v250
v_lshl_add_u32 v{vK}, v251, 4, v{vK}
v_mov_b32 v{T0}, {OOB}
v_lshlrev_b32 v{vKX}, 2, v250
v_cmp_lt_u32 vcc, 31, v0
v_subrev_u32 v{T0+1}, 64, v{vK}
v_cndmask_b32 v{vKX}, v{vKX}, v{T0}, vcc
v_cmp_eq_u32 vcc, 20, v250
s_mul_i32 s73, s89, 1536
v_cndmask_b32 v{T0+1}, v{T0}, v{T0+1}, vcc
v_cmp_gt_u32 vcc, 18, v250
s_add_u32 s73, s73, {L_QS}
v_cndmask_b32 v{vV}, v{T0+1}, v{vK}, vcc
v_mul_u32_u24 v{T0}, 48, v250
v_add_u32 v{T0}, s73, v{T0}
v_lshl_add_u32 v{T0+1}, v251, 2, v{T0}
v_lshl_add_u32 v{T0}, v251, 4, v{T0}
ds_read_b128 {vr(Q,4)}, v{T0}
ds_read_b32 v{QX}, v{T0+1} offset:32
v_mov_b32 v{QX+1}, 0
v_mov_b32 v{KX+1}, 0
v_mov_b32 v{MX}, 0xff800000
s_mov_b32 s84, {WS_K16}
s_mov_b32 s85, {WS_KX}
s_mov_b32 s88, 63
{l1}:
{qk}
s_waitcnt vmcnt(0) lgkmcnt(0)
{mm}
""")
        for k in range(8):
            a(f"v_max3_f32 v{MX}, v{MX}, v{S+2*k}, v{S+2*k+1}")
        a(f"""
s_sub_u32 s88, s88, 1
s_cbranch_scc0 {l1}
v_mov_b32 v{T0}, v{MX}
v_permlane32_swap_b32 v{MX}, v{T0}
v_max_f32 v{MX}, v{MX}, v{T0}
s_mov_b32 s84, {WS_K16}
s_mov_b32 s85, {WS_KX}
s_mov_b32 s83, {WS_VF}
s_mov_b32 s88, 63
""")
        for r in range(16):
            a(f"v_mov_b32 v{O+r}, 0")
        a(f"""
{l2}:
{qk}
buffer_load_dwordx4 {vr(V,4)}, v{vV}, {SWS}, s83 offen sc1
buffer_load_dwordx4 {vr(V+4,4)}, v{vV}, {SWS}, s83 offen offset:{VPITCH} sc1
s_waitcnt vmcnt(0)
{mm}
s_add_u32 s83, s83, {2*VPITCH}
""")
        for r in range(16):
            a(f"v_sub_f32 v{S+r}, v{S+r}, v{MX}")
        for r in range(16):
            a(f"v_exp_f32 v{S+r}, v{S+r}")
        for k in range(8):
            a(f"v_cvt_pk_bf16_f32 v{S+k}, v{S+2*k}, v{S+2*k+1}")
        a(f"""
v_mfma_f32_32x32x16_bf16 {vr(O,16)}, {vr(V,4)}, {vr(S,4)}, {vr(O,16)}
v_mfma_f32_32x32x16_bf16 {vr(O,16)}, {vr(V+4,4)}, {vr(S+4,4)}, {vr(O,16)}
s_nop 15
s_sub_u32 s88, s88, 1
s_cbranch_scc0 {l2}
""")
        a(f"v_mov_b32 v{T0}, v{O+8}\nv_mov_b32 v{NT+10}, v{O+8}\nv_permlane32_swap_b32 v{T0}, v{NT+10}\ns_nop 4\ns_setpc_b64 s[86:87]")

    def finish_stamps(self):
        a = self.a
        if self.stamps:
            a("v_mov_b32 v2, 0")
            for i in range(12):
                a(f"v_writelane_b32 v2, s{STAMPS[i]}, {i}")
            a(f"s_lshl_b32 s73, s2, 3\ns_add_u32 s73, s73, {sW}\ns_lshl_b32 s73, s73, 7\ns_add_u32 s73, s73, {WS_DBG}")
            a(f"v_lshlrev_b32 v3, 2, v0\ns_mov_b32 exec_hi, 0\nbuffer_store_dword v2, v3, {SWS}, s73 offen\ns_mov_b64 exec, -1")

    def build(self):
        a = self.a
        self.prologue()
        self.e_front()
        a("L_attn:")
        self.attention()
        self.stamp(8)
        a(f"s_cmp_ge_u32 {sW}, 4\ns_cbranch_scc1 L_last")
        labs = [a.label("TL") for _ in range(4)]
        for w in range(1, 4):
            a(f"s_cmp_eq_u32 {sW}, {w}\ns_cbranch_scc1 {labs[w]}")
        for w in range(4):
            a(f"{labs[w]}:")
            self.tail(w >> 1, w & 1)
            a("s_branch L_fin")
        a("L_last:\ns_setprio 3")
        self.normalize(7, wait=False, gate="v_readfirstlane_b32 s73, v1\nv_sub_f32 v4, 1.0, v4\ns_cmp_lg_u32 s73, 3\ns_cbranch_scc1 L_fin")
        self.stamp(3)
        a("s_branch L_fin")
        a("L_lwave:")
        self.busy = 3
        self.l_front()
        self.l_mid()
        a("s_branch L_attn")
        self.fallback()
        a("L_bail:")
        if self.stamps:
            a(f"s_mov_b32 s{STAMPS[11]}, 0xdead0000")
        a("L_fin:")
        self.stamp(1, 6)
        if self.opt("padto", 0):
            a(f"L_pad:\ns_sleep 2\ns_memrealtime s[78:79]\ns_waitcnt lgkmcnt(0)\ns_sub_u32 s78, s78, s76\ns_cmp_lt_u32 s78, s80\ns_cbranch_scc1 L_pad")
        self.finish_stamps()
        a("L_end:\ns_endpgm")
        body = a.finish()
        tw = self.make_tables()
        assert tw.size == 2 * self.NTAB * 256
        tab = "\n".join(".long " + ",".join(f"{x:#x}" for x in tw[i:i+16]) for i in range(0, tw.size, 16))
        hdr = open("cdna_kernels/" + NAME + ".s.ref").read().split("; Override launch")[0]
        return f"""{hdr}; @launch grid=(256,1,1) block=(512,1,1) lds={LDS_BYTES}
.amdgcn_target "amdgcn-amd-amdhsa--gfx950"
.text
.globl {NAME}_kernel
.p2align 8
.type {NAME}_kernel,@function
{NAME}_kernel:
{body}
.section .rodata,"a"
.p2align 8
.type spectral_tables,@object
spectral_tables:
{tab}
.size spectral_tables, {2*self.NTAB*1024}
.p2align 6
.amdhsa_kernel {NAME}_kernel
  .amdhsa_next_free_vgpr 256
  .amdhsa_next_free_sgpr 102
  .amdhsa_accum_offset 256
  .amdhsa_group_segment_fixed_size 0
  .amdhsa_kernarg_size 96
  .amdhsa_user_sgpr_count 2
  .amdhsa_user_sgpr_kernarg_segment_ptr 1
  .amdhsa_system_sgpr_workgroup_id_x 1
.end_amdhsa_kernel
"""


if __name__ == "__main__":
    opts = sys.argv[2:]
    g = Gen(stamps=2 if "st2" in opts else 3 if "st3" in opts else 4 if "st4" in opts else 5 if "st5" in opts else 6 if "tot" in opts else int("stamps" in opts), cyc="cyc" in opts, opts=opts)
    src = g.build()
    open(sys.argv[1], "w").write(src)
    print("nops added:", g.a.added_nops, "lines:", len(src.splitlines()))
```

```python
import sys
import numpy as np
from asmlib import Asm
import model as M

NAME = "gated_mix__spectral_gfnet__grouped_kv_mqa__prompt"

WS_EPOCH = 0
WS_FKV = 0x50000
WS_FS = 0x58000
WS_FY = 0x60000
WS_GOS = 0x68000
WS_K16 = 0x10000
WS_KX = 0x20000
WS_VF = 0x30000
WS_DBG = 0x80000
WS_G = 0x100000
WS_T = 0x200000
WS_Y = 0x500000
WS_OF = 0x800000
WS_WT = 0xB00000
WS_SIZE = 0x1000000
OOB = 0x40000000
VPITCH = 640
TP = 4096 + 128
WP = 8192 + 128

XP = 1040
L_X = 0
L_X2 = 64 * XP
L_WQ0 = 74752
L_WQ1 = 111616
P2SZ = 9728
L_P2Q = 148480
L_P2KV = L_P2Q - P2SZ
L_MISC = 162816
L_CT = L_MISC - 2048
(C0A, C0B, C0C, C1, CX, CK, CE, CV, CY, S1, S2, S3, CN, CW, CF, CD, CG, S4, C0D, SA, XA, XB, YA, YB, CR, CL, CI) = (2048 + 4 * i for i in range(27))
L_G = L_MISC + 256
L_QS = L_WQ0
L_WO0 = 0
L_WO1 = 36864
L_Y = 0
L_EX = L_QS + 12288
L_WOX = L_EX + 16 * 2560
L_XCH = L_WOX + 9216
LDS_BYTES = 163840
assert L_XCH + 8192 <= L_CT and L_P2Q + P2SZ <= L_CT and L_P2Q + P2SZ <= L_MISC and L_P2KV >= L_WQ1 + 416 * 64

SX, SWQ, SKV, SG, SWS, SWO, SOUT, SWR, SWI, STB = (f"s[{a}:{a+3}]" for a in range(28, 68, 4))
sW, sP, sJ, sTAG, sSPIN = "s68", "s69", "s70", "s71", "s72"
STAMPS = [76, 77, 78, 79, 80, 81, 100, 101, 3, 10, 11, 24]
SPIN_MAX = 400000

f32bits = lambda v: int(np.float32(v).view(np.uint32))
QSCALE_BITS = f32bits(M.QSCALE)
LOG2E_BITS = f32bits(M.LOG2E)


def vr(a, n=1):
    return f"v{a}" if n == 1 else f"v[{a}:{a+n-1}]"


class Gen:
    AQ, AQX, AO, AK, AKX, AV, AS = 24, 28, 32, 88, 120, 128, 192
    vQ, vQX, vEX, vEX2, vK, vKX, vV, vCT = 78, 79, 80, 81, 82, 83, 4, 84
    vCT2 = vCT

    def __init__(self, stamps=0, cyc=False, opts=()):
        self.a = Asm()
        self.stamps = stamps
        self.clk = "s_memtime" if cyc else "s_memrealtime"
        self.opts = set(opts)
        self.busy = 3

    def opt(self, name, default):
        for o in self.opts:
            if o.startswith(name + "="):
                return int(o.split("=")[1])
        return default

    def _st(self, i):
        self.a(f"{self.clk} s[74:75]\ns_waitcnt lgkmcnt(0)\ns_mov_b32 s{STAMPS[i]}, s74")

    def stamp(self, i, level=1):
        if self.stamps == level:
            self._st(i)
        if self.opt("pid", -1) == i and self.opt("plev", 1) == level:
            l = self.a.label("PB")
            self.a(f"s_cmp_lg_u32 {sW}, {self.opt('pw', 0)}\ns_cbranch_scc1 {l}\ns_memrealtime s[78:79]\ns_waitcnt lgkmcnt(0)\n"
                   f"s_sub_u32 s80, s78, s76\ns_add_u32 s80, s80, {self.opt('padto', 0)}\n{l}:")

    def srd(self, srd, lo, size):
        b = int(srd[2:].split(":")[0])
        self.a(f"s_mov_b32 s{b}, s{lo}\ns_mov_b32 s{b+1}, s{lo+1}\ns_mov_b32 s{b+2}, {size}\ns_mov_b32 s{b+3}, 0x20000")

    def add1(self, off, base="v2"):
        self.a(f"s_mov_b64 exec, 1\nds_add_u32 {base}, v3 offset:{off}\ns_mov_b64 exec, -1")

    def wait(self, off, target, sleep=1, base="v2", idle=False):
        a = self.a
        l = a.label("LW"); d = a.label("LWD")
        if idle and "noidle" not in self.opts:
            a("s_setprio 0")
        a(f"{l}:\nds_read_b32 v1, {base} offset:{off}\ns_waitcnt lgkmcnt(0)\nv_readfirstlane_b32 s73, v1")
        a(f"s_cmp_ge_u32 s73, {target}\ns_cbranch_scc1 {d}")
        if sleep:
            a(f"s_sleep {sleep}")
        a(f"s_sub_u32 {sSPIN}, {sSPIN}, 1\ns_cbranch_scc0 {l}\ns_branch L_bail\n{d}:")
        if idle and "noidle" not in self.opts:
            a(f"s_setprio {self.busy}")

    def cmp_regs(self, regs, val, op="ne"):
        a = self.a
        a(f"v_cmp_{op}_u32 vcc, {val}, v{regs[0]}")
        for r in regs[1:]:
            a(f"v_cmp_{op}_u32 s[74:75], {val}, v{r}\ns_or_b64 vcc, vcc, s[74:75]")
        a("s_cmp_eq_u64 vcc, 0")

    def poll(self, loads, regs, sleep=2):
        a = self.a
        l = a.label("PL"); d = a.label("PD")
        a(f"{l}:")
        a(loads)
        a("s_waitcnt vmcnt(0)")
        self.cmp_regs(regs, sTAG)
        a(f"s_cbranch_scc1 {d}\ns_sleep {sleep}\ns_sub_u32 {sSPIN}, {sSPIN}, 1\ns_cbranch_scc0 {l}\ns_branch L_bail\n{d}:")

    def set_flag(self, soff):
        self.a(f"v_mov_b32 v1, {sTAG}\ns_mov_b64 exec, 1\nbuffer_store_dword v1, off, {SWS}, {soff} sc1\ns_mov_b64 exec, -1")

    def flag4(self, dst, idx, base):
        self.a(f"s_lshr_b32 {dst}, {idx}, 2\ns_lshl_b32 {dst}, {dst}, 7\ns_and_b32 s73, {idx}, 3\ns_lshl_b32 s73, s73, 2\n"
               f"s_add_u32 {dst}, {dst}, s73\ns_add_u32 {dst}, {dst}, {base}")

    def go_wait(self, base, vt, sleep):
        self.a(f"s_and_b32 s92, s2, 7\ns_lshl_b32 s92, s92, 7\ns_add_u32 s92, s92, {base}")
        self.poll(f"s_mov_b64 exec, 1\nbuffer_load_dword v{vt}, off, {SWS}, s92 sc1\ns_waitcnt vmcnt(0)\nv_readfirstlane_b32 s73, v{vt}\ns_mov_b64 exec, -1\nv_mov_b32 v{vt}, s73", [vt], sleep=sleep)

    def tag(self):
        self.a(f"s_mul_i32 {sTAG}, {sTAG}, 0x9E3779B1\ns_add_u32 {sTAG}, {sTAG}, 0x7F4A7C15")

    def prologue(self):
        a = self.a
        a(f"""
s_cmp_ge_u32 s2, 256
s_cbranch_scc1 L_end
s_load_dwordx16 s[4:19], s[0:1], 0
s_load_dwordx8 s[20:27], s[0:1], 64
v_lshrrev_b32 v1, 6, v0
v_and_b32 v0, 63, v0
v_readfirstlane_b32 {sW}, v1
s_and_b32 {sP}, s2, 31
s_lshr_b32 {sJ}, s2, 5
""")
        if self.stamps:
            a(f"{self.clk} s[74:75]")
        if self.opt("padto", 0):
            a(f"s_memrealtime s[76:77]\ns_mov_b32 s80, {self.opt('padto', 0)}")
        a(f"""
v_lshl_add_u32 v4, v1, 6, v0
v_mov_b32 v2, {L_CT}
v_mov_b32 v3, 1
v_lshlrev_b32 v7, 4, v0
s_mul_i32 s94, {sP}, 2304
s_mul_i32 s95, {sJ}, 144
s_lshl_b32 s91, {sJ}, 2
s_add_u32 s91, s91, {sW}
s_mov_b32 s30, 2359296
s_mov_b32 s31, 0x20000
s_mov_b32 {sSPIN}, {SPIN_MAX}
s_cmp_ge_u32 {sW}, 4
s_waitcnt lgkmcnt(0)
""")
        if self.opt("wsoff", 0):
            a(f"s_cselect_b32 s73, 1, 0\ns_add_u32 s26, s26, {self.opt('wsoff', 0) << 20}\ns_addc_u32 s27, s27, 0\ns_cmp_eq_u32 s73, 1")
        if self.stamps:
            a(f"s_mov_b32 s{STAMPS[0]}, s74")
            for r in STAMPS[1:]:
                a(f"s_mov_b32 s{r}, 0")
        a("s_cbranch_scc1 L_lwave")

    def kv_addr(self):
        a = self.a
        a(f"""
v_and_b32 v84, 31, v0
v_lshrrev_b32 v85, 5, v0
v_lshlrev_b32 v{self.vK}, 5, v84
v_lshl_add_u32 v{self.vK}, v85, 4, v{self.vK}
v_mov_b32 v86, {OOB}
v_lshlrev_b32 v{self.vKX}, 2, v0
v_subrev_u32 v87, 64, v{self.vK}
v_cmp_eq_u32 vcc, 20, v84
s_and_b32 s73, {sW}, 3
v_cndmask_b32 v87, v86, v87, vcc
v_cmp_gt_u32 vcc, 18, v84
s_lshl_b32 s96, s73, 14
v_cndmask_b32 v{self.vV}, v87, v{self.vK}, vcc
s_add_u32 s96, s96, {WS_K16}
s_lshl_b32 s97, s73, 11
s_add_u32 s97, s97, {WS_KX}
s_mul_i32 s98, s73, {32*VPITCH}
s_add_u32 s98, s98, {WS_VF}
""")

    def ld_k(self, t, slot):
        adv = "\ns_add_u32 s96, s96, 4096" if t % 4 == 3 else ""
        return (f"buffer_load_dwordx4 {vr(self.AK+4*slot,4)}, v{self.vK}, {SWS}, s96 offen offset:{1024*(t%4)} sc1" + adv,)

    def ld_x(self, t):
        return f"buffer_load_dword v{self.AKX+(t%8)//2}, v{self.vKX}, {SWS}, s97 offen offset:{128*t} sc1"

    def ld_v(self, t, slot):
        adv = f"\ns_add_u32 s98, s98, {4*VPITCH}" if t % 2 == 1 else ""
        o = 2 * VPITCH * (t % 2)
        return (f"buffer_load_dwordx4 {vr(self.AV+8*slot,4)}, v{self.vV}, {SWS}, s98 offen offset:{o} sc1",
                f"buffer_load_dwordx4 {vr(self.AV+8*slot+4,4)}, v{self.vV}, {SWS}, s98 offen offset:{o+VPITCH} sc1" + adv)

    NFIRST = 4
    NLD1 = 16

    def kv_loads(self, t0=0, t1=None):
        if t0 == 0:
            for t in range(0, 8, 2):
                self.a(self.ld_x(t))
        for t in range(t0, self.NFIRST if t1 is None else t1):
            for x in self.ld_k(t, t) + self.ld_v(t, t):
                self.a(x)

    def e_front(self):
        a = self.a
        a("s_setprio 3\ns_mov_b32 s28, s4\ns_mov_b32 s29, s5")
        for k in range(8):
            a(f"""
s_and_b32 s91, s91, 31
s_mul_i32 s90, s91, 73728
s_mul_i32 m0, s91, {XP}
s_add_u32 s90, s90, s94
s_add_u32 s91, s91, 4
buffer_load_dwordx4 v7, {SX}, s90 offen lds
s_add_u32 m0, m0, {32*XP - 1152}
s_nop 0
buffer_load_dwordx4 v7, {SX}, s90 offen offset:1152 lds
""")
        a("s_barrier")
        a(f"""
s_load_dword {sTAG}, s[26:27], {WS_EPOCH}
v_lshrrev_b32 v20, 3, v0
s_mov_b32 s73, 73728
v_mul_lo_u32 v21, v20, s73
v_lshrrev_b32 v22, 4, v0
v_xor_b32 v22, v22, v0
v_and_b32 v22, 7, v22
v_lshl_add_u32 v21, v22, 4, v21
s_and_b32 s90, {sW}, 1
s_mul_i32 s90, s90, {16*73728}
s_lshr_b32 s73, {sW}, 1
s_mul_i32 s73, s73, 1152
s_add_u32 s90, s90, s73
s_add_u32 s90, s90, s94
s_add_u32 s90, s90, 1024
s_lshl_b32 s91, {sW}, 11
s_add_u32 m0, s91, {L_X2}
v_xor_b32 v22, 64, v21
buffer_load_dwordx4 v21, {SX}, s90 offen lds
s_add_u32 m0, s91, {L_X2 + 1024}
s_add_u32 s90, s90, {8*73728}
buffer_load_dwordx4 v22, {SX}, s90 offen lds
s_cmp_lt_u32 {sJ}, 4
s_cselect_b32 s36, s14, s16
s_cselect_b32 s37, s15, s17
s_mov_b32 s38, 20736
s_mov_b32 s39, 0x20000
v_mul_u32_u24 v5, 36, v4
v_lshlrev_b32 v6, 1, v4
s_and_b32 s73, {sJ}, 3
s_lshl_b32 s92, s73, 3
""")
        self.srd(SG, 20, 1152)
        s = a.label("KV3")
        a(f"""
buffer_load_dwordx3 v[24:26], v5, {SKV}, s92 offen
buffer_load_ushort v27, v6, {SG}, 0 offen
v_add_u32 v5, {256*36}, v5
buffer_load_dwordx3 v[28:30], v5, {SKV}, s92 offen
buffer_load_ushort v31, v6, {SG}, 0 offen offset:512
s_cmp_gt_u32 {sW}, 0
s_cbranch_scc1 {s}
v_add_u32 v5, {256*36}, v5
buffer_load_dwordx3 v[40:42], v5, {SKV}, s92 offen
buffer_load_ushort v43, v6, {SG}, 0 offen offset:1024
{s}:
""")
        self.add1(CI)
        self.stamp(6, 3)
        self.srd(SWS, 26, WS_SIZE)
        a(f"""
v_lshrrev_b32 v7, 7, v4
v_lshlrev_b32 v7, 7, v7
v_lshl_add_u32 v7, v4, 4, v7
v_add_u32 v7, {L_P2KV}, v7
v_and_b32 v14, 15, v0
v_lshrrev_b32 v15, 4, v0
v_and_b32 v17, 31, v0
v_lshrrev_b32 v18, 5, v0
v_bfe_u32 v22, v0, 2, 2
v_lshlrev_b32 v22, 4, v22
v_and_b32 v23, 1, v0
v_lshl_add_u32 v22, v23, 3, v22
v_mul_u32_u24 v16, 2176, v15
v_add_u32 v16, v16, v22
v_lshl_add_u32 v12, v15, 7, v22
v_add_u32 v12, {512*16 + 512}, v12
v_add_u32 v19, {L_P2KV}, v16
v_add_u32 v10, {L_P2KV}, v12
v_add_u32 v16, {L_P2Q}, v16
v_add_u32 v12, {L_P2Q}, v12
s_lshl_b32 s73, {sW}, 4
v_add_u32 v21, s73, v14
v_mul_u32_u24 v20, {XP}, v21
v_lshl_add_u32 v20, v15, 8, v20
v_lshrrev_b32 v22, 1, v21
v_xor_b32 v22, v22, v15
v_and_b32 v22, 7, v22
v_lshlrev_b32 v22, 4, v22
v_lshl_add_u32 v11, v21, 7, v22
v_add_u32 v11, {L_X2}, v11
v_xor_b32 v9, 64, v11
s_lshl_b32 s90, {sP}, 1
s_lshr_b32 s73, {sW}, 1
s_add_u32 s90, s90, s73
s_and_b32 s91, {sW}, 1
s_mov_b32 s92, {(LOG2E_BITS | 0x80000000):#x}
s_lshl_b32 s99, {sW}, 6
s_add_u32 s99, s99, {L_G}
""")
        RG, XF, AK_ = 32, 160, 252
        def wrd(b1, b2, T, dst):
            base, off = (b1, T * 128) if T < 16 else (b2, (T - 16) * 512)
            a(f"ds_read_b64_tr_b16 {vr(dst,2)}, {base} offset:{off}\nds_read_b64_tr_b16 {vr(dst+2,2)}, {base} offset:{off+64}")
        def land():
            s = a.label("KW")
            a(f"s_waitcnt vmcnt(0)\nds_write_b128 v7, v[24:27]\nds_write_b128 v7, v[28:31] offset:{4096+256}")
            a(f"s_cmp_gt_u32 {sW}, 0\ns_cbranch_scc1 {s}\nds_write_b128 v7, v[40:43] offset:{8192+512}\n{s}:")
            self.stamp(1, 3)
            self.add1(CX)
            self.wait(CX, 4, sleep=0)
            self.tag()
            self.stamp(2, 3)
        def kv_gemm(swap):
            acc = vr(AK_, 4)
            def rd(T):
                wrd("v19", "v10", T, 44 + 4 * (T % 5))
                if T < 16:
                    a(f"ds_read_b128 {vr(XF+4*T,4)}, v20 offset:{T*16}")
                else:
                    a(f"ds_read_b128 {vr(XF+4*T,4)}, {'v11' if T == 16 else 'v9'}")
            for T in range(4):
                rd(T)
            for T in range(18):
                if T + 4 < 18:
                    rd(T + 4)
                a(f"s_waitcnt lgkmcnt({3 * (min(T + 5, 18) - T - 1)})")
                W, X = vr(44 + 4 * (T % 5), 4), vr(XF + 4 * T, 4)
                A, B = (X, W) if swap else (W, X)
                a(f"v_mfma_f32_16x16x32_bf16 {acc}, {A}, {B}, {'0' if T == 0 else acc}")
            self.add1(CK)
        kpath = a.label("EK"); done = a.label("EKD")
        a(f"s_cmp_lt_u32 {sJ}, 4\ns_cbranch_scc1 {kpath}")
        a(f"""
s_lshl_b32 s90, s90, 1
s_add_u32 s90, s90, s91
s_mul_i32 s90, s90, {VPITCH}
s_add_u32 s90, s90, {WS_VF}
s_sub_u32 s73, {sJ}, 4
s_lshl_b32 s73, s73, 2
v_add_u32 v36, s73, v14
v_cmp_eq_u32 vcc, 7, v14
v_lshrrev_b32 v37, 1, v15
v_cndmask_b32 v36, v36, 18, vcc
v_lshlrev_b32 v36, 5, v36
v_lshl_add_u32 v36, v37, 3, v36
v_and_b32 v37, 1, v15
v_lshl_add_u32 v36, v37, 4, v36
v_mov_b32 v37, 0x3f803f80
v_lshl_add_u32 v38, v15, 4, s99
s_mov_b32 s88, 0x000f000f
s_cmp_eq_u32 {sJ}, 7
s_cmov_b32 s88, 0x00bf00bf
""")
        land()
        kv_gemm(True)
        a(f"""
v_cvt_pk_bf16_f32 v22, v{AK_}, v{AK_+1}
v_cvt_pk_bf16_f32 v23, v{AK_+2}, v{AK_+3}
v_cndmask_b32 v22, v22, v37, vcc
v_cndmask_b32 v23, v23, v37, vcc
s_mov_b32 exec_lo, s88
s_mov_b32 exec_hi, s88
buffer_store_dwordx2 v[22:23], v36, {SWS}, s90 offen sc1
s_mov_b64 exec, -1
""")
        for r in range(4):
            a(f"v_mul_f32 v{AK_+r}, s92, v{AK_+r}\nv_exp_f32 v{AK_+r}, v{AK_+r}")
        for r in range(4):
            a(f"v_add_f32 v{AK_+r}, 1.0, v{AK_+r}\nv_rcp_f32 v{AK_+r}, v{AK_+r}")
        a(f"""
s_mov_b32 exec_lo, 0x00400040
s_mov_b32 exec_hi, 0x00400040
ds_write_b128 v38, {vr(AK_,4)}
s_branch {done}
{kpath}:
s_lshl_b32 s91, s91, 4
v_add_u32 v37, s91, v14
v_lshlrev_b32 v36, 5, v37
v_lshlrev_b32 v37, 2, v37
v_lshl_add_u32 v38, v14, 2, s99
s_lshl_b32 s88, s90, 10
s_lshl_b32 s73, {sJ}, 3
s_add_u32 s88, s88, s73
s_add_u32 s88, s88, {WS_K16}
s_lshl_b32 s90, s90, 7
s_add_u32 s90, s90, {WS_KX}
s_cmp_lg_u32 {sJ}, 3
s_cmov_b32 s90, {OOB}
s_mov_b32 s91, {QSCALE_BITS:#x}
""")
        land()
        kv_gemm(False)
        a(f"""
v_mul_f32 v39, s92, v{AK_+2}
v_mul_f32 v{AK_}, s91, v{AK_}
v_mul_f32 v{AK_+1}, s91, v{AK_+1}
v_mul_f32 v{AK_+2}, s91, v{AK_+2}
v_mul_f32 v{AK_+3}, s91, v{AK_+3}
v_cvt_pk_bf16_f32 v22, v{AK_}, v{AK_+1}
v_cvt_pk_bf16_f32 v23, v{AK_+2}, v{AK_+3}
s_mov_b64 exec, 0xffff
buffer_store_dwordx2 v[22:23], v36, {SWS}, s88 offen sc1
s_mov_b32 exec_lo, 0xffff0000
buffer_store_dword v22, v37, {SWS}, s90 offen sc1
v_exp_f32 v39, v39
s_nop 0
v_add_f32 v39, 1.0, v39
v_rcp_f32 v39, v39
s_nop 0
ds_write_b32 v38, v39
{done}:
s_mov_b64 exec, -1
""")
        self.stamp(7, 3)
        a(f"""
s_lshl_b32 s73, {sP}, 3
s_add_u32 s73, s73, {sJ}
s_lshl_b32 s73, s73, 4
s_add_u32 s91, s73, {WS_FKV}
v_bfe_u32 v22, v0, 2, 2
v_lshl_add_u32 v19, v18, 3, v22
v_lshlrev_b32 v19, 6, v19
v_bfe_u32 v22, v0, 4, 1
v_lshl_add_u32 v19, v22, 5, v19
v_and_b32 v22, 3, v0
v_lshl_add_u32 v19, v22, 3, v19
s_and_b32 s73, {sW}, 1
s_mul_i32 s73, s73, {L_WQ1 - L_WQ0}
s_add_u32 s73, s73, {L_WQ0}
v_add_u32 v19, s73, v19
s_lshr_b32 s73, {sW}, 1
s_lshl_b32 s73, s73, 5
v_add_u32 v21, s73, v17
v_mul_u32_u24 v13, {XP}, v21
v_lshl_add_u32 v13, v18, 4, v13
v_mul_u32_u24 v26, 48, v4
v_add_u32 v26, {L_QS + 36}, v26
v_lshrrev_b32 v22, 1, v21
v_xor_b32 v22, v22, v18
v_and_b32 v22, 7, v22
v_lshlrev_b32 v22, 4, v22
v_lshl_add_u32 v6, v21, 7, v22
v_add_u32 v6, {L_X2}, v6
v_xor_b32 v7, 32, v6
v_xor_b32 v8, 64, v6
v_xor_b32 v9, 0x60, v6
v_mul_u32_u24 v22, 48, v21
v_add_u32 v22, {L_QS}, v22
v_lshl_add_u32 v23, v18, 3, v22
v_mul_u32_u24 v24, 3044, v18
v_add_u32 v24, v24, v22
s_lshl_b32 s73, {sW}, 4
v_add_u32 v25, s73, v14
v_mul_u32_u24 v25, 48, v25
v_lshl_add_u32 v25, v15, 3, v25
v_add_u32 v25, {L_QS + 3*3072 + 20}, v25
v_mov_b32 v27, 0
v_lshlrev_b32 v28, 4, v0
s_lshl_b32 s93, {sW}, 10
s_add_u32 s93, s93, {WS_FKV}
""")
        self.kv_addr()
        RX, AM, AXQ = 64, 232, 248
        def rdm(t):
            b = RG + 8 * (t % 4)
            a(f"ds_read_b64_tr_b16 {vr(b,2)}, v19 offset:{t*1024}\nds_read_b64_tr_b16 {vr(b+2,2)}, v19 offset:{t*1024+256}")
            a(f"ds_read_b128 {vr(b+4,4)}, v13 offset:{t*32}" if t < 32 else f"ds_read_b128 {vr(b+4,4)}, v{6+t-32}")
        def mm(t):
            b = RG + 8 * (t % 4)
            a(f"v_mfma_f32_32x32x16_bf16 {vr(AM,16)}, {vr(b,4)}, {vr(b+4,4)}, {'0' if t == 0 else vr(AM,16)}")
        def stage(t0, t1):
            for t in range(t0, min(t0 + 3, t1)):
                rdm(t)
            for t in range(t0, t1):
                if t + 3 < t1:
                    rdm(t + 3)
                a(f"s_waitcnt lgkmcnt({3 * (min(t + 4, t1) - t - 1)})")
                mm(t)
        def kv_flag():
            nf = a.label("NF")
            a(f"s_waitcnt vmcnt(0)\ns_mov_b64 exec, 1\nds_add_rtn_u32 v1, v2, v3 offset:{CF}\ns_mov_b64 exec, -1\ns_waitcnt lgkmcnt(0)")
            a(f"v_readfirstlane_b32 s73, v1\ns_cmp_lg_u32 s73, 3\ns_cbranch_scc1 {nf}")
            self.set_flag("s91")
            a(f"{nf}:")
            self.stamp(3, 3)
        FA = self.opt("fa", 12)
        if FA == 0:
            kv_flag()
        self.wait(C0A, 2, sleep=0)
        self.stamp(4, 3)
        stage(0, 12)
        if FA == 12:
            kv_flag()
        self.add1(CE)
        self.wait(C0B, 2, sleep=0)
        flags = f"buffer_load_dword v84, v28, {SWS}, s93 offen sc1"
        stage(12, 20)
        self.wait(C0D, 2, sleep=0)
        stage(20, 28)
        self.wait(C0C, 2, sleep=0)
        self.stamp(9, 3)
        seq = []
        xs = list(range(18))
        for t in range(28, 36):
            seq.append(("m", t))
            for _ in range(3 if t < 30 else 2):
                seq.append(("x", xs.pop(0)))
        assert not xs
        cost = lambda it: 3 if it[0] == "m" else 2
        def issue(it):
            if it[0] == "m": rdm(it[1])
            else: wrd("v16", "v12", it[1], RX + 4 * (it[1] % 3))
        AH = 3
        for it in seq[:AH]:
            issue(it)
        a(f"ds_read_b32 v31, v2 offset:{CE}")
        for i, it in enumerate(seq):
            ahead = sum(cost(x) for x in seq[i + 1:i + AH]) + (1 if i < AH else 0)
            a(f"s_waitcnt lgkmcnt({ahead})")
            if it[0] == "m":
                mm(it[1])
            else:
                T = it[1]
                a(f"v_mfma_f32_16x16x32_bf16 {vr(AXQ,4)}, {vr(RX+4*(T%3),4)}, {vr(XF+4*T,4)}, {'0' if T == 0 else vr(AXQ,4)}")
            if i == self.opt("fp", 14):
                a(flags)
            if i + AH < len(seq):
                issue(seq[i + AH])
        self.stamp(8, 3)
        miss = a.label("KM")
        a("s_waitcnt vmcnt(0)")
        self.cmp_regs([84], sTAG)
        a(f"s_cselect_b32 s89, 1, 0\ns_cbranch_scc0 {miss}")
        self.kv_loads(0, 2)
        a(f"{miss}:")
        self.stamp(11, 3)
        ok = a.label("CEOK")
        a(f"v_readfirstlane_b32 s73, v31\ns_cmp_ge_u32 s73, 4\ns_cbranch_scc1 {ok}")
        self.wait(CE, 4, sleep=0)
        a(f"{ok}:")
        a(f"ds_write_b32 v26, v27\nv_cvt_pk_bf16_f32 v{AXQ}, v{AXQ}, v{AXQ+1}\nv_cvt_pk_bf16_f32 v{AXQ+1}, v{AXQ+2}, v{AXQ+3}")
        a(f"s_mov_b32 exec_hi, 0\nds_write2_b32 v25, v{AXQ}, v{AXQ+1} offset0:0 offset1:1\ns_mov_b64 exec, -1")
        m1 = a.label("QM1"); md = a.label("QMD")
        a(f"s_bitcmp1_b32 {sW}, 0\ns_cbranch_scc1 {m1}")
        off = lambda c: (c // 18) * 3072 + (c % 18) * 2
        for m in range(2):
            if m == 1:
                a(f"s_branch {md}\n{m1}:")
            for k in range(8):
                c0 = 32 * m + 8 * (k // 2) + 2 * (k % 2)
                d = off(c0 + 4) - off(c0)
                assert d in (8, 3044)
                a(f"v_cvt_pk_bf16_f32 v{AM+k}, v{AM+2*k}, v{AM+2*k+1}")
                a(f"ds_write_b32 {'v23' if d == 8 else 'v24'}, v{AM+k} offset:{off(c0)}")
        a(f"{md}:")
        self.add1(C1)
        have = a.label("KH")
        a(f"s_cmp_eq_u32 s89, 1\ns_cbranch_scc1 {have}")
        self.poll(flags, [84], sleep=12)
        self.kv_loads(0, 2)
        a(f"{have}:")
        self.kv_loads(2)
        self.tail_addr()
        self.stamp(10, 3); self.stamp(10)
        a(f"s_setprio 2\ns_mov_b32 s99, {OOB}\nv_mov_b32 v7, v2")

    def tail_addr(self):
        self.a(f"""
s_lshr_b32 s88, {sW}, 1
s_and_b32 s89, {sW}, 1
v_lshrrev_b32 v32, 5, v0
v_and_b32 v33, 15, v0
v_lshrrev_b32 v34, 4, v0
v_bfe_u32 v35, v0, 2, 2
v_and_b32 v36, 3, v0
v_and_b32 v37, 1, v34
v_and_b32 v38, 1, v0
v_lshlrev_b32 v39, 2, v38
v_lshl_add_u32 v39, v37, 1, v39
v_lshrrev_b32 v40, 1, v36
v_add_u32 v39, v39, v40
s_mul_i32 s73, s88, {L_WO1 - L_WO0}
v_lshl_add_u32 v39, v39, 3, s73
v_lshl_add_u32 v6, v32, 2, v35
v_lshl_add_u32 v6, v6, 6, v39
v_lshrrev_b32 v40, 1, v35
v_mul_u32_u24 v40, 72, v40
v_and_b32 v41, 1, v35
v_add3_u32 v40, v40, v41, 16
v_lshl_add_u32 v9, v40, 6, v39
v_mul_u32_u24 v41, 18432, v32
v_add_u32 v9, v9, v41
s_mov_b32 s73, {L_WOX}
v_lshl_add_u32 v38, v38, 3, s73
v_mul_u32_u24 v11, 288, v37
v_add_u32 v11, v11, v40
v_lshl_add_u32 v11, v11, 4, v38
v_mul_u32_u24 v10, 72, v32
v_lshl_add_u32 v10, v37, 2, v10
v_add_u32 v10, v10, v35
v_lshl_add_u32 v10, v10, 4, v38
v_lshlrev_b32 v12, 4, v33
v_lshl_add_u32 v12, v37, 9, v12
v_lshl_add_u32 v14, v32, 10, v12
v_cmp_gt_u32 vcc, 32, v0
v_mov_b32 v40, {OOB}
s_lshl_b32 s73, s88, 8
v_add_u32 v12, s73, v14
v_cndmask_b32 v13, v40, v12, vcc
v_cmp_gt_u32 vcc, 8, v33
v_lshrrev_b32 v15, 3, v0
v_mul_u32_u24 v15, {TP}, v15
v_cndmask_b32 v14, v40, v14, vcc
v_lshlrev_b32 v40, 2, v37
v_xor_b32 v40, v40, v0
v_and_b32 v40, 7, v40
v_lshl_add_u32 v15, v40, 4, v15
v_bfe_u32 v40, v0, 3, 1
v_xor_b32 v40, s89, v40
v_lshlrev_b32 v40, 6, v40
v_lshl_add_u32 v40, v36, 3, v40
v_lshl_add_u32 v40, v35, 7, v40
v_lshl_add_u32 v16, v32, 10, v40
v_lshl_add_u32 v16, v37, 5, v16
v_lshl_add_u32 v17, v34, 10, v40
s_lshl_b32 s73, s88, 5
v_add_u32 v17, s73, v17
s_mov_b32 s73, 73728
v_and_b32 v40, 31, v0
v_mul_lo_u32 v18, v40, s73
v_lshl_add_u32 v18, v32, 5, v18
v_mul_lo_u32 v19, v33, s73
v_lshl_add_u32 v19, v34, 3, v19
""")

    def panel_setup(self, nw, va=14):
        self.a(f"""
v_lshrrev_b32 v{va}, 2, v0
v_mul_u32_u24 v{va}, 1152, v{va}
v_and_b32 v{va+1}, 3, v0
v_lshl_add_u32 v{va}, v{va+1}, 4, v{va}
v_mul_u32_u24 v{va+1}, 1152, v0
s_and_b32 s73, {sW}, {nw-1}
s_mul_i32 s84, s73, {16*1152}
s_add_u32 s84, s84, s95
s_lshl_b32 s85, s73, 10
""")

    def panel_loads(self, srd, l0, l1, lx, padded, end, nw, va=14, rotate=False):
        a = self.a
        lp = a.label("PNL")
        if rotate:
            a(f"s_lshr_b32 s73, {sP}, 3\ns_mul_i32 s82, s73, {8*1024}\ns_add_u32 s85, s85, s82\ns_mul_i32 s82, s73, {8*16*1152}\ns_add_u32 s84, s84, s82\ns_mov_b32 s88, {end//nw - 1}")
        a(f"""
{lp}:
s_add_u32 m0, s85, {l0}
s_add_u32 s83, s84, 128
buffer_load_dwordx4 v{va}, {srd}, s84 offen lds
s_add_u32 m0, s85, {l1 - 64}
s_lshr_b32 s82, s85, 2
buffer_load_dwordx4 v{va}, {srd}, s84 offen offset:64 lds
""")
        if padded:
            a("s_lshr_b32 s73, s85, 13\ns_lshl_b32 s73, s73, 7\ns_add_u32 s82, s82, s73")
        a(f"""
s_add_u32 m0, s82, {lx}
s_mov_b64 exec, 0xffff
buffer_load_dwordx4 v{va+1}, {srd}, s83 offen lds
s_mov_b64 exec, -1
s_add_u32 s85, s85, {1024*nw}
s_add_u32 s84, s84, {16*nw*1152}
s_cmp_lt_u32 s85, {1024*end}
""")
        if rotate:
            a(f"s_cselect_b32 s82, 0, {1024*end}\ns_cselect_b32 s83, 0, {16*1152*end}\ns_sub_u32 s85, s85, s82\ns_sub_u32 s84, s84, s83\ns_sub_u32 s88, s88, 1\ns_cbranch_scc0 {lp}")
        else:
            a(f"s_cbranch_scc1 {lp}")

    def l_front(self):
        a = self.a
        a(f"""
s_load_dword {sTAG}, s[26:27], {WS_EPOCH}
v_lshl_add_u32 v5, v0, 2, v2
v_mov_b32 v6, 0
ds_write_b32 v5, v6 offset:2048
v_lshlrev_b32 v5, 3, v4
v_add_u32 v5, {L_CT - 2048}, v5
v_mov_b32 v7, 0
ds_write_b64 v5, v[6:7]
v_mov_b32 v12, 0
v_mov_b32 v13, 0
v_mov_b32 v14, 0
v_mov_b32 v15, 0
s_sub_u32 s99, {sW}, 4
v_and_b32 v18, 31, v0
v_lshrrev_b32 v19, 5, v0
s_lshl_b32 s89, s99, 3
s_add_u32 s89, s89, {sJ}
s_cmp_ge_u32 s89, 18
s_cselect_b32 s89, 99, s89
v_bfe_u32 v20, v0, 2, 1
v_lshlrev_b32 v20, 4, v20
v_bfe_u32 v21, v0, 3, 2
v_lshl_add_u32 v20, v21, 2, v20
v_and_b32 v21, 3, v0
v_add_u32 v20, v20, v21
""")
        if "noipf" not in self.opts:
            n4 = a.label("NPF")
            a(f"""
s_cmp_lg_u32 {sW}, 6
s_cbranch_scc1 {n4}
s_getpc_b64 s[64:65]
L_pc0:
s_sub_u32 s64, s64, L_pc0-{NAME}_kernel
s_subb_u32 s65, s65, 0
s_mov_b32 s66, L_end-{NAME}_kernel
s_mov_b32 s67, 0x20000
s_lshr_b32 s73, s2, 3
v_lshlrev_b32 v8, 12, v0
s_lshl_b32 s73, s73, 7
buffer_load_dword v9, v8, {STB}, s73 offen
s_getpc_b64 s[64:65]
s_add_u32 s64, s64, spectral_tables@rel32@lo+4
s_addc_u32 s65, s65, spectral_tables@rel32@hi+12
s_mov_b32 s66, {2*self.NTAB*1024}
s_nop 1
buffer_load_dword v10, v8, {STB}, s73 offen
{n4}:
""")
        self.srd(SWS, 26, WS_SIZE)
        self.srd(SWQ, 12, 663552)
        if "qpf" in self.opts:
            n7 = a.label("NQP")
            a(f"s_cmp_lg_u32 {sW}, 7\ns_cbranch_scc1 {n7}\ns_lshr_b32 s73, s2, 3\ns_mul_i32 s73, s73, 20736\nv_lshlrev_b32 v8, 7, v0")
            a(f"buffer_load_dword v9, v8, {SWQ}, s73 offen\ns_add_u32 s73, s73, 8192\nbuffer_load_dword v10, v8, {SWQ}, s73 offen")
            a(f"s_add_u32 s73, s73, 8192\ns_mov_b32 exec_hi, 3\nbuffer_load_dword v11, v8, {SWQ}, s73 offen\ns_mov_b64 exec, -1\n{n7}:")
        FPRE = self.opt("fpre", 8)
        def fsetup():
            a(f"""
s_lshl_b32 s73, s89, 5
v_add_u32 v44, s73, v18
v_lshrrev_b32 v45, 1, v44
v_and_b32 v46, 1, v44
v_cmp_eq_u32 vcc, 1, v44
v_mov_b32 v47, 288
v_cndmask_b32 v45, v45, v47, vcc
v_cndmask_b32 v46, v46, 0, vcc
v_and_b32 v47, 1, v45
v_lshlrev_b32 v47, 31, v47
v_or_b32 v17, 1.0, v47
v_cvt_f32_u32 v45, v45
v_cvt_f32_u32 v46, v46
v_mul_f32 v45, {f32bits(1/576):#x}, v45
v_mul_f32 v46, 0x3e800000, v46
v_lshlrev_b32 v47, 3, v19
v_cvt_f32_u32 v47, v47
v_fma_f32 v46, v47, v45, v46
v_mul_f32 v55, 0x41800000, v45
""")
            for jj in range(8):
                a(f"s_mov_b32 s73, {f32bits(jj):#x}\nv_fma_f32 v{56+jj}, s73, v45, v46")
        def fgen(t):
            if t:
                a(f"s_mov_b32 s73, {f32bits(t):#x}")
            for jj in range(8):
                if t:
                    a(f"v_fma_f32 v{64+jj}, s73, v55, v{56+jj}\nv_cos_f32 v{64+jj}, v{64+jj}")
                else:
                    a(f"v_cos_f32 v{64+jj}, v{56+jj}")
            for k in range(4):
                a(f"v_cvt_pk_bf16_f32 v{104+4*t+k}, v{64+2*k}, v{65+2*k}")
        a("s_waitcnt lgkmcnt(0)\ns_barrier")
        self.tag()
        npre = a.label("NPRE"); n7 = a.label("NW7")
        a(f"v_mov_b32 v23, 0\ns_mov_b32 s98, {OOB}")
        if "wearly" in self.opts:
            a(f"s_cmp_lg_u32 {sW}, 7\ns_cbranch_scc1 {n7}")
            self.wt_loads()
        a(f"{n7}:\ns_cmp_eq_u32 s89, 99\ns_cbranch_scc1 {npre}")
        fsetup()
        for t in range(FPRE):
            fgen(t)
        a(f"{npre}:")
        wqd = a.label("WQD")
        a(f"s_cmp_lt_u32 {sW}, 6\ns_cbranch_scc1 {wqd}")
        self.panel_setup(2)
        self.wait(CI, 4, sleep=0)
        self.panel_loads(SWQ, L_WQ0, L_WQ1, L_P2Q, True, 20, 2)
        a("s_waitcnt vmcnt(12)")
        self.add1(C0A)
        self.panel_loads(SWQ, L_WQ0, L_WQ1, L_P2Q, True, 26, 2)
        self.wait(CK, 4, sleep=0)
        self.panel_loads(SWQ, L_WQ0, L_WQ1, L_P2Q, True, 36, 2)
        self.stamp(6, 3)
        a("s_waitcnt vmcnt(24)")
        self.add1(C0B)
        a("s_waitcnt vmcnt(12)")
        self.add1(C0D)
        if "wmid" in self.opts:
            n7 = a.label("NM7"); d7 = a.label("DM7")
            a(f"s_cmp_lg_u32 {sW}, 7\ns_cbranch_scc1 {n7}")
            self.wt_loads()
            a(f"s_waitcnt vmcnt(16)\ns_branch {d7}\n{n7}:\ns_waitcnt vmcnt(0)\n{d7}:")
        else:
            a("s_waitcnt vmcnt(0)")
        self.add1(C0C)
        self.stamp(1, 3)
        a(f"{wqd}:")
        nod = a.label("NOD")
        a(f"s_cmp_eq_u32 s89, 99\ns_cbranch_scc1 {nod}")
        for t in range(FPRE, 18):
            fgen(t)
        self.stamp(9, 3)
        a(f"""
v_mul_u32_u24 v25, {XP}, v20
v_lshl_add_u32 v25, v19, 4, v25
v_lshrrev_b32 v22, 1, v20
v_xor_b32 v22, v22, v19
v_and_b32 v22, 7, v22
v_lshlrev_b32 v22, 4, v22
v_lshl_add_u32 v6, v20, 7, v22
v_add_u32 v6, {L_X2}, v6
v_xor_b32 v7, 32, v6
v_xor_b32 v8, 64, v6
v_xor_b32 v9, 0x60, v6
v_mul_u32_u24 v22, {TP}, v18
v_lshl_add_u32 v22, v19, 5, v22
s_mul_i32 s90, s89, {32*TP}
s_lshl_b32 s73, {sP}, 7
s_add_u32 s90, s90, s73
s_add_u32 s90, s90, {WS_T}
""")
        RG = 44
        def frag(t, n, q):
            return vr(RG + 16 * (t % 3) + 8 * n + 4 * q, 4)
        def rd(t):
            for n in range(2):
                for q in range(2):
                    ks = t + 18 * q
                    if ks < 32:
                        a(f"ds_read_b128 {frag(t,n,q)}, v25 offset:{n*32*XP + ks*32}")
                    else:
                        a(f"ds_read_b128 {frag(t,n,q)}, v{6+ks-32} offset:{n*4096}")
        def dft(t0, t1):
            for t in range(t0, min(t0 + 2, t1)):
                rd(t)
            for t in range(t0, t1):
                if t + 2 < t1:
                    rd(t + 2)
                a(f"s_waitcnt lgkmcnt({4 * (min(t+3, t1) - t - 1)})")
                for n in range(2):
                    for q in range(2):
                        acc = vr(176 + 32 * n + 16 * q, 16)
                        a(f"v_mfma_f32_32x32x16_bf16 {acc}, {frag(t,n,q)}, {vr(104+4*t,4)}, {'0' if t == 0 else acc}")
        DPRE = self.opt("dpre", 14)
        if DPRE:
            self.wait(CK, 4)
            dft(0, DPRE)
        go6 = a.label("GO6")
        if "six" in self.opts:
            a(f"s_cmp_eq_u32 {sW}, 6\ns_cbranch_scc1 {go6}")
        a("s_setprio 3")
        self.wait(C1, 4)
        a(f"{go6}:")
        self.stamp(3, 3)
        dft(DPRE, 18)
        a("s_setprio 3")
        self.stamp(8, 3)
        self.wait(*((CL, 1) if "word" in self.opts else (CV, 4)), sleep=2)
        for n in range(2):
            b = 176 + 32 * n
            for r in range(16):
                a(f"v_fma_f32 v{b+r}, v17, v{b+16+r}, v{b+r}")
            for k in range(8):
                a(f"v_cvt_pk_bf16_f32 v{b+k}, v{b+2*k}, v{b+2*k+1}")
            a(f"buffer_store_dwordx4 {vr(b,4)}, v22, {SWS}, s90 offen offset:{64*n} sc1")
            a(f"buffer_store_dwordx4 {vr(b+4,4)}, v22, {SWS}, s90 offen offset:{64*n+16} sc1")
        a(f"{nod}:")
        n6 = a.label("N6"); n7 = a.label("N7")
        a(f"s_cmp_eq_u32 {sW}, 7\ns_cbranch_scc1 {n7}\ns_cmp_lg_u32 {sW}, 6\ns_cbranch_scc1 {n6}\ns_setprio 3")
        self.wait(*((CL, 1) if "word" in self.opts else (CV, 4)), sleep=2)
        self.poison()
        a(f"{n6}:\ns_waitcnt vmcnt(0)")
        self.add1(CD)
        self.stamp(4, 3); self.stamp(4)
        a(f"{n7}:")

    def g_gen(self):
        a = self.a
        N = 1.0 / (M.S * M.D)
        skip = a.label("GS"); nx = a.label("GNX"); nk = a.label("GNK")
        assert all((f * 1821) >> 16 == f // 36 for f in range(864))
        assert all((f * 21846) >> 16 == f // 3 for f in range(24))
        a(f"""
s_mov_b32 s99, {OOB}
s_cmp_ge_u32 s2, 216
s_cbranch_scc1 {skip}
s_lshl_b32 s90, s2, 2
s_lshl_b32 s99, s2, 12
s_add_u32 s99, s99, {WS_G}
s_mul_i32 s91, s90, 1821
s_lshr_b32 s91, s91, 16
s_mul_i32 s73, s91, 36
s_sub_u32 s92, s90, s73
s_mul_i32 s93, s91, 21846
s_lshr_b32 s93, s93, 16
s_mul_i32 s73, s93, 3
s_sub_u32 s91, s91, s73
s_mul_i32 s93, s93, 72
s_lshl_b32 s73, s91, 5
s_add_u32 s93, s93, s73
v_mov_b32 v44, v20
s_cmp_lg_u32 s91, 2
s_cbranch_scc1 {nx}
v_mov_b32 v44, v18
{nx}:
v_add_u32 v44, s93, v44
s_lshl_b32 s73, s92, 3
v_lshl_add_u32 v45, v19, 2, s73
v_mul_u32_u24 v45, v45, v44
v_mul_u32_u24 v47, 5, v44
s_mov_b32 s73, {f32bits(1/576):#x}
s_mov_b32 s93, {f32bits(2*N):#x}
""")
        for fr in range(4):
            for cq in range(4):
                a(f"v_cvt_f32_u32 v46, v45\nv_mul_f32 v46, s73, v46\nv_fract_f32 v46, v46")
                a(f"v_cos_f32 v{48+2*cq}, v46\nv_sin_f32 v{49+2*cq}, v46")
                a("v_add_u32 v45, v45, v44" if cq < 3 else "v_add_u32 v45, v45, v47")
            for cq in range(4):
                a(f"v_mul_f32 v{48+2*cq}, s93, v{48+2*cq}\nv_mul_f32 v{49+2*cq}, s93, -v{49+2*cq}")
            if fr == 0:
                a(f"""
s_cmp_lg_u32 s92, 0
s_cbranch_scc1 {nk}
s_mov_b32 exec_hi, 0
v_mov_b32 v48, {f32bits(N):#x}
v_lshlrev_b32 v49, 31, v44
v_or_b32 v49, v48, v49
s_mov_b64 exec, -1
{nk}:
""")
            for k in range(4):
                a(f"v_cvt_pk_bf16_f32 v{240+4*fr+k}, v{48+2*k}, v{49+2*k}")
        a(f"{skip}:")

    WB = 112

    def poison(self):
        a = self.a
        a(f"v_lshlrev_b32 v24, 4, v0\nv_mov_b32 v28, -1\nv_mov_b32 v29, -1\nv_mov_b32 v30, -1\nv_mov_b32 v31, -1")
        a(f"s_mul_i32 s90, {sP}, {8*9216}\ns_add_u32 s90, s90, {WS_OF}\ns_mul_i32 s91, {sJ}, 9216\ns_add_u32 s91, s91, s90\ns_add_u32 s91, s91, 8192")
        a(f"buffer_store_dwordx4 v[28:31], v24, {SWS}, s91 offen sc1\ns_lshl_b32 s73, {sJ}, 10\ns_add_u32 s90, s90, s73")
        for i in range(8):
            a(f"buffer_store_dwordx4 v[28:31], v24, {SWS}, s90 offen sc1\ns_add_u32 s90, s90, 9216")

    def wt_loads(self):
        a = self.a
        self.srd(SWR, 6, 2048 * 578)
        self.srd(SWI, 8, 2048 * 578)
        a(f"""
v_and_b32 v26, 7, v0
v_lshrrev_b32 v27, 3, v0
v_mul_u32_u24 v22, 578, v26
v_mad_u32_u24 v22, v27, 18, v22
s_lshr_b32 s93, s2, 6
s_bfe_u32 s92, s2, 0x20004
s_and_b32 s88, s2, 15
s_lshl_b32 s90, s88, 7
s_lshl_b32 s73, s92, 3
s_add_u32 s90, s90, s73
s_mul_i32 s90, s90, 578
s_mul_i32 s73, s93, 144
s_add_u32 s90, s90, s73
""")
        for jr in range(4):
            for ri, srd in enumerate((SWR, SWI)):
                b = self.WB + 24 * ri + 6 * jr
                a(f"buffer_load_dwordx4 {vr(b,4)}, v22, {srd}, s90 offen\nbuffer_load_dword v{b+4}, v22, {srd}, s90 offen offset:16")
            if jr < 3:
                a(f"s_add_u32 s90, s90, {32*578}")
        a(f"""
s_mov_b32 s73, {9*WP}
v_mul_lo_u32 v23, v27, s73
v_lshl_add_u32 v23, v26, 4, v23
s_mul_i32 s98, s93, {72*WP}
s_lshl_b32 s73, s88, 8
s_add_u32 s98, s98, s73
s_and_b32 s73, s92, 1
s_lshl_b32 s73, s73, 7
s_add_u32 s98, s98, s73
s_lshr_b32 s73, s92, 1
s_lshl_b32 s73, s73, 12
s_add_u32 s98, s98, s73
s_add_u32 s98, s98, {WS_WT}
""")

    def wt_stores(self):
        a = self.a
        last = a.label("WL")
        a("s_mov_b32 s92, 0x05040100\ns_mov_b32 s93, 0x07060302")
        for x in range(10):
            if x == 9:
                a(f"s_cmp_lt_u32 s2, 192\ns_cbranch_scc1 {last}\ns_mov_b32 exec_lo, 0\ns_mov_b32 exec_hi, 0xff000000")
            t = self.WB + 48 + 4 * (x % 3)
            for ri in range(2):
                for pr in range(2):
                    lo = self.WB + 24 * ri + 12 * pr + x // 2
                    a(f"v_perm_b32 v{t+2*ri+pr}, v{lo+6}, v{lo}, {'s93' if x % 2 else 's92'}")
            a(f"buffer_store_dwordx4 {vr(t,4)}, v23, {SWS}, s98 offen sc1\ns_add_u32 s98, s98, {WP}")
        a(f"s_mov_b64 exec, -1\n{last}:")

    def s_flag(self):
        a = self.a
        self.g_gen()
        a("s_setprio 3\nv_lshlrev_b32 v24, 4, v0")
        self.wait(CV, 4, sleep=2)
        self.stamp(3, 3)
        if "wearly" not in self.opts and "wmid" not in self.opts:
            self.wt_loads()
        self.add1(CL)
        self.stamp(8, 3)
        a("s_waitcnt vmcnt(0)")
        self.stamp(9, 3)
        self.wt_stores()
        for fr in range(4):
            a(f"buffer_store_dwordx4 {vr(240+4*fr,4)}, v24, {SWS}, s99 offen offset:{1024*fr} sc1")
        self.stamp(10, 3)
        self.flag4("s91", "s2", WS_FS)
        a("s_waitcnt vmcnt(0)")
        self.stamp(11, 3)
        self.wait(CD, 3, sleep=2)
        self.set_flag("s91")
        self.add1(CW)
        self.stamp(6); self.stamp(2, 3)
        self.wait(CR, 4, sleep=4)
        self.stage2_tables()

    def attention(self):
        a = self.a
        K0, KX0, V0, S0, O0, Q0, QX0 = self.AK, self.AKX, self.AV, self.AS, self.AO, self.AQ, self.AQX
        a(f"""
v_and_b32 v84, 31, v0
v_lshrrev_b32 v85, 5, v0
s_lshr_b32 s88, {sW}, 2
s_mul_i32 s73, s88, 6144
s_add_u32 s73, s73, {L_QS}
v_mul_u32_u24 v{self.vQ}, 48, v84
v_add_u32 v{self.vQ}, s73, v{self.vQ}
v_add_u32 v{self.vQX}, 32, v{self.vQ}
v_lshl_add_u32 v{self.vQ}, v85, 4, v{self.vQ}
s_and_b32 s73, {sW}, 3
s_mul_i32 s73, s73, 2560
s_add_u32 s73, s73, {L_EX}
v_lshl_add_u32 v{self.vEX}, v0, 4, s73
s_add_u32 s73, s73, 2048
v_lshl_add_u32 v{self.vEX2}, v0, 3, s73
s_lshl_b32 s73, s88, 10
s_add_u32 s73, s73, {L_CT}
v_lshl_add_u32 v{self.vCT}, v0, 2, s73
s_mul_i32 s73, s88, {CN - C1}
v_add_u32 v86, s73, v2
v_mov_b32 v{QX0+1}, 0
v_mov_b32 v{QX0+2}, 0
""")
        self.wait(C1, 4, sleep=0)
        self.stamp(5); self.stamp(5, 3); self.stamp(1, 5)
        qmain = lambda q: f"ds_read_b128 {vr(Q0,4)}, v{self.vQ} offset:{1536*(q%4)}"
        qx = lambda q: f"ds_read_b32 v{QX0}, v{self.vQX} offset:{1536*(q%4)}\nds_read_b32 v{QX0+3}, v{self.vQX} offset:{1536*(q%4)}"
        a(qmain(0)); a(qx(0))
        keys = lambda kind, t: [("K", t)] if kind == "K" else [("V0", t), ("V1", t)]
        issued = [("X", t) for t in range(0, 8, 2)]
        for t in range(self.NFIRST):
            issued += keys("K", t) + keys("V", t)
        state = {"done": 0}
        def need(*ks):
            idx = max(issued.index(k) for k in ks) + 1
            if idx > state["done"]:
                state["done"] = idx
                return [f"s_waitcnt vmcnt({len(issued) - idx})"]
            return []
        slots = {}
        def put(g, name, *items):
            slots.setdefault((g, name), []).extend(items)
        def put_loads(kind, t, where):
            ins = self.ld_k(t, t % 8) if kind == "K" else self.ld_v(t, t % 8)
            for x, key, (g, name) in zip(ins, keys(kind, t), where):
                put(g, name, (key, x))
        for t in range(self.NFIRST, 8):
            g = t - self.NFIRST
            put_loads("K", t, [(g, "A")])
            put_loads("V", t, [(g, "B"), (g, "D")])
        for t in range(8):
            g = 24 + (3 * t) // 2
            put_loads("K", 8 + t, [(g, "D")])
            if t % 2 == 0:
                put(g, "B", (("X", 8 + t), self.ld_x(8 + t)))
            put_loads("V", 8 + t, [(g + 1, "A"), (g + 1, "B")])
        def slot(g, name):
            out = []
            for it in slots.get((g, name), []):
                if isinstance(it, tuple):
                    issued.append(it[0]); out.append(it[1])
                else:
                    out.append(it)
            return out
        sreg = lambda g: S0 + 16 * (g % 4)
        oreg = lambda ps: O0 + 10 * (ps % 4)
        def qk16(g):
            return f"v_mfma_f32_32x32x16_bf16 {vr(sreg(g),16)}, {vr(K0+4*(g%8),4)}, {vr(Q0,4)}, {vr(sreg(g),16)}"
        def qkx(g):
            i = (g % 8) // 2
            return f"v_mfma_f32_32x32x4_2b_bf16 {vr(sreg(g),32)}, {vr(KX0+(i&~1),2)}, {vr(QX0+2*(i%2),2)}, 0"
        def pv(g, u):
            o = vr(oreg(g // 8), 16)
            c = "0" if (g // 8 < 4 and g % 8 == 0 and u == 0) else o
            return f"v_mfma_f32_32x32x16_bf16 {o}, {vr(V0+8*(g%8)+4*u,4)}, {vr(sreg(g)+4*u,4)}, {c}"
        kt = lambda g: (g % 8) + (8 if g >= 32 else 0)
        xneed = lambda g: need(("X", kt(g)))
        def export(q):
            o = O0 + 10 * q
            return [f"ds_write_b128 v{self.vEX}, {vr(o,4)} offset:{10240*q}", f"ds_write_b128 v{self.vEX}, {vr(o+4,4)} offset:{10240*q+1024}",
                    f"ds_write_b64 v{self.vEX2}, {vr(o+8,2)} offset:{10240*q}",
                    f"ds_add_u32 v{self.vCT}, v3 offset:{256*q}"]
        for x in need(("X", 6)) + ["s_waitcnt lgkmcnt(0)", qkx(0)] + need(("K", 1)) + [qk16(0), qk16(1)]:
            a(x)
        for ps in range(7):
            q1, q2 = qx(ps + 1).split("\n")
            put(8 * ps + 4, "D", q1); put(8 * ps + 5, "A", q2)
            put(8 * ps + 5, "D", qmain(ps + 1))
        for ps in range(5, 8):
            ex = export(ps - 5)
            put(8 * ps, "D", ex[0]); put(8 * ps + 1, "A", ex[1]); put(8 * ps + 1, "B", ex[2]); put(8 * ps + 1, "C", ex[3])
        hi = a.label("PHI"); nf = a.label("NYF"); lo = a.label("PLO"); ok = a.label("CNOK")
        put(3, "D", f"s_mov_b64 exec, 1\nds_add_u32 v2, v3 offset:{CV}\ns_mov_b64 exec, -1\ns_cmp_lt_u32 {sW}, 4\ns_cbranch_scc1 {hi}\ns_setprio 1\n{hi}:")
        put(1, "C", f"s_cmp_eq_u32 s99, {OOB}\ns_cbranch_scc1 {nf}\ns_waitcnt vmcnt(5)\ns_mov_b64 exec, 1\nds_add_rtn_u32 v8, v7, v3 offset:{YA}\n"
                    f"v_mov_b32 v1, {sTAG}\ns_waitcnt lgkmcnt(0)\nv_readfirstlane_b32 s73, v8\ns_cmp_lg_u32 s73, 1\ns_cmov_b32 s99, {OOB}\n"
                    f"buffer_store_dword v1, off, {SWS}, s99 sc1\ns_mov_b64 exec, -1\n{nf}:")
        put(23, "D", "s_setprio 3")
        put(self.opt("cr", 31), "D", f"s_mov_b64 exec, 1\nds_add_u32 v2, v3 offset:{CR}\ns_mov_b64 exec, -1")
        put(36, "A", f"s_setprio 1\ns_cmp_ge_u32 {sW}, 4\ns_cbranch_scc1 {lo}\ns_setprio 2\n{lo}:")
        put(36, "D", f"ds_read_b32 v87, v86 offset:{C1}")
        for g in range(64):
            ps, t = divmod(g, 8)
            s = sreg(g)
            e = lambda i: f"v_exp_f32 v{s+i}, v{s+i}"
            c = lambda k: f"v_cvt_pk_bf16_f32 v{s+k}, v{s+2*k}, v{s+2*k+1}"
            more = g < 62
            seq = [e(0), e(1)]
            if g > 0:
                seq.append(pv(g - 1, 1))
            seq += slot(g, "A")
            vw = lambda: need(("V0", kt(g)), ("V1", kt(g)))
            if g % 2 == 0:
                if more:
                    w = xneed(g + 2)
                    if t == 6:
                        w = [(w[0] + " " if w else "s_waitcnt ") + "lgkmcnt(2)"]
                    seq += w
                seq += [e(2), e(3), c(0), e(4), c(1), e(5)]
                if more:
                    seq.append(qkx(g + 2))
                seq += slot(g, "B") + vw() + [e(6), e(7), c(2), e(8), c(3), e(9), e(10), e(11), c(4), e(12), c(5), e(13), pv(g, 0)]
                seq += slot(g, "D") + [e(14), e(15), c(6), c(7)]
                assert (g, "C") not in slots
            else:
                if more:
                    w = need(("K", kt(g + 1)), ("K", kt(g + 2)))
                    if t == 7:
                        w = [(w[0] + " " if w else "s_waitcnt ") + "lgkmcnt(0)"]
                    seq += w
                seq += [e(2), e(3), c(0), e(4), c(1)]
                if more:
                    seq.append(qk16(g + 1))
                seq += slot(g, "B") + [e(5), e(6), e(7), c(2), e(8), c(3)]
                if more:
                    seq.append(qk16(g + 2))
                seq += slot(g, "C") + vw() + [e(9), e(10), e(11), c(4), e(12), c(5), pv(g, 0)] + slot(g, "D") + [e(13), e(14), e(15), c(6), c(7)]
            for x in seq:
                a(x)
            if g == 39:
                a(f"v_readfirstlane_b32 s73, v87\ns_cmp_ge_u32 s73, 4\ns_cbranch_scc1 {ok}")
                self.wait(C1, 4, sleep=2, base="v86")
                a(f"{ok}:")
            if g == 7:
                self.stamp(11)
            if t == 7:
                self.stamp(2 + ps, 5)
        a(pv(63, 1))
        self.norm_setup(1)
        ex = export(3)
        for x in ex[:3]:
            a(x)
        a(f"ds_add_rtn_u32 v1, v{self.vCT}, v3 offset:768")

    T64, T32A, TW1, TW2, T32B, NTAB = 0, 24, 27, 35, 43, 49
    NPRE = 35

    def make_tables(self):
        L = np.arange(64); Lm = (L & 15)[:, None]; Lg = (L >> 4)[:, None]
        jj = np.arange(8)[None, :]; r = np.arange(4)[None, :]
        def pk(v):
            b = M.bf(v.astype(np.float32)).astype(np.uint32)
            return (b[:, 0::2] | (b[:, 1::2] << 16)).astype(np.uint32)
        parts = lambda z: (z.real, z.imag, -z.imag)
        w = lambda n, x, y: np.exp(-2j * np.pi * ((x * y) % n) / n)
        f32 = lambda v: v.astype(np.float32).view(np.uint32)
        out = []
        for H in range(2):
            for k in range(3):
                for t in range(4):
                    for ks in range(2):
                        out.append(pk(parts(w(64, 16 * (t ^ (2 * H)) + Lm, 32 * (ks ^ H) + 16 * (jj >> 2) + 4 * Lg + (jj & 3)))[k]))
            for k in range(3):
                out.append(pk(parts(w(32, 8 * Lg + jj, 16 * H + Lm))[k]))
            for t in range(4):
                z = w(2048, 16 * (t ^ (2 * H)) + 4 * Lg + r, 16 * H + Lm)
                out += [f32(z.real), f32(z.imag)]
            for t in range(4):
                z = np.conj(w(2048, 16 * (t ^ (2 * H)) + Lm, 16 * H + 4 * Lg + r))
                out += [f32(z.real), f32(z.imag)]
            for k in range(3):
                for at in range(2):
                    out.append(pk(parts(w(32, 8 * (Lm >> 2) + 4 * at + (Lm & 3), 16 * (H ^ (jj >> 2)) + 4 * Lg + (jj & 3)))[k]))
        return np.concatenate([o.reshape(-1) for o in out])

    def tload(self, frag, dst):
        if self.tgroup != frag // 4:
            self.tgroup = frag // 4
            self.a(f"s_add_u32 s88, s87, {(frag // 4) * 4096}")
        self.a(f"buffer_load_dwordx4 {vr(dst,4)}, v5, {STB}, s88 offen offset:{(frag % 4) * 1024}")

    def stage2_tables(self):
        a = self.a
        a(f"""
s_getpc_b64 s[64:65]
s_add_u32 s64, s64, spectral_tables@rel32@lo+4
s_addc_u32 s65, s65, spectral_tables@rel32@hi+12
s_mov_b32 s66, {2*self.NTAB*1024}
s_mov_b32 s67, 0x20000
v_lshlrev_b32 v5, 4, v0
s_and_b32 s86, {sW}, 1
s_mul_i32 s87, s86, {self.NTAB*1024}
""")
        self.tgroup = None
        for f in range(24):
            self.tload(self.T64 + f, 80 + 4 * f)
        for f in range(3):
            self.tload(self.T32A + f, 240 + 4 * f)
        for f in range(8):
            self.tload(self.TW1 + f, 16 + 4 * f)

    def stage2(self):
        a = self.a
        A, P, Q, TW, WW, PK, TMP = 80, 48, 176, 16, 208, 240, 8
        self.tgroup = None
        a(f"""
v_and_b32 v6, 15, v0
v_lshlrev_b32 v6, 6, v6
v_lshrrev_b32 v7, 4, v0
v_lshl_add_u32 v6, v7, 4, v6
s_mul_i32 s90, s89, {2*TP}
s_add_u32 s91, s90, {TP}
s_cmp_eq_u32 s89, 288
s_cmov_b32 s90, {TP}
s_cmov_b32 s91, {OOB}
s_cmp_eq_u32 s89, 0
s_cmov_b32 s91, {OOB}
s_lshl_b32 s73, s86, 11
s_add_u32 s90, s90, s73
s_add_u32 s91, s91, s73
s_lshl_b32 s85, s86, 12
s_sub_u32 s85, 2048, s85
s_lshr_b32 s73, {sW}, 1
s_and_b32 s73, s73, 1
s_xor_b32 s73, s73, 1
s_lshl_b32 s99, s73, 2
s_lshl_b32 s73, s73, 12
s_lshl_b32 s84, s86, 11
s_add_u32 s73, s73, s84
s_add_u32 s73, s73, {L_XCH}
v_add_u32 v7, s73, v5
s_sub_u32 s73, s73, s84
s_xor_b32 s84, s84, 0x800
s_add_u32 s84, s84, s73
""")
        cl = a.label("GC"); cg = a.label("CG"); ot = a.label("GO"); dn = a.label("GD")
        a(f"s_cmp_lg_u32 {sW}, 7\ns_cbranch_scc1 {ot}\ns_lshr_b32 s73, s2, 3\ns_cmp_lg_u32 s73, 16\ns_cbranch_scc1 {cl}")
        a(f"v_lshlrev_b32 v8, 7, v0\ns_mov_b32 s92, {WS_FS}\ns_sleep {self.opt('dw', 0)}")
        self.poll(f"buffer_load_dwordx4 v[12:15], v8, {SWS}, s92 offen sc1", [12, 13, 14, 15], sleep=4)
        a(f"s_and_b32 s92, s2, 7\ns_lshl_b32 s92, s92, 7\ns_add_u32 s92, s92, {WS_GOS}")
        self.set_flag("s92")
        a(f"s_branch {cg}\n{cl}:\ns_sleep {self.opt('d2', 16)}")
        self.go_wait(WS_GOS, 252, 8)
        a(f"{cg}:")
        self.add1(CG)
        a(f"s_branch {dn}\n{ot}:")
        self.wait(CG, 1, sleep=2)
        a(f"s_waitcnt vmcnt(0)\n{dn}:")
        self.stamp(7)
        self.stamp(1, 2)
        a(f"s_add_u32 s92, s90, {WS_T}\ns_add_u32 s93, s91, {WS_T}\ns_add_u32 s82, s92, s85\ns_add_u32 s83, s93, s85")
        for t in range(4):
            for ri in range(2):
                so = (("s92", "s93"), ("s82", "s83"))[t >> 1][ri]
                a(f"buffer_load_dwordx4 {vr(WW+8*t+4*ri,4)}, v6, {SWS}, {so} offen offset:{1024*(t&1)} sc1")
        mf = lambda acc, x, y, first: a(f"v_mfma_f32_16x16x32_bf16 {vr(acc,4)}, {vr(x,4)}, {vr(y,4)}, {'0' if first else vr(acc,4)}")
        re = lambda base, t: base + 8 * t
        im = lambda base, t: base + 8 * t + 4
        for t in range(4):
            a(f"s_waitcnt vmcnt({6 - 2*t})")
            if t == 0: self.stamp(2, 2)
            mf(re(P, t), re(WW, t), PK, True); mf(im(P, t), re(WW, t), PK + 4, True)
            mf(re(P, t), im(WW, t), PK + 8, False); mf(im(P, t), im(WW, t), PK, False)
        a(f"s_mul_i32 s92, s89, {WP}\ns_lshl_b32 s73, s86, 12\ns_add_u32 s92, s92, s73\ns_lshl_b32 s73, s86, 11\ns_add_u32 s92, s92, s73\ns_add_u32 s92, s92, {WS_WT}")
        a("s_add_u32 s82, s92, s85")
        for t in range(4):
            a(f"buffer_load_dwordx4 {vr(WW+8*t+4,4)}, v5, {SWS}, {('s92', 's82')[t >> 1]} offen offset:{1024*(t&1)} sc1")
        def cmul(x, c, dst):
            for t in range(4):
                ops = []
                for h in range(2):
                    t0, t1 = TMP + 4 * h, TMP + 4 * h + 2
                    xr, xi, cr, ci = re(x, t) + 2 * h, im(x, t) + 2 * h, re(c, t) + 2 * h, im(c, t) + 2 * h
                    ops.append([f"v_pk_mul_f32 {vr(t0,2)}, {vr(xr,2)}, {vr(cr,2)}",
                                f"v_pk_mul_f32 {vr(t1,2)}, {vr(xr,2)}, {vr(ci,2)}",
                                f"v_pk_fma_f32 {vr(t0,2)}, {vr(xi,2)}, {vr(ci,2)}, {vr(t0,2)} neg_lo:[1,0,0] neg_hi:[1,0,0]",
                                f"v_pk_fma_f32 {vr(t1,2)}, {vr(xi,2)}, {vr(cr,2)}, {vr(t1,2)}",
                                f"v_cvt_pk_bf16_f32 v{dst(t,0)+h}, v{t0}, v{t0+1}",
                                f"v_cvt_pk_bf16_f32 v{dst(t,1)+h}, v{t1}, v{t1+1}"])
                for j in range(0, 6, 2):
                    for o in ops:
                        a(o[j]); a(o[j + 1])
        pkd = lambda t, part: PK + 8 * part + 2 * t
        ks_ = lambda part, ks: PK + 8 * part + 4 * ks
        t64 = lambda k, t, ks: A + 32 * k + 8 * t + 4 * ks
        self.stamp(3, 2)
        cmul(P, TW, pkd)
        self.stamp(4, 2)
        for f in range(8):
            self.tload(self.TW2 + f, TW + 4 * f)
        for t in range(4):
            for ks in range(2):
                mf(re(Q, t), t64(0, t, ks), ks_(0, ks), ks == 0); mf(im(Q, t), t64(1, t, ks), ks_(0, ks), ks == 0)
            for ks in range(2):
                mf(re(Q, t), t64(2, t, ks), ks_(1, ks), False); mf(im(Q, t), t64(0, t, ks), ks_(1, ks), False)
        self.stamp(5, 2)
        a("s_waitcnt vmcnt(8)")
        for t in range(4):
            b = WW + 8 * t
            for k in range(4):
                a(f"v_lshlrev_b32 v{b+2*k}, 16, v{b+4+k}\nv_and_b32 v{b+2*k+1}, 0xffff0000, v{b+4+k}" if k < 2 else "")
            a(f"v_and_b32 v{b+5}, 0xffff0000, v{b+6}\nv_lshlrev_b32 v{b+4}, 16, v{b+6}\nv_lshlrev_b32 v{b+6}, 16, v{b+7}\nv_and_b32 v{b+7}, 0xffff0000, v{b+7}")
        cmul(Q, WW, pkd)
        self.stamp(6, 2)
        for f in range(6):
            self.tload(self.T32B + f, WW + 4 * f)
        for t in (2, 3, 0, 1):
            for ks in range(2):
                mf(re(P, t), ks_(0, ks), t64(0, t, ks), ks == 0); mf(im(P, t), ks_(1, ks), t64(0, t, ks), ks == 0)
            for ks in range(2):
                mf(re(P, t), ks_(1, ks), t64(1, t, ks), False); mf(im(P, t), ks_(0, ks), t64(2, t, ks), False)
        self.stamp(7, 2)
        a("v_add_u32 v160, s99, v2")
        self.kv_addr()
        self.kv_loads()
        a(f"s_waitcnt vmcnt({6 + self.NLD1})")
        cmul(P, TW, lambda t, part: (PK + 8 * t + 4 * part) if t < 2 else (Q + 4 * (t - 2) + 2 * part))
        a(f"ds_write_b128 v7, {vr(Q,4)}\nds_write_b128 v7, {vr(Q+4,4)} offset:1024")
        self.add1(XA, base="v160")
        a("v_add_u32 v7, s84, v5")
        self.wait(XA, 2, sleep=0, base="v160")
        for t in range(2):
            for part in range(2):
                a(f"ds_read_b64 {vr(PK+8*t+4*part+2,2)}, v7 offset:{1024*t+8*part}")
        self.stamp(8, 2)
        a(f"s_waitcnt vmcnt({self.NLD1}) lgkmcnt(0)")
        t32 = lambda k, at: WW + 8 * k + 4 * at
        out = lambda t, part, at: Q + 16 * t + 8 * part + 4 * at
        for t in range(2):
            for at in range(2):
                mf(out(t, 0, at), t32(0, at), PK + 8 * t, True); mf(out(t, 1, at), t32(0, at), PK + 8 * t + 4, True)
            for at in range(2):
                mf(out(t, 0, at), t32(1, at), PK + 8 * t + 4, False); mf(out(t, 1, at), t32(2, at), PK + 8 * t, False)
        a(f"s_add_u32 s92, s90, {WS_Y}\ns_add_u32 s93, s91, {WS_Y}")
        for t in range(2):
            for part in range(2):
                b = out(t, part, 0); d = 48 + 8 * t + 4 * part
                for k in range(4):
                    a(f"v_cvt_pk_bf16_f32 v{d+k}, v{b+2*k}, v{b+2*k+1}")
                a(f"buffer_store_dwordx4 {vr(d,4)}, v6, {SWS}, {'s93' if part else 's92'} offen offset:{1024*t} sc1")
        self.stamp(9, 2)
        a("v_mov_b32 v7, v160")
        self.flag4("s99", "s89", WS_FY)

    def l_mid(self):
        a = self.a
        go = a.label("S2"); no = a.label("NS2"); n7 = a.label("N7"); kv = a.label("LKV"); tb = a.label("TB"); nw = a.label("NW")
        a(f"s_mov_b32 s89, s2\ns_cmp_lg_u32 {sW}, 7\ns_cbranch_scc1 {n7}")
        self.s_flag()
        a(f"s_mov_b32 s89, s2\ns_branch {go}\n{n7}:")
        self.wait(CW, 1, sleep=6)
        self.wait(CR, 4, sleep=4)
        a(f"s_cmp_eq_u32 {sW}, 6\ns_cbranch_scc1 {tb}")
        a(f"""
s_add_u32 s89, s2, 192
s_sub_u32 s73, s2, 64
s_cmp_gt_u32 s73, 32
s_cbranch_scc1 {nw}
{tb}:
""")
        self.stage2_tables()
        a(f"{go}:")
        self.stage2()
        a(f"s_branch {kv}\n{nw}:")
        a(f"{no}:\ns_mov_b32 s99, {OOB}")
        self.kv_addr()
        self.kv_loads()
        a(f"s_setprio 1\n{kv}:")
        self.stamp(9)

    NT = 192

    def tail(self, mm, n):
        a = self.a
        ACC, ACX = 24, 40
        WF = 48
        NT = self.NT
        w = 2 * mm + n
        a("s_setprio 2")
        self.busy = 2
        a(f"""
ds_read_b32 v4, v23 offset:{2304 + 128 * (1 - n)}
ds_read_b32 v45, v23 offset:{2304 + 128 * n}
v_and_b32 v7, 15, v0
v_lshl_add_u32 v7, v7, 2, v2
ds_read_b32 v46, v7 offset:{2304 + 128 * n + 64 * mm}
v_add_u32 v7, 36864, v16
v_add_u32 v8, 36864, v17
s_waitcnt lgkmcnt(0)
v_sub_f32 v4, 1.0, v4
""")

        normalize = self.normalize

        def wrow(kind, k, hh, u):
            if kind == "m":
                return ("v6", (72 * k + 18 * hh + 8 * u) * 64) if k < 8 else ("v9", (144 * u + 18 * hh) * 64)
            return ("v10", (144 * k + 18 * hh + 8 * u) * 16) if k < 4 else ("v11", (144 * u + 18 * hh) * 16)

        def consume(i, probe):
            OB, AX = 192, 248
            hh = i >> 1
            seq = []
            for ks in range(9):
                seq.append(("m", ks))
                if ks % 2 == 1 or ks == 8: seq.append(("x", ks // 2))
            def rd(k):
                for u in range(2):
                    base, off = wrow("x", k, hh, u)
                    a(f"ds_read_b64_tr_b16 {vr(AX+4*(k%2)+2*u,2)}, {base} offset:{off}")
            rd(0); rd(1)
            if probe:
                l = a.label("CP"); d = a.label("CQ")
                a(f"{l}:\ns_add_u32 s90, s94, {i*9216 + 8192}\nbuffer_load_dwordx4 {vr(OB,4)}, v5, {SWS}, s90 offen sc1")
                a(f"s_waitcnt vmcnt(0)\nv_max_u32 v1, v{OB}, v{OB+1}\nv_max3_u32 v1, v1, v{OB+2}, v{OB+3}")
                a(f"v_cmp_eq_u32 vcc, -1, v1\ns_cmp_eq_u64 vcc, 0\ns_cbranch_scc1 {d}")
                a(f"s_sleep 8\ns_sub_u32 {sSPIN}, {sSPIN}, 1\ns_cbranch_scc0 {l}\ns_branch L_bail\n{d}:")
            l = a.label("CL"); d = a.label("CD")
            a(f"{l}:")
            chk = []
            oreg = lambda it: OB + (4 * it[1] if it[0] == "m" else 36 + 4 * it[1])
            for it in seq:
                kind, k = it
                if kind == "m" and k % 4 == 0:
                    a(f"s_add_u32 s90, s94, {i*9216 + 1024*k}")
                voff, last = ("v5", k == 8) if kind == "m" else ("v12" if k < 4 else "v13", k == 4)
                imm = 1024 * (k % 4) if kind == "m" else 2048 * (k % 2)
                a(f"buffer_load_dwordx4 {vr(oreg(it),4)}, {voff}, {SWS}, s90 offen offset:{imm} sc1")
                chk.append([oreg(it) + r for r in range(4 if last else 1)])
            flat = [(j, r) for j, rs in enumerate(chk) for r in rs]
            a(f"s_waitcnt vmcnt({len(chk) - 2})\nv_max_u32 v1, v{flat[0][1]}, v{flat[1][1]}")
            for p in range(2, len(flat), 2):
                a(f"s_waitcnt vmcnt({len(chk) - 1 - flat[p+1][0]})\nv_max3_u32 v1, v1, v{flat[p][1]}, v{flat[p+1][1]}")
            a(f"v_cmp_eq_u32 vcc, -1, v1\ns_cmp_eq_u64 vcc, 0\ns_cbranch_scc1 {d}")
            a(f"s_sleep {2 if i >= 6 else 8}\ns_sub_u32 {sSPIN}, {sSPIN}, 1\ns_cbranch_scc0 {l}\ns_branch L_bail\n{d}:")
            for kind, k in seq:
                if kind == "m":
                    a(f"v_mfma_f32_32x32x16_bf16 {vr(ACC,16)}, {vr(WF+36*hh+4*k,4)}, {vr(oreg((kind,k)),4)}, {vr(ACC,16)}")
                else:
                    a(f"s_waitcnt lgkmcnt({2 if k < 4 else 0})")
                    a(f"v_mfma_f32_16x16x32_bf16 {vr(ACX,4)}, {vr(AX+4*(k%2),4)}, {vr(oreg((kind,k)),4)}, {vr(ACX,4)}")
                    if k + 2 < 5:
                        rd(k + 2)

        normalize(2 * mm + (1 - n))
        self.stamp(2, 4)
        GM, GX, GD, GE = 192, 224, 8, 3
        AC2, BF, BX = ACC, 236, 248
        vm = []
        def gm(ks):
            a(f"buffer_load_dwordx4 {vr(GM+4*(ks%GD),4)}, v5, {SWS}, s93 offen offset:{1024*(ks%4)} sc1")
            if ks % 4 == 3: a("s_add_u32 s93, s93, 4096")
            vm.append(("m", ks))
        def gx(T):
            a(f"buffer_load_dwordx4 {vr(GX+4*(T%GE),4)}, v14, {SWS}, s98 offen offset:{2048*(T%2)} sc1")
            if T % 2 == 1: a("s_add_u32 s98, s98, 4096")
            vm.append(("x", T))
        bulk = w < 2
        if bulk:
            self.srd(SWO, 18, 663552)
            self.panel_setup(2, va=48)
        a(f"s_mul_i32 s93, {sJ}, {3*36*1024}\ns_add_u32 s98, s93, {WS_G + 2*36*1024}\ns_add_u32 s93, s93, {WS_G + mm*36*1024}")
        self.wait(CV, 8, sleep=3)
        if bulk:
            self.panel_loads(SWO, L_WO0, L_WO1, L_WOX, False, 36, 2, va=48, rotate=True)
        self.stamp(1, 4)
        for ks in range(GD):
            gm(ks)
            if ks % 2 == 1 and ks // 2 < GE: gx(ks // 2)
        fy = (f"buffer_load_dwordx4 {vr(BF+2,4)}, v{BF}, {SWS}, s99 offen sc1\nbuffer_load_dwordx4 {vr(BF+6,4)}, v{BF+1}, {SWS}, s92 offen sc1\n"
              f"buffer_load_dword v{BF+10}, off, {SWS}, s88 sc1")
        if w == 0:
            a(f"v_lshlrev_b32 v{BF}, 7, v0\nv_min_u32 v{BF+1}, {7*128}, v{BF}\ns_mov_b32 s99, {WS_FY}\ns_mov_b32 s92, {WS_FY + 8192}\ns_mov_b32 s88, {WS_FY + 72*128}")
            a(fy)
        if bulk:
            a(f"s_waitcnt vmcnt({len(vm) + (3 if w == 0 else 0)})")
            self.add1(S3)
        self.wait(S3, 2, sleep=1 if bulk else 3)
        self.stamp(3, 4)
        for hh in range(4):
            for k in range(9):
                for u in range(2):
                    base, off = wrow("m", k, hh, u)
                    a(f"ds_read_b64_tr_b16 {vr(WF+36*hh+4*k+2*u,2)}, {base} offset:{off}")
                if k % 3 == 2:
                    a("s_waitcnt lgkmcnt(6)")
        self.stamp(4, 4)
        a("s_waitcnt lgkmcnt(0)")
        self.add1(S2)
        if w == 0:
            ok = a.label("YOK")
            a("s_waitcnt vmcnt(0)")
            self.cmp_regs([BF + 2 + k for k in range(9)], sTAG)
            a(f"s_cbranch_scc1 {ok}")
            self.poll(fy, [BF + 2 + k for k in range(9)], sleep=12)
            a(f"{ok}:")
            self.add1(CY)
            ne = a.label("NE")
            a(f"s_cmp_lg_u32 s2, 0\ns_cbranch_scc1 {ne}")
            self.set_flag(str(WS_EPOCH))
            a(f"{ne}:")
        elif bulk:
            self.wait(CY, 1, sleep=2)
        if bulk:
            self.wait(S2, 4, sleep=1)
            self.stamp(1); self.stamp(5, 4)
            a(f"s_lshl_b32 s99, {sP}, 7\ns_add_u32 s99, s99, {WS_Y + w * 8 * TP}\ns_mov_b32 s92, {L_Y + w * 1024}")
            lp = a.label("YL")
            a(f"s_mov_b32 s88, 5\n{lp}:")
            for k in range(6):
                a(f"s_mov_b32 m0, s92\ns_add_u32 s92, s92, 2048\nbuffer_load_dwordx4 v15, {SWS}, s99 offen sc1 lds\ns_add_u32 s99, s99, {16*TP}")
            a(f"s_sub_u32 s88, s88, 1\ns_cbranch_scc0 {lp}")
            vm.extend([("y", k) for k in range(36)])
            a("s_waitcnt vmcnt(18)")
            self.add1(S1)
        self.stamp(6, 4)
        def yrd(it):
            kind, k = it
            if kind == "m":
                b = BF + 4 * (k % 3); base, off = ("v16", 2048 * k) if k < 18 else ("v7", 2048 * (k - 18))
            else:
                b = BX + 4 * (k % 2); base, off = ("v17", 4096 * k) if k < 9 else ("v8", 4096 * (k - 9))
            a(f"ds_read_b64_tr_b16 {vr(b,2)}, {base} offset:{off}\nds_read_b64_tr_b16 {vr(b+2,2)}, {base} offset:{off+512}")
        done = {"vm": len(vm) - 18 if bulk else 0}
        def half(k0):
            seq = []
            for ks in range(k0, k0 + 18):
                seq.append(("m", ks))
                if ks % 2 == 1: seq.append(("x", ks // 2))
            for it in seq[:3]:
                yrd(it)
            for i, it in enumerate(seq):
                wv = ""
                if vm.index(it) + 1 > done["vm"]:
                    done["vm"] = vm.index(it) + 1
                    wv = f"vmcnt({len(vm) - done['vm']}) "
                a(f"s_waitcnt {wv}lgkmcnt({2 * (min(i + 3, len(seq)) - i - 1)})")
                kind, k = it
                if kind == "m":
                    a(f"v_mfma_f32_32x32x16_bf16 {vr(AC2,16)}, {vr(GM+4*(k%GD),4)}, {vr(BF+4*(k%3),4)}, {'0' if k == 0 else vr(AC2,16)}")
                    if k + GD < 36: gm(k + GD)
                else:
                    a(f"v_mfma_f32_16x16x32_bf16 {vr(AC2+16,4)}, {vr(GX+4*(k%GE),4)}, {vr(BX+4*(k%2),4)}, {'0' if k == 0 else vr(AC2+16,4)}")
                    if k + GE < 18: gx(k + GE)
                if i + 3 < len(seq):
                    yrd(seq[i + 3])
                if bulk and it == ("m", GD):
                    self.add1(S4)
        self.wait(S1, 2, sleep=1 if bulk else 2)
        self.stamp(7, 4)
        half(0)
        self.wait(S4, 2, sleep=1)
        half(18)
        self.stamp(2); self.stamp(8, 4)
        self.srd(SOUT, 22, 2359296)
        a(f"""
s_mul_i32 s93, {sP}, 2304
s_add_u32 s93, s93, s95
s_add_u32 s93, s93, {1152 * n}
s_add_u32 s92, s93, {16 * mm * 73728}
""")
        for i in range(8):
            a(f"v_pk_mul_f32 {vr(ACC+2*i,2)}, {vr(ACC+2*i,2)}, v[44:45] op_sel:[0,1] op_sel_hi:[1,1]")
        for i in range(2):
            a(f"v_pk_mul_f32 {vr(ACX+2*i,2)}, {vr(ACX+2*i,2)}, v[46:47] op_sel_hi:[1,0]")
        prog = {0: ["N5", "C0", "C2", "C4", "C6"], 1: ["N4", "C1", "C3", "C5", "C7"],
                2: ["C0", "C2", "C4", "C6"], 3: ["C1", "C3", "N6", "C5", "C7"]}[w]
        gates = {4: 5, 5: 6, 6: 7, 7: 7}
        for it in prog:
            i = int(it[1])
            if it[0] == "N":
                normalize(i)
                self.stamp(3)
            else:
                if i >= 4:
                    self.wait(256 * gates[i], 4, sleep=2 if gates[i] == 7 else 4)
                if i == 7:
                    a(f"s_sleep {self.opt('d7', 4)}")
                if i >= 6: self.stamp(4)
                consume(i, i in (4, 5))
                if i in (2, 3): self.stamp(9, 4)
                if i in (4, 5): self.stamp(10, 4)
                if i in (6, 7): self.stamp(11, 4)
        self.stamp(6)
        fl = " sc1" if "outsc1" in self.opts else " nt" if "outnt" in self.opts else ""
        a(f"v_cvt_pk_bf16_f32 v{ACX}, v{ACX}, v{ACX+1}\nv_cvt_pk_bf16_f32 v{ACX+1}, v{ACX+2}, v{ACX+3}")
        for k in range(8):
            a(f"v_cvt_pk_bf16_f32 v{ACC+k}, v{ACC+2*k}, v{ACC+2*k+1}")
        a(f"buffer_store_dwordx4 {vr(ACC,4)}, v18, {SOUT}, s93 offen offset:{64*mm}{fl}")
        a(f"buffer_store_dwordx4 {vr(ACC+4,4)}, v18, {SOUT}, s93 offen offset:{64*mm+16}{fl}")
        a(f"s_mov_b32 exec_hi, 0\nbuffer_store_dwordx2 {vr(ACX,2)}, v19, {SOUT}, s92 offen offset:128{fl}\ns_mov_b64 exec, -1")
        self.stamp(7)

    def norm_setup(self, rows):
        self.a(f"""
v_lshlrev_b32 v5, 4, v0
v_and_b32 v23, 31, v0
v_add_u32 v20, {L_EX}, v5
v_lshlrev_b32 v21, 3, v0
v_add_u32 v21, {L_EX + 2048}, v21
v_lshlrev_b32 v22, 3, v23
v_add_u32 v22, {L_EX + 2048 + 256}, v22
v_lshl_add_u32 v23, v23, 2, v2
ds_read_b32 v4, v23 offset:{2304 + 128 * rows}
s_mul_i32 s94, {sP}, {8*9216}
s_add_u32 s94, s94, {WS_OF}
s_lshl_b32 s96, {sJ}, 10
s_add_u32 s96, s96, s94
s_lshr_b32 s97, {sJ}, 2
s_lshl_b32 s97, s97, 9
s_and_b32 s73, {sJ}, 3
s_lshl_b32 s73, s73, 2
s_add_u32 s97, s97, s73
s_add_u32 s97, s97, s94
s_add_u32 s97, s97, 8192
""")

    def normalize(self, i, wait=True, gate=None):
        a = self.a
        NT = self.NT
        q = i % 4
        if wait:
            self.wait(256 * i, 4, sleep=2 if i >= 6 else 4)
        def reads(s):
            b = NT + 12 * s; o = 10240 * q + 2560 * s
            a(f"ds_read_b128 {vr(b,4)}, v20 offset:{o}\nds_read_b128 {vr(b+4,4)}, v20 offset:{o+1024}\n"
              f"ds_read_b64 {vr(b+8,2)}, v21 offset:{o}\nds_read_b32 v{b+10}, v22 offset:{o}")
        reads(0); reads(1)
        a(f"s_add_u32 s90, s96, {i*9216}\ns_add_u32 s91, s97, {i*9216}\ns_movk_i32 s89, {i}")
        if gate:
            a("s_waitcnt lgkmcnt(8)")
            a(gate)
        reads(2)
        for s in range(1, 4):
            a(f"s_waitcnt lgkmcnt({4 if s < 3 else 0})")
            if s == 1:
                reads(3)
            for k in range(5):
                a(f"v_pk_add_f32 {vr(NT+2*k,2)}, {vr(NT+2*k,2)}, {vr(NT+12*s+2*k,2)}")
            a(f"v_add_f32 v{NT+10}, v{NT+10}, v{NT+12*s+10}")
        if i < 4:
            self.wait(CG, 1, sleep=2)
            self.add1(CN)
        self.safety()
        a(f"v_rcp_f32 v{NT+10}, v{NT+10}\ns_nop 0\nv_mul_f32 v{NT+10}, v4, v{NT+10}")
        for k in range(5):
            a(f"v_pk_mul_f32 {vr(NT+2*k,2)}, {vr(NT+2*k,2)}, {vr(NT+10,2)} op_sel_hi:[1,0]")
        for k in range(5):
            a(f"v_cvt_pk_bf16_f32 v{NT+12+k}, v{NT+2*k}, v{NT+2*k+1}")
        a(f"v_min_u32 v{NT+12}, -2, v{NT+12}\nv_min_u32 v{NT+16}, -2, v{NT+16}")
        a(f"buffer_store_dwordx4 {vr(NT+12,4)}, v5, {SWS}, s90 offen sc1\ns_mov_b32 exec_hi, 0")
        a(f"buffer_store_dword v{NT+16}, v5, {SWS}, s91 offen sc1")
        a("s_mov_b64 exec, -1")

    def safety(self):
        a = self.a
        NT = self.NT
        ok = a.label("SOK")
        t = NT + 12
        a(f"v_pk_mul_f32 {vr(t,2)}, {vr(NT,2)}, 0 op_sel_hi:[1,0]")
        for k in range(1, 5):
            a(f"v_pk_fma_f32 {vr(t,2)}, {vr(NT+2*k,2)}, 0, {vr(t,2)} op_sel_hi:[1,0,1]")
        lo, hi = (127 - 60) << 23, (127 + 64) << 23
        if "forcefb" in self.opts:
            lo, hi = (127 + 60) << 23, (127 + 64) << 23
        a(f"v_add_f32 v{t}, v{t}, v{t+1}\nv_subrev_u32 v{t+1}, {lo:#x}, v{NT+10}\nv_cmp_u_f32 vcc, v{t}, v{t}")
        a(f"s_mov_b32 s73, {hi - lo:#x}\nv_cmp_lt_u32 s[74:75], s73, v{t+1}\ns_or_b64 vcc, vcc, s[74:75]\ns_cmp_eq_u64 vcc, 0\ns_cbranch_scc1 {ok}")
        a(f"s_call_b64 s[86:87], L_fallback\n{ok}:")

    def fallback(self):
        a = self.a
        NT = self.NT
        O, S, Q, QX, K, KX, V, MX = NT, 208, 224, 228, 230, 234, 236, 244
        vK, vKX, vV, T0 = 245, 246, 247, 248
        l1 = a.label("FB1"); l2 = a.label("FB2")
        qk = f"""
buffer_load_dwordx4 {vr(K,4)}, v{vK}, {SWS}, s[84] offen sc1
buffer_load_dword v{KX}, v{vKX}, {SWS}, s[85] offen sc1
""".replace("s[84]", "s84").replace("s[85]", "s85")
        mm = f"""
v_mfma_f32_32x32x16_bf16 {vr(S,16)}, {vr(K,4)}, {vr(Q,4)}, 0
v_mfma_f32_32x32x8_bf16 {vr(S,16)}, {vr(KX,2)}, {vr(QX,2)}, {vr(S,16)}
s_add_u32 s84, s84, 1024
s_add_u32 s85, s85, 128
"""
        a(f"""
L_fallback:
s_nop 4
v_and_b32 v250, 31, v0
v_lshrrev_b32 v251, 5, v0
v_lshlrev_b32 v{vK}, 5, v250
v_lshl_add_u32 v{vK}, v251, 4, v{vK}
v_mov_b32 v{T0}, {OOB}
v_lshlrev_b32 v{vKX}, 2, v250
v_cmp_lt_u32 vcc, 31, v0
v_subrev_u32 v{T0+1}, 64, v{vK}
v_cndmask_b32 v{vKX}, v{vKX}, v{T0}, vcc
v_cmp_eq_u32 vcc, 20, v250
s_mul_i32 s73, s89, 1536
v_cndmask_b32 v{T0+1}, v{T0}, v{T0+1}, vcc
v_cmp_gt_u32 vcc, 18, v250
s_add_u32 s73, s73, {L_QS}
v_cndmask_b32 v{vV}, v{T0+1}, v{vK}, vcc
v_mul_u32_u24 v{T0}, 48, v250
v_add_u32 v{T0}, s73, v{T0}
v_lshl_add_u32 v{T0+1}, v251, 2, v{T0}
v_lshl_add_u32 v{T0}, v251, 4, v{T0}
ds_read_b128 {vr(Q,4)}, v{T0}
ds_read_b32 v{QX}, v{T0+1} offset:32
v_mov_b32 v{QX+1}, 0
v_mov_b32 v{KX+1}, 0
v_mov_b32 v{MX}, 0xff800000
s_mov_b32 s84, {WS_K16}
s_mov_b32 s85, {WS_KX}
s_mov_b32 s88, 63
{l1}:
{qk}
s_waitcnt vmcnt(0) lgkmcnt(0)
{mm}
""")
        for k in range(8):
            a(f"v_max3_f32 v{MX}, v{MX}, v{S+2*k}, v{S+2*k+1}")
        a(f"""
s_sub_u32 s88, s88, 1
s_cbranch_scc0 {l1}
v_mov_b32 v{T0}, v{MX}
v_permlane32_swap_b32 v{MX}, v{T0}
v_max_f32 v{MX}, v{MX}, v{T0}
s_mov_b32 s84, {WS_K16}
s_mov_b32 s85, {WS_KX}
s_mov_b32 s83, {WS_VF}
s_mov_b32 s88, 63
""")
        for r in range(16):
            a(f"v_mov_b32 v{O+r}, 0")
        a(f"""
{l2}:
{qk}
buffer_load_dwordx4 {vr(V,4)}, v{vV}, {SWS}, s83 offen sc1
buffer_load_dwordx4 {vr(V+4,4)}, v{vV}, {SWS}, s83 offen offset:{VPITCH} sc1
s_waitcnt vmcnt(0)
{mm}
s_add_u32 s83, s83, {2*VPITCH}
""")
        for r in range(16):
            a(f"v_sub_f32 v{S+r}, v{S+r}, v{MX}")
        for r in range(16):
            a(f"v_exp_f32 v{S+r}, v{S+r}")
        for k in range(8):
            a(f"v_cvt_pk_bf16_f32 v{S+k}, v{S+2*k}, v{S+2*k+1}")
        a(f"""
v_mfma_f32_32x32x16_bf16 {vr(O,16)}, {vr(V,4)}, {vr(S,4)}, {vr(O,16)}
v_mfma_f32_32x32x16_bf16 {vr(O,16)}, {vr(V+4,4)}, {vr(S+4,4)}, {vr(O,16)}
s_nop 15
s_sub_u32 s88, s88, 1
s_cbranch_scc0 {l2}
""")
        a(f"v_mov_b32 v{T0}, v{O+8}\nv_mov_b32 v{NT+10}, v{O+8}\nv_permlane32_swap_b32 v{T0}, v{NT+10}\ns_nop 4\ns_setpc_b64 s[86:87]")

    def finish_stamps(self):
        a = self.a
        if self.stamps:
            a("v_mov_b32 v2, 0")
            for i in range(12):
                a(f"v_writelane_b32 v2, s{STAMPS[i]}, {i}")
            a(f"s_lshl_b32 s73, s2, 3\ns_add_u32 s73, s73, {sW}\ns_lshl_b32 s73, s73, 7\ns_add_u32 s73, s73, {WS_DBG}")
            a(f"v_lshlrev_b32 v3, 2, v0\ns_mov_b32 exec_hi, 0\nbuffer_store_dword v2, v3, {SWS}, s73 offen\ns_mov_b64 exec, -1")

    def build(self):
        a = self.a
        self.prologue()
        self.e_front()
        a("L_attn:")
        self.attention()
        self.stamp(8)
        a(f"s_cmp_ge_u32 {sW}, 4\ns_cbranch_scc1 L_last")
        labs = [a.label("TL") for _ in range(4)]
        for w in range(1, 4):
            a(f"s_cmp_eq_u32 {sW}, {w}\ns_cbranch_scc1 {labs[w]}")
        for w in range(4):
            a(f"{labs[w]}:")
            self.tail(w >> 1, w & 1)
            a("s_branch L_fin")
        a("L_last:\ns_setprio 3")
        self.normalize(7, wait=False, gate="v_readfirstlane_b32 s73, v1\nv_sub_f32 v4, 1.0, v4\ns_cmp_lg_u32 s73, 3\ns_cbranch_scc1 L_fin")
        self.stamp(3)
        a("s_branch L_fin")
        a("L_lwave:")
        self.busy = 3
        self.l_front()
        self.l_mid()
        a("s_branch L_attn")
        self.fallback()
        a("L_bail:")
        if self.stamps:
            a(f"s_mov_b32 s{STAMPS[11]}, 0xdead0000")
        a("L_fin:")
        self.stamp(1, 6)
        if self.opt("padto", 0):
            a(f"L_pad:\ns_sleep 2\ns_memrealtime s[78:79]\ns_waitcnt lgkmcnt(0)\ns_sub_u32 s78, s78, s76\ns_cmp_lt_u32 s78, s80\ns_cbranch_scc1 L_pad")
        self.finish_stamps()
        a("L_end:\ns_endpgm")
        body = a.finish()
        tw = self.make_tables()
        assert tw.size == 2 * self.NTAB * 256
        tab = "\n".join(".long " + ",".join(f"{x:#x}" for x in tw[i:i+16]) for i in range(0, tw.size, 16))
        hdr = open("cdna_kernels/" + NAME + ".s.ref").read().split("; Override launch")[0]
        return f"""{hdr}; @launch grid=(256,1,1) block=(512,1,1) lds={LDS_BYTES}
.amdgcn_target "amdgcn-amd-amdhsa--gfx950"
.text
.globl {NAME}_kernel
.p2align 8
.type {NAME}_kernel,@function
{NAME}_kernel:
{body}
.section .rodata,"a"
.p2align 8
.type spectral_tables,@object
spectral_tables:
{tab}
.size spectral_tables, {2*self.NTAB*1024}
.p2align 6
.amdhsa_kernel {NAME}_kernel
  .amdhsa_next_free_vgpr 256
  .amdhsa_next_free_sgpr 102
  .amdhsa_accum_offset 256
  .amdhsa_group_segment_fixed_size 0
  .amdhsa_kernarg_size 96
  .amdhsa_user_sgpr_count 2
  .amdhsa_user_sgpr_kernarg_segment_ptr 1
  .amdhsa_system_sgpr_workgroup_id_x 1
.end_amdhsa_kernel
"""


if __name__ == "__main__":
    opts = sys.argv[2:]
    g = Gen(stamps=2 if "st2" in opts else 3 if "st3" in opts else 4 if "st4" in opts else 5 if "st5" in opts else 6 if "tot" in opts else int("stamps" in opts), cyc="cyc" in opts, opts=opts)
    src = g.build()
    open(sys.argv[1], "w").write(src)
    print("nops added:", g.a.added_nops, "lines:", len(src.splitlines()))
```

```python
import sys
import numpy as np
from asmlib import Asm
import model as M

NAME = "gated_mix__spectral_gfnet__grouped_kv_mqa__prompt"

WS_EPOCH = 0
WS_FKV = 0x50000
WS_FS = 0x58000
WS_FY = 0x60000
WS_GOS = 0x68000
WS_K16 = 0x10000
WS_KX = 0x20000
WS_VF = 0x30000
WS_DBG = 0x80000
WS_G = 0x100000
WS_T = 0x200000
WS_Y = 0x500000
WS_OF = 0x800000
WS_WT = 0xB00000
WS_SIZE = 0x1000000
OOB = 0x40000000
VPITCH = 640
TP = 4096 + 128
WP = 8192 + 128

XP = 1040
L_X = 0
L_X2 = 64 * XP
L_WQ0 = 74752
L_WQ1 = 111616
P2SZ = 9728
L_P2Q = 148480
L_P2KV = L_P2Q - P2SZ
L_MISC = 162816
L_CT = L_MISC - 2048
(C0A, C0B, C0C, C1, CX, CK, CE, CV, CY, S1, S2, S3, CN, CW, CF, CD, CG, S4, C0D, SA, XA, XB, YA, YB, CR, CL, CI) = (2048 + 4 * i for i in range(27))
L_G = L_MISC + 256
L_QS = L_WQ0
L_WO0 = 0
L_WO1 = 36864
L_Y = 0
L_EX = L_QS + 12288
L_WOX = L_EX + 16 * 2560
L_XCH = L_WOX + 9216
LDS_BYTES = 163840
assert L_XCH + 8192 <= L_CT and L_P2Q + P2SZ <= L_CT and L_P2Q + P2SZ <= L_MISC and L_P2KV >= L_WQ1 + 416 * 64

SX, SWQ, SKV, SG, SWS, SWO, SOUT, SWR, SWI, STB = (f"s[{a}:{a+3}]" for a in range(28, 68, 4))
sW, sP, sJ, sTAG, sSPIN = "s68", "s69", "s70", "s71", "s72"
STAMPS = [76, 77, 78, 79, 80, 81, 100, 101, 3, 10, 11, 24]
SPIN_MAX = 400000

f32bits = lambda v: int(np.float32(v).view(np.uint32))
QSCALE_BITS = f32bits(M.QSCALE)
LOG2E_BITS = f32bits(M.LOG2E)


def vr(a, n=1):
    return f"v{a}" if n == 1 else f"v[{a}:{a+n-1}]"


class Gen:
    AQ, AQX, AO, AK, AKX, AV, AS = 24, 28, 32, 88, 120, 128, 192
    vQ, vQX, vEX, vEX2, vK, vKX, vV, vCT = 78, 79, 80, 81, 82, 83, 4, 84
    vCT2 = vCT

    def __init__(self, stamps=0, cyc=False, opts=()):
        self.a = Asm()
        self.stamps = stamps
        self.clk = "s_memtime" if cyc else "s_memrealtime"
        self.opts = set(opts)
        self.busy = 3

    def opt(self, name, default):
        for o in self.opts:
            if o.startswith(name + "="):
                return int(o.split("=")[1])
        return default

    def _st(self, i):
        self.a(f"{self.clk} s[74:75]\ns_waitcnt lgkmcnt(0)\ns_mov_b32 s{STAMPS[i]}, s74")

    def stamp(self, i, level=1):
        if self.stamps == level:
            self._st(i)
        if self.opt("pid", -1) == i and self.opt("plev", 1) == level:
            l = self.a.label("PB")
            self.a(f"s_cmp_lg_u32 {sW}, {self.opt('pw', 0)}\ns_cbranch_scc1 {l}\ns_memrealtime s[78:79]\ns_waitcnt lgkmcnt(0)\n"
                   f"s_sub_u32 s80, s78, s76\ns_add_u32 s80, s80, {self.opt('padto', 0)}\n{l}:")

    def srd(self, srd, lo, size):
        b = int(srd[2:].split(":")[0])
        self.a(f"s_mov_b32 s{b}, s{lo}\ns_mov_b32 s{b+1}, s{lo+1}\ns_mov_b32 s{b+2}, {size}\ns_mov_b32 s{b+3}, 0x20000")

    def add1(self, off, base="v2"):
        self.a(f"s_mov_b64 exec, 1\nds_add_u32 {base}, v3 offset:{off}\ns_mov_b64 exec, -1")

    def wait(self, off, target, sleep=1, base="v2", idle=False):
        a = self.a
        l = a.label("LW"); d = a.label("LWD")
        if idle and "noidle" not in self.opts:
            a("s_setprio 0")
        a(f"{l}:\nds_read_b32 v1, {base} offset:{off}\ns_waitcnt lgkmcnt(0)\nv_readfirstlane_b32 s73, v1")
        a(f"s_cmp_ge_u32 s73, {target}\ns_cbranch_scc1 {d}")
        if sleep:
            a(f"s_sleep {sleep}")
        a(f"s_sub_u32 {sSPIN}, {sSPIN}, 1\ns_cbranch_scc0 {l}\ns_branch L_bail\n{d}:")
        if idle and "noidle" not in self.opts:
            a(f"s_setprio {self.busy}")

    def cmp_regs(self, regs, val, op="ne"):
        a = self.a
        a(f"v_cmp_{op}_u32 vcc, {val}, v{regs[0]}")
        for r in regs[1:]:
            a(f"v_cmp_{op}_u32 s[74:75], {val}, v{r}\ns_or_b64 vcc, vcc, s[74:75]")
        a("s_cmp_eq_u64 vcc, 0")

    def poll(self, loads, regs, sleep=2):
        a = self.a
        l = a.label("PL"); d = a.label("PD")
        a(f"{l}:")
        a(loads)
        a("s_waitcnt vmcnt(0)")
        self.cmp_regs(regs, sTAG)
        a(f"s_cbranch_scc1 {d}\ns_sleep {sleep}\ns_sub_u32 {sSPIN}, {sSPIN}, 1\ns_cbranch_scc0 {l}\ns_branch L_bail\n{d}:")

    def set_flag(self, soff):
        self.a(f"v_mov_b32 v1, {sTAG}\ns_mov_b64 exec, 1\nbuffer_store_dword v1, off, {SWS}, {soff} sc1\ns_mov_b64 exec, -1")

    def flag4(self, dst, idx, base):
        self.a(f"s_lshr_b32 {dst}, {idx}, 2\ns_lshl_b32 {dst}, {dst}, 7\ns_and_b32 s73, {idx}, 3\ns_lshl_b32 s73, s73, 2\n"
               f"s_add_u32 {dst}, {dst}, s73\ns_add_u32 {dst}, {dst}, {base}")

    def go_wait(self, base, vt, sleep):
        self.a(f"s_and_b32 s92, s2, 7\ns_lshl_b32 s92, s92, 7\ns_add_u32 s92, s92, {base}")
        self.poll(f"s_mov_b64 exec, 1\nbuffer_load_dword v{vt}, off, {SWS}, s92 sc1\ns_waitcnt vmcnt(0)\nv_readfirstlane_b32 s73, v{vt}\ns_mov_b64 exec, -1\nv_mov_b32 v{vt}, s73", [vt], sleep=sleep)

    def tag(self):
        self.a(f"s_mul_i32 {sTAG}, {sTAG}, 0x9E3779B1\ns_add_u32 {sTAG}, {sTAG}, 0x7F4A7C15")

    def prologue(self):
        a = self.a
        a(f"""
s_cmp_ge_u32 s2, 256
s_cbranch_scc1 L_end
s_load_dwordx16 s[4:19], s[0:1], 0
s_load_dwordx8 s[20:27], s[0:1], 64
v_lshrrev_b32 v1, 6, v0
v_and_b32 v0, 63, v0
v_readfirstlane_b32 {sW}, v1
s_and_b32 {sP}, s2, 31
s_lshr_b32 {sJ}, s2, 5
""")
        if self.stamps:
            a(f"{self.clk} s[74:75]")
        if self.opt("padto", 0):
            a(f"s_memrealtime s[76:77]\ns_mov_b32 s80, {self.opt('padto', 0)}")
        a(f"""
v_lshl_add_u32 v4, v1, 6, v0
v_mov_b32 v2, {L_CT}
v_mov_b32 v3, 1
v_lshlrev_b32 v7, 4, v0
s_mul_i32 s94, {sP}, 2304
s_mul_i32 s95, {sJ}, 144
s_lshl_b32 s91, {sJ}, 2
s_add_u32 s91, s91, {sW}
s_mov_b32 s30, 2359296
s_mov_b32 s31, 0x20000
s_mov_b32 {sSPIN}, {SPIN_MAX}
s_cmp_ge_u32 {sW}, 4
s_waitcnt lgkmcnt(0)
""")
        if self.opt("wsoff", 0):
            a(f"s_cselect_b32 s73, 1, 0\ns_add_u32 s26, s26, {self.opt('wsoff', 0) << 20}\ns_addc_u32 s27, s27, 0\ns_cmp_eq_u32 s73, 1")
        if self.stamps:
            a(f"s_mov_b32 s{STAMPS[0]}, s74")
            for r in STAMPS[1:]:
                a(f"s_mov_b32 s{r}, 0")
        a("s_cbranch_scc1 L_lwave")

    def kv_addr(self):
        a = self.a
        a(f"""
v_and_b32 v84, 31, v0
v_lshrrev_b32 v85, 5, v0
v_lshlrev_b32 v{self.vK}, 5, v84
v_lshl_add_u32 v{self.vK}, v85, 4, v{self.vK}
v_mov_b32 v86, {OOB}
v_lshlrev_b32 v{self.vKX}, 2, v0
v_subrev_u32 v87, 64, v{self.vK}
v_cmp_eq_u32 vcc, 20, v84
s_and_b32 s73, {sW}, 3
v_cndmask_b32 v87, v86, v87, vcc
v_cmp_gt_u32 vcc, 18, v84
s_lshl_b32 s96, s73, 14
v_cndmask_b32 v{self.vV}, v87, v{self.vK}, vcc
s_add_u32 s96, s96, {WS_K16}
s_lshl_b32 s97, s73, 11
s_add_u32 s97, s97, {WS_KX}
s_mul_i32 s98, s73, {32*VPITCH}
s_add_u32 s98, s98, {WS_VF}
""")

    def ld_k(self, t, slot):
        adv = "\ns_add_u32 s96, s96, 4096" if t % 4 == 3 else ""
        return (f"buffer_load_dwordx4 {vr(self.AK+4*slot,4)}, v{self.vK}, {SWS}, s96 offen offset:{1024*(t%4)} sc1" + adv,)

    def ld_x(self, t):
        return f"buffer_load_dword v{self.AKX+(t%8)//2}, v{self.vKX}, {SWS}, s97 offen offset:{128*t} sc1"

    def ld_v(self, t, slot):
        adv = f"\ns_add_u32 s98, s98, {4*VPITCH}" if t % 2 == 1 else ""
        o = 2 * VPITCH * (t % 2)
        return (f"buffer_load_dwordx4 {vr(self.AV+8*slot,4)}, v{self.vV}, {SWS}, s98 offen offset:{o} sc1",
                f"buffer_load_dwordx4 {vr(self.AV+8*slot+4,4)}, v{self.vV}, {SWS}, s98 offen offset:{o+VPITCH} sc1" + adv)

    NFIRST = 4
    NLD1 = 16

    def kv_loads(self, t0=0, t1=None):
        if t0 == 0:
            for t in range(0, 8, 2):
                self.a(self.ld_x(t))
        for t in range(t0, self.NFIRST if t1 is None else t1):
            for x in self.ld_k(t, t) + self.ld_v(t, t):
                self.a(x)

    def e_front(self):
        a = self.a
        a("s_setprio 3\ns_mov_b32 s28, s4\ns_mov_b32 s29, s5")
        for k in range(8):
            a(f"""
s_and_b32 s91, s91, 31
s_mul_i32 s90, s91, 73728
s_mul_i32 m0, s91, {XP}
s_add_u32 s90, s90, s94
s_add_u32 s91, s91, 4
buffer_load_dwordx4 v7, {SX}, s90 offen lds
s_add_u32 m0, m0, {32*XP - 1152}
s_nop 0
buffer_load_dwordx4 v7, {SX}, s90 offen offset:1152 lds
""")
        a("s_barrier")
        a(f"""
s_load_dword {sTAG}, s[26:27], {WS_EPOCH}
v_lshrrev_b32 v20, 3, v0
s_mov_b32 s73, 73728
v_mul_lo_u32 v21, v20, s73
v_lshrrev_b32 v22, 4, v0
v_xor_b32 v22, v22, v0
v_and_b32 v22, 7, v22
v_lshl_add_u32 v21, v22, 4, v21
s_and_b32 s90, {sW}, 1
s_mul_i32 s90, s90, {16*73728}
s_lshr_b32 s73, {sW}, 1
s_mul_i32 s73, s73, 1152
s_add_u32 s90, s90, s73
s_add_u32 s90, s90, s94
s_add_u32 s90, s90, 1024
s_lshl_b32 s91, {sW}, 11
s_add_u32 m0, s91, {L_X2}
v_xor_b32 v22, 64, v21
buffer_load_dwordx4 v21, {SX}, s90 offen lds
s_add_u32 m0, s91, {L_X2 + 1024}
s_add_u32 s90, s90, {8*73728}
buffer_load_dwordx4 v22, {SX}, s90 offen lds
s_cmp_lt_u32 {sJ}, 4
s_cselect_b32 s36, s14, s16
s_cselect_b32 s37, s15, s17
s_mov_b32 s38, 20736
s_mov_b32 s39, 0x20000
v_mul_u32_u24 v5, 36, v4
v_lshlrev_b32 v6, 1, v4
s_and_b32 s73, {sJ}, 3
s_lshl_b32 s92, s73, 3
""")
        self.srd(SG, 20, 1152)
        s = a.label("KV3")
        a(f"""
buffer_load_dwordx3 v[24:26], v5, {SKV}, s92 offen
buffer_load_ushort v27, v6, {SG}, 0 offen
v_add_u32 v5, {256*36}, v5
buffer_load_dwordx3 v[28:30], v5, {SKV}, s92 offen
buffer_load_ushort v31, v6, {SG}, 0 offen offset:512
s_cmp_gt_u32 {sW}, 0
s_cbranch_scc1 {s}
v_add_u32 v5, {256*36}, v5
buffer_load_dwordx3 v[40:42], v5, {SKV}, s92 offen
buffer_load_ushort v43, v6, {SG}, 0 offen offset:1024
{s}:
""")
        self.add1(CI)
        self.stamp(6, 3)
        self.srd(SWS, 26, WS_SIZE)
        a(f"""
v_lshrrev_b32 v7, 7, v4
v_lshlrev_b32 v7, 7, v7
v_lshl_add_u32 v7, v4, 4, v7
v_add_u32 v7, {L_P2KV}, v7
v_and_b32 v14, 15, v0
v_lshrrev_b32 v15, 4, v0
v_and_b32 v17, 31, v0
v_lshrrev_b32 v18, 5, v0
v_bfe_u32 v22, v0, 2, 2
v_lshlrev_b32 v22, 4, v22
v_and_b32 v23, 1, v0
v_lshl_add_u32 v22, v23, 3, v22
v_and_b32 v16, 1, v15
v_mul_u32_u24 v16, 2176, v16
v_lshl_add_u32 v16, v18, 10, v16
v_add_u32 v16, v16, v22
v_lshl_add_u32 v12, v15, 7, v22
v_add_u32 v12, {512*16 + 512}, v12
v_add_u32 v19, {L_P2KV}, v16
v_add_u32 v10, {L_P2KV}, v12
v_add_u32 v16, {L_P2Q}, v16
v_add_u32 v12, {L_P2Q}, v12
s_lshl_b32 s73, {sW}, 4
v_add_u32 v21, s73, v14
v_mul_u32_u24 v20, {XP}, v21
v_and_b32 v22, 1, v15
v_lshl_add_u32 v20, v22, 8, v20
v_lshl_add_u32 v20, v18, 7, v20
v_lshrrev_b32 v22, 1, v21
v_xor_b32 v22, v22, v15
v_and_b32 v22, 7, v22
v_lshlrev_b32 v22, 4, v22
v_lshl_add_u32 v11, v21, 7, v22
v_add_u32 v11, {L_X2}, v11
v_xor_b32 v9, 64, v11
s_lshl_b32 s90, {sP}, 1
s_lshr_b32 s73, {sW}, 1
s_add_u32 s90, s90, s73
s_and_b32 s91, {sW}, 1
s_mov_b32 s92, {(LOG2E_BITS | 0x80000000):#x}
s_lshl_b32 s99, {sW}, 6
s_add_u32 s99, s99, {L_G}
""")
        RG, XF, AK_ = 32, 160, 252
        def wrd(b1, b2, T, dst):
            base, off = (b1, (T >> 3) * 4352 + (T & 7) * 128) if T < 16 else (b2, (T - 16) * 512)
            a(f"ds_read_b64_tr_b16 {vr(dst,2)}, {base} offset:{off}\nds_read_b64_tr_b16 {vr(dst+2,2)}, {base} offset:{off+64}")
        def land():
            s = a.label("KW")
            a(f"s_waitcnt vmcnt(0)\nds_write_b128 v7, v[24:27]\nds_write_b128 v7, v[28:31] offset:{4096+256}")
            a(f"s_cmp_gt_u32 {sW}, 0\ns_cbranch_scc1 {s}\nds_write_b128 v7, v[40:43] offset:{8192+512}\n{s}:")
            self.stamp(1, 3)
            self.add1(CX)
            self.wait(CX, 4, sleep=0)
            self.tag()
            self.stamp(2, 3)
        def kv_gemm(swap):
            acc = vr(AK_, 4)
            def rd(T):
                wrd("v19", "v10", T, 44 + 4 * (T % 5))
                if T < 16:
                    a(f"ds_read_b128 {vr(XF+4*T,4)}, v20 offset:{(T >> 3) * 512 + (T & 7) * 16}")
                else:
                    a(f"ds_read_b128 {vr(XF+4*T,4)}, {'v11' if T == 16 else 'v9'}")
            for T in range(4):
                rd(T)
            for T in range(18):
                if T + 4 < 18:
                    rd(T + 4)
                a(f"s_waitcnt lgkmcnt({3 * (min(T + 5, 18) - T - 1)})")
                W, X = vr(44 + 4 * (T % 5), 4), vr(XF + 4 * T, 4)
                A, B = (X, W) if swap else (W, X)
                a(f"v_mfma_f32_16x16x32_bf16 {acc}, {A}, {B}, {'0' if T == 0 else acc}")
            self.add1(CK)
        kpath = a.label("EK"); done = a.label("EKD")
        a(f"s_cmp_lt_u32 {sJ}, 4\ns_cbranch_scc1 {kpath}")
        a(f"""
s_lshl_b32 s90, s90, 1
s_add_u32 s90, s90, s91
s_mul_i32 s90, s90, {VPITCH}
s_add_u32 s90, s90, {WS_VF}
s_sub_u32 s73, {sJ}, 4
s_lshl_b32 s73, s73, 2
v_add_u32 v36, s73, v14
v_cmp_eq_u32 vcc, 7, v14
v_lshrrev_b32 v37, 1, v15
v_cndmask_b32 v36, v36, 18, vcc
v_lshlrev_b32 v36, 5, v36
v_lshl_add_u32 v36, v37, 3, v36
v_and_b32 v37, 1, v15
v_lshl_add_u32 v36, v37, 4, v36
v_mov_b32 v37, 0x3f803f80
v_lshl_add_u32 v38, v15, 4, s99
s_mov_b32 s88, 0x000f000f
s_cmp_eq_u32 {sJ}, 7
s_cmov_b32 s88, 0x00bf00bf
""")
        land()
        kv_gemm(True)
        a(f"""
v_cvt_pk_bf16_f32 v22, v{AK_}, v{AK_+1}
v_cvt_pk_bf16_f32 v23, v{AK_+2}, v{AK_+3}
v_cndmask_b32 v22, v22, v37, vcc
v_cndmask_b32 v23, v23, v37, vcc
s_mov_b32 exec_lo, s88
s_mov_b32 exec_hi, s88
buffer_store_dwordx2 v[22:23], v36, {SWS}, s90 offen sc1
s_mov_b64 exec, -1
""")
        for r in range(4):
            a(f"v_mul_f32 v{AK_+r}, s92, v{AK_+r}\nv_exp_f32 v{AK_+r}, v{AK_+r}")
        for r in range(4):
            a(f"v_add_f32 v{AK_+r}, 1.0, v{AK_+r}\nv_rcp_f32 v{AK_+r}, v{AK_+r}")
        a(f"""
s_mov_b32 exec_lo, 0x00400040
s_mov_b32 exec_hi, 0x00400040
ds_write_b128 v38, {vr(AK_,4)}
s_branch {done}
{kpath}:
s_lshl_b32 s91, s91, 4
v_add_u32 v37, s91, v14
v_lshlrev_b32 v36, 5, v37
v_lshlrev_b32 v37, 2, v37
v_lshl_add_u32 v38, v14, 2, s99
s_lshl_b32 s88, s90, 10
s_lshl_b32 s73, {sJ}, 3
s_add_u32 s88, s88, s73
s_add_u32 s88, s88, {WS_K16}
s_lshl_b32 s90, s90, 7
s_add_u32 s90, s90, {WS_KX}
s_cmp_lg_u32 {sJ}, 3
s_cmov_b32 s90, {OOB}
s_mov_b32 s91, {QSCALE_BITS:#x}
""")
        land()
        kv_gemm(False)
        a(f"""
v_mul_f32 v39, s92, v{AK_+2}
v_mul_f32 v{AK_}, s91, v{AK_}
v_mul_f32 v{AK_+1}, s91, v{AK_+1}
v_mul_f32 v{AK_+2}, s91, v{AK_+2}
v_mul_f32 v{AK_+3}, s91, v{AK_+3}
v_cvt_pk_bf16_f32 v22, v{AK_}, v{AK_+1}
v_cvt_pk_bf16_f32 v23, v{AK_+2}, v{AK_+3}
s_mov_b64 exec, 0xffff
buffer_store_dwordx2 v[22:23], v36, {SWS}, s88 offen sc1
s_mov_b32 exec_lo, 0xffff0000
buffer_store_dword v22, v37, {SWS}, s90 offen sc1
v_exp_f32 v39, v39
s_nop 0
v_add_f32 v39, 1.0, v39
v_rcp_f32 v39, v39
s_nop 0
ds_write_b32 v38, v39
{done}:
s_mov_b64 exec, -1
""")
        self.stamp(7, 3)
        a(f"""
s_lshl_b32 s73, {sP}, 3
s_add_u32 s73, s73, {sJ}
s_lshl_b32 s73, s73, 4
s_add_u32 s91, s73, {WS_FKV}
v_bfe_u32 v22, v0, 2, 2
v_lshl_add_u32 v19, v18, 3, v22
v_lshlrev_b32 v19, 6, v19
v_bfe_u32 v22, v0, 4, 1
v_lshl_add_u32 v19, v22, 5, v19
v_and_b32 v22, 3, v0
v_lshl_add_u32 v19, v22, 3, v19
s_and_b32 s73, {sW}, 1
s_mul_i32 s73, s73, {L_WQ1 - L_WQ0}
s_add_u32 s73, s73, {L_WQ0}
v_add_u32 v19, s73, v19
s_lshr_b32 s73, {sW}, 1
s_lshl_b32 s73, s73, 5
v_add_u32 v21, s73, v17
v_mul_u32_u24 v13, {XP}, v21
v_lshl_add_u32 v13, v18, 4, v13
v_mul_u32_u24 v26, 48, v4
v_add_u32 v26, {L_QS + 36}, v26
v_lshrrev_b32 v22, 1, v21
v_xor_b32 v22, v22, v18
v_and_b32 v22, 7, v22
v_lshlrev_b32 v22, 4, v22
v_lshl_add_u32 v6, v21, 7, v22
v_add_u32 v6, {L_X2}, v6
v_xor_b32 v7, 32, v6
v_xor_b32 v8, 64, v6
v_xor_b32 v9, 0x60, v6
v_mul_u32_u24 v22, 48, v21
v_add_u32 v22, {L_QS}, v22
v_lshl_add_u32 v23, v18, 3, v22
v_mul_u32_u24 v24, 3044, v18
v_add_u32 v24, v24, v22
s_lshl_b32 s73, {sW}, 4
v_add_u32 v25, s73, v14
v_mul_u32_u24 v25, 48, v25
v_lshl_add_u32 v25, v15, 3, v25
v_add_u32 v25, {L_QS + 3*3072 + 20}, v25
v_mov_b32 v27, 0
v_lshlrev_b32 v28, 4, v0
s_lshl_b32 s93, {sW}, 10
s_add_u32 s93, s93, {WS_FKV}
""")
        self.kv_addr()
        RX, AM, AXQ = 64, 232, 248
        NX, X0 = self.opt("nx", 18), self.opt("x0", 14)
        pre = lambda t: X0 <= t < X0 + NX
        for t in range(X0, X0 + NX):
            a(f"ds_read_b128 {vr(88+4*(t-X0),4)}, v13 offset:{t*32}")
            if (t - X0) % 6 == 5:
                a("s_waitcnt lgkmcnt(6)")
        def rdm(t):
            b = RG + 8 * (t % 4)
            a(f"ds_read_b64_tr_b16 {vr(b,2)}, v19 offset:{t*1024}\nds_read_b64_tr_b16 {vr(b+2,2)}, v19 offset:{t*1024+256}")
            if not pre(t):
                a(f"ds_read_b128 {vr(b+4,4)}, v13 offset:{t*32}" if t < 32 else f"ds_read_b128 {vr(b+4,4)}, v{6+t-32}")
        def mm(t):
            b = RG + 8 * (t % 4)
            xb = vr(88 + 4 * (t - X0), 4) if pre(t) else vr(b + 4, 4)
            a(f"v_mfma_f32_32x32x16_bf16 {vr(AM,16)}, {vr(b,4)}, {xb}, {'0' if t == 0 else vr(AM,16)}")
        cost = lambda it: 3 if it[0] == "m" and not pre(it[1]) else 2
        def issue(it):
            if it[0] == "m": rdm(it[1])
            else: wrd("v16", "v12", it[1], RX + 4 * (it[1] % 3))
        def stage(t0, t1, xs=(), hook=None):
            seq, xs = [], list(xs)
            for t in range(t0, t1):
                seq.append(("m", t))
                for _ in range(-(-len(xs) // (t1 - t))):
                    seq.append(("x", xs.pop(0)))
            for it in seq[:3]:
                issue(it)
            for i, it in enumerate(seq):
                a(f"s_waitcnt lgkmcnt({sum(cost(x) for x in seq[i + 1:i + 3])})")
                if it[0] == "m":
                    mm(it[1])
                else:
                    T = it[1]
                    a(f"v_mfma_f32_16x16x32_bf16 {vr(AXQ,4)}, {vr(RX+4*(T%3),4)}, {vr(XF+4*T,4)}, {'0' if T == 0 else vr(AXQ,4)}")
                if i + 3 < len(seq):
                    issue(seq[i + 3])
                if hook and i == hook[0]:
                    a(hook[1])
        def kv_flag():
            nf = a.label("NF")
            a(f"s_waitcnt vmcnt(0)\ns_mov_b64 exec, 1\nds_add_rtn_u32 v1, v2, v3 offset:{CF}\ns_mov_b64 exec, -1\ns_waitcnt lgkmcnt(0)")
            a(f"v_readfirstlane_b32 s73, v1\ns_cmp_lg_u32 s73, 3\ns_cbranch_scc1 {nf}")
            self.set_flag("s91")
            a(f"{nf}:")
            self.stamp(3, 3)
        FA = self.opt("fa", 0)
        if FA == 0:
            kv_flag()
        self.wait(C0A, 2, sleep=0)
        self.stamp(4, 3)
        stage(0, 12)
        if FA == 12:
            kv_flag()
        self.add1(CE)
        self.wait(C0B, 2, sleep=0)
        flags = f"buffer_load_dword v84, v28, {SWS}, s93 offen sc1"
        stage(12, 20, range(0, 8))
        self.wait(C0D, 2, sleep=0)
        fp = self.opt("fp", 0)
        stage(20, 32, range(8, 16), hook=(fp, flags) if fp < 20 else None)
        a(f"ds_read_b32 v31, v2 offset:{CE}")
        self.wait(C0C, 2, sleep=0)
        self.stamp(9, 3)
        if fp >= 20:
            a(flags)
        stage(32, 36, range(16, 18))
        self.stamp(8, 3)
        miss = a.label("KM")
        a("s_waitcnt vmcnt(0)")
        self.cmp_regs([84], sTAG)
        a(f"s_cselect_b32 s89, 1, 0\ns_cbranch_scc0 {miss}")
        self.kv_loads(0, 2)
        a(f"{miss}:")
        self.stamp(11, 3)
        ok = a.label("CEOK")
        a(f"v_readfirstlane_b32 s73, v31\ns_cmp_ge_u32 s73, 4\ns_cbranch_scc1 {ok}")
        self.wait(CE, 4, sleep=0)
        a(f"{ok}:")
        a(f"ds_write_b32 v26, v27\nv_cvt_pk_bf16_f32 v{AXQ}, v{AXQ}, v{AXQ+1}\nv_cvt_pk_bf16_f32 v{AXQ+1}, v{AXQ+2}, v{AXQ+3}")
        a(f"s_mov_b32 exec_hi, 0\nds_write2_b32 v25, v{AXQ}, v{AXQ+1} offset0:0 offset1:1\ns_mov_b64 exec, -1")
        m1 = a.label("QM1"); md = a.label("QMD")
        a(f"s_bitcmp1_b32 {sW}, 0\ns_cbranch_scc1 {m1}")
        off = lambda c: (c // 18) * 3072 + (c % 18) * 2
        for m in range(2):
            if m == 1:
                a(f"s_branch {md}\n{m1}:")
            for k in range(8):
                c0 = 32 * m + 8 * (k // 2) + 2 * (k % 2)
                d = off(c0 + 4) - off(c0)
                assert d in (8, 3044)
                a(f"v_cvt_pk_bf16_f32 v{AM+k}, v{AM+2*k}, v{AM+2*k+1}")
                a(f"ds_write_b32 {'v23' if d == 8 else 'v24'}, v{AM+k} offset:{off(c0)}")
        a(f"{md}:")
        self.add1(C1)
        have = a.label("KH")
        a(f"s_cmp_eq_u32 s89, 1\ns_cbranch_scc1 {have}")
        self.poll(flags, [84], sleep=12)
        self.kv_loads(0, 2)
        a(f"{have}:")
        self.kv_loads(2)
        self.stamp(10, 3); self.stamp(10)
        a(f"s_setprio 2\ns_mov_b32 s99, {OOB}\nv_mov_b32 v7, v2")

    def tail_addr(self):
        return (f"""
s_lshr_b32 s88, {sW}, 1
s_and_b32 s89, {sW}, 1
v_lshrrev_b32 v32, 5, v0
v_and_b32 v33, 15, v0
v_lshrrev_b32 v34, 4, v0
v_bfe_u32 v35, v0, 2, 2
v_and_b32 v36, 3, v0
v_and_b32 v37, 1, v34
v_and_b32 v38, 1, v0
v_lshlrev_b32 v39, 2, v38
v_lshl_add_u32 v39, v37, 1, v39
v_lshrrev_b32 v40, 1, v36
v_add_u32 v39, v39, v40
s_mul_i32 s73, s88, {L_WO1 - L_WO0}
v_lshl_add_u32 v39, v39, 3, s73
v_lshl_add_u32 v6, v32, 2, v35
v_lshl_add_u32 v6, v6, 6, v39
v_lshrrev_b32 v40, 1, v35
v_mul_u32_u24 v40, 72, v40
v_and_b32 v41, 1, v35
v_add3_u32 v40, v40, v41, 16
v_lshl_add_u32 v9, v40, 6, v39
v_mul_u32_u24 v41, 18432, v32
v_add_u32 v9, v9, v41
s_mov_b32 s73, {L_WOX}
v_lshl_add_u32 v38, v38, 3, s73
v_mul_u32_u24 v11, 288, v37
v_add_u32 v11, v11, v40
v_lshl_add_u32 v11, v11, 4, v38
v_mul_u32_u24 v10, 72, v32
v_lshl_add_u32 v10, v37, 2, v10
v_add_u32 v10, v10, v35
v_lshl_add_u32 v10, v10, 4, v38
v_lshlrev_b32 v12, 4, v33
v_lshl_add_u32 v12, v37, 9, v12
v_lshl_add_u32 v14, v32, 10, v12
v_cmp_gt_u32 vcc, 32, v0
v_mov_b32 v40, {OOB}
s_lshl_b32 s73, s88, 8
v_add_u32 v12, s73, v14
v_cndmask_b32 v13, v40, v12, vcc
v_cmp_gt_u32 vcc, 8, v33
v_lshrrev_b32 v15, 3, v0
v_mul_u32_u24 v15, {TP}, v15
v_cndmask_b32 v14, v40, v14, vcc
v_lshlrev_b32 v40, 2, v37
v_xor_b32 v40, v40, v0
v_and_b32 v40, 7, v40
v_lshl_add_u32 v15, v40, 4, v15
v_bfe_u32 v40, v0, 3, 1
v_xor_b32 v40, s89, v40
v_lshlrev_b32 v40, 6, v40
v_lshl_add_u32 v40, v36, 3, v40
v_lshl_add_u32 v40, v35, 7, v40
v_lshl_add_u32 v16, v32, 10, v40
v_lshl_add_u32 v16, v37, 5, v16
v_lshl_add_u32 v17, v34, 10, v40
s_lshl_b32 s73, s88, 5
v_add_u32 v17, s73, v17
s_mov_b32 s73, 73728
v_and_b32 v40, 31, v0
v_mul_lo_u32 v18, v40, s73
v_lshl_add_u32 v18, v32, 5, v18
v_mul_lo_u32 v19, v33, s73
v_lshl_add_u32 v19, v34, 3, v19
""").strip().split("\n")

    def panel_setup(self, nw, va=14):
        self.a(f"""
v_lshrrev_b32 v{va}, 2, v0
v_mul_u32_u24 v{va}, 1152, v{va}
v_and_b32 v{va+1}, 3, v0
v_lshl_add_u32 v{va}, v{va+1}, 4, v{va}
v_mul_u32_u24 v{va+1}, 1152, v0
s_and_b32 s73, {sW}, {nw-1}
s_mul_i32 s84, s73, {16*1152}
s_add_u32 s84, s84, s95
s_lshl_b32 s85, s73, 10
""")

    def panel_loads(self, srd, l0, l1, lx, padded, end, nw, va=14, rotate=False):
        a = self.a
        lp = a.label("PNL")
        if rotate:
            a(f"s_lshr_b32 s73, {sP}, 3\ns_mul_i32 s82, s73, {8*1024}\ns_add_u32 s85, s85, s82\ns_mul_i32 s82, s73, {8*16*1152}\ns_add_u32 s84, s84, s82\ns_mov_b32 s88, {end//nw - 1}")
        a(f"""
{lp}:
s_add_u32 m0, s85, {l0}
s_add_u32 s83, s84, 128
buffer_load_dwordx4 v{va}, {srd}, s84 offen lds
s_add_u32 m0, s85, {l1 - 64}
s_lshr_b32 s82, s85, 2
buffer_load_dwordx4 v{va}, {srd}, s84 offen offset:64 lds
""")
        if padded:
            a("s_lshr_b32 s73, s85, 13\ns_lshl_b32 s73, s73, 7\ns_add_u32 s82, s82, s73")
        a(f"""
s_add_u32 m0, s82, {lx}
s_mov_b64 exec, 0xffff
buffer_load_dwordx4 v{va+1}, {srd}, s83 offen lds
s_mov_b64 exec, -1
s_add_u32 s85, s85, {1024*nw}
s_add_u32 s84, s84, {16*nw*1152}
s_cmp_lt_u32 s85, {1024*end}
""")
        if rotate:
            a(f"s_cselect_b32 s82, 0, {1024*end}\ns_cselect_b32 s83, 0, {16*1152*end}\ns_sub_u32 s85, s85, s82\ns_sub_u32 s84, s84, s83\ns_sub_u32 s88, s88, 1\ns_cbranch_scc0 {lp}")
        else:
            a(f"s_cbranch_scc1 {lp}")

    def l_front(self):
        a = self.a
        a(f"""
s_load_dword {sTAG}, s[26:27], {WS_EPOCH}
v_lshl_add_u32 v5, v0, 2, v2
v_mov_b32 v6, 0
ds_write_b32 v5, v6 offset:2048
v_lshlrev_b32 v5, 3, v4
v_add_u32 v5, {L_CT - 2048}, v5
v_mov_b32 v7, 0
ds_write_b64 v5, v[6:7]
s_sub_u32 s99, {sW}, 4
v_and_b32 v18, 31, v0
v_lshrrev_b32 v19, 5, v0
s_lshl_b32 s89, s99, 3
s_add_u32 s89, s89, {sJ}
s_cmp_ge_u32 s89, 18
s_cselect_b32 s89, 99, s89
v_bfe_u32 v20, v0, 2, 1
v_lshlrev_b32 v20, 4, v20
v_bfe_u32 v21, v0, 3, 2
v_lshl_add_u32 v20, v21, 2, v20
v_and_b32 v21, 3, v0
v_add_u32 v20, v20, v21
""")
        if "noipf" not in self.opts:
            n4 = a.label("NPF")
            a(f"""
s_cmp_lg_u32 {sW}, 6
s_cbranch_scc1 {n4}
s_getpc_b64 s[64:65]
L_pc0:
s_sub_u32 s64, s64, L_pc0-{NAME}_kernel
s_subb_u32 s65, s65, 0
s_mov_b32 s66, L_end-{NAME}_kernel
s_mov_b32 s67, 0x20000
s_lshr_b32 s73, s2, 3
v_lshlrev_b32 v8, 12, v0
s_lshl_b32 s73, s73, 7
buffer_load_dword v9, v8, {STB}, s73 offen
s_getpc_b64 s[64:65]
s_add_u32 s64, s64, spectral_tables@rel32@lo+4
s_addc_u32 s65, s65, spectral_tables@rel32@hi+12
s_mov_b32 s66, {2*self.NTAB*1024}
s_nop 1
buffer_load_dword v10, v8, {STB}, s73 offen
{n4}:
""")
        self.srd(SWS, 26, WS_SIZE)
        self.srd(SWQ, 12, 663552)
        FPRE = self.opt("fpre", 8)
        def fsetup():
            a(f"""
s_lshl_b32 s73, s89, 5
v_add_u32 v44, s73, v18
v_lshrrev_b32 v45, 1, v44
v_and_b32 v46, 1, v44
v_cmp_eq_u32 vcc, 1, v44
v_mov_b32 v47, 288
v_cndmask_b32 v45, v45, v47, vcc
v_cndmask_b32 v46, v46, 0, vcc
v_and_b32 v47, 1, v45
v_lshlrev_b32 v47, 31, v47
v_or_b32 v17, 1.0, v47
v_cvt_f32_u32 v45, v45
v_cvt_f32_u32 v46, v46
v_mul_f32 v45, {f32bits(1/576):#x}, v45
v_mul_f32 v46, 0x3e800000, v46
v_lshlrev_b32 v47, 3, v19
v_cvt_f32_u32 v47, v47
v_fma_f32 v46, v47, v45, v46
v_mul_f32 v55, 0x41800000, v45
""")
            for jj in range(8):
                a(f"s_mov_b32 s73, {f32bits(jj):#x}\nv_fma_f32 v{56+jj}, s73, v45, v46")
        def fgen(t):
            if t:
                a(f"s_mov_b32 s73, {f32bits(t):#x}")
            for jj in range(8):
                if t:
                    a(f"v_fma_f32 v{64+jj}, s73, v55, v{56+jj}\nv_cos_f32 v{64+jj}, v{64+jj}")
                else:
                    a(f"v_cos_f32 v{64+jj}, v{56+jj}")
            for k in range(4):
                a(f"v_cvt_pk_bf16_f32 v{104+4*t+k}, v{64+2*k}, v{65+2*k}")
        a("s_waitcnt lgkmcnt(0)\ns_barrier")
        self.tag()
        npre = a.label("NPRE"); n7 = a.label("NW7")
        a(f"{n7}:\ns_cmp_eq_u32 s89, 99\ns_cbranch_scc1 {npre}")
        fsetup()
        for t in range(FPRE):
            fgen(t)
        a(f"{npre}:")
        wqd = a.label("WQD")
        a(f"s_cmp_lt_u32 {sW}, 6\ns_cbranch_scc1 {wqd}")
        self.panel_setup(2)
        self.wait(CI, 4, sleep=0)
        self.panel_loads(SWQ, L_WQ0, L_WQ1, L_P2Q, True, 20, 2)
        a("s_waitcnt vmcnt(12)")
        self.add1(C0A)
        self.panel_loads(SWQ, L_WQ0, L_WQ1, L_P2Q, True, 26, 2)
        self.wait(CK, 4, sleep=0)
        self.panel_loads(SWQ, L_WQ0, L_WQ1, L_P2Q, True, 36, 2)
        self.stamp(6, 3)
        a("s_waitcnt vmcnt(24)")
        self.add1(C0B)
        a("s_waitcnt vmcnt(6)")
        self.add1(C0D)
        a("s_waitcnt vmcnt(0)")
        self.add1(C0C)
        self.stamp(1, 3)
        a(f"{wqd}:")
        nod = a.label("NOD")
        a(f"s_cmp_eq_u32 s89, 99\ns_cbranch_scc1 {nod}")
        for t in range(FPRE, 18):
            fgen(t)
        self.stamp(9, 3)
        a(f"""
v_mul_u32_u24 v25, {XP}, v20
v_lshl_add_u32 v25, v19, 4, v25
v_lshrrev_b32 v22, 1, v20
v_xor_b32 v22, v22, v19
v_and_b32 v22, 7, v22
v_lshlrev_b32 v22, 4, v22
v_lshl_add_u32 v6, v20, 7, v22
v_add_u32 v6, {L_X2}, v6
v_xor_b32 v7, 32, v6
v_xor_b32 v8, 64, v6
v_xor_b32 v9, 0x60, v6
s_mul_i32 s73, s99, 4608
s_add_u32 s73, s73, {L_EX}
v_mul_u32_u24 v10, 144, v18
v_lshl_add_u32 v10, v19, 5, v10
v_add_u32 v10, s73, v10
v_lshrrev_b32 v12, 3, v0
v_and_b32 v13, 7, v0
v_lshlrev_b32 v13, 4, v13
v_mul_u32_u24 v11, 144, v12
v_add3_u32 v11, v11, v13, s73
v_mul_u32_u24 v22, {TP}, v12
v_add_u32 v22, v22, v13
s_mul_i32 s90, s89, {32*TP}
s_lshl_b32 s73, {sP}, 7
s_add_u32 s90, s90, s73
s_add_u32 s90, s90, {WS_T}
""")
        RG = 44
        def frag(t, n, q):
            return vr(RG + 16 * (t % 3) + 8 * n + 4 * q, 4)
        def rd(t):
            for n in range(2):
                for q in range(2):
                    ks = t + 18 * q
                    if ks < 32:
                        a(f"ds_read_b128 {frag(t,n,q)}, v25 offset:{n*32*XP + ks*32}")
                    else:
                        a(f"ds_read_b128 {frag(t,n,q)}, v{6+ks-32} offset:{n*4096}")
        def dft(t0, t1):
            for t in range(t0, min(t0 + 2, t1)):
                rd(t)
            for t in range(t0, t1):
                if t + 2 < t1:
                    rd(t + 2)
                a(f"s_waitcnt lgkmcnt({4 * (min(t+3, t1) - t - 1)})")
                for n in range(2):
                    for q in range(2):
                        acc = vr(176 + 32 * n + 16 * q, 16)
                        a(f"v_mfma_f32_32x32x16_bf16 {acc}, {frag(t,n,q)}, {vr(104+4*t,4)}, {'0' if t == 0 else acc}")
        DPRE = self.opt("dpre", 14)
        if DPRE:
            self.wait(CK, 4)
            dft(0, DPRE)
        a("s_setprio 3")
        self.wait(C1, 4)
        self.stamp(3, 3)
        dft(DPRE, 18)
        for n in range(2):
            b = 176 + 32 * n
            for r in range(16):
                a(f"v_fma_f32 v{b+r}, v17, v{b+16+r}, v{b+r}")
            for k in range(8):
                a(f"v_cvt_pk_bf16_f32 v{b+k}, v{b+2*k}, v{b+2*k+1}")
            a(f"ds_write_b128 v10, {vr(b,4)} offset:{64*n}\nds_write_b128 v10, {vr(b+4,4)} offset:{64*n+16}")
        for k in range(4):
            a(f"ds_read_b128 {vr(56+4*k,4)}, v11 offset:{8*144*k}")
        self.stamp(8, 3)
        self.wait(CV, 4, sleep=2)
        for k in range(4):
            a(f"buffer_store_dwordx4 {vr(56+4*k,4)}, v22, {SWS}, s90 offen sc1\ns_add_u32 s90, s90, {8*TP}")
        a(f"{nod}:")
        n6 = a.label("N6"); n7 = a.label("N7")
        a(f"s_cmp_eq_u32 {sW}, 7\ns_cbranch_scc1 {n7}\ns_cmp_lg_u32 {sW}, 6\ns_cbranch_scc1 {n6}\ns_setprio 3")
        self.wait(CV, 4, sleep=2)
        self.poison()
        if "tcv" in self.opts:
            self.stage2_tables(0)
            a("s_waitcnt vmcnt(27)")
            self.add1(CD)
            a(f"s_branch {n7}")
        a(f"{n6}:\ns_waitcnt vmcnt(0)")
        self.add1(CD)
        self.stamp(4, 3); self.stamp(4)
        a(f"{n7}:")

    def g_gen(self):
        a = self.a
        N = 1.0 / (M.S * M.D)
        skip = a.label("GS"); nx = a.label("GNX"); nk = a.label("GNK")
        assert all((f * 1821) >> 16 == f // 36 for f in range(864))
        assert all((f * 21846) >> 16 == f // 3 for f in range(24))
        a(f"""
s_mov_b32 s99, {OOB}
s_cmp_ge_u32 s2, 216
s_cbranch_scc1 {skip}
s_lshl_b32 s90, s2, 2
s_lshl_b32 s99, s2, 12
s_add_u32 s99, s99, {WS_G}
s_mul_i32 s91, s90, 1821
s_lshr_b32 s91, s91, 16
s_mul_i32 s73, s91, 36
s_sub_u32 s92, s90, s73
s_mul_i32 s93, s91, 21846
s_lshr_b32 s93, s93, 16
s_mul_i32 s73, s93, 3
s_sub_u32 s91, s91, s73
s_mul_i32 s93, s93, 72
s_lshl_b32 s73, s91, 5
s_add_u32 s93, s93, s73
v_mov_b32 v64, v20
s_cmp_lg_u32 s91, 2
s_cbranch_scc1 {nx}
v_mov_b32 v64, v18
{nx}:
v_add_u32 v64, s93, v64
s_lshl_b32 s73, s92, 3
v_lshl_add_u32 v65, v19, 2, s73
v_mul_u32_u24 v65, v65, v64
v_mul_u32_u24 v67, 5, v64
s_mov_b32 s73, {f32bits(1/576):#x}
s_mov_b32 s93, {f32bits(2*N):#x}
""")
        for fr in range(4):
            for cq in range(4):
                a(f"v_cvt_f32_u32 v66, v65\nv_mul_f32 v66, s73, v66\nv_fract_f32 v66, v66")
                a(f"v_cos_f32 v{68+2*cq}, v66\nv_sin_f32 v{69+2*cq}, v66")
                a("v_add_u32 v65, v65, v64" if cq < 3 else "v_add_u32 v65, v65, v67")
            for cq in range(4):
                a(f"v_mul_f32 v{68+2*cq}, s93, v{68+2*cq}\nv_mul_f32 v{69+2*cq}, s93, -v{69+2*cq}")
            if fr == 0:
                a(f"""
s_cmp_lg_u32 s92, 0
s_cbranch_scc1 {nk}
s_mov_b32 exec_hi, 0
v_mov_b32 v68, {f32bits(N):#x}
v_lshlrev_b32 v69, 31, v64
v_or_b32 v69, v68, v69
s_mov_b64 exec, -1
{nk}:
""")
            for k in range(4):
                a(f"v_cvt_pk_bf16_f32 v{48+4*fr+k}, v{68+2*k}, v{69+2*k}")
        a(f"{skip}:")

    WB = 176

    def poison(self):
        a = self.a
        a(f"v_lshlrev_b32 v24, 4, v0\nv_mov_b32 v28, -1\nv_mov_b32 v29, -1\nv_mov_b32 v30, -1\nv_mov_b32 v31, -1")
        a(f"s_mul_i32 s90, {sP}, {8*9216}\ns_add_u32 s90, s90, {WS_OF}\ns_mul_i32 s91, {sJ}, 9216\ns_add_u32 s91, s91, s90\ns_add_u32 s91, s91, 8192")
        a(f"buffer_store_dwordx4 v[28:31], v24, {SWS}, s91 offen sc1\ns_lshl_b32 s73, {sJ}, 10\ns_add_u32 s90, s90, s73")
        for i in range(8):
            a(f"buffer_store_dwordx4 v[28:31], v24, {SWS}, s90 offen sc1\ns_add_u32 s90, s90, 9216")

    def wt_loads(self):
        a = self.a
        self.srd(SWR, 6, 2048 * 578)
        self.srd(SWI, 8, 2048 * 578)
        a(f"""
v_and_b32 v26, 7, v0
v_lshrrev_b32 v27, 3, v0
v_mul_u32_u24 v22, 578, v26
v_mad_u32_u24 v22, v27, 18, v22
s_lshr_b32 s93, s2, 6
s_bfe_u32 s92, s2, 0x20004
s_and_b32 s88, s2, 15
s_lshl_b32 s90, s88, 7
s_lshl_b32 s73, s92, 3
s_add_u32 s90, s90, s73
s_mul_i32 s90, s90, 578
s_mul_i32 s73, s93, 144
s_add_u32 s90, s90, s73
""")
        for jr in range(4):
            for ri, srd in enumerate((SWR, SWI)):
                b = self.WB + 24 * ri + 6 * jr
                a(f"buffer_load_dwordx4 {vr(b,4)}, v22, {srd}, s90 offen\nbuffer_load_dword v{b+4}, v22, {srd}, s90 offen offset:16")
            if jr < 3:
                a(f"s_add_u32 s90, s90, {32*578}")
        a(f"""
s_mov_b32 s73, {9*WP}
v_mul_lo_u32 v23, v27, s73
v_lshl_add_u32 v23, v26, 4, v23
s_mul_i32 s98, s93, {72*WP}
s_lshl_b32 s73, s88, 8
s_add_u32 s98, s98, s73
s_and_b32 s73, s92, 1
s_lshl_b32 s73, s73, 7
s_add_u32 s98, s98, s73
s_lshr_b32 s73, s92, 1
s_lshl_b32 s73, s73, 12
s_add_u32 s98, s98, s73
s_add_u32 s98, s98, {WS_WT}
""")

    def wt_stores(self):
        a = self.a
        last = a.label("WL")
        a("s_mov_b32 s92, 0x05040100\ns_mov_b32 s93, 0x07060302")
        for x in range(10):
            if x == 9:
                a(f"s_cmp_lt_u32 s2, 192\ns_cbranch_scc1 {last}\ns_mov_b32 exec_lo, 0\ns_mov_b32 exec_hi, 0xff000000")
            t = self.WB + 48 + 4 * (x % 3)
            for ri in range(2):
                for pr in range(2):
                    lo = self.WB + 24 * ri + 12 * pr + x // 2
                    a(f"v_perm_b32 v{t+2*ri+pr}, v{lo+6}, v{lo}, {'s93' if x % 2 else 's92'}")
            a(f"buffer_store_dwordx4 {vr(t,4)}, v23, {SWS}, s98 offen sc1\ns_add_u32 s98, s98, {WP}")
        a(f"s_mov_b64 exec, -1\n{last}:")

    def s_flag(self):
        a = self.a
        self.g_gen()
        a("s_setprio 3\nv_lshlrev_b32 v24, 4, v0")
        self.wait(CV, 4, sleep=2)
        self.stamp(3, 3)
        self.wt_loads()
        self.stamp(8, 3)
        if "tcv" in self.opts:
            self.stage2_tables(0)
        a("s_waitcnt vmcnt(27)" if "tcv" in self.opts else "s_waitcnt vmcnt(0)")
        self.stamp(9, 3)
        self.wt_stores()
        for fr in range(4):
            a(f"buffer_store_dwordx4 {vr(48+4*fr,4)}, v24, {SWS}, s99 offen offset:{1024*fr} sc1")
        self.stamp(10, 3)
        self.flag4("s91", "s2", WS_FS)
        a("s_waitcnt vmcnt(0)")
        self.stamp(11, 3)
        self.wait(CD, 3, sleep=2)
        self.set_flag("s91")
        self.add1(CW)
        self.stamp(6); self.stamp(2, 3)
        if "tcv" not in self.opts:
            self.wait(CR, 4, sleep=4)
            self.stage2_tables(0)

    def attention(self):
        a = self.a
        K0, KX0, V0, S0, O0, Q0, QX0 = self.AK, self.AKX, self.AV, self.AS, self.AO, self.AQ, self.AQX
        a(f"""
v_and_b32 v84, 31, v0
v_lshrrev_b32 v85, 5, v0
s_lshr_b32 s88, {sW}, 2
s_mul_i32 s73, s88, 6144
s_add_u32 s73, s73, {L_QS}
v_mul_u32_u24 v{self.vQ}, 48, v84
v_add_u32 v{self.vQ}, s73, v{self.vQ}
v_add_u32 v{self.vQX}, 32, v{self.vQ}
v_lshl_add_u32 v{self.vQ}, v85, 4, v{self.vQ}
s_and_b32 s73, {sW}, 3
s_mul_i32 s73, s73, 2560
s_add_u32 s73, s73, {L_EX}
v_lshl_add_u32 v{self.vEX}, v0, 4, s73
s_add_u32 s73, s73, 2048
v_lshl_add_u32 v{self.vEX2}, v0, 3, s73
s_lshl_b32 s73, s88, 10
s_add_u32 s73, s73, {L_CT}
v_lshl_add_u32 v{self.vCT}, v0, 2, s73
s_mul_i32 s73, s88, {CN - C1}
v_add_u32 v86, s73, v2
v_mov_b32 v{QX0+1}, 0
v_mov_b32 v{QX0+2}, 0
""")
        self.wait(C1, 4, sleep=0)
        self.stamp(5); self.stamp(5, 3); self.stamp(1, 5)
        qmain = lambda q: f"ds_read_b128 {vr(Q0,4)}, v{self.vQ} offset:{1536*(q%4)}"
        qx = lambda q: f"ds_read_b32 v{QX0}, v{self.vQX} offset:{1536*(q%4)}\nds_read_b32 v{QX0+3}, v{self.vQX} offset:{1536*(q%4)}"
        a(qmain(0)); a(qx(0))
        keys = lambda kind, t: [("K", t)] if kind == "K" else [("V0", t), ("V1", t)]
        issued = [("X", t) for t in range(0, 8, 2)]
        for t in range(self.NFIRST):
            issued += keys("K", t) + keys("V", t)
        state = {"done": 0}
        def need(*ks):
            idx = max(issued.index(k) for k in ks) + 1
            if idx > state["done"]:
                state["done"] = idx
                return [f"s_waitcnt vmcnt({len(issued) - idx})"]
            return []
        slots = {}
        def put(g, name, *items):
            slots.setdefault((g, name), []).extend(items)
        def put_loads(kind, t, where):
            ins = self.ld_k(t, t % 8) if kind == "K" else self.ld_v(t, t % 8)
            for x, key, (g, name) in zip(ins, keys(kind, t), where):
                put(g, name, (key, x))
        for t in range(self.NFIRST, 8):
            g = t - self.NFIRST
            put_loads("K", t, [(g, "A")])
            put_loads("V", t, [(g, "B"), (g, "D")])
        for t in range(8):
            g = 24 + (3 * t) // 2
            put_loads("K", 8 + t, [(g, "D")])
            if t % 2 == 0:
                put(g, "B", (("X", 8 + t), self.ld_x(8 + t)))
            put_loads("V", 8 + t, [(g + 1, "A"), (g + 1, "B")])
        def slot(g, name):
            out = []
            for it in slots.get((g, name), []):
                if isinstance(it, tuple):
                    issued.append(it[0]); out.append(it[1])
                else:
                    out.append(it)
            return out
        sreg = lambda g: S0 + 16 * (g % 4)
        oreg = lambda ps: O0 + 10 * (ps % 4)
        def qk16(g):
            return f"v_mfma_f32_32x32x16_bf16 {vr(sreg(g),16)}, {vr(K0+4*(g%8),4)}, {vr(Q0,4)}, {vr(sreg(g),16)}"
        def qkx(g):
            i = (g % 8) // 2
            return f"v_mfma_f32_32x32x4_2b_bf16 {vr(sreg(g),32)}, {vr(KX0+(i&~1),2)}, {vr(QX0+2*(i%2),2)}, 0"
        def pv(g, u):
            o = vr(oreg(g // 8), 16)
            c = "0" if (g // 8 < 4 and g % 8 == 0 and u == 0) else o
            return f"v_mfma_f32_32x32x16_bf16 {o}, {vr(V0+8*(g%8)+4*u,4)}, {vr(sreg(g)+4*u,4)}, {c}"
        kt = lambda g: (g % 8) + (8 if g >= 32 else 0)
        xneed = lambda g: need(("X", kt(g)))
        def export(q):
            o = O0 + 10 * q
            return [f"ds_write_b128 v{self.vEX}, {vr(o,4)} offset:{10240*q}", f"ds_write_b128 v{self.vEX}, {vr(o+4,4)} offset:{10240*q+1024}",
                    f"ds_write_b64 v{self.vEX2}, {vr(o+8,2)} offset:{10240*q}",
                    f"ds_add_u32 v{self.vCT}, v3 offset:{256*q}"]
        ta = self.tail_addr()
        n0 = self.opt("ta", 24)
        for x in ta[:n0] + need(("X", 6)) + ["s_waitcnt lgkmcnt(0)", qkx(0)] + ta[n0:-20] + need(("K", 1)) + [qk16(0), qk16(1)] + ta[-20:]:
            a(x)
        for ps in range(7):
            q1, q2 = qx(ps + 1).split("\n")
            put(8 * ps + 4, "D", q1); put(8 * ps + 5, "A", q2)
            put(8 * ps + 5, "D", qmain(ps + 1))
        for ps in range(5, 8):
            ex = export(ps - 5)
            put(8 * ps, "D", ex[0]); put(8 * ps + 1, "A", ex[1]); put(8 * ps + 1, "B", ex[2]); put(8 * ps + 1, "C", ex[3])
        hi = a.label("PHI"); nf = a.label("NYF"); lo = a.label("PLO"); ok = a.label("CNOK")
        put(3, "D", f"s_mov_b64 exec, 1\nds_add_u32 v2, v3 offset:{CV}\ns_mov_b64 exec, -1\ns_cmp_lt_u32 {sW}, 4\ns_cbranch_scc1 {hi}\ns_setprio 1\n{hi}:")
        put(1, "C", f"s_cmp_eq_u32 s99, {OOB}\ns_cbranch_scc1 {nf}\ns_waitcnt vmcnt(5)\ns_mov_b64 exec, 1\nds_add_rtn_u32 v8, v7, v3 offset:{YA}\n"
                    f"v_mov_b32 v1, {sTAG}\ns_waitcnt lgkmcnt(0)\nv_readfirstlane_b32 s73, v8\ns_cmp_lg_u32 s73, 1\ns_cmov_b32 s99, {OOB}\n"
                    f"buffer_store_dword v1, off, {SWS}, s99 sc1\ns_mov_b64 exec, -1\n{nf}:")
        put(23, "D", "s_setprio 3")
        put(self.opt("cr", 31), "D", f"s_mov_b64 exec, 1\nds_add_u32 v2, v3 offset:{CR}\ns_mov_b64 exec, -1")
        put(36, "A", f"s_setprio 1\ns_cmp_ge_u32 {sW}, 4\ns_cbranch_scc1 {lo}\ns_setprio 2\n{lo}:")
        put(36, "D", f"ds_read_b32 v87, v86 offset:{C1}")
        for g in range(64):
            ps, t = divmod(g, 8)
            s = sreg(g)
            e = lambda i: f"v_exp_f32 v{s+i}, v{s+i}"
            c = lambda k: f"v_cvt_pk_bf16_f32 v{s+k}, v{s+2*k}, v{s+2*k+1}"
            more = g < 62
            seq = [e(0), e(1)]
            if g > 0:
                seq.append(pv(g - 1, 1))
            seq += slot(g, "A")
            vw = lambda: need(("V0", kt(g)), ("V1", kt(g)))
            if g % 2 == 0:
                if more:
                    w = xneed(g + 2)
                    if t == 6:
                        w = [(w[0] + " " if w else "s_waitcnt ") + "lgkmcnt(2)"]
                    seq += w
                seq += [e(2), e(3), c(0), e(4), c(1), e(5)]
                if more:
                    seq.append(qkx(g + 2))
                seq += slot(g, "B") + vw() + [e(6), e(7), c(2), e(8), c(3), e(9), e(10), e(11), c(4), e(12), c(5), e(13), pv(g, 0)]
                seq += slot(g, "D") + [e(14), e(15), c(6), c(7)]
                assert (g, "C") not in slots
            else:
                if more:
                    w = need(("K", kt(g + 1)), ("K", kt(g + 2)))
                    if t == 7:
                        w = [(w[0] + " " if w else "s_waitcnt ") + "lgkmcnt(0)"]
                    seq += w
                seq += [e(2), e(3), c(0), e(4), c(1)]
                if more:
                    seq.append(qk16(g + 1))
                seq += slot(g, "B") + [e(5), e(6), e(7), c(2), e(8), c(3)]
                if more:
                    seq.append(qk16(g + 2))
                seq += slot(g, "C") + vw() + [e(9), e(10), e(11), c(4), e(12), c(5), pv(g, 0)] + slot(g, "D") + [e(13), e(14), e(15), c(6), c(7)]
            for x in seq:
                a(x)
            if g == 39:
                a(f"v_readfirstlane_b32 s73, v87\ns_cmp_ge_u32 s73, 4\ns_cbranch_scc1 {ok}")
                self.wait(C1, 4, sleep=2, base="v86")
                a(f"{ok}:")
            if g == 7:
                self.stamp(11)
            if t == 7:
                self.stamp(2 + ps, 5)
        a(pv(63, 1))
        self.norm_setup(1)
        ex = export(3)
        for x in ex[:3]:
            a(x)
        a(f"ds_add_rtn_u32 v1, v{self.vCT}, v3 offset:768")

    T64, T32A, TW1, TW2, T32B, NTAB = 0, 24, 27, 35, 43, 49
    NPRE = 35

    def make_tables(self):
        L = np.arange(64); Lm = (L & 15)[:, None]; Lg = (L >> 4)[:, None]
        jj = np.arange(8)[None, :]; r = np.arange(4)[None, :]
        def pk(v):
            b = M.bf(v.astype(np.float32)).astype(np.uint32)
            return (b[:, 0::2] | (b[:, 1::2] << 16)).astype(np.uint32)
        parts = lambda z: (z.real, z.imag, -z.imag)
        w = lambda n, x, y: np.exp(-2j * np.pi * ((x * y) % n) / n)
        f32 = lambda v: v.astype(np.float32).view(np.uint32)
        out = []
        for H in range(2):
            for k in range(3):
                for t in range(4):
                    for ks in range(2):
                        out.append(pk(parts(w(64, 16 * (t ^ (2 * H)) + Lm, 32 * (ks ^ H) + 16 * (jj >> 2) + 4 * Lg + (jj & 3)))[k]))
            for k in range(3):
                out.append(pk(parts(w(32, 8 * Lg + jj, 16 * H + Lm))[k]))
            for t in range(4):
                z = w(2048, 16 * (t ^ (2 * H)) + 4 * Lg + r, 16 * H + Lm)
                out += [f32(z.real), f32(z.imag)]
            for t in range(4):
                z = np.conj(w(2048, 16 * (t ^ (2 * H)) + Lm, 16 * H + 4 * Lg + r))
                out += [f32(z.real), f32(z.imag)]
            for k in range(3):
                for at in range(2):
                    out.append(pk(parts(w(32, 8 * (Lm >> 2) + 4 * at + (Lm & 3), 16 * (H ^ (jj >> 2)) + 4 * Lg + (jj & 3)))[k]))
        return np.concatenate([o.reshape(-1) for o in out])

    def tload(self, frag, dst):
        if self.tgroup != frag // 4:
            self.tgroup = frag // 4
            self.a(f"s_add_u32 s88, s87, {(frag // 4) * 4096}")
        self.a(f"buffer_load_dwordx4 {vr(dst,4)}, v5, {STB}, s88 offen offset:{(frag % 4) * 1024}")

    def stage2_tables(self, part):
        a = self.a
        a(f"""
s_getpc_b64 s[64:65]
s_add_u32 s64, s64, spectral_tables@rel32@lo+4
s_addc_u32 s65, s65, spectral_tables@rel32@hi+12
s_mov_b32 s66, {2*self.NTAB*1024}
s_mov_b32 s67, 0x20000
v_lshlrev_b32 v5, 4, v0
s_and_b32 s86, {sW}, 1
s_mul_i32 s87, s86, {self.NTAB*1024}
""")
        self.tgroup = None
        if part == 0:
            for f in range(24):
                self.tload(self.T64 + f, 80 + 4 * f)
            for f in range(3):
                self.tload(self.T32A + f, 240 + 4 * f)
        else:
            for f in range(8):
                self.tload(self.TW1 + f, 16 + 4 * f)

    def stage2(self):
        a = self.a
        A, P, Q, TW, WW, PK, TMP = 80, 48, 176, 16, 208, 240, 8
        self.tgroup = None
        a(f"""
v_and_b32 v6, 15, v0
v_lshlrev_b32 v6, 6, v6
v_lshrrev_b32 v7, 4, v0
v_lshl_add_u32 v6, v7, 4, v6
s_mul_i32 s90, s89, {2*TP}
s_add_u32 s91, s90, {TP}
s_cmp_eq_u32 s89, 288
s_cmov_b32 s90, {TP}
s_cmov_b32 s91, {OOB}
s_cmp_eq_u32 s89, 0
s_cmov_b32 s91, {OOB}
s_lshl_b32 s73, s86, 11
s_add_u32 s90, s90, s73
s_add_u32 s91, s91, s73
s_lshl_b32 s85, s86, 12
s_sub_u32 s85, 2048, s85
s_lshr_b32 s73, {sW}, 1
s_and_b32 s73, s73, 1
s_xor_b32 s73, s73, 1
s_lshl_b32 s99, s73, 2
s_lshl_b32 s73, s73, 12
s_lshl_b32 s84, s86, 11
s_add_u32 s73, s73, s84
s_add_u32 s73, s73, {L_XCH}
v_add_u32 v7, s73, v5
s_sub_u32 s73, s73, s84
s_xor_b32 s84, s84, 0x800
s_add_u32 s84, s84, s73
""")
        cl = a.label("GC"); cg = a.label("CG"); ot = a.label("GO"); dn = a.label("GD")
        a(f"s_cmp_lg_u32 {sW}, 7\ns_cbranch_scc1 {ot}\ns_lshr_b32 s73, s2, 3\ns_cmp_lg_u32 s73, 16\ns_cbranch_scc1 {cl}")
        a(f"v_lshlrev_b32 v8, 7, v0\ns_mov_b32 s92, {WS_FS}\ns_sleep {self.opt('dw', 0)}")
        self.poll(f"buffer_load_dwordx4 v[12:15], v8, {SWS}, s92 offen sc1", [12, 13, 14, 15], sleep=4)
        a(f"s_and_b32 s92, s2, 7\ns_lshl_b32 s92, s92, 7\ns_add_u32 s92, s92, {WS_GOS}")
        self.set_flag("s92")
        a(f"s_branch {cg}\n{cl}:\ns_sleep {self.opt('d2', 16)}")
        self.go_wait(WS_GOS, 252, 8)
        a(f"{cg}:")
        self.add1(CG)
        a(f"s_branch {dn}\n{ot}:")
        self.wait(CG, 1, sleep=2)
        a(f"s_waitcnt vmcnt(0)\n{dn}:")
        self.stamp(7)
        self.stamp(1, 2)
        a(f"s_add_u32 s92, s90, {WS_T}\ns_add_u32 s93, s91, {WS_T}\ns_add_u32 s82, s92, s85\ns_add_u32 s83, s93, s85")
        for t in range(4):
            for ri in range(2):
                so = (("s92", "s93"), ("s82", "s83"))[t >> 1][ri]
                a(f"buffer_load_dwordx4 {vr(WW+8*t+4*ri,4)}, v6, {SWS}, {so} offen offset:{1024*(t&1)} sc1")
        mf = lambda acc, x, y, first: a(f"v_mfma_f32_16x16x32_bf16 {vr(acc,4)}, {vr(x,4)}, {vr(y,4)}, {'0' if first else vr(acc,4)}")
        re = lambda base, t: base + 8 * t
        im = lambda base, t: base + 8 * t + 4
        for t in range(4):
            a(f"s_waitcnt vmcnt({6 - 2*t})")
            if t == 0: self.stamp(2, 2)
            mf(re(P, t), re(WW, t), PK, True); mf(im(P, t), re(WW, t), PK + 4, True)
            mf(re(P, t), im(WW, t), PK + 8, False); mf(im(P, t), im(WW, t), PK, False)
        a(f"s_mul_i32 s92, s89, {WP}\ns_lshl_b32 s73, s86, 12\ns_add_u32 s92, s92, s73\ns_lshl_b32 s73, s86, 11\ns_add_u32 s92, s92, s73\ns_add_u32 s92, s92, {WS_WT}")
        a("s_add_u32 s82, s92, s85")
        for t in range(4):
            a(f"buffer_load_dwordx4 {vr(WW+8*t+4,4)}, v5, {SWS}, {('s92', 's82')[t >> 1]} offen offset:{1024*(t&1)} sc1")
        def cmul(x, c, dst):
            for t in range(4):
                ops = []
                for h in range(2):
                    t0, t1 = TMP + 4 * h, TMP + 4 * h + 2
                    xr, xi, cr, ci = re(x, t) + 2 * h, im(x, t) + 2 * h, re(c, t) + 2 * h, im(c, t) + 2 * h
                    ops.append([f"v_pk_mul_f32 {vr(t0,2)}, {vr(xr,2)}, {vr(cr,2)}",
                                f"v_pk_mul_f32 {vr(t1,2)}, {vr(xr,2)}, {vr(ci,2)}",
                                f"v_pk_fma_f32 {vr(t0,2)}, {vr(xi,2)}, {vr(ci,2)}, {vr(t0,2)} neg_lo:[1,0,0] neg_hi:[1,0,0]",
                                f"v_pk_fma_f32 {vr(t1,2)}, {vr(xi,2)}, {vr(cr,2)}, {vr(t1,2)}",
                                f"v_cvt_pk_bf16_f32 v{dst(t,0)+h}, v{t0}, v{t0+1}",
                                f"v_cvt_pk_bf16_f32 v{dst(t,1)+h}, v{t1}, v{t1+1}"])
                for j in range(0, 6, 2):
                    for o in ops:
                        a(o[j]); a(o[j + 1])
        pkd = lambda t, part: PK + 8 * part + 2 * t
        ks_ = lambda part, ks: PK + 8 * part + 4 * ks
        t64 = lambda k, t, ks: A + 32 * k + 8 * t + 4 * ks
        self.stamp(3, 2)
        cmul(P, TW, pkd)
        self.stamp(4, 2)
        for f in range(8):
            self.tload(self.TW2 + f, TW + 4 * f)
        for t in range(4):
            for ks in range(2):
                mf(re(Q, t), t64(0, t, ks), ks_(0, ks), ks == 0); mf(im(Q, t), t64(1, t, ks), ks_(0, ks), ks == 0)
            for ks in range(2):
                mf(re(Q, t), t64(2, t, ks), ks_(1, ks), False); mf(im(Q, t), t64(0, t, ks), ks_(1, ks), False)
        self.stamp(5, 2)
        a("s_waitcnt vmcnt(8)")
        for t in range(4):
            b = WW + 8 * t
            for k in range(4):
                a(f"v_lshlrev_b32 v{b+2*k}, 16, v{b+4+k}\nv_and_b32 v{b+2*k+1}, 0xffff0000, v{b+4+k}" if k < 2 else "")
            a(f"v_and_b32 v{b+5}, 0xffff0000, v{b+6}\nv_lshlrev_b32 v{b+4}, 16, v{b+6}\nv_lshlrev_b32 v{b+6}, 16, v{b+7}\nv_and_b32 v{b+7}, 0xffff0000, v{b+7}")
        cmul(Q, WW, pkd)
        self.stamp(6, 2)
        for f in range(6):
            self.tload(self.T32B + f, WW + 4 * f)
        for t in (2, 3, 0, 1):
            for ks in range(2):
                mf(re(P, t), ks_(0, ks), t64(0, t, ks), ks == 0); mf(im(P, t), ks_(1, ks), t64(0, t, ks), ks == 0)
            for ks in range(2):
                mf(re(P, t), ks_(1, ks), t64(1, t, ks), False); mf(im(P, t), ks_(0, ks), t64(2, t, ks), False)
        self.stamp(7, 2)
        a("v_add_u32 v160, s99, v2")
        self.kv_addr()
        self.kv_loads()
        a(f"s_waitcnt vmcnt({6 + self.NLD1})")
        cmul(P, TW, lambda t, part: (PK + 8 * t + 4 * part) if t < 2 else (Q + 4 * (t - 2) + 2 * part))
        a(f"ds_write_b128 v7, {vr(Q,4)}\nds_write_b128 v7, {vr(Q+4,4)} offset:1024")
        self.add1(XA, base="v160")
        a("v_add_u32 v7, s84, v5")
        self.wait(XA, 2, sleep=0, base="v160")
        for t in range(2):
            for part in range(2):
                a(f"ds_read_b64 {vr(PK+8*t+4*part+2,2)}, v7 offset:{1024*t+8*part}")
        self.stamp(8, 2)
        a(f"s_waitcnt vmcnt({self.NLD1}) lgkmcnt(0)")
        t32 = lambda k, at: WW + 8 * k + 4 * at
        out = lambda t, part, at: Q + 16 * t + 8 * part + 4 * at
        for t in range(2):
            for at in range(2):
                mf(out(t, 0, at), t32(0, at), PK + 8 * t, True); mf(out(t, 1, at), t32(0, at), PK + 8 * t + 4, True)
            for at in range(2):
                mf(out(t, 0, at), t32(1, at), PK + 8 * t + 4, False); mf(out(t, 1, at), t32(2, at), PK + 8 * t, False)
        a(f"s_add_u32 s92, s90, {WS_Y}\ns_add_u32 s93, s91, {WS_Y}")
        for t in range(2):
            for part in range(2):
                b = out(t, part, 0); d = 48 + 8 * t + 4 * part
                for k in range(4):
                    a(f"v_cvt_pk_bf16_f32 v{d+k}, v{b+2*k}, v{b+2*k+1}")
                a(f"buffer_store_dwordx4 {vr(d,4)}, v6, {SWS}, {'s93' if part else 's92'} offen offset:{1024*t} sc1")
        self.stamp(9, 2)
        a("v_mov_b32 v7, v160")
        self.flag4("s99", "s89", WS_FY)

    def l_mid(self):
        a = self.a
        go = a.label("S2"); no = a.label("NS2"); n7 = a.label("N7"); kv = a.label("LKV"); tb = a.label("TB"); nw = a.label("NW")
        a(f"s_mov_b32 s89, s2\ns_cmp_lg_u32 {sW}, 7\ns_cbranch_scc1 {n7}")
        self.s_flag()
        a(f"s_mov_b32 s89, s2\ns_branch {go}\n{n7}:")
        self.wait(CW, 1, sleep=6)
        if "tcv" in self.opts:
            a(f"s_cmp_eq_u32 {sW}, 6\ns_cbranch_scc1 {go}")
        else:
            self.wait(CR, 4, sleep=4)
            a(f"s_cmp_eq_u32 {sW}, 6\ns_cbranch_scc1 {tb}")
        a(f"""
s_add_u32 s89, s2, 192
s_sub_u32 s73, s2, 64
s_cmp_gt_u32 s73, 32
s_cbranch_scc1 {nw}
{tb}:
""")
        self.stage2_tables(0)
        a(f"{go}:")
        self.stage2_tables(1)
        self.stage2()
        a(f"s_branch {kv}\n{nw}:")
        self.wait(CR, 4, sleep=4)
        a(f"{no}:\ns_mov_b32 s99, {OOB}")
        self.kv_addr()
        self.kv_loads()
        a(f"s_setprio 1\n{kv}:")
        self.stamp(9)

    NT = 192

    def tail(self, mm, n):
        a = self.a
        ACC, ACX = 24, 40
        WF = 48
        NT = self.NT
        w = 2 * mm + n
        a("s_setprio 2")
        self.busy = 2
        a(f"""
ds_read_b32 v4, v23 offset:{2304 + 128 * (1 - n)}
ds_read_b32 v45, v23 offset:{2304 + 128 * n}
v_and_b32 v7, 15, v0
v_lshl_add_u32 v7, v7, 2, v2
ds_read_b32 v46, v7 offset:{2304 + 128 * n + 64 * mm}
v_add_u32 v7, 36864, v16
v_add_u32 v8, 36864, v17
s_waitcnt lgkmcnt(0)
v_sub_f32 v4, 1.0, v4
""")

        normalize = self.normalize

        def wrow(kind, k, hh, u):
            if kind == "m":
                return ("v6", (72 * k + 18 * hh + 8 * u) * 64) if k < 8 else ("v9", (144 * u + 18 * hh) * 64)
            return ("v10", (144 * k + 18 * hh + 8 * u) * 16) if k < 4 else ("v11", (144 * u + 18 * hh) * 16)

        def consume(i, probe):
            OB, AX = 192, 248
            hh = i >> 1
            seq = []
            for ks in range(9):
                seq.append(("m", ks))
                if ks % 2 == 1 or ks == 8: seq.append(("x", ks // 2))
            def rd(k):
                for u in range(2):
                    base, off = wrow("x", k, hh, u)
                    a(f"ds_read_b64_tr_b16 {vr(AX+4*(k%2)+2*u,2)}, {base} offset:{off}")
            rd(0); rd(1)
            if probe:
                l = a.label("CP"); d = a.label("CQ")
                a(f"{l}:\ns_add_u32 s90, s94, {i*9216 + 8192}\nbuffer_load_dwordx4 {vr(OB,4)}, v5, {SWS}, s90 offen sc1")
                a(f"s_waitcnt vmcnt(0)\nv_max_u32 v1, v{OB}, v{OB+1}\nv_max3_u32 v1, v1, v{OB+2}, v{OB+3}")
                a(f"v_cmp_eq_u32 vcc, -1, v1\ns_cmp_eq_u64 vcc, 0\ns_cbranch_scc1 {d}")
                a(f"s_sleep 8\ns_sub_u32 {sSPIN}, {sSPIN}, 1\ns_cbranch_scc0 {l}\ns_branch L_bail\n{d}:")
            l = a.label("CL"); d = a.label("CD")
            a(f"{l}:")
            chk = []
            oreg = lambda it: OB + (4 * it[1] if it[0] == "m" else 36 + 4 * it[1])
            for it in seq:
                kind, k = it
                if kind == "m" and k % 4 == 0:
                    a(f"s_add_u32 s90, s94, {i*9216 + 1024*k}")
                voff, last = ("v5", k == 8) if kind == "m" else ("v12" if k < 4 else "v13", k == 4)
                imm = 1024 * (k % 4) if kind == "m" else 2048 * (k % 2)
                a(f"buffer_load_dwordx4 {vr(oreg(it),4)}, {voff}, {SWS}, s90 offen offset:{imm} sc1")
                chk.append([oreg(it) + r for r in range(4 if last else 1)])
            flat = [(j, r) for j, rs in enumerate(chk) for r in rs]
            a(f"s_waitcnt vmcnt({len(chk) - 2})\nv_max_u32 v1, v{flat[0][1]}, v{flat[1][1]}")
            for p in range(2, len(flat), 2):
                a(f"s_waitcnt vmcnt({len(chk) - 1 - flat[p+1][0]})\nv_max3_u32 v1, v1, v{flat[p][1]}, v{flat[p+1][1]}")
            a(f"v_cmp_eq_u32 vcc, -1, v1\ns_cmp_eq_u64 vcc, 0\ns_cbranch_scc1 {d}")
            a(f"s_sleep {2 if i >= 6 else 8}\ns_sub_u32 {sSPIN}, {sSPIN}, 1\ns_cbranch_scc0 {l}\ns_branch L_bail\n{d}:")
            for kind, k in seq:
                if kind == "m":
                    a(f"v_mfma_f32_32x32x16_bf16 {vr(ACC,16)}, {vr(WF+36*hh+4*k,4)}, {vr(oreg((kind,k)),4)}, {vr(ACC,16)}")
                else:
                    a(f"s_waitcnt lgkmcnt({2 if k < 4 else 0})")
                    a(f"v_mfma_f32_16x16x32_bf16 {vr(ACX,4)}, {vr(AX+4*(k%2),4)}, {vr(oreg((kind,k)),4)}, {vr(ACX,4)}")
                    if k + 2 < 5:
                        rd(k + 2)

        normalize(2 * mm + (1 - n))
        self.stamp(2, 4)
        GM, GX, GD, GE = 192, 224, 8, 3
        AC2, BF, BX = ACC, 236, 248
        vm = []
        def gm(ks):
            a(f"buffer_load_dwordx4 {vr(GM+4*(ks%GD),4)}, v5, {SWS}, s93 offen offset:{1024*(ks%4)} sc1")
            if ks % 4 == 3: a("s_add_u32 s93, s93, 4096")
            vm.append(("m", ks))
        def gx(T):
            a(f"buffer_load_dwordx4 {vr(GX+4*(T%GE),4)}, v14, {SWS}, s98 offen offset:{2048*(T%2)} sc1")
            if T % 2 == 1: a("s_add_u32 s98, s98, 4096")
            vm.append(("x", T))
        bulk = w < 2
        if bulk:
            self.srd(SWO, 18, 663552)
            self.panel_setup(2, va=48)
        a(f"s_mul_i32 s93, {sJ}, {3*36*1024}\ns_add_u32 s98, s93, {WS_G + 2*36*1024}\ns_add_u32 s93, s93, {WS_G + mm*36*1024}")
        self.wait(CV, 8, sleep=3)
        if bulk:
            self.panel_loads(SWO, L_WO0, L_WO1, L_WOX, False, 36, 2, va=48, rotate=True)
        self.stamp(1, 4)
        for ks in range(GD):
            gm(ks)
            if ks % 2 == 1 and ks // 2 < GE: gx(ks // 2)
        fy = (f"buffer_load_dwordx4 {vr(BF+2,4)}, v{BF}, {SWS}, s99 offen sc1\nbuffer_load_dwordx4 {vr(BF+6,4)}, v{BF+1}, {SWS}, s92 offen sc1\n"
              f"buffer_load_dword v{BF+10}, off, {SWS}, s88 sc1")
        if w == 0:
            a(f"v_lshlrev_b32 v{BF}, 7, v0\nv_min_u32 v{BF+1}, {7*128}, v{BF}\ns_mov_b32 s99, {WS_FY}\ns_mov_b32 s92, {WS_FY + 8192}\ns_mov_b32 s88, {WS_FY + 72*128}")
            a(fy)
        if bulk:
            a(f"s_waitcnt vmcnt({len(vm) + (3 if w == 0 else 0)})")
            self.add1(S3)
        self.wait(S3, 2, sleep=1 if bulk else 3)
        self.stamp(3, 4)
        for hh in range(4):
            for k in range(9):
                for u in range(2):
                    base, off = wrow("m", k, hh, u)
                    a(f"ds_read_b64_tr_b16 {vr(WF+36*hh+4*k+2*u,2)}, {base} offset:{off}")
                if k % 3 == 2:
                    a("s_waitcnt lgkmcnt(6)")
        self.stamp(4, 4)
        a("s_waitcnt lgkmcnt(0)")
        self.add1(S2)
        if w == 0:
            ok = a.label("YOK")
            a("s_waitcnt vmcnt(0)")
            self.cmp_regs([BF + 2 + k for k in range(9)], sTAG)
            a(f"s_cbranch_scc1 {ok}")
            self.poll(fy, [BF + 2 + k for k in range(9)], sleep=12)
            a(f"{ok}:")
            self.add1(CY)
            ne = a.label("NE")
            a(f"s_cmp_lg_u32 s2, 0\ns_cbranch_scc1 {ne}")
            self.set_flag(str(WS_EPOCH))
            a(f"{ne}:")
        elif bulk:
            self.wait(CY, 1, sleep=2)
        if bulk:
            self.wait(S2, 4, sleep=1)
            self.stamp(1); self.stamp(5, 4)
            a(f"s_lshl_b32 s99, {sP}, 7\ns_add_u32 s99, s99, {WS_Y + w * 8 * TP}\ns_mov_b32 s92, {L_Y + w * 1024}")
            lp = a.label("YL")
            a(f"s_mov_b32 s88, 5\n{lp}:")
            for k in range(6):
                a(f"s_mov_b32 m0, s92\ns_add_u32 s92, s92, 2048\nbuffer_load_dwordx4 v15, {SWS}, s99 offen sc1 lds\ns_add_u32 s99, s99, {16*TP}")
            a(f"s_sub_u32 s88, s88, 1\ns_cbranch_scc0 {lp}")
            vm.extend([("y", k) for k in range(36)])
            a("s_waitcnt vmcnt(18)")
            self.add1(S1)
        self.stamp(6, 4)
        def yrd(it):
            kind, k = it
            if kind == "m":
                b = BF + 4 * (k % 3); base, off = ("v16", 2048 * k) if k < 18 else ("v7", 2048 * (k - 18))
            else:
                b = BX + 4 * (k % 2); base, off = ("v17", 4096 * k) if k < 9 else ("v8", 4096 * (k - 9))
            a(f"ds_read_b64_tr_b16 {vr(b,2)}, {base} offset:{off}\nds_read_b64_tr_b16 {vr(b+2,2)}, {base} offset:{off+512}")
        done = {"vm": len(vm) - 18 if bulk else 0}
        def half(k0):
            seq = []
            for ks in range(k0, k0 + 18):
                seq.append(("m", ks))
                if ks % 2 == 1: seq.append(("x", ks // 2))
            for it in seq[:3]:
                yrd(it)
            for i, it in enumerate(seq):
                wv = ""
                if vm.index(it) + 1 > done["vm"]:
                    done["vm"] = vm.index(it) + 1
                    wv = f"vmcnt({len(vm) - done['vm']}) "
                a(f"s_waitcnt {wv}lgkmcnt({2 * (min(i + 3, len(seq)) - i - 1)})")
                kind, k = it
                if kind == "m":
                    a(f"v_mfma_f32_32x32x16_bf16 {vr(AC2,16)}, {vr(GM+4*(k%GD),4)}, {vr(BF+4*(k%3),4)}, {'0' if k == 0 else vr(AC2,16)}")
                    if k + GD < 36: gm(k + GD)
                else:
                    a(f"v_mfma_f32_16x16x32_bf16 {vr(AC2+16,4)}, {vr(GX+4*(k%GE),4)}, {vr(BX+4*(k%2),4)}, {'0' if k == 0 else vr(AC2+16,4)}")
                    if k + GE < 18: gx(k + GE)
                if i + 3 < len(seq):
                    yrd(seq[i + 3])
                if bulk and it == ("m", GD):
                    self.add1(S4)
        self.wait(S1, 2, sleep=1 if bulk else 2)
        self.stamp(7, 4)
        half(0)
        self.wait(S4, 2, sleep=1)
        half(18)
        self.stamp(2); self.stamp(8, 4)
        self.srd(SOUT, 22, 2359296)
        a(f"""
s_mul_i32 s93, {sP}, 2304
s_add_u32 s93, s93, s95
s_add_u32 s93, s93, {1152 * n}
s_add_u32 s92, s93, {16 * mm * 73728}
""")
        for i in range(8):
            a(f"v_pk_mul_f32 {vr(ACC+2*i,2)}, {vr(ACC+2*i,2)}, v[44:45] op_sel:[0,1] op_sel_hi:[1,1]")
        for i in range(2):
            a(f"v_pk_mul_f32 {vr(ACX+2*i,2)}, {vr(ACX+2*i,2)}, v[46:47] op_sel_hi:[1,0]")
        prog = {0: ["N5", "C0", "C2", "C4", "C6"], 1: ["N4", "C1", "C3", "C5", "C7"],
                2: ["C0", "C2", "C4", "C6"], 3: ["C1", "C3", "N6", "C5", "C7"]}[w]
        gates = {4: 5, 5: 6, 6: 7, 7: 7}
        for it in prog:
            i = int(it[1])
            if it[0] == "N":
                normalize(i)
                self.stamp(3)
            else:
                if i >= 4:
                    self.wait(256 * gates[i], 4, sleep=2 if gates[i] == 7 else 4)
                if i == 7:
                    a(f"s_sleep {self.opt('d7', 4)}")
                if i >= 6: self.stamp(4)
                consume(i, i in (4, 5))
                if i in (2, 3): self.stamp(9, 4)
                if i in (4, 5): self.stamp(10, 4)
                if i in (6, 7): self.stamp(11, 4)
        self.stamp(6)
        fl = " sc1" if "outsc1" in self.opts else " nt" if "outnt" in self.opts else ""
        a(f"v_cvt_pk_bf16_f32 v{ACX}, v{ACX}, v{ACX+1}\nv_cvt_pk_bf16_f32 v{ACX+1}, v{ACX+2}, v{ACX+3}")
        for k in range(8):
            a(f"v_cvt_pk_bf16_f32 v{ACC+k}, v{ACC+2*k}, v{ACC+2*k+1}")
        a(f"buffer_store_dwordx4 {vr(ACC,4)}, v18, {SOUT}, s93 offen offset:{64*mm}{fl}")
        a(f"buffer_store_dwordx4 {vr(ACC+4,4)}, v18, {SOUT}, s93 offen offset:{64*mm+16}{fl}")
        a(f"s_mov_b32 exec_hi, 0\nbuffer_store_dwordx2 {vr(ACX,2)}, v19, {SOUT}, s92 offen offset:128{fl}\ns_mov_b64 exec, -1")
        self.stamp(7)

    def norm_setup(self, rows):
        self.a(f"""
v_lshlrev_b32 v5, 4, v0
v_and_b32 v23, 31, v0
v_add_u32 v20, {L_EX}, v5
v_lshlrev_b32 v21, 3, v0
v_add_u32 v21, {L_EX + 2048}, v21
v_lshlrev_b32 v22, 3, v23
v_add_u32 v22, {L_EX + 2048 + 256}, v22
v_lshl_add_u32 v23, v23, 2, v2
ds_read_b32 v4, v23 offset:{2304 + 128 * rows}
s_mul_i32 s94, {sP}, {8*9216}
s_add_u32 s94, s94, {WS_OF}
s_lshl_b32 s96, {sJ}, 10
s_add_u32 s96, s96, s94
s_lshr_b32 s97, {sJ}, 2
s_lshl_b32 s97, s97, 9
s_and_b32 s73, {sJ}, 3
s_lshl_b32 s73, s73, 2
s_add_u32 s97, s97, s73
s_add_u32 s97, s97, s94
s_add_u32 s97, s97, 8192
""")

    def normalize(self, i, wait=True, gate=None):
        a = self.a
        NT = self.NT
        q = i % 4
        if wait:
            self.wait(256 * i, 4, sleep=2 if i >= 6 else 4)
        def reads(s):
            b = NT + 12 * s; o = 10240 * q + 2560 * s
            a(f"ds_read_b128 {vr(b,4)}, v20 offset:{o}\nds_read_b128 {vr(b+4,4)}, v20 offset:{o+1024}\n"
              f"ds_read_b64 {vr(b+8,2)}, v21 offset:{o}\nds_read_b32 v{b+10}, v22 offset:{o}")
        reads(0); reads(1)
        a(f"s_add_u32 s90, s96, {i*9216}\ns_add_u32 s91, s97, {i*9216}\ns_movk_i32 s89, {i}")
        if gate:
            a("s_waitcnt lgkmcnt(8)")
            a(gate)
        reads(2)
        for s in range(1, 4):
            a(f"s_waitcnt lgkmcnt({4 if s < 3 else 0})")
            if s == 1:
                reads(3)
            for k in range(5):
                a(f"v_pk_add_f32 {vr(NT+2*k,2)}, {vr(NT+2*k,2)}, {vr(NT+12*s+2*k,2)}")
            a(f"v_add_f32 v{NT+10}, v{NT+10}, v{NT+12*s+10}")
        if i < 4:
            self.wait(CG, 1, sleep=2)
            self.add1(CN)
        self.safety()
        a(f"v_rcp_f32 v{NT+10}, v{NT+10}\ns_nop 0\nv_mul_f32 v{NT+10}, v4, v{NT+10}")
        for k in range(5):
            a(f"v_pk_mul_f32 {vr(NT+2*k,2)}, {vr(NT+2*k,2)}, {vr(NT+10,2)} op_sel_hi:[1,0]")
        for k in range(5):
            a(f"v_cvt_pk_bf16_f32 v{NT+12+k}, v{NT+2*k}, v{NT+2*k+1}")
        a(f"v_min_u32 v{NT+12}, -2, v{NT+12}\nv_min_u32 v{NT+16}, -2, v{NT+16}")
        a(f"buffer_store_dwordx4 {vr(NT+12,4)}, v5, {SWS}, s90 offen sc1\ns_mov_b32 exec_hi, 0")
        a(f"buffer_store_dword v{NT+16}, v5, {SWS}, s91 offen sc1")
        a("s_mov_b64 exec, -1")

    def safety(self):
        a = self.a
        NT = self.NT
        ok = a.label("SOK")
        t = NT + 12
        a(f"v_pk_mul_f32 {vr(t,2)}, {vr(NT,2)}, 0 op_sel_hi:[1,0]")
        for k in range(1, 5):
            a(f"v_pk_fma_f32 {vr(t,2)}, {vr(NT+2*k,2)}, 0, {vr(t,2)} op_sel_hi:[1,0,1]")
        lo, hi = (127 - 60) << 23, (127 + 64) << 23
        if "forcefb" in self.opts:
            lo, hi = (127 + 60) << 23, (127 + 64) << 23
        a(f"v_add_f32 v{t}, v{t}, v{t+1}\nv_subrev_u32 v{t+1}, {lo:#x}, v{NT+10}\nv_cmp_u_f32 vcc, v{t}, v{t}")
        a(f"s_mov_b32 s73, {hi - lo:#x}\nv_cmp_lt_u32 s[74:75], s73, v{t+1}\ns_or_b64 vcc, vcc, s[74:75]\ns_cmp_eq_u64 vcc, 0\ns_cbranch_scc1 {ok}")
        a(f"s_call_b64 s[86:87], L_fallback\n{ok}:")

    def fallback(self):
        a = self.a
        NT = self.NT
        O, S, Q, QX, K, KX, V, MX = NT, 208, 224, 228, 230, 234, 236, 244
        vK, vKX, vV, T0 = 245, 246, 247, 248
        l1 = a.label("FB1"); l2 = a.label("FB2")
        qk = f"""
buffer_load_dwordx4 {vr(K,4)}, v{vK}, {SWS}, s[84] offen sc1
buffer_load_dword v{KX}, v{vKX}, {SWS}, s[85] offen sc1
""".replace("s[84]", "s84").replace("s[85]", "s85")
        mm = f"""
v_mfma_f32_32x32x16_bf16 {vr(S,16)}, {vr(K,4)}, {vr(Q,4)}, 0
v_mfma_f32_32x32x8_bf16 {vr(S,16)}, {vr(KX,2)}, {vr(QX,2)}, {vr(S,16)}
s_add_u32 s84, s84, 1024
s_add_u32 s85, s85, 128
"""
        a(f"""
L_fallback:
s_nop 4
v_and_b32 v250, 31, v0
v_lshrrev_b32 v251, 5, v0
v_lshlrev_b32 v{vK}, 5, v250
v_lshl_add_u32 v{vK}, v251, 4, v{vK}
v_mov_b32 v{T0}, {OOB}
v_lshlrev_b32 v{vKX}, 2, v250
v_cmp_lt_u32 vcc, 31, v0
v_subrev_u32 v{T0+1}, 64, v{vK}
v_cndmask_b32 v{vKX}, v{vKX}, v{T0}, vcc
v_cmp_eq_u32 vcc, 20, v250
s_mul_i32 s73, s89, 1536
v_cndmask_b32 v{T0+1}, v{T0}, v{T0+1}, vcc
v_cmp_gt_u32 vcc, 18, v250
s_add_u32 s73, s73, {L_QS}
v_cndmask_b32 v{vV}, v{T0+1}, v{vK}, vcc
v_mul_u32_u24 v{T0}, 48, v250
v_add_u32 v{T0}, s73, v{T0}
v_lshl_add_u32 v{T0+1}, v251, 2, v{T0}
v_lshl_add_u32 v{T0}, v251, 4, v{T0}
ds_read_b128 {vr(Q,4)}, v{T0}
ds_read_b32 v{QX}, v{T0+1} offset:32
v_mov_b32 v{QX+1}, 0
v_mov_b32 v{KX+1}, 0
v_mov_b32 v{MX}, 0xff800000
s_mov_b32 s84, {WS_K16}
s_mov_b32 s85, {WS_KX}
s_mov_b32 s88, 63
{l1}:
{qk}
s_waitcnt vmcnt(0) lgkmcnt(0)
{mm}
""")
        for k in range(8):
            a(f"v_max3_f32 v{MX}, v{MX}, v{S+2*k}, v{S+2*k+1}")
        a(f"""
s_sub_u32 s88, s88, 1
s_cbranch_scc0 {l1}
v_mov_b32 v{T0}, v{MX}
v_permlane32_swap_b32 v{MX}, v{T0}
v_max_f32 v{MX}, v{MX}, v{T0}
s_mov_b32 s84, {WS_K16}
s_mov_b32 s85, {WS_KX}
s_mov_b32 s83, {WS_VF}
s_mov_b32 s88, 63
""")
        for r in range(16):
            a(f"v_mov_b32 v{O+r}, 0")
        a(f"""
{l2}:
{qk}
buffer_load_dwordx4 {vr(V,4)}, v{vV}, {SWS}, s83 offen sc1
buffer_load_dwordx4 {vr(V+4,4)}, v{vV}, {SWS}, s83 offen offset:{VPITCH} sc1
s_waitcnt vmcnt(0)
{mm}
s_add_u32 s83, s83, {2*VPITCH}
""")
        for r in range(16):
            a(f"v_sub_f32 v{S+r}, v{S+r}, v{MX}")
        for r in range(16):
            a(f"v_exp_f32 v{S+r}, v{S+r}")
        for k in range(8):
            a(f"v_cvt_pk_bf16_f32 v{S+k}, v{S+2*k}, v{S+2*k+1}")
        a(f"""
v_mfma_f32_32x32x16_bf16 {vr(O,16)}, {vr(V,4)}, {vr(S,4)}, {vr(O,16)}
v_mfma_f32_32x32x16_bf16 {vr(O,16)}, {vr(V+4,4)}, {vr(S+4,4)}, {vr(O,16)}
s_nop 15
s_sub_u32 s88, s88, 1
s_cbranch_scc0 {l2}
""")
        a(f"v_mov_b32 v{T0}, v{O+8}\nv_mov_b32 v{NT+10}, v{O+8}\nv_permlane32_swap_b32 v{T0}, v{NT+10}\ns_nop 4\ns_setpc_b64 s[86:87]")

    def finish_stamps(self):
        a = self.a
        if self.stamps:
            a("v_mov_b32 v2, 0")
            for i in range(12):
                a(f"v_writelane_b32 v2, s{STAMPS[i]}, {i}")
            a(f"s_lshl_b32 s73, s2, 3\ns_add_u32 s73, s73, {sW}\ns_lshl_b32 s73, s73, 7\ns_add_u32 s73, s73, {WS_DBG}")
            a(f"v_lshlrev_b32 v3, 2, v0\ns_mov_b32 exec_hi, 0\nbuffer_store_dword v2, v3, {SWS}, s73 offen\ns_mov_b64 exec, -1")

    def build(self):
        a = self.a
        self.prologue()
        self.e_front()
        a("L_attn:")
        self.attention()
        self.stamp(8)
        a(f"s_cmp_ge_u32 {sW}, 4\ns_cbranch_scc1 L_last")
        labs = [a.label("TL") for _ in range(4)]
        for w in range(1, 4):
            a(f"s_cmp_eq_u32 {sW}, {w}\ns_cbranch_scc1 {labs[w]}")
        for w in range(4):
            a(f"{labs[w]}:")
            self.tail(w >> 1, w & 1)
            a("s_branch L_fin")
        a("L_last:\ns_setprio 3")
        self.normalize(7, wait=False, gate="v_readfirstlane_b32 s73, v1\nv_sub_f32 v4, 1.0, v4\ns_cmp_lg_u32 s73, 3\ns_cbranch_scc1 L_fin")
        self.stamp(3)
        a("s_branch L_fin")
        a("L_lwave:")
        self.busy = 3
        self.l_front()
        self.l_mid()
        a("s_branch L_attn")
        self.fallback()
        a("L_bail:")
        if self.stamps:
            a(f"s_mov_b32 s{STAMPS[11]}, 0xdead0000")
        a("L_fin:")
        self.stamp(1, 6)
        if self.opt("padto", 0):
            a(f"L_pad:\ns_sleep 2\ns_memrealtime s[78:79]\ns_waitcnt lgkmcnt(0)\ns_sub_u32 s78, s78, s76\ns_cmp_lt_u32 s78, s80\ns_cbranch_scc1 L_pad")
        self.finish_stamps()
        a("L_end:\ns_endpgm")
        body = a.finish()
        tw = self.make_tables()
        assert tw.size == 2 * self.NTAB * 256
        tab = "\n".join(".long " + ",".join(f"{x:#x}" for x in tw[i:i+16]) for i in range(0, tw.size, 16))
        hdr = open("cdna_kernels/" + NAME + ".s.ref").read().split("; Override launch")[0]
        return f"""{hdr}; @launch grid=(256,1,1) block=(512,1,1) lds={LDS_BYTES}
.amdgcn_target "amdgcn-amd-amdhsa--gfx950"
.text
.globl {NAME}_kernel
.p2align 8
.type {NAME}_kernel,@function
{NAME}_kernel:
{body}
.section .rodata,"a"
.p2align 8
.type spectral_tables,@object
spectral_tables:
{tab}
.size spectral_tables, {2*self.NTAB*1024}
.p2align 6
.amdhsa_kernel {NAME}_kernel
  .amdhsa_next_free_vgpr 256
  .amdhsa_next_free_sgpr 102
  .amdhsa_accum_offset 256
  .amdhsa_group_segment_fixed_size 0
  .amdhsa_kernarg_size 96
  .amdhsa_user_sgpr_count 2
  .amdhsa_user_sgpr_kernarg_segment_ptr 1
  .amdhsa_system_sgpr_workgroup_id_x 1
.end_amdhsa_kernel
"""


if __name__ == "__main__":
    opts = sys.argv[2:]
    g = Gen(stamps=2 if "st2" in opts else 3 if "st3" in opts else 4 if "st4" in opts else 5 if "st5" in opts else 6 if "tot" in opts else int("stamps" in opts), cyc="cyc" in opts, opts=opts)
    src = g.build()
    open(sys.argv[1], "w").write(src)
    print("nops added:", g.a.added_nops, "lines:", len(src.splitlines()))
```
